```python
import torch

def _softmax(x, axis=-1):
    return torch.softmax(x, dim=axis)
def _gelu(x):
    return torch.nn.functional.gelu(x, approximate="tanh")
def _silu(x):
    return torch.nn.functional.silu(x)
def _sigmoid(x):
    return torch.sigmoid(x)
def _layernorm(x, axis=-1, eps=1e-5):
    m = x.mean(dim=axis, keepdim=True)
    v = x.var(dim=axis, keepdim=True, unbiased=False)
    return (x - m) / torch.sqrt(v + eps)
def _scatter_add(tgt, idx, src, axis=0):
    return tgt.clone().index_add_(axis, idx, src)
def _segment_sum(src, seg, n):
    out = torch.zeros((n,) + src.shape[1:], dtype=src.dtype)
    return out.index_add_(0, seg, src)
def _pad(x, pw):
    flat = tuple(v for pair in reversed(pw) for v in pair)
    return torch.nn.functional.pad(x, flat)

kernel_name = 'gated_mix__ssm_conv_s4d__swiglu_ffn__prompt'

def setup_inputs():

    _w = (lambda a: (lambda t: t.to(torch.bfloat16) if t.is_floating_point() else t)(torch.as_tensor(a)))
    def _A_setup():
        Bsz, L, D, N = 1, 2048, 640, 192
        return {
            "u": _w((lambda *s: torch.randn(*s, dtype=torch.bfloat16) * 0.05)(Bsz, L, D)),
            "log_A_real": _w((lambda *s: torch.randn(*s, dtype=torch.bfloat16) * 6.4)(D, N) * 0.5),
            "A_imag": _w((lambda *s: torch.randn(*s, dtype=torch.bfloat16) * 0.05)(D, N) * 3.14),
            "C_real": _w((lambda *s: torch.randn(*s, dtype=torch.bfloat16) * 0.05)(D, N) / N ** 0.5),
            "C_imag": _w((lambda *s: torch.randn(*s, dtype=torch.bfloat16) * 0.05)(D, N) / N ** 0.5),
            "log_dt": _w((lambda *s: torch.randn(*s, dtype=torch.bfloat16) * 0.05)(D) * 0.5 - 4.0),
            "D_skip": _w((lambda *s: torch.randn(*s, dtype=torch.bfloat16) * 0.05)(D)),
        }
    _A_in = _A_setup()

    def _B_setup():
        B, S, D, F = 1, 2048, 640, 1536
        return {
            "x": _w((lambda *s: torch.randn(*s, dtype=torch.bfloat16) * 0.05)(B, S, D)),
            "w_gate": _w((lambda *s: torch.randn(*s, dtype=torch.bfloat16) * 0.05)(D, F)),
            "w_up": _w((lambda *s: torch.randn(*s, dtype=torch.bfloat16) * 0.05)(D, F)),
            "w_down": _w((lambda *s: torch.randn(*s, dtype=torch.bfloat16) * 0.05)(F, D)),
        }
    _B_in = _B_setup()

    return {
        "A_u": _A_in["u"],
        "A_log_A_real": _A_in["log_A_real"],
        "A_A_imag": _A_in["A_imag"],
        "A_C_real": _A_in["C_real"],
        "A_C_imag": _A_in["C_imag"],
        "A_log_dt": _A_in["log_dt"],
        "A_D_skip": _A_in["D_skip"],
        "B_x": _B_in["x"],
        "B_w_gate": _B_in["w_gate"],
        "B_w_up": _B_in["w_up"],
        "B_w_down": _B_in["w_down"],
        "gate_w": _w((lambda *s: torch.randn(*s, dtype=torch.bfloat16) * 0.05)(640) * 16.0),
    }

def reference(A_u, A_log_A_real, A_A_imag, A_C_real, A_C_imag, A_log_dt, A_D_skip, B_x, B_w_gate, B_w_up, B_w_down, gate_w):
    def _A_ref(u, log_A_real, A_imag, C_real, C_imag, log_dt, D_skip):
        L = u.shape[1]
        dt = torch.exp(log_dt)
        A = -torch.exp(log_A_real) + 1j * A_imag
        C = (C_real + 1j * C_imag) * dt[:, None]
        pos = (lambda x, dt: x.to(dt))(torch.arange(L), log_dt.dtype)
        P = torch.exp((A * dt[:, None])[:, :, None] * pos[None, None, :])
        K = 2.0 * torch.einsum("dn,dnl->dl", C, P).real
        L2 = 2 * L
        u_t = (lambda x, *d: x.permute(*d))(u, 0, 2, 1)
        Kf = (lambda x, *a, **k: torch.fft.rfft(x.float(), *a, **k))(K, L2)
        Uf = (lambda x, *a, **k: torch.fft.rfft(x.float(), *a, **k))(u_t, L2)
        y = (lambda x, *a, **k: torch.fft.irfft(x, *a, **k).to(torch.bfloat16))(Uf * Kf[None, :, :], L2)[:, :, :L]
        y = (lambda x, *d: x.permute(*d))(y, 0, 2, 1)
        return y + u * D_skip[None, None, :]

    def _B_ref(x, w_gate, w_up, w_down):
        g = _silu(x @ w_gate)
        u = x @ w_up
        return (g * u) @ w_down

    x = A_u
    g = _sigmoid((x * gate_w).sum(-1, keepdims=True))
    a = _A_ref(x, A_log_A_real, A_A_imag, A_C_real, A_C_imag, A_log_dt, A_D_skip)
    b = _B_ref(x, B_w_gate, B_w_up, B_w_down)
    return g * a + (1 - g) * b
```

```python
import struct
def f2u(x): return struct.unpack("<I", struct.pack("<f", x))[0]
class Asm:
    def __init__(self):
        self.lines = []
        self.uid = 0
    def __call__(self, s):
        for l in s.split("\n"):
            l = l.strip()
            if l: self.lines.append("    " + l)
    def label(self, n): self.lines.append(n + ":")
    def raw(self, s): self.lines.append(s)
    def newlabel(self, p="L"):
        self.uid += 1
        return f"{p}_{self.uid}"
    def text(self): return "\n".join(self.lines) + "\n"
def vr(a, n=1): return f"v{a}" if n == 1 else f"v[{a}:{a+n-1}]"
def sr(a, n=1): return f"s{a}" if n == 1 else f"s[{a}:{a+n-1}]"
def kernel_begin(A, name):
    A.raw(".text")
    A.raw(f".globl {name}")
    A.raw(".p2align 8")
    A.raw(f".type {name},@function")
    A.label(name)
def kernel_desc(A, name, vgpr, sgpr=96):
    acc = (vgpr + 3) // 4 * 4
    A.raw('.section .rodata,"a"')
    A.raw(".p2align 6")
    A.raw(f".amdhsa_kernel {name}")
    A.raw(f"  .amdhsa_next_free_vgpr {vgpr}")
    A.raw(f"  .amdhsa_next_free_sgpr {sgpr}")
    A.raw(f"  .amdhsa_accum_offset {acc}")
    A.raw("  .amdhsa_group_segment_fixed_size 0")
    A.raw("  .amdhsa_kernarg_size 120")
    A.raw("  .amdhsa_user_sgpr_count 2")
    A.raw("  .amdhsa_user_sgpr_kernarg_segment_ptr 1")
    A.raw("  .amdhsa_system_sgpr_workgroup_id_x 1")
    A.raw(".end_amdhsa_kernel")
def srd(A, d, base, nbytes, add=0):
    if add:
        A(f"s_add_u32 s{d}, s{base}, {add}")
        A(f"s_addc_u32 s{d+1}, s{base+1}, 0")
    else:
        if d != base:
            A(f"s_mov_b32 s{d}, s{base}")
            A(f"s_mov_b32 s{d+1}, s{base+1}")
    A(f"s_mov_b32 s{d+2}, {nbytes}")
    A(f"s_mov_b32 s{d+3}, 0x20000")
```

```python
import sys
from asmlib import *

H_OFF = 0
WDF_OFF = 6291456
UR_OFF = 8257536
KX_OFF = 10878976
YT_OFF = 16121856
G_OFF = 18743296
FLAG_OFF = 18751488
WS_BYTES = 1 << 25
LOG2E = f2u(1.4426950408889634)
NLOG2E = f2u(-1.4426950408889634)
LOG2E_LO = f2u(1.4426950408889634 - struct.unpack("<f", struct.pack("<f", 1.4426950408889634))[0])
LN2 = f2u(0.6931471805599453)

def wave_id(A, sdst, vlane):
    A(f"v_lshrrev_b32 v1, 6, v0")
    A(f"v_and_b32 v{vlane}, 63, v0")
    A(f"v_readfirstlane_b32 s{sdst}, v1")

def cmul(A, dr, di, ar, ai, mr, mi, nmi):
    A(f"v_mul_f32 v{dr}, v{ar}, v{mr}")
    A(f"v_mul_f32 v{di}, v{ar}, v{mi}")
    A(f"v_fmac_f32 v{dr}, v{ai}, v{nmi}")
    A(f"v_fmac_f32 v{di}, v{ai}, v{mr}")

RS = 288
def kgen(A, sD, sL, hook=lambda: None):
    A("s_load_dwordx8 s[8:15], s[0:1], 8")
    A("s_load_dwordx2 s[16:17], s[0:1], 40")
    A("s_load_dwordx2 s[20:21], s[0:1], 112")
    A(f"s_mul_i32 s18, s{sD}, 384")
    A("v_lshlrev_b32 v1, 1, v0")
    A("v_add_u32 v1, s18, v1")
    A(f"s_lshl_b32 s19, s{sD}, 1")
    A("v_mov_b32 v2, s19")
    A(f"s_mov_b32 m0, s{sL}")
    A("s_waitcnt lgkmcnt(0)")
    A("global_load_ushort v3, v2, s[16:17]")
    RAW = 4
    for p in range(3):
        for a in range(4):
            A(f"global_load_ushort v{RAW+4*p+a}, v1, s[{8+2*a}:{9+2*a}] offset:{128*p}")
    A("s_mov_b32 s22, 0x%x" % WS_BYTES)
    A("s_mov_b32 s23, 0x20000")
    A("s_mov_b32 s24, 0x%x" % LOG2E)
    A("s_mov_b32 s25, 0x%x" % LOG2E_LO)
    A("s_mov_b32 s26, 0x%x" % LN2)
    A("s_mov_b32 s27, 0x41000000")
    A("s_mov_b32 s28, 0x43000000")
    FA = 16
    A(f"v_and_b32 v17, 15, v0")
    A(f"v_lshrrev_b32 v18, 4, v0")
    A(f"v_mul_u32_u24 v{FA}, {RS}, v17")
    A(f"v_lshl_add_u32 v{FA}, v18, 4, v{FA}")
    A(f"v_add_u32 v{FA}, s{sL}, v{FA}")
    ACC = 20
    for i in range(12): A(f"v_mov_b32 v{ACC+i}, 0")
    DT, DT2, NDT = 32, 33, 34
    ONE = 35
    A(f"v_mov_b32 v{ONE}, 0x3f80")
    A("s_waitcnt vmcnt(12)")
    A("v_lshlrev_b32 v3, 16, v3")
    A("v_mul_f32 v36, s24, v3")
    A("v_fma_f32 v37, v3, s24, -v36")
    A("v_fmac_f32 v37, s25, v3")
    A("v_exp_f32 v36, v36")
    A("v_mul_f32 v37, s26, v37")
    A("v_fmac_f32 v36, v36, v37")
    A("v_cvt_pk_bf16_f32 v36, v36, v36")
    A(f"v_lshlrev_b32 v{DT}, 16, v36")
    A(f"v_add_f32 v{DT2}, v{DT}, v{DT}")
    A(f"v_sub_f32 v{NDT}, 0, v{DT}")
    A("s_mov_b32 s29, 0")
    A("s_waitcnt vmcnt(0)")
    loop = A.newlabel("kg")
    A.label(loop)
    A1, TH = 36, 37
    Z, W, Y = 38, 41, 44
    P = 48
    T = 64
    QA, QB = 70, 72
    PK = 74
    QF, PF = 80, 96
    A(f"v_lshlrev_b32 v{T}, 16, v{RAW}")
    A(f"v_mul_f32 v{T}, s24, v{T}")
    A(f"v_lshlrev_b32 v{TH}, 16, v{RAW+1}")
    A(f"v_exp_f32 v{T}, v{T}")
    A(f"v_lshlrev_b32 v{P}, 16, v{RAW+2}")
    A(f"v_lshlrev_b32 v{P+1}, 16, v{RAW+3}")
    A(f"v_cvt_pk_bf16_f32 v{T}, v{T}, v{T}")
    A(f"v_mul_f32 v{TH}, v{TH}, v{DT}")
    A(f"v_lshlrev_b32 v{T}, 16, v{T}")
    A(f"v_mul_f32 v{TH}, 0.15915494, v{TH}")
    A(f"v_mul_f32 v{A1}, v{T}, v{NDT}")
    A(f"v_mul_f32 v{P}, v{P}, v{DT2}")
    A(f"v_mul_f32 v{A1}, s24, v{A1}")
    A(f"v_mul_f32 v{P+1}, v{P+1}, v{DT2}")
    for i in range(8): A(f"v_mov_b32 v{RAW+i}, v{RAW+4+i}")
    for (R, sc) in ((Z, None), (W, "s27"), (Y, "s28")):
        if sc:
            A(f"v_mul_f32 v{T}, {sc}, v{A1}")
            A(f"v_mul_f32 v{T+1}, {sc}, v{TH}")
            A(f"v_exp_f32 v{T}, v{T}")
            A(f"v_fract_f32 v{T+1}, v{T+1}")
        else:
            A(f"v_exp_f32 v{T}, v{A1}")
            A(f"v_fract_f32 v{T+1}, v{TH}")
        A(f"v_cos_f32 v{R}, v{T+1}")
        A(f"v_sin_f32 v{R+1}, v{T+1}")
        A(f"v_mul_f32 v{R}, v{R}, v{T}")
        A(f"v_mul_f32 v{R+1}, v{R+1}, v{T}")
        A(f"v_sub_f32 v{R+2}, 0, v{R+1}")
    pkc = [0]
    def emit(row, r, i):
        k = PK + pkc[0] % 4; pkc[0] += 1
        A(f"v_cvt_pk_bf16_f32 v{k}, v{r}, v{i}")
        A(f"ds_write_addtid_b32 v{k} offset:{row*RS}")
    A(f"ds_write_addtid_b32 v{ONE} offset:0")
    emit(1, W, W+2)
    emit(16, P, P+1)
    qsrc = (W, W+2)
    for j in range(2, 16):
        dst = QA if j % 2 == 0 else QB
        cmul(A, dst, dst+1, qsrc[0], qsrc[1], W, W+2, W+1)
        qsrc = (dst, dst+1)
        b = j - 1
        if b <= 7:
            cmul(A, P+2*b, P+2*b+1, P+2*b-2, P+2*b-1, Z, Z+1, Z+2)
        emit(j, dst, dst+1)
        if b <= 7: emit(16+b, P+2*b, P+2*b+1)
        if j == 8: hook()
    loc = {}
    for b in range(0, 8, 2):
        cmul(A, T, T+1, P+2*b+2, P+2*b+3, Y, Y+1, Y+2)
        cmul(A, P+2*b+2, P+2*b+3, P+2*b, P+2*b+1, Y, Y+1, Y+2)
        emit(24+b+1, T, T+1)
        emit(24+b, P+2*b+2, P+2*b+3)
        loc[b] = P+2*b+2
    for t in range(4):
        A(f"ds_read_b128 v[{QF+4*t}:{QF+4*t+3}], v{FA} offset:{64*t}")
        A(f"ds_read_b128 v[{PF+4*t}:{PF+4*t+3}], v{FA} offset:{16*RS+64*t}")
    hook()
    def step(b, row):
        s = loc[b]; d = P+2*b if s == P+2*b+2 else P+2*b+2
        cmul(A, d, d+1, s, s+1, Y, Y+1, Y+2)
        loc[b] = d
        return (row, d, d+1)
    for a in range(2):
        es = [step(b, 4*a + b//2) for b in (0, 2, 4, 6)]
        if a == 0:
            A("s_waitcnt lgkmcnt(0)")
            for t in range(4):
                A(f"v_mfma_f32_16x16x32_bf16 v[{ACC}:{ACC+3}], v[{PF+4*t}:{PF+4*t+3}], v[{QF+4*t}:{QF+4*t+3}], v[{ACC}:{ACC+3}]")
        for e in es: emit(*e)
    for a in range(4):
        es = [step(b, 8 + 2*a + b//4) for b in (0, 4)]
        for e in es: emit(*e)
    hook()
    for a in range(9):
        emit(*step(0, 16 + a))
    for t in range(4):
        A(f"ds_read_b128 v[{PF+4*t}:{PF+4*t+3}], v{FA} offset:{64*t}")
    for t in range(4):
        A(f"ds_read_b128 v[{PF+16+4*t}:{PF+16+4*t+3}], v{FA} offset:{16*RS+64*t}")
    A("s_add_u32 s29, s29, 1")
    A("s_waitcnt lgkmcnt(4)")
    for t in range(4):
        A(f"v_mfma_f32_16x16x32_bf16 v[{ACC+4}:{ACC+7}], v[{PF+4*t}:{PF+4*t+3}], v[{QF+4*t}:{QF+4*t+3}], v[{ACC+4}:{ACC+7}]")
    A("s_waitcnt lgkmcnt(0)")
    for t in range(4):
        A(f"v_mfma_f32_16x16x32_bf16 v[{ACC+8}:{ACC+11}], v[{PF+16+4*t}:{PF+16+4*t+3}], v[{QF+4*t}:{QF+4*t+3}], v[{ACC+8}:{ACC+11}]")
    hook()
    A("s_cmp_lt_u32 s29, 3")
    A(f"s_cbranch_scc1 {loop}")
    EB = 16
    A(f"v_lshlrev_b32 v40, 4, v17")
    A(f"v_add_u32 v40, s{sL}, v40")
    A(f"v_lshl_add_u32 v41, v18, 10, v40")
    A(f"v_add_u32 v41, {EB + 2048 - 8}, v41")
    A(f"v_and_b32 v42, 1, v0")
    A(f"v_lshlrev_b32 v42, 3, v42")
    A(f"v_sub_u32 v42, v41, v42")
    A(f"v_lshl_add_u32 v43, v18, 9, v40")
    A(f"v_lshl_add_u32 v44, v18, 8, v40")
    A(f"v_lshrrev_b32 v45, 1, v18")
    A(f"v_lshl_add_u32 v45, v45, 8, v40")
    A(f"v_and_b32 v46, 1, v18")
    A(f"v_lshl_add_u32 v45, v46, 3, v45")
    A(f"v_mov_b32 v47, 0")
    A(f"v_mov_b32 v46, s{sL}")
    A("s_nop 3")
    K0, K1, K2 = ACC, ACC+4, ACC+8
    for r in range(4):
        A(f"v_cvt_pk_bf16_f32 v{48+2*r}, v{K2+r}, v{K2+r}")
        A(f"v_cvt_pk_bf16_f32 v{49+2*r}, v{K2+r}, v{K2+r}")
    for r in range(4):
        A(f"ds_write2_b64 v41, v[{48+2*r}:{49+2*r}], v[{48+2*r}:{49+2*r}] offset0:{32*r} offset1:{32*r+1}")
    for r in range(4):
        A(f"ds_write_b16 v42, v{48+2*r} offset:{256*r+16}")
    c = {}
    for n, (x, y) in enumerate([(0,0),(0,1),(1,1),(2,2),(2,3),(3,3),(1,2)]):
        c[(x,y)] = 56+n
        A(f"v_cvt_pk_bf16_f32 v{56+n}, v{K1+x}, v{K1+y}")
    A(f"v_cvt_pk_bf16_f32 v64, v{K0}, v{K0+1}")
    A(f"v_cvt_pk_bf16_f32 v65, v{K0+2}, v{K0+3}")
    A("s_mov_b32 exec_lo, 0")
    o = (EB - 4) // 4
    A(f"ds_write2_b32 v43, v{c[0,0]}, v{c[0,0]} offset0:{o} offset1:{o+1}")
    A(f"ds_write2_b32 v43, v{c[0,1]}, v{c[1,1]} offset0:{o+2} offset1:{o+3}")
    A(f"ds_write2_b32 v43, v{c[2,2]}, v{c[2,2]} offset0:{o+64} offset1:{o+65}")
    A(f"ds_write2_b32 v43, v{c[2,3]}, v{c[3,3]} offset0:{o+66} offset1:{o+67}")
    A("s_mov_b32 exec_lo, -1")
    A("s_mov_b32 exec_hi, 0")
    o = EB + 512
    A(f"ds_write_b16 v44, v{c[0,0]} offset:{o-2}")
    A(f"ds_write2_b32 v44, v{c[0,0]}, v{c[1,2]} offset0:{o//4} offset1:{o//4+1}")
    A(f"ds_write_b32 v44, v{c[2,2]} offset:{o+8}")
    A(f"ds_write_b16 v44, v{c[3,3]} offset:{o+12}")
    A("s_mov_b64 exec, -1")
    A(f"ds_write_b64 v45, v[64:65] offset:{EB}")
    A(f"ds_write_b32 v46, v47 offset:{EB-4}")
    A(f"v_lshlrev_b32 v40, 4, v0")
    A(f"v_add_u32 v41, s{sL}, v40")
    for i in range(4):
        A(f"ds_read_b128 v[{80+8*i}:{83+8*i}], v41 offset:{EB+1024*i}")
        A(f"ds_read_b32 v{72+i}, v41 offset:{EB+1024*i-4}")
    A(f"s_lshl_b32 s30, s{sD}, 13")
    A(f"s_add_u32 s30, s30, {KX_OFF}")
    A(f"s_add_u32 s31, s30, 4096")
    for i in range(4):
        A(f"s_waitcnt lgkmcnt({6-2*i})")
        b = 80+8*i
        A(f"buffer_store_dwordx4 v[{b}:{b+3}], v40, s[20:23], s30 offen offset:{1024*i}")
        A(f"v_alignbit_b32 v{b+4}, v{b}, v{72+i}, 16")
        for k in range(1, 4):
            A(f"v_alignbit_b32 v{b+4+k}, v{b+k}, v{b+k-1}, 16")
        A(f"buffer_store_dwordx4 v[{b+4}:{b+7}], v40, s[20:23], s31 offen offset:{1024*i}")

def misc(A, sM, sL):
    A("s_load_dwordx2 s[8:9], s[0:1], 0")
    A("s_load_dwordx4 s[12:15], s[0:1], 80")
    A("s_load_dwordx2 s[20:21], s[0:1], 112")
    A("s_mov_b32 s10, 2621440")
    A("s_mov_b32 s11, 0x20000")
    A("s_mov_b32 s22, 0x%x" % WS_BYTES)
    A("s_mov_b32 s23, 0x20000")
    A("v_lshrrev_b32 v1, 3, v0")
    A("v_and_b32 v2, 7, v0")
    A("v_mul_u32_u24 v3, 1280, v1")
    A("s_waitcnt lgkmcnt(0)")
    A("s_mov_b32 s16, s12")
    A("s_mov_b32 s17, s13")
    A("s_mov_b32 s18, 1966080")
    A("s_mov_b32 s19, 0x20000")
    l_nour = A.newlabel("nour"); l_nowd = A.newlabel("nowd"); l_nog = A.newlabel("nog")
    A(f"s_cmp_ge_u32 s{sM}, 320")
    A(f"s_cbranch_scc1 {l_nour}")
    A(f"s_and_b32 s24, s{sM}, 31")
    A(f"s_lshr_b32 s25, s{sM}, 5")
    A("s_mul_i32 s26, s24, 81920")
    A("s_lshl_b32 s27, s25, 7")
    A("s_add_u32 s26, s26, s27")
    for i in range(8):
        A(f"v_xor_b32 v4, {i}, v2")
        A(f"s_add_u32 m0, s{sL}, {1024*i}")
        A(f"v_lshl_add_u32 v4, v4, 4, v3")
        A(f"buffer_load_dwordx4 v4, s[8:11], s26 offen lds")
        A(f"s_add_u32 s26, s26, 10240")
    A("v_xor_b32 v5, v1, v2")
    A("v_lshlrev_b32 v5, 4, v5")
    A("v_lshl_add_u32 v5, v2, 10, v5")
    A(f"v_add_u32 v5, s{sL}, v5")
    A("v_lshlrev_b32 v6, 15, v1")
    A("v_lshlrev_b32 v7, 4, v2")
    A("v_sub_u32 v6, v6, v7")
    A("v_add_u32 v6, 4080, v6")
    A("s_lshl_b32 s26, s25, 18")
    A("s_lshl_b32 s27, s24, 7")
    A("s_sub_u32 s26, s26, s27")
    A(f"s_add_u32 s26, s26, {UR_OFF}")
    A("s_mov_b32 s28, 0x05040100")
    A("s_mov_b32 s29, 0x07060302")
    A("s_waitcnt vmcnt(0)")
    for e in range(8):
        A(f"ds_read_b128 v[{8+4*e}:{11+4*e}], v5 offset:{128*e}")
    A("s_waitcnt lgkmcnt(0)")
    for i in range(8):
        o = 40 + 4*i
        for p in range(4):
            lo = 8 + 4*(7-2*p) + i//2; hi = 8 + 4*(6-2*p) + i//2
            A(f"v_perm_b32 v{o+p}, v{hi}, v{lo}, s{28 + (i&1)}")
        A(f"buffer_store_dwordx4 v[{o}:{o+3}], v6, s[20:23], s26 offen")
        A("s_add_u32 s26, s26, 4096")
    A.label(l_nour)
    A(f"s_cmp_lt_u32 s{sM}, 144")
    A(f"s_cbranch_scc1 {l_nowd}")
    A(f"s_sub_u32 s24, s{sM}, 144")
    A("s_mul_i32 s25, s24, 2731")
    A("s_lshr_b32 s25, s25, 16")
    A("s_mul_i32 s26, s25, 24")
    A("s_sub_u32 s24, s24, s26")
    A("s_mul_i32 s26, s24, 81920")
    A("s_lshl_b32 s27, s25, 7")
    A("s_add_u32 s26, s26, s27")
    A("v_lshl_add_u32 v4, v2, 4, v3")
    for i in range(8):
        A(f"s_add_u32 m0, s{sL}, {1024*i}")
        A("s_nop 0")
        A(f"buffer_load_dwordx4 v4, s[16:19], s26 offen lds")
        A(f"s_add_u32 s26, s26, 10240")
    A("v_lshrrev_b32 v5, 5, v0")
    A("v_lshlrev_b32 v5, 11, v5")
    A("v_bfe_u32 v6, v0, 2, 3")
    A("v_lshl_add_u32 v5, v6, 7, v5")
    A("v_and_b32 v6, 3, v0")
    A("v_lshl_add_u32 v5, v6, 3, v5")
    A(f"v_add_u32 v5, s{sL}, v5")
    A("v_lshlrev_b32 v6, 4, v0")
    A("s_waitcnt vmcnt(0)")
    for dtl in range(4):
        for sg in range(2):
            o = 8 + 4*(2*dtl+sg)
            A(f"ds_read_b64_tr_b16 v[{o}:{o+1}], v5 offset:{4096*sg + 32*dtl}")
            A(f"ds_read_b64_tr_b16 v[{o+2}:{o+3}], v5 offset:{4096*sg + 32*dtl + 1024}")
    for dtl in range(4):
        A(f"s_lshl_b32 s26, s25, 2")
        A(f"s_add_u32 s26, s26, {dtl}")
        A("s_mul_i32 s27, s26, 52429")
        A("s_lshr_b32 s27, s27, 18")
        A("s_mul_i32 s28, s27, 235")
        A("s_add_u32 s26, s26, s28")
        A("s_mul_i32 s28, s24, 10")
        A("s_add_u32 s26, s26, s28")
        A("s_lshl_b32 s26, s26, 10")
        A(f"s_add_u32 s26, s26, {WDF_OFF}")
        A("s_add_u32 s27, s26, 5120")
        A(f"s_waitcnt lgkmcnt({12-4*dtl})")
        o = 8 + 8*dtl
        A(f"buffer_store_dwordx4 v[{o}:{o+3}], v6, s[20:23], s26 offen")
        A(f"buffer_store_dwordx4 v[{o+4}:{o+7}], v6, s[20:23], s27 offen")
    A.label(l_nowd)
    A(f"s_cmp_ge_u32 s{sM}, 256")
    A(f"s_cbranch_scc1 {l_nog}")
    A("v_and_b32 v4, 15, v0")
    A("v_lshlrev_b32 v4, 4, v4")
    A("v_lshrrev_b32 v5, 4, v0")
    A("v_mul_u32_u24 v6, 1280, v5")
    A("v_add_u32 v6, v6, v4")
    A(f"s_mul_i32 s26, s{sM}, 10240")
    A("s_add_u32 s27, s26, 5120")
    A("s_waitcnt vmcnt(0)")
    for i in range(5):
        A(f"global_load_dwordx4 v[{8+4*i}:{11+4*i}], v4, s[14:15] offset:{256*i}")
    for it in range(2):
        for i in range(5):
            A(f"buffer_load_dwordx4 v[{28+20*it+4*i}:{31+20*it+4*i}], v6, s[8:11], s{26+it} offen offset:{256*i}")
    A("s_mov_b32 s28, 0xffff0000")
    A("s_mov_b32 s29, 0x%x" % NLOG2E)
    A("s_waitcnt vmcnt(10)")
    W = 68
    for k in range(20):
        A(f"v_lshlrev_b32 v{W+2*k}, 16, v{8+k}")
        A(f"v_and_b32 v{W+2*k+1}, s28, v{8+k}")
    for it in range(2):
        A(f"s_waitcnt vmcnt({5 if it == 0 else 0})")
        acc = 108 + it
        A(f"v_mov_b32 v{acc}, 0")
        A(f"v_mov_b32 v{acc+2}, 0")
        for k in range(20):
            x = 28 + 20*it + k
            t = 8 + 2*(k % 2)
            A(f"v_lshlrev_b32 v{t}, 16, v{x}")
            A(f"v_and_b32 v{t+1}, s28, v{x}")
            A(f"v_mul_f32 v{t}, v{t}, v{W+2*k}")
            A(f"v_mul_f32 v{t+1}, v{t+1}, v{W+2*k+1}")
            A(f"v_cvt_pk_bf16_f32 v{t}, v{t}, v{t+1}")
            A(f"v_and_b32 v{t+1}, s28, v{t}")
            A(f"v_lshlrev_b32 v{t}, 16, v{t}")
            A(f"v_add_f32 v{acc+2}, v{acc+2}, v{t+1}")
            A(f"v_add_f32 v{acc}, v{acc}, v{t}")
        A(f"v_add_f32 v{acc}, v{acc}, v{acc+2}")
    for sh in (8, 4, 2, 1):
        A("s_nop 1")
        A(f"v_add_f32_dpp v108, v108, v108 row_ror:{sh} row_mask:0xf bank_mask:0xf")
        A(f"v_add_f32_dpp v109, v109, v109 row_ror:{sh} row_mask:0xf bank_mask:0xf")
    A("v_and_b32 v8, 1, v0")
    A("v_cmp_eq_u32 vcc, 1, v8")
    A("s_nop 1")
    A("v_cndmask_b32 v108, v108, v109, vcc")
    A("v_cvt_pk_bf16_f32 v108, v108, v108")
    A("v_lshlrev_b32 v108, 16, v108")
    A("v_mul_f32 v108, s29, v108")
    A("v_exp_f32 v108, v108")
    A("v_lshlrev_b32 v9, 2, v5")
    A("v_add_f32 v108, 1.0, v108")
    A("v_rcp_f32 v108, v108")
    A("v_lshl_add_u32 v9, v8, 4, v9")
    A("v_cvt_pk_bf16_f32 v108, v108, v108")
    A("v_lshlrev_b32 v108, 16, v108")
    A(f"s_lshl_b32 s26, s{sM}, 5")
    A(f"s_add_u32 s26, s26, {G_OFF}")
    A("buffer_store_dword v108, v9, s[20:23], s26 offen")
    A.label(l_nog)

def helper_dispatch(A, sW, lds_base, end_label, hook=lambda: None):
    A("s_and_b32 s4, s2, 1")
    A("s_lshl_b32 s4, s4, 2")
    A(f"s_add_u32 s4, s4, s{sW}")
    A("s_lshr_b32 s5, s2, 1")
    A(f"s_mul_i32 s6, s{sW}, 9216")
    if lds_base: A(f"s_add_u32 s6, s6, {lds_base}")
    lm = A.newlabel("misc")
    A("s_mov_b32 s7, 0xc8")
    A("s_lshr_b32 s7, s7, s4")
    A("s_bitcmp1_b32 s7, 0")
    A(f"s_cbranch_scc1 {lm}")
    A("s_mul_i32 s7, s5, 5")
    A("s_add_u32 s7, s7, s4")
    A("s_lshr_b32 s4, s4, 2")
    A("s_sub_u32 s7, s7, s4")
    kgen(A, 7, 6, hook)
    A(f"s_branch {end_label}")
    A.label(lm)
    A("s_mul_i32 s7, s5, 3")
    A("s_max_u32 s4, s4, 5")
    A("s_add_u32 s7, s7, s4")
    A("s_sub_u32 s7, s7, 5")
    misc(A, 7, 6)

def prep_kernel(A):
    kernel_begin(A, "prep_kernel")
    A("s_cmp_ge_u32 s2, 256")
    A("s_cbranch_scc1 prep_end")
    wave_id(A, 3, 0)
    helper_dispatch(A, 3, 0, "prep_end")
    A.label("prep_end")
    A("s_endpgm")
    kernel_desc(A, "prep_kernel", 128)

XB, GB = 0, 16384
UB = GB + 12288 + 32
STG = 41024
def g1_tile(A):
    A("s_and_b32 s6, s2, 7")
    A("s_lshr_b32 s7, s2, 3")
    A("s_lshr_b32 s4, s6, 1")
    A("s_lshl_b32 s4, s4, 2")
    A("s_and_b32 s5, s7, 3")
    A("s_add_u32 s4, s4, s5")
    A("s_and_b32 s5, s6, 1")
    A("s_lshl_b32 s5, s5, 3")
    A("s_lshr_b32 s7, s7, 2")
    A("s_add_u32 s5, s5, s7")

def g1_loader(A, sW):
    A("s_load_dwordx2 s[8:9], s[0:1], 0")
    A("s_load_dwordx4 s[20:23], s[0:1], 64")
    g1_tile(A)
    A("s_mov_b32 s10, 2621440")
    A("s_mov_b32 s11, 0x20000")
    A("s_mov_b32 s14, 1966080")
    A("s_mov_b32 s15, 0x20000")
    A("s_mov_b32 s18, 1966080")
    A("s_mov_b32 s19, 0x20000")
    A("v_lshrrev_b32 v8, 3, v0")
    A("v_mul_u32_u24 v8, 1280, v8")
    A("v_lshrrev_b32 v9, 4, v0")
    A("v_and_b32 v10, 7, v0")
    A("v_xor_b32 v9, v9, v10")
    A("v_lshl_add_u32 v2, v9, 4, v8")
    A("v_xor_b32 v9, 4, v9")
    A("v_lshl_add_u32 v3, v9, 4, v8")
    A(f"v_add_u32 v3, {10240-1024}, v3")
    A(f"v_add_u32 v4, {20480-2048}, v2")
    A(f"v_add_u32 v5, {20480-2048}, v3")
    for i in range(3):
        A(f"v_add_u32 v9, {64*i}, v0")
        A("v_mul_u32_u24 v10, 5462, v9")
        A("v_lshrrev_b32 v10, 16, v10")
        A("v_mul_u32_u24 v10, 2880, v10")
        A(f"v_lshl_add_u32 v{11+i}, v0, 4, v10")
    A("s_lshl_b32 s24, s4, 2")
    A(f"s_add_u32 s24, s24, s{sW}")
    A("s_mul_i32 s24, s24, 40960")
    A("s_mul_i32 s25, s5, 192")
    A(f"s_mul_i32 s26, s{sW}, 49152")
    A("s_add_u32 s25, s25, s26")
    A(f"s_lshl_b32 s26, s{sW}, 12")
    A(f"s_mul_i32 s27, s{sW}, 3072")
    A(f"s_add_u32 s28, s27, {UB}")
    A(f"s_add_u32 s27, s27, {GB}")
    A("s_mov_b32 s29, 0")
    A("s_waitcnt lgkmcnt(0)")
    A("s_mov_b32 s12, s20")
    A("s_mov_b32 s13, s21")
    A("s_mov_b32 s16, s22")
    A("s_mov_b32 s17, s23")
    def issue():
        A("s_add_u32 m0, s29, s26")
        A("s_nop 0")
        for i in range(4):
            A(f"buffer_load_dwordx4 v{2+i}, s[8:11], s24 offen offset:{1024*i} lds")
        A("s_add_u32 m0, s29, s27")
        A("s_add_u32 s24, s24, 128")
        for i in range(3):
            A(f"buffer_load_dwordx4 v{11+i}, s[12:15], s25 offen offset:{1024*i} lds")
        A("s_add_u32 m0, s29, s28")
        A(f"s_add_u32 s29, s29, {STG}")
        for i in range(3):
            A(f"buffer_load_dwordx4 v{11+i}, s[16:19], s25 offen offset:{1024*i} lds")
        A("s_add_u32 s25, s25, 196608")
        A(f"s_cmp_eq_u32 s29, {3*STG}")
        A("s_cselect_b32 s29, 0, s29")
    A("s_mov_b32 s30, 0")
    l1 = A.newlabel("ld"); l2 = A.newlabel("ld")
    A.label(l1)
    issue()
    A("s_add_u32 s30, s30, 1")
    A("s_cmp_lt_u32 s30, 3")
    A(f"s_cbranch_scc1 {l1}")
    A("s_cmp_gt_u32 s30, 3")
    A(f"s_cbranch_scc1 {l2}")
    A("s_waitcnt vmcnt(20)")
    A("s_barrier")
    A.label(l2)
    A("s_waitcnt vmcnt(10)")
    A("s_barrier")
    A("s_cmp_lt_u32 s30, 10")
    A(f"s_cbranch_scc1 {l1}")
    A("s_waitcnt vmcnt(0)")
    A("s_barrier")

ACC1 = 64
def g1_mfma(A, sW, exact=True):
    A("s_load_dwordx2 s[20:21], s[0:1], 112")
    g1_tile(A)
    A(f"s_lshr_b32 s8, s{sW}, 1")
    A(f"s_and_b32 s9, s{sW}, 1")
    A("v_and_b32 v8, 31, v0")
    A("v_lshrrev_b32 v9, 5, v0")
    A("v_bfe_u32 v10, v0, 1, 3")
    A("v_xor_b32 v10, v10, v9")
    A("v_lshlrev_b32 v11, 7, v8")
    A("s_lshl_b32 s10, s8, 13")
    A("v_add_u32 v11, s10, v11")
    for ks in range(4):
        A(f"v_xor_b32 v12, {2*ks}, v10")
        A(f"v_lshl_add_u32 v{2+ks}, v12, 4, v11")
    A("v_bfe_u32 v12, v0, 2, 2")
    A("v_lshl_add_u32 v12, v9, 3, v12")
    A("v_mul_u32_u24 v6, 192, v12")
    A("v_and_b32 v12, 3, v0")
    A("v_lshl_add_u32 v6, v12, 3, v6")
    A("v_bfe_u32 v12, v0, 4, 1")
    A(f"v_mul_u32_u24 v12, {UB-GB}, v12")
    A("v_add_u32 v6, v6, v12")
    A("s_mul_i32 s10, s9, 96")
    A(f"s_add_u32 s10, s10, {GB}")
    A("v_add_u32 v6, s10, v6")
    for i in range(96): A(f"v_mov_b32 v{ACC1+i}, 0")
    F = [16, 36]
    def reads(ks, f):
        r = []
        b = F[f]
        r.append(f"ds_read_b128 v[{b}:{b+3}], v{2+ks}")
        for nt in range(3):
            o = b + 8 + 4*nt
            r.append(f"ds_read_b64_tr_b16 v[{o}:{o+1}], v6 offset:{3072*ks + 32*nt}")
            r.append(f"ds_read_b64_tr_b16 v[{o+2}:{o+3}], v6 offset:{3072*ks + 32*nt + 768}")
        r.append(f"ds_read_b128 v[{b+4}:{b+7}], v{2+ks} offset:4096")
        return r
    def mfmas(f):
        b = F[f]; r = []
        for a in range(2):
            for nt in range(3):
                c = ACC1 + 16*(3*a+nt)
                r.append(f"v_mfma_f32_32x32x16_bf16 v[{c}:{c+15}], v[{b+8+4*nt}:{b+11+4*nt}], v[{b+4*a}:{b+4*a+3}], v[{c}:{c+15}]")
        return r
    def group(ms, rs, pre=()):
        A(ms[0])
        for p in pre: A(p)
        for x in rs[0:3]: A(x)
        A(ms[1])
        for x in rs[3:6]: A(x)
        A(ms[2])
        for x in rs[6:8]: A(x)
        for m in ms[3:]: A(m)
    A("s_mov_b32 s22, 0x%x" % WS_BYTES)
    A("s_mov_b32 s23, 0x20000")
    A("s_mov_b32 s11, 0")
    A("s_mov_b32 s12, 0")
    A("s_barrier")
    for x in reads(0, 0): A(x)
    lp = A.newlabel("g1"); ex = A.newlabel("g1x")
    A.label(lp)
    for ks in range(3):
        A("s_waitcnt lgkmcnt(0)")
        pre = []
        if ks == 0:
            pre = ["s_add_u32 s12, s12, 1", "s_cmp_eq_u32 s12, 3", f"s_cselect_b32 s13, {(-2*STG) & 0xffffffff}, {STG}" if False else "s_cselect_b32 s13, s14, s15", "s_cselect_b32 s12, 0, s12"]
        if ks == 1:
            pre = ["s_add_u32 s11, s11, 1"]
        group(mfmas(ks % 2), reads(ks+1, (ks+1) % 2), pre)
    A("s_cmp_eq_u32 s11, 10")
    A("s_waitcnt lgkmcnt(0)")
    A(f"s_cbranch_scc1 {ex}")
    pre = ["s_barrier"] + [f"v_add_u32 v{r}, s13, v{r}" for r in (2, 6, 3, 4, 5)]
    group(mfmas(1), reads(0, 0), pre)
    A(f"s_branch {lp}")
    A.label(ex)
    for m in mfmas(1): A(m)
    A("s_mov_b32 s24, 0xffff0000")
    A("s_mov_b32 s25, 0x%x" % NLOG2E)
    A("v_and_b32 v2, 15, v0")
    A("v_lshlrev_b32 v2, 4, v2")
    A("v_lshl_add_u32 v2, v9, 8, v2")
    A("v_bfe_u32 v3, v0, 4, 1")
    A("v_lshl_add_u32 v2, v3, 10, v2")
    A("s_lshl_b32 s26, s4, 1")
    A("s_add_u32 s26, s26, s8")
    A("s_mul_i32 s26, s26, 196608")
    A("s_mul_i32 s27, s5, 6")
    A("s_mul_i32 s28, s9, 3")
    A("s_add_u32 s27, s27, s28")
    for nt in range(3):
        A(f"s_add_u32 s28, s27, {nt}")
        A("s_lshr_b32 s29, s28, 1")
        A("s_lshl_b32 s29, s29, 12")
        A("s_and_b32 s28, s28, 1")
        A("s_lshl_b32 s28, s28, 9")
        A("s_add_u32 s29, s29, s28")
        A(f"s_add_u32 s{30+nt}, s29, s26")
    A("s_waitcnt lgkmcnt(0)")
    A("s_nop 7")
    E = 16; T = 24
    for a in range(2):
        for nt in range(3):
            g = ACC1 + 16*(3*a+nt); u = g + 8
            o = 32 + 4*((3*a+nt) % 4)
            def rnd(base):
                for i in range(4): A(f"v_cvt_pk_bf16_f32 v{T+i}, v{base+2*i}, v{base+2*i+1}")
                for i in range(4):
                    A(f"v_lshlrev_b32 v{base+2*i}, 16, v{T+i}")
                    A(f"v_and_b32 v{base+2*i+1}, s24, v{T+i}")
            if exact: rnd(g)
            for i in range(8): A(f"v_mul_f32 v{E+i}, s25, v{g+i}")
            for i in range(8): A(f"v_exp_f32 v{E+i}, v{E+i}")
            for i in range(8): A(f"v_add_f32 v{E+i}, 1.0, v{E+i}")
            for i in range(8): A(f"v_rcp_f32 v{E+i}, v{E+i}")
            if exact: rnd(u)
            for i in range(8): A(f"v_mul_f32 v{g+i}, v{g+i}, v{E+i}")
            if exact: rnd(g)
            for i in range(8): A(f"v_mul_f32 v{g+i}, v{g+i}, v{u+i}")
            for i in range(4): A(f"v_cvt_pk_bf16_f32 v{o+i}, v{g+2*i}, v{g+2*i+1}")
            A(f"buffer_store_dwordx4 v[{o}:{o+3}], v2, s[20:23], s{30+nt} offen offset:{2048*a}")

def gemm1_kernel(A):
    kernel_begin(A, "gemm1_kernel")
    A("s_cmp_ge_u32 s2, 256")
    A("s_cbranch_scc1 g1_end")
    wave_id(A, 3, 0)
    A("s_mov_b32 s14, 0x%x" % ((-2*STG) & 0xffffffff))
    A(f"s_mov_b32 s15, {STG}")
    A("s_cmp_lt_u32 s3, 4")
    A("s_cbranch_scc1 g1_m")
    A("s_sub_u32 s3, s3, 4")
    g1_loader(A, 3)
    A("s_endpgm")
    A.label("g1_m")
    g1_mfma(A, 3)
    A.label("g1_end")
    A("s_endpgm")
    kernel_desc(A, "gemm1_kernel", 168)

CK = 64
CS = 4160
CU = CK + 4*CS
CW = CU + 4096 + 512
def conv(A, sD, sL, sc=""):
    A("v_lshlrev_b32 v1, 4, v0")
    A(f"s_lshl_b32 s24, s{sD}, 12")
    A(f"s_add_u32 s25, s24, {UR_OFF}")
    A(f"s_add_u32 m0, s{sL}, {CU}")
    A(f"s_lshl_b32 s26, s{sD}, 13")
    for i in range(4):
        A(f"buffer_load_dwordx4 v1, s[20:23], s25 offen offset:{1024*i} lds")
    for s in range(4):
        A(f"s_add_u32 m0, s{sL}, {CK + s*CS}")
        A(f"s_add_u32 s27, s26, {KX_OFF + (s&1)*4096 - (s>>1)*4}")
        for i in range(4):
            A(f"buffer_load_dwordx4 v1, s[20:23], s27 offen offset:{1024*i} lds")
    A("v_and_b32 v4, 15, v0")
    A("v_lshrrev_b32 v5, 4, v0")
    A("v_lshlrev_b32 v2, 4, v5")
    A("v_lshlrev_b32 v6, 5, v4")
    A("v_sub_u32 v2, v2, v6")
    A(f"v_add_u32 v2, {CU + 4064 - 3584}, v2")
    A(f"v_add_u32 v2, s{sL}, v2")
    A("v_sub_u32 v6, 15, v4")
    A("v_and_b32 v7, 3, v6")
    A("v_sub_u32 v6, v6, v7")
    A(f"v_mul_u32_u24 v3, {CS}, v7")
    A("v_lshl_add_u32 v3, v5, 4, v3")
    A("v_lshlrev_b32 v6, 1, v6")
    A("v_sub_u32 v3, v3, v6")
    A(f"v_add_u32 v3, {CK}, v3")
    A(f"v_add_u32 v3, s{sL}, v3")
    A("v_lshrrev_b32 v6, 1, v5")
    A("v_add_u32 v6, 7, v6")
    A("v_min_u32 v6, v4, v6")
    A(f"v_mul_u32_u24 v7, {CS}, v5")
    A("v_lshl_add_u32 v6, v6, 2, v7")
    A(f"v_add_u32 v6, s{sL}, v6")
    A("v_lshlrev_b32 v7, 3, v0")
    A(f"v_add_u32 v7, s{sL}, v7")
    Y = 8
    for i in range(32): A(f"v_mov_b32 v{Y+i}, 0")
    A(f"ds_write_b64 v7, v[{Y}:{Y+1}] offset:{CU+4096}")
    A("s_waitcnt vmcnt(0)")
    A(f"ds_write_b32 v6, v{Y} offset:{CK-32}")
    TB = [40, 104]
    def reads(f, extra):
        b = TB[f]; r = []
        for q in range(8):
            r.append(f"ds_read_b128 v[{b+32+4*q}:{b+35+4*q}], v2 offset:{512*(7-q) + extra}")
            r.append(f"ds_read_b64 v[{b+4*q}:{b+4*q+1}], v3 offset:{512*q + extra}")
            r.append(f"ds_read_b64 v[{b+4*q+2}:{b+4*q+3}], v3 offset:{512*q + 8 + extra}")
        return r
    def mfmas(f):
        b = TB[f]; r = []
        for q in range(8):
            for tau in range(8-q):
                t = q + tau
                r.append(f"v_mfma_f32_16x16x32_bf16 v[{Y+4*t}:{Y+4*t+3}], v[{b+4*q}:{b+4*q+3}], v[{b+32+4*tau}:{b+35+4*tau}], v[{Y+4*t}:{Y+4*t+3}]")
        return r
    def inter(ms, rs):
        for i, m in enumerate(ms):
            A(m)
            if i < len(rs): A(rs[i])
    for x in reads(0, 0): A(x)
    A("s_mov_b32 s28, 0")
    lp = A.newlabel("cv")
    A.label(lp)
    A("s_waitcnt lgkmcnt(0)")
    inter(mfmas(0), reads(1, 64))
    A("s_add_u32 s28, s28, 1")
    A("s_waitcnt lgkmcnt(0)")
    inter(mfmas(1), reads(0, 128))
    A("v_add_u32 v2, 128, v2")
    A("v_add_u32 v3, 128, v3")
    A("s_cmp_lt_u32 s28, 4")
    A(f"s_cbranch_scc1 {lp}")
    A("v_lshlrev_b32 v1, 5, v4")
    A("v_lshrrev_b32 v6, 1, v5")
    A("v_lshl_add_u32 v1, v6, 4, v1")
    A("v_and_b32 v6, 1, v5")
    A("v_lshl_add_u32 v1, v6, 9, v1")
    A(f"s_add_u32 s25, s24, {YT_OFF}")
    A("s_waitcnt lgkmcnt(0)")
    A("s_nop 3")
    O = 40
    for t in range(8):
        A(f"v_cvt_pk_bf16_f32 v{O+2*t}, v{Y+4*t}, v{Y+4*t+1}")
        A(f"v_cvt_pk_bf16_f32 v{O+2*t+1}, v{Y+4*t+2}, v{Y+4*t+3}")
    A("s_nop 1")
    for p in range(4):
        A(f"v_permlane16_swap_b32 v{O+4*p}, v{O+4*p+2}")
        A(f"v_permlane16_swap_b32 v{O+4*p+1}, v{O+4*p+3}")
    A("s_nop 1")
    for p in range(4):
        A(f"buffer_store_dwordx4 v[{O+4*p}:{O+4*p+3}], v1, s[20:23], s25 offen offset:{1024*p} {sc}")

def conv_kernel(A):
    kernel_begin(A, "conv_kernel")
    A("s_cmp_ge_u32 s2, 160")
    A("s_cbranch_scc1 cv_end")
    A("s_load_dwordx2 s[20:21], s[0:1], 112")
    wave_id(A, 3, 0)
    A("s_mov_b32 s22, 0x%x" % WS_BYTES)
    A("s_mov_b32 s23, 0x20000")
    A("s_lshl_b32 s4, s2, 2")
    A("s_add_u32 s4, s4, s3")
    A(f"s_mul_i32 s5, s3, {CW}")
    A("s_waitcnt lgkmcnt(0)")
    conv(A, 4, 5)
    A.label("cv_end")
    A("s_endpgm")
    kernel_desc(A, "conv_kernel", 168)

PR = 336
PW = 64 * PR
A2 = 4 * PW
A2R = 176
YS = A2 + 64 * A2R
G2_LDS = YS + 10240
def g2_tile(A):
    A("s_and_b32 s6, s2, 7")
    A("s_lshr_b32 s7, s2, 3")
    A("s_lshr_b32 s4, s6, 1")
    A("s_lshl_b32 s4, s4, 3")
    A("s_and_b32 s5, s7, 7")
    A("s_add_u32 s4, s4, s5")
    A("s_and_b32 s5, s6, 1")
    A("s_lshl_b32 s5, s5, 2")
    A("s_lshr_b32 s7, s7, 3")
    A("s_add_u32 s5, s5, s7")

def g2_mfma(A, sW):
    ACC = 8; SB = 88
    A("v_lshlrev_b32 v1, 4, v0")
    A("v_add_u32 v2, 4096, v1")
    A("s_mul_i32 s24, s4, 196608")
    A(f"s_mul_i32 s25, s{sW}, 49152")
    A("s_add_u32 s24, s24, s25")
    if H_OFF: A(f"s_add_u32 s24, s24, {H_OFF}")
    A("s_mul_i32 s25, s5, 245760")
    A(f"s_mul_i32 s26, s{sW}, 61440")
    A("s_add_u32 s25, s25, s26")
    A(f"s_add_u32 s25, s25, {WDF_OFF}")
    def loads(k):
        b = SB + 36*(k % 4); r = []
        for i in range(4):
            r.append(f"buffer_load_dwordx4 v[{b+4*i}:{b+4*i+3}], v1, s[20:23], s24 offen offset:{1024*i}")
            r.append(f"buffer_load_dwordx4 v[{b+16+4*i}:{b+19+4*i}], v1, s[20:23], s25 offen offset:{1024*i}")
        r.append(f"buffer_load_dwordx4 v[{b+32}:{b+35}], v2, s[20:23], s25 offen")
        r.append("s_add_u32 s24, s24, 4096")
        r.append("s_add_u32 s25, s25, 5120")
        return r
    A("s_waitcnt lgkmcnt(0)")
    for k in range(4):
        for x in loads(k): A(x)
    A("v_and_b32 v4, 15, v0")
    A("v_lshrrev_b32 v5, 4, v0")
    A(f"v_mul_u32_u24 v3, {PR}, v4")
    A("v_lshl_add_u32 v3, v5, 4, v3")
    A(f"s_mul_i32 s26, s{sW}, {PW}")
    A("v_add_u32 v3, s26, v3")
    for k in range(12):
        inflight = min(3, 11-k)
        A(f"s_waitcnt vmcnt({9*inflight})")
        b = SB + 36*(k % 4)
        for dt in range(5):
            for mt in range(4):
                c = ACC + 4*(4*dt+mt)
                src = "0" if k == 0 else f"v[{c}:{c+3}]"
                A(f"v_mfma_f32_16x16x32_bf16 v[{c}:{c+3}], v[{b+16+4*dt}:{b+19+4*dt}], v[{b+4*mt}:{b+4*mt+3}], {src}")
        if k + 4 < 12:
            for x in loads(k+4): A(x)
    A("s_nop 7")
    for dt in range(5):
        for mt in range(4):
            c = ACC + 4*(4*dt+mt)
            A(f"ds_write_b128 v3, v[{c}:{c+3}] offset:{16*mt*PR + 64*dt}")
    A("s_waitcnt lgkmcnt(0)")
    A("s_barrier")

def g2_fin(A, sW):
    A("s_load_dwordx2 s[8:9], s[0:1], 0")
    A("s_load_dwordx2 s[12:13], s[0:1], 48")
    A("s_load_dwordx2 s[16:17], s[0:1], 96")
    A("s_mov_b32 s10, 2621440")
    A("s_mov_b32 s11, 0x20000")
    A("s_mov_b32 s18, 2621440")
    A("s_mov_b32 s19, 0x20000")
    A("s_mov_b32 s30, 0xffff0000")
    X = 8; D = 20; G = 32; OFF = 35; PA = 38; YA = 41
    A("s_mul_i32 s24, s4, 81920")
    A("s_mul_i32 s25, s5, 160")
    A("s_add_u32 s24, s24, s25")
    A("s_lshl_b32 s26, s4, 8")
    A(f"s_add_u32 s26, s26, {G_OFF}")
    A("s_waitcnt lgkmcnt(0)")
    A("s_add_u32 s12, s12, s25")
    A("s_addc_u32 s13, s13, 0")
    for i in range(3):
        A(f"s_add_u32 s27, s{sW}, {4*i}")
        A("s_min_u32 s27, s27, 9")
        A("s_lshl_b32 s27, s27, 6")
        A("v_add_u32 v1, s27, v0")
        A("v_mul_u32_u24 v2, 6554, v1")
        A("v_lshrrev_b32 v2, 16, v2")
        A("v_mul_u32_u24 v3, 10, v2")
        A("v_sub_u32 v3, v1, v3")
        A("v_lshlrev_b32 v4, 4, v3")
        A(f"v_mul_u32_u24 v{OFF+i}, 1280, v2")
        A(f"v_add_u32 v{OFF+i}, v{OFF+i}, v4")
        A(f"v_mul_u32_u24 v{PA+i}, {PR}, v2")
        A(f"v_lshl_add_u32 v{PA+i}, v3, 5, v{PA+i}")
        A(f"v_mul_u32_u24 v{YA+i}, {A2R}, v2")
        A(f"v_add_u32 v{YA+i}, v{YA+i}, v4")
        A(f"v_add_u32 v{YA+i}, {A2}, v{YA+i}")
        A("v_lshlrev_b32 v2, 2, v2")
        A(f"buffer_load_dwordx4 v[{X+4*i}:{X+4*i+3}], v{OFF+i}, s[8:11], s24 offen")
        A(f"global_load_dwordx4 v[{D+4*i}:{D+4*i+3}], v4, s[12:13]")
        A(f"buffer_load_dword v{G+i}, v2, s[20:23], s26 offen")
    A("v_lshrrev_b32 v1, 3, v0")
    A("v_lshlrev_b32 v1, 12, v1")
    A("v_and_b32 v2, 7, v0")
    A("v_lshl_add_u32 v1, v2, 4, v1")
    A("s_mul_i32 s27, s5, 327680")
    A("s_lshl_b32 s28, s4, 7")
    A("s_add_u32 s27, s27, s28")
    A(f"s_add_u32 s27, s27, {YT_OFF}")
    for i in range(3):
        A(f"s_add_u32 s{32+i}, s{sW}, {4*i}")
        A(f"s_min_u32 s{32+i}, s{32+i}, 9")
        A(f"s_lshl_b32 s28, s{32+i}, 15")
        A("s_add_u32 s28, s28, s27")
        A(f"s_lshl_b32 s29, s{32+i}, 10")
        A(f"s_add_u32 m0, s29, {YS}")
        A("s_nop 0")
        A("buffer_load_dwordx4 v1, s[20:23], s28 offen lds")
    A("v_bfe_u32 v2, v0, 2, 2")
    A("v_lshlrev_b32 v2, 7, v2")
    A("v_lshrrev_b32 v3, 4, v0")
    A("v_lshl_add_u32 v2, v3, 5, v2")
    A("v_and_b32 v3, 3, v0")
    A("v_lshl_add_u32 v2, v3, 3, v2")
    A(f"v_mul_u32_u24 v3, {A2R}, v0")
    A("s_waitcnt vmcnt(0)")
    for i in range(3):
        A(f"s_lshl_b32 s29, s{32+i}, 10")
        A(f"s_add_u32 s29, s29, {YS}")
        A("v_add_u32 v4, s29, v2")
        A(f"ds_read_b64_tr_b16 v[{44+4*i}:{45+4*i}], v4")
        A(f"ds_read_b64_tr_b16 v[{46+4*i}:{47+4*i}], v4 offset:512")
    for i in range(3):
        A(f"s_lshl_b32 s29, s{32+i}, 4")
        A(f"s_add_u32 s29, s29, {A2}")
        A("v_add_u32 v4, s29, v3")
        A(f"s_waitcnt lgkmcnt({4-2*i+i})")
        A(f"ds_write_b128 v4, v[{44+4*i}:{47+4*i}]")
    UD = 56; T = 80
    for i in range(3):
        for k in range(4):
            A(f"v_lshlrev_b32 v{T}, 16, v{X+4*i+k}")
            A(f"v_and_b32 v{T+1}, s30, v{X+4*i+k}")
            A(f"v_lshlrev_b32 v{T+2}, 16, v{D+4*i+k}")
            A(f"v_and_b32 v{T+3}, s30, v{D+4*i+k}")
            A(f"v_mul_f32 v{T}, v{T}, v{T+2}")
            A(f"v_mul_f32 v{T+1}, v{T+1}, v{T+3}")
            A(f"v_cvt_pk_bf16_f32 v{T}, v{T}, v{T+1}")
            A(f"v_lshlrev_b32 v{UD+8*i+2*k}, 16, v{T}")
            A(f"v_and_b32 v{UD+8*i+2*k+1}, s30, v{T}")
        A(f"v_sub_f32 v{T}, 1.0, v{G+i}")
        A(f"v_cvt_pk_bf16_f32 v{T}, v{T}, v{T}")
        A(f"v_lshlrev_b32 v{X+i}, 16, v{T}")
    A("s_waitcnt lgkmcnt(0)")
    A("s_barrier")
    done = A.newlabel("fin")
    Pq = 96; Yq = 128
    def rnd(base):
        for k in range(4): A(f"v_cvt_pk_bf16_f32 v{T+k}, v{base+2*k}, v{base+2*k+1}")
        for k in range(4):
            A(f"v_lshlrev_b32 v{base+2*k}, 16, v{T+k}")
            A(f"v_and_b32 v{base+2*k+1}, s30, v{T+k}")
    for i in range(3):
        if i == 2:
            A(f"s_cmp_ge_u32 s{sW}, 2")
            A(f"s_cbranch_scc1 {done}")
        A(f"ds_read_b128 v[{Yq}:{Yq+3}], v{YA+i}")
        for w in range(4):
            A(f"ds_read_b128 v[{Pq+8*w}:{Pq+8*w+3}], v{PA+i} offset:{w*PW}")
            A(f"ds_read_b128 v[{Pq+8*w+4}:{Pq+8*w+7}], v{PA+i} offset:{w*PW+16}")
        A("s_waitcnt lgkmcnt(8)")
        U = UD + 8*i
        for k in range(4):
            A(f"v_lshlrev_b32 v{T}, 16, v{Yq+k}")
            A(f"v_and_b32 v{T+1}, s30, v{Yq+k}")
            A(f"v_add_f32 v{U+2*k}, v{U+2*k}, v{T}")
            A(f"v_add_f32 v{U+2*k+1}, v{U+2*k+1}, v{T+1}")
        rnd(U)
        for k in range(8): A(f"v_mul_f32 v{U+k}, v{U+k}, v{G+i}")
        rnd(U)
        A("s_waitcnt lgkmcnt(0)")
        for k in range(8):
            A(f"v_add_f32 v{Pq+k}, v{Pq+k}, v{Pq+8+k}")
            A(f"v_add_f32 v{Pq+16+k}, v{Pq+16+k}, v{Pq+24+k}")
        for k in range(8): A(f"v_add_f32 v{Pq+k}, v{Pq+k}, v{Pq+16+k}")
        rnd(Pq)
        for k in range(8): A(f"v_mul_f32 v{Pq+k}, v{Pq+k}, v{X+i}")
        rnd(Pq)
        for k in range(8): A(f"v_add_f32 v{Pq+k}, v{Pq+k}, v{U+k}")
        o = 132 + 4*i
        for k in range(4): A(f"v_cvt_pk_bf16_f32 v{o+k}, v{Pq+2*k}, v{Pq+2*k+1}")
        A(f"buffer_store_dwordx4 v[{o}:{o+3}], v{OFF+i}, s[16:19], s24 offen")
    A.label(done)

def gemm2_kernel(A):
    kernel_begin(A, "gemm2_kernel")
    A("s_cmp_ge_u32 s2, 256")
    A("s_cbranch_scc1 g2_end")
    A("s_load_dwordx2 s[20:21], s[0:1], 112")
    wave_id(A, 3, 0)
    A("s_mov_b32 s22, 0x%x" % WS_BYTES)
    A("s_mov_b32 s23, 0x20000")
    g2_tile(A)
    A("s_cmp_lt_u32 s3, 4")
    A("s_cbranch_scc1 g2_m")
    A("s_sub_u32 s3, s3, 4")
    g2_fin(A, 3)
    A("s_endpgm")
    A.label("g2_m")
    g2_mfma(A, 3)
    A.label("g2_end")
    A("s_endpgm")
    kernel_desc(A, "gemm2_kernel", 232)

def build():
    A = Asm()
    A.raw(f"; @launch kernel=prep_kernel grid=(256,1,1) block=(256,1,1) lds={4*9216}")
    A.raw(f"; @launch kernel=gemm1_kernel grid=(256,1,1) block=(512,1,1) lds={3*STG}")
    A.raw(f"; @launch kernel=conv_kernel grid=(160,1,1) block=(256,1,1) lds={4*CW+256}")
    A.raw(f"; @launch kernel=gemm2_kernel grid=(256,1,1) block=(512,1,1) lds={G2_LDS}")
    A.raw('.amdgcn_target "amdgcn-amd-amdhsa--gfx950"')
    prep_kernel(A); gemm1_kernel(A); conv_kernel(A); gemm2_kernel(A)
    return A.text()

if __name__ == "__main__":
    open(sys.argv[1], "w").write(build())
```

```python
import sys
from asmlib import *

H_OFF = 0
WDF_OFF = 6291456
UR_OFF = 8257536
KX_OFF = 10878976
YT_OFF = 16121856
G_OFF = 18743296
FLAG_OFF = 18751488
WS_BYTES = 1 << 25
LOG2E = f2u(1.4426950408889634)
NLOG2E = f2u(-1.4426950408889634)
LOG2E_LO = f2u(1.4426950408889634 - struct.unpack("<f", struct.pack("<f", 1.4426950408889634))[0])
LN2 = f2u(0.6931471805599453)

DIAG = False
DIAG_OFF = 20 << 20
def stamp(A, i, real=False):
    if not DIAG: return
    A(f"s_mem{'real' if real else ''}time s[{64+2*i}:{65+2*i}]")
    A("s_waitcnt lgkmcnt(0)")
def stamp_begin(A):
    if not DIAG: return
    for i in range(16): A(f"s_mov_b32 s{64+2*i}, 0")
    stamp(A, 0); stamp(A, 14, True)
    A("v_lshrrev_b32 v1, 6, v0")
    A("s_nop 0")
    A("v_readfirstlane_b32 s63, v1")
def stamp_end(A, kid):
    if not DIAG: return
    A("s_waitcnt vmcnt(0)")
    stamp(A, 13); stamp(A, 15, True)
    A("s_load_dwordx2 s[56:57], s[0:1], 112")
    A("s_mov_b32 s58, 0x%x" % WS_BYTES)
    A("s_mov_b32 s59, 0x20000")
    A("s_lshl_b32 s60, s2, 4")
    A("s_add_u32 s60, s60, s63")
    A("s_lshl_b32 s60, s60, 6")
    A(f"s_add_u32 s60, s60, {DIAG_OFF + kid*(1<<19)}")
    A("v_mov_b32 v0, 0")
    A("s_mov_b64 exec, 1")
    A("s_waitcnt lgkmcnt(0)")
    for i in range(16):
        A(f"v_mov_b32 v1, s{64+2*i}")
        A(f"buffer_store_dword v1, v0, s[56:59], s60 offen offset:{4*i}")
    A("s_waitcnt vmcnt(0)")

def wave_id(A, sdst, vlane):
    A(f"v_lshrrev_b32 v1, 6, v0")
    A(f"v_and_b32 v{vlane}, 63, v0")
    A(f"v_readfirstlane_b32 s{sdst}, v1")

def cmul(A, dr, di, ar, ai, mr, mi, nmi):
    A(f"v_mul_f32 v{dr}, v{ar}, v{mr}")
    A(f"v_mul_f32 v{di}, v{ar}, v{mi}")
    A(f"v_fmac_f32 v{dr}, v{ai}, v{nmi}")
    A(f"v_fmac_f32 v{di}, v{ai}, v{mr}")

RS = 288
def kgen(A, sD, sL, hook=lambda: None):
    A("s_load_dwordx8 s[8:15], s[0:1], 8")
    A("s_load_dwordx2 s[16:17], s[0:1], 40")
    A("s_load_dwordx2 s[20:21], s[0:1], 112")
    A(f"s_mul_i32 s18, s{sD}, 384")
    A("v_lshlrev_b32 v1, 1, v0")
    A("v_add_u32 v1, s18, v1")
    A(f"s_lshl_b32 s19, s{sD}, 1")
    A("v_mov_b32 v2, s19")
    A(f"s_mov_b32 m0, s{sL}")
    A("s_waitcnt lgkmcnt(0)")
    A("global_load_ushort v3, v2, s[16:17]")
    RAW = 4
    for p in range(3):
        for a in range(4):
            A(f"global_load_ushort v{RAW+4*p+a}, v1, s[{8+2*a}:{9+2*a}] offset:{128*p}")
    A("s_mov_b32 s22, 0x%x" % WS_BYTES)
    A("s_mov_b32 s23, 0x20000")
    A("s_mov_b32 s24, 0x%x" % LOG2E)
    A("s_mov_b32 s25, 0x%x" % LOG2E_LO)
    A("s_mov_b32 s26, 0x%x" % LN2)
    A("s_mov_b32 s27, 0x41000000")
    A("s_mov_b32 s28, 0x43000000")
    FA = 16
    A(f"v_and_b32 v17, 15, v0")
    A(f"v_lshrrev_b32 v18, 4, v0")
    A(f"v_mul_u32_u24 v{FA}, {RS}, v17")
    A(f"v_lshl_add_u32 v{FA}, v18, 4, v{FA}")
    A(f"v_add_u32 v{FA}, s{sL}, v{FA}")
    ACC = 20
    for i in range(12): A(f"v_mov_b32 v{ACC+i}, 0")
    DT, DT2, NDT = 32, 33, 34
    ONE = 35
    A(f"v_mov_b32 v{ONE}, 0x3f80")
    A("s_waitcnt vmcnt(12)")
    A("v_lshlrev_b32 v3, 16, v3")
    A("v_mul_f32 v36, s24, v3")
    A("v_fma_f32 v37, v3, s24, -v36")
    A("v_fmac_f32 v37, s25, v3")
    A("v_exp_f32 v36, v36")
    A("v_mul_f32 v37, s26, v37")
    A("v_fmac_f32 v36, v36, v37")
    A("v_cvt_pk_bf16_f32 v36, v36, v36")
    A(f"v_lshlrev_b32 v{DT}, 16, v36")
    A(f"v_add_f32 v{DT2}, v{DT}, v{DT}")
    A(f"v_sub_f32 v{NDT}, 0, v{DT}")
    A("s_mov_b32 s29, 0")
    A("s_waitcnt vmcnt(0)")
    stamp(A, 1)
    loop = A.newlabel("kg")
    A.label(loop)
    A1, TH = 36, 37
    Z, W, Y = 38, 41, 44
    P = 48
    T = 64
    QA, QB = 70, 72
    PK = 74
    QF, PF = 80, 96
    A(f"v_lshlrev_b32 v{T}, 16, v{RAW}")
    A(f"v_mul_f32 v{T}, s24, v{T}")
    A(f"v_lshlrev_b32 v{TH}, 16, v{RAW+1}")
    A(f"v_exp_f32 v{T}, v{T}")
    A(f"v_lshlrev_b32 v{P}, 16, v{RAW+2}")
    A(f"v_lshlrev_b32 v{P+1}, 16, v{RAW+3}")
    A(f"v_cvt_pk_bf16_f32 v{T}, v{T}, v{T}")
    A(f"v_mul_f32 v{TH}, v{TH}, v{DT}")
    A(f"v_lshlrev_b32 v{T}, 16, v{T}")
    A(f"v_mul_f32 v{TH}, 0.15915494, v{TH}")
    A(f"v_mul_f32 v{A1}, v{T}, v{NDT}")
    A(f"v_mul_f32 v{P}, v{P}, v{DT2}")
    A(f"v_mul_f32 v{A1}, s24, v{A1}")
    A(f"v_mul_f32 v{P+1}, v{P+1}, v{DT2}")
    for i in range(8): A(f"v_mov_b32 v{RAW+i}, v{RAW+4+i}")
    for (R, sc) in ((Z, None), (W, "s27"), (Y, "s28")):
        if sc:
            A(f"v_mul_f32 v{T}, {sc}, v{A1}")
            A(f"v_mul_f32 v{T+1}, {sc}, v{TH}")
            A(f"v_exp_f32 v{T}, v{T}")
            A(f"v_fract_f32 v{T+1}, v{T+1}")
        else:
            A(f"v_exp_f32 v{T}, v{A1}")
            A(f"v_fract_f32 v{T+1}, v{TH}")
        A(f"v_cos_f32 v{R}, v{T+1}")
        A(f"v_sin_f32 v{R+1}, v{T+1}")
        A(f"v_mul_f32 v{R}, v{R}, v{T}")
        A(f"v_mul_f32 v{R+1}, v{R+1}, v{T}")
        A(f"v_sub_f32 v{R+2}, 0, v{R+1}")
    pkc = [0]
    def emit(row, r, i):
        k = PK + pkc[0] % 4; pkc[0] += 1
        A(f"v_cvt_pk_bf16_f32 v{k}, v{r}, v{i}")
        A(f"ds_write_addtid_b32 v{k} offset:{row*RS}")
    A(f"ds_write_addtid_b32 v{ONE} offset:0")
    emit(1, W, W+2)
    emit(16, P, P+1)
    qsrc = (W, W+2)
    for j in range(2, 16):
        dst = QA if j % 2 == 0 else QB
        cmul(A, dst, dst+1, qsrc[0], qsrc[1], W, W+2, W+1)
        qsrc = (dst, dst+1)
        b = j - 1
        if b <= 7:
            cmul(A, P+2*b, P+2*b+1, P+2*b-2, P+2*b-1, Z, Z+1, Z+2)
        emit(j, dst, dst+1)
        if b <= 7: emit(16+b, P+2*b, P+2*b+1)
        if j == 8: hook()
    loc = {}
    for b in range(0, 8, 2):
        cmul(A, T, T+1, P+2*b+2, P+2*b+3, Y, Y+1, Y+2)
        cmul(A, P+2*b+2, P+2*b+3, P+2*b, P+2*b+1, Y, Y+1, Y+2)
        emit(24+b+1, T, T+1)
        emit(24+b, P+2*b+2, P+2*b+3)
        loc[b] = P+2*b+2
    for t in range(4):
        A(f"ds_read_b128 v[{QF+4*t}:{QF+4*t+3}], v{FA} offset:{64*t}")
        A(f"ds_read_b128 v[{PF+4*t}:{PF+4*t+3}], v{FA} offset:{16*RS+64*t}")
    hook()
    def step(b, row):
        s = loc[b]; d = P+2*b if s == P+2*b+2 else P+2*b+2
        cmul(A, d, d+1, s, s+1, Y, Y+1, Y+2)
        loc[b] = d
        return (row, d, d+1)
    for a in range(2):
        es = [step(b, 4*a + b//2) for b in (0, 2, 4, 6)]
        if a == 0:
            A("s_waitcnt lgkmcnt(0)")
            for t in range(4):
                A(f"v_mfma_f32_16x16x32_bf16 v[{ACC}:{ACC+3}], v[{PF+4*t}:{PF+4*t+3}], v[{QF+4*t}:{QF+4*t+3}], v[{ACC}:{ACC+3}]")
        for e in es: emit(*e)
    for a in range(4):
        es = [step(b, 8 + 2*a + b//4) for b in (0, 4)]
        for e in es: emit(*e)
    hook()
    for a in range(9):
        emit(*step(0, 16 + a))
    for t in range(4):
        A(f"ds_read_b128 v[{PF+4*t}:{PF+4*t+3}], v{FA} offset:{64*t}")
    for t in range(4):
        A(f"ds_read_b128 v[{PF+16+4*t}:{PF+16+4*t+3}], v{FA} offset:{16*RS+64*t}")
    A("s_add_u32 s29, s29, 1")
    A("s_waitcnt lgkmcnt(4)")
    for t in range(4):
        A(f"v_mfma_f32_16x16x32_bf16 v[{ACC+4}:{ACC+7}], v[{PF+4*t}:{PF+4*t+3}], v[{QF+4*t}:{QF+4*t+3}], v[{ACC+4}:{ACC+7}]")
    A("s_waitcnt lgkmcnt(0)")
    for t in range(4):
        A(f"v_mfma_f32_16x16x32_bf16 v[{ACC+8}:{ACC+11}], v[{PF+16+4*t}:{PF+16+4*t+3}], v[{QF+4*t}:{QF+4*t+3}], v[{ACC+8}:{ACC+11}]")
    hook()
    A("s_cmp_lt_u32 s29, 3")
    A(f"s_cbranch_scc1 {loop}")
    stamp(A, 2)
    EB = 16
    A(f"v_lshlrev_b32 v40, 4, v17")
    A(f"v_add_u32 v40, s{sL}, v40")
    A(f"v_lshl_add_u32 v41, v18, 10, v40")
    A(f"v_add_u32 v41, {EB + 2048 - 8}, v41")
    A(f"v_and_b32 v42, 1, v0")
    A(f"v_lshlrev_b32 v42, 3, v42")
    A(f"v_sub_u32 v42, v41, v42")
    A(f"v_lshl_add_u32 v43, v18, 9, v40")
    A(f"v_lshl_add_u32 v44, v18, 8, v40")
    A(f"v_lshrrev_b32 v45, 1, v18")
    A(f"v_lshl_add_u32 v45, v45, 8, v40")
    A(f"v_and_b32 v46, 1, v18")
    A(f"v_lshl_add_u32 v45, v46, 3, v45")
    A(f"v_mov_b32 v47, 0")
    A(f"v_mov_b32 v46, s{sL}")
    A("s_nop 3")
    K0, K1, K2 = ACC, ACC+4, ACC+8
    for r in range(4):
        A(f"v_cvt_pk_bf16_f32 v{48+2*r}, v{K2+r}, v{K2+r}")
        A(f"v_cvt_pk_bf16_f32 v{49+2*r}, v{K2+r}, v{K2+r}")
    for r in range(4):
        A(f"ds_write2_b64 v41, v[{48+2*r}:{49+2*r}], v[{48+2*r}:{49+2*r}] offset0:{32*r} offset1:{32*r+1}")
    for r in range(4):
        A(f"ds_write_b16 v42, v{48+2*r} offset:{256*r+16}")
    c = {}
    for n, (x, y) in enumerate([(0,0),(0,1),(1,1),(2,2),(2,3),(3,3),(1,2)]):
        c[(x,y)] = 56+n
        A(f"v_cvt_pk_bf16_f32 v{56+n}, v{K1+x}, v{K1+y}")
    A(f"v_cvt_pk_bf16_f32 v64, v{K0}, v{K0+1}")
    A(f"v_cvt_pk_bf16_f32 v65, v{K0+2}, v{K0+3}")
    A("s_mov_b32 exec_lo, 0")
    o = (EB - 4) // 4
    A(f"ds_write2_b32 v43, v{c[0,0]}, v{c[0,0]} offset0:{o} offset1:{o+1}")
    A(f"ds_write2_b32 v43, v{c[0,1]}, v{c[1,1]} offset0:{o+2} offset1:{o+3}")
    A(f"ds_write2_b32 v43, v{c[2,2]}, v{c[2,2]} offset0:{o+64} offset1:{o+65}")
    A(f"ds_write2_b32 v43, v{c[2,3]}, v{c[3,3]} offset0:{o+66} offset1:{o+67}")
    A("s_mov_b32 exec_lo, -1")
    A("s_mov_b32 exec_hi, 0")
    o = EB + 512
    A(f"ds_write_b16 v44, v{c[0,0]} offset:{o-2}")
    A(f"ds_write2_b32 v44, v{c[0,0]}, v{c[1,2]} offset0:{o//4} offset1:{o//4+1}")
    A(f"ds_write_b32 v44, v{c[2,2]} offset:{o+8}")
    A(f"ds_write_b16 v44, v{c[3,3]} offset:{o+12}")
    A("s_mov_b64 exec, -1")
    A(f"ds_write_b64 v45, v[64:65] offset:{EB}")
    A(f"ds_write_b32 v46, v47 offset:{EB-4}")
    A(f"v_lshlrev_b32 v40, 4, v0")
    A(f"v_add_u32 v41, s{sL}, v40")
    for i in range(4):
        A(f"ds_read_b128 v[{80+8*i}:{83+8*i}], v41 offset:{EB+1024*i}")
        A(f"ds_read_b32 v{72+i}, v41 offset:{EB+1024*i-4}")
    A(f"s_lshl_b32 s30, s{sD}, 13")
    A(f"s_add_u32 s30, s30, {KX_OFF}")
    A(f"s_add_u32 s31, s30, 4096")
    for i in range(4):
        A(f"s_waitcnt lgkmcnt({6-2*i})")
        b = 80+8*i
        A(f"buffer_store_dwordx4 v[{b}:{b+3}], v40, s[20:23], s30 offen offset:{1024*i}")
        A(f"v_alignbit_b32 v{b+4}, v{b}, v{72+i}, 16")
        for k in range(1, 4):
            A(f"v_alignbit_b32 v{b+4+k}, v{b+k}, v{b+k-1}, 16")
        A(f"buffer_store_dwordx4 v[{b+4}:{b+7}], v40, s[20:23], s31 offen offset:{1024*i}")

def misc(A, sM, sL):
    A("s_load_dwordx2 s[8:9], s[0:1], 0")
    A("s_load_dwordx4 s[12:15], s[0:1], 80")
    A("s_load_dwordx2 s[20:21], s[0:1], 112")
    A("s_mov_b32 s10, 2621440")
    A("s_mov_b32 s11, 0x20000")
    A("s_mov_b32 s22, 0x%x" % WS_BYTES)
    A("s_mov_b32 s23, 0x20000")
    A("v_lshrrev_b32 v1, 3, v0")
    A("v_and_b32 v2, 7, v0")
    A("v_mul_u32_u24 v3, 1280, v1")
    A("s_waitcnt lgkmcnt(0)")
    A("s_mov_b32 s16, s12")
    A("s_mov_b32 s17, s13")
    A("s_mov_b32 s18, 1966080")
    A("s_mov_b32 s19, 0x20000")
    l_nour = A.newlabel("nour"); l_nowd = A.newlabel("nowd"); l_nog = A.newlabel("nog")
    A(f"s_cmp_ge_u32 s{sM}, 320")
    A(f"s_cbranch_scc1 {l_nour}")
    A(f"s_and_b32 s24, s{sM}, 31")
    A(f"s_lshr_b32 s25, s{sM}, 5")
    A("s_mul_i32 s26, s24, 81920")
    A("s_lshl_b32 s27, s25, 7")
    A("s_add_u32 s26, s26, s27")
    for i in range(8):
        A(f"v_xor_b32 v4, {i}, v2")
        A(f"s_add_u32 m0, s{sL}, {1024*i}")
        A(f"v_lshl_add_u32 v4, v4, 4, v3")
        A(f"buffer_load_dwordx4 v4, s[8:11], s26 offen lds")
        A(f"s_add_u32 s26, s26, 10240")
    A("v_xor_b32 v5, v1, v2")
    A("v_lshlrev_b32 v5, 4, v5")
    A("v_lshl_add_u32 v5, v2, 10, v5")
    A(f"v_add_u32 v5, s{sL}, v5")
    A("v_lshlrev_b32 v6, 15, v1")
    A("v_lshlrev_b32 v7, 4, v2")
    A("v_sub_u32 v6, v6, v7")
    A("v_add_u32 v6, 4080, v6")
    A("s_lshl_b32 s26, s25, 18")
    A("s_lshl_b32 s27, s24, 7")
    A("s_sub_u32 s26, s26, s27")
    A(f"s_add_u32 s26, s26, {UR_OFF}")
    A("s_mov_b32 s28, 0x05040100")
    A("s_mov_b32 s29, 0x07060302")
    A("s_waitcnt vmcnt(0)")
    for e in range(8):
        A(f"ds_read_b128 v[{8+4*e}:{11+4*e}], v5 offset:{128*e}")
    A("s_waitcnt lgkmcnt(0)")
    for i in range(8):
        o = 40 + 4*i
        for p in range(4):
            lo = 8 + 4*(7-2*p) + i//2; hi = 8 + 4*(6-2*p) + i//2
            A(f"v_perm_b32 v{o+p}, v{hi}, v{lo}, s{28 + (i&1)}")
        A(f"buffer_store_dwordx4 v[{o}:{o+3}], v6, s[20:23], s26 offen")
        A("s_add_u32 s26, s26, 4096")
    A.label(l_nour)
    stamp(A, 1)
    A(f"s_cmp_lt_u32 s{sM}, 144")
    A(f"s_cbranch_scc1 {l_nowd}")
    A(f"s_sub_u32 s24, s{sM}, 144")
    A("s_mul_i32 s25, s24, 2731")
    A("s_lshr_b32 s25, s25, 16")
    A("s_mul_i32 s26, s25, 24")
    A("s_sub_u32 s24, s24, s26")
    A("s_mul_i32 s26, s24, 81920")
    A("s_lshl_b32 s27, s25, 7")
    A("s_add_u32 s26, s26, s27")
    A("v_lshl_add_u32 v4, v2, 4, v3")
    for i in range(8):
        A(f"s_add_u32 m0, s{sL}, {1024*i}")
        A("s_nop 0")
        A(f"buffer_load_dwordx4 v4, s[16:19], s26 offen lds")
        A(f"s_add_u32 s26, s26, 10240")
    A("v_lshrrev_b32 v5, 5, v0")
    A("v_lshlrev_b32 v5, 11, v5")
    A("v_bfe_u32 v6, v0, 2, 3")
    A("v_lshl_add_u32 v5, v6, 7, v5")
    A("v_and_b32 v6, 3, v0")
    A("v_lshl_add_u32 v5, v6, 3, v5")
    A(f"v_add_u32 v5, s{sL}, v5")
    A("v_lshlrev_b32 v6, 4, v0")
    A("s_waitcnt vmcnt(0)")
    for dtl in range(4):
        for sg in range(2):
            o = 8 + 4*(2*dtl+sg)
            A(f"ds_read_b64_tr_b16 v[{o}:{o+1}], v5 offset:{4096*sg + 32*dtl}")
            A(f"ds_read_b64_tr_b16 v[{o+2}:{o+3}], v5 offset:{4096*sg + 32*dtl + 1024}")
    for dtl in range(4):
        A(f"s_lshl_b32 s26, s25, 2")
        A(f"s_add_u32 s26, s26, {dtl}")
        A("s_mul_i32 s27, s26, 52429")
        A("s_lshr_b32 s27, s27, 18")
        A("s_mul_i32 s28, s27, 235")
        A("s_add_u32 s26, s26, s28")
        A("s_mul_i32 s28, s24, 10")
        A("s_add_u32 s26, s26, s28")
        A("s_lshl_b32 s26, s26, 10")
        A(f"s_add_u32 s26, s26, {WDF_OFF}")
        A("s_add_u32 s27, s26, 5120")
        A(f"s_waitcnt lgkmcnt({12-4*dtl})")
        o = 8 + 8*dtl
        A(f"buffer_store_dwordx4 v[{o}:{o+3}], v6, s[20:23], s26 offen")
        A(f"buffer_store_dwordx4 v[{o+4}:{o+7}], v6, s[20:23], s27 offen")
    A.label(l_nowd)
    stamp(A, 2)
    A(f"s_cmp_ge_u32 s{sM}, 256")
    A(f"s_cbranch_scc1 {l_nog}")
    A("v_and_b32 v4, 15, v0")
    A("v_lshlrev_b32 v4, 4, v4")
    A("v_lshrrev_b32 v5, 4, v0")
    A("v_mul_u32_u24 v6, 1280, v5")
    A("v_add_u32 v6, v6, v4")
    A(f"s_mul_i32 s26, s{sM}, 10240")
    A("s_add_u32 s27, s26, 5120")
    A("s_waitcnt vmcnt(0)")
    for i in range(5):
        A(f"global_load_dwordx4 v[{8+4*i}:{11+4*i}], v4, s[14:15] offset:{256*i}")
    for it in range(2):
        for i in range(5):
            A(f"buffer_load_dwordx4 v[{28+20*it+4*i}:{31+20*it+4*i}], v6, s[8:11], s{26+it} offen offset:{256*i}")
    A("s_mov_b32 s28, 0xffff0000")
    A("s_mov_b32 s29, 0x%x" % NLOG2E)
    A("s_waitcnt vmcnt(10)")
    W = 68
    for k in range(20):
        A(f"v_lshlrev_b32 v{W+2*k}, 16, v{8+k}")
        A(f"v_and_b32 v{W+2*k+1}, s28, v{8+k}")
    for it in range(2):
        A(f"s_waitcnt vmcnt({5 if it == 0 else 0})")
        acc = 108 + it
        A(f"v_mov_b32 v{acc}, 0")
        A(f"v_mov_b32 v{acc+2}, 0")
        for k in range(20):
            x = 28 + 20*it + k
            t = 8 + 2*(k % 2)
            A(f"v_lshlrev_b32 v{t}, 16, v{x}")
            A(f"v_and_b32 v{t+1}, s28, v{x}")
            A(f"v_mul_f32 v{t}, v{t}, v{W+2*k}")
            A(f"v_mul_f32 v{t+1}, v{t+1}, v{W+2*k+1}")
            A(f"v_cvt_pk_bf16_f32 v{t}, v{t}, v{t+1}")
            A(f"v_and_b32 v{t+1}, s28, v{t}")
            A(f"v_lshlrev_b32 v{t}, 16, v{t}")
            A(f"v_add_f32 v{acc+2}, v{acc+2}, v{t+1}")
            A(f"v_add_f32 v{acc}, v{acc}, v{t}")
        A(f"v_add_f32 v{acc}, v{acc}, v{acc+2}")
    for sh in (8, 4, 2, 1):
        A("s_nop 1")
        A(f"v_add_f32_dpp v108, v108, v108 row_ror:{sh} row_mask:0xf bank_mask:0xf")
        A(f"v_add_f32_dpp v109, v109, v109 row_ror:{sh} row_mask:0xf bank_mask:0xf")
    A("v_and_b32 v8, 1, v0")
    A("v_cmp_eq_u32 vcc, 1, v8")
    A("s_nop 1")
    A("v_cndmask_b32 v108, v108, v109, vcc")
    A("v_cvt_pk_bf16_f32 v108, v108, v108")
    A("v_lshlrev_b32 v108, 16, v108")
    A("v_mul_f32 v108, s29, v108")
    A("v_exp_f32 v108, v108")
    A("v_lshlrev_b32 v9, 2, v5")
    A("v_add_f32 v108, 1.0, v108")
    A("v_rcp_f32 v108, v108")
    A("v_lshl_add_u32 v9, v8, 4, v9")
    A("v_cvt_pk_bf16_f32 v108, v108, v108")
    A("v_lshlrev_b32 v108, 16, v108")
    A(f"s_lshl_b32 s26, s{sM}, 5")
    A(f"s_add_u32 s26, s26, {G_OFF}")
    A("buffer_store_dword v108, v9, s[20:23], s26 offen")
    A.label(l_nog)

def helper_dispatch(A, sW, lds_base, end_label, hook=lambda: None):
    A("s_and_b32 s4, s2, 1")
    A("s_lshl_b32 s4, s4, 2")
    A(f"s_add_u32 s4, s4, s{sW}")
    A("s_lshr_b32 s5, s2, 1")
    A(f"s_mul_i32 s6, s{sW}, 9216")
    if lds_base: A(f"s_add_u32 s6, s6, {lds_base}")
    lm = A.newlabel("misc")
    A("s_mov_b32 s7, 0xc8")
    A("s_lshr_b32 s7, s7, s4")
    A("s_bitcmp1_b32 s7, 0")
    A(f"s_cbranch_scc1 {lm}")
    A("s_mul_i32 s7, s5, 5")
    A("s_add_u32 s7, s7, s4")
    A("s_lshr_b32 s4, s4, 2")
    A("s_sub_u32 s7, s7, s4")
    kgen(A, 7, 6, hook)
    A(f"s_branch {end_label}")
    A.label(lm)
    A("s_mul_i32 s7, s5, 3")
    A("s_max_u32 s4, s4, 5")
    A("s_add_u32 s7, s7, s4")
    A("s_sub_u32 s7, s7, 5")
    misc(A, 7, 6)

def prep_kernel(A):
    kernel_begin(A, "prep_kernel")
    A("s_cmp_ge_u32 s2, 256")
    A("s_cbranch_scc1 prep_end")
    stamp_begin(A)
    wave_id(A, 3, 0)
    helper_dispatch(A, 3, 0, "prep_end0")
    A.label("prep_end0")
    stamp_end(A, 0)
    A.label("prep_end")
    A("s_endpgm")
    kernel_desc(A, "prep_kernel", 128)

XB, GB = 0, 16384
UB = GB + 12288 + 32
STG = 41024
def g1_tile(A):
    A("s_and_b32 s6, s2, 7")
    A("s_lshr_b32 s7, s2, 3")
    A("s_lshr_b32 s4, s6, 1")
    A("s_lshl_b32 s4, s4, 2")
    A("s_and_b32 s5, s7, 3")
    A("s_add_u32 s4, s4, s5")
    A("s_and_b32 s5, s6, 1")
    A("s_lshl_b32 s5, s5, 3")
    A("s_lshr_b32 s7, s7, 2")
    A("s_add_u32 s5, s5, s7")

def g1_loader(A, sW):
    A("s_load_dwordx2 s[8:9], s[0:1], 0")
    A("s_load_dwordx4 s[20:23], s[0:1], 64")
    g1_tile(A)
    A("s_mov_b32 s10, 2621440")
    A("s_mov_b32 s11, 0x20000")
    A("s_mov_b32 s14, 1966080")
    A("s_mov_b32 s15, 0x20000")
    A("s_mov_b32 s18, 1966080")
    A("s_mov_b32 s19, 0x20000")
    A("v_lshrrev_b32 v8, 3, v0")
    A("v_mul_u32_u24 v8, 1280, v8")
    A("v_lshrrev_b32 v9, 4, v0")
    A("v_and_b32 v10, 7, v0")
    A("v_xor_b32 v9, v9, v10")
    A("v_lshl_add_u32 v2, v9, 4, v8")
    A("v_xor_b32 v9, 4, v9")
    A("v_lshl_add_u32 v3, v9, 4, v8")
    A(f"v_add_u32 v3, {10240-1024}, v3")
    A(f"v_add_u32 v4, {20480-2048}, v2")
    A(f"v_add_u32 v5, {20480-2048}, v3")
    for i in range(3):
        A(f"v_add_u32 v9, {64*i}, v0")
        A("v_mul_u32_u24 v10, 5462, v9")
        A("v_lshrrev_b32 v10, 16, v10")
        A("v_mul_u32_u24 v10, 2880, v10")
        A(f"v_lshl_add_u32 v{11+i}, v0, 4, v10")
    A("s_lshl_b32 s24, s4, 2")
    A(f"s_add_u32 s24, s24, s{sW}")
    A("s_mul_i32 s24, s24, 40960")
    A("s_mul_i32 s25, s5, 192")
    A(f"s_mul_i32 s26, s{sW}, 49152")
    A("s_add_u32 s25, s25, s26")
    A(f"s_lshl_b32 s26, s{sW}, 12")
    A(f"s_mul_i32 s27, s{sW}, 3072")
    A(f"s_add_u32 s28, s27, {UB}")
    A(f"s_add_u32 s27, s27, {GB}")
    A("s_mov_b32 s29, 0")
    A("s_waitcnt lgkmcnt(0)")
    A("s_mov_b32 s12, s20")
    A("s_mov_b32 s13, s21")
    A("s_mov_b32 s16, s22")
    A("s_mov_b32 s17, s23")
    def issue():
        A("s_add_u32 m0, s29, s26")
        A("s_nop 0")
        for i in range(4):
            A(f"buffer_load_dwordx4 v{2+i}, s[8:11], s24 offen offset:{1024*i} lds")
        A("s_add_u32 m0, s29, s27")
        A("s_add_u32 s24, s24, 128")
        for i in range(3):
            A(f"buffer_load_dwordx4 v{11+i}, s[12:15], s25 offen offset:{1024*i} lds")
        A("s_add_u32 m0, s29, s28")
        A(f"s_add_u32 s29, s29, {STG}")
        for i in range(3):
            A(f"buffer_load_dwordx4 v{11+i}, s[16:19], s25 offen offset:{1024*i} lds")
        A("s_add_u32 s25, s25, 196608")
        A(f"s_cmp_eq_u32 s29, {3*STG}")
        A("s_cselect_b32 s29, 0, s29")
    A("s_mov_b32 s30, 0")
    l1 = A.newlabel("ld"); l2 = A.newlabel("ld")
    A.label(l1)
    issue()
    A("s_add_u32 s30, s30, 1")
    A("s_cmp_lt_u32 s30, 3")
    A(f"s_cbranch_scc1 {l1}")
    A("s_cmp_gt_u32 s30, 3")
    A(f"s_cbranch_scc1 {l2}")
    A("s_waitcnt vmcnt(20)")
    A("s_barrier")
    A.label(l2)
    A("s_waitcnt vmcnt(10)")
    A("s_barrier")
    A("s_cmp_lt_u32 s30, 10")
    A(f"s_cbranch_scc1 {l1}")
    A("s_waitcnt vmcnt(0)")
    A("s_barrier")

ACC1 = 64
def g1_mfma(A, sW, exact=True):
    A("s_load_dwordx2 s[20:21], s[0:1], 112")
    g1_tile(A)
    A(f"s_lshr_b32 s8, s{sW}, 1")
    A(f"s_and_b32 s9, s{sW}, 1")
    A("v_and_b32 v8, 31, v0")
    A("v_lshrrev_b32 v9, 5, v0")
    A("v_bfe_u32 v10, v0, 1, 3")
    A("v_xor_b32 v10, v10, v9")
    A("v_lshlrev_b32 v11, 7, v8")
    A("s_lshl_b32 s10, s8, 13")
    A("v_add_u32 v11, s10, v11")
    for ks in range(4):
        A(f"v_xor_b32 v12, {2*ks}, v10")
        A(f"v_lshl_add_u32 v{2+ks}, v12, 4, v11")
    A("v_bfe_u32 v12, v0, 2, 2")
    A("v_lshl_add_u32 v12, v9, 3, v12")
    A("v_mul_u32_u24 v6, 192, v12")
    A("v_and_b32 v12, 3, v0")
    A("v_lshl_add_u32 v6, v12, 3, v6")
    A("v_bfe_u32 v12, v0, 4, 1")
    A(f"v_mul_u32_u24 v12, {UB-GB}, v12")
    A("v_add_u32 v6, v6, v12")
    A("s_mul_i32 s10, s9, 96")
    A(f"s_add_u32 s10, s10, {GB}")
    A("v_add_u32 v6, s10, v6")
    for i in range(96): A(f"v_mov_b32 v{ACC1+i}, 0")
    F = [16, 36]
    def reads(ks, f):
        r = []
        b = F[f]
        r.append(f"ds_read_b128 v[{b}:{b+3}], v{2+ks}")
        for nt in range(3):
            o = b + 8 + 4*nt
            r.append(f"ds_read_b64_tr_b16 v[{o}:{o+1}], v6 offset:{3072*ks + 32*nt}")
            r.append(f"ds_read_b64_tr_b16 v[{o+2}:{o+3}], v6 offset:{3072*ks + 32*nt + 768}")
        r.append(f"ds_read_b128 v[{b+4}:{b+7}], v{2+ks} offset:4096")
        return r
    def mfmas(f):
        b = F[f]; r = []
        for a in range(2):
            for nt in range(3):
                c = ACC1 + 16*(3*a+nt)
                r.append(f"v_mfma_f32_32x32x16_bf16 v[{c}:{c+15}], v[{b+8+4*nt}:{b+11+4*nt}], v[{b+4*a}:{b+4*a+3}], v[{c}:{c+15}]")
        return r
    def group(ms, rs, pre=()):
        A(ms[0])
        for p in pre: A(p)
        for x in rs[0:3]: A(x)
        A(ms[1])
        for x in rs[3:6]: A(x)
        A(ms[2])
        for x in rs[6:8]: A(x)
        for m in ms[3:]: A(m)
    A("s_mov_b32 s22, 0x%x" % WS_BYTES)
    A("s_mov_b32 s23, 0x20000")
    A("s_mov_b32 s11, 0")
    A("s_mov_b32 s12, 0")
    stamp(A, 1)
    A("s_barrier")
    stamp(A, 2)
    for x in reads(0, 0): A(x)
    lp = A.newlabel("g1"); ex = A.newlabel("g1x")
    A.label(lp)
    for ks in range(3):
        A("s_waitcnt lgkmcnt(0)")
        pre = []
        if ks == 0:
            pre = ["s_add_u32 s12, s12, 1", "s_cmp_eq_u32 s12, 3", f"s_cselect_b32 s13, {(-2*STG) & 0xffffffff}, {STG}" if False else "s_cselect_b32 s13, s14, s15", "s_cselect_b32 s12, 0, s12"]
        if ks == 1:
            pre = ["s_add_u32 s11, s11, 1"]
        group(mfmas(ks % 2), reads(ks+1, (ks+1) % 2), pre)
    A("s_cmp_eq_u32 s11, 10")
    A("s_waitcnt lgkmcnt(0)")
    A(f"s_cbranch_scc1 {ex}")
    pre = ["s_barrier"] + [f"v_add_u32 v{r}, s13, v{r}" for r in (2, 6, 3, 4, 5)]
    group(mfmas(1), reads(0, 0), pre)
    A(f"s_branch {lp}")
    A.label(ex)
    for m in mfmas(1): A(m)
    stamp(A, 3)
    A("s_mov_b32 s24, 0xffff0000")
    A("s_mov_b32 s25, 0x%x" % NLOG2E)
    A("v_and_b32 v2, 15, v0")
    A("v_lshlrev_b32 v2, 4, v2")
    A("v_lshl_add_u32 v2, v9, 8, v2")
    A("v_bfe_u32 v3, v0, 4, 1")
    A("v_lshl_add_u32 v2, v3, 10, v2")
    A("s_lshl_b32 s26, s4, 1")
    A("s_add_u32 s26, s26, s8")
    A("s_mul_i32 s26, s26, 196608")
    A("s_mul_i32 s27, s5, 6")
    A("s_mul_i32 s28, s9, 3")
    A("s_add_u32 s27, s27, s28")
    for nt in range(3):
        A(f"s_add_u32 s28, s27, {nt}")
        A("s_lshr_b32 s29, s28, 1")
        A("s_lshl_b32 s29, s29, 12")
        A("s_and_b32 s28, s28, 1")
        A("s_lshl_b32 s28, s28, 9")
        A("s_add_u32 s29, s29, s28")
        A(f"s_add_u32 s{30+nt}, s29, s26")
    A("s_waitcnt lgkmcnt(0)")
    A("s_nop 7")
    E = 16; T = 24
    for a in range(2):
        for nt in range(3):
            g = ACC1 + 16*(3*a+nt); u = g + 8
            o = 32 + 4*((3*a+nt) % 4)
            def rnd(base):
                for i in range(4): A(f"v_cvt_pk_bf16_f32 v{T+i}, v{base+2*i}, v{base+2*i+1}")
                for i in range(4):
                    A(f"v_lshlrev_b32 v{base+2*i}, 16, v{T+i}")
                    A(f"v_and_b32 v{base+2*i+1}, s24, v{T+i}")
            if exact: rnd(g)
            for i in range(8): A(f"v_mul_f32 v{E+i}, s25, v{g+i}")
            for i in range(8): A(f"v_exp_f32 v{E+i}, v{E+i}")
            for i in range(8): A(f"v_add_f32 v{E+i}, 1.0, v{E+i}")
            for i in range(8): A(f"v_rcp_f32 v{E+i}, v{E+i}")
            if exact: rnd(u)
            for i in range(8): A(f"v_mul_f32 v{g+i}, v{g+i}, v{E+i}")
            if exact: rnd(g)
            for i in range(8): A(f"v_mul_f32 v{g+i}, v{g+i}, v{u+i}")
            for i in range(4): A(f"v_cvt_pk_bf16_f32 v{o+i}, v{g+2*i}, v{g+2*i+1}")
            A(f"buffer_store_dwordx4 v[{o}:{o+3}], v2, s[20:23], s{30+nt} offen offset:{2048*a}")
    stamp(A, 4)

def gemm1_kernel(A):
    kernel_begin(A, "gemm1_kernel")
    A("s_cmp_ge_u32 s2, 256")
    A("s_cbranch_scc1 g1_end")
    stamp_begin(A)
    wave_id(A, 3, 0)
    A("s_mov_b32 s14, 0x%x" % ((-2*STG) & 0xffffffff))
    A(f"s_mov_b32 s15, {STG}")
    A("s_cmp_lt_u32 s3, 4")
    A("s_cbranch_scc1 g1_m")
    A("s_sub_u32 s3, s3, 4")
    g1_loader(A, 3)
    stamp_end(A, 1)
    A("s_endpgm")
    A.label("g1_m")
    g1_mfma(A, 3)
    stamp_end(A, 1)
    A.label("g1_end")
    A("s_endpgm")
    kernel_desc(A, "gemm1_kernel", 168)

CK = 64
CS = 4160
CU = CK + 4*CS
CW = CU + 4096 + 512
def conv(A, sD, sL, sc=""):
    A("v_lshlrev_b32 v1, 4, v0")
    A(f"s_lshl_b32 s24, s{sD}, 12")
    A(f"s_add_u32 s25, s24, {UR_OFF}")
    A(f"s_add_u32 m0, s{sL}, {CU}")
    A(f"s_lshl_b32 s26, s{sD}, 13")
    for i in range(4):
        A(f"buffer_load_dwordx4 v1, s[20:23], s25 offen offset:{1024*i} lds")
    for s in range(4):
        A(f"s_add_u32 m0, s{sL}, {CK + s*CS}")
        A(f"s_add_u32 s27, s26, {KX_OFF + (s&1)*4096 - (s>>1)*4}")
        for i in range(4):
            A(f"buffer_load_dwordx4 v1, s[20:23], s27 offen offset:{1024*i} lds")
    A("v_and_b32 v4, 15, v0")
    A("v_lshrrev_b32 v5, 4, v0")
    A("v_lshlrev_b32 v2, 4, v5")
    A("v_lshlrev_b32 v6, 5, v4")
    A("v_sub_u32 v2, v2, v6")
    A(f"v_add_u32 v2, {CU + 4064 - 3584}, v2")
    A(f"v_add_u32 v2, s{sL}, v2")
    A("v_sub_u32 v6, 15, v4")
    A("v_and_b32 v7, 3, v6")
    A("v_sub_u32 v6, v6, v7")
    A(f"v_mul_u32_u24 v3, {CS}, v7")
    A("v_lshl_add_u32 v3, v5, 4, v3")
    A("v_lshlrev_b32 v6, 1, v6")
    A("v_sub_u32 v3, v3, v6")
    A(f"v_add_u32 v3, {CK}, v3")
    A(f"v_add_u32 v3, s{sL}, v3")
    A("v_lshrrev_b32 v6, 1, v5")
    A("v_add_u32 v6, 7, v6")
    A("v_min_u32 v6, v4, v6")
    A(f"v_mul_u32_u24 v7, {CS}, v5")
    A("v_lshl_add_u32 v6, v6, 2, v7")
    A(f"v_add_u32 v6, s{sL}, v6")
    A("v_lshlrev_b32 v7, 3, v0")
    A(f"v_add_u32 v7, s{sL}, v7")
    Y = 8
    for i in range(32): A(f"v_mov_b32 v{Y+i}, 0")
    A(f"ds_write_b64 v7, v[{Y}:{Y+1}] offset:{CU+4096}")
    A("s_waitcnt vmcnt(0)")
    A(f"ds_write_b32 v6, v{Y} offset:{CK-32}")
    stamp(A, 1)
    TB = [40, 104]
    def reads(f, extra):
        b = TB[f]; r = []
        for q in range(8):
            r.append(f"ds_read_b128 v[{b+32+4*q}:{b+35+4*q}], v2 offset:{512*(7-q) + extra}")
            r.append(f"ds_read_b64 v[{b+4*q}:{b+4*q+1}], v3 offset:{512*q + extra}")
            r.append(f"ds_read_b64 v[{b+4*q+2}:{b+4*q+3}], v3 offset:{512*q + 8 + extra}")
        return r
    def mfmas(f):
        b = TB[f]; r = []
        for q in range(8):
            for tau in range(8-q):
                t = q + tau
                r.append(f"v_mfma_f32_16x16x32_bf16 v[{Y+4*t}:{Y+4*t+3}], v[{b+4*q}:{b+4*q+3}], v[{b+32+4*tau}:{b+35+4*tau}], v[{Y+4*t}:{Y+4*t+3}]")
        return r
    def inter(ms, rs):
        for i, m in enumerate(ms):
            A(m)
            if i < len(rs): A(rs[i])
    for x in reads(0, 0): A(x)
    A("s_mov_b32 s28, 0")
    lp = A.newlabel("cv")
    A.label(lp)
    A("s_waitcnt lgkmcnt(0)")
    inter(mfmas(0), reads(1, 64))
    A("s_add_u32 s28, s28, 1")
    A("s_waitcnt lgkmcnt(0)")
    inter(mfmas(1), reads(0, 128))
    A("v_add_u32 v2, 128, v2")
    A("v_add_u32 v3, 128, v3")
    A("s_cmp_lt_u32 s28, 4")
    A(f"s_cbranch_scc1 {lp}")
    stamp(A, 2)
    A("v_lshlrev_b32 v1, 5, v4")
    A("v_lshrrev_b32 v6, 1, v5")
    A("v_lshl_add_u32 v1, v6, 4, v1")
    A("v_and_b32 v6, 1, v5")
    A("v_lshl_add_u32 v1, v6, 9, v1")
    A(f"s_add_u32 s25, s24, {YT_OFF}")
    A("s_waitcnt lgkmcnt(0)")
    A("s_nop 3")
    O = 40
    for t in range(8):
        A(f"v_cvt_pk_bf16_f32 v{O+2*t}, v{Y+4*t}, v{Y+4*t+1}")
        A(f"v_cvt_pk_bf16_f32 v{O+2*t+1}, v{Y+4*t+2}, v{Y+4*t+3}")
    A("s_nop 1")
    for p in range(4):
        A(f"v_permlane16_swap_b32 v{O+4*p}, v{O+4*p+2}")
        A(f"v_permlane16_swap_b32 v{O+4*p+1}, v{O+4*p+3}")
    A("s_nop 1")
    for p in range(4):
        A(f"buffer_store_dwordx4 v[{O+4*p}:{O+4*p+3}], v1, s[20:23], s25 offen offset:{1024*p} {sc}")

def conv_kernel(A):
    kernel_begin(A, "conv_kernel")
    A("s_cmp_ge_u32 s2, 160")
    A("s_cbranch_scc1 cv_end")
    stamp_begin(A)
    A("s_load_dwordx2 s[20:21], s[0:1], 112")
    wave_id(A, 3, 0)
    A("s_mov_b32 s22, 0x%x" % WS_BYTES)
    A("s_mov_b32 s23, 0x20000")
    A("s_lshl_b32 s4, s2, 2")
    A("s_add_u32 s4, s4, s3")
    A(f"s_mul_i32 s5, s3, {CW}")
    A("s_waitcnt lgkmcnt(0)")
    conv(A, 4, 5)
    stamp_end(A, 2)
    A.label("cv_end")
    A("s_endpgm")
    kernel_desc(A, "conv_kernel", 168)

PR = 336
PW = 64 * PR
A2 = 4 * PW
A2R = 176
YS = A2 + 64 * A2R
G2_LDS = YS + 10240
def g2_tile(A):
    A("s_and_b32 s6, s2, 7")
    A("s_lshr_b32 s7, s2, 3")
    A("s_lshr_b32 s4, s6, 1")
    A("s_lshl_b32 s4, s4, 3")
    A("s_and_b32 s5, s7, 7")
    A("s_add_u32 s4, s4, s5")
    A("s_and_b32 s5, s6, 1")
    A("s_lshl_b32 s5, s5, 2")
    A("s_lshr_b32 s7, s7, 3")
    A("s_add_u32 s5, s5, s7")

def g2_mfma(A, sW):
    ACC = 8; SB = 88
    A("v_lshlrev_b32 v1, 4, v0")
    A("v_add_u32 v2, 4096, v1")
    A("s_mul_i32 s24, s4, 196608")
    A(f"s_mul_i32 s25, s{sW}, 49152")
    A("s_add_u32 s24, s24, s25")
    if H_OFF: A(f"s_add_u32 s24, s24, {H_OFF}")
    A("s_mul_i32 s25, s5, 245760")
    A(f"s_mul_i32 s26, s{sW}, 61440")
    A("s_add_u32 s25, s25, s26")
    A(f"s_add_u32 s25, s25, {WDF_OFF}")
    def loads(k):
        b = SB + 36*(k % 4); r = []
        for i in range(4):
            r.append(f"buffer_load_dwordx4 v[{b+4*i}:{b+4*i+3}], v1, s[20:23], s24 offen offset:{1024*i}")
            r.append(f"buffer_load_dwordx4 v[{b+16+4*i}:{b+19+4*i}], v1, s[20:23], s25 offen offset:{1024*i}")
        r.append(f"buffer_load_dwordx4 v[{b+32}:{b+35}], v2, s[20:23], s25 offen")
        r.append("s_add_u32 s24, s24, 4096")
        r.append("s_add_u32 s25, s25, 5120")
        return r
    A("s_waitcnt lgkmcnt(0)")
    for k in range(4):
        for x in loads(k): A(x)
    A("v_and_b32 v4, 15, v0")
    A("v_lshrrev_b32 v5, 4, v0")
    A(f"v_mul_u32_u24 v3, {PR}, v4")
    A("v_lshl_add_u32 v3, v5, 4, v3")
    A(f"s_mul_i32 s26, s{sW}, {PW}")
    A("v_add_u32 v3, s26, v3")
    for k in range(12):
        inflight = min(3, 11-k)
        A(f"s_waitcnt vmcnt({9*inflight})")
        if k in (0, 4, 8, 11): stamp(A, 1 + (0,4,8,11).index(k))
        b = SB + 36*(k % 4)
        for dt in range(5):
            for mt in range(4):
                c = ACC + 4*(4*dt+mt)
                src = "0" if k == 0 else f"v[{c}:{c+3}]"
                A(f"v_mfma_f32_16x16x32_bf16 v[{c}:{c+3}], v[{b+16+4*dt}:{b+19+4*dt}], v[{b+4*mt}:{b+4*mt+3}], {src}")
        if k + 4 < 12:
            for x in loads(k+4): A(x)
    A("s_nop 7")
    stamp(A, 5)
    for dt in range(5):
        for mt in range(4):
            c = ACC + 4*(4*dt+mt)
            A(f"ds_write_b128 v3, v[{c}:{c+3}] offset:{16*mt*PR + 64*dt}")
    A("s_waitcnt lgkmcnt(0)")
    A("s_barrier")

def g2_fin(A, sW):
    A("s_load_dwordx2 s[8:9], s[0:1], 0")
    A("s_load_dwordx2 s[12:13], s[0:1], 48")
    A("s_load_dwordx2 s[16:17], s[0:1], 96")
    A("s_mov_b32 s10, 2621440")
    A("s_mov_b32 s11, 0x20000")
    A("s_mov_b32 s18, 2621440")
    A("s_mov_b32 s19, 0x20000")
    A("s_mov_b32 s30, 0xffff0000")
    X = 8; D = 20; G = 32; OFF = 35; PA = 38; YA = 41
    A("s_mul_i32 s24, s4, 81920")
    A("s_mul_i32 s25, s5, 160")
    A("s_add_u32 s24, s24, s25")
    A("s_lshl_b32 s26, s4, 8")
    A(f"s_add_u32 s26, s26, {G_OFF}")
    A("s_waitcnt lgkmcnt(0)")
    A("s_add_u32 s12, s12, s25")
    A("s_addc_u32 s13, s13, 0")
    for i in range(3):
        A(f"s_add_u32 s27, s{sW}, {4*i}")
        A("s_min_u32 s27, s27, 9")
        A("s_lshl_b32 s27, s27, 6")
        A("v_add_u32 v1, s27, v0")
        A("v_mul_u32_u24 v2, 6554, v1")
        A("v_lshrrev_b32 v2, 16, v2")
        A("v_mul_u32_u24 v3, 10, v2")
        A("v_sub_u32 v3, v1, v3")
        A("v_lshlrev_b32 v4, 4, v3")
        A(f"v_mul_u32_u24 v{OFF+i}, 1280, v2")
        A(f"v_add_u32 v{OFF+i}, v{OFF+i}, v4")
        A(f"v_mul_u32_u24 v{PA+i}, {PR}, v2")
        A(f"v_lshl_add_u32 v{PA+i}, v3, 5, v{PA+i}")
        A(f"v_mul_u32_u24 v{YA+i}, {A2R}, v2")
        A(f"v_add_u32 v{YA+i}, v{YA+i}, v4")
        A(f"v_add_u32 v{YA+i}, {A2}, v{YA+i}")
        A("v_lshlrev_b32 v2, 2, v2")
        A(f"buffer_load_dwordx4 v[{X+4*i}:{X+4*i+3}], v{OFF+i}, s[8:11], s24 offen")
        A(f"global_load_dwordx4 v[{D+4*i}:{D+4*i+3}], v4, s[12:13]")
        A(f"buffer_load_dword v{G+i}, v2, s[20:23], s26 offen")
    A("v_lshrrev_b32 v1, 3, v0")
    A("v_lshlrev_b32 v1, 12, v1")
    A("v_and_b32 v2, 7, v0")
    A("v_lshl_add_u32 v1, v2, 4, v1")
    A("s_mul_i32 s27, s5, 327680")
    A("s_lshl_b32 s28, s4, 7")
    A("s_add_u32 s27, s27, s28")
    A(f"s_add_u32 s27, s27, {YT_OFF}")
    for i in range(3):
        A(f"s_add_u32 s{32+i}, s{sW}, {4*i}")
        A(f"s_min_u32 s{32+i}, s{32+i}, 9")
        A(f"s_lshl_b32 s28, s{32+i}, 15")
        A("s_add_u32 s28, s28, s27")
        A(f"s_lshl_b32 s29, s{32+i}, 10")
        A(f"s_add_u32 m0, s29, {YS}")
        A("s_nop 0")
        A("buffer_load_dwordx4 v1, s[20:23], s28 offen lds")
    A("v_bfe_u32 v2, v0, 2, 2")
    A("v_lshlrev_b32 v2, 7, v2")
    A("v_lshrrev_b32 v3, 4, v0")
    A("v_lshl_add_u32 v2, v3, 5, v2")
    A("v_and_b32 v3, 3, v0")
    A("v_lshl_add_u32 v2, v3, 3, v2")
    A(f"v_mul_u32_u24 v3, {A2R}, v0")
    A("s_waitcnt vmcnt(0)")
    for i in range(3):
        A(f"s_lshl_b32 s29, s{32+i}, 10")
        A(f"s_add_u32 s29, s29, {YS}")
        A("v_add_u32 v4, s29, v2")
        A(f"ds_read_b64_tr_b16 v[{44+4*i}:{45+4*i}], v4")
        A(f"ds_read_b64_tr_b16 v[{46+4*i}:{47+4*i}], v4 offset:512")
    for i in range(3):
        A(f"s_lshl_b32 s29, s{32+i}, 4")
        A(f"s_add_u32 s29, s29, {A2}")
        A("v_add_u32 v4, s29, v3")
        A(f"s_waitcnt lgkmcnt({4-2*i+i})")
        A(f"ds_write_b128 v4, v[{44+4*i}:{47+4*i}]")
    UD = 56; T = 80
    for i in range(3):
        for k in range(4):
            A(f"v_lshlrev_b32 v{T}, 16, v{X+4*i+k}")
            A(f"v_and_b32 v{T+1}, s30, v{X+4*i+k}")
            A(f"v_lshlrev_b32 v{T+2}, 16, v{D+4*i+k}")
            A(f"v_and_b32 v{T+3}, s30, v{D+4*i+k}")
            A(f"v_mul_f32 v{T}, v{T}, v{T+2}")
            A(f"v_mul_f32 v{T+1}, v{T+1}, v{T+3}")
            A(f"v_cvt_pk_bf16_f32 v{T}, v{T}, v{T+1}")
            A(f"v_lshlrev_b32 v{UD+8*i+2*k}, 16, v{T}")
            A(f"v_and_b32 v{UD+8*i+2*k+1}, s30, v{T}")
        A(f"v_sub_f32 v{T}, 1.0, v{G+i}")
        A(f"v_cvt_pk_bf16_f32 v{T}, v{T}, v{T}")
        A(f"v_lshlrev_b32 v{X+i}, 16, v{T}")
    A("s_waitcnt lgkmcnt(0)")
    stamp(A, 1)
    A("s_barrier")
    stamp(A, 2)
    done = A.newlabel("fin")
    Pq = 96; Yq = 128
    def rnd(base):
        for k in range(4): A(f"v_cvt_pk_bf16_f32 v{T+k}, v{base+2*k}, v{base+2*k+1}")
        for k in range(4):
            A(f"v_lshlrev_b32 v{base+2*k}, 16, v{T+k}")
            A(f"v_and_b32 v{base+2*k+1}, s30, v{T+k}")
    for i in range(3):
        if i == 2:
            A(f"s_cmp_ge_u32 s{sW}, 2")
            A(f"s_cbranch_scc1 {done}")
        A(f"ds_read_b128 v[{Yq}:{Yq+3}], v{YA+i}")
        for w in range(4):
            A(f"ds_read_b128 v[{Pq+8*w}:{Pq+8*w+3}], v{PA+i} offset:{w*PW}")
            A(f"ds_read_b128 v[{Pq+8*w+4}:{Pq+8*w+7}], v{PA+i} offset:{w*PW+16}")
        A("s_waitcnt lgkmcnt(8)")
        U = UD + 8*i
        for k in range(4):
            A(f"v_lshlrev_b32 v{T}, 16, v{Yq+k}")
            A(f"v_and_b32 v{T+1}, s30, v{Yq+k}")
            A(f"v_add_f32 v{U+2*k}, v{U+2*k}, v{T}")
            A(f"v_add_f32 v{U+2*k+1}, v{U+2*k+1}, v{T+1}")
        rnd(U)
        for k in range(8): A(f"v_mul_f32 v{U+k}, v{U+k}, v{G+i}")
        rnd(U)
        A("s_waitcnt lgkmcnt(0)")
        for k in range(8):
            A(f"v_add_f32 v{Pq+k}, v{Pq+k}, v{Pq+8+k}")
            A(f"v_add_f32 v{Pq+16+k}, v{Pq+16+k}, v{Pq+24+k}")
        for k in range(8): A(f"v_add_f32 v{Pq+k}, v{Pq+k}, v{Pq+16+k}")
        rnd(Pq)
        for k in range(8): A(f"v_mul_f32 v{Pq+k}, v{Pq+k}, v{X+i}")
        rnd(Pq)
        for k in range(8): A(f"v_add_f32 v{Pq+k}, v{Pq+k}, v{U+k}")
        o = 132 + 4*i
        for k in range(4): A(f"v_cvt_pk_bf16_f32 v{o+k}, v{Pq+2*k}, v{Pq+2*k+1}")
        A(f"buffer_store_dwordx4 v[{o}:{o+3}], v{OFF+i}, s[16:19], s24 offen")
    A.label(done)

def gemm2_kernel(A):
    kernel_begin(A, "gemm2_kernel")
    A("s_cmp_ge_u32 s2, 256")
    A("s_cbranch_scc1 g2_end")
    stamp_begin(A)
    A("s_load_dwordx2 s[20:21], s[0:1], 112")
    wave_id(A, 3, 0)
    A("s_mov_b32 s22, 0x%x" % WS_BYTES)
    A("s_mov_b32 s23, 0x20000")
    g2_tile(A)
    A("s_cmp_lt_u32 s3, 4")
    A("s_cbranch_scc1 g2_m")
    A("s_sub_u32 s3, s3, 4")
    g2_fin(A, 3)
    stamp_end(A, 3)
    A("s_endpgm")
    A.label("g2_m")
    g2_mfma(A, 3)
    stamp_end(A, 3)
    A.label("g2_end")
    A("s_endpgm")
    kernel_desc(A, "gemm2_kernel", 232)

def build():
    A = Asm()
    A.raw(f"; @launch kernel=prep_kernel grid=(256,1,1) block=(256,1,1) lds={4*9216}")
    A.raw(f"; @launch kernel=gemm1_kernel grid=(256,1,1) block=(512,1,1) lds={3*STG}")
    A.raw(f"; @launch kernel=conv_kernel grid=(160,1,1) block=(256,1,1) lds={4*CW+256}")
    A.raw(f"; @launch kernel=gemm2_kernel grid=(256,1,1) block=(512,1,1) lds={G2_LDS}")
    A.raw('.amdgcn_target "amdgcn-amd-amdhsa--gfx950"')
    prep_kernel(A); gemm1_kernel(A); conv_kernel(A); gemm2_kernel(A)
    return A.text()

if __name__ == "__main__":
    DIAG = "--diag" in sys.argv
    open(sys.argv[1], "w").write(build())
```

```python
import sys, re, copy
from asmlib import *
import gen1
from gen1 import LOG2E, NLOG2E, LOG2E_LO, LN2, stamp, stamp_begin, stamp_end, cmul
NAME = "gated_mix__ssm_conv_s4d__swiglu_ffn__prompt_kernel"
OPT = dict(pubj=26, thr=28, sleep=1, touch=4, cprio=1, psleep=4)
H_OFF = 0
UR_OFF = 6291456
YT_OFF = UR_OFF + 2621440
GG_OFF = YT_OFF + 2621440
HF_OFF = GG_OFF + 16384
UF_OFF = HF_OFF + 128*256
YF_OFF = UF_OFF + 16*256
LAST_OFF = YF_OFF + 80*256
WS_BYTES = 1 << 25
GB = 16384; UB = GB + 12288 + 32; STG = 41024
FLG = 3*STG; HB = FLG + 64; HS = 13568
LDS_BYTES = HB + 3*HS
RS = 288
C0 = 64; C1 = C0 + 4160; CU = 8448
A2O = 4096; A2S = 1072; OMG = 8704
PR = 336; PW = 64*PR
SPIN = 0x3000

def ws_srd(A):
    A("s_mov_b32 s22, 0x%x" % WS_BYTES); A("s_mov_b32 s23, 0x20000")

def tiles(A):
    A("s_and_b32 s40, s2, 7"); A("s_lshr_b32 s41, s2, 3")
    A("s_lshr_b32 s42, s40, 1"); A("s_and_b32 s43, s40, 1")
    A("s_lshl_b32 s4, s42, 2"); A("s_and_b32 s5, s41, 3"); A("s_add_u32 s4, s4, s5")
    A("s_lshl_b32 s5, s43, 3"); A("s_lshr_b32 s6, s41, 2"); A("s_add_u32 s5, s5, s6")
    A("s_lshl_b32 s6, s42, 3"); A("s_and_b32 s7, s41, 7"); A("s_add_u32 s6, s6, s7")
    A("s_lshl_b32 s7, s43, 2"); A("s_lshr_b32 s44, s41, 3"); A("s_add_u32 s7, s7, s44")

def lds_wait_ge(A, vaddr, vtmp, val, sleep=0):
    l = A.newlabel("lw"); d = A.newlabel("lw")
    A("s_mov_b32 s62, 0")
    A.label(l)
    A(f"ds_read_b32 v{vtmp}, v{vaddr}")
    A("s_addk_i32 s62, 1")
    A("s_waitcnt lgkmcnt(0)")
    A(f"v_cmp_gt_i32 vcc, {val}, v{vtmp}")
    A(f"s_cbranch_vccz {d}")
    if sleep: A(f"s_sleep {sleep}")
    A(f"s_cmpk_lt_u32 s62, 0x7000")
    A(f"s_cbranch_scc1 {l}")
    A.label(d)

def poll(A, vaddr, soff, vdst, n, sTag, tagreg=None):
    l = A.newlabel("pl"); d = A.newlabel("pl")
    tagreg = vdst if tagreg is None else tagreg
    A("s_mov_b32 s62, 0")
    A.label(l)
    A(f"buffer_load_dword{'x2' if n == 2 else ''} {vr(vdst, n)}, v{vaddr}, s[20:23], {soff} offen sc1")
    A("s_addk_i32 s62, 1")
    A("s_waitcnt vmcnt(0)")
    A(f"v_cmp_ne_u32 vcc, s{sTag}, v{tagreg}")
    A(f"s_cbranch_vccz {d}")
    A(f"s_sleep {OPT['psleep']}")
    A(f"s_cmpk_lt_u32 s62, 0x{SPIN:x}")
    A(f"s_cbranch_scc1 {l}")
    A.label(d)

def flag_store(A, soff, sTag, vt):
    A(f"v_mov_b32 v{vt}, s{sTag}")
    A(f"v_mov_b32 v{vt+1}, 0")
    A("s_mov_b64 exec, 1")
    A("s_waitcnt vmcnt(0)")
    A(f"buffer_store_dword v{vt}, v{vt+1}, s[20:23], {soff} offen sc1")
    A("s_mov_b64 exec, -1")

def get_tag(A, vt):
    l = A.newlabel("tg"); d = A.newlabel("tg")
    A(f"v_mov_b32 v{vt}, 0")
    A("s_mov_b32 s62, 0")
    A.label(l)
    A(f"global_load_dword v{vt+1}, v{vt}, s[18:19] sc1")
    A("s_addk_i32 s62, 1")
    A("s_waitcnt vmcnt(0)")
    A(f"v_readfirstlane_b32 s61, v{vt+1}")
    A("s_cmp_lg_u32 s61, 0")
    A(f"s_cbranch_scc1 {d}")
    A(f"s_sleep {OPT['psleep']}")
    A(f"s_cmpk_lt_u32 s62, 0x{SPIN:x}")
    A(f"s_cbranch_scc1 {l}")
    A.label(d)
    A(f"v_mov_b32 v{vt}, {FLG+4}")
    A(f"ds_write_b32 v{vt}, v{vt+1}")

def loader(A):
    J = OPT["pubj"]
    A("s_load_dwordx2 s[8:9], s[0:1], 0")
    A("s_load_dwordx4 s[24:27], s[0:1], 64")
    A("s_load_dwordx2 s[20:21], s[0:1], 80")
    tiles(A)
    A("s_mov_b32 s10, 2621440"); A("s_mov_b32 s11, 0x20000")
    A("s_mov_b32 s14, 1966080"); A("s_mov_b32 s15, 0x20000")
    A("s_mov_b32 s18, 1966080"); A("s_mov_b32 s19, 0x20000")
    A("s_mov_b32 s22, 1966080"); A("s_mov_b32 s23, 0x20000")
    A("v_lshrrev_b32 v8, 3, v0")
    A("v_mul_u32_u24 v8, 1280, v8")
    A("v_lshrrev_b32 v9, 4, v0")
    A("v_and_b32 v10, 7, v0")
    A("v_xor_b32 v9, v9, v10")
    A("v_lshl_add_u32 v2, v9, 4, v8")
    A("v_xor_b32 v9, 4, v9")
    A("v_lshl_add_u32 v3, v9, 4, v8")
    A(f"v_add_u32 v3, {10240-1024}, v3")
    A(f"v_add_u32 v4, {20480-2048}, v2")
    A(f"v_add_u32 v5, {20480-2048}, v3")
    for i in range(3):
        A(f"v_add_u32 v9, {64*i}, v0")
        A("v_mul_u32_u24 v10, 5462, v9")
        A("v_lshrrev_b32 v10, 16, v10")
        A("v_mul_u32_u24 v10, 2880, v10")
        A(f"v_lshl_add_u32 v{11+i}, v0, 4, v10")
    A("s_mul_i32 s36, s4, 163840")
    A("s_mul_i32 s37, s5, 192")
    A("s_mov_b32 s29, 0")
    A(f"v_mov_b32 v14, {FLG}")
    A("v_and_b32 v15, 3, v0")
    A("v_lshlrev_b32 v15, 2, v15")
    A(f"v_add_u32 v15, {FLG+16}, v15")
    A("s_mov_b32 s30, 0")
    A("v_mov_b32 v16, 0")
    A("s_barrier")
    A("s_waitcnt lgkmcnt(0)")
    A("s_mov_b32 s12, s24"); A("s_mov_b32 s13, s25"); A("s_mov_b32 s16, s26"); A("s_mov_b32 s17, s27")
    stamp(A, 1)
    def stage_loop(body, adv, last, first_label=None):
        l1 = A.newlabel("ld"); l3 = A.newlabel("ld"); l4 = A.newlabel("ld"); chk = A.newlabel("ld")
        if first_label: A(f"s_branch {chk}")
        A.label(l1)
        n = [0]
        def dma(x, head=False):
            if head and OPT["thr"]: A(f"s_waitcnt vmcnt({OPT['thr']})")
            A(x); n[0] += 1
            if n[0] == J:
                A(f"s_waitcnt vmcnt({J})")
                A("ds_write_b32 v14, v16")
            if n[0] == 34: A("ds_read_b32 v17, v15")
        body(dma)
        adv()
        A(f"s_add_u32 s29, s29, {STG}")
        A(f"s_cmp_eq_u32 s29, {3*STG}")
        A("s_cselect_b32 s29, 0, s29")
        A("s_add_u32 s30, s30, 1")
        A("v_mov_b32 v16, s30")
        A("s_sub_u32 s35, s30, 2")
        A(f"s_cmp_eq_u32 s30, {last}")
        A(f"s_cbranch_scc1 {l4}")
        A.label(chk)
        A("s_waitcnt lgkmcnt(0)")
        A("v_cmp_gt_i32 vcc, s35, v17")
        A(f"s_cbranch_vccz {l1}")
        for k in (None, 20, 10, 0):
            if k is not None: A(f"s_waitcnt vmcnt({k})")
            if k == 0: A("ds_write_b32 v14, v16")
            else:
                A("ds_read_b32 v17, v15")
                A("s_waitcnt lgkmcnt(0)")
                A("v_cmp_gt_i32 vcc, s35, v17")
                A(f"s_cbranch_vccz {l1}")
        lds_wait_ge(A, 15, 17, "s35", OPT["sleep"])
        A(f"s_branch {l1}")
        A.label(l4)
    def body1(dma):
        for q in range(4):
            A(f"s_add_u32 m0, s29, {4096*q}")
            A(f"s_add_u32 s34, s36, {40960*q}")
            for i in range(4): dma(f"buffer_load_dwordx4 v{2+i}, s[8:11], s34 offen offset:{1024*i} lds", i == 0)
            A(f"s_add_u32 m0, s29, {GB + 3072*q}")
            A(f"s_add_u32 s34, s37, {49152*q}")
            for i in range(3): dma(f"buffer_load_dwordx4 v{11+i}, s[12:15], s34 offen offset:{1024*i} lds", i == 0)
            A(f"s_add_u32 m0, s29, {UB + 3072*q}")
            if not OPT["thr"]: A("s_nop 0")
            for i in range(3): dma(f"buffer_load_dwordx4 v{11+i}, s[16:19], s34 offen offset:{1024*i} lds", i == 0)
    def adv1():
        A("s_add_u32 s36, s36, 128")
        A("s_add_u32 s37, s37, 196608")
        if OPT["touch"]:
            nt = A.newlabel("nt")
            A(f"s_cmp_lg_u32 s30, {OPT['touch']}")
            A(f"s_cbranch_scc1 {nt}")
            A("v_min_u32 v9, 59, v0")
            A("v_lshlrev_b32 v9, 7, v9")
            A("s_mul_i32 s34, s2, 7680")
            A("buffer_load_dword v10, v9, s[20:23], s34 offen")
            A.label(nt)
    stage_loop(body1, adv1, 10)
    stamp(A, 2)
    for i in range(5):
        A(f"v_add_u32 v9, {64*i}, v0")
        A("v_mul_u32_u24 v8, 6554, v9")
        A("v_lshrrev_b32 v8, 16, v8")
        A("v_mul_u32_u24 v8, 1120, v8")
        A(f"v_lshl_add_u32 v{2+i}, v{0 if i < 4 else 9}, 4, v8")
    A("s_mul_i32 s36, s7, 160")
    def body2(dma):
        for w in range(4):
            for hf in range(2):
                A(f"s_add_u32 m0, s29, {10240*w + 5120*hf}")
                A(f"s_add_u32 s34, s36, {(384*w + 32*hf)*1280}")
                for i in range(4): dma(f"buffer_load_dwordx4 v{2+i}, s[20:23], s34 offen offset:{1024*i} lds", i == 0)
                A(f"s_add_u32 m0, s29, {10240*w + 5120*hf + 4096}")
                A("s_nop 0")
                dma("buffer_load_dwordx4 v6, s[20:23], s34 offen lds")
    def adv2(): A(f"s_add_u32 s36, s36, {64*1280}")
    stage_loop(body2, adv2, 16, first_label=True)
    A("s_waitcnt vmcnt(0)")
    A("ds_write_b32 v14, v16")
    stamp(A, 3)

ACC1 = 64
def mwave(A, sW):
    A("v_and_b32 v7, 7, v0")
    A("v_lshlrev_b32 v7, 2, v7")
    A(f"v_add_u32 v7, {FLG}, v7")
    A("v_mov_b32 v8, 0")
    A("ds_write_b32 v7, v8")
    A("s_waitcnt lgkmcnt(0)")
    A("s_barrier")
    A("s_load_dwordx2 s[20:21], s[0:1], 112")
    A("s_load_dwordx2 s[36:37], s[0:1], 0")
    A("s_load_dwordx4 s[48:51], s[0:1], 64")
    A("s_load_dwordx2 s[52:53], s[0:1], 88")
    A("s_load_dwordx2 s[54:55], s[0:1], 104")
    tiles(A)
    ws_srd(A)
    A(f"s_lshr_b32 s8, s{sW}, 1")
    A(f"s_and_b32 s9, s{sW}, 1")
    lw = A.newlabel("mt"); ld = A.newlabel("mt")
    A(f"s_cmp_ge_u32 s{sW}, 2")
    A(f"s_cbranch_scc1 {lw}")
    A("s_lshl_b32 s46, s40, 5"); A("s_add_u32 s46, s46, s41"); A("s_lshl_b32 s46, s46, 1"); A("s_add_u32 s46, s46, s9")
    A("s_mul_i32 s47, s46, 5120")
    A("v_and_b32 v12, 15, v0"); A("v_lshlrev_b32 v12, 4, v12")
    A("v_lshrrev_b32 v11, 4, v0")
    A("v_mul_u32_u24 v13, 1280, v11"); A("v_add_u32 v13, v13, v12"); A("v_add_u32 v13, s47, v13")
    A("s_waitcnt lgkmcnt(0)")
    for i in range(5): A(f"global_load_dwordx4 v[{16+4*i}:{19+4*i}], v13, s[36:37] offset:{256*i}")
    for i in range(5): A(f"global_load_dwordx4 v[{36+4*i}:{39+4*i}], v12, s[52:53] offset:{256*i}")
    A(f"s_branch {ld}")
    A.label(lw)
    A("s_and_b32 s45, s42, 1"); A("s_lshl_b32 s45, s45, 5"); A("s_add_u32 s45, s45, s41")
    A("s_mul_i32 s45, s45, 3072"); A("s_mul_i32 s47, s43, 1536"); A("s_add_u32 s45, s45, s47")
    A("s_mul_i32 s47, s9, %d" % (5*196608)); A("s_add_u32 s45, s45, s47")
    A("v_min_u32 v13, 59, v0")
    A("v_mul_u32_u24 v14, 43, v13"); A("v_lshrrev_b32 v14, 9, v14")
    A("v_mul_u32_u24 v14, %d, v14" % (196608 - 1536))
    A("v_lshl_add_u32 v13, v13, 7, v14")
    A("v_add_u32 v13, s45, v13")
    A("s_waitcnt lgkmcnt(0)")
    A("s_cmp_ge_u32 s42, 2")
    A("s_cselect_b32 s48, s50, s48"); A("s_cselect_b32 s49, s51, s49")
    A("global_load_dword v15, v13, s[48:49]")
    A(f"s_lshl_b32 s45, s2, 2"); A(f"s_add_u32 s45, s45, s{sW}")
    A("s_cmp_lg_u32 s45, 3")
    A(f"s_cbranch_scc1 {ld}")
    A(f"s_add_u32 s56, s20, {LAST_OFF}"); A("s_addc_u32 s57, s21, 0")
    A("s_load_dword s45, s[56:57], 0")
    A("v_mov_b32 v13, 0")
    A("s_waitcnt lgkmcnt(0)")
    A("s_add_u32 s45, s45, 1")
    A("s_max_u32 s45, s45, 1")
    A("v_mov_b32 v14, s45")
    A("s_mov_b64 exec, 1")
    A("global_store_dword v13, v14, s[54:55] sc1")
    A("global_store_dword v13, v14, s[56:57] sc1")
    A("s_mov_b64 exec, -1")
    A.label(ld)
    A("s_mov_b32 s14, 0x%x" % ((-2*STG) & 0xffffffff))
    A(f"s_mov_b32 s15, {STG}")
    A("v_and_b32 v8, 31, v0")
    A("v_lshrrev_b32 v9, 5, v0")
    A("v_bfe_u32 v10, v0, 1, 3")
    A("v_xor_b32 v10, v10, v9")
    A("v_lshlrev_b32 v14, 7, v8")
    A("s_lshl_b32 s10, s8, 13")
    A("v_add_u32 v14, s10, v14")
    for ks in range(4):
        A(f"v_xor_b32 v12, {2*ks}, v10")
        A(f"v_lshl_add_u32 v{2+ks}, v12, 4, v14")
    A("v_bfe_u32 v12, v0, 2, 2")
    A("v_lshl_add_u32 v12, v9, 3, v12")
    A("v_mul_u32_u24 v6, 192, v12")
    A("v_and_b32 v12, 3, v0")
    A("v_lshl_add_u32 v6, v12, 3, v6")
    A("v_bfe_u32 v12, v0, 4, 1")
    A(f"v_mul_u32_u24 v12, {UB-GB}, v12")
    A("v_add_u32 v6, v6, v12")
    A("s_mul_i32 s10, s9, 96")
    A(f"s_add_u32 s10, s10, {GB}")
    A("v_add_u32 v6, s10, v6")
    A(f"v_mov_b32 v7, {FLG}")
    A(f"s_lshl_b32 s10, s{sW}, 2")
    A("v_mov_b32 v8, s10")
    A(f"v_add_u32 v8, {FLG+16}, v8")
    for i in range(96): A(f"v_mov_b32 v{ACC1+i}, 0")
    A("s_mov_b32 s24, 0x%x" % NLOG2E)
    A("s_mov_b32 s25, 0x%x" % NLOG2E)
    ng = A.newlabel("ng")
    A(f"s_cmp_ge_u32 s{sW}, 2")
    A(f"s_cbranch_scc1 {ng}")
    A("v_mov_b32 v10, 0"); A("v_mov_b32 v12, 0")
    A("s_waitcnt vmcnt(0)")
    for k in range(20): A(f"v_dot2c_f32_bf16 v{10 if k % 2 == 0 else 12}, v{16+k}, v{36+k}")
    A("s_nop 2")
    A("v_add_f32 v10, v10, v12")
    for sh in (8, 4, 2, 1):
        A("s_nop 1")
        A(f"v_add_f32_dpp v10, v10, v10 row_ror:{sh} row_mask:0xf bank_mask:0xf")
    A("v_mul_f32 v10, s24, v10")
    A("v_exp_f32 v10, v10")
    A("s_nop 0")
    A("v_add_f32 v10, 1.0, v10")
    A("v_rcp_f32 v10, v10")
    A.label(ng)
    F = [16, 36]
    def reads(ks, f):
        r = []; b = F[f]
        r.append(f"ds_read_b128 v[{b}:{b+3}], v{2+ks}")
        for nt in range(3):
            o = b + 8 + 4*nt
            r.append(f"ds_read_b64_tr_b16 v[{o}:{o+1}], v6 offset:{3072*ks + 32*nt}")
            r.append(f"ds_read_b64_tr_b16 v[{o+2}:{o+3}], v6 offset:{3072*ks + 32*nt + 768}")
        r.append(f"ds_read_b128 v[{b+4}:{b+7}], v{2+ks} offset:4096")
        return r
    def mfmas(f):
        b = F[f]; r = []
        for a in range(2):
            for nt in range(3):
                c = ACC1 + 16*(3*a+nt)
                r.append(f"v_mfma_f32_32x32x16_bf16 v[{c}:{c+15}], v[{b+8+4*nt}:{b+11+4*nt}], v[{b+4*a}:{b+4*a+3}], v[{c}:{c+15}]")
        return r
    A("s_mov_b32 s11, 0")
    A("s_mov_b32 s12, 0")
    stamp(A, 1)
    lds_wait_ge(A, 7, 13, 1)
    stamp(A, 2)
    PL = {0: [(1, 5), (1, 6)], 1: [(1, 7)], 2: [(2, 0)], 3: [(2, 1)], 4: [(2, 2), (2, 3)], 5: [(2, 4)]}
    need = {0: (0, 1, 2), 1: (3, 4), 2: (5, 6), 3: (7,), 4: (), 5: ()}
    lp = A.newlabel("g1"); ex_ = A.newlabel("g1x"); slow = A.newlabel("g1s"); back = A.newlabel("g1b")
    lastpos = 1; firstg = 2
    def step_items(k, last):
        ks = k % 4; it = []; ms = mfmas(k % 2)
        for g in range(6):
            it.append(("m", ms[g], [(k, r) for r in need[g]]))
            if ks == 2 and g == firstg and not last:
                it.append(("w", "flag"))
                it += [("x", "v_cmp_ge_u32 vcc, s11, v13"), ("x", f"s_cbranch_vccnz {slow}"), ("x", f"{back}:")]
            for (so, ri) in PL[g]:
                if last and ks + so > 3: continue
                it.append(("r", reads((k+so) % 4, (k+so) % 2)[ri], (k+so, ri)))
            ex = []
            if ks == 0 and g == 2: ex = ["s_add_u32 s12, s12, 1", "s_cmp_eq_u32 s12, 3", "s_cselect_b32 s13, s14, s15"]
            if ks == 0 and g == 3: ex = ["s_cselect_b32 s12, 0, s12", "v_add_u32 v2, s13, v2"]
            if ks == 0 and g == 5: ex = ["v_add_u32 v3, s13, v3", "s_add_u32 s11, s11, 1"]
            if ks == 1 and g == 2: ex = ["v_mov_b32 v12, s11"]
            if ks == 1 and g == 3: ex = ["v_add_u32 v4, s13, v4"]
            if ks == 1 and g == 5: ex = ["s_cmp_eq_u32 s11, 10"]
            if ks == 3 and g == 3 and not last: ex = ["v_add_u32 v5, s13, v5"]
            for e in ex: it.append(("x", e))
            if ks == 1 and g == 1: it.append(("r", "ds_read_b32 v13, v7", "flag"))
            if ks == 2 and g == lastpos:
                it.append(("l", "ds_write_b32 v8, v12"))
                if not last: it.append(("x", "v_add_u32 v6, s13, v6"))
        return it
    def emit(items, q):
        for i in items:
            tags = i[2] if i[0] == "m" else [i[1]] if i[0] == "w" else []
            if tags:
                pos = max(len(q["ops"]) - 1 - q["ops"][::-1].index(t) for t in tags)
                if pos >= q["done"]:
                    n = min(14, len(q["ops"]) - 1 - pos)
                    q["done"] = len(q["ops"]) - n
                    A(f"s_waitcnt lgkmcnt({n})")
            if i[0] in ("r", "l"): q["ops"].append(i[2] if i[0] == "r" else None)
            if i[0] != "w": A(i[1])
    q = dict(ops=[], done=0)
    emit([("r", reads(0, 0)[r], (0, r)) for r in range(8)] + [("r", reads(1, 1)[ri], (1, ri)) for g in range(6) for (so, ri) in PL[g] if so == 2], q)
    A.label(lp)
    for k in range(2): emit(step_items(k, False), q)
    A(f"s_cbranch_scc1 {ex_}")
    q2 = copy.deepcopy(q)
    for k in range(2, 4): emit(step_items(k, False), q)
    A(f"s_branch {lp}")
    A.label(slow)
    if gen1.DIAG: A("s_add_u32 s88, s88, 1")
    A("s_add_u32 s16, s11, 1")
    lds_wait_ge(A, 7, 13, "s16")
    A(f"s_branch {back}")
    A.label(ex_)
    for k in range(2, 4): emit(step_items(k, True), q2)
    stamp(A, 3)
    A(f"v_mov_b32 v3, {FLG+4}")
    A("v_and_b32 v2, 15, v0")
    A("v_lshlrev_b32 v2, 4, v2")
    A("v_lshl_add_u32 v2, v9, 8, v2")
    A("v_bfe_u32 v4, v0, 4, 1")
    A("v_lshl_add_u32 v2, v4, 10, v2")
    A("s_lshl_b32 s33, s4, 1")
    A("s_add_u32 s33, s33, s8")
    A("s_mul_i32 s26, s33, 196608")
    A("s_mul_i32 s27, s5, 6")
    A("s_mul_i32 s28, s9, 3")
    A("s_add_u32 s27, s27, s28")
    for nt in range(3):
        A(f"s_add_u32 s28, s27, {nt}")
        A("s_lshr_b32 s29, s28, 1"); A("s_lshl_b32 s29, s29, 12")
        A("s_and_b32 s28, s28, 1"); A("s_lshl_b32 s28, s28, 9")
        A("s_add_u32 s29, s29, s28")
        A(f"s_add_u32 s{30+nt}, s29, s26")
    A("v_lshrrev_b32 v5, 5, v0")
    A("v_lshlrev_b32 v5, 4, v5")
    A("v_bfe_u32 v4, v0, 2, 3")
    A("v_add_u32 v5, v5, v4")
    A("v_mul_u32_u24 v5, 160, v5")
    A("v_and_b32 v4, 3, v0")
    A("v_lshl_add_u32 v5, v4, 3, v5")
    A(f"s_mul_i32 s28, s{sW}, 10240")
    A("v_add_u32 v5, s28, v5")
    A(f"v_add_u32 v6, {2*STG}, v5")
    AF = [160+4*i for i in range(20)] + [56, 60, 144, 148, 152, 156, 240, 244, 248, 252]
    def areads(step):
        st = 10 + step // 2; slot = st % 3; r = []
        for dt in range(5):
            o = AF[5*(step % 6) + dt]
            off = (STG if slot == 1 else 0) + 5120*(step % 2) + 32*dt
            va = 6 if slot == 2 else 5
            r.append(f"ds_read_b64_tr_b16 v[{o}:{o+1}], v{va} offset:{off}")
            r.append(f"ds_read_b64_tr_b16 v[{o+2}:{o+3}], v{va} offset:{off + 1280}")
        return r
    def pull(st):
        lds_wait_ge(A, 7, 13, st + 1)
        for x in areads(2*(st-10)) + areads(2*(st-10)+1): A(x)
        A(f"v_mov_b32 v12, {st+1}")
        A("ds_write_b32 v8, v12")
    E = 16
    for a in range(2):
        for nt in range(3):
            g = ACC1 + 16*(3*a+nt); u = g + 8
            o = 32 + 4*((3*a+nt) % 4)
            P = lambda b, i: f"v[{b+2*i}:{b+2*i+1}]"
            for i in range(4): A(f"v_pk_mul_f32 {P(E,i)}, {P(g,i)}, s[24:25]")
            for i in range(8): A(f"v_exp_f32 v{E+i}, v{E+i}")
            for i in range(4): A(f"v_pk_add_f32 {P(E,i)}, {P(E,i)}, 1.0 op_sel_hi:[1,0]")
            for i in range(8): A(f"v_rcp_f32 v{E+i}, v{E+i}")
            for i in range(4): A(f"v_pk_mul_f32 {P(g,i)}, {P(g,i)}, {P(u,i)}")
            for i in range(4): A(f"v_pk_mul_f32 {P(g,i)}, {P(g,i)}, {P(E,i)}")
            for i in range(4): A(f"v_cvt_pk_bf16_f32 v{o+i}, v{g+2*i}, v{g+2*i+1}")
            A(f"buffer_store_dwordx4 v[{o}:{o+3}], v2, s[20:23], s{30+nt} offen offset:{2048*a} sc1")
    stamp(A, 4)
    l = A.newlabel("tw"); d = A.newlabel("tw")
    A("s_mov_b32 s62, 0")
    A.label(l)
    A("ds_read_b32 v13, v3")
    A("s_addk_i32 s62, 1")
    A("s_waitcnt lgkmcnt(0)")
    A("v_readfirstlane_b32 s61, v13")
    A("s_cmp_lg_u32 s61, 0")
    A(f"s_cbranch_scc1 {d}")
    A("s_cmpk_lt_u32 s62, 0x7000")
    A(f"s_cbranch_scc1 {l}")
    A.label(d)
    pull(10)
    A("s_lshl_b32 s26, s33, 2"); A("s_lshr_b32 s27, s5, 2"); A("s_add_u32 s26, s26, s27"); A("s_lshl_b32 s26, s26, 8")
    A("s_and_b32 s27, s5, 3"); A("s_lshl_b32 s27, s27, 1"); A("s_add_u32 s27, s27, s9"); A("s_lshl_b32 s27, s27, 2")
    A("s_add_u32 s26, s26, s27"); A(f"s_add_u32 s26, s26, {HF_OFF}")
    flag_store(A, "s26", 61, 14)
    stamp(A, 5)
    ng = A.newlabel("ng")
    A(f"s_cmp_ge_u32 s{sW}, 2")
    A(f"s_cbranch_scc1 {ng}")
    A("v_lshlrev_b32 v12, 3, v11")
    A("v_mov_b32 v11, s61")
    A("s_lshl_b32 s26, s46, 5"); A(f"s_add_u32 s26, s26, {GG_OFF}")
    A("s_mov_b32 exec_lo, 0x10001"); A("s_mov_b32 exec_hi, 0x10001")
    A("buffer_store_dwordx2 v[10:11], v12, s[20:23], s26 offen sc1")
    A("s_mov_b64 exec, -1")
    A.label(ng)
    pull(11); pull(12)
    stamp(A, 6)
    A("v_lshlrev_b32 v1, 4, v0")
    A("v_and_b32 v2, 7, v0"); A("v_lshlrev_b32 v2, 2, v2")
    A("s_lshl_b32 s26, s6, 2"); A(f"s_add_u32 s26, s26, s{sW}"); A("s_lshl_b32 s26, s26, 8"); A(f"s_add_u32 s26, s26, {HF_OFF}")
    A("s_mul_i32 s34, s6, 196608"); A(f"s_mul_i32 s35, s{sW}, 49152"); A("s_add_u32 s34, s34, s35")
    poll(A, 2, "s26", 3, 1, 61)
    stamp(A, 7)
    ACC = 64; HR = 8
    def hloads(k):
        b = HR + 16*(k % 3)
        return [f"buffer_load_dwordx4 v[{b+4*i}:{b+4*i+3}], v1, s[20:23], s34 offen offset:{1024*i} sc1" for i in range(4)] + ["s_add_u32 s34, s34, 4096"]
    A("v_mov_b32 v4, v7")
    for k in range(3):
        for x in hloads(k): A(x)
    for k in range(12):
        A(f"s_waitcnt vmcnt({4*min(2, 11-k)})" + (" lgkmcnt(0)" if k in (0, 11) else " lgkmcnt(10)" if k >= 6 else ""))
        if k in (0, 6): stamp(A, 8 + k//6)
        b = HR + 16*(k % 3)
        for dt in range(5):
            for mt in range(4):
                c = ACC + 4*(4*dt+mt); af = AF[5*(k % 6) + dt]
                src = "0" if k == 0 else f"v[{c}:{c+3}]"
                A(f"v_mfma_f32_16x16x32_bf16 v[{c}:{c+3}], v[{af}:{af+3}], v[{b+4*mt}:{b+4*mt+3}], {src}")
        if k + 3 < 12:
            for x in hloads(k+3): A(x)
        j = k + 2
        if 6 <= j < 12:
            if j % 2 == 0: lds_wait_ge(A, 4, 3, 10 + j//2 + 1)
            for x in areads(j): A(x)
    stamp(A, 10)
    A("v_and_b32 v4, 15, v0")
    A("v_lshrrev_b32 v5, 4, v0")
    A(f"v_mul_u32_u24 v3, {PR}, v4")
    A("v_lshl_add_u32 v3, v5, 4, v3")
    A(f"s_mul_i32 s26, s{sW}, {PW}")
    A("v_add_u32 v3, s26, v3")
    A("s_barrier")
    for dt in range(5):
        for mt in range(4):
            c = ACC + 4*(4*dt+mt)
            A(f"ds_write_b128 v3, v[{c}:{c+3}] offset:{16*mt*PR + 64*dt}")

def post(A, sW):
    A("s_load_dwordx2 s[16:17], s[0:1], 96")
    A("s_mov_b32 s18, 2621440"); A("s_mov_b32 s19, 0x20000")
    A("s_mov_b32 s30, 0xffff0000")
    A("s_mul_i32 s24, s6, 81920"); A("s_mul_i32 s25, s7, 160"); A("s_add_u32 s24, s24, s25")
    A(f"s_lshl_b32 s27, s{sW}, 6")
    first = True
    lp = A.newlabel("po");
    A("s_mov_b32 s28, 0")
    A.label(lp)
    A("v_add_u32 v8, s27, v0")
    A("v_mul_u32_u24 v9, 6554, v8"); A("v_lshrrev_b32 v9, 16, v9")
    A("v_mul_u32_u24 v10, 10, v9"); A("v_sub_u32 v10, v8, v10")
    A("v_mul_u32_u24 v11, 1280, v9"); A("v_lshl_add_u32 v11, v10, 4, v11")
    A(f"v_mul_u32_u24 v12, {PR}, v9"); A("v_lshl_add_u32 v12, v10, 5, v12")
    A("v_mul_u32_u24 v13, 86, v10"); A("v_lshrrev_b32 v13, 8, v13")
    A(f"v_mul_u32_u24 v14, {HS+16}, v10")
    A(f"v_mul_u32_u24 v13, {3*(HS+16) - A2S}, v13")
    A("v_sub_u32 v14, v14, v13")
    A("v_lshl_add_u32 v14, v9, 4, v14")
    A(f"v_add_u32 v14, {HB + A2O}, v14")
    A("v_lshlrev_b32 v15, 2, v9")
    A(f"v_add_u32 v15, {HB + OMG}, v15")
    nb = A.newlabel("po")
    A("s_cmp_lg_u32 s28, 0")
    A(f"s_cbranch_scc1 {nb}")
    A("s_waitcnt lgkmcnt(0)")
    A("s_barrier")
    stamp(A, 11)
    A.label(nb)
    Pq = 16; Y = 48
    A(f"ds_read_b128 v[{Y}:{Y+3}], v14")
    A("ds_read_b32 v60, v15")
    for w in range(4):
        A(f"ds_read_b128 v[{Pq+8*w}:{Pq+8*w+3}], v12 offset:{w*PW}")
        A(f"ds_read_b128 v[{Pq+8*w+4}:{Pq+8*w+7}], v12 offset:{w*PW+16}")
    A("s_waitcnt lgkmcnt(8)")
    for k in range(4):
        A(f"v_lshlrev_b32 v{52+2*k}, 16, v{Y+k}")
        A(f"v_and_b32 v{53+2*k}, s30, v{Y+k}")
    P = lambda b, i: f"v[{b+2*i}:{b+2*i+1}]"
    A("s_waitcnt lgkmcnt(4)")
    for k in range(4): A(f"v_pk_add_f32 {P(Pq,k)}, {P(Pq,k)}, {P(Pq+8,k)}")
    A("s_waitcnt lgkmcnt(0)")
    for k in range(4): A(f"v_pk_add_f32 {P(Pq+16,k)}, {P(Pq+16,k)}, {P(Pq+24,k)}")
    for k in range(4): A(f"v_pk_add_f32 {P(Pq,k)}, {P(Pq,k)}, {P(Pq+16,k)}")
    for k in range(4): A(f"v_pk_fma_f32 {P(Pq,k)}, {P(Pq,k)}, v[60:61], {P(52,k)} op_sel_hi:[1,0,1]")
    for k in range(4): A(f"v_cvt_pk_bf16_f32 v{64+k}, v{Pq+2*k}, v{Pq+2*k+1}")
    A("buffer_store_dwordx4 v[64:67], v11, s[16:19], s24 offen")
    A("s_add_u32 s27, s27, 512")
    A("s_mov_b32 s28, 1")
    A("s_cmp_lt_u32 s27, 640")
    A(f"s_cbranch_scc1 {lp}")

def kgen(A, sD, sL):
    A("s_load_dwordx8 s[8:15], s[0:1], 8")
    A("s_load_dwordx4 s[24:27], s[0:1], 40")
    A(f"s_mul_i32 s28, s{sD}, 384")
    A("v_lshlrev_b32 v1, 1, v0")
    A("v_add_u32 v1, s28, v1")
    A(f"s_lshl_b32 s28, s{sD}, 1")
    A("v_mov_b32 v2, s28")
    A(f"s_mov_b32 m0, s{sL}")
    A("s_barrier")
    A("s_waitcnt lgkmcnt(0)")
    A("global_load_ushort v3, v2, s[24:25]")
    A("global_load_ushort v19, v2, s[26:27]")
    RAW = 4
    for p in range(3):
        for a in range(4):
            A(f"global_load_ushort v{RAW+4*p+a}, v1, s[{8+2*a}:{9+2*a}] offset:{128*p}")
    A("s_mov_b32 s24, 0x%x" % LOG2E); A("s_mov_b32 s25, 0x%x" % LOG2E_LO); A("s_mov_b32 s26, 0x%x" % LN2)
    A("s_mov_b32 s27, 0x41000000"); A("s_mov_b32 s28, 0x43000000")
    FA = 16
    A("v_and_b32 v17, 15, v0"); A("v_lshrrev_b32 v18, 4, v0")
    A(f"v_mul_u32_u24 v{FA}, {RS}, v17")
    A(f"v_lshl_add_u32 v{FA}, v18, 4, v{FA}")
    A(f"v_add_u32 v{FA}, s{sL}, v{FA}")
    ACC = 20
    for i in range(1, 12): A(f"v_mov_b32 v{ACC+i}, 0")
    DT, DT2, NDT, ONE = 32, 33, 34, 35
    A(f"v_mov_b32 v{ONE}, 0x3f80")
    A("v_cmp_eq_u32 vcc, 0, v0")
    A("s_waitcnt vmcnt(12)")
    A("v_lshlrev_b32 v19, 16, v19")
    A("v_lshlrev_b32 v3, 16, v3")
    A(f"v_cndmask_b32 v{ACC}, 0, v19, vcc")
    A("v_mul_f32 v36, s24, v3")
    A("v_fma_f32 v37, v3, s24, -v36")
    A("v_fmac_f32 v37, s25, v3")
    A("v_exp_f32 v36, v36")
    A("v_mul_f32 v37, s26, v37")
    A("v_fmac_f32 v36, v36, v37")
    A("v_cvt_pk_bf16_f32 v36, v36, v36")
    A(f"v_lshlrev_b32 v{DT}, 16, v36")
    A(f"v_add_f32 v{DT2}, v{DT}, v{DT}")
    A(f"v_sub_f32 v{NDT}, 0, v{DT}")
    A("s_mov_b32 s29, 0")
    A("s_waitcnt vmcnt(0)")
    stamp(A, 1)
    loop = A.newlabel("kg")
    A.label(loop)
    A1, TH = 36, 37
    Z, W, Y = 38, 41, 44
    P = 48; T = 64; QA, QB = 70, 72; PK = 74
    QF, PF = 80, 96
    A(f"v_lshlrev_b32 v{T}, 16, v{RAW}")
    A(f"v_mul_f32 v{T}, s24, v{T}")
    A(f"v_lshlrev_b32 v{TH}, 16, v{RAW+1}")
    A(f"v_exp_f32 v{T}, v{T}")
    A(f"v_lshlrev_b32 v{P}, 16, v{RAW+2}")
    A(f"v_lshlrev_b32 v{P+1}, 16, v{RAW+3}")
    A(f"v_cvt_pk_bf16_f32 v{T}, v{T}, v{T}")
    A(f"v_mul_f32 v{TH}, v{TH}, v{DT}")
    A(f"v_lshlrev_b32 v{T}, 16, v{T}")
    A(f"v_mul_f32 v{TH}, 0.15915494, v{TH}")
    A(f"v_mul_f32 v{A1}, v{T}, v{NDT}")
    A(f"v_mul_f32 v{P}, v{P}, v{DT2}")
    A(f"v_mul_f32 v{A1}, s24, v{A1}")
    A(f"v_mul_f32 v{P+1}, v{P+1}, v{DT2}")
    for i in range(8): A(f"v_mov_b32 v{RAW+i}, v{RAW+4+i}")
    for (R, sc) in ((W, "s27"), (Z, None), (Y, "s28")):
        if sc:
            A(f"v_mul_f32 v{T}, {sc}, v{A1}"); A(f"v_mul_f32 v{T+1}, {sc}, v{TH}")
            A(f"v_exp_f32 v{T}, v{T}"); A(f"v_fract_f32 v{T+1}, v{T+1}")
        else:
            A(f"v_exp_f32 v{T}, v{A1}"); A(f"v_fract_f32 v{T+1}, v{TH}")
        A(f"v_cos_f32 v{R}, v{T+1}"); A(f"v_sin_f32 v{R+1}, v{T+1}")
        A(f"v_mul_f32 v{R}, v{R}, v{T}"); A(f"v_mul_f32 v{R+1}, v{R+1}, v{T}")
        A(f"v_sub_f32 v{R+2}, 0, v{R+1}")
    pkc = [0]
    def emit(row, r, i):
        k = PK + pkc[0] % 4; pkc[0] += 1
        A(f"v_cvt_pk_bf16_f32 v{k}, v{r}, v{i}")
        A(f"ds_write_addtid_b32 v{k} offset:{row*RS}")
    def rd(base):
        for t in range(4): A(f"ds_read_b128 v[{base+4*t}:{base+4*t+3}], v{FA} offset:{64*t}")
    def mm(acc, base):
        A("s_waitcnt lgkmcnt(0)")
        A("s_setprio 2")
        for t in range(4):
            A(f"v_mfma_f32_16x16x32_bf16 v[{acc}:{acc+3}], v[{base+4*t}:{base+4*t+3}], v[{QF+4*t}:{QF+4*t+3}], v[{acc}:{acc+3}]")
        A("s_setprio 0")
    A(f"ds_write_addtid_b32 v{ONE} offset:0")
    emit(1, W, W+2)
    qsrc = (W, W+2)
    for j in range(2, 16):
        dst = QA if j % 2 == 0 else QB
        cmul(A, dst, dst+1, qsrc[0], qsrc[1], W, W+2, W+1)
        qsrc = (dst, dst+1)
        emit(j, dst, dst+1)
    rd(QF)
    emit(0, P, P+1)
    for b in range(1, 8):
        cmul(A, P+2*b, P+2*b+1, P+2*b-2, P+2*b-1, Z, Z+1, Z+2)
        emit(b, P+2*b, P+2*b+1)
    loc = {}
    for b in range(0, 8, 2):
        cmul(A, T, T+1, P+2*b+2, P+2*b+3, Y, Y+1, Y+2)
        cmul(A, P+2*b+2, P+2*b+3, P+2*b, P+2*b+1, Y, Y+1, Y+2)
        emit(8+b+1, T, T+1); emit(8+b, P+2*b+2, P+2*b+3)
        loc[b] = P+2*b+2
    rd(PF)
    def step(b, row):
        s = loc[b]; d = P+2*b if s == P+2*b+2 else P+2*b+2
        cmul(A, d, d+1, s, s+1, Y, Y+1, Y+2)
        loc[b] = d
        return (row, d, d+1)
    for a in range(2):
        es = [step(b, 4*a + b//2) for b in (0, 2, 4, 6)]
        if a == 0: mm(ACC, PF)
        for e in es: emit(*e)
    for a in range(4):
        es = [step(b, 8 + 2*a + b//4) for b in (0, 4)]
        for e in es: emit(*e)
    rd(PF)
    for a in range(9): emit(*step(0, a))
    rd(PF+16)
    A("s_add_u32 s29, s29, 1")
    mm(ACC+4, PF)
    mm(ACC+8, PF+16)
    nt = A.newlabel("kt")
    A("s_cmp_lg_u32 s29, 1")
    A(f"s_cbranch_scc1 {nt}")
    get_tag(A, T)
    A.label(nt)
    A("s_cmp_lt_u32 s29, 3")
    A(f"s_cbranch_scc1 {loop}")
    stamp(A, 2)
    A("v_and_b32 v40, 31, v0"); A("v_lshlrev_b32 v40, 2, v40")
    A(f"s_lshr_b32 s30, s{sD}, 6"); A("s_lshl_b32 s30, s30, 8"); A(f"s_add_u32 s30, s30, {UF_OFF}")
    poll(A, 40, "s30", 41, 1, 61)
    stamp(A, 3)
    A("v_lshlrev_b32 v1, 4, v0")
    A(f"s_lshl_b32 s31, s{sD}, 12")
    A(f"s_add_u32 s30, s31, {UR_OFF}")
    A(f"s_add_u32 m0, s{sL}, {CU}")
    A("s_nop 0")
    for i in range(4): A(f"buffer_load_dwordx4 v1, s[20:23], s30 offen offset:{1024*i} sc1 lds")
    EB = C0
    A("v_lshlrev_b32 v40, 4, v17")
    A(f"v_add_u32 v40, s{sL}, v40")
    A("v_lshl_add_u32 v41, v18, 10, v40")
    A(f"v_add_u32 v41, {EB + 2048 - 8}, v41")
    A("v_and_b32 v42, 1, v0"); A("v_lshlrev_b32 v42, 3, v42"); A("v_sub_u32 v42, v41, v42")
    A("v_lshl_add_u32 v43, v18, 9, v40")
    A("v_lshl_add_u32 v44, v18, 8, v40")
    A("v_lshrrev_b32 v45, 1, v18"); A("v_lshl_add_u32 v45, v45, 8, v40")
    A("v_and_b32 v46, 1, v18"); A("v_lshl_add_u32 v45, v46, 3, v45")
    A("v_mov_b32 v66, 0"); A("v_mov_b32 v67, 0")
    A("v_and_b32 v46, 7, v0"); A("v_lshlrev_b32 v46, 2, v46"); A(f"v_add_u32 v46, s{sL}, v46")
    A("v_lshlrev_b32 v47, 3, v0"); A(f"v_add_u32 v47, s{sL}, v47")
    K0, K1, K2 = ACC, ACC+4, ACC+8
    for r in range(4):
        A(f"v_cvt_pk_bf16_f32 v{48+2*r}, v{K2+r}, v{K2+r}")
        A(f"v_cvt_pk_bf16_f32 v{49+2*r}, v{K2+r}, v{K2+r}")
    for r in range(4):
        A(f"ds_write2_b64 v41, v[{48+2*r}:{49+2*r}], v[{48+2*r}:{49+2*r}] offset0:{32*r} offset1:{32*r+1}")
    for r in range(4): A(f"ds_write_b16 v42, v{48+2*r} offset:{256*r+16}")
    c = {}
    for n, (x, y) in enumerate([(0,0),(0,1),(1,1),(2,2),(2,3),(3,3),(1,2)]):
        c[(x,y)] = 56+n
        A(f"v_cvt_pk_bf16_f32 v{56+n}, v{K1+x}, v{K1+y}")
    A(f"v_cvt_pk_bf16_f32 v64, v{K0}, v{K0+1}")
    A(f"v_cvt_pk_bf16_f32 v65, v{K0+2}, v{K0+3}")
    A("s_mov_b32 exec_lo, 0")
    o = (EB - 4) // 4
    A(f"ds_write2_b32 v43, v{c[0,0]}, v{c[0,0]} offset0:{o} offset1:{o+1}")
    A(f"ds_write2_b32 v43, v{c[0,1]}, v{c[1,1]} offset0:{o+2} offset1:{o+3}")
    A(f"ds_write2_b32 v43, v{c[2,2]}, v{c[2,2]} offset0:{o+64} offset1:{o+65}")
    A(f"ds_write2_b32 v43, v{c[2,3]}, v{c[3,3]} offset0:{o+66} offset1:{o+67}")
    A("s_mov_b32 exec_lo, -1"); A("s_mov_b32 exec_hi, 0")
    o = EB + 512
    A(f"ds_write_b16 v44, v{c[0,0]} offset:{o-2}")
    A(f"ds_write2_b32 v44, v{c[0,0]}, v{c[1,2]} offset0:{o//4} offset1:{o//4+1}")
    A(f"ds_write_b32 v44, v{c[2,2]} offset:{o+8}")
    A(f"ds_write_b16 v44, v{c[3,3]} offset:{o+12}")
    A("s_mov_b64 exec, -1")
    A(f"ds_write_b64 v45, v[64:65] offset:{EB}")
    A(f"ds_write_b32 v46, v66 offset:{C0-32}")
    A(f"ds_write_b32 v46, v66 offset:{C1-32}")
    A(f"ds_write_b64 v47, v[66:67] offset:{CU+4096}")
    A(f"v_add_u32 v41, s{sL}, v1")
    for i in range(4):
        A(f"ds_read_b128 v[{80+8*i}:{83+8*i}], v41 offset:{EB+1024*i}")
        A(f"ds_read_b32 v{72+i}, v41 offset:{EB+1024*i-4}")
    A("s_waitcnt lgkmcnt(0)")
    for i in range(4):
        b = 80+8*i
        A(f"v_alignbit_b32 v{b+4}, v{b}, v{72+i}, 16")
        for k in range(1, 4): A(f"v_alignbit_b32 v{b+4+k}, v{b+k}, v{b+k-1}, 16")
        A(f"ds_write_b128 v41, v[{b+4}:{b+7}] offset:{C1+1024*i}")

def conv(A, sD, sL):
    A("v_lshlrev_b32 v2, 4, v18"); A("v_lshlrev_b32 v6, 5, v17"); A("v_sub_u32 v2, v2, v6")
    A(f"v_add_u32 v2, {CU + 4064 - 3584}, v2"); A(f"v_add_u32 v2, s{sL}, v2")
    A("v_sub_u32 v6, 15, v17"); A("v_and_b32 v7, 1, v6"); A("v_sub_u32 v6, v6, v7")
    A(f"v_mul_u32_u24 v3, {C1-C0}, v7"); A("v_lshl_add_u32 v3, v18, 4, v3")
    A("v_lshlrev_b32 v6, 1, v6"); A("v_sub_u32 v3, v3, v6")
    A(f"v_add_u32 v3, {C0}, v3"); A(f"v_add_u32 v3, s{sL}, v3")
    for i in range(1, 4): A(f"v_add_u32 v{3+i}, {1024*i}, v3")
    A("v_lshlrev_b32 v7, 5, v17"); A("v_lshrrev_b32 v8, 1, v18"); A("v_lshl_add_u32 v7, v8, 4, v7")
    A("v_and_b32 v8, 1, v18"); A("v_lshl_add_u32 v7, v8, 9, v7")
    Y = 8
    for i in range(32): A(f"v_mov_b32 v{Y+i}, 0")
    A("s_waitcnt vmcnt(0)")
    stamp(A, 4)
    TB = [40, 104]
    def reads(f, extra):
        b = TB[f]; r = []
        for q in range(8):
            r.append(f"ds_read_b128 v[{b+32+4*q}:{b+35+4*q}], v2 offset:{512*(7-q) + extra}")
            o = (512*(q & 1) + extra) // 4
            r.append(f"ds_read2_b32 v[{b+4*q}:{b+4*q+1}], v{3+q//2} offset0:{o} offset1:{o+1}")
            r.append(f"ds_read2_b32 v[{b+4*q+2}:{b+4*q+3}], v{3+q//2} offset0:{o+2} offset1:{o+3}")
        return r
    def mfmas(f):
        b = TB[f]; r = []
        for q in range(8):
            for tau in range(8-q):
                t = q + tau
                r.append(f"v_mfma_f32_16x16x32_bf16 v[{Y+4*t}:{Y+4*t+3}], v[{b+4*q}:{b+4*q+3}], v[{b+32+4*tau}:{b+35+4*tau}], v[{Y+4*t}:{Y+4*t+3}]")
        return r
    def inter(ms, rs):
        for i, m in enumerate(ms):
            A(m)
            if i < len(rs): A(rs[i])
    if OPT["cprio"]: A(f"s_setprio {OPT['cprio']}")
    for x in reads(0, 0): A(x)
    A("s_mov_b32 s28, 0")
    lp = A.newlabel("cv")
    A.label(lp)
    A("s_waitcnt lgkmcnt(0)")
    inter(mfmas(0), reads(1, 64))
    A("s_add_u32 s28, s28, 1")
    A("s_waitcnt lgkmcnt(0)")
    inter(mfmas(1), reads(0, 128))
    for r in range(2, 7): A(f"v_add_u32 v{r}, 128, v{r}")
    A("s_cmp_lt_u32 s28, 4")
    A(f"s_cbranch_scc1 {lp}")
    stamp(A, 5)
    A(f"s_add_u32 s30, s31, {YT_OFF}")
    A(f"s_lshr_b32 s28, s{sD}, 3"); A("s_lshl_b32 s28, s28, 8")
    A(f"s_and_b32 s29, s{sD}, 7"); A("s_lshl_b32 s29, s29, 2")
    A("s_add_u32 s28, s28, s29"); A(f"s_add_u32 s28, s28, {YF_OFF}")
    A("s_waitcnt lgkmcnt(0)")
    O = 40
    for t in range(8):
        A(f"v_cvt_pk_bf16_f32 v{O+2*t}, v{Y+4*t}, v{Y+4*t+1}")
        A(f"v_cvt_pk_bf16_f32 v{O+2*t+1}, v{Y+4*t+2}, v{Y+4*t+3}")
    A("s_nop 1")
    for p in range(4):
        A(f"v_permlane16_swap_b32 v{O+4*p}, v{O+4*p+2}")
        A(f"v_permlane16_swap_b32 v{O+4*p+1}, v{O+4*p+3}")
    A("s_nop 1")
    for p in range(4):
        A(f"buffer_store_dwordx4 v[{O+4*p}:{O+4*p+3}], v7, s[20:23], s30 offen offset:{1024*p} sc1")
    A("s_setprio 0")
    flag_store(A, "s28", 61, 2)
    stamp(A, 6)

def misc(A, sM, sL):
    A("s_load_dwordx2 s[8:9], s[0:1], 0")
    A("s_mov_b32 s10, 2621440"); A("s_mov_b32 s11, 0x20000")
    A("v_lshrrev_b32 v1, 3, v0"); A("v_and_b32 v2, 7, v0")
    A("v_mul_u32_u24 v3, 1280, v1")
    for i in range(8):
        A(f"v_xor_b32 v4, {i}, v2")
        A(f"v_lshl_add_u32 v{72+i}, v4, 4, v3")
        if i % 4: A(f"v_add_u32 v{72+i}, {(10240-1024)*(i % 4)}, v{72+i}")
    A("v_xor_b32 v5, v1, v2"); A("v_lshlrev_b32 v5, 4, v5"); A("v_lshl_add_u32 v5, v2, 10, v5")
    A(f"v_add_u32 v5, s{sL}, v5")
    A("v_lshlrev_b32 v6, 15, v1"); A("v_lshlrev_b32 v7, 4, v2"); A("v_sub_u32 v6, v6, v7"); A("v_add_u32 v6, 4080, v6")
    A("s_mov_b32 s28, 0x05040100"); A("s_mov_b32 s29, 0x07060302")
    A(f"s_mov_b32 s33, s{sM}")
    A("s_barrier")
    A("s_waitcnt lgkmcnt(0)")
    def issue(sT):
        A(f"s_and_b32 s24, s{sT}, 31"); A(f"s_lshr_b32 s25, s{sT}, 5")
        A("s_mul_i32 s26, s24, 81920"); A("s_lshl_b32 s27, s25, 7"); A("s_add_u32 s26, s26, s27")
        for h in range(2):
            A(f"s_add_u32 m0, s{sL}, {4096*h}")
            A(f"s_add_u32 s27, s26, {40960*h}")
            for i in range(4): A(f"buffer_load_dwordx4 v{72+4*h+i}, s[8:11], s27 offen offset:{1024*i} lds")
    get_tag(A, 8)
    stamp(A, 1)
    issue(33)
    lp2 = A.newlabel("ur"); nn = A.newlabel("ur")
    A("s_waitcnt vmcnt(0)")
    A.label(lp2)
    A("s_lshl_b32 s30, s25, 18"); A("s_lshl_b32 s27, s24, 7"); A("s_sub_u32 s30, s30, s27"); A(f"s_add_u32 s30, s30, {UR_OFF}")
    A("s_lshl_b32 s31, s25, 8"); A("s_lshl_b32 s27, s24, 2"); A("s_add_u32 s31, s31, s27"); A(f"s_add_u32 s31, s31, {UF_OFF}")
    for e in range(8): A(f"ds_read_b128 v[{8+4*e}:{11+4*e}], v5 offset:{128*e}")
    A("s_waitcnt lgkmcnt(0)")
    for i in range(8):
        o = 40 + 4*i
        for p in range(4):
            lo = 8 + 4*(7-2*p) + i//2; hi = 8 + 4*(6-2*p) + i//2
            A(f"v_perm_b32 v{o+p}, v{hi}, v{lo}, s{28 + (i&1)}")
        A(f"buffer_store_dwordx4 v[{o}:{o+3}], v6, s[20:23], s30 offen sc1")
        A("s_add_u32 s30, s30, 4096")
    A("s_add_u32 s33, s33, 128")
    A("s_cmp_ge_u32 s33, 320")
    A(f"s_cbranch_scc1 {nn}")
    issue(33)
    flag_store(A, "s31", 61, 80)
    A(f"s_branch {lp2}")
    A.label(nn)
    flag_store(A, "s31", 61, 80)
    stamp(A, 2)

def finpre(A, sH, sL):
    tiles(A)
    A("v_lshlrev_b32 v1, 3, v0")
    A("s_lshl_b32 s26, s6, 9"); A(f"s_add_u32 s26, s26, {GG_OFF}")
    poll(A, 1, "s26", 4, 2, 61, tagreg=5)
    A("v_bfe_u32 v2, v0, 3, 2"); A("v_mul_u32_u24 v2, 3, v2"); A(f"v_add_u32 v2, s{sH}, v2"); A("v_min_u32 v2, 9, v2")
    A("v_lshlrev_b32 v2, 8, v2"); A("v_and_b32 v3, 7, v0"); A("v_lshl_add_u32 v2, v3, 2, v2")
    A("s_mul_i32 s26, s7, 2560"); A(f"s_add_u32 s26, s26, {YF_OFF}")
    A("v_lshrrev_b32 v1, 3, v0"); A("v_lshlrev_b32 v1, 12, v1"); A("v_lshl_add_u32 v1, v3, 4, v1")
    A("s_mul_i32 s27, s7, 327680"); A("s_lshl_b32 s28, s6, 7"); A("s_add_u32 s27, s27, s28"); A(f"s_add_u32 s27, s27, {YT_OFF}")
    poll(A, 2, "s26", 6, 1, 61)
    stamp(A, 7)
    for i in range(4):
        A(f"s_add_u32 s28, s{sH}, {3*i}"); A("s_min_u32 s28, s28, 9"); A("s_lshl_b32 s28, s28, 15"); A("s_add_u32 s28, s28, s27")
        A(f"s_add_u32 m0, s{sL}, {1024*i}")
        A("s_nop 0")
        A("buffer_load_dwordx4 v1, s[20:23], s28 offen sc1 lds")
    A("v_bfe_u32 v2, v0, 2, 2"); A("v_lshlrev_b32 v2, 7, v2")
    A("v_lshrrev_b32 v3, 4, v0"); A("v_lshl_add_u32 v2, v3, 5, v2")
    A("v_and_b32 v3, 3, v0"); A("v_lshl_add_u32 v2, v3, 3, v2"); A(f"v_add_u32 v2, s{sL}, v2")
    A(f"s_lshl_b32 s28, s{sH}, 4"); A(f"s_add_u32 s28, s28, s{sL}")
    A("v_lshlrev_b32 v3, 4, v0"); A("v_add_u32 v3, s28, v3")
    A("v_sub_f32 v6, 1.0, v4")
    A("v_lshlrev_b32 v7, 2, v0"); A(f"v_add_u32 v7, s{sL}, v7")
    A(f"ds_write_b32 v7, v6 offset:{OMG}")
    A("s_mov_b32 s30, 0xffff0000")
    A("s_waitcnt vmcnt(0)")
    for i in range(4):
        A(f"ds_read_b64_tr_b16 v[{8+4*i}:{9+4*i}], v2 offset:{1024*i}")
        A(f"ds_read_b64_tr_b16 v[{10+4*i}:{11+4*i}], v2 offset:{1024*i+512}")
    A("s_waitcnt lgkmcnt(0)")
    for i in range(4):
        for k in range(4):
            r = 8+4*i+k
            A(f"v_lshlrev_b32 v24, 16, v{r}"); A(f"v_and_b32 v25, s30, v{r}")
            A("v_mul_f32 v24, v24, v4"); A("v_mul_f32 v25, v25, v4")
            A(f"v_cvt_pk_bf16_f32 v{r}, v24, v25")
        A(f"ds_write_b128 v3, v[{8+4*i}:{11+4*i}] offset:{A2O + A2S*i}")
    stamp(A, 8)

def build():
    A = Asm()
    A.raw(f"; @launch grid=(256,1,1) block=(512,1,1) lds={LDS_BYTES}")
    A.raw('.amdgcn_target "amdgcn-amd-amdhsa--gfx950"')
    kernel_begin(A, NAME)
    A("s_cmp_ge_u32 s2, 256")
    A("s_cbranch_scc1 k_end")
    stamp_begin(A)
    A("v_lshrrev_b32 v1, 6, v0"); A("v_and_b32 v0, 63, v0"); A("v_readfirstlane_b32 s3, v1")
    A("s_nop 3")
    A("s_cmp_lt_u32 s3, 4"); A("s_cbranch_scc1 k_m")
    A("s_cmp_gt_u32 s3, 4"); A("s_cbranch_scc1 k_h")
    loader(A)
    A("s_barrier")
    A("s_branch k_post")
    A.label("k_h")
    A("s_load_dwordx4 s[16:19], s[0:1], 96")
    A("s_load_dwordx2 s[20:21], s[0:1], 112")
    ws_srd(A)
    A("s_sub_u32 s58, s3, 5")
    A(f"s_mul_i32 s59, s58, {HS}"); A(f"s_add_u32 s59, s59, {HB}")
    A("s_and_b32 s4, s2, 1"); A("s_mul_i32 s4, s4, 3"); A("s_add_u32 s4, s4, s58")
    A("s_lshr_b32 s60, s2, 1")
    A("s_cmp_eq_u32 s4, 5"); A("s_cbranch_scc1 k_misc")
    A("s_mul_i32 s60, s60, 5"); A("s_add_u32 s60, s60, s4")
    kgen(A, 60, 59)
    conv(A, 60, 59)
    A("s_branch k_fin")
    A.label("k_misc")
    misc(A, 60, 59)
    A.label("k_fin")
    finpre(A, 58, 59)
    A("s_barrier")
    A("s_branch k_post")
    A.label("k_m")
    mwave(A, 3)
    A.label("k_post")
    post(A, 3)
    stamp_end(A, 0)
    A.label("k_end")
    A("s_endpgm")
    kernel_desc(A, NAME, 256)
    return re.sub(r"^    (\w+:)$", r"\1", A.text(), flags=re.M)

if __name__ == "__main__":
    gen1.DIAG = "--diag" in sys.argv
    for a in sys.argv[2:]:
        if "=" in a:
            k, v = a.split("="); OPT[k] = int(v)
    open(sys.argv[1], "w").write(build())
```

```python
import sys, re, copy
from asmlib import *
import gen1
from gen1 import LOG2E, NLOG2E, LOG2E_LO, LN2, stamp, stamp_begin, stamp_end
NAME = "gated_mix__ssm_conv_s4d__swiglu_ffn__prompt_kernel"
OPT = dict(thr=0, thr2=0, cprio=1, psleep=3, sleep=1, barg=0, wb10=80, ysleep=8, ldelay=4, pullpos=6, wdt=1)
H_OFF = 0
UR_OFF = 6291456
YT_OFF = UR_OFF + 2621440
GG_OFF = YT_OFF + 2621440
HF_OFF = GG_OFF + 16384
UF_OFF = HF_OFF + 128*256
YF_OFF = UF_OFF + 16*256
WF_OFF = YF_OFF + 8*80*256
KF_OFF = WF_OFF + 16*256
KP_OFF = KF_OFF + 128*128
LAST_OFF = KP_OFF + 128*3072
WDF_OFF = 12 << 20
WS_BYTES = 1 << 25
GB = 16384; UB = GB + 12288 + 32; STG = 41024
FLG = 3*STG
HB = FLG + 128; HS = 13536
LDS_BYTES = HB + 3*HS
RS = 272; SS = 16*RS
C0 = 64; C1 = C0 + 4160; CU = 8448
A2O = 4096; A2S = 1072; OMG = 8704
PR = 336; PW = 64*PR
SPIN = 0x3000
U, LOGA, LOGDT, DSK, WG, WU, WD, GW, OUT, DBG = 32, 34, 42, 44, 48, 50, 52, 54, 56, 58
XCD, RR, R4, C2, LCH, REG = 96, 97, 98, 99, 100, 101
CH, TAG, RMT = 60, 61, 47
def P2(b): return f"v[{b}:{b+1}]"

def lds_wait(A, vaddr, vtmp, cond, off=0, sleep=0):
    l = A.newlabel("lw"); d = A.newlabel("lw")
    A("s_mov_b32 s62, 0")
    A.label(l)
    A(f"ds_read_b32 v{vtmp}, v{vaddr} offset:{off}")
    A("s_addk_i32 s62, 1")
    A("s_waitcnt lgkmcnt(0)")
    A(f"{cond}, v{vtmp}")
    A(f"s_cbranch_vccz {d}")
    if sleep: A(f"s_sleep {sleep}")
    A("s_cmpk_lt_u32 s62, 0x7000")
    A(f"s_cbranch_scc1 {l}")
    A.label(d)

def poll(A, vaddr, soff, vdst, n=1, tagreg=None):
    l = A.newlabel("pl"); d = A.newlabel("pl")
    tagreg = vdst if tagreg is None else tagreg
    A("s_mov_b32 s62, 0")
    A.label(l)
    A(f"buffer_load_dword{'x2' if n == 2 else ''} {vr(vdst, n)}, v{vaddr}, s[20:23], {soff} offen sc1")
    A("s_addk_i32 s62, 1")
    A("s_waitcnt vmcnt(0)")
    A(f"v_cmp_ne_u32 vcc, s{TAG}, v{tagreg}")
    A(f"s_cbranch_vccz {d}")
    A(f"s_sleep {OPT['psleep']}")
    A(f"s_cmpk_lt_u32 s62, 0x{SPIN:x}")
    A(f"s_cbranch_scc1 {l}")
    A.label(d)

def flag_store(A, soff, vt, rep=1, stride=0):
    A(f"v_mov_b32 v{vt}, s{TAG}")
    A(f"v_mul_u32_u24 v{vt+1}, {stride}, v0")
    A(f"s_mov_b64 exec, {(1 << rep) - 1}")
    A("s_waitcnt vmcnt(0)")
    A(f"buffer_store_dword v{vt}, v{vt+1}, s[20:23], {soff} offen sc1")
    A("s_mov_b64 exec, -1")

def tag_get(A, vt):
    l = A.newlabel("tg"); d = A.newlabel("tg")
    A(f"s_load_dword s{TAG}, s[{DBG}:{DBG+1}], 0")
    A("s_mov_b32 s62, 0")
    A("s_waitcnt lgkmcnt(0)")
    A.label(l)
    A(f"s_cmp_lg_u32 s{TAG}, 0"); A(f"s_cbranch_scc1 {d}")
    A(f"v_mov_b32 v{vt}, 0")
    A(f"global_load_dword v{vt}, v{vt}, s[{DBG}:{DBG+1}] sc1")
    A("s_addk_i32 s62, 1")
    A("s_waitcnt vmcnt(0)")
    A(f"v_readfirstlane_b32 s{TAG}, v{vt}")
    A(f"s_sleep {OPT['psleep']}")
    A(f"s_cmpk_lt_u32 s62, 0x{SPIN:x}"); A(f"s_cbranch_scc1 {l}")
    A.label(d)

def spoll(A, soff, n, sleep):
    l = A.newlabel("sp"); d = A.newlabel("sp")
    A("s_mov_b32 s62, 0")
    A.label(l)
    A(f"s_load_dword{'x8 s[36:43]' if n == 8 else ' s36'}, s[20:21], {soff} glc")
    A("s_addk_i32 s62, 1")
    A("s_waitcnt lgkmcnt(0)")
    if n == 8:
        A("s_min_u32 s44, s36, s37"); A("s_max_u32 s45, s36, s37")
        for i in range(2, 8):
            A(f"s_min_u32 s44, s44, s{36+i}"); A(f"s_max_u32 s45, s45, s{36+i}")
        A(f"s_xor_b32 s44, s44, s{TAG}"); A(f"s_xor_b32 s45, s45, s{TAG}"); A("s_or_b32 s44, s44, s45")
    else:
        A(f"s_cmp_lg_u32 s36, s{TAG}")
    A(f"s_cbranch_scc0 {d}")
    A(f"s_sleep {sleep}")
    A(f"s_cmpk_lt_u32 s62, 0x{SPIN:x}"); A(f"s_cbranch_scc1 {l}")
    A.label(d)

def loader(A):
    A("v_lshrrev_b32 v8, 3, v0"); A("v_mul_u32_u24 v8, 1280, v8")
    A("v_lshrrev_b32 v9, 4, v0"); A("v_and_b32 v10, 7, v0"); A("v_xor_b32 v9, v9, v10")
    A("v_lshl_add_u32 v2, v9, 4, v8")
    A("v_xor_b32 v9, 4, v9"); A("v_lshl_add_u32 v3, v9, 4, v8")
    A(f"v_add_u32 v3, {10240-1024}, v3"); A(f"v_add_u32 v4, {20480-2048}, v2"); A(f"v_add_u32 v5, {20480-2048}, v3")
    for i in range(3):
        A(f"v_add_u32 v9, {64*i}, v0"); A("v_mul_u32_u24 v10, 5462, v9"); A("v_lshrrev_b32 v10, 16, v10")
        A("v_mul_u32_u24 v10, 2880, v10"); A(f"v_lshl_add_u32 v{11+i}, v0, 4, v10")
    A("v_lshlrev_b32 v1, 4, v0")
    A("v_mov_b32 v14, 0x7ffffff0")
    A("v_and_b32 v15, 3, v0"); A("v_lshlrev_b32 v15, 2, v15"); A(f"v_add_u32 v15, {FLG+64}, v15")
    A("s_mul_i32 s26, s4, 163840"); A("s_mul_i32 s27, s5, 192")
    A("s_mov_b32 s29, 0"); A("s_mov_b32 s30, 0"); A(f"s_mov_b32 s31, {FLG}")
    A("s_mov_b32 s10, 2621440"); A("s_mov_b32 s11, 0x20000")
    A("s_mov_b32 s14, 1966080"); A("s_mov_b32 s15, 0x20000")
    A("s_mov_b32 s18, 1966080"); A("s_mov_b32 s19, 0x20000")
    A("s_waitcnt lgkmcnt(0)")
    A("s_barrier")
    nt0 = A.newlabel("mk")
    A("s_cmp_lg_u32 s2, 0"); A(f"s_cbranch_scc1 {nt0}")
    A(f"s_add_u32 s12, s20, {LAST_OFF}"); A("s_addc_u32 s13, s21, 0")
    A("s_load_dword s28, s[12:13], 0")
    A("v_mov_b32 v16, 0")
    A("s_waitcnt lgkmcnt(0)")
    A("s_add_u32 s28, s28, 1"); A("s_max_u32 s28, s28, 1")
    A("v_mov_b32 v17, s28")
    A("s_mov_b64 exec, 1")
    A(f"global_store_dword v16, v17, s[{DBG}:{DBG+1}] sc1")
    A("global_store_dword v16, v17, s[12:13] sc1")
    A("s_mov_b64 exec, -1")
    A.label(nt0)
    A(f"s_mov_b32 s8, s{U}"); A(f"s_mov_b32 s9, s{U+1}")
    A(f"s_mov_b32 s12, s{WG}"); A(f"s_mov_b32 s13, s{WG+1}"); A(f"s_mov_b32 s16, s{WU}"); A(f"s_mov_b32 s17, s{WU+1}")
    if OPT["ldelay"]: A(f"s_sleep {OPT['ldelay']}")
    stamp(A, 1)
    def thr():
        if OPT["thr"]: A(f"s_waitcnt vmcnt({OPT['thr']})")
    def tail():
        A("s_mov_b32 m0, s31")
        A("s_mov_b64 exec, 1")
        A("buffer_load_dword v14, s[8:11], 0 offen lds")
        A("s_mov_b64 exec, -1")
        A("s_add_u32 s31, s31, 4")
        A(f"s_add_u32 s29, s29, {STG}"); A(f"s_cmp_eq_u32 s29, {3*STG}"); A("s_cselect_b32 s29, 0, s29")
        A("s_add_u32 s30, s30, 1")
    l1 = A.newlabel("ld"); nt = A.newlabel("ld")
    A.label(l1)
    for q in range(4):
        A(f"s_add_u32 m0, s29, {4096*q}"); A(f"s_add_u32 s28, s26, {40960*q}"); thr()
        for i in range(4): A(f"buffer_load_dwordx4 v{2+i}, s[8:11], s28 offen offset:{1024*i} lds")
        A(f"s_add_u32 m0, s29, {GB + 3072*q}"); A(f"s_add_u32 s28, s27, {49152*q}"); thr()
        for i in range(3): A(f"buffer_load_dwordx4 v{11+i}, s[12:15], s28 offen offset:{1024*i} lds")
        A(f"s_add_u32 m0, s29, {UB + 3072*q}"); A("s_nop 0")
        for i in range(3): A(f"buffer_load_dwordx4 v{11+i}, s[16:19], s28 offen offset:{1024*i} lds")
    tail()
    A("s_add_u32 s26, s26, 128"); A("s_add_u32 s27, s27, 196608")
    A("s_cmp_lt_u32 s30, 3"); A(f"s_cbranch_scc1 {l1}")
    A("s_barrier")
    if gen1.DIAG:
        for k in range(3, 10):
            sk = A.newlabel("sk")
            A(f"s_cmp_lg_u32 s30, {k}"); A(f"s_cbranch_scc1 {sk}"); stamp(A, 4 + k - 3); A.label(sk)
    A("s_cmp_lt_u32 s30, 10"); A(f"s_cbranch_scc1 {l1}")
    stamp(A, 2)
    A("s_barrier"); A("s_barrier")
    A("s_mul_i32 s26, s7, 245760"); A(f"s_add_u32 s26, s26, {WDF_OFF}")
    l2 = A.newlabel("ld"); l4 = A.newlabel("ld")
    A.label(l2)
    for w in range(4):
        for (o, n) in ((0, 4), (4096, 4), (8192, 2)):
            A(f"s_add_u32 m0, s29, {10240*w + o}"); A(f"s_add_u32 s28, s26, {61440*w + o}")
            if OPT["thr2"]: A(f"s_waitcnt vmcnt({OPT['thr2']})")
            for i in range(n): A(f"buffer_load_dwordx4 v1, s[20:23], s28 offen offset:{1024*i} sc1 lds")
        if (10*w + 10) % 40 == OPT["wb10"] % 40 and w < 3:
            sk = A.newlabel("sk")
            A(f"s_cmp_lg_u32 s30, {10 + OPT['wb10']//40}"); A(f"s_cbranch_scc1 {sk}"); A("s_barrier"); A.label(sk)
    tail()
    if OPT["wb10"] % 40 == 0:
        sk = A.newlabel("sk")
        A(f"s_cmp_lg_u32 s30, {10 + OPT['wb10']//40}"); A(f"s_cbranch_scc1 {sk}"); A("s_barrier"); A.label(sk)
    A("s_add_u32 s26, s26, 10240")
    A("s_cmp_lt_u32 s30, 13"); A(f"s_cbranch_scc1 {l2}")
    A("s_cmp_eq_u32 s30, 16"); A(f"s_cbranch_scc1 {l4}")
    A("s_sub_u32 s28, s30, 12")
    lds_wait(A, 15, 17, "v_cmp_gt_i32 vcc, s28", sleep=OPT["sleep"])
    A(f"s_branch {l2}")
    A.label(l4)
    stamp(A, 3)

ACC1 = 64
def mpre(A):
    lw = A.newlabel("mt")
    A("s_and_b32 s9, s3, 1")
    A("s_cmp_ge_u32 s3, 2"); A(f"s_cbranch_scc1 {lw}")
    A(f"s_lshl_b32 s15, s{XCD}, 5"); A(f"s_add_u32 s15, s15, s{RR}"); A("s_lshl_b32 s15, s15, 1"); A("s_add_u32 s15, s15, s9")
    A("s_mul_i32 s10, s15, 5120")
    A("v_lshlrev_b32 v200, 4, v17")
    A("v_mul_u32_u24 v201, 1280, v18"); A("v_add3_u32 v201, v201, v200, s10")
    for i in range(5): A(f"global_load_dwordx4 v[{160+4*i}:{163+4*i}], v201, s[{U}:{U+1}] offset:{256*i}")
    for i in range(5): A(f"global_load_dwordx4 v[{180+4*i}:{183+4*i}], v200, s[{GW}:{GW+1}] offset:{256*i}")
    A("s_branch k_mpre_ret")
    A.label(lw)
    A(f"s_and_b32 s10, s{R4}, 1"); A("s_lshl_b32 s10, s10, 5"); A(f"s_add_u32 s10, s10, s{RR}")
    A("s_mul_i32 s10, s10, 3072"); A(f"s_mul_i32 s11, s{C2}, 1536"); A("s_add_u32 s10, s10, s11")
    A("s_mul_i32 s11, s9, %d" % (5*196608)); A("s_add_u32 s10, s10, s11")
    A("v_min_u32 v201, 59, v0")
    A("v_mul_u32_u24 v202, 43, v201"); A("v_lshrrev_b32 v202, 9, v202")
    A("v_mul_u32_u24 v202, %d, v202" % (196608 - 1536))
    A("v_lshl_add_u32 v201, v201, 7, v202"); A("v_add_u32 v201, s10, v201")
    A(f"s_cmp_ge_u32 s{R4}, 2")
    A(f"s_cselect_b32 s10, s{WU}, s{WG}"); A(f"s_cselect_b32 s11, s{WU+1}, s{WG+1}")
    A("global_load_dword v204, v201, s[10:11]")
    A("s_min_u32 s10, s2, 239"); A("s_mul_i32 s11, s10, 2731"); A("s_lshr_b32 s11, s11, 16")
    A("s_mul_i32 s12, s11, 24"); A("s_sub_u32 s10, s10, s12")
    A("s_mul_i32 s10, s10, 81920"); A("s_lshl_b32 s11, s11, 7"); A("s_add_u32 s10, s10, s11")
    A("s_mul_i32 s11, s9, 40960"); A("s_add_u32 s10, s10, s11")
    A("v_lshrrev_b32 v201, 1, v0"); A("v_mul_u32_u24 v201, %d, v201" % (1280 if OPT["wdt"] else 0)); A("v_add_u32 v201, s10, v201")
    A(f"global_load_dword v205, v201, s[{WD}:{WD+1}]")
    A("s_branch k_mpre_ret")

def kgive(A):
    A("v_add_u32 v2, s19, v1")
    A("s_nop 4")
    for i in range(3): A(f"ds_write_b128 v2, v[{20+4*i}:{23+4*i}] offset:{1024*i}")
    A(f"s_lshl_b32 s30, s{LCH}, 2"); A(f"s_add_u32 s30, s30, {FLG+80}")
    A("v_mov_b32 v3, s30"); A("v_mov_b32 v4, 1")
    A("s_mov_b64 exec, 1"); A("ds_add_u32 v3, v4"); A("s_mov_b64 exec, -1")

def mwave(A):
    sW = 3
    A("s_lshr_b32 s8, s3, 1")
    A("v_mov_b32 v11, v18")
    A("s_mov_b32 s16, 0x%x" % ((-2*STG) & 0xffffffff)); A(f"s_mov_b32 s17, {STG}")
    A("v_and_b32 v8, 31, v0"); A("v_lshrrev_b32 v9, 5, v0")
    A("v_bfe_u32 v10, v0, 1, 3"); A("v_xor_b32 v10, v10, v9")
    A("v_lshlrev_b32 v14, 7, v8"); A("s_lshl_b32 s10, s8, 13"); A("v_add_u32 v14, s10, v14")
    for ks in range(4):
        A(f"v_xor_b32 v12, {2*ks}, v10"); A(f"v_lshl_add_u32 v{2+ks}, v12, 4, v14")
    A("v_bfe_u32 v12, v0, 2, 2"); A("v_lshl_add_u32 v12, v9, 3, v12"); A("v_mul_u32_u24 v6, 192, v12")
    A("v_and_b32 v12, 3, v0"); A("v_lshl_add_u32 v6, v12, 3, v6")
    A("v_bfe_u32 v12, v0, 4, 1"); A(f"v_mul_u32_u24 v12, {UB-GB}, v12"); A("v_add_u32 v6, v6, v12")
    A("s_mul_i32 s10, s9, 96"); A(f"s_add_u32 s10, s10, {GB}"); A("v_add_u32 v6, s10, v6")
    A(f"v_mov_b32 v7, {FLG}")
    A("s_lshl_b32 s10, s3, 2"); A(f"s_add_u32 s10, s10, {FLG+64}"); A("v_mov_b32 v8, s10")
    for i in range(48): A(f"v_pk_mov_b32 {P2(ACC1+2*i)}, 0, 0")
    A("s_mov_b32 s24, 0x%x" % NLOG2E); A("s_mov_b32 s25, 0x%x" % NLOG2E)
    ng = A.newlabel("ng")
    A("s_cmp_ge_u32 s3, 2"); A(f"s_cbranch_scc1 {ng}")
    A("v_mov_b32 v10, 0"); A("v_mov_b32 v12, 0")
    A("s_waitcnt vmcnt(0)")
    for k in range(20): A(f"v_dot2c_f32_bf16 v{10 if k % 2 == 0 else 12}, v{160+k}, v{180+k}")
    A("s_nop 2")
    A("v_add_f32 v10, v10, v12")
    for sh in (8, 4, 2, 1):
        A("s_nop 1"); A(f"v_add_f32_dpp v10, v10, v10 row_ror:{sh} row_mask:0xf bank_mask:0xf")
    A.label(ng)
    F = [16, 36]
    def reads(ks, f):
        r = []; b = F[f]
        r.append(f"ds_read_b128 v[{b}:{b+3}], v{2+ks}")
        for nt in range(3):
            o = b + 8 + 4*nt
            r.append(f"ds_read_b64_tr_b16 v[{o}:{o+1}], v6 offset:{3072*ks + 32*nt}")
            r.append(f"ds_read_b64_tr_b16 v[{o+2}:{o+3}], v6 offset:{3072*ks + 32*nt + 768}")
        r.append(f"ds_read_b128 v[{b+4}:{b+7}], v{2+ks} offset:4096")
        return r
    def mfmas(f):
        b = F[f]; r = []
        for a in range(2):
            for nt in range(3):
                c = ACC1 + 16*(3*a+nt)
                r.append(f"v_mfma_f32_32x32x16_bf16 v[{c}:{c+15}], v[{b+8+4*nt}:{b+11+4*nt}], v[{b+4*a}:{b+4*a+3}], v[{c}:{c+15}]")
        return r
    A("s_mov_b32 s11, 0"); A("s_mov_b32 s12, 0")
    stamp(A, 12)
    lds_wait(A, 7, 13, "v_cmp_ne_u32 vcc, 0")
    stamp(A, 2)
    PL = {0: [(1, 5), (1, 6)], 1: [(1, 7)], 2: [(2, 0)], 3: [(2, 1)], 4: [(2, 2), (2, 3)], 5: [(2, 4)]}
    need = {0: (0, 1, 2), 1: (3, 4), 2: (5, 6), 3: (7,), 4: (), 5: ()}
    lp = A.newlabel("g1"); ex_ = A.newlabel("g1x"); slow = A.newlabel("g1s"); back = A.newlabel("g1b")
    def step_items(k, last):
        ks = k % 4; it = []; ms = mfmas(k % 2)
        for g in range(6):
            it.append(("m", ms[g], [(k, r) for r in need[g]]))
            if ks == 2 and g == 2 and not last:
                it.append(("w", "flag"))
                it += [("x", "v_cmp_ne_u32 vcc, 0, v13"), ("x", f"s_cbranch_vccnz {slow}"), ("x", f"{back}:")]
            if ks == 3 and g == OPT["barg"]:
                it.append(("w", (k, 7))); it.append(("x", "s_barrier"))
            for (so, ri) in PL[g]:
                if last and ks + so > 3: continue
                it.append(("r", reads((k+so) % 4, (k+so) % 2)[ri], (k+so, ri)))
            ex = []
            if ks == 0 and g == 2: ex = ["s_add_u32 s12, s12, 1", "s_cmp_eq_u32 s12, 3", "s_cselect_b32 s13, s16, s17"]
            if ks == 0 and g == 3: ex = ["s_cselect_b32 s12, 0, s12", "v_add_u32 v2, s13, v2"]
            if ks == 0 and g == 5: ex = ["v_add_u32 v3, s13, v3", "v_add_u32 v7, 4, v7"]
            if ks == 1 and g == 2: ex = ["s_add_u32 s11, s11, 1"]
            if ks == 1 and g == 3: ex = ["v_add_u32 v4, s13, v4"]
            if ks == 1 and g == 5: ex = ["s_cmp_eq_u32 s11, 10"]
            if ks == 3 and g == 3 and not last: ex = ["v_add_u32 v5, s13, v5"]
            if ks == 2 and g == 1 and not last: ex = ["v_add_u32 v6, s13, v6"]
            for e in ex: it.append(("x", e))
            if ks == 1 and g == 3: it.append(("r", "ds_read_b32 v13, v7", "flag"))
        return it
    def emit(items, q):
        for i in items:
            tags = i[2] if i[0] == "m" else [i[1]] if i[0] == "w" else []
            if tags:
                pos = max(len(q["ops"]) - 1 - q["ops"][::-1].index(t) for t in tags)
                if pos >= q["done"]:
                    n = min(14, len(q["ops"]) - 1 - pos)
                    q["done"] = len(q["ops"]) - n
                    A(f"s_waitcnt lgkmcnt({n})")
            if i[0] in ("r", "l"): q["ops"].append(i[2] if i[0] == "r" else None)
            if i[0] != "w": A(i[1])
    q = dict(ops=[], done=0)
    emit([("r", reads(0, 0)[r], (0, r)) for r in range(8)] + [("r", reads(1, 1)[ri], (1, ri)) for g in range(6) for (so, ri) in PL[g] if so == 2], q)
    A.label(lp)
    for k in range(2): emit(step_items(k, False), q)
    A(f"s_cbranch_scc1 {ex_}")
    q2 = copy.deepcopy(q)
    for k in range(2, 4): emit(step_items(k, False), q)
    A(f"s_branch {lp}")
    A.label(slow)
    lds_wait(A, 7, 13, "v_cmp_ne_u32 vcc, 0")
    A(f"s_branch {back}")
    A.label(ex_)
    for k in range(2, 4): emit(step_items(k, True), q2)
    stamp(A, 3)
    A("v_and_b32 v2, 15, v0"); A("v_lshlrev_b32 v2, 4, v2"); A("v_lshl_add_u32 v2, v9, 8, v2")
    A("v_bfe_u32 v4, v0, 4, 1"); A("v_lshl_add_u32 v2, v4, 10, v2")
    A("s_lshl_b32 s18, s4, 1"); A("s_add_u32 s18, s18, s8")
    A("s_mul_i32 s26, s18, 196608"); A("s_mul_i32 s27, s5, 6"); A("s_mul_i32 s28, s9, 3"); A("s_add_u32 s27, s27, s28")
    for nt in range(3):
        A(f"s_add_u32 s28, s27, {nt}")
        A("s_lshr_b32 s29, s28, 1"); A("s_lshl_b32 s29, s29, 12")
        A("s_and_b32 s28, s28, 1"); A("s_lshl_b32 s28, s28, 9"); A("s_add_u32 s29, s29, s28")
        A(f"s_add_u32 s{11+nt}, s29, s26")
    A("s_mul_i32 s28, s3, 10240"); A("v_add_u32 v5, s28, v1"); A(f"v_add_u32 v6, {2*STG}, v5")
    AF = [160+4*i for i in range(20)] + [56, 60, 144, 148, 152, 156, 240, 244, 248, 252]
    def areads(step):
        st = 10 + step // 2; slot = st % 3; r = []
        for dt in range(5):
            o = AF[5*(step % 6) + dt]
            off = (STG if slot == 1 else 0) + 5120*(step % 2) + 1024*dt
            va = 6 if slot == 2 else 5
            r.append(f"ds_read_b128 v[{o}:{o+3}], v{va} offset:{off}")
        return r
    def pull(st):
        lds_wait(A, 7, 13, "v_cmp_ne_u32 vcc, 0", off=4*(st-10))
        for x in areads(2*(st-10)) + areads(2*(st-10)+1): A(x)
        A(f"v_mov_b32 v12, {st-9}")
        A("ds_write_b32 v8, v12")
    E = 16
    for a in range(2):
        for nt in range(3):
            g = ACC1 + 16*(3*a+nt); u = g + 8
            o = 32 + 4*((3*a+nt) % 4)
            if 3*a+nt == OPT["pullpos"]: pull(10)
            if True:
                for i in range(4): A(f"v_pk_mul_f32 {P2(E+2*i)}, {P2(g+2*i)}, s[24:25]")
                for i in range(8): A(f"v_exp_f32 v{E+i}, v{E+i}")
                for i in range(4): A(f"v_pk_add_f32 {P2(E+2*i)}, {P2(E+2*i)}, 1.0 op_sel_hi:[1,0]")
                for i in range(8): A(f"v_rcp_f32 v{E+i}, v{E+i}")
                for i in range(4): A(f"v_pk_mul_f32 {P2(g+2*i)}, {P2(g+2*i)}, {P2(u+2*i)}")
                for i in range(4): A(f"v_pk_mul_f32 {P2(g+2*i)}, {P2(g+2*i)}, {P2(E+2*i)}")
            else:
                for i in range(8): A(f"v_mul_f32 v{E+i}, s24, v{g+i}")
                for i in range(8): A(f"v_exp_f32 v{E+i}, v{E+i}")
                for i in range(8): A(f"v_add_f32 v{E+i}, 1.0, v{E+i}")
                for i in range(8): A(f"v_rcp_f32 v{E+i}, v{E+i}")
                for i in range(8): A(f"v_mul_f32 v{g+i}, v{g+i}, v{u+i}")
                for i in range(8): A(f"v_mul_f32 v{g+i}, v{g+i}, v{E+i}")
            for i in range(4): A(f"v_cvt_pk_bf16_f32 v{o+i}, v{g+2*i}, v{g+2*i+1}")
            A(f"buffer_store_dwordx4 v[{o}:{o+3}], v2, s[20:23], s{11+nt} offen offset:{2048*a} sc1")
            if 3*a+nt == 5: A("s_barrier")
    stamp(A, 4)
    if OPT["pullpos"] == 6: pull(10)
    tag_get(A, 14)
    A("s_lshl_b32 s26, s18, 2"); A("s_lshr_b32 s27, s5, 2"); A("s_add_u32 s26, s26, s27"); A("s_lshl_b32 s26, s26, 8")
    A("s_and_b32 s27, s5, 3"); A("s_lshl_b32 s27, s27, 1"); A("s_add_u32 s27, s27, s9"); A("s_lshl_b32 s27, s27, 2")
    A("s_add_u32 s26, s26, s27"); A(f"s_add_u32 s26, s26, {HF_OFF}")
    flag_store(A, "s26", 14)
    stamp(A, 5)
    ng = A.newlabel("ng")
    A("s_cmp_ge_u32 s3, 2"); A(f"s_cbranch_scc1 {ng}")
    A("v_mul_f32 v10, s24, v10"); A("v_exp_f32 v10, v10")
    A("v_lshlrev_b32 v12, 3, v11")
    A("v_add_f32 v10, 1.0, v10"); A("v_rcp_f32 v10, v10")
    A(f"v_mov_b32 v11, s{TAG}")
    A("s_lshl_b32 s26, s15, 5"); A(f"s_add_u32 s26, s26, {GG_OFF}")
    A("s_mov_b32 exec_lo, 0x10001"); A("s_mov_b32 exec_hi, 0x10001")
    A("buffer_store_dwordx2 v[10:11], v12, s[20:23], s26 offen sc1")
    A("s_mov_b64 exec, -1")
    A.label(ng)
    pull(11); pull(12)
    stamp(A, 6)
    A("s_lshl_b32 s26, s6, 2"); A("s_add_u32 s26, s26, s3"); A("s_lshl_b32 s26, s26, 8"); A(f"s_add_u32 s26, s26, {HF_OFF}")
    A("s_mul_i32 s27, s6, 196608"); A("s_mul_i32 s28, s3, 49152"); A("s_add_u32 s27, s27, s28")
    spoll(A, "s26", 8, OPT["psleep"])
    stamp(A, 7)
    ACC = 64; HR = 8
    def hloads(k):
        b = HR + 16*(k % 3)
        return [f"buffer_load_dwordx4 v[{b+4*i}:{b+4*i+3}], v1, s[20:23], s27 offen offset:{1024*i} sc1" for i in range(4)] + ["s_add_u32 s27, s27, 4096"]
    for k in range(3):
        for x in hloads(k): A(x)
    for k in range(12):
        A(f"s_waitcnt vmcnt({4*min(2, 11-k)})" + (" lgkmcnt(0)" if k in (0, 11) else " lgkmcnt(5)" if k >= 6 else ""))
        if k in (0, 6): stamp(A, 8 + k//6)
        b = HR + 16*(k % 3)
        for dt in range(5):
            for mt in range(4):
                c = ACC + 4*(4*dt+mt); af = AF[5*(k % 6) + dt]
                src = "0" if k == 0 else f"v[{c}:{c+3}]"
                A(f"v_mfma_f32_16x16x32_bf16 v[{c}:{c+3}], v[{af}:{af+3}], v[{b+4*mt}:{b+4*mt+3}], {src}")
        if k + 3 < 12:
            for x in hloads(k+3): A(x)
        j = k + 2
        if 6 <= j < 12:
            if j % 2 == 0: lds_wait(A, 7, 3, "v_cmp_ne_u32 vcc, 0", off=4*(j//2))
            for x in areads(j): A(x)
    stamp(A, 10)
    A("v_and_b32 v4, 15, v0"); A("v_lshrrev_b32 v5, 4, v0")
    A(f"v_mul_u32_u24 v3, {PR}, v4"); A("v_lshl_add_u32 v3, v5, 4, v3")
    A("s_mul_i32 s26, s3, 10240"); A("v_add_u32 v3, s26, v3")
    J = STG - 30*PR
    A("v_cmp_lt_u32 vcc, 13, v4"); A(f"v_mov_b32 v5, {J}"); A(f"v_add_u32 v2, {32*PR + J}, v3")
    A("v_cndmask_b32 v6, 0, v5, vcc"); A("v_cmp_lt_u32 vcc, 11, v4"); A("v_add_u32 v6, v6, v3"); A("s_nop 0")
    A("v_cndmask_b32 v7, 0, v5, vcc"); A("v_add_u32 v7, v7, v2")
    for dt in range(5):
        for mt in range(4):
            c = ACC + 4*(4*dt+mt)
            A(f"ds_write_b128 v{(3,6,2,7)[mt]}, v[{c}:{c+3}] offset:{16*(mt&1)*PR + 64*dt}")

def post(A):
    A(f"s_mov_b32 s16, s{OUT}"); A(f"s_mov_b32 s17, s{OUT+1}")
    A("s_mov_b32 s18, 2621440"); A("s_mov_b32 s19, 0x20000")
    A("s_mov_b32 s30, 0xffff0000")
    A("s_mul_i32 s24, s6, 81920"); A("s_mul_i32 s25, s7, 160"); A("s_add_u32 s24, s24, s25")
    A("s_lshl_b32 s27, s3, 6")
    lp = A.newlabel("po")
    A("s_mov_b32 s28, 0")
    A.label(lp)
    A("v_add_u32 v8, s27, v0")
    A("v_mul_u32_u24 v9, 6554, v8"); A("v_lshrrev_b32 v9, 16, v9")
    A("v_mul_u32_u24 v10, 10, v9"); A("v_sub_u32 v10, v8, v10")
    A("v_mul_u32_u24 v11, 1280, v9"); A("v_lshl_add_u32 v11, v10, 4, v11")
    A(f"v_mul_u32_u24 v12, {PR}, v9"); A("v_lshl_add_u32 v12, v10, 5, v12")
    A("v_mul_u32_u24 v13, 137, v9"); A("v_lshrrev_b32 v13, 12, v13"); A(f"v_mul_u32_u24 v13, {STG - 30*PR}, v13"); A("v_add_u32 v12, v12, v13")
    A("v_mul_u32_u24 v13, 86, v10"); A("v_lshrrev_b32 v13, 8, v13")
    A(f"v_mul_u32_u24 v14, {HS+48}, v10")
    A(f"v_mul_u32_u24 v13, {3*(HS+48) - A2S}, v13")
    A("v_sub_u32 v14, v14, v13"); A("v_lshl_add_u32 v14, v9, 4, v14"); A(f"v_add_u32 v14, {HB + A2O}, v14")
    A("v_lshlrev_b32 v15, 2, v9"); A(f"v_add_u32 v15, {HB + OMG}, v15")
    nb = A.newlabel("po")
    A("s_cmp_lg_u32 s28, 0"); A(f"s_cbranch_scc1 {nb}")
    A("s_waitcnt lgkmcnt(0)")
    A("s_barrier")
    stamp(A, 11)
    A.label(nb)
    Pq = 16; Y = 48
    A(f"ds_read_b128 v[{Y}:{Y+3}], v14")
    A("ds_read_b32 v60, v15")
    for w in range(4):
        A(f"ds_read_b128 v[{Pq+8*w}:{Pq+8*w+3}], v12 offset:{w*10240}")
        A(f"ds_read_b128 v[{Pq+8*w+4}:{Pq+8*w+7}], v12 offset:{w*10240+16}")
    A("s_waitcnt lgkmcnt(8)")
    for k in range(4):
        A(f"v_lshlrev_b32 v{52+2*k}, 16, v{Y+k}"); A(f"v_and_b32 v{53+2*k}, s30, v{Y+k}")
    A("s_waitcnt lgkmcnt(4)")
    for k in range(4): A(f"v_pk_add_f32 {P2(Pq+2*k)}, {P2(Pq+2*k)}, {P2(Pq+8+2*k)}")
    A("s_waitcnt lgkmcnt(0)")
    for k in range(4): A(f"v_pk_add_f32 {P2(Pq+16+2*k)}, {P2(Pq+16+2*k)}, {P2(Pq+24+2*k)}")
    for k in range(4): A(f"v_pk_add_f32 {P2(Pq+2*k)}, {P2(Pq+2*k)}, {P2(Pq+16+2*k)}")
    for k in range(4): A(f"v_pk_fma_f32 {P2(Pq+2*k)}, {P2(Pq+2*k)}, v[60:61], {P2(52+2*k)} op_sel_hi:[1,0,1]")
    for k in range(4): A(f"v_cvt_pk_bf16_f32 v{64+k}, v{Pq+2*k}, v{Pq+2*k+1}")
    A("buffer_store_dwordx4 v[64:67], v11, s[16:19], s24 offen")
    A("s_add_u32 s27, s27, 512"); A("s_mov_b32 s28, 1")
    A("s_cmp_lt_u32 s27, 640"); A(f"s_cbranch_scc1 {lp}")

def pcmul(A, d, s, m):
    A(f"v_pk_mul_f32 {P2(d)}, {P2(s)}, {P2(m)} op_sel:[0,0] op_sel_hi:[1,0]")
    A(f"v_pk_fma_f32 {P2(d)}, {P2(s)}, {P2(m)}, {P2(d)} op_sel:[1,1,0] op_sel_hi:[0,1,1] neg_lo:[0,1,0]")

def kpass(A):
    RAW = 4; FA = 16; ACC = 20
    A(f"s_mul_i32 s28, s{CH}, 384"); A("s_lshl_b32 s29, s17, 7"); A("s_add_u32 s28, s28, s29")
    A("v_lshlrev_b32 v1, 1, v0"); A("v_add_u32 v1, s28, v1")
    A(f"s_lshr_b32 s28, s{CH}, 1"); A("s_lshl_b32 s28, s28, 2")
    A("s_mov_b32 m0, s19")
    A("v_and_b32 v17, 15, v0"); A("v_lshrrev_b32 v18, 4, v0")
    A("s_waitcnt lgkmcnt(0)")
    for a in range(4): A(f"global_load_ushort v{RAW+a}, v1, s[{LOGA+2*a}:{LOGA+2*a+1}]")
    A(f"s_load_dword s30, s[{LOGDT}:{LOGDT+1}], s28")
    A(f"s_load_dword s31, s[{DSK}:{DSK+1}], s28")
    A("s_cmp_lt_u32 s14, 2"); A("s_cbranch_scc1 k_one")
    for a in range(4): A(f"global_load_ushort v{RAW+4+a}, v1, s[{LOGA+2*a}:{LOGA+2*a+1}] offset:128")
    A.label("k_one")
    A("s_barrier")
    A("s_cmp_lt_u32 s3, 4"); A("s_cbranch_scc1 k_mpre")
    A.label("k_mpre_ret")
    A("s_mov_b32 s24, 0x%x" % LOG2E); A("s_mov_b32 s25, 0x%x" % LOG2E_LO); A("s_mov_b32 s26, 0x%x" % LN2)
    A("s_mov_b32 s27, 0x41000000"); A("s_mov_b32 s28, 0x43000000")
    A(f"v_mul_u32_u24 v{FA}, {RS}, v17"); A(f"v_lshl_add_u32 v{FA}, v18, 4, v{FA}"); A(f"v_add_u32 v{FA}, s19, v{FA}")
    for i in range(6): A(f"v_pk_mov_b32 {P2(ACC+2*i)}, 0, 0")
    DT, DT2, NDT, ONE = 32, 34, 33, 36
    A(f"v_mov_b32 v{ONE}, 0x3f80")
    A("v_lshlrev_b32 v1, 4, v0")
    A("s_waitcnt lgkmcnt(0)")
    A(f"s_bitcmp1_b32 s{CH}, 0")
    A("s_cselect_b32 s29, 0, 16")
    A("s_lshl_b32 s30, s30, s29"); A("s_and_b32 s30, s30, 0xffff0000")
    A("s_lshl_b32 s31, s31, s29"); A("s_and_b32 s31, s31, 0xffff0000")
    A("s_cmp_eq_u32 s17, 0"); A("s_cselect_b32 s31, s31, 0")
    A("s_cmp_lt_u32 s3, 4")
    A("v_mov_b32 v3, s30")
    A(f"v_writelane_b32 v{ACC}, s31, 0")
    A("v_mul_f32 v38, s24, v3"); A("v_fma_f32 v39, v3, s24, -v38"); A("v_fmac_f32 v39, s25, v3")
    A("v_exp_f32 v38, v38"); A("v_mul_f32 v39, s26, v39"); A("v_fmac_f32 v38, v38, v39")
    A("v_cvt_pk_bf16_f32 v38, v38, v38")
    A(f"v_lshlrev_b32 v{DT}, 16, v38")
    A(f"v_add_f32 v{DT2}, v{DT}, v{DT}"); A(f"v_sub_f32 v{NDT}, 0, v{DT}")
    A("s_cbranch_scc1 k_w10")
    A("s_waitcnt vmcnt(0)")
    A.label("k_w10")
    A("s_waitcnt vmcnt(10)")
    A("s_cmp_lt_u32 s3, 2"); A("s_cbranch_scc1 k_w1")
    A("s_waitcnt vmcnt(2)")
    A.label("k_w1")
    stamp(A, 1)
    A.label("k_loop")
    A1 = 38; TH = 39
    Z, W, Y = 40, 42, 44
    P = 48; T = 64; QA, QB = 70, 72; PK = 74
    QF, PF = 80, 96
    A(f"v_lshlrev_b32 v{T}, 16, v{RAW}"); A(f"v_mul_f32 v{T}, s24, v{T}")
    A(f"v_lshlrev_b32 v{TH}, 16, v{RAW+1}")
    A(f"v_exp_f32 v{T}, v{T}")
    A(f"v_lshlrev_b32 v{P}, 16, v{RAW+2}"); A(f"v_lshlrev_b32 v{P+1}, 16, v{RAW+3}")
    A(f"v_cvt_pk_bf16_f32 v{T}, v{T}, v{T}")
    A(f"v_mul_f32 v{TH}, v{TH}, v{DT}")
    A(f"v_lshlrev_b32 v{T}, 16, v{T}")
    A(f"v_mul_f32 v{TH}, 0.15915494, v{TH}")
    A(f"v_mul_f32 v{A1}, v{T}, v{NDT}")
    A(f"v_pk_mul_f32 {P2(P)}, {P2(P)}, {P2(DT2)} op_sel_hi:[1,0]")
    A(f"v_mul_f32 v{A1}, s24, v{A1}")
    A(f"v_pk_mov_b32 {P2(RAW)}, {P2(RAW+4)}, {P2(RAW+4)} op_sel:[0,1]"); A(f"v_pk_mov_b32 {P2(RAW+2)}, {P2(RAW+6)}, {P2(RAW+6)} op_sel:[0,1]")
    for (R, sc) in ((W, "s27"), (Z, None), (Y, "s28")):
        if sc:
            A(f"v_mul_f32 v{T}, {sc}, v{A1}"); A(f"v_mul_f32 v{T+1}, {sc}, v{TH}")
            A(f"v_exp_f32 v{T}, v{T}"); A(f"v_fract_f32 v{T+1}, v{T+1}")
        else:
            A(f"v_exp_f32 v{T}, v{A1}"); A(f"v_fract_f32 v{T+1}, v{TH}")
        A(f"v_cos_f32 v{R}, v{T+1}"); A(f"v_sin_f32 v{R+1}, v{T+1}")
        A("s_nop 0")
        A(f"v_pk_mul_f32 {P2(R)}, {P2(R)}, {P2(T)} op_sel_hi:[1,0]" + (" neg_hi:[1,0]" if R == W else ""))
    pkc = [0]
    def emit(row, r):
        k = PK + pkc[0] % 4; pkc[0] += 1
        A(f"v_cvt_pk_bf16_f32 v{k}, v{r}, v{r+1}")
        A(f"ds_write_addtid_b32 v{k} offset:{row*RS}")
    def rd(base):
        for t in range(4): A(f"ds_read_b128 v[{base+4*t}:{base+4*t+3}], v{FA} offset:{64*t}")
    def mm(acc, base, n):
        A(f"s_waitcnt lgkmcnt({n})")
        for t in range(4):
            A(f"v_mfma_f32_16x16x32_bf16 v[{acc}:{acc+3}], v[{base+4*t}:{base+4*t+3}], v[{QF+4*t}:{QF+4*t+3}], v[{acc}:{acc+3}]")
    A(f"ds_write_addtid_b32 v{ONE} offset:0")
    qs = W
    for j in range(2, 17):
        dst = QA if j % 2 == 0 else QB
        if j < 16: pcmul(A, dst, qs, W)
        emit(j-1, qs)
        b = j - 1
        if b <= 7: pcmul(A, P+2*b, P+2*b-2, Z)
        qs = dst
    rd(QF)
    loc = {}
    for b in range(0, 8, 2):
        emit(b, P+2*b); emit(b+1, P+2*b+2)
        pcmul(A, T, P+2*b+2, Y); pcmul(A, P+2*b+2, P+2*b, Y)
        emit(8+b+1, T); emit(8+b, P+2*b+2)
        loc[b] = P+2*b+2
    rd(PF)
    def step(b, row):
        s = loc[b]; d = P+2*b if s == P+2*b+2 else P+2*b+2
        pcmul(A, d, s, Y); loc[b] = d
        return (row, d)
    for a in range(2):
        es = [step(b, 4*a + b//2) for b in (0, 2, 4, 6)]
        for e in es: emit(*e)
    for a in range(4):
        es = [step(b, 8 + 2*a + b//4) for b in (0, 4)]
        for e in es: emit(*e)
    rd(PF+16)
    e = step(0, 0)
    for a in range(1, 10):
        n = step(0, a) if a < 9 else None
        emit(*e); e = n
    rd(PF+32)
    mm(ACC, PF, 8); mm(ACC+4, PF+16, 4); mm(ACC+8, PF+32, 0)
    A("s_sub_u32 s14, s14, 1"); A("s_cmp_lg_u32 s14, 0"); A("s_cbranch_scc1 k_loop")
    A("s_cmp_lt_u32 s3, 4"); A("s_cbranch_scc1 k_give")

def kaddr(A):
    sL = REG
    A(f"v_add_u32 v39, s{sL}, v1")
    EB = C0
    A("v_lshlrev_b32 v40, 4, v17"); A(f"v_add_u32 v40, s{sL}, v40")
    A("v_lshl_add_u32 v41, v18, 10, v40"); A(f"v_add_u32 v41, {EB + 2048 - 8}, v41")
    A("v_and_b32 v42, 1, v0"); A("v_lshlrev_b32 v42, 3, v42"); A("v_sub_u32 v42, v41, v42")
    A("v_lshl_add_u32 v43, v18, 9, v40"); A("v_lshl_add_u32 v44, v18, 8, v40")
    A("v_lshrrev_b32 v45, 1, v18"); A("v_lshl_add_u32 v45, v45, 8, v40")
    A("v_and_b32 v46, 1, v18"); A("v_lshl_add_u32 v45, v46, 3, v45")
    A("v_mov_b32 v66, 0"); A("v_mov_b32 v67, 0")
    A("v_and_b32 v46, 7, v0"); A("v_lshlrev_b32 v46, 2, v46"); A(f"v_add_u32 v46, s{sL}, v46")
    A("v_lshlrev_b32 v47, 3, v0"); A(f"v_add_u32 v47, s{sL}, v47")

def kexp(A):
    ACC = 20; sL = REG; EB = C0
    K0, K1, K2 = ACC, ACC+4, ACC+8
    for r in range(4):
        A(f"v_cvt_pk_bf16_f32 v{48+2*r}, v{K2+r}, v{K2+r}"); A(f"v_cvt_pk_bf16_f32 v{49+2*r}, v{K2+r}, v{K2+r}")
    for r in range(4): A(f"ds_write2_b64 v41, v[{48+2*r}:{49+2*r}], v[{48+2*r}:{49+2*r}] offset0:{32*r} offset1:{32*r+1}")
    for r in range(4): A(f"ds_write_b16 v42, v{48+2*r} offset:{256*r+16}")
    c = {}
    for n, (x, y) in enumerate([(0,0),(0,1),(1,1),(2,2),(2,3),(3,3),(1,2)]):
        c[(x,y)] = 56+n
        A(f"v_cvt_pk_bf16_f32 v{56+n}, v{K1+x}, v{K1+y}")
    A(f"v_cvt_pk_bf16_f32 v64, v{K0}, v{K0+1}"); A(f"v_cvt_pk_bf16_f32 v65, v{K0+2}, v{K0+3}")
    A("s_mov_b32 exec_lo, 0")
    o = (EB - 4) // 4
    A(f"ds_write2_b32 v43, v{c[0,0]}, v{c[0,0]} offset0:{o} offset1:{o+1}")
    A(f"ds_write2_b32 v43, v{c[0,1]}, v{c[1,1]} offset0:{o+2} offset1:{o+3}")
    A(f"ds_write2_b32 v43, v{c[2,2]}, v{c[2,2]} offset0:{o+64} offset1:{o+65}")
    A(f"ds_write2_b32 v43, v{c[2,3]}, v{c[3,3]} offset0:{o+66} offset1:{o+67}")
    A("s_mov_b32 exec_lo, -1"); A("s_mov_b32 exec_hi, 0")
    o = EB + 512
    A(f"ds_write_b16 v44, v{c[0,0]} offset:{o-2}")
    A(f"ds_write2_b32 v44, v{c[0,0]}, v{c[1,2]} offset0:{o//4} offset1:{o//4+1}")
    A(f"ds_write_b32 v44, v{c[2,2]} offset:{o+8}")
    A(f"ds_write_b16 v44, v{c[3,3]} offset:{o+12}")
    A("s_mov_b64 exec, -1")
    A(f"ds_write_b64 v45, v[64:65] offset:{EB}")
    A(f"ds_write_b32 v46, v66 offset:{C0-32}"); A(f"ds_write_b32 v46, v66 offset:{C1-32}")
    A(f"ds_write_b64 v47, v[66:67] offset:{CU+4096}")
    for i in range(4):
        A(f"ds_read_b128 v[{80+8*i}:{83+8*i}], v39 offset:{EB+1024*i}")
        A(f"ds_read_b32 v{72+i}, v39 offset:{EB+1024*i-4}")
    A("s_waitcnt lgkmcnt(0)")
    for i in range(4):
        b = 80+8*i
        A(f"v_alignbit_b32 v{b+4}, v{b}, v{72+i}, 16")
        for k in range(1, 4): A(f"v_alignbit_b32 v{b+4+k}, v{b+k}, v{b+k-1}, 16")
        A(f"ds_write_b128 v39, v[{b+4}:{b+7}] offset:{C1+1024*i}")

def caddr(A):
    sL = REG
    A("v_lshlrev_b32 v2, 4, v18"); A("v_lshlrev_b32 v6, 5, v17"); A("v_sub_u32 v2, v2, v6")
    A(f"v_add_u32 v2, {CU + 4064 - 3584}, v2"); A(f"v_add_u32 v2, s{sL}, v2")
    A("v_sub_u32 v6, 15, v17"); A("v_and_b32 v7, 1, v6"); A("v_sub_u32 v6, v6, v7")
    A(f"v_mul_u32_u24 v3, {C1-C0}, v7"); A("v_lshl_add_u32 v3, v18, 4, v3")
    A("v_lshlrev_b32 v6, 1, v6"); A("v_sub_u32 v3, v3, v6")
    A(f"v_add_u32 v3, {C0}, v3"); A(f"v_add_u32 v3, s{sL}, v3")
    for i in range(1, 4): A(f"v_add_u32 v{3+i}, {1024*i}, v3")
    A("v_lshlrev_b32 v7, 5, v17"); A("v_lshrrev_b32 v8, 1, v18"); A("v_lshl_add_u32 v7, v8, 4, v7")
    A("v_and_b32 v8, 1, v18"); A("v_lshl_add_u32 v7, v8, 9, v7")

def conv(A):
    Y = 8
    for i in range(16): A(f"v_pk_mov_b32 {P2(Y+2*i)}, 0, 0")
    stamp(A, 9)
    A("s_barrier")
    A("s_waitcnt vmcnt(0)")
    stamp(A, 4)
    TB = [40, 104]
    def reads(f, extra):
        b = TB[f]; r = []
        for q in range(8):
            r.append(f"ds_read_b128 v[{b+32+4*q}:{b+35+4*q}], v2 offset:{512*(7-q) + extra}")
            o = (512*(q & 1) + extra) // 4
            r.append(f"ds_read2_b32 v[{b+4*q}:{b+4*q+1}], v{3+q//2} offset0:{o} offset1:{o+1}")
            r.append(f"ds_read2_b32 v[{b+4*q+2}:{b+4*q+3}], v{3+q//2} offset0:{o+2} offset1:{o+3}")
        return r
    def mfmas(f):
        b = TB[f]; r = []
        for q in range(8):
            for tau in range(8-q):
                t = q + tau
                r.append(f"v_mfma_f32_16x16x32_bf16 v[{Y+4*t}:{Y+4*t+3}], v[{b+4*q}:{b+4*q+3}], v[{b+32+4*tau}:{b+35+4*tau}], v[{Y+4*t}:{Y+4*t+3}]")
        return r
    def inter(ms, rs):
        for i, m in enumerate(ms):
            A(m)
            if i < len(rs): A(rs[i])
    if OPT["cprio"]: A(f"s_setprio {OPT['cprio']}")
    for x in reads(0, 0): A(x)
    A("s_mov_b32 s28, 0")
    lp = A.newlabel("cv")
    A.label(lp)
    A("s_waitcnt lgkmcnt(0)")
    inter(mfmas(0), reads(1, 64))
    A("s_add_u32 s28, s28, 1")
    A("s_waitcnt lgkmcnt(0)")
    inter(mfmas(1), reads(0, 128))
    for r in range(2, 7): A(f"v_add_u32 v{r}, 128, v{r}")
    A("s_cmp_lt_u32 s28, 4"); A(f"s_cbranch_scc1 {lp}")
    stamp(A, 5)
    A(f"s_add_u32 s30, s31, {YT_OFF}")
    A(f"s_lshr_b32 s28, s{CH}, 3"); A("s_lshl_b32 s28, s28, 8"); A(f"s_and_b32 s29, s{CH}, 7"); A("s_lshl_b32 s29, s29, 2")
    A("s_add_u32 s28, s28, s29"); A(f"s_add_u32 s28, s28, {YF_OFF}")
    A("s_waitcnt lgkmcnt(0)")
    A("s_nop 1")
    O = 40
    for t in range(8):
        A(f"v_cvt_pk_bf16_f32 v{O+2*t}, v{Y+4*t}, v{Y+4*t+1}"); A(f"v_cvt_pk_bf16_f32 v{O+2*t+1}, v{Y+4*t+2}, v{Y+4*t+3}")
    A("s_nop 1")
    for p in range(4):
        A(f"v_permlane16_swap_b32 v{O+4*p}, v{O+4*p+2}"); A(f"v_permlane16_swap_b32 v{O+4*p+1}, v{O+4*p+3}")
    A("s_nop 1")
    for p in range(4): A(f"buffer_store_dwordx4 v[{O+4*p}:{O+4*p+3}], v7, s[20:23], s30 offen offset:{1024*p} sc1")
    A("s_setprio 0")
    flag_store(A, "s28", 2, 8, 80*256)
    stamp(A, 6)

def hwave(A):
    ACC = 20; sL = REG
    def when(cmp, neg=False):
        l = A.newlabel("if"); A(cmp); A(f"s_cbranch_scc{1 if neg else 0} {l}"); return l
    stamp(A, 2)
    A(f"s_add_u32 s8, s2, 256"); A(f"s_cmp_eq_u32 s{LCH}, 0"); A("s_cselect_b32 s8, s2, s8")
    A(f"s_cmp_eq_u32 s{LCH}, 1"); A("s_cselect_b32 s8, 999, s8"); A("s_cselect_b32 s9, s2, 999")
    A(f"s_lshl_b32 s30, s{LCH}, 2"); A(f"s_add_u32 s30, s30, {FLG+80}"); A("v_mov_b32 v40, s30")
    A(f"v_add_u32 v39, s{sL}, v1")
    A("v_lshrrev_b32 v2, 3, v0"); A("v_and_b32 v3, 7, v0"); A("v_mul_u32_u24 v4, 1280, v2")
    A("s_mov_b32 s14, 2621440"); A("s_mov_b32 s15, 0x20000")
    lds_wait(A, 40, 41, "v_cmp_gt_i32 vcc, s16")
    for i in range(3): A(f"ds_read_b128 v[{80+4*i}:{83+4*i}], v39 offset:{SS + 1024*i}")
    for i in range(3): A(f"ds_read_b128 v[{92+4*i}:{95+4*i}], v39 offset:{2*SS + 1024*i}")
    A("s_waitcnt lgkmcnt(0)")
    def dma8(regs):
        for h in range(2):
            A(f"s_add_u32 m0, s{sL}, {4096*h}"); A(f"s_add_u32 s27, s26, {40960*h}")
            for i in range(4): A(f"buffer_load_dwordx4 v{regs[4*h+i]}, s[12:15], s27 offen offset:{1024*i} lds")
    l = when("s_cmp_lt_u32 s8, 320")
    A(f"s_mov_b32 s12, s{U}"); A(f"s_mov_b32 s13, s{U+1}")
    for i in range(8):
        A(f"v_xor_b32 v5, {i}, v3"); A(f"v_lshl_add_u32 v{72+i}, v5, 4, v4")
        if i % 4: A(f"v_add_u32 v{72+i}, {(10240-1024)*(i % 4)}, v{72+i}")
    A("s_and_b32 s24, s8, 31"); A("s_lshr_b32 s25, s8, 5")
    A("s_mul_i32 s26, s24, 81920"); A("s_lshl_b32 s27, s25, 7"); A("s_add_u32 s26, s26, s27")
    dma8([72+i for i in range(8)])
    A.label(l)
    l = when("s_cmp_ge_u32 s16, 1")
    for i in range(12): A(f"v_add_f32 v{ACC+i}, v{ACC+i}, v{80+i}")
    A.label(l)
    l = when("s_cmp_ge_u32 s16, 2")
    for i in range(12): A(f"v_add_f32 v{ACC+i}, v{ACC+i}, v{92+i}")
    A.label(l)
    A("s_mul_i32 s19, s18, 3072"); A(f"s_add_u32 s19, s19, {KP_OFF}")
    l = when("s_cmp_eq_u32 s16, 0")
    for i in range(3): A(f"buffer_store_dwordx4 v[{ACC+4*i}:{ACC+4*i+3}], v1, s[20:23], s19 offen offset:{1024*i} sc1")
    A.label(l)
    A("s_min_u32 s10, s2, 239"); A("s_mul_i32 s11, s10, 2731"); A("s_lshr_b32 s11, s11, 16")
    A("s_mul_i32 s28, s11, 24"); A("s_sub_u32 s10, s10, s28")
    A("s_mul_i32 s31, s10, 81920"); A("s_lshl_b32 s28, s11, 7"); A("s_add_u32 s31, s31, s28")
    l = when("s_cmp_lt_u32 s9, 240")
    A(f"s_mov_b32 s12, s{WD}"); A(f"s_mov_b32 s13, s{WD+1}"); A("s_mov_b32 s14, 1966080")
    A("v_lshl_add_u32 v72, v3, 4, v4")
    for i in range(1, 4): A(f"v_add_u32 v{72+i}, {(10240-1024)*i}, v72")
    A("s_mov_b32 s26, s31")
    dma8([72+i % 4 for i in range(8)])
    A.label(l)
    A("s_barrier")
    A("s_barrier")
    l = when("s_cmp_lt_u32 s8, 320")
    A("v_xor_b32 v5, v2, v3"); A("v_lshlrev_b32 v5, 4, v5"); A("v_lshl_add_u32 v5, v3, 10, v5"); A(f"v_add_u32 v5, s{sL}, v5")
    A("v_lshlrev_b32 v6, 15, v2"); A("v_lshlrev_b32 v7, 4, v3"); A("v_sub_u32 v6, v6, v7"); A("v_add_u32 v6, 4080, v6")
    A("s_mov_b32 s28, 0x05040100"); A("s_mov_b32 s29, 0x07060302")
    A("s_lshl_b32 s30, s25, 18"); A("s_lshl_b32 s27, s24, 7"); A("s_sub_u32 s30, s30, s27"); A(f"s_add_u32 s30, s30, {UR_OFF}")
    A("s_waitcnt vmcnt(0)")
    for e in range(8): A(f"ds_read_b128 v[{80+4*e}:{83+4*e}], v5 offset:{128*e}")
    A("s_waitcnt lgkmcnt(0)")
    for i in range(8):
        o = 112 + 4*i
        for p in range(4):
            lo = 80 + 4*(7-2*p) + i//2; hi = 80 + 4*(6-2*p) + i//2
            A(f"v_perm_b32 v{o+p}, v{hi}, v{lo}, s{28 + (i&1)}")
        A(f"buffer_store_dwordx4 v[{o}:{o+3}], v6, s[20:23], s30 offen sc1")
        A("s_add_u32 s30, s30, 4096")
    A.label(l)
    l = when("s_cmp_lt_u32 s9, 240")
    A("v_lshrrev_b32 v5, 5, v0"); A("v_lshlrev_b32 v5, 11, v5"); A("v_bfe_u32 v6, v0, 2, 3"); A("v_lshl_add_u32 v5, v6, 7, v5")
    A("v_and_b32 v6, 3, v0"); A("v_lshl_add_u32 v5, v6, 3, v5"); A(f"v_add_u32 v5, s{sL}, v5")
    A("s_waitcnt vmcnt(0)")
    for dtl in range(4):
        for sg in range(2):
            o = 80 + 4*(2*dtl+sg)
            A(f"ds_read_b64_tr_b16 v[{o}:{o+1}], v5 offset:{4096*sg + 32*dtl}")
            A(f"ds_read_b64_tr_b16 v[{o+2}:{o+3}], v5 offset:{4096*sg + 32*dtl + 1024}")
    for dtl in range(4):
        A("s_lshl_b32 s26, s11, 2"); A(f"s_add_u32 s26, s26, {dtl}")
        A("s_mul_i32 s27, s26, 52429"); A("s_lshr_b32 s27, s27, 18"); A("s_mul_i32 s28, s27, 235"); A("s_add_u32 s26, s26, s28")
        A("s_mul_i32 s28, s10, 10"); A("s_add_u32 s26, s26, s28"); A("s_lshl_b32 s26, s26, 10"); A(f"s_add_u32 s26, s26, {WDF_OFF}")
        A("s_add_u32 s27, s26, 5120")
        if dtl == 0: A("s_waitcnt lgkmcnt(0)")
        o = 80 + 8*dtl
        A(f"buffer_store_dwordx4 v[{o}:{o+3}], v1, s[20:23], s26 offen sc1")
        A(f"buffer_store_dwordx4 v[{o+4}:{o+7}], v1, s[20:23], s27 offen sc1")
    A.label(l)
    A("s_barrier")
    tag_get(A, 40)
    A("s_barrier")
    A("s_barrier")
    l = when("s_cmp_lt_u32 s8, 320")
    A("s_lshl_b32 s30, s25, 8"); A("s_lshl_b32 s27, s24, 2"); A("s_add_u32 s30, s30, s27"); A(f"s_add_u32 s30, s30, {UF_OFF}")
    flag_store(A, "s30", 40)
    A.label(l)
    A("s_lshl_b32 s18, s18, 7"); A(f"s_add_u32 s18, s18, {KF_OFF}")
    l = when("s_cmp_eq_u32 s16, 0")
    flag_store(A, "s18", 40)
    A.label(l)
    l = when("s_cmp_lt_u32 s9, 240")
    A("s_lshl_b32 s26, s11, 8"); A("s_lshl_b32 s27, s10, 2"); A("s_add_u32 s26, s26, s27"); A(f"s_add_u32 s26, s26, {WF_OFF}")
    flag_store(A, "s26", 70)
    A.label(l)
    caddr(A); kaddr(A)
    A("v_and_b32 v68, 31, v0"); A("v_lshlrev_b32 v68, 2, v68")
    A(f"s_lshr_b32 s29, s{CH}, 6"); A("s_lshl_b32 s29, s29, 8"); A(f"s_add_u32 s29, s29, {UF_OFF}")
    A(f"s_lshl_b32 s31, s{CH}, 12"); A(f"s_add_u32 s30, s31, {UR_OFF}")
    A(f"s_add_u32 m0, s{sL}, {CU}")
    A("s_barrier")
    A("s_barrier")
    A("buffer_load_dword v69, v68, s[20:23], s29 offen sc1")
    l = when(f"s_cmp_eq_u32 s{RMT}, 1")
    A("v_mov_b32 v70, 0")
    A("buffer_load_dword v71, v70, s[20:23], s18 offen sc1")
    A.label(l)
    A("s_barrier")
    l = when(f"s_cmp_eq_u32 s{LCH}, 0")
    A("v_min_u32 v70, 47, v0"); A("v_cmp_lt_u32 vcc, 23, v70"); A("v_lshlrev_b32 v70, 2, v70"); A("v_add_u32 v71, 160, v70")
    A("v_cndmask_b32 v70, v70, v71, vcc")
    A("s_mul_i32 s26, s7, 5"); A("s_lshr_b32 s26, s26, 2"); A("s_lshl_b32 s26, s26, 8"); A(f"s_add_u32 s26, s26, {WF_OFF}")
    A("buffer_load_dword v71, v70, s[20:23], s26 offen sc1")
    A.label(l)
    A("s_barrier")
    def check(va, so, vd):
        ok = A.newlabel("ok")
        A(f"v_cmp_ne_u32 vcc, s{TAG}, v{vd}"); A(f"s_cbranch_vccz {ok}")
        poll(A, va, so, vd)
        A.label(ok)
    A("s_waitcnt vmcnt(0)")
    l = when("s_cmp_eq_u32 s17, 0")
    check(68, "s29", 69)
    for i in range(4): A(f"buffer_load_dwordx4 v1, s[20:23], s30 offen offset:{1024*i} sc1 lds")
    A.label(l)
    l = when(f"s_cmp_eq_u32 s{RMT}, 1")
    check(70, "s18", 71)
    for i in range(3): A(f"buffer_load_dwordx4 v[{80+4*i}:{83+4*i}], v1, s[20:23], s19 offen offset:{1024*i} sc1")
    A.label(l)
    l = when(f"s_cmp_eq_u32 s{LCH}, 0")
    check(70, "s26", 71)
    A.label(l)
    stamp(A, 3)
    A("s_barrier")
    l = when(f"s_cmp_eq_u32 s{RMT}, 1")
    A("s_waitcnt vmcnt(0)")
    for i in range(12): A(f"v_add_f32 v{ACC+i}, v{ACC+i}, v{80+i}")
    A.label(l)
    l = when("s_cmp_eq_u32 s16, 0")
    A("s_barrier")
    A(f"v_mov_b32 v8, {FLG}")
    lds_wait(A, 8, 9, "v_cmp_ne_u32 vcc, 0", off=60, sleep=4)
    A("s_branch k_fin")
    A.label(l)
    kexp(A)
    conv(A)

def finpre(A):
    sH = LCH; sL = REG
    A("v_lshlrev_b32 v1, 3, v0")
    A("s_lshl_b32 s24, s6, 9"); A(f"s_add_u32 s24, s24, {GG_OFF}")
    A("s_mul_i32 s26, s7, 2560"); A("s_lshr_b32 s25, s6, 2"); A("s_mul_i32 s25, s25, 20480"); A("s_add_u32 s26, s26, s25"); A(f"s_add_u32 s26, s26, {YF_OFF}")
    A("v_and_b32 v3, 7, v0")
    A("v_lshrrev_b32 v8, 3, v0"); A("v_lshlrev_b32 v8, 12, v8"); A("v_lshl_add_u32 v8, v3, 4, v8")
    A("s_mul_i32 s27, s7, 327680"); A("s_lshl_b32 s28, s6, 7"); A("s_add_u32 s27, s27, s28"); A(f"s_add_u32 s27, s27, {YT_OFF}")
    if OPT["ysleep"]: A(f"s_sleep {OPT['ysleep']}")
    A(f"s_lshl_b32 s29, s{sH}, 8"); A("s_add_u32 s12, s29, s26"); A("s_add_u32 s13, s12, 768"); A("s_add_u32 s14, s12, 1536")
    A(f"s_add_u32 s15, s26, {9*256}"); A(f"s_cmp_eq_u32 s{sH}, 0"); A("s_cselect_b32 s15, s15, s14")
    lp = A.newlabel("yl"); dn = A.newlabel("yl")
    A("s_mov_b32 s62, 0")
    A.label(lp)
    D = [32, 40, 48, 4]
    for i in range(3): A(f"s_load_dwordx8 s[{D[i]}:{D[i]+7}], s[20:21], s{12+i} glc")
    A("s_load_dwordx4 s[8:11], s[20:21], s15 glc"); A("s_load_dwordx4 s[16:19], s[20:21], s15 offset:16 glc")
    A("s_addk_i32 s62, 1")
    A("s_waitcnt lgkmcnt(0)")
    regs = list(range(32, 56)) + [8, 9, 10, 11, 16, 17, 18, 19]
    A("s_and_b64 s[28:29], s[32:33], s[34:35]"); A("s_or_b64 s[30:31], s[32:33], s[34:35]")
    for r in regs[4::2]:
        A(f"s_and_b64 s[28:29], s[28:29], s[{r}:{r+1}]"); A(f"s_or_b64 s[30:31], s[30:31], s[{r}:{r+1}]")
    A("s_and_b32 s28, s28, s29"); A("s_or_b32 s30, s30, s31")
    A(f"s_xor_b32 s28, s28, s{TAG}"); A(f"s_xor_b32 s30, s30, s{TAG}"); A("s_or_b32 s28, s28, s30")
    A(f"s_cbranch_scc0 {dn}")
    A(f"s_sleep {OPT['psleep']}")
    A(f"s_cmpk_lt_u32 s62, 0x{SPIN:x}"); A(f"s_cbranch_scc1 {lp}")
    A.label(dn)
    for i in range(4):
        A(f"s_add_u32 s28, s{sH}, {3*i}")
        if i == 3: A(f"s_cmp_lg_u32 s{sH}, 0"); A(f"s_cbranch_scc1 {dn}x")
        A("s_lshl_b32 s28, s28, 15"); A(f"s_add_u32 m0, s{sL}, {1024*i}"); A("s_add_u32 s28, s28, s27")
        A("buffer_load_dwordx4 v8, s[20:23], s28 offen sc1 lds")
    A.label(dn + "x")
    stamp(A, 7)
    A("v_bfe_u32 v2, v0, 2, 2"); A("v_lshlrev_b32 v2, 7, v2")
    A("v_lshrrev_b32 v3, 4, v0"); A("v_lshl_add_u32 v2, v3, 5, v2")
    A("v_and_b32 v3, 3, v0"); A("v_lshl_add_u32 v2, v3, 3, v2"); A(f"v_add_u32 v2, s{sL}, v2")
    A(f"s_mul_i32 s28, s{sH}, 48"); A(f"s_add_u32 s28, s28, s{sL}")
    A("v_lshlrev_b32 v3, 4, v0"); A("v_add_u32 v3, s28, v3")
    A("v_lshlrev_b32 v7, 2, v0"); A(f"v_add_u32 v7, s{sL}, v7")
    A("s_mov_b32 s30, 0xffff0000")
    poll(A, 1, "s24", 4, 2, tagreg=5)
    for i in range(4):
        A(f"ds_read_b64_tr_b16 v[{8+4*i}:{9+4*i}], v2 offset:{1024*i}")
        A(f"ds_read_b64_tr_b16 v[{10+4*i}:{11+4*i}], v2 offset:{1024*i+512}")
    A("v_sub_f32 v6, 1.0, v4")
    A(f"ds_write_b32 v7, v6 offset:{OMG}")
    A("s_waitcnt lgkmcnt(1)")
    for i in range(4):
        for k in range(4):
            r = 8+4*i+k
            A(f"v_lshlrev_b32 v24, 16, v{r}"); A(f"v_and_b32 v25, s30, v{r}")
            A("v_mul_f32 v24, v24, v4"); A("v_mul_f32 v25, v25, v4")
            A(f"v_cvt_pk_bf16_f32 v{r}, v24, v25")
        A(f"ds_write_b128 v3, v[{8+4*i}:{11+4*i}] offset:{A2O + A2S*i}")
    stamp(A, 8)

def build():
    A = Asm()
    A.raw(f"; @launch grid=(256,1,1) block=(512,1,1) lds={LDS_BYTES}")
    A.raw('.amdgcn_target "amdgcn-amd-amdhsa--gfx950"')
    kernel_begin(A, NAME)
    A("s_cmp_ge_u32 s2, 256"); A("s_cbranch_scc1 k_end")
    stamp_begin(A)
    A("s_load_dwordx16 s[32:47], s[0:1], 0")
    A("s_load_dwordx8 s[48:55], s[0:1], 64")
    A("s_load_dwordx4 s[56:59], s[0:1], 96")
    A("s_load_dwordx2 s[20:21], s[0:1], 112")
    A("v_lshrrev_b32 v1, 6, v0"); A("v_and_b32 v0, 63, v0"); A("v_readfirstlane_b32 s3, v1")
    A(f"s_and_b32 s{XCD}, s2, 7"); A(f"s_lshr_b32 s{RR}, s2, 3"); A(f"s_lshr_b32 s{R4}, s{XCD}, 1"); A(f"s_and_b32 s{C2}, s{XCD}, 1")
    A(f"s_lshl_b32 s4, s{R4}, 2"); A(f"s_and_b32 s5, s{RR}, 3"); A("s_add_u32 s4, s4, s5")
    A(f"s_lshl_b32 s5, s{C2}, 3"); A(f"s_lshr_b32 s6, s{RR}, 2"); A("s_add_u32 s5, s5, s6")
    A(f"s_lshl_b32 s6, s{R4}, 3"); A(f"s_and_b32 s7, s{RR}, 7"); A("s_add_u32 s6, s6, s7")
    A(f"s_lshl_b32 s7, s{C2}, 2"); A(f"s_lshr_b32 s8, s{RR}, 3"); A("s_add_u32 s7, s7, s8")
    A("s_mov_b32 s22, 0x%x" % WS_BYTES); A("s_mov_b32 s23, 0x20000")
    A("v_and_b32 v8, 31, v0"); A("v_cmp_gt_u32 vcc, 16, v8"); A("v_lshlrev_b32 v8, 2, v8"); A(f"v_add_u32 v8, {FLG}, v8")
    A("v_cndmask_b32 v9, 0, 1, vcc")
    A("ds_write_b32 v8, v9")
    A("s_cmp_eq_u32 s3, 4"); A("s_cbranch_scc1 k_l")
    ev = [(0,1,1,2),(1,1,1,1),(1,2,2,1),(2,1,1,1),(0,0,0,0),(0,0,0,1),(1,0,0,2),(2,0,0,1)]
    od = [(0,1,1,1),(0,2,2,1),(1,1,1,1),(1,2,2,1),(0,0,0,0),(0,0,0,2),(1,0,0,2),(2,0,2,0)]
    enc = lambda t: sum((r | (sl << 2) | (p << 4) | (c << 6)) << (8*i) for i, (r, sl, p, c) in enumerate(t))
    A(f"s_lshr_b32 s18, s{RR}, 1"); A("s_lshl_b32 s18, s18, 3"); A(f"s_add_u32 s18, s18, s{XCD}")
    A(f"s_mov_b32 s10, 0x{enc(ev) & 0xffffffff:x}"); A(f"s_mov_b32 s11, 0x{enc(ev) >> 32:x}")
    A(f"s_and_b32 s8, s{RR}, 1")
    A(f"s_cselect_b32 s10, 0x{enc(od) & 0xffffffff:x}, s10"); A(f"s_cselect_b32 s11, 0x{enc(od) >> 32:x}, s11")
    A("s_lshl_b32 s9, s3, 3"); A("s_lshr_b64 s[10:11], s[10:11], s9")
    A(f"s_and_b32 s{LCH}, s10, 3"); A("s_bfe_u32 s9, s10, 0x20002"); A("s_bfe_u32 s17, s10, 0x20004"); A("s_bfe_u32 s16, s10, 0x20006")
    A(f"s_mul_i32 s{REG}, s{LCH}, {HS}"); A(f"s_add_u32 s{REG}, s{REG}, {HB}")
    A(f"s_mul_i32 s19, s9, {SS}"); A(f"s_add_u32 s19, s19, s{REG}")
    A("s_cmp_lt_u32 s3, 4"); A("s_cselect_b32 s14, s16, 1")
    A("s_mul_i32 s9, s8, 3"); A(f"s_add_u32 s9, s9, s{LCH}")
    A(f"s_cmp_eq_u32 s{LCH}, 2"); A("s_cselect_b32 s9, 2, s9"); A("s_cselect_b32 s13, s16, 0")
    A(f"s_mul_i32 s{CH}, s18, 5"); A(f"s_add_u32 s{CH}, s{CH}, s9")
    kpass(A)
    A(f"s_mov_b32 s{RMT}, s13")
    hwave(A)
    A.label("k_fin")
    finpre(A)
    A("s_branch k_post")
    A.label("k_mpre")
    mpre(A)
    A.label("k_l")
    loader(A)
    A("s_branch k_post")
    A.label("k_give")
    kgive(A)
    mwave(A)
    A.label("k_post")
    post(A)
    stamp_end(A, 0)
    A.label("k_end")
    A("s_endpgm")
    kernel_desc(A, NAME, 256, 102)
    return re.sub(r"^    (\w+:)$", r"\1", A.text(), flags=re.M)

if __name__ == "__main__":
    gen1.DIAG = "--diag" in sys.argv
    for a in sys.argv[2:]:
        if "=" in a:
            k, v = a.split("="); OPT[k] = int(v)
    open(sys.argv[1], "w").write(build())
```

```python
import sys, re, copy
from asmlib import *
import gen1
from gen1 import LOG2E, NLOG2E, LOG2E_LO, LN2, stamp, stamp_begin, stamp_end
NAME = "gated_mix__ssm_conv_s4d__swiglu_ffn__prompt_kernel"
OPT = dict(probe=-1, thr=0, thr2=28, cprio=1, psleep=3, sleep=1, barg=0, wb10=60, ysleep=8, ldelay=4, pullpos=6, wdt=1)
H_OFF = 0
UR_OFF = 6291456
YT_OFF = UR_OFF + 2621440
GG_OFF = YT_OFF + 2621440
HF_OFF = GG_OFF + 16384
UF_OFF = HF_OFF + 128*256
YF_OFF = UF_OFF + 16*256
WF_OFF = YF_OFF + 8*80*256
KF_OFF = WF_OFF + 16*256
KP_OFF = KF_OFF + 128*128
LAST_OFF = KP_OFF + 128*3072
WDF_OFF = 12 << 20
WS_BYTES = 1 << 25
GB = 16384; UB = GB + 12288 + 32; STG = 41024
FLG = 3*STG
HB = FLG + 128; HS = 13536
LDS_BYTES = HB + 3*HS
RS = 272; SS = 16*RS
C0 = 64; C1 = C0 + 4160; CU = 8448
A2O = 4096; A2S = 1072; OMG = 8704
PR = 336; PW = 64*PR
SPIN = 0x3000
U, LOGA, LOGDT, DSK, WG, WU, WD, GW, OUT, DBG = 32, 34, 42, 44, 48, 50, 52, 54, 56, 58
XCD, RR, R4, C2, LCH, REG = 96, 97, 98, 99, 100, 101
CH, TAG, RMT = 60, 61, 47
_stamp0 = stamp
def stamp(A, i, real=False):
    _stamp0(A, i, real)
    if OPT["probe"] == i:
        A("s_memrealtime s[66:67]"); A("s_waitcnt lgkmcnt(0)")
def P2(b): return f"v[{b}:{b+1}]"

def lds_wait(A, vaddr, vtmp, cond, off=0, sleep=0):
    l = A.newlabel("lw"); d = A.newlabel("lw")
    A("s_mov_b32 s62, 0")
    A.label(l)
    A(f"ds_read_b32 v{vtmp}, v{vaddr} offset:{off}")
    A("s_addk_i32 s62, 1")
    A("s_waitcnt lgkmcnt(0)")
    A(f"{cond}, v{vtmp}")
    A(f"s_cbranch_vccz {d}")
    if sleep: A(f"s_sleep {sleep}")
    A("s_cmpk_lt_u32 s62, 0x7000")
    A(f"s_cbranch_scc1 {l}")
    A.label(d)

def poll(A, vaddr, soff, vdst, n=1, tagreg=None):
    l = A.newlabel("pl"); d = A.newlabel("pl")
    tagreg = vdst if tagreg is None else tagreg
    A("s_mov_b32 s62, 0")
    A.label(l)
    A(f"buffer_load_dword{'x2' if n == 2 else ''} {vr(vdst, n)}, v{vaddr}, s[20:23], {soff} offen sc1")
    A("s_addk_i32 s62, 1")
    A("s_waitcnt vmcnt(0)")
    A(f"v_cmp_ne_u32 vcc, s{TAG}, v{tagreg}")
    A(f"s_cbranch_vccz {d}")
    A(f"s_sleep {OPT['psleep']}")
    A(f"s_cmpk_lt_u32 s62, 0x{SPIN:x}")
    A(f"s_cbranch_scc1 {l}")
    A.label(d)

def flag_store(A, soff, vt, rep=1, stride=0):
    A(f"v_mov_b32 v{vt}, s{TAG}")
    A(f"v_mul_u32_u24 v{vt+1}, {stride}, v0")
    A(f"s_mov_b64 exec, {(1 << rep) - 1}")
    A("s_waitcnt vmcnt(0)")
    A(f"buffer_store_dword v{vt}, v{vt+1}, s[20:23], {soff} offen sc1")
    A("s_mov_b64 exec, -1")

def tag_get(A, vt):
    l = A.newlabel("tg"); d = A.newlabel("tg")
    A(f"s_load_dword s{TAG}, s[{DBG}:{DBG+1}], 0")
    A("s_mov_b32 s62, 0")
    A("s_waitcnt lgkmcnt(0)")
    A.label(l)
    A(f"s_cmp_lg_u32 s{TAG}, 0"); A(f"s_cbranch_scc1 {d}")
    A(f"v_mov_b32 v{vt}, 0")
    A(f"global_load_dword v{vt}, v{vt}, s[{DBG}:{DBG+1}] sc1")
    A("s_addk_i32 s62, 1")
    A("s_waitcnt vmcnt(0)")
    A(f"v_readfirstlane_b32 s{TAG}, v{vt}")
    A(f"s_sleep {OPT['psleep']}")
    A(f"s_cmpk_lt_u32 s62, 0x{SPIN:x}"); A(f"s_cbranch_scc1 {l}")
    A.label(d)

def spoll(A, soff, n, sleep):
    l = A.newlabel("sp"); d = A.newlabel("sp")
    A("s_mov_b32 s62, 0")
    A.label(l)
    A(f"s_load_dword{'x8 s[36:43]' if n == 8 else ' s36'}, s[20:21], {soff} glc")
    A("s_addk_i32 s62, 1")
    A("s_waitcnt lgkmcnt(0)")
    if n == 8:
        A("s_min_u32 s44, s36, s37"); A("s_max_u32 s45, s36, s37")
        for i in range(2, 8):
            A(f"s_min_u32 s44, s44, s{36+i}"); A(f"s_max_u32 s45, s45, s{36+i}")
        A(f"s_xor_b32 s44, s44, s{TAG}"); A(f"s_xor_b32 s45, s45, s{TAG}"); A("s_or_b32 s44, s44, s45")
    else:
        A(f"s_cmp_lg_u32 s36, s{TAG}")
    A(f"s_cbranch_scc0 {d}")
    A(f"s_sleep {sleep}")
    A(f"s_cmpk_lt_u32 s62, 0x{SPIN:x}"); A(f"s_cbranch_scc1 {l}")
    A.label(d)

def loader(A):
    A("v_lshrrev_b32 v8, 3, v0"); A("v_mul_u32_u24 v8, 1280, v8")
    A("v_lshrrev_b32 v9, 4, v0"); A("v_and_b32 v10, 7, v0"); A("v_xor_b32 v9, v9, v10")
    A("v_lshl_add_u32 v2, v9, 4, v8")
    A("v_xor_b32 v9, 4, v9"); A("v_lshl_add_u32 v3, v9, 4, v8")
    A(f"v_add_u32 v3, {10240-1024}, v3"); A(f"v_add_u32 v4, {20480-2048}, v2"); A(f"v_add_u32 v5, {20480-2048}, v3")
    for i in range(3):
        A(f"v_add_u32 v9, {64*i}, v0"); A("v_mul_u32_u24 v10, 5462, v9"); A("v_lshrrev_b32 v10, 16, v10")
        A("v_mul_u32_u24 v10, 2880, v10"); A(f"v_lshl_add_u32 v{11+i}, v0, 4, v10")
    A("v_lshlrev_b32 v1, 4, v0")
    A("v_mov_b32 v14, 0x7ffffff0")
    A("v_and_b32 v15, 3, v0"); A("v_lshlrev_b32 v15, 2, v15"); A(f"v_add_u32 v15, {FLG+64}, v15")
    A("s_mul_i32 s26, s4, 163840"); A("s_mul_i32 s27, s5, 192")
    A("s_mov_b32 s29, 0"); A("s_mov_b32 s30, 0"); A(f"s_mov_b32 s31, {FLG}")
    A("s_mov_b32 s10, 2621440"); A("s_mov_b32 s11, 0x20000")
    A("s_mov_b32 s14, 1966080"); A("s_mov_b32 s15, 0x20000")
    A("s_mov_b32 s18, 1966080"); A("s_mov_b32 s19, 0x20000")
    A("s_waitcnt lgkmcnt(0)")
    A("s_barrier")
    nt0 = A.newlabel("mk")
    A("s_cmp_lg_u32 s2, 0"); A(f"s_cbranch_scc1 {nt0}")
    A(f"s_add_u32 s12, s20, {LAST_OFF}"); A("s_addc_u32 s13, s21, 0")
    A("s_load_dword s28, s[12:13], 0")
    A("v_mov_b32 v16, 0")
    A("s_waitcnt lgkmcnt(0)")
    A("s_add_u32 s28, s28, 1"); A("s_max_u32 s28, s28, 1")
    A("v_mov_b32 v17, s28")
    A("s_mov_b64 exec, 1")
    A(f"global_store_dword v16, v17, s[{DBG}:{DBG+1}] sc1")
    A("global_store_dword v16, v17, s[12:13] sc1")
    A("s_mov_b64 exec, -1")
    A.label(nt0)
    A(f"s_mov_b32 s8, s{U}"); A(f"s_mov_b32 s9, s{U+1}")
    A(f"s_mov_b32 s12, s{WG}"); A(f"s_mov_b32 s13, s{WG+1}"); A(f"s_mov_b32 s16, s{WU}"); A(f"s_mov_b32 s17, s{WU+1}")
    if OPT["ldelay"]: A(f"s_sleep {OPT['ldelay']}")
    stamp(A, 1)
    def thr():
        if OPT["thr"]: A(f"s_waitcnt vmcnt({OPT['thr']})")
    def tail():
        A("s_mov_b32 m0, s31")
        A("s_mov_b64 exec, 1")
        A("buffer_load_dword v14, s[8:11], 0 offen lds")
        A("s_mov_b64 exec, -1")
        A("s_add_u32 s31, s31, 4")
        A(f"s_add_u32 s29, s29, {STG}"); A(f"s_cmp_eq_u32 s29, {3*STG}"); A("s_cselect_b32 s29, 0, s29")
        A("s_add_u32 s30, s30, 1")
    l1 = A.newlabel("ld"); nt = A.newlabel("ld")
    A.label(l1)
    for q in range(4):
        A(f"s_add_u32 m0, s29, {4096*q}"); A(f"s_add_u32 s28, s26, {40960*q}"); thr()
        for i in range(4): A(f"buffer_load_dwordx4 v{2+i}, s[8:11], s28 offen offset:{1024*i} lds")
        A(f"s_add_u32 m0, s29, {GB + 3072*q}"); A(f"s_add_u32 s28, s27, {49152*q}"); thr()
        for i in range(3): A(f"buffer_load_dwordx4 v{11+i}, s[12:15], s28 offen offset:{1024*i} lds")
        A(f"s_add_u32 m0, s29, {UB + 3072*q}"); A("s_nop 0")
        for i in range(3): A(f"buffer_load_dwordx4 v{11+i}, s[16:19], s28 offen offset:{1024*i} lds")
    tail()
    A("s_add_u32 s26, s26, 128"); A("s_add_u32 s27, s27, 196608")
    A("s_cmp_lt_u32 s30, 3"); A(f"s_cbranch_scc1 {l1}")
    A("s_barrier")
    if gen1.DIAG:
        for k in range(3, 10):
            sk = A.newlabel("sk")
            A(f"s_cmp_lg_u32 s30, {k}"); A(f"s_cbranch_scc1 {sk}"); stamp(A, 4 + k - 3); A.label(sk)
    A("s_cmp_lt_u32 s30, 10"); A(f"s_cbranch_scc1 {l1}")
    stamp(A, 2)
    A("s_barrier"); A("s_barrier")
    A("s_mul_i32 s26, s7, 245760"); A(f"s_add_u32 s26, s26, {WDF_OFF}")
    l2 = A.newlabel("ld"); l4 = A.newlabel("ld")
    A.label(l2)
    for w in range(4):
        for (o, n) in ((0, 4), (4096, 4), (8192, 2)):
            A(f"s_add_u32 m0, s29, {10240*w + o}"); A(f"s_add_u32 s28, s26, {61440*w + o}")
            if OPT["thr2"]: A(f"s_waitcnt vmcnt({OPT['thr2']})")
            for i in range(n): A(f"buffer_load_dwordx4 v1, s[20:23], s28 offen offset:{1024*i} sc1 lds")
        if (10*w + 10) % 40 == OPT["wb10"] % 40 and w < 3:
            sk = A.newlabel("sk")
            A(f"s_cmp_lg_u32 s30, {10 + OPT['wb10']//40}"); A(f"s_cbranch_scc1 {sk}"); A("s_barrier"); A.label(sk)
    tail()
    if OPT["wb10"] % 40 == 0:
        sk = A.newlabel("sk")
        A(f"s_cmp_lg_u32 s30, {10 + OPT['wb10']//40}"); A(f"s_cbranch_scc1 {sk}"); A("s_barrier"); A.label(sk)
    A("s_add_u32 s26, s26, 10240")
    A("s_cmp_lt_u32 s30, 13"); A(f"s_cbranch_scc1 {l2}")
    A("s_cmp_eq_u32 s30, 16"); A(f"s_cbranch_scc1 {l4}")
    A("s_sub_u32 s28, s30, 12")
    lds_wait(A, 15, 17, "v_cmp_gt_i32 vcc, s28", sleep=OPT["sleep"])
    A(f"s_branch {l2}")
    A.label(l4)
    stamp(A, 3)

ACC1 = 64
def mpre(A):
    lw = A.newlabel("mt")
    A("s_and_b32 s9, s3, 1")
    A("s_cmp_ge_u32 s3, 2"); A(f"s_cbranch_scc1 {lw}")
    A(f"s_lshl_b32 s15, s{XCD}, 5"); A(f"s_add_u32 s15, s15, s{RR}"); A("s_lshl_b32 s15, s15, 1"); A("s_add_u32 s15, s15, s9")
    A("s_mul_i32 s10, s15, 5120")
    A("v_lshlrev_b32 v200, 4, v17")
    A("v_mul_u32_u24 v201, 1280, v18"); A("v_add3_u32 v201, v201, v200, s10")
    for i in range(5): A(f"global_load_dwordx4 v[{160+4*i}:{163+4*i}], v201, s[{U}:{U+1}] offset:{256*i}")
    for i in range(5): A(f"global_load_dwordx4 v[{180+4*i}:{183+4*i}], v200, s[{GW}:{GW+1}] offset:{256*i}")
    A("s_branch k_mpre_ret")
    A.label(lw)
    A(f"s_and_b32 s10, s{R4}, 1"); A("s_lshl_b32 s10, s10, 5"); A(f"s_add_u32 s10, s10, s{RR}")
    A("s_mul_i32 s10, s10, 3072"); A(f"s_mul_i32 s11, s{C2}, 1536"); A("s_add_u32 s10, s10, s11")
    A("s_mul_i32 s11, s9, %d" % (5*196608)); A("s_add_u32 s10, s10, s11")
    A("v_min_u32 v201, 59, v0")
    A("v_mul_u32_u24 v202, 43, v201"); A("v_lshrrev_b32 v202, 9, v202")
    A("v_mul_u32_u24 v202, %d, v202" % (196608 - 1536))
    A("v_lshl_add_u32 v201, v201, 7, v202"); A("v_add_u32 v201, s10, v201")
    A(f"s_cmp_ge_u32 s{R4}, 2")
    A(f"s_cselect_b32 s10, s{WU}, s{WG}"); A(f"s_cselect_b32 s11, s{WU+1}, s{WG+1}")
    A("global_load_dword v204, v201, s[10:11]")
    A("s_min_u32 s10, s2, 239"); A("s_mul_i32 s11, s10, 2731"); A("s_lshr_b32 s11, s11, 16")
    A("s_mul_i32 s12, s11, 24"); A("s_sub_u32 s10, s10, s12")
    A("s_mul_i32 s10, s10, 81920"); A("s_lshl_b32 s11, s11, 7"); A("s_add_u32 s10, s10, s11")
    A("s_mul_i32 s11, s9, 40960"); A("s_add_u32 s10, s10, s11")
    A("v_lshrrev_b32 v201, 1, v0"); A("v_mul_u32_u24 v201, %d, v201" % (1280 if OPT["wdt"] else 0)); A("v_add_u32 v201, s10, v201")
    A(f"global_load_dword v205, v201, s[{WD}:{WD+1}]")
    A("s_branch k_mpre_ret")

def kgive(A):
    A("v_add_u32 v2, s19, v1")
    A("s_nop 4")
    for i in range(3): A(f"ds_write_b128 v2, v[{20+4*i}:{23+4*i}] offset:{1024*i}")
    A(f"s_lshl_b32 s30, s{LCH}, 2"); A(f"s_add_u32 s30, s30, {FLG+80}")
    A("v_mov_b32 v3, s30"); A("v_mov_b32 v4, 1")
    A("s_mov_b64 exec, 1"); A("ds_add_u32 v3, v4"); A("s_mov_b64 exec, -1")

def mwave(A):
    sW = 3
    A("s_lshr_b32 s8, s3, 1")
    A("v_mov_b32 v11, v18")
    A("s_mov_b32 s16, 0x%x" % ((-2*STG) & 0xffffffff)); A(f"s_mov_b32 s17, {STG}")
    A("v_and_b32 v8, 31, v0"); A("v_lshrrev_b32 v9, 5, v0")
    A("v_bfe_u32 v10, v0, 1, 3"); A("v_xor_b32 v10, v10, v9")
    A("v_lshlrev_b32 v14, 7, v8"); A("s_lshl_b32 s10, s8, 13"); A("v_add_u32 v14, s10, v14")
    for ks in range(4):
        A(f"v_xor_b32 v12, {2*ks}, v10"); A(f"v_lshl_add_u32 v{2+ks}, v12, 4, v14")
    A("v_bfe_u32 v12, v0, 2, 2"); A("v_lshl_add_u32 v12, v9, 3, v12"); A("v_mul_u32_u24 v6, 192, v12")
    A("v_and_b32 v12, 3, v0"); A("v_lshl_add_u32 v6, v12, 3, v6")
    A("v_bfe_u32 v12, v0, 4, 1"); A(f"v_mul_u32_u24 v12, {UB-GB}, v12"); A("v_add_u32 v6, v6, v12")
    A("s_mul_i32 s10, s9, 96"); A(f"s_add_u32 s10, s10, {GB}"); A("v_add_u32 v6, s10, v6")
    A(f"v_mov_b32 v7, {FLG}")
    A("s_lshl_b32 s10, s3, 2"); A(f"s_add_u32 s10, s10, {FLG+64}"); A("v_mov_b32 v8, s10")
    for i in range(48): A(f"v_pk_mov_b32 {P2(ACC1+2*i)}, 0, 0")
    A("s_mov_b32 s24, 0x%x" % NLOG2E); A("s_mov_b32 s25, 0x%x" % NLOG2E)
    ng = A.newlabel("ng")
    A("s_cmp_ge_u32 s3, 2"); A(f"s_cbranch_scc1 {ng}")
    A("v_mov_b32 v10, 0"); A("v_mov_b32 v12, 0")
    A("s_waitcnt vmcnt(0)")
    for k in range(20): A(f"v_dot2c_f32_bf16 v{10 if k % 2 == 0 else 12}, v{160+k}, v{180+k}")
    A("s_nop 2")
    A("v_add_f32 v10, v10, v12")
    for sh in (8, 4, 2, 1):
        A("s_nop 1"); A(f"v_add_f32_dpp v10, v10, v10 row_ror:{sh} row_mask:0xf bank_mask:0xf")
    A.label(ng)
    F = [16, 36]
    def reads(ks, f):
        r = []; b = F[f]
        r.append(f"ds_read_b128 v[{b}:{b+3}], v{2+ks}")
        for nt in range(3):
            o = b + 8 + 4*nt
            r.append(f"ds_read_b64_tr_b16 v[{o}:{o+1}], v6 offset:{3072*ks + 32*nt}")
            r.append(f"ds_read_b64_tr_b16 v[{o+2}:{o+3}], v6 offset:{3072*ks + 32*nt + 768}")
        r.append(f"ds_read_b128 v[{b+4}:{b+7}], v{2+ks} offset:4096")
        return r
    def mfmas(f):
        b = F[f]; r = []
        for a in range(2):
            for nt in range(3):
                c = ACC1 + 16*(3*a+nt)
                r.append(f"v_mfma_f32_32x32x16_bf16 v[{c}:{c+15}], v[{b+8+4*nt}:{b+11+4*nt}], v[{b+4*a}:{b+4*a+3}], v[{c}:{c+15}]")
        return r
    A("s_mov_b32 s11, 0"); A("s_mov_b32 s12, 0")
    stamp(A, 12)
    lds_wait(A, 7, 13, "v_cmp_ne_u32 vcc, 0")
    stamp(A, 2)
    PL = {0: [(1, 5), (1, 6)], 1: [(1, 7)], 2: [(2, 0)], 3: [(2, 1)], 4: [(2, 2), (2, 3)], 5: [(2, 4)]}
    need = {0: (0, 1, 2), 1: (3, 4), 2: (5, 6), 3: (7,), 4: (), 5: ()}
    lp = A.newlabel("g1"); ex_ = A.newlabel("g1x"); slow = A.newlabel("g1s"); back = A.newlabel("g1b")
    def step_items(k, last):
        ks = k % 4; it = []; ms = mfmas(k % 2)
        for g in range(6):
            it.append(("m", ms[g], [(k, r) for r in need[g]]))
            if ks == 2 and g == 2 and not last:
                it.append(("w", "flag"))
                it += [("x", "v_cmp_ne_u32 vcc, 0, v13"), ("x", f"s_cbranch_vccnz {slow}"), ("x", f"{back}:")]
            if ks == 3 and g == OPT["barg"]:
                it.append(("w", (k, 7))); it.append(("x", "s_barrier"))
            for (so, ri) in PL[g]:
                if last and ks + so > 3: continue
                it.append(("r", reads((k+so) % 4, (k+so) % 2)[ri], (k+so, ri)))
            ex = []
            if ks == 0 and g == 2: ex = ["s_add_u32 s12, s12, 1", "s_cmp_eq_u32 s12, 3", "s_cselect_b32 s13, s16, s17"]
            if ks == 0 and g == 3: ex = ["s_cselect_b32 s12, 0, s12", "v_add_u32 v2, s13, v2"]
            if ks == 0 and g == 5: ex = ["v_add_u32 v3, s13, v3", "v_add_u32 v7, 4, v7"]
            if ks == 1 and g == 2: ex = ["s_add_u32 s11, s11, 1"]
            if ks == 1 and g == 3: ex = ["v_add_u32 v4, s13, v4"]
            if ks == 1 and g == 5: ex = ["s_cmp_eq_u32 s11, 10"]
            if ks == 3 and g == 3 and not last: ex = ["v_add_u32 v5, s13, v5"]
            if ks == 2 and g == 1 and not last: ex = ["v_add_u32 v6, s13, v6"]
            for e in ex: it.append(("x", e))
            if ks == 1 and g == 3: it.append(("r", "ds_read_b32 v13, v7", "flag"))
        return it
    def emit(items, q):
        for i in items:
            tags = i[2] if i[0] == "m" else [i[1]] if i[0] == "w" else []
            if tags:
                pos = max(len(q["ops"]) - 1 - q["ops"][::-1].index(t) for t in tags)
                if pos >= q["done"]:
                    n = min(14, len(q["ops"]) - 1 - pos)
                    q["done"] = len(q["ops"]) - n
                    A(f"s_waitcnt lgkmcnt({n})")
            if i[0] in ("r", "l"): q["ops"].append(i[2] if i[0] == "r" else None)
            if i[0] != "w": A(i[1])
    q = dict(ops=[], done=0)
    emit([("r", reads(0, 0)[r], (0, r)) for r in range(8)] + [("r", reads(1, 1)[ri], (1, ri)) for g in range(6) for (so, ri) in PL[g] if so == 2], q)
    A.label(lp)
    for k in range(2): emit(step_items(k, False), q)
    A(f"s_cbranch_scc1 {ex_}")
    q2 = copy.deepcopy(q)
    for k in range(2, 4): emit(step_items(k, False), q)
    A(f"s_branch {lp}")
    A.label(slow)
    lds_wait(A, 7, 13, "v_cmp_ne_u32 vcc, 0")
    A(f"s_branch {back}")
    A.label(ex_)
    for k in range(2, 4): emit(step_items(k, True), q2)
    stamp(A, 3)
    A("v_and_b32 v2, 15, v0"); A("v_lshlrev_b32 v2, 4, v2"); A("v_lshl_add_u32 v2, v9, 8, v2")
    A("v_bfe_u32 v4, v0, 4, 1"); A("v_lshl_add_u32 v2, v4, 10, v2")
    A("s_lshl_b32 s18, s4, 1"); A("s_add_u32 s18, s18, s8")
    A("s_mul_i32 s26, s18, 196608"); A("s_mul_i32 s27, s5, 6"); A("s_mul_i32 s28, s9, 3"); A("s_add_u32 s27, s27, s28")
    for nt in range(3):
        A(f"s_add_u32 s28, s27, {nt}")
        A("s_lshr_b32 s29, s28, 1"); A("s_lshl_b32 s29, s29, 12")
        A("s_and_b32 s28, s28, 1"); A("s_lshl_b32 s28, s28, 9"); A("s_add_u32 s29, s29, s28")
        A(f"s_add_u32 s{11+nt}, s29, s26")
    A("s_mul_i32 s28, s3, 10240"); A("v_add_u32 v5, s28, v1"); A(f"v_add_u32 v6, {2*STG}, v5")
    AF = [160+4*i for i in range(20)] + [56, 60, 144, 148, 152, 156, 240, 244, 248, 252]
    def areads(step):
        st = 10 + step // 2; slot = st % 3; r = []
        for dt in range(5):
            o = AF[5*(step % 6) + dt]
            off = (STG if slot == 1 else 0) + 5120*(step % 2) + 1024*dt
            va = 6 if slot == 2 else 5
            r.append(f"ds_read_b128 v[{o}:{o+3}], v{va} offset:{off}")
        return r
    def pull(st):
        lds_wait(A, 7, 13, "v_cmp_ne_u32 vcc, 0", off=4*(st-10))
        for x in areads(2*(st-10)) + areads(2*(st-10)+1): A(x)
        A(f"v_mov_b32 v12, {st-9}")
        A("ds_write_b32 v8, v12")
    E = 16
    for a in range(2):
        for nt in range(3):
            g = ACC1 + 16*(3*a+nt); u = g + 8
            o = 32 + 4*((3*a+nt) % 4)
            if 3*a+nt == OPT["pullpos"]: pull(10)
            if True:
                for i in range(4): A(f"v_pk_mul_f32 {P2(E+2*i)}, {P2(g+2*i)}, s[24:25]")
                for i in range(8): A(f"v_exp_f32 v{E+i}, v{E+i}")
                for i in range(4): A(f"v_pk_add_f32 {P2(E+2*i)}, {P2(E+2*i)}, 1.0 op_sel_hi:[1,0]")
                for i in range(8): A(f"v_rcp_f32 v{E+i}, v{E+i}")
                for i in range(4): A(f"v_pk_mul_f32 {P2(g+2*i)}, {P2(g+2*i)}, {P2(u+2*i)}")
                for i in range(4): A(f"v_pk_mul_f32 {P2(g+2*i)}, {P2(g+2*i)}, {P2(E+2*i)}")
            else:
                for i in range(8): A(f"v_mul_f32 v{E+i}, s24, v{g+i}")
                for i in range(8): A(f"v_exp_f32 v{E+i}, v{E+i}")
                for i in range(8): A(f"v_add_f32 v{E+i}, 1.0, v{E+i}")
                for i in range(8): A(f"v_rcp_f32 v{E+i}, v{E+i}")
                for i in range(8): A(f"v_mul_f32 v{g+i}, v{g+i}, v{u+i}")
                for i in range(8): A(f"v_mul_f32 v{g+i}, v{g+i}, v{E+i}")
            for i in range(4): A(f"v_cvt_pk_bf16_f32 v{o+i}, v{g+2*i}, v{g+2*i+1}")
            A(f"buffer_store_dwordx4 v[{o}:{o+3}], v2, s[20:23], s{11+nt} offen offset:{2048*a} sc1")
            if 3*a+nt == 5: A("s_barrier")
    stamp(A, 4)
    if OPT["pullpos"] == 6: pull(10)
    tag_get(A, 14)
    A("s_lshl_b32 s26, s18, 2"); A("s_lshr_b32 s27, s5, 2"); A("s_add_u32 s26, s26, s27"); A("s_lshl_b32 s26, s26, 8")
    A("s_and_b32 s27, s5, 3"); A("s_lshl_b32 s27, s27, 1"); A("s_add_u32 s27, s27, s9"); A("s_lshl_b32 s27, s27, 2")
    A("s_add_u32 s26, s26, s27"); A(f"s_add_u32 s26, s26, {HF_OFF}")
    flag_store(A, "s26", 14)
    stamp(A, 5)
    ng = A.newlabel("ng")
    A("s_cmp_ge_u32 s3, 2"); A(f"s_cbranch_scc1 {ng}")
    A("v_mul_f32 v10, s24, v10"); A("v_exp_f32 v10, v10")
    A("v_lshlrev_b32 v12, 3, v11")
    A("v_add_f32 v10, 1.0, v10"); A("v_rcp_f32 v10, v10")
    A(f"v_mov_b32 v11, s{TAG}")
    A("s_lshl_b32 s26, s15, 5"); A(f"s_add_u32 s26, s26, {GG_OFF}")
    A("s_mov_b32 exec_lo, 0x10001"); A("s_mov_b32 exec_hi, 0x10001")
    A("buffer_store_dwordx2 v[10:11], v12, s[20:23], s26 offen sc1")
    A("s_mov_b64 exec, -1")
    A.label(ng)
    pull(11); pull(12)
    stamp(A, 6)
    A("s_lshl_b32 s26, s6, 2"); A("s_add_u32 s26, s26, s3"); A("s_lshl_b32 s26, s26, 8"); A(f"s_add_u32 s26, s26, {HF_OFF}")
    A("s_mul_i32 s27, s6, 196608"); A("s_mul_i32 s28, s3, 49152"); A("s_add_u32 s27, s27, s28")
    spoll(A, "s26", 8, OPT["psleep"])
    stamp(A, 7)
    ACC = 64; HR = 8
    def hloads(k):
        b = HR + 16*(k % 3)
        return [f"buffer_load_dwordx4 v[{b+4*i}:{b+4*i+3}], v1, s[20:23], s27 offen offset:{1024*i} sc1" for i in range(4)] + ["s_add_u32 s27, s27, 4096"]
    for k in range(3):
        for x in hloads(k): A(x)
    for k in range(12):
        A(f"s_waitcnt vmcnt({4*min(2, 11-k)})" + (" lgkmcnt(0)" if k in (0, 11) else " lgkmcnt(5)" if k >= 6 else ""))
        if k in (0, 6): stamp(A, 8 + k//6)
        b = HR + 16*(k % 3)
        for dt in range(5):
            for mt in range(4):
                c = ACC + 4*(4*dt+mt); af = AF[5*(k % 6) + dt]
                src = "0" if k == 0 else f"v[{c}:{c+3}]"
                A(f"v_mfma_f32_16x16x32_bf16 v[{c}:{c+3}], v[{af}:{af+3}], v[{b+4*mt}:{b+4*mt+3}], {src}")
        if k + 3 < 12:
            for x in hloads(k+3): A(x)
        j = k + 2
        if 6 <= j < 12:
            if j % 2 == 0: lds_wait(A, 7, 3, "v_cmp_ne_u32 vcc, 0", off=4*(j//2))
            for x in areads(j): A(x)
    stamp(A, 10)
    A("v_and_b32 v4, 15, v0"); A("v_lshrrev_b32 v5, 4, v0")
    A(f"v_mul_u32_u24 v3, {PR}, v4"); A("v_lshl_add_u32 v3, v5, 4, v3")
    A("s_mul_i32 s26, s3, 10240"); A("v_add_u32 v3, s26, v3")
    J = STG - 30*PR
    A("v_cmp_lt_u32 vcc, 13, v4"); A(f"v_mov_b32 v5, {J}"); A(f"v_add_u32 v2, {32*PR + J}, v3")
    A("v_cndmask_b32 v6, 0, v5, vcc"); A("v_cmp_lt_u32 vcc, 11, v4"); A("v_add_u32 v6, v6, v3"); A("s_nop 0")
    A("v_cndmask_b32 v7, 0, v5, vcc"); A("v_add_u32 v7, v7, v2")
    for dt in range(5):
        for mt in range(4):
            c = ACC + 4*(4*dt+mt)
            A(f"ds_write_b128 v{(3,6,2,7)[mt]}, v[{c}:{c+3}] offset:{16*(mt&1)*PR + 64*dt}")

def post(A):
    A(f"s_mov_b32 s16, s{OUT}"); A(f"s_mov_b32 s17, s{OUT+1}")
    A("s_mov_b32 s18, 2621440"); A("s_mov_b32 s19, 0x20000")
    A("s_mov_b32 s30, 0xffff0000")
    A("s_mul_i32 s24, s6, 81920"); A("s_mul_i32 s25, s7, 160"); A("s_add_u32 s24, s24, s25")
    A("s_lshl_b32 s27, s3, 6")
    lp = A.newlabel("po")
    A("s_mov_b32 s28, 0")
    A.label(lp)
    A("v_add_u32 v8, s27, v0")
    A("v_mul_u32_u24 v9, 6554, v8"); A("v_lshrrev_b32 v9, 16, v9")
    A("v_mul_u32_u24 v10, 10, v9"); A("v_sub_u32 v10, v8, v10")
    A("v_mul_u32_u24 v11, 1280, v9"); A("v_lshl_add_u32 v11, v10, 4, v11")
    A(f"v_mul_u32_u24 v12, {PR}, v9"); A("v_lshl_add_u32 v12, v10, 5, v12")
    A("v_mul_u32_u24 v13, 137, v9"); A("v_lshrrev_b32 v13, 12, v13"); A(f"v_mul_u32_u24 v13, {STG - 30*PR}, v13"); A("v_add_u32 v12, v12, v13")
    A("v_mul_u32_u24 v13, 86, v10"); A("v_lshrrev_b32 v13, 8, v13")
    A(f"v_mul_u32_u24 v14, {HS+48}, v10")
    A(f"v_mul_u32_u24 v13, {3*(HS+48) - A2S}, v13")
    A("v_sub_u32 v14, v14, v13"); A("v_lshl_add_u32 v14, v9, 4, v14"); A(f"v_add_u32 v14, {HB + A2O}, v14")
    A("v_lshlrev_b32 v15, 2, v9"); A(f"v_add_u32 v15, {HB + OMG}, v15")
    nb = A.newlabel("po")
    A("s_cmp_lg_u32 s28, 0"); A(f"s_cbranch_scc1 {nb}")
    A("s_waitcnt lgkmcnt(0)")
    A("s_barrier")
    stamp(A, 11)
    A.label(nb)
    Pq = 16; Y = 48
    A(f"ds_read_b128 v[{Y}:{Y+3}], v14")
    A("ds_read_b32 v60, v15")
    for w in range(4):
        A(f"ds_read_b128 v[{Pq+8*w}:{Pq+8*w+3}], v12 offset:{w*10240}")
        A(f"ds_read_b128 v[{Pq+8*w+4}:{Pq+8*w+7}], v12 offset:{w*10240+16}")
    A("s_waitcnt lgkmcnt(8)")
    for k in range(4):
        A(f"v_lshlrev_b32 v{52+2*k}, 16, v{Y+k}"); A(f"v_and_b32 v{53+2*k}, s30, v{Y+k}")
    A("s_waitcnt lgkmcnt(4)")
    for k in range(4): A(f"v_pk_add_f32 {P2(Pq+2*k)}, {P2(Pq+2*k)}, {P2(Pq+8+2*k)}")
    A("s_waitcnt lgkmcnt(0)")
    for k in range(4): A(f"v_pk_add_f32 {P2(Pq+16+2*k)}, {P2(Pq+16+2*k)}, {P2(Pq+24+2*k)}")
    for k in range(4): A(f"v_pk_add_f32 {P2(Pq+2*k)}, {P2(Pq+2*k)}, {P2(Pq+16+2*k)}")
    for k in range(4): A(f"v_pk_fma_f32 {P2(Pq+2*k)}, {P2(Pq+2*k)}, v[60:61], {P2(52+2*k)} op_sel_hi:[1,0,1]")
    for k in range(4): A(f"v_cvt_pk_bf16_f32 v{64+k}, v{Pq+2*k}, v{Pq+2*k+1}")
    A("buffer_store_dwordx4 v[64:67], v11, s[16:19], s24 offen")
    A("s_add_u32 s27, s27, 512"); A("s_mov_b32 s28, 1")
    A("s_cmp_lt_u32 s27, 640"); A(f"s_cbranch_scc1 {lp}")

def pcmul(A, d, s, m):
    A(f"v_pk_mul_f32 {P2(d)}, {P2(s)}, {P2(m)} op_sel:[0,0] op_sel_hi:[1,0]")
    A(f"v_pk_fma_f32 {P2(d)}, {P2(s)}, {P2(m)}, {P2(d)} op_sel:[1,1,0] op_sel_hi:[0,1,1] neg_lo:[0,1,0]")

def kpass(A):
    RAW = 4; FA = 16; ACC = 20
    A(f"s_mul_i32 s28, s{CH}, 384"); A("s_lshl_b32 s29, s17, 7"); A("s_add_u32 s28, s28, s29")
    A("v_lshlrev_b32 v1, 1, v0"); A("v_add_u32 v1, s28, v1")
    A(f"s_lshr_b32 s28, s{CH}, 1"); A("s_lshl_b32 s28, s28, 2")
    A("s_mov_b32 m0, s19")
    A("v_and_b32 v17, 15, v0"); A("v_lshrrev_b32 v18, 4, v0")
    A("s_waitcnt lgkmcnt(0)")
    for a in range(4): A(f"global_load_ushort v{RAW+a}, v1, s[{LOGA+2*a}:{LOGA+2*a+1}]")
    A(f"s_load_dword s30, s[{LOGDT}:{LOGDT+1}], s28")
    A(f"s_load_dword s31, s[{DSK}:{DSK+1}], s28")
    A("s_cmp_lt_u32 s14, 2"); A("s_cbranch_scc1 k_one")
    for a in range(4): A(f"global_load_ushort v{RAW+4+a}, v1, s[{LOGA+2*a}:{LOGA+2*a+1}] offset:128")
    A.label("k_one")
    A("s_barrier")
    A("s_cmp_lt_u32 s3, 4"); A("s_cbranch_scc1 k_mpre")
    A.label("k_mpre_ret")
    A("s_mov_b32 s24, 0x%x" % LOG2E); A("s_mov_b32 s25, 0x%x" % LOG2E_LO); A("s_mov_b32 s26, 0x%x" % LN2)
    A("s_mov_b32 s27, 0x41000000"); A("s_mov_b32 s28, 0x43000000")
    A(f"v_mul_u32_u24 v{FA}, {RS}, v17"); A(f"v_lshl_add_u32 v{FA}, v18, 4, v{FA}"); A(f"v_add_u32 v{FA}, s19, v{FA}")
    for i in range(6): A(f"v_pk_mov_b32 {P2(ACC+2*i)}, 0, 0")
    DT, DT2, NDT, ONE = 32, 34, 33, 36
    A(f"v_mov_b32 v{ONE}, 0x3f80")
    A("v_lshlrev_b32 v1, 4, v0")
    A("s_waitcnt lgkmcnt(0)")
    A(f"s_bitcmp1_b32 s{CH}, 0")
    A("s_cselect_b32 s29, 0, 16")
    A("s_lshl_b32 s30, s30, s29"); A("s_and_b32 s30, s30, 0xffff0000")
    A("s_lshl_b32 s31, s31, s29"); A("s_and_b32 s31, s31, 0xffff0000")
    A("s_cmp_eq_u32 s17, 0"); A("s_cselect_b32 s31, s31, 0")
    A("s_cmp_lt_u32 s3, 4")
    A("v_mov_b32 v3, s30")
    A(f"v_writelane_b32 v{ACC}, s31, 0")
    A("v_mul_f32 v38, s24, v3"); A("v_fma_f32 v39, v3, s24, -v38"); A("v_fmac_f32 v39, s25, v3")
    A("v_exp_f32 v38, v38"); A("v_mul_f32 v39, s26, v39"); A("v_fmac_f32 v38, v38, v39")
    A("v_cvt_pk_bf16_f32 v38, v38, v38")
    A(f"v_lshlrev_b32 v{DT}, 16, v38")
    A(f"v_add_f32 v{DT2}, v{DT}, v{DT}"); A(f"v_sub_f32 v{NDT}, 0, v{DT}")
    A("s_cbranch_scc1 k_w10")
    A("s_waitcnt vmcnt(0)")
    A.label("k_w10")
    A("s_waitcnt vmcnt(10)")
    A("s_cmp_lt_u32 s3, 2"); A("s_cbranch_scc1 k_w1")
    A("s_waitcnt vmcnt(2)")
    A.label("k_w1")
    stamp(A, 1)
    A.label("k_loop")
    A1 = 38; TH = 39
    Z, W, Y = 40, 42, 44
    P = 48; T = 64; QA, QB = 70, 72; PK = 74
    QF, PF = 80, 96
    A(f"v_lshlrev_b32 v{T}, 16, v{RAW}"); A(f"v_mul_f32 v{T}, s24, v{T}")
    A(f"v_lshlrev_b32 v{TH}, 16, v{RAW+1}")
    A(f"v_exp_f32 v{T}, v{T}")
    A(f"v_lshlrev_b32 v{P}, 16, v{RAW+2}"); A(f"v_lshlrev_b32 v{P+1}, 16, v{RAW+3}")
    A(f"v_cvt_pk_bf16_f32 v{T}, v{T}, v{T}")
    A(f"v_mul_f32 v{TH}, v{TH}, v{DT}")
    A(f"v_lshlrev_b32 v{T}, 16, v{T}")
    A(f"v_mul_f32 v{TH}, 0.15915494, v{TH}")
    A(f"v_mul_f32 v{A1}, v{T}, v{NDT}")
    A(f"v_pk_mul_f32 {P2(P)}, {P2(P)}, {P2(DT2)} op_sel_hi:[1,0]")
    A(f"v_mul_f32 v{A1}, s24, v{A1}")
    A(f"v_pk_mov_b32 {P2(RAW)}, {P2(RAW+4)}, {P2(RAW+4)} op_sel:[0,1]"); A(f"v_pk_mov_b32 {P2(RAW+2)}, {P2(RAW+6)}, {P2(RAW+6)} op_sel:[0,1]")
    for (R, sc) in ((W, "s27"), (Z, None), (Y, "s28")):
        if sc:
            A(f"v_mul_f32 v{T}, {sc}, v{A1}"); A(f"v_mul_f32 v{T+1}, {sc}, v{TH}")
            A(f"v_exp_f32 v{T}, v{T}"); A(f"v_fract_f32 v{T+1}, v{T+1}")
        else:
            A(f"v_exp_f32 v{T}, v{A1}"); A(f"v_fract_f32 v{T+1}, v{TH}")
        A(f"v_cos_f32 v{R}, v{T+1}"); A(f"v_sin_f32 v{R+1}, v{T+1}")
        A("s_nop 0")
        A(f"v_pk_mul_f32 {P2(R)}, {P2(R)}, {P2(T)} op_sel_hi:[1,0]" + (" neg_hi:[1,0]" if R == W else ""))
    pkc = [0]
    def emit(row, r):
        k = PK + pkc[0] % 4; pkc[0] += 1
        A(f"v_cvt_pk_bf16_f32 v{k}, v{r}, v{r+1}")
        A(f"ds_write_addtid_b32 v{k} offset:{row*RS}")
    def rd(base):
        for t in range(4): A(f"ds_read_b128 v[{base+4*t}:{base+4*t+3}], v{FA} offset:{64*t}")
    def mm(acc, base, n):
        A(f"s_waitcnt lgkmcnt({n})")
        for t in range(4):
            A(f"v_mfma_f32_16x16x32_bf16 v[{acc}:{acc+3}], v[{base+4*t}:{base+4*t+3}], v[{QF+4*t}:{QF+4*t+3}], v[{acc}:{acc+3}]")
    A(f"ds_write_addtid_b32 v{ONE} offset:0")
    qs = W
    for j in range(2, 17):
        dst = QA if j % 2 == 0 else QB
        if j < 16: pcmul(A, dst, qs, W)
        emit(j-1, qs)
        b = j - 1
        if b <= 7: pcmul(A, P+2*b, P+2*b-2, Z)
        qs = dst
    rd(QF)
    loc = {}
    for b in range(0, 8, 2):
        emit(b, P+2*b); emit(b+1, P+2*b+2)
        pcmul(A, T, P+2*b+2, Y); pcmul(A, P+2*b+2, P+2*b, Y)
        emit(8+b+1, T); emit(8+b, P+2*b+2)
        loc[b] = P+2*b+2
    rd(PF)
    def step(b, row):
        s = loc[b]; d = P+2*b if s == P+2*b+2 else P+2*b+2
        pcmul(A, d, s, Y); loc[b] = d
        return (row, d)
    for a in range(2):
        es = [step(b, 4*a + b//2) for b in (0, 2, 4, 6)]
        for e in es: emit(*e)
    for a in range(4):
        es = [step(b, 8 + 2*a + b//4) for b in (0, 4)]
        for e in es: emit(*e)
    rd(PF+16)
    e = step(0, 0)
    for a in range(1, 10):
        n = step(0, a) if a < 9 else None
        emit(*e); e = n
    rd(PF+32)
    mm(ACC, PF, 8); mm(ACC+4, PF+16, 4); mm(ACC+8, PF+32, 0)
    A("s_sub_u32 s14, s14, 1"); A("s_cmp_lg_u32 s14, 0"); A("s_cbranch_scc1 k_loop")
    A("s_cmp_lt_u32 s3, 4"); A("s_cbranch_scc1 k_give")

def kaddr(A):
    sL = REG
    A(f"v_add_u32 v39, s{sL}, v1")
    EB = C0
    A("v_lshlrev_b32 v40, 4, v17"); A(f"v_add_u32 v40, s{sL}, v40")
    A("v_lshl_add_u32 v41, v18, 10, v40"); A(f"v_add_u32 v41, {EB + 2048 - 8}, v41")
    A("v_and_b32 v42, 1, v0"); A("v_lshlrev_b32 v42, 3, v42"); A("v_sub_u32 v42, v41, v42")
    A("v_lshl_add_u32 v43, v18, 9, v40"); A("v_lshl_add_u32 v44, v18, 8, v40")
    A("v_lshrrev_b32 v45, 1, v18"); A("v_lshl_add_u32 v45, v45, 8, v40")
    A("v_and_b32 v46, 1, v18"); A("v_lshl_add_u32 v45, v46, 3, v45")
    A("v_mov_b32 v66, 0"); A("v_mov_b32 v67, 0")
    A("v_and_b32 v46, 7, v0"); A("v_lshlrev_b32 v46, 2, v46"); A(f"v_add_u32 v46, s{sL}, v46")
    A("v_lshlrev_b32 v47, 3, v0"); A(f"v_add_u32 v47, s{sL}, v47")

def kexp(A):
    ACC = 20; sL = REG; EB = C0
    K0, K1, K2 = ACC, ACC+4, ACC+8
    for r in range(4):
        A(f"v_cvt_pk_bf16_f32 v{48+2*r}, v{K2+r}, v{K2+r}"); A(f"v_cvt_pk_bf16_f32 v{49+2*r}, v{K2+r}, v{K2+r}")
    for r in range(4): A(f"ds_write2_b64 v41, v[{48+2*r}:{49+2*r}], v[{48+2*r}:{49+2*r}] offset0:{32*r} offset1:{32*r+1}")
    for r in range(4): A(f"ds_write_b16 v42, v{48+2*r} offset:{256*r+16}")
    c = {}
    for n, (x, y) in enumerate([(0,0),(0,1),(1,1),(2,2),(2,3),(3,3),(1,2)]):
        c[(x,y)] = 56+n
        A(f"v_cvt_pk_bf16_f32 v{56+n}, v{K1+x}, v{K1+y}")
    A(f"v_cvt_pk_bf16_f32 v64, v{K0}, v{K0+1}"); A(f"v_cvt_pk_bf16_f32 v65, v{K0+2}, v{K0+3}")
    A("s_mov_b32 exec_lo, 0")
    o = (EB - 4) // 4
    A(f"ds_write2_b32 v43, v{c[0,0]}, v{c[0,0]} offset0:{o} offset1:{o+1}")
    A(f"ds_write2_b32 v43, v{c[0,1]}, v{c[1,1]} offset0:{o+2} offset1:{o+3}")
    A(f"ds_write2_b32 v43, v{c[2,2]}, v{c[2,2]} offset0:{o+64} offset1:{o+65}")
    A(f"ds_write2_b32 v43, v{c[2,3]}, v{c[3,3]} offset0:{o+66} offset1:{o+67}")
    A("s_mov_b32 exec_lo, -1"); A("s_mov_b32 exec_hi, 0")
    o = EB + 512
    A(f"ds_write_b16 v44, v{c[0,0]} offset:{o-2}")
    A(f"ds_write2_b32 v44, v{c[0,0]}, v{c[1,2]} offset0:{o//4} offset1:{o//4+1}")
    A(f"ds_write_b32 v44, v{c[2,2]} offset:{o+8}")
    A(f"ds_write_b16 v44, v{c[3,3]} offset:{o+12}")
    A("s_mov_b64 exec, -1")
    A(f"ds_write_b64 v45, v[64:65] offset:{EB}")
    A(f"ds_write_b32 v46, v66 offset:{C0-32}"); A(f"ds_write_b32 v46, v66 offset:{C1-32}")
    A(f"ds_write_b64 v47, v[66:67] offset:{CU+4096}")
    for i in range(4):
        A(f"ds_read_b128 v[{80+8*i}:{83+8*i}], v39 offset:{EB+1024*i}")
        A(f"ds_read_b32 v{72+i}, v39 offset:{EB+1024*i-4}")
    A("s_waitcnt lgkmcnt(0)")
    for i in range(4):
        b = 80+8*i
        A(f"v_alignbit_b32 v{b+4}, v{b}, v{72+i}, 16")
        for k in range(1, 4): A(f"v_alignbit_b32 v{b+4+k}, v{b+k}, v{b+k-1}, 16")
        A(f"ds_write_b128 v39, v[{b+4}:{b+7}] offset:{C1+1024*i}")

def caddr(A):
    sL = REG
    A("v_lshlrev_b32 v2, 4, v18"); A("v_lshlrev_b32 v6, 5, v17"); A("v_sub_u32 v2, v2, v6")
    A(f"v_add_u32 v2, {CU + 4064 - 3584}, v2"); A(f"v_add_u32 v2, s{sL}, v2")
    A("v_sub_u32 v6, 15, v17"); A("v_and_b32 v7, 1, v6"); A("v_sub_u32 v6, v6, v7")
    A(f"v_mul_u32_u24 v3, {C1-C0}, v7"); A("v_lshl_add_u32 v3, v18, 4, v3")
    A("v_lshlrev_b32 v6, 1, v6"); A("v_sub_u32 v3, v3, v6")
    A(f"v_add_u32 v3, {C0}, v3"); A(f"v_add_u32 v3, s{sL}, v3")
    for i in range(1, 4): A(f"v_add_u32 v{3+i}, {1024*i}, v3")
    A("v_lshlrev_b32 v7, 5, v17"); A("v_lshrrev_b32 v8, 1, v18"); A("v_lshl_add_u32 v7, v8, 4, v7")
    A("v_and_b32 v8, 1, v18"); A("v_lshl_add_u32 v7, v8, 9, v7")

def conv(A):
    Y = 8
    for i in range(16): A(f"v_pk_mov_b32 {P2(Y+2*i)}, 0, 0")
    stamp(A, 9)
    A("s_barrier")
    A("s_waitcnt vmcnt(0)")
    stamp(A, 4)
    TB = [40, 104]
    def reads(f, extra):
        b = TB[f]; r = []
        for q in range(8):
            r.append(f"ds_read_b128 v[{b+32+4*q}:{b+35+4*q}], v2 offset:{512*(7-q) + extra}")
            o = (512*(q & 1) + extra) // 4
            r.append(f"ds_read2_b32 v[{b+4*q}:{b+4*q+1}], v{3+q//2} offset0:{o} offset1:{o+1}")
            r.append(f"ds_read2_b32 v[{b+4*q+2}:{b+4*q+3}], v{3+q//2} offset0:{o+2} offset1:{o+3}")
        return r
    def mfmas(f):
        b = TB[f]; r = []
        for q in range(8):
            for tau in range(8-q):
                t = q + tau
                r.append(f"v_mfma_f32_16x16x32_bf16 v[{Y+4*t}:{Y+4*t+3}], v[{b+4*q}:{b+4*q+3}], v[{b+32+4*tau}:{b+35+4*tau}], v[{Y+4*t}:{Y+4*t+3}]")
        return r
    def inter(ms, rs):
        for i, m in enumerate(ms):
            A(m)
            if i < len(rs): A(rs[i])
    if OPT["cprio"]: A(f"s_setprio {OPT['cprio']}")
    for x in reads(0, 0): A(x)
    A("s_mov_b32 s28, 0")
    lp = A.newlabel("cv")
    A.label(lp)
    A("s_waitcnt lgkmcnt(0)")
    inter(mfmas(0), reads(1, 64))
    A("s_add_u32 s28, s28, 1")
    A("s_waitcnt lgkmcnt(0)")
    inter(mfmas(1), reads(0, 128))
    for r in range(2, 7): A(f"v_add_u32 v{r}, 128, v{r}")
    A("s_cmp_lt_u32 s28, 4"); A(f"s_cbranch_scc1 {lp}")
    stamp(A, 5)
    A(f"s_add_u32 s30, s31, {YT_OFF}")
    A(f"s_lshr_b32 s28, s{CH}, 3"); A("s_lshl_b32 s28, s28, 8"); A(f"s_and_b32 s29, s{CH}, 7"); A("s_lshl_b32 s29, s29, 2")
    A("s_add_u32 s28, s28, s29"); A(f"s_add_u32 s28, s28, {YF_OFF}")
    A("s_waitcnt lgkmcnt(0)")
    A("s_nop 1")
    O = 40
    for t in range(8):
        A(f"v_cvt_pk_bf16_f32 v{O+2*t}, v{Y+4*t}, v{Y+4*t+1}"); A(f"v_cvt_pk_bf16_f32 v{O+2*t+1}, v{Y+4*t+2}, v{Y+4*t+3}")
    A("s_nop 1")
    for p in range(4):
        A(f"v_permlane16_swap_b32 v{O+4*p}, v{O+4*p+2}"); A(f"v_permlane16_swap_b32 v{O+4*p+1}, v{O+4*p+3}")
    A("s_nop 1")
    for p in range(4): A(f"buffer_store_dwordx4 v[{O+4*p}:{O+4*p+3}], v7, s[20:23], s30 offen offset:{1024*p} sc1")
    A("s_setprio 0")
    flag_store(A, "s28", 2, 8, 80*256)
    stamp(A, 6)

def hwave(A):
    ACC = 20; sL = REG
    def when(cmp, neg=False):
        l = A.newlabel("if"); A(cmp); A(f"s_cbranch_scc{1 if neg else 0} {l}"); return l
    stamp(A, 2)
    A(f"s_add_u32 s8, s2, 256"); A(f"s_cmp_eq_u32 s{LCH}, 0"); A("s_cselect_b32 s8, s2, s8")
    A(f"s_cmp_eq_u32 s{LCH}, 1"); A("s_cselect_b32 s8, 999, s8"); A("s_cselect_b32 s9, s2, 999")
    A(f"s_lshl_b32 s30, s{LCH}, 2"); A(f"s_add_u32 s30, s30, {FLG+80}"); A("v_mov_b32 v40, s30")
    A(f"v_add_u32 v39, s{sL}, v1")
    A("v_lshrrev_b32 v2, 3, v0"); A("v_and_b32 v3, 7, v0"); A("v_mul_u32_u24 v4, 1280, v2")
    A("s_mov_b32 s14, 2621440"); A("s_mov_b32 s15, 0x20000")
    lds_wait(A, 40, 41, "v_cmp_gt_i32 vcc, s16")
    for i in range(3): A(f"ds_read_b128 v[{80+4*i}:{83+4*i}], v39 offset:{SS + 1024*i}")
    for i in range(3): A(f"ds_read_b128 v[{92+4*i}:{95+4*i}], v39 offset:{2*SS + 1024*i}")
    A("s_waitcnt lgkmcnt(0)")
    def dma8(regs):
        for h in range(2):
            A(f"s_add_u32 m0, s{sL}, {4096*h}"); A(f"s_add_u32 s27, s26, {40960*h}")
            for i in range(4): A(f"buffer_load_dwordx4 v{regs[4*h+i]}, s[12:15], s27 offen offset:{1024*i} lds")
    l = when("s_cmp_lt_u32 s8, 320")
    A(f"s_mov_b32 s12, s{U}"); A(f"s_mov_b32 s13, s{U+1}")
    for i in range(8):
        A(f"v_xor_b32 v5, {i}, v3"); A(f"v_lshl_add_u32 v{72+i}, v5, 4, v4")
        if i % 4: A(f"v_add_u32 v{72+i}, {(10240-1024)*(i % 4)}, v{72+i}")
    A("s_and_b32 s24, s8, 31"); A("s_lshr_b32 s25, s8, 5")
    A("s_mul_i32 s26, s24, 81920"); A("s_lshl_b32 s27, s25, 7"); A("s_add_u32 s26, s26, s27")
    dma8([72+i for i in range(8)])
    A.label(l)
    l = when("s_cmp_ge_u32 s16, 1")
    for i in range(12): A(f"v_add_f32 v{ACC+i}, v{ACC+i}, v{80+i}")
    A.label(l)
    l = when("s_cmp_ge_u32 s16, 2")
    for i in range(12): A(f"v_add_f32 v{ACC+i}, v{ACC+i}, v{92+i}")
    A.label(l)
    A("s_mul_i32 s19, s18, 3072"); A(f"s_add_u32 s19, s19, {KP_OFF}")
    l = when("s_cmp_eq_u32 s16, 0")
    for i in range(3): A(f"buffer_store_dwordx4 v[{ACC+4*i}:{ACC+4*i+3}], v1, s[20:23], s19 offen offset:{1024*i} sc1")
    A.label(l)
    A("s_min_u32 s10, s2, 239"); A("s_mul_i32 s11, s10, 2731"); A("s_lshr_b32 s11, s11, 16")
    A("s_mul_i32 s28, s11, 24"); A("s_sub_u32 s10, s10, s28")
    A("s_mul_i32 s31, s10, 81920"); A("s_lshl_b32 s28, s11, 7"); A("s_add_u32 s31, s31, s28")
    l = when("s_cmp_lt_u32 s9, 240")
    A(f"s_mov_b32 s12, s{WD}"); A(f"s_mov_b32 s13, s{WD+1}"); A("s_mov_b32 s14, 1966080")
    A("v_lshl_add_u32 v72, v3, 4, v4")
    for i in range(1, 4): A(f"v_add_u32 v{72+i}, {(10240-1024)*i}, v72")
    A("s_mov_b32 s26, s31")
    dma8([72+i % 4 for i in range(8)])
    A.label(l)
    A("s_barrier")
    A("s_barrier")
    l = when("s_cmp_lt_u32 s8, 320")
    A("v_xor_b32 v5, v2, v3"); A("v_lshlrev_b32 v5, 4, v5"); A("v_lshl_add_u32 v5, v3, 10, v5"); A(f"v_add_u32 v5, s{sL}, v5")
    A("v_lshlrev_b32 v6, 15, v2"); A("v_lshlrev_b32 v7, 4, v3"); A("v_sub_u32 v6, v6, v7"); A("v_add_u32 v6, 4080, v6")
    A("s_mov_b32 s28, 0x05040100"); A("s_mov_b32 s29, 0x07060302")
    A("s_lshl_b32 s30, s25, 18"); A("s_lshl_b32 s27, s24, 7"); A("s_sub_u32 s30, s30, s27"); A(f"s_add_u32 s30, s30, {UR_OFF}")
    A("s_waitcnt vmcnt(0)")
    for e in range(8): A(f"ds_read_b128 v[{80+4*e}:{83+4*e}], v5 offset:{128*e}")
    A("s_waitcnt lgkmcnt(0)")
    for i in range(8):
        o = 112 + 4*i
        for p in range(4):
            lo = 80 + 4*(7-2*p) + i//2; hi = 80 + 4*(6-2*p) + i//2
            A(f"v_perm_b32 v{o+p}, v{hi}, v{lo}, s{28 + (i&1)}")
        A(f"buffer_store_dwordx4 v[{o}:{o+3}], v6, s[20:23], s30 offen sc1")
        A("s_add_u32 s30, s30, 4096")
    A.label(l)
    l = when("s_cmp_lt_u32 s9, 240")
    A("v_lshrrev_b32 v5, 5, v0"); A("v_lshlrev_b32 v5, 11, v5"); A("v_bfe_u32 v6, v0, 2, 3"); A("v_lshl_add_u32 v5, v6, 7, v5")
    A("v_and_b32 v6, 3, v0"); A("v_lshl_add_u32 v5, v6, 3, v5"); A(f"v_add_u32 v5, s{sL}, v5")
    A("s_waitcnt vmcnt(0)")
    for dtl in range(4):
        for sg in range(2):
            o = 80 + 4*(2*dtl+sg)
            A(f"ds_read_b64_tr_b16 v[{o}:{o+1}], v5 offset:{4096*sg + 32*dtl}")
            A(f"ds_read_b64_tr_b16 v[{o+2}:{o+3}], v5 offset:{4096*sg + 32*dtl + 1024}")
    for dtl in range(4):
        A("s_lshl_b32 s26, s11, 2"); A(f"s_add_u32 s26, s26, {dtl}")
        A("s_mul_i32 s27, s26, 52429"); A("s_lshr_b32 s27, s27, 18"); A("s_mul_i32 s28, s27, 235"); A("s_add_u32 s26, s26, s28")
        A("s_mul_i32 s28, s10, 10"); A("s_add_u32 s26, s26, s28"); A("s_lshl_b32 s26, s26, 10"); A(f"s_add_u32 s26, s26, {WDF_OFF}")
        A("s_add_u32 s27, s26, 5120")
        if dtl == 0: A("s_waitcnt lgkmcnt(0)")
        o = 80 + 8*dtl
        A(f"buffer_store_dwordx4 v[{o}:{o+3}], v1, s[20:23], s26 offen sc1")
        A(f"buffer_store_dwordx4 v[{o+4}:{o+7}], v1, s[20:23], s27 offen sc1")
    A.label(l)
    A("s_barrier")
    tag_get(A, 40)
    A("s_barrier")
    A("s_barrier")
    l = when("s_cmp_lt_u32 s8, 320")
    A("s_lshl_b32 s30, s25, 8"); A("s_lshl_b32 s27, s24, 2"); A("s_add_u32 s30, s30, s27"); A(f"s_add_u32 s30, s30, {UF_OFF}")
    flag_store(A, "s30", 40)
    A.label(l)
    A("s_lshl_b32 s18, s18, 7"); A(f"s_add_u32 s18, s18, {KF_OFF}")
    l = when("s_cmp_eq_u32 s16, 0")
    flag_store(A, "s18", 40)
    A.label(l)
    l = when("s_cmp_lt_u32 s9, 240")
    A("s_lshl_b32 s26, s11, 8"); A("s_lshl_b32 s27, s10, 2"); A("s_add_u32 s26, s26, s27"); A(f"s_add_u32 s26, s26, {WF_OFF}")
    flag_store(A, "s26", 70)
    A.label(l)
    caddr(A); kaddr(A)
    A("v_and_b32 v68, 31, v0"); A("v_lshlrev_b32 v68, 2, v68")
    A(f"s_lshr_b32 s29, s{CH}, 6"); A("s_lshl_b32 s29, s29, 8"); A(f"s_add_u32 s29, s29, {UF_OFF}")
    A(f"s_lshl_b32 s31, s{CH}, 12"); A(f"s_add_u32 s30, s31, {UR_OFF}")
    A(f"s_add_u32 m0, s{sL}, {CU}")
    A("s_barrier")
    A("s_barrier")
    A("buffer_load_dword v69, v68, s[20:23], s29 offen sc1")
    l = when(f"s_cmp_eq_u32 s{RMT}, 1")
    A("v_mov_b32 v70, 0")
    A("buffer_load_dword v71, v70, s[20:23], s18 offen sc1")
    A.label(l)
    A("s_barrier")
    l = when(f"s_cmp_eq_u32 s{LCH}, 0")
    A("v_min_u32 v70, 47, v0"); A("v_cmp_lt_u32 vcc, 23, v70"); A("v_lshlrev_b32 v70, 2, v70"); A("v_add_u32 v71, 160, v70")
    A("v_cndmask_b32 v70, v70, v71, vcc")
    A("s_mul_i32 s26, s7, 5"); A("s_lshr_b32 s26, s26, 2"); A("s_lshl_b32 s26, s26, 8"); A(f"s_add_u32 s26, s26, {WF_OFF}")
    A("buffer_load_dword v71, v70, s[20:23], s26 offen sc1")
    A.label(l)
    A("s_barrier")
    def check(va, so, vd):
        ok = A.newlabel("ok")
        A(f"v_cmp_ne_u32 vcc, s{TAG}, v{vd}"); A(f"s_cbranch_vccz {ok}")
        poll(A, va, so, vd)
        A.label(ok)
    A("s_waitcnt vmcnt(0)")
    l = when("s_cmp_eq_u32 s17, 0")
    check(68, "s29", 69)
    for i in range(4): A(f"buffer_load_dwordx4 v1, s[20:23], s30 offen offset:{1024*i} sc1 lds")
    A.label(l)
    l = when(f"s_cmp_eq_u32 s{RMT}, 1")
    check(70, "s18", 71)
    for i in range(3): A(f"buffer_load_dwordx4 v[{80+4*i}:{83+4*i}], v1, s[20:23], s19 offen offset:{1024*i} sc1")
    A.label(l)
    l = when(f"s_cmp_eq_u32 s{LCH}, 0")
    check(70, "s26", 71)
    A.label(l)
    stamp(A, 3)
    A("s_barrier")
    l = when(f"s_cmp_eq_u32 s{RMT}, 1")
    A("s_waitcnt vmcnt(0)")
    for i in range(12): A(f"v_add_f32 v{ACC+i}, v{ACC+i}, v{80+i}")
    A.label(l)
    l = when("s_cmp_eq_u32 s16, 0")
    A("s_barrier")
    A(f"v_mov_b32 v8, {FLG}")
    lds_wait(A, 8, 9, "v_cmp_ne_u32 vcc, 0", off=60, sleep=4)
    A("s_branch k_fin")
    A.label(l)
    kexp(A)
    conv(A)

def finpre(A):
    sH = LCH; sL = REG
    A("v_lshlrev_b32 v1, 3, v0")
    A("s_lshl_b32 s24, s6, 9"); A(f"s_add_u32 s24, s24, {GG_OFF}")
    A("s_mul_i32 s26, s7, 2560"); A("s_lshr_b32 s25, s6, 2"); A("s_mul_i32 s25, s25, 20480"); A("s_add_u32 s26, s26, s25"); A(f"s_add_u32 s26, s26, {YF_OFF}")
    A("v_and_b32 v3, 7, v0")
    A("v_lshrrev_b32 v8, 3, v0"); A("v_lshlrev_b32 v8, 12, v8"); A("v_lshl_add_u32 v8, v3, 4, v8")
    A("s_mul_i32 s27, s7, 327680"); A("s_lshl_b32 s28, s6, 7"); A("s_add_u32 s27, s27, s28"); A(f"s_add_u32 s27, s27, {YT_OFF}")
    if OPT["ysleep"]: A(f"s_sleep {OPT['ysleep']}")
    A(f"s_lshl_b32 s29, s{sH}, 8"); A("s_add_u32 s12, s29, s26"); A("s_add_u32 s13, s12, 768"); A("s_add_u32 s14, s12, 1536")
    A(f"s_add_u32 s15, s26, {9*256}"); A(f"s_cmp_eq_u32 s{sH}, 0"); A("s_cselect_b32 s15, s15, s14")
    lp = A.newlabel("yl"); dn = A.newlabel("yl")
    A("s_mov_b32 s62, 0")
    A.label(lp)
    D = [32, 40, 48, 4]
    for i in range(3): A(f"s_load_dwordx8 s[{D[i]}:{D[i]+7}], s[20:21], s{12+i} glc")
    A("s_load_dwordx4 s[8:11], s[20:21], s15 glc"); A("s_load_dwordx4 s[16:19], s[20:21], s15 offset:16 glc")
    A("s_addk_i32 s62, 1")
    A("s_waitcnt lgkmcnt(0)")
    regs = list(range(32, 56)) + [8, 9, 10, 11, 16, 17, 18, 19]
    A("s_and_b64 s[28:29], s[32:33], s[34:35]"); A("s_or_b64 s[30:31], s[32:33], s[34:35]")
    for r in regs[4::2]:
        A(f"s_and_b64 s[28:29], s[28:29], s[{r}:{r+1}]"); A(f"s_or_b64 s[30:31], s[30:31], s[{r}:{r+1}]")
    A("s_and_b32 s28, s28, s29"); A("s_or_b32 s30, s30, s31")
    A(f"s_xor_b32 s28, s28, s{TAG}"); A(f"s_xor_b32 s30, s30, s{TAG}"); A("s_or_b32 s28, s28, s30")
    A(f"s_cbranch_scc0 {dn}")
    A(f"s_sleep {OPT['psleep']}")
    A(f"s_cmpk_lt_u32 s62, 0x{SPIN:x}"); A(f"s_cbranch_scc1 {lp}")
    A.label(dn)
    for i in range(4):
        A(f"s_add_u32 s28, s{sH}, {3*i}")
        if i == 3: A(f"s_cmp_lg_u32 s{sH}, 0"); A(f"s_cbranch_scc1 {dn}x")
        A("s_lshl_b32 s28, s28, 15"); A(f"s_add_u32 m0, s{sL}, {1024*i}"); A("s_add_u32 s28, s28, s27")
        A("buffer_load_dwordx4 v8, s[20:23], s28 offen sc1 lds")
    A.label(dn + "x")
    stamp(A, 7)
    A("v_bfe_u32 v2, v0, 2, 2"); A("v_lshlrev_b32 v2, 7, v2")
    A("v_lshrrev_b32 v3, 4, v0"); A("v_lshl_add_u32 v2, v3, 5, v2")
    A("v_and_b32 v3, 3, v0"); A("v_lshl_add_u32 v2, v3, 3, v2"); A(f"v_add_u32 v2, s{sL}, v2")
    A(f"s_mul_i32 s28, s{sH}, 48"); A(f"s_add_u32 s28, s28, s{sL}")
    A("v_lshlrev_b32 v3, 4, v0"); A("v_add_u32 v3, s28, v3")
    A("v_lshlrev_b32 v7, 2, v0"); A(f"v_add_u32 v7, s{sL}, v7")
    A("s_mov_b32 s30, 0xffff0000")
    poll(A, 1, "s24", 4, 2, tagreg=5)
    for i in range(4):
        A(f"ds_read_b64_tr_b16 v[{8+4*i}:{9+4*i}], v2 offset:{1024*i}")
        A(f"ds_read_b64_tr_b16 v[{10+4*i}:{11+4*i}], v2 offset:{1024*i+512}")
    A("v_sub_f32 v6, 1.0, v4")
    A(f"ds_write_b32 v7, v6 offset:{OMG}")
    A("s_waitcnt lgkmcnt(1)")
    for i in range(4):
        for k in range(4):
            r = 8+4*i+k
            A(f"v_lshlrev_b32 v24, 16, v{r}"); A(f"v_and_b32 v25, s30, v{r}")
            A("v_mul_f32 v24, v24, v4"); A("v_mul_f32 v25, v25, v4")
            A(f"v_cvt_pk_bf16_f32 v{r}, v24, v25")
        A(f"ds_write_b128 v3, v[{8+4*i}:{11+4*i}] offset:{A2O + A2S*i}")
    stamp(A, 8)

def build():
    A = Asm()
    A.raw(f"; @launch grid=(256,1,1) block=(512,1,1) lds={LDS_BYTES}")
    A.raw('.amdgcn_target "amdgcn-amd-amdhsa--gfx950"')
    kernel_begin(A, NAME)
    A("s_cmp_ge_u32 s2, 256"); A("s_cbranch_scc1 k_end")
    stamp_begin(A)
    if OPT["probe"] >= 0:
        A("s_memrealtime s[64:65]"); A("s_waitcnt lgkmcnt(0)"); A("s_mov_b32 s66, s64")
    A("s_load_dwordx16 s[32:47], s[0:1], 0")
    A("s_load_dwordx8 s[48:55], s[0:1], 64")
    A("s_load_dwordx4 s[56:59], s[0:1], 96")
    A("s_load_dwordx2 s[20:21], s[0:1], 112")
    A("v_lshrrev_b32 v1, 6, v0"); A("v_and_b32 v0, 63, v0"); A("v_readfirstlane_b32 s3, v1")
    A(f"s_and_b32 s{XCD}, s2, 7"); A(f"s_lshr_b32 s{RR}, s2, 3"); A(f"s_lshr_b32 s{R4}, s{XCD}, 1"); A(f"s_and_b32 s{C2}, s{XCD}, 1")
    A(f"s_lshl_b32 s4, s{R4}, 2"); A(f"s_and_b32 s5, s{RR}, 3"); A("s_add_u32 s4, s4, s5")
    A(f"s_lshl_b32 s5, s{C2}, 3"); A(f"s_lshr_b32 s6, s{RR}, 2"); A("s_add_u32 s5, s5, s6")
    A(f"s_lshl_b32 s6, s{R4}, 3"); A(f"s_and_b32 s7, s{RR}, 7"); A("s_add_u32 s6, s6, s7")
    A(f"s_lshl_b32 s7, s{C2}, 2"); A(f"s_lshr_b32 s8, s{RR}, 3"); A("s_add_u32 s7, s7, s8")
    A("s_mov_b32 s22, 0x%x" % WS_BYTES); A("s_mov_b32 s23, 0x20000")
    A("v_and_b32 v8, 31, v0"); A("v_cmp_gt_u32 vcc, 16, v8"); A("v_lshlrev_b32 v8, 2, v8"); A(f"v_add_u32 v8, {FLG}, v8")
    A("v_cndmask_b32 v9, 0, 1, vcc")
    A("ds_write_b32 v8, v9")
    A("s_cmp_eq_u32 s3, 4"); A("s_cbranch_scc1 k_l")
    ev = [(0,1,1,2),(1,1,1,1),(1,2,2,1),(2,1,1,1),(0,0,0,0),(0,0,0,1),(1,0,0,2),(2,0,0,1)]
    od = [(0,1,1,1),(0,2,2,1),(1,1,1,1),(1,2,2,1),(0,0,0,0),(0,0,0,2),(1,0,0,2),(2,0,2,0)]
    enc = lambda t: sum((r | (sl << 2) | (p << 4) | (c << 6)) << (8*i) for i, (r, sl, p, c) in enumerate(t))
    A(f"s_lshr_b32 s18, s{RR}, 1"); A("s_lshl_b32 s18, s18, 3"); A(f"s_add_u32 s18, s18, s{XCD}")
    A(f"s_mov_b32 s10, 0x{enc(ev) & 0xffffffff:x}"); A(f"s_mov_b32 s11, 0x{enc(ev) >> 32:x}")
    A(f"s_and_b32 s8, s{RR}, 1")
    A(f"s_cselect_b32 s10, 0x{enc(od) & 0xffffffff:x}, s10"); A(f"s_cselect_b32 s11, 0x{enc(od) >> 32:x}, s11")
    A("s_lshl_b32 s9, s3, 3"); A("s_lshr_b64 s[10:11], s[10:11], s9")
    A(f"s_and_b32 s{LCH}, s10, 3"); A("s_bfe_u32 s9, s10, 0x20002"); A("s_bfe_u32 s17, s10, 0x20004"); A("s_bfe_u32 s16, s10, 0x20006")
    A(f"s_mul_i32 s{REG}, s{LCH}, {HS}"); A(f"s_add_u32 s{REG}, s{REG}, {HB}")
    A(f"s_mul_i32 s19, s9, {SS}"); A(f"s_add_u32 s19, s19, s{REG}")
    A("s_cmp_lt_u32 s3, 4"); A("s_cselect_b32 s14, s16, 1")
    A("s_mul_i32 s9, s8, 3"); A(f"s_add_u32 s9, s9, s{LCH}")
    A(f"s_cmp_eq_u32 s{LCH}, 2"); A("s_cselect_b32 s9, 2, s9"); A("s_cselect_b32 s13, s16, 0")
    A(f"s_mul_i32 s{CH}, s18, 5"); A(f"s_add_u32 s{CH}, s{CH}, s9")
    kpass(A)
    A(f"s_mov_b32 s{RMT}, s13")
    hwave(A)
    A.label("k_fin")
    finpre(A)
    A("s_branch k_post")
    A.label("k_mpre")
    mpre(A)
    A.label("k_l")
    loader(A)
    A("s_branch k_post")
    A.label("k_give")
    kgive(A)
    mwave(A)
    A.label("k_post")
    post(A)
    stamp_end(A, 0)
    if OPT["probe"] >= 0:
        A("s_waitcnt vmcnt(0)")
        stamp(A, 13)
        A("s_cmp_lg_u32 s3, 1"); A("s_cbranch_scc1 k_end")
        A("s_cmp_lg_u32 s2, 77"); A("s_cbranch_scc1 k_end")
        A("s_sub_u32 s70, s66, s64"); A("s_mul_i32 s70, s70, 4"); A("s_min_u32 s70, s70, 20000")
        A("s_memrealtime s[68:69]"); A("s_waitcnt lgkmcnt(0)")
        A.label("k_pr")
        A("s_memrealtime s[72:73]"); A("s_waitcnt lgkmcnt(0)")
        A("s_sub_u32 s72, s72, s68"); A("s_cmp_lt_u32 s72, s70"); A("s_cbranch_scc1 k_pr")
    A.label("k_end")
    A("s_endpgm")
    kernel_desc(A, NAME, 256, 102)
    return re.sub(r"^    (\w+:)$", r"\1", A.text(), flags=re.M)

if __name__ == "__main__":
    gen1.DIAG = "--diag" in sys.argv
    for a in sys.argv[2:]:
        if "=" in a:
            k, v = a.split("="); OPT[k] = int(v)
    open(sys.argv[1], "w").write(build())
```

```python
import sys, re, copy
from asmlib import *
import gen1
from gen1 import LOG2E, NLOG2E, LOG2E_LO, LN2, stamp, stamp_begin, stamp_end
NAME = "gated_mix__ssm_conv_s4d__swiglu_ffn__prompt_kernel"
OPT = dict(pwg=77, ost='', t2pos=0, bark=0, tord=0, hdiag=0, mprio=2, ctouch=1, epk=0, barks=2, kdepth=1, stpre=0, ldiag=0, probe=-1, thr=0, thr2=28, cprio=1, psleep=3, sleep=1, barg=3, wb=(0,0), ysleep=8, pulls=(2,4,5), bart=2, rot=0)
H_OFF = 0
UR_OFF = 6291456
YT_OFF = UR_OFF + 2621440
GG_OFF = YT_OFF + 2621440
HF_OFF = GG_OFF + 16384
UF_OFF = HF_OFF + 128*256
YF_OFF = UF_OFF + 16*256
WF_OFF = YF_OFF + 8*80*256
KF_OFF = WF_OFF + 16*256
KP_OFF = KF_OFF + 128*128
LAST_OFF = KP_OFF + 128*3072
WDF_OFF = 12 << 20
WS_BYTES = 1 << 25
GB = 16384; UB = GB + 12288 + 32; STG = 41024
FLG = 3*STG
HB = FLG + 128; HS = 13536
LDS_BYTES = HB + 3*HS
RS = 272; SS = 16*RS
C0 = 64; C1 = C0 + 4160; CU = 8448
A2O = 4096; A2S = 1072; OMG = 8704
TB2 = 2*STG; GXO = TB2 + 24576; GWO = TB2 + 34816
PR = 336; PW = 64*PR
SPIN = 0x3000
U, LOGA, LOGDT, DSK, WG, WU, WD, GW, OUT, DBG = 32, 34, 42, 44, 48, 50, 52, 54, 56, 58
XCD, RR, R4, C2, LCH, REG = 96, 97, 98, 99, 100, 101
CH, TAG, RMT = 60, 61, 47
_stamp0 = stamp
def stamp(A, i, real=False):
    if OPT["hdiag"] and i != 1: return
    _stamp0(A, i, real)
    if OPT["probe"] == i:
        A("s_memrealtime s[66:67]"); A("s_waitcnt lgkmcnt(0)")
def P2(b): return f"v[{b}:{b+1}]"

def lds_wait(A, vaddr, vtmp, cond, off=0, sleep=0):
    l = A.newlabel("lw"); d = A.newlabel("lw")
    A("s_mov_b32 s62, 0")
    A.label(l)
    A(f"ds_read_b32 v{vtmp}, v{vaddr} offset:{off}")
    A("s_addk_i32 s62, 1")
    A("s_waitcnt lgkmcnt(0)")
    A(f"{cond}, v{vtmp}")
    A(f"s_cbranch_vccz {d}")
    if sleep: A(f"s_sleep {sleep}")
    A("s_cmpk_lt_u32 s62, 0x7000")
    A(f"s_cbranch_scc1 {l}")
    A.label(d)

def poll(A, vaddr, soff, vdst, n=1, tagreg=None):
    l = A.newlabel("pl"); d = A.newlabel("pl")
    tagreg = vdst if tagreg is None else tagreg
    A("s_mov_b32 s62, 0")
    A.label(l)
    A(f"buffer_load_dword{'x2' if n == 2 else ''} {vr(vdst, n)}, v{vaddr}, s[20:23], {soff} offen sc1")
    A("s_addk_i32 s62, 1")
    A("s_waitcnt vmcnt(0)")
    A(f"v_cmp_ne_u32 vcc, s{TAG}, v{tagreg}")
    A(f"s_cbranch_vccz {d}")
    A(f"s_sleep {OPT['psleep']}")
    A(f"s_cmpk_lt_u32 s62, 0x{SPIN:x}")
    A(f"s_cbranch_scc1 {l}")
    A.label(d)

def flag_store(A, soff, vt, rep=1, stride=0):
    A(f"v_mov_b32 v{vt}, s{TAG}")
    A(f"v_mul_u32_u24 v{vt+1}, {stride}, v0")
    A(f"s_mov_b64 exec, {(1 << rep) - 1}")
    A("s_waitcnt vmcnt(0)")
    A(f"buffer_store_dword v{vt}, v{vt+1}, s[20:23], {soff} offen sc1")
    A("s_mov_b64 exec, -1")

def tag_get(A, vt):
    l = A.newlabel("tg"); d = A.newlabel("tg")
    A(f"s_load_dword s{TAG}, s[{DBG}:{DBG+1}], 0")
    A("s_mov_b32 s62, 0")
    A("s_waitcnt lgkmcnt(0)")
    A.label(l)
    A(f"s_cmp_lg_u32 s{TAG}, 0"); A(f"s_cbranch_scc1 {d}")
    A(f"v_mov_b32 v{vt}, 0")
    A(f"global_load_dword v{vt}, v{vt}, s[{DBG}:{DBG+1}] sc1")
    A("s_addk_i32 s62, 1")
    A("s_waitcnt vmcnt(0)")
    A(f"v_readfirstlane_b32 s{TAG}, v{vt}")
    A(f"s_sleep {OPT['psleep']}")
    A(f"s_cmpk_lt_u32 s62, 0x{SPIN:x}"); A(f"s_cbranch_scc1 {l}")
    A.label(d)

def spoll(A, soff, n, sleep):
    l = A.newlabel("sp"); d = A.newlabel("sp")
    A("s_mov_b32 s62, 0")
    A.label(l)
    A(f"s_load_dword{'x8 s[36:43]' if n == 8 else ' s36'}, s[20:21], {soff} glc")
    A("s_addk_i32 s62, 1")
    A("s_waitcnt lgkmcnt(0)")
    if n == 8:
        A("s_min_u32 s44, s36, s37"); A("s_max_u32 s45, s36, s37")
        for i in range(2, 8):
            A(f"s_min_u32 s44, s44, s{36+i}"); A(f"s_max_u32 s45, s45, s{36+i}")
        A(f"s_xor_b32 s44, s44, s{TAG}"); A(f"s_xor_b32 s45, s45, s{TAG}"); A("s_or_b32 s44, s44, s45")
    else:
        A(f"s_cmp_lg_u32 s36, s{TAG}")
    A(f"s_cbranch_scc0 {d}")
    A(f"s_sleep {sleep}")
    A(f"s_cmpk_lt_u32 s62, 0x{SPIN:x}"); A(f"s_cbranch_scc1 {l}")
    A.label(d)

def loader(A):
    if OPT["ctouch"]:
        A("s_getpc_b64 s[24:25]")
        A.label("k_pc")
        A(f"s_sub_u32 s24, s24, k_pc - {NAME}"); A("s_subb_u32 s25, s25, 0")
        A(f"v_lshlrev_b32 v8, 5, v0"); A(f"v_add_u32 v8, s{RR}, v8"); A("v_lshlrev_b32 v8, 7, v8")
        A(f"v_min_u32 v8, k_last - {NAME}, v8")
        A("v_mov_b32 v23, s25"); A("v_add_co_u32 v22, vcc, s24, v8"); A("v_addc_co_u32 v23, vcc, 0, v23, vcc")
        A("s_mov_b64 exec, 0xff")
        A("global_load_dword v24, v[22:23], off")
        A("s_mov_b64 exec, -1")
    A("v_lshrrev_b32 v8, 3, v0"); A("v_mul_u32_u24 v8, 1280, v8")
    A("v_lshrrev_b32 v9, 4, v0"); A("v_and_b32 v10, 7, v0"); A("v_xor_b32 v9, v9, v10")
    A("v_lshl_add_u32 v2, v9, 4, v8")
    A("v_xor_b32 v9, 4, v9"); A("v_lshl_add_u32 v3, v9, 4, v8")
    A(f"v_add_u32 v3, {10240-1024}, v3"); A(f"v_add_u32 v4, {20480-2048}, v2"); A(f"v_add_u32 v5, {20480-2048}, v3")
    for i in range(3):
        A(f"v_add_u32 v9, {64*i}, v0"); A("v_mul_u32_u24 v10, 5462, v9"); A("v_lshrrev_b32 v10, 16, v10")
        A("v_mul_u32_u24 v10, 2880, v10"); A(f"v_lshl_add_u32 v{11+i}, v0, 4, v10")
    A("v_lshlrev_b32 v1, 4, v0")
    A("v_mov_b32 v14, 0x7ffffff0")
    A("v_and_b32 v15, 3, v0"); A("v_lshlrev_b32 v15, 2, v15"); A(f"v_add_u32 v15, {FLG+112}, v15")
    A("s_mul_i32 s26, s4, 163840"); A("s_mul_i32 s27, s5, 192")
    A("s_mov_b32 s29, 0"); A("s_mov_b32 s30, 0"); A(f"s_mov_b32 s31, {FLG}")
    A("s_mov_b32 s10, 2621440"); A("s_mov_b32 s11, 0x20000")
    A("s_mov_b32 s14, 1966080"); A("s_mov_b32 s15, 0x20000")
    A("s_mov_b32 s18, 1966080"); A("s_mov_b32 s19, 0x20000")
    A("v_and_b32 v10, 7, v0"); A("v_lshl_add_u32 v16, v10, 4, v8")
    A(f"s_and_b32 s24, s{R4}, 1"); A("s_lshl_b32 s24, s24, 5"); A(f"s_add_u32 s24, s24, s{RR}")
    A("s_mul_i32 s24, s24, 3072"); A(f"s_mul_i32 s25, s{C2}, 1536"); A("s_add_u32 s24, s24, s25")
    A("v_min_u32 v18, 59, v0"); A("v_mul_u32_u24 v19, 43, v18"); A("v_lshrrev_b32 v19, 9, v19")
    A("v_mul_u32_u24 v19, %d, v19" % (196608 - 1536)); A("v_lshl_add_u32 v18, v18, 7, v19"); A("v_add_u32 v18, s24, v18")
    A("v_add_u32 v19, %d, v18" % (5*196608))
    if OPT["rot"]:
        A("s_add_u32 s24, s4, s5"); A("s_and_b32 s24, s24, 1"); A("s_mul_i32 s60, s24, 5")
        A("s_lshl_b32 s25, s60, 7"); A("s_add_u32 s26, s26, s25"); A("s_mul_i32 s25, s60, 196608"); A("s_add_u32 s27, s27, s25")
    A("s_waitcnt lgkmcnt(0)")
    A("s_and_b32 s24, s2, 31"); A("s_lshr_b32 s25, s2, 5")
    A("s_mul_i32 s44, s24, 81920"); A("s_lshl_b32 s25, s25, 7"); A("s_add_u32 s44, s44, s25")
    A("s_min_u32 s24, s2, 239"); A("s_mul_i32 s25, s24, 2731"); A("s_lshr_b32 s25, s25, 16")
    A("s_mul_i32 s28, s25, 24"); A("s_sub_u32 s24, s24, s28")
    A("s_mul_i32 s45, s24, 81920"); A("s_lshl_b32 s25, s25, 7"); A("s_add_u32 s45, s45, s25"); A("s_sub_u32 s45, s45, 10240")
    A(f"s_lshl_b32 s46, s{XCD}, 5"); A(f"s_add_u32 s46, s46, s{RR}"); A("s_mul_i32 s46, s46, 10240")
    A("s_barrier")
    A(f"s_mov_b32 s8, s{U}"); A(f"s_mov_b32 s9, s{U+1}")
    A(f"s_mov_b32 s12, s{WG}"); A(f"s_mov_b32 s13, s{WG+1}"); A(f"s_mov_b32 s16, s{WU}"); A(f"s_mov_b32 s17, s{WU+1}")
    A(f"s_cmp_ge_u32 s{R4}, 2"); A(f"s_cselect_b32 s24, s{WU}, s{WG}"); A(f"s_cselect_b32 s25, s{WU+1}, s{WG+1}")
    stamp(A, 1)
    A("global_load_dword v20, v18, s[24:25]")
    A(f"s_mov_b32 s36, s{WD}"); A(f"s_mov_b32 s37, s{WD+1}"); A("s_mov_b32 s38, 1966080"); A("s_mov_b32 s39, 0x20000")
    A(f"s_mov_b32 s40, s{GW}"); A(f"s_mov_b32 s41, s{GW+1}"); A("s_mov_b32 s42, 1280"); A("s_mov_b32 s43, 0x20000")
    def utile(h):
        for i in range(8):
            A(f"s_mov_b32 m0, {TB2 + 8192*h + 1024*i}"); A(f"v_xor_b32 v17, {16*i}, v16")
            A("buffer_load_dwordx4 v17, s[8:11], s44 offen lds"); A("s_add_u32 s44, s44, 10240")
    def tasks():
        utile(0)
        for i in range(8):
            A(f"s_mov_b32 m0, {TB2 + 8192 + 1024*i}"); A("s_add_u32 s45, s45, 10240")
            A("buffer_load_dwordx4 v16, s[36:39], s45 offen lds")
        n2 = A.newlabel("n2")
        A("s_cmp_ge_u32 s2, 64"); A(f"s_cbranch_scc1 {n2}")
        A(f"s_sub_u32 s44, s44, {81920 - 1024}")
        utile(2)
        A.label(n2)
        for (o, n) in ((0, 4), (4096, 4), (8192, 2)):
            A(f"s_mov_b32 m0, {GXO + o}"); A(f"s_add_u32 s28, s46, {o}")
            for i in range(n): A(f"buffer_load_dwordx4 v1, s[8:11], s28 offen offset:{1024*i} lds")
        A(f"s_mov_b32 m0, {GWO}"); A("s_nop 0")
        for i in range(2): A(f"buffer_load_dwordx4 v1, s[40:43], 0 offen offset:{1024*i} lds")
        A(f"s_mov_b32 m0, {FLG+104}"); A("s_mov_b64 exec, 1")
        A("buffer_load_dword v14, s[8:11], 0 offen lds")
        A("s_mov_b64 exec, -1")
    if OPT["bark"]:
        A("v_mul_u32_u24 v17, 1280, v0"); A("s_add_u32 s28, s45, 10240")
        A("buffer_load_dword v25, v17, s[8:11], s44 offen")
        A("global_load_dword v21, v19, s[24:25]")
        A("buffer_load_dword v26, v17, s[36:39], s28 offen")
        n3 = A.newlabel("n3")
        A("s_cmp_ge_u32 s2, 64"); A(f"s_cbranch_scc1 {n3}")
        A("buffer_load_dword v25, v17, s[8:11], s44 offen offset:1024")
        A.label(n3)
    else:
        tasks()
        if OPT["t2pos"] == 0: A("global_load_dword v21, v19, s[24:25]")
        else: A("s_mov_b64 s[34:35], s[24:25]")
    nt0 = A.newlabel("mk")
    A("s_cmp_lg_u32 s2, 0"); A(f"s_cbranch_scc1 {nt0}")
    A(f"s_add_u32 s24, s20, {LAST_OFF}"); A("s_addc_u32 s25, s21, 0")
    A("s_load_dword s28, s[24:25], 0")
    A("v_mov_b32 v16, 0")
    A("s_waitcnt lgkmcnt(0)")
    A("s_add_u32 s28, s28, 1"); A("s_max_u32 s28, s28, 1")
    A("v_mov_b32 v17, s28")
    A("s_mov_b64 exec, 1")
    A(f"global_store_dword v16, v17, s[{DBG}:{DBG+1}] sc1")
    A("global_store_dword v16, v17, s[24:25] sc1")
    A("s_mov_b64 exec, -1")
    A.label(nt0)
    if OPT["bark"]:
        A("s_barrier")
        if OPT["tord"] == 0: tasks()
    def thr():
        if OPT["thr"]: A(f"s_waitcnt vmcnt({OPT['thr']})")
    def flag():
        A("s_mov_b32 m0, s31")
        A("s_mov_b64 exec, 1")
        A("buffer_load_dword v14, s[8:11], 0 offen lds")
        A("s_mov_b64 exec, -1")
        A("s_add_u32 s31, s31, 4")
    def tail():
        flag()
        A(f"s_add_u32 s29, s29, {STG}"); A(f"s_cmp_eq_u32 s29, {3*STG}"); A("s_cselect_b32 s29, 0, s29")
        A("s_add_u32 s30, s30, 1")
    l1 = A.newlabel("ld"); nt = A.newlabel("ld")
    A.label(l1)
    def xq(q):
        A(f"s_add_u32 m0, s29, {4096*q}"); A(f"s_add_u32 s28, s26, {40960*q}"); thr()
        for i in range(4): A(f"buffer_load_dwordx4 v{2+i}, s[8:11], s28 offen offset:{1024*i} lds")
    def wq(q):
        A(f"s_add_u32 m0, s29, {GB + 3072*q}"); A(f"s_add_u32 s28, s27, {49152*q}"); thr()
        for i in range(3): A(f"buffer_load_dwordx4 v{11+i}, s[12:15], s28 offen offset:{1024*i} lds")
        A(f"s_add_u32 m0, s29, {UB + 3072*q}"); A("s_nop 0")
        for i in range(3): A(f"buffer_load_dwordx4 v{11+i}, s[16:19], s28 offen offset:{1024*i} lds")
    wq(0); xq(0); xq(1); wq(1); xq(2); xq(3); flag(); wq(2); wq(3)
    tail()
    A("s_add_u32 s26, s26, 128"); A("s_add_u32 s27, s27, 196608")
    if OPT["rot"]:
        A("s_add_u32 s60, s60, 1"); A("s_cmp_eq_u32 s60, 10"); A("s_cselect_b32 s24, 1280, 0"); A("s_cselect_b32 s25, 1966080, 0")
        A("s_sub_u32 s26, s26, s24"); A("s_sub_u32 s27, s27, s25")
    if OPT["t2pos"]:
        n5 = A.newlabel("n5")
        A(f"s_cmp_lg_u32 s30, {OPT['t2pos']}"); A(f"s_cbranch_scc1 {n5}")
        A("global_load_dword v21, v19, s[34:35]")
        A.label(n5)
    if OPT["bark"] and OPT["tord"]:
        n4 = A.newlabel("n4")
        A("s_cmp_lg_u32 s30, 1"); A(f"s_cbranch_scc1 {n4}")
        tasks()
        A.label(n4)
    A(f"s_cmp_eq_u32 s30, {3 - OPT['bart']}"); A(f"s_cbranch_scc1 {l1}")
    if gen1.DIAG:
        sk = A.newlabel("sk")
        A(f"s_cmp_lg_u32 s30, {OPT['bart']}"); A(f"s_cbranch_scc1 {sk}"); stamp(A, 4); A.label(sk)
    A("s_barrier")
    if gen1.DIAG and OPT['ldiag']:
        for k in range(3, 10):
            sk = A.newlabel("sk")
            A(f"s_cmp_lg_u32 s30, {k}"); A(f"s_cbranch_scc1 {sk}"); stamp(A, 4 + k - 3); A.label(sk)
    A("s_cmp_lt_u32 s30, 10"); A(f"s_cbranch_scc1 {l1}")
    stamp(A, 2)
    for p in OPT["wb"]:
        if p == 0: A("s_barrier")
    A("s_mul_i32 s26, s7, 245760"); A(f"s_add_u32 s26, s26, {WDF_OFF}")
    l2 = A.newlabel("ld"); l4 = A.newlabel("ld")
    def bars(n, cur):
        for p in OPT["wb"]:
            if p and p % 40 == n % 40:
                sk = A.newlabel("sk")
                A(f"s_cmp_lg_u32 s30, {10 + p//40}"); A(f"s_cbranch_scc1 {sk}"); A("s_barrier"); A.label(sk)
    A.label(l2)
    for w in range(4):
        for (o, n) in ((0, 4), (4096, 4), (8192, 2)):
            A(f"s_add_u32 m0, s29, {10240*w + o}"); A(f"s_add_u32 s28, s26, {61440*w + o}")
            if OPT["thr2"]: A(f"s_waitcnt vmcnt({OPT['thr2']})")
            for i in range(n): A(f"buffer_load_dwordx4 v1, s[20:23], s28 offen offset:{1024*i} sc1 lds")
        if w < 3: bars(10*w + 10, 0)
    tail()
    bars(40, 1)
    A("s_add_u32 s26, s26, 10240")
    A("s_cmp_lt_u32 s30, 13"); A(f"s_cbranch_scc1 {l2}")
    A("s_cmp_eq_u32 s30, 16"); A(f"s_cbranch_scc1 {l4}")
    A("s_sub_u32 s28, s30, 12")
    lds_wait(A, 15, 17, "v_cmp_gt_i32 vcc, s28", sleep=OPT["sleep"])
    A(f"s_branch {l2}")
    A.label(l4)
    stamp(A, 3)

ACC1 = 64
def msetup(A):
    A("s_lshr_b32 s8, s3, 1"); A("s_and_b32 s9, s3, 1")
    A("v_and_b32 v8, 31, v0"); A("v_lshrrev_b32 v9, 5, v0")
    A("v_bfe_u32 v10, v0, 1, 3"); A("v_xor_b32 v10, v10, v9")
    A("v_lshlrev_b32 v14, 7, v8"); A("s_lshl_b32 s10, s8, 13"); A("v_add_u32 v14, s10, v14")
    for ks in range(4):
        A(f"v_xor_b32 v12, {2*ks}, v10"); A(f"v_lshl_add_u32 v{2+ks}, v12, 4, v14")
    A("v_bfe_u32 v12, v0, 2, 2"); A("v_lshl_add_u32 v12, v9, 3, v12"); A("v_mul_u32_u24 v6, 192, v12")
    A("v_and_b32 v12, 3, v0"); A("v_lshl_add_u32 v6, v12, 3, v6")
    A("v_bfe_u32 v12, v0, 4, 1"); A(f"v_mul_u32_u24 v12, {UB-GB}, v12"); A("v_add_u32 v6, v6, v12")
    A("s_mul_i32 s10, s9, 96"); A(f"s_add_u32 s10, s10, {GB}"); A("v_add_u32 v6, s10, v6")
    A(f"v_mov_b32 v7, {FLG}")
    A("s_lshl_b32 s10, s3, 2"); A(f"s_add_u32 s10, s10, {FLG+112}"); A("v_mov_b32 v8, s10")
    for i in range(48): A(f"v_pk_mov_b32 {P2(ACC1+2*i)}, 0, 0")
    A("s_mov_b32 s54, 0x%x" % NLOG2E); A("s_mov_b32 s55, 0x%x" % NLOG2E)
    A("v_and_b32 v10, 15, v0"); A("v_lshlrev_b32 v10, 4, v10"); A("v_lshl_add_u32 v10, v9, 8, v10")
    A("v_bfe_u32 v12, v0, 4, 1"); A("v_lshl_add_u32 v10, v12, 10, v10")
    A("s_lshl_b32 s18, s4, 1"); A("s_add_u32 s18, s18, s8")
    A("s_mul_i32 s11, s18, 196608"); A("s_mul_i32 s12, s5, 6"); A("s_mul_i32 s13, s9, 3"); A("s_add_u32 s12, s12, s13")
    for nt in range(3):
        A(f"s_add_u32 s13, s12, {nt}")
        A("s_lshr_b32 s10, s13, 1"); A("s_lshl_b32 s10, s10, 12")
        A("s_and_b32 s13, s13, 1"); A("s_lshl_b32 s13, s13, 9"); A("s_add_u32 s10, s10, s13")
        A(f"s_add_u32 s{48+nt}, s10, s11")
    A("s_lshl_b32 s51, s18, 2"); A("s_lshr_b32 s10, s5, 2"); A("s_add_u32 s51, s51, s10"); A("s_lshl_b32 s51, s51, 8")
    A("s_and_b32 s10, s5, 3"); A("s_lshl_b32 s10, s10, 1"); A("s_add_u32 s10, s10, s9"); A("s_lshl_b32 s10, s10, 2")
    A("s_add_u32 s51, s51, s10"); A(f"s_add_u32 s51, s51, {HF_OFF}")
    A("s_lshl_b32 s52, s6, 2"); A("s_add_u32 s52, s52, s3"); A("s_lshl_b32 s52, s52, 8"); A(f"s_add_u32 s52, s52, {HF_OFF}")
    A("s_mul_i32 s53, s6, 196608"); A("s_mul_i32 s10, s3, 49152"); A("s_add_u32 s53, s53, s10")
    A("s_mul_i32 s10, s3, 10240"); A("v_add_u32 v11, s10, v1")

def kgive(A):
    A("v_add_u32 v15, s19, v1")
    A("s_nop 4")
    for i in range(3): A(f"ds_write_b128 v15, v[{20+4*i}:{23+4*i}] offset:{1024*i}")

def mwave(A):
    sW = 3
    A("s_mov_b32 s16, 0x%x" % ((-2*STG) & 0xffffffff)); A(f"s_mov_b32 s17, {STG}")
    F = [16, 36]
    def reads(ks, f):
        r = []; b = F[f]
        r.append(f"ds_read_b128 v[{b}:{b+3}], v{2+ks}")
        for nt in range(3):
            o = b + 8 + 4*nt
            r.append(f"ds_read_b64_tr_b16 v[{o}:{o+1}], v6 offset:{3072*ks + 32*nt}")
            r.append(f"ds_read_b64_tr_b16 v[{o+2}:{o+3}], v6 offset:{3072*ks + 32*nt + 768}")
        r.append(f"ds_read_b128 v[{b+4}:{b+7}], v{2+ks} offset:4096")
        return r
    def mfmas(f):
        b = F[f]; r = []
        for a in range(2):
            for nt in range(3):
                c = ACC1 + 16*(3*a+nt)
                r.append(f"v_mfma_f32_32x32x16_bf16 v[{c}:{c+15}], v[{b+8+4*nt}:{b+11+4*nt}], v[{b+4*a}:{b+4*a+3}], v[{c}:{c+15}]")
        return r
    A("s_mov_b32 s11, 0"); A("s_mov_b32 s12, 0")
    A("s_waitcnt lgkmcnt(0)")
    stamp(A, 12)
    A("s_barrier")
    lds_wait(A, 7, 13, "v_cmp_ne_u32 vcc, 0")
    stamp(A, 2)
    PL = {0: [(1, 5), (1, 6)], 1: [(1, 7)], 2: [(2, 0)], 3: [(2, 1)], 4: [(2, 2), (2, 3)], 5: [(2, 4)]}
    need = {0: (0, 1, 2), 1: (3, 4), 2: (5, 6), 3: (7,), 4: (), 5: ()}
    lp = A.newlabel("g1"); ex_ = A.newlabel("g1x"); slow = A.newlabel("g1s"); back = A.newlabel("g1b")
    slow2 = A.newlabel("g1s"); back2 = A.newlabel("g1b")
    def step_items(k, last):
        ks = k % 4; it = []; ms = mfmas(k % 2)
        for g in range(6):
            it.append(("m", ms[g], [(k, r) for r in need[g]]))
            if ks == 2 and g == 2 and not last:
                it.append(("w", "flag"))
                it += [("x", "v_cmp_ne_u32 vcc, 0, v13"), ("x", f"s_cbranch_vccnz {slow}"), ("x", f"{back}:")]
            if ks == 0 and g == 3:
                it.append(("w", "flagB"))
                it += [("x", "v_cmp_ne_u32 vcc, 0, v12"), ("x", f"s_cbranch_vccnz {slow2}"), ("x", f"{back2}:")]
            if ks == OPT["barks"] and g == OPT["barg"]:
                it.append(("w", (k - ks + 3, 7))); it.append(("x", "s_barrier"))
            for (so, ri) in PL[g]:
                if last and ks + so > 3: continue
                it.append(("r", reads((k+so) % 4, (k+so) % 2)[ri], (k+so, ri)))
            ex = []
            if ks == 0 and g == 2: ex = ["s_add_u32 s12, s12, 1", "s_cmp_eq_u32 s12, 3", "s_cselect_b32 s13, s16, s17", "s_cselect_b32 s12, 0, s12"]
            if ks == 1 and g == 1: ex = ["v_add_u32 v2, s13, v2"]
            if ks == 0 and g == 5: ex = ["v_add_u32 v3, s13, v3", "v_add_u32 v7, 8, v7"]
            if ks == 1 and g == 2: ex = ["s_add_u32 s11, s11, 1"]
            if ks == 1 and g == 3: ex = ["v_add_u32 v4, s13, v4"]
            if ks == 1 and g == 5: ex = ["s_cmp_eq_u32 s11, 10"]
            if ks == 3 and g == 3 and not last: ex = ["v_add_u32 v5, s13, v5"]
            if ks == 2 and g == 1 and not last: ex = ["v_add_u32 v6, s13, v6"]
            for e in ex: it.append(("x", e))
            if ks == 1 and g == 5: it.append(("r", "ds_read_b32 v13, v7", "flag"))
            if ks == 0 and g == 1: it.append(("r", "ds_read_b32 v12, v7 offset:4", "flagB"))
        return it
    def emit(items, q):
        for i in items:
            tags = i[2] if i[0] == "m" else [i[1]] if i[0] == "w" else []
            if tags:
                pos = max(len(q["ops"]) - 1 - q["ops"][::-1].index(t) for t in tags)
                if pos >= q["done"]:
                    n = min(14, len(q["ops"]) - 1 - pos)
                    q["done"] = len(q["ops"]) - n
                    A(f"s_waitcnt lgkmcnt({n})")
            if i[0] in ("r", "l"): q["ops"].append(i[2] if i[0] == "r" else None)
            if i[0] != "w": A(i[1])
    q = dict(ops=[], done=0)
    emit([("r", reads(0, 0)[r], (0, r)) for r in range(8)] + [("r", reads(1, 1)[ri], (1, ri)) for g in range(6) for (so, ri) in PL[g] if so == 2], q)
    A.label(lp)
    for k in range(2): emit(step_items(k, False), q)
    A(f"s_cbranch_scc1 {ex_}")
    q2 = copy.deepcopy(q)
    for k in range(2, 4): emit(step_items(k, False), q)
    A(f"s_branch {lp}")
    A.label(slow)
    lds_wait(A, 7, 13, "v_cmp_ne_u32 vcc, 0")
    A(f"s_branch {back}")
    A.label(slow2)
    lds_wait(A, 7, 12, "v_cmp_ne_u32 vcc, 0", off=4)
    A(f"s_branch {back2}")
    A.label(ex_)
    if OPT["mprio"]: A(f"s_setprio {OPT['mprio']}")
    for k in range(2, 4): emit(step_items(k, True), q2)
    stamp(A, 3)
    A("v_mov_b32 v5, v11"); A(f"v_add_u32 v6, {2*STG}, v11"); A("s_nop 7")
    AF = [160+4*i for i in range(20)] + [56, 60, 64, 68, 72, 76, 240, 244, 248, 252]
    def areads(step):
        st = 10 + step // 2; slot = st % 3; r = []
        for dt in range(5):
            o = AF[5*(step % 6) + dt]
            off = (STG if slot == 1 else 0) + 5120*(step % 2) + 1024*dt
            va = 6 if slot == 2 else 5
            r.append(f"ds_read_b128 v[{o}:{o+3}], v{va} offset:{off}")
        return r
    def pull(st):
        lds_wait(A, 7, 13, "v_cmp_ne_u32 vcc, 0", off=4*(st-10))
        for x in areads(2*(st-10)) + areads(2*(st-10)+1): A(x)
        A(f"v_mov_b32 v12, {st-9}")
        A("ds_write_b32 v8, v12")
    E = 16
    for a in range(2):
        for nt in range(3):
            g = ACC1 + 16*(3*a+nt); u = g + 8
            o = 32 + 4*((3*a+nt) % 4)
            for j in range(3):
                if 3*a+nt == OPT["pulls"][j]: pull(10+j)
            if 3*a+nt < OPT['epk']:
                for i in range(4): A(f"v_pk_mul_f32 {P2(E+2*i)}, {P2(g+2*i)}, s[54:55]")
                for i in range(8): A(f"v_exp_f32 v{E+i}, v{E+i}")
                for i in range(4): A(f"v_pk_add_f32 {P2(E+2*i)}, {P2(E+2*i)}, 1.0 op_sel_hi:[1,0]")
                for i in range(8): A(f"v_rcp_f32 v{E+i}, v{E+i}")
                for i in range(4): A(f"v_pk_mul_f32 {P2(g+2*i)}, {P2(g+2*i)}, {P2(u+2*i)}")
                for i in range(4): A(f"v_pk_mul_f32 {P2(g+2*i)}, {P2(g+2*i)}, {P2(E+2*i)}")
            else:
                for i in range(8): A(f"v_mul_f32 v{E+i}, s54, v{g+i}")
                for i in range(8): A(f"v_exp_f32 v{E+i}, v{E+i}")
                for i in range(8): A(f"v_add_f32 v{E+i}, 1.0, v{E+i}")
                for i in range(8): A(f"v_rcp_f32 v{E+i}, v{E+i}")
                for i in range(8): A(f"v_mul_f32 v{g+i}, v{g+i}, v{u+i}")
                for i in range(8): A(f"v_mul_f32 v{g+i}, v{g+i}, v{E+i}")
            for i in range(4): A(f"v_cvt_pk_bf16_f32 v{o+i}, v{g+2*i}, v{g+2*i+1}")
            A(f"buffer_store_dwordx4 v[{o}:{o+3}], v10, s[20:23], s{48+nt} offen offset:{2048*a} sc1")
            if 3*a+nt == OPT["epk"] - 1: A("s_barrier")
    if OPT["mprio"]: A("s_setprio 0")
    stamp(A, 4)
    for j in range(3):
        if OPT["pulls"][j] == 6: pull(10+j)
    tag_get(A, 14)
    flag_store(A, "s51", 14)
    stamp(A, 5)
    for j in range(3):
        if OPT["pulls"][j] == 7: pull(10+j)
    stamp(A, 6)
    spoll(A, "s52", 8, OPT["psleep"])
    stamp(A, 7)
    ACC = 80; HR = 8
    def hloads(k):
        b = HR + 16*(k % 3)
        return [f"buffer_load_dwordx4 v[{b+4*i}:{b+4*i+3}], v1, s[20:23], s53 offen offset:{1024*i} sc1" for i in range(4)] + ["s_add_u32 s53, s53, 4096"]
    for k in range(3):
        for x in hloads(k): A(x)
    for k in range(12):
        A(f"s_waitcnt vmcnt({4*min(2, 11-k)})" + (" lgkmcnt(0)" if k in (0, 11) else " lgkmcnt(5)" if k >= 6 else ""))
        if k in (0, 6): stamp(A, 8 + k//6)
        b = HR + 16*(k % 3)
        for dt in range(5):
            for mt in range(4):
                c = ACC + 4*(4*dt+mt); af = AF[5*(k % 6) + dt]
                src = "0" if k == 0 else f"v[{c}:{c+3}]"
                A(f"v_mfma_f32_16x16x32_bf16 v[{c}:{c+3}], v[{af}:{af+3}], v[{b+4*mt}:{b+4*mt+3}], {src}")
        if k + 3 < 12:
            for x in hloads(k+3): A(x)
        j = k + 2
        if 6 <= j < 12:
            if j % 2 == 0: lds_wait(A, 7, 3, "v_cmp_ne_u32 vcc, 0", off=4*(j//2))
            for x in areads(j): A(x)
    stamp(A, 10)
    A("v_and_b32 v4, 15, v0"); A("v_lshrrev_b32 v5, 4, v0")
    A(f"v_mul_u32_u24 v3, {PR}, v4"); A("v_lshl_add_u32 v3, v5, 4, v3")
    A("s_mul_i32 s26, s3, 10240"); A("v_add_u32 v3, s26, v3")
    J = STG - 30*PR
    A("v_cmp_lt_u32 vcc, 13, v4"); A(f"v_mov_b32 v5, {J}"); A(f"v_add_u32 v2, {32*PR + J}, v3")
    A("v_cndmask_b32 v6, 0, v5, vcc"); A("v_cmp_lt_u32 vcc, 11, v4"); A("v_add_u32 v6, v6, v3"); A("s_nop 0")
    A("v_cndmask_b32 v7, 0, v5, vcc"); A("v_add_u32 v7, v7, v2")
    for dt in range(5):
        for mt in range(4):
            c = ACC + 4*(4*dt+mt)
            A(f"ds_write_b128 v{(3,6,2,7)[mt]}, v[{c}:{c+3}] offset:{16*(mt&1)*PR + 64*dt}")

def post(A):
    A(f"s_mov_b32 s16, s{OUT}"); A(f"s_mov_b32 s17, s{OUT+1}")
    A("s_mov_b32 s18, 2621440"); A("s_mov_b32 s19, 0x20000")
    A("s_mov_b32 s30, 0xffff0000")
    A("s_mul_i32 s24, s6, 81920"); A("s_mul_i32 s25, s7, 160"); A("s_add_u32 s24, s24, s25")
    A("s_lshl_b32 s27, s3, 6")
    lp = A.newlabel("po")
    A("s_mov_b32 s28, 0")
    A.label(lp)
    A("v_add_u32 v8, s27, v0")
    A("v_mul_u32_u24 v9, 6554, v8"); A("v_lshrrev_b32 v9, 16, v9")
    A("v_mul_u32_u24 v10, 10, v9"); A("v_sub_u32 v10, v8, v10")
    A("v_mul_u32_u24 v11, 1280, v9"); A("v_lshl_add_u32 v11, v10, 4, v11")
    A(f"v_mul_u32_u24 v12, {PR}, v9"); A("v_lshl_add_u32 v12, v10, 5, v12")
    A("v_mul_u32_u24 v13, 137, v9"); A("v_lshrrev_b32 v13, 12, v13"); A(f"v_mul_u32_u24 v13, {STG - 30*PR}, v13"); A("v_add_u32 v12, v12, v13")
    A("v_mul_u32_u24 v13, 86, v10"); A("v_lshrrev_b32 v13, 8, v13")
    A(f"v_mul_u32_u24 v14, {HS+48}, v10")
    A(f"v_mul_u32_u24 v13, {3*(HS+48) - A2S}, v13")
    A("v_sub_u32 v14, v14, v13"); A("v_lshl_add_u32 v14, v9, 4, v14"); A(f"v_add_u32 v14, {HB + A2O}, v14")
    A("v_lshlrev_b32 v15, 2, v9"); A(f"v_add_u32 v15, {HB + OMG}, v15")
    nb = A.newlabel("po")
    A("s_cmp_lg_u32 s28, 0"); A(f"s_cbranch_scc1 {nb}")
    A("s_waitcnt lgkmcnt(0)")
    A("s_barrier")
    stamp(A, 11)
    A.label(nb)
    Pq = 16; Y = 48
    A(f"ds_read_b128 v[{Y}:{Y+3}], v14")
    A("ds_read_b32 v60, v15")
    for w in range(4):
        A(f"ds_read_b128 v[{Pq+8*w}:{Pq+8*w+3}], v12 offset:{w*10240}")
        A(f"ds_read_b128 v[{Pq+8*w+4}:{Pq+8*w+7}], v12 offset:{w*10240+16}")
    A("s_waitcnt lgkmcnt(8)")
    for k in range(4):
        A(f"v_lshlrev_b32 v{52+2*k}, 16, v{Y+k}"); A(f"v_and_b32 v{53+2*k}, s30, v{Y+k}")
    A("s_waitcnt lgkmcnt(4)")
    for k in range(4): A(f"v_pk_add_f32 {P2(Pq+2*k)}, {P2(Pq+2*k)}, {P2(Pq+8+2*k)}")
    A("s_waitcnt lgkmcnt(0)")
    for k in range(4): A(f"v_pk_add_f32 {P2(Pq+16+2*k)}, {P2(Pq+16+2*k)}, {P2(Pq+24+2*k)}")
    for k in range(4): A(f"v_pk_add_f32 {P2(Pq+2*k)}, {P2(Pq+2*k)}, {P2(Pq+16+2*k)}")
    for k in range(4): A(f"v_pk_fma_f32 {P2(Pq+2*k)}, {P2(Pq+2*k)}, v[60:61], {P2(52+2*k)} op_sel_hi:[1,0,1]")
    for k in range(4): A(f"v_cvt_pk_bf16_f32 v{64+k}, v{Pq+2*k}, v{Pq+2*k+1}")
    A("buffer_store_dwordx4 v[64:67], v11, s[16:19], s24 offen " + OPT["ost"].replace("_", " "))
    A("s_add_u32 s27, s27, 512"); A("s_mov_b32 s28, 1")
    A("s_cmp_lt_u32 s27, 640"); A(f"s_cbranch_scc1 {lp}")

def pcmul(A, d, s, m):
    A(f"v_pk_mul_f32 {P2(d)}, {P2(s)}, {P2(m)} op_sel:[0,0] op_sel_hi:[1,0]")
    A(f"v_pk_fma_f32 {P2(d)}, {P2(s)}, {P2(m)}, {P2(d)} op_sel:[1,1,0] op_sel_hi:[0,1,1] neg_lo:[0,1,0]")

def kpass(A):
    RAW = 232; FA = 16; ACC = 20
    A(f"s_mul_i32 s28, s{CH}, 384"); A("s_lshl_b32 s29, s17, 7"); A("s_add_u32 s28, s28, s29")
    A("v_lshlrev_b32 v1, 1, v0"); A("v_add_u32 v1, s28, v1")
    A(f"s_lshr_b32 s28, s{CH}, 1"); A("s_lshl_b32 s28, s28, 2")
    A("s_mov_b32 m0, s19")
    A("v_and_b32 v17, 15, v0"); A("v_lshrrev_b32 v18, 4, v0")
    A("s_waitcnt lgkmcnt(0)")
    for a in range(4): A(f"global_load_ushort v{RAW+a}, v1, s[{LOGA+2*a}:{LOGA+2*a+1}]")
    A(f"s_load_dword s30, s[{LOGDT}:{LOGDT+1}], s28")
    A(f"s_load_dword s31, s[{DSK}:{DSK+1}], s28")
    A("s_cmp_lt_u32 s14, 2"); A("s_cbranch_scc1 k_one")
    for a in range(4): A(f"global_load_ushort v{RAW+4+a}, v1, s[{LOGA+2*a}:{LOGA+2*a+1}] offset:128")
    A.label("k_one")
    A("s_barrier")
    A("s_mov_b32 s24, 0x%x" % LOG2E); A("s_mov_b32 s25, 0x%x" % LOG2E_LO); A("s_mov_b32 s26, 0x%x" % LN2)
    A("s_mov_b32 s27, 0x41000000"); A("s_mov_b32 s28, 0x43000000")
    A(f"v_mul_u32_u24 v{FA}, {RS}, v17"); A(f"v_lshl_add_u32 v{FA}, v18, 4, v{FA}"); A(f"v_add_u32 v{FA}, s19, v{FA}")
    for i in range(6): A(f"v_pk_mov_b32 {P2(ACC+2*i)}, 0, 0")
    DT, DT2, NDT, ONE = 32, 34, 33, 36
    A(f"v_mov_b32 v{ONE}, 0x3f80")
    A("v_lshlrev_b32 v1, 4, v0")
    A("s_cmp_ge_u32 s3, 4"); A("s_cbranch_scc1 k_nosetup")
    msetup(A)
    A.label("k_nosetup")
    A("s_waitcnt lgkmcnt(0)")
    A(f"s_bitcmp1_b32 s{CH}, 0")
    A("s_cselect_b32 s29, 0, 16")
    A("s_lshl_b32 s30, s30, s29"); A("s_and_b32 s30, s30, 0xffff0000")
    A("s_lshl_b32 s31, s31, s29"); A("s_and_b32 s31, s31, 0xffff0000")
    A("s_cmp_eq_u32 s17, 0"); A("s_cselect_b32 s31, s31, 0")
    A("v_mov_b32 v37, s30")
    A(f"v_writelane_b32 v{ACC}, s31, 0")
    A("v_mul_f32 v38, s24, v37"); A("v_fma_f32 v39, v37, s24, -v38"); A("v_fmac_f32 v39, s25, v37")
    A("v_exp_f32 v38, v38"); A("v_mul_f32 v39, s26, v39"); A("v_fmac_f32 v38, v38, v39")
    A("v_cvt_pk_bf16_f32 v38, v38, v38")
    A(f"v_lshlrev_b32 v{DT}, 16, v38")
    A(f"v_add_f32 v{DT2}, v{DT}, v{DT}"); A(f"v_sub_f32 v{NDT}, 0, v{DT}")
    A("s_waitcnt vmcnt(0)")
    stamp(A, 1)
    A("s_sub_u32 s15, 2, s14"); A("s_mov_b32 s29, 0")
    A.label("k_loop")
    A1 = 38; TH = 39
    Z, W, Y = 40, 42, 44
    P = 48; T = 224; QA, QB = 226, 228; PK = 240
    QF, PF = 160, 176
    A(f"v_lshlrev_b32 v{T}, 16, v{RAW}"); A(f"v_mul_f32 v{T}, s24, v{T}")
    A(f"v_lshlrev_b32 v{TH}, 16, v{RAW+1}")
    A(f"v_exp_f32 v{T}, v{T}")
    A(f"v_lshlrev_b32 v{P}, 16, v{RAW+2}"); A(f"v_lshlrev_b32 v{P+1}, 16, v{RAW+3}")
    A(f"v_cvt_pk_bf16_f32 v{T}, v{T}, v{T}")
    A(f"v_mul_f32 v{TH}, v{TH}, v{DT}")
    A(f"v_lshlrev_b32 v{T}, 16, v{T}")
    A(f"v_mul_f32 v{TH}, 0.15915494, v{TH}")
    A(f"v_mul_f32 v{A1}, v{T}, v{NDT}")
    A(f"v_pk_mul_f32 {P2(P)}, {P2(P)}, {P2(DT2)} op_sel_hi:[1,0]")
    A(f"v_mul_f32 v{A1}, s24, v{A1}")
    A(f"v_pk_mov_b32 {P2(RAW)}, {P2(RAW+4)}, {P2(RAW+4)} op_sel:[0,1]"); A(f"v_pk_mov_b32 {P2(RAW+2)}, {P2(RAW+6)}, {P2(RAW+6)} op_sel:[0,1]")
    for (R, sc) in ((W, "s27"), (Z, None), (Y, "s28")):
        if sc:
            A(f"v_mul_f32 v{T}, {sc}, v{A1}"); A(f"v_mul_f32 v{T+1}, {sc}, v{TH}")
            A(f"v_exp_f32 v{T}, v{T}"); A(f"v_fract_f32 v{T+1}, v{T+1}")
        else:
            A(f"v_exp_f32 v{T}, v{A1}"); A(f"v_fract_f32 v{T+1}, v{TH}")
        A(f"v_cos_f32 v{R}, v{T+1}"); A(f"v_sin_f32 v{R+1}, v{T+1}")
        A("s_nop 0")
        A(f"v_pk_mul_f32 {P2(R)}, {P2(R)}, {P2(T)} op_sel_hi:[1,0]" + (" neg_hi:[1,0]" if R == W else ""))
    pkc = [0]
    def emit(row, r):
        k = PK + pkc[0] % 16; pkc[0] += 1
        A(f"v_cvt_pk_bf16_f32 v{k}, v{r}, v{r+1}")
        pend.append(f"ds_write_addtid_b32 v{k} offset:{row*RS}")
        while len(pend) > OPT["kdepth"]: A(pend.pop(0))
    pend = []
    nrd = [0]
    def rd(base):
        while pend: A(pend.pop(0))
        for t in range(4): A(f"ds_read_b128 v[{base+4*t}:{base+4*t+3}], v{FA} offset:{64*t}")
        nrd[0] += 1
        if nrd[0] == OPT["bark"]:
            sk = A.newlabel("sk")
            A("s_cmp_eq_u32 s15, 0"); A(f"s_cbranch_scc1 {sk}"); A("s_barrier"); A.label(sk)
        if OPT["bark"] and nrd[0] == 1:
            sk = A.newlabel("sk")
            A("s_cmp_lg_u32 s29, 1"); A(f"s_cbranch_scc1 {sk}"); A("s_barrier"); A.label(sk)
    def mm(acc, base, n):
        A(f"s_waitcnt lgkmcnt({n})")
        for t in range(4):
            A(f"v_mfma_f32_16x16x32_bf16 v[{acc}:{acc+3}], v[{base+4*t}:{base+4*t+3}], v[{QF+4*t}:{QF+4*t+3}], v[{acc}:{acc+3}]")
    A(f"ds_write_addtid_b32 v{ONE} offset:0")
    qs = W
    for j in range(2, 17):
        dst = QA if j % 2 == 0 else QB
        if j < 16: pcmul(A, dst, qs, W)
        emit(j-1, qs)
        b = j - 1
        if b <= 7: pcmul(A, P+2*b, P+2*b-2, Z)
        qs = dst
    rd(QF)
    loc = {}
    for b in range(0, 8, 2):
        emit(b, P+2*b); emit(b+1, P+2*b+2)
        pcmul(A, T, P+2*b+2, Y); pcmul(A, P+2*b+2, P+2*b, Y)
        emit(8+b+1, T); emit(8+b, P+2*b+2)
        loc[b] = P+2*b+2
    rd(PF)
    def step(b, row):
        s = loc[b]; d = P+2*b if s == P+2*b+2 else P+2*b+2
        pcmul(A, d, s, Y); loc[b] = d
        return (row, d)
    for a in range(2):
        es = [step(b, 4*a + b//2) for b in (0, 2, 4, 6)]
        for e in es: emit(*e)
    for a in range(4):
        es = [step(b, 8 + 2*a + b//4) for b in (0, 4)]
        for e in es: emit(*e)
    rd(PF+16)
    e = step(0, 0)
    for a in range(1, 10):
        n = step(0, a) if a < 9 else None
        emit(*e); e = n
    rd(PF+32)
    mm(ACC, PF, 8); mm(ACC+4, PF+16, 4); mm(ACC+8, PF+32, 0)
    A("s_mov_b32 s29, 1")
    A("s_sub_u32 s14, s14, 1"); A("s_cmp_lg_u32 s14, 0"); A("s_cbranch_scc1 k_loop")
    A("s_cmp_ge_u32 s3, 4"); A("s_cbranch_scc1 k_h")

def kaddr(A):
    sL = REG
    A(f"v_add_u32 v39, s{sL}, v1")
    EB = C0
    A("v_lshlrev_b32 v40, 4, v17"); A(f"v_add_u32 v40, s{sL}, v40")
    A("v_lshl_add_u32 v41, v18, 10, v40"); A(f"v_add_u32 v41, {EB + 2048 - 8}, v41")
    A("v_and_b32 v42, 1, v0"); A("v_lshlrev_b32 v42, 3, v42"); A("v_sub_u32 v42, v41, v42")
    A("v_lshl_add_u32 v43, v18, 9, v40"); A("v_lshl_add_u32 v44, v18, 8, v40")
    A("v_lshrrev_b32 v45, 1, v18"); A("v_lshl_add_u32 v45, v45, 8, v40")
    A("v_and_b32 v46, 1, v18"); A("v_lshl_add_u32 v45, v46, 3, v45")
    A("v_mov_b32 v66, 0"); A("v_mov_b32 v67, 0")
    A("v_and_b32 v46, 7, v0"); A("v_lshlrev_b32 v46, 2, v46"); A(f"v_add_u32 v46, s{sL}, v46")
    A("v_lshlrev_b32 v47, 3, v0"); A(f"v_add_u32 v47, s{sL}, v47")

KC = {xy: 56+n for n, xy in enumerate([(0,0),(0,1),(1,1),(2,2),(2,3),(3,3),(1,2)])}
def kexp0(A):
    K0, K1, K2 = 20, 24, 28
    for r in range(4):
        A(f"v_cvt_pk_bf16_f32 v{48+2*r}, v{K2+r}, v{K2+r}"); A(f"v_mov_b32 v{49+2*r}, v{48+2*r}")
    for (x, y), r in KC.items(): A(f"v_cvt_pk_bf16_f32 v{r}, v{K1+x}, v{K1+y}")
    A(f"v_cvt_pk_bf16_f32 v64, v{K0}, v{K0+1}"); A(f"v_cvt_pk_bf16_f32 v65, v{K0+2}, v{K0+3}")
def kexp1(A):
    EB = C0; c = KC
    for r in range(4): A(f"ds_write2_b64 v41, v[{48+2*r}:{49+2*r}], v[{48+2*r}:{49+2*r}] offset0:{32*r} offset1:{32*r+1}")
    for r in range(4): A(f"ds_write_b16 v42, v{48+2*r} offset:{256*r+16}")
    A("s_mov_b32 exec_lo, 0")
    o = (EB - 4) // 4
    A(f"ds_write2_b32 v43, v{c[0,0]}, v{c[0,0]} offset0:{o} offset1:{o+1}")
    A(f"ds_write2_b32 v43, v{c[0,1]}, v{c[1,1]} offset0:{o+2} offset1:{o+3}")
    A(f"ds_write2_b32 v43, v{c[2,2]}, v{c[2,2]} offset0:{o+64} offset1:{o+65}")
    A(f"ds_write2_b32 v43, v{c[2,3]}, v{c[3,3]} offset0:{o+66} offset1:{o+67}")
    A("s_mov_b32 exec_lo, -1"); A("s_mov_b32 exec_hi, 0")
    o = EB + 512
    A(f"ds_write_b16 v44, v{c[0,0]} offset:{o-2}")
    A(f"ds_write2_b32 v44, v{c[0,0]}, v{c[1,2]} offset0:{o//4} offset1:{o//4+1}")
    A(f"ds_write_b32 v44, v{c[2,2]} offset:{o+8}")
    A(f"ds_write_b16 v44, v{c[3,3]} offset:{o+12}")
    A("s_mov_b64 exec, -1")
    A(f"ds_write_b64 v45, v[64:65] offset:{EB}")
    A(f"ds_write_b32 v46, v66 offset:{C0-32}"); A(f"ds_write_b32 v46, v66 offset:{C1-32}")
    A(f"ds_write_b64 v47, v[66:67] offset:{CU+4096}")
    for i in range(4):
        A(f"ds_read_b128 v[{80+8*i}:{83+8*i}], v39 offset:{EB+1024*i}")
        A(f"ds_read_b32 v{72+i}, v39 offset:{EB+1024*i-4}")
def kexp2(A):
    A("s_waitcnt lgkmcnt(0)")
    for i in range(4):
        b = 80+8*i
        A(f"v_alignbit_b32 v{b+4}, v{b}, v{72+i}, 16")
        for k in range(1, 4): A(f"v_alignbit_b32 v{b+4+k}, v{b+k}, v{b+k-1}, 16")
        A(f"ds_write_b128 v39, v[{b+4}:{b+7}] offset:{C1+1024*i}")

def caddr(A):
    sL = REG
    A("v_lshlrev_b32 v2, 4, v18"); A("v_lshlrev_b32 v6, 5, v17"); A("v_sub_u32 v2, v2, v6")
    A(f"v_add_u32 v2, {CU + 4064 - 3584}, v2"); A(f"v_add_u32 v2, s{sL}, v2")
    A("v_sub_u32 v6, 15, v17"); A("v_and_b32 v7, 1, v6"); A("v_sub_u32 v6, v6, v7")
    A(f"v_mul_u32_u24 v3, {C1-C0}, v7"); A("v_lshl_add_u32 v3, v18, 4, v3")
    A("v_lshlrev_b32 v6, 1, v6"); A("v_sub_u32 v3, v3, v6")
    A(f"v_add_u32 v3, {C0}, v3"); A(f"v_add_u32 v3, s{sL}, v3")
    for i in range(1, 4): A(f"v_add_u32 v{3+i}, {1024*i}, v3")
    A("v_lshlrev_b32 v7, 5, v17"); A("v_lshrrev_b32 v8, 1, v18"); A("v_lshl_add_u32 v7, v8, 4, v7")
    A("v_and_b32 v8, 1, v18"); A("v_lshl_add_u32 v7, v8, 9, v7")

def conv(A):
    Y = 172
    TB = [40, 104]
    def reads(f, extra):
        b = TB[f]; r = []
        for q in range(8):
            r.append(f"ds_read_b128 v[{b+32+4*q}:{b+35+4*q}], v2 offset:{512*(7-q) + extra}")
            o = (512*(q & 1) + extra) // 4
            r.append(f"ds_read2_b32 v[{b+4*q}:{b+4*q+1}], v{3+q//2} offset0:{o} offset1:{o+1}")
            r.append(f"ds_read2_b32 v[{b+4*q+2}:{b+4*q+3}], v{3+q//2} offset0:{o+2} offset1:{o+3}")
        return r
    def mfmas(f):
        b = TB[f]; r = []
        for q in range(8):
            for tau in range(8-q):
                t = q + tau
                r.append(f"v_mfma_f32_16x16x32_bf16 v[{Y+4*t}:{Y+4*t+3}], v[{b+4*q}:{b+4*q+3}], v[{b+32+4*tau}:{b+35+4*tau}], v[{Y+4*t}:{Y+4*t+3}]")
        return r
    def inter(ms, rs):
        for i, m in enumerate(ms):
            A(m)
            if i < len(rs): A(rs[i])
    A("s_waitcnt vmcnt(0)")
    for x in reads(0, 0): A(x)
    stamp(A, 9)
    A("s_barrier")
    if OPT["epk"]: A("s_barrier")
    stamp(A, 4)
    if OPT["cprio"]: A(f"s_setprio {OPT['cprio']}")
    A("s_mov_b32 s28, 0")
    lp = A.newlabel("cv")
    A.label(lp)
    A("s_waitcnt lgkmcnt(0)")
    inter(mfmas(0), reads(1, 64))
    A("s_add_u32 s28, s28, 1")
    A("s_waitcnt lgkmcnt(0)")
    inter(mfmas(1), reads(0, 128))
    for r in range(2, 7): A(f"v_add_u32 v{r}, 128, v{r}")
    A("s_cmp_lt_u32 s28, 4"); A(f"s_cbranch_scc1 {lp}")
    stamp(A, 5)
    A(f"s_add_u32 s30, s31, {YT_OFF}")
    A(f"s_lshr_b32 s28, s{CH}, 3"); A("s_lshl_b32 s28, s28, 8"); A(f"s_and_b32 s29, s{CH}, 7"); A("s_lshl_b32 s29, s29, 2")
    A("s_add_u32 s28, s28, s29"); A(f"s_add_u32 s28, s28, {YF_OFF}")
    A("s_waitcnt lgkmcnt(0)")
    A("s_nop 1")
    O = 40
    for t in range(8):
        A(f"v_cvt_pk_bf16_f32 v{O+2*t}, v{Y+4*t}, v{Y+4*t+1}"); A(f"v_cvt_pk_bf16_f32 v{O+2*t+1}, v{Y+4*t+2}, v{Y+4*t+3}")
    A("s_nop 1")
    for p in range(4):
        A(f"v_permlane16_swap_b32 v{O+4*p}, v{O+4*p+2}"); A(f"v_permlane16_swap_b32 v{O+4*p+1}, v{O+4*p+3}")
    A("s_nop 1")
    for p in range(4): A(f"buffer_store_dwordx4 v[{O+4*p}:{O+4*p+3}], v7, s[20:23], s30 offen offset:{1024*p} sc1")
    A("s_setprio 0")
    flag_store(A, "s28", 2, 8, 80*256)
    stamp(A, 6)

def hbar(A, i):
    if OPT["hdiag"] == 2: _stamp0(A, i + 2)
    A("s_barrier")
    if OPT["hdiag"] == 1: _stamp0(A, i + 2)

def hwave(A):
    ACC = 20; sL = REG
    def when(cmp, neg=False):
        l = A.newlabel("if"); A(cmp); A(f"s_cbranch_scc{1 if neg else 0} {l}"); return l
    stamp(A, 2)
    A(f"s_add_u32 s8, s2, 256"); A(f"s_cmp_eq_u32 s{LCH}, 0"); A("s_cselect_b32 s8, s2, s8")
    A(f"s_cmp_eq_u32 s{LCH}, 1"); A("s_cselect_b32 s8, 999, s8"); A("s_cselect_b32 s9, s2, 999")
    A(f"v_add_u32 v39, s{sL}, v1")
    A("v_lshrrev_b32 v2, 3, v0"); A("v_and_b32 v3, 7, v0")
    A(f"s_lshl_b32 s12, s{LCH}, 13"); A(f"s_add_u32 s12, s12, {TB2}")
    A(f"v_mov_b32 v42, {FLG}")
    lds_wait(A, 42, 41, "v_cmp_ne_u32 vcc, 0", off=104)
    w1 = A.newlabel("t"); w2 = A.newlabel("t")
    A(f"s_cmp_eq_u32 s{LCH}, 1"); A(f"s_cbranch_scc1 {w1}")
    A("v_xor_b32 v5, v2, v3"); A("v_lshlrev_b32 v5, 4, v5"); A("v_lshl_add_u32 v5, v3, 10, v5"); A("v_add_u32 v5, s12, v5")
    for e in range(8): A(f"ds_read_b128 v[{144+4*e}:{147+4*e}], v5 offset:{128*e}")
    A(f"s_cmp_eq_u32 s{LCH}, 0"); A(f"s_cbranch_scc1 {w2}")
    A("v_lshlrev_b32 v4, 4, v3"); A(f"v_add_u32 v4, {GXO}, v4"); A("v_mul_u32_u24 v5, 1280, v2"); A("v_add_u32 v5, v5, v4")
    for i in range(10):
        A(f"ds_read_b128 v[{176+4*i}:{179+4*i}], v5 offset:{128*i}")
        A(f"ds_read_b128 v[{216+4*i}:{219+4*i}], v4 offset:{GWO - GXO + 128*i}")
    A("v_mov_b32 v32, 0"); A("v_mov_b32 v33, 0")
    A("s_waitcnt lgkmcnt(0)")
    for k in range(40): A(f"v_dot2c_f32_bf16 v{32 + k % 2}, v{176+k}, v{216+k}")
    A(f"s_branch {w2}")
    A.label(w1)
    A("v_lshrrev_b32 v5, 5, v0"); A("v_lshlrev_b32 v5, 11, v5"); A("v_bfe_u32 v6, v0, 2, 3"); A("v_lshl_add_u32 v5, v6, 7, v5")
    A("v_and_b32 v6, 3, v0"); A("v_lshl_add_u32 v5, v6, 3, v5"); A("v_add_u32 v5, s12, v5")
    for dtl in range(4):
        for sg in range(2):
            o = 144 + 4*(2*dtl+sg)
            A(f"ds_read_b64_tr_b16 v[{o}:{o+1}], v5 offset:{4096*sg + 32*dtl}")
            A(f"ds_read_b64_tr_b16 v[{o+2}:{o+3}], v5 offset:{4096*sg + 32*dtl + 1024}")
    A.label(w2)
    A("s_waitcnt lgkmcnt(0)")
    stamp(A, 10)
    if not OPT["stpre"]: A("s_barrier")
    l = when("s_cmp_lt_u32 s8, 320")
    A("s_and_b32 s24, s8, 31"); A("s_lshr_b32 s25, s8, 5")
    A("v_lshlrev_b32 v6, 15, v2"); A("v_lshlrev_b32 v7, 4, v3"); A("v_sub_u32 v6, v6, v7"); A("v_add_u32 v6, 4080, v6")
    A("s_mov_b32 s28, 0x05040100"); A("s_mov_b32 s29, 0x07060302")
    A("s_lshl_b32 s30, s25, 18"); A("s_lshl_b32 s27, s24, 7"); A("s_sub_u32 s30, s30, s27"); A(f"s_add_u32 s30, s30, {UR_OFF}")
    for i in range(8):
        o = 112 + 4*i
        for p in range(4):
            lo = 144 + 4*(7-2*p) + i//2; hi = 144 + 4*(6-2*p) + i//2
            A(f"v_perm_b32 v{o+p}, v{hi}, v{lo}, s{28 + (i&1)}")
        A(f"buffer_store_dwordx4 v[{o}:{o+3}], v6, s[20:23], s30 offen sc1")
        A("s_add_u32 s30, s30, 4096")
    A.label(l)
    A("s_mul_i32 s19, s18, 3072"); A(f"s_add_u32 s19, s19, {KP_OFF}")
    l = when("s_cmp_eq_u32 s16, 0")
    for i in range(3): A(f"buffer_store_dwordx4 v[{ACC+4*i}:{ACC+4*i+3}], v1, s[20:23], s19 offen offset:{1024*i} sc1")
    A.label(l)
    A("s_min_u32 s10, s2, 239"); A("s_mul_i32 s11, s10, 2731"); A("s_lshr_b32 s11, s11, 16")
    A("s_mul_i32 s28, s11, 24"); A("s_sub_u32 s10, s10, s28")
    l = when("s_cmp_lt_u32 s9, 240")
    for dtl in range(4):
        A("s_lshl_b32 s26, s11, 2"); A(f"s_add_u32 s26, s26, {dtl}")
        A("s_mul_i32 s27, s26, 52429"); A("s_lshr_b32 s27, s27, 18"); A("s_mul_i32 s28, s27, 235"); A("s_add_u32 s26, s26, s28")
        A("s_mul_i32 s28, s10, 10"); A("s_add_u32 s26, s26, s28"); A("s_lshl_b32 s26, s26, 10"); A(f"s_add_u32 s26, s26, {WDF_OFF}")
        A("s_add_u32 s27, s26, 5120")
        o = 144 + 8*dtl
        A(f"buffer_store_dwordx4 v[{o}:{o+3}], v1, s[20:23], s26 offen sc1")
        A(f"buffer_store_dwordx4 v[{o+4}:{o+7}], v1, s[20:23], s27 offen sc1")
    A.label(l)
    if OPT["stpre"]: A("s_barrier")
    hbar(A, 0)
    stamp(A, 12)
    for i in range(3): A(f"ds_read_b128 v[{80+4*i}:{83+4*i}], v39 offset:{SS + 1024*i}")
    for i in range(3): A(f"ds_read_b128 v[{92+4*i}:{95+4*i}], v39 offset:{2*SS + 1024*i}")
    A("s_waitcnt lgkmcnt(0)")
    l = when("s_cmp_ge_u32 s16, 1")
    for i in range(12): A(f"v_add_f32 v{ACC+i}, v{ACC+i}, v{80+i}")
    A.label(l)
    l = when("s_cmp_ge_u32 s16, 2")
    for i in range(12): A(f"v_add_f32 v{ACC+i}, v{ACC+i}, v{92+i}")
    A.label(l)
    hbar(A, 1)
    tag_get(A, 40)
    l = when(f"s_cmp_eq_u32 s{LCH}, 2")
    A("v_add_f32 v32, v32, v33"); A("s_mov_b32 s28, 0x%x" % NLOG2E)
    for m in ("quad_perm:[1,0,3,2]", "quad_perm:[2,3,0,1]", "row_half_mirror"):
        A("s_nop 1"); A(f"v_add_f32_dpp v32, v32, v32 {m} row_mask:0xf bank_mask:0xf")
    A("v_mul_f32 v32, s28, v32"); A("v_exp_f32 v32, v32"); A(f"v_mov_b32 v33, s{TAG}")
    A("v_add_f32 v32, 1.0, v32"); A("v_rcp_f32 v32, v32")
    A(f"s_lshl_b32 s26, s{XCD}, 5"); A(f"s_add_u32 s26, s26, s{RR}"); A("s_lshl_b32 s26, s26, 6"); A(f"s_add_u32 s26, s26, {GG_OFF}")
    A("s_mov_b32 exec_lo, 0x01010101"); A("s_mov_b32 exec_hi, 0x01010101")
    A("buffer_store_dwordx2 v[32:33], v0, s[20:23], s26 offen sc1")
    A("s_mov_b64 exec, -1")
    A.label(l)
    hbar(A, 2)
    l = when("s_cmp_lt_u32 s8, 320")
    A("s_lshl_b32 s30, s25, 8"); A("s_lshl_b32 s27, s24, 2"); A("s_add_u32 s30, s30, s27"); A(f"s_add_u32 s30, s30, {UF_OFF}")
    flag_store(A, "s30", 40)
    A.label(l)
    A("s_lshl_b32 s18, s18, 7"); A(f"s_add_u32 s18, s18, {KF_OFF}")
    l = when("s_cmp_eq_u32 s16, 0")
    flag_store(A, "s18", 40)
    A.label(l)
    l = when("s_cmp_lt_u32 s9, 240")
    A("s_lshl_b32 s26, s11, 8"); A("s_lshl_b32 s27, s10, 2"); A("s_add_u32 s26, s26, s27"); A(f"s_add_u32 s26, s26, {WF_OFF}")
    flag_store(A, "s26", 70)
    A.label(l)
    caddr(A); kaddr(A)
    for i in range(32): A(f"v_mov_b32 v{172+i}, 0")
    A("v_and_b32 v68, 31, v0"); A("v_lshlrev_b32 v68, 2, v68")
    A(f"s_lshr_b32 s29, s{CH}, 6"); A("s_lshl_b32 s29, s29, 8"); A(f"s_add_u32 s29, s29, {UF_OFF}")
    A(f"s_lshl_b32 s31, s{CH}, 12"); A(f"s_add_u32 s30, s31, {UR_OFF}")
    A(f"s_add_u32 m0, s{sL}, {CU}")
    hbar(A, 3)
    hbar(A, 4)
    hbar(A, 5)
    A("buffer_load_dword v69, v68, s[20:23], s29 offen sc1")
    A("v_mov_b32 v70, 0")
    l = when(f"s_cmp_eq_u32 s{RMT}, 1")
    A("buffer_load_dword v71, v70, s[20:23], s18 offen sc1")
    A.label(l)
    l = when(f"s_cmp_eq_u32 s{LCH}, 0")
    A("v_min_u32 v70, 47, v0"); A("v_cmp_lt_u32 vcc, 23, v70"); A("v_lshlrev_b32 v70, 2, v70"); A("v_add_u32 v71, 160, v70")
    A("v_cndmask_b32 v70, v70, v71, vcc")
    A("s_mul_i32 s26, s7, 5"); A("s_lshr_b32 s26, s26, 2"); A("s_lshl_b32 s26, s26, 8"); A(f"s_add_u32 s26, s26, {WF_OFF}")
    A("buffer_load_dword v71, v70, s[20:23], s26 offen sc1")
    A.label(l)
    hbar(A, 6)
    def check(va, so, vd):
        ok = A.newlabel("ok")
        A(f"v_cmp_ne_u32 vcc, s{TAG}, v{vd}"); A(f"s_cbranch_vccz {ok}")
        poll(A, va, so, vd)
        A.label(ok)
    A("s_waitcnt vmcnt(0)")
    l = when("s_cmp_eq_u32 s17, 0")
    check(68, "s29", 69)
    for i in range(4): A(f"buffer_load_dwordx4 v1, s[20:23], s30 offen offset:{1024*i} sc1 lds")
    A.label(l)
    l = when(f"s_cmp_eq_u32 s{RMT}, 1")
    check(70, "s18", 71)
    for i in range(3): A(f"buffer_load_dwordx4 v[{80+4*i}:{83+4*i}], v1, s[20:23], s19 offen offset:{1024*i} sc1")
    A.label(l)
    l = when(f"s_cmp_eq_u32 s{LCH}, 0")
    check(70, "s26", 71)
    A.label(l)
    stamp(A, 3)
    hbar(A, 7)
    A("v_lshlrev_b32 v170, 3, v0")
    A("s_lshl_b32 s24, s6, 9"); A(f"s_add_u32 s24, s24, {GG_OFF}")
    A("buffer_load_dwordx2 v[168:169], v170, s[20:23], s24 offen sc1")
    A(f"v_mov_b32 v8, {FLG}")
    l = when("s_cmp_eq_u32 s16, 0")
    hbar(A, 8)
    hbar(A, 9)
    if OPT["epk"]: A("s_barrier")
    lds_wait(A, 8, 9, "v_cmp_ne_u32 vcc, 0", off=100, sleep=4)
    A("s_branch k_fin")
    A.label(l)
    l = when(f"s_cmp_eq_u32 s{RMT}, 1")
    A("s_waitcnt vmcnt(1)")
    for i in range(12): A(f"v_add_f32 v{ACC+i}, v{ACC+i}, v{80+i}")
    A.label(l)
    kexp0(A)
    lds_wait(A, 8, 9, "v_cmp_ne_u32 vcc, 0", off=76)
    kexp1(A)
    hbar(A, 8)
    kexp2(A)
    conv(A)

def finpre(A):
    sH = LCH; sL = REG
    A("s_mul_i32 s26, s7, 2560"); A("s_lshr_b32 s25, s6, 2"); A("s_mul_i32 s25, s25, 20480"); A("s_add_u32 s26, s26, s25"); A(f"s_add_u32 s26, s26, {YF_OFF}")
    A("v_and_b32 v3, 7, v0")
    A("v_lshrrev_b32 v8, 3, v0"); A("v_lshlrev_b32 v8, 12, v8"); A("v_lshl_add_u32 v8, v3, 4, v8")
    A("s_mul_i32 s27, s7, 327680"); A("s_lshl_b32 s28, s6, 7"); A("s_add_u32 s27, s27, s28"); A(f"s_add_u32 s27, s27, {YT_OFF}")
    if OPT["ysleep"]: A(f"s_sleep {OPT['ysleep']}")
    A(f"s_lshl_b32 s29, s{sH}, 8"); A("s_add_u32 s12, s29, s26"); A("s_add_u32 s13, s12, 768"); A("s_add_u32 s14, s12, 1536")
    A(f"s_add_u32 s15, s26, {9*256}"); A(f"s_cmp_eq_u32 s{sH}, 0"); A("s_cselect_b32 s15, s15, s14")
    lp = A.newlabel("yl"); dn = A.newlabel("yl")
    A("s_mov_b32 s62, 0")
    A.label(lp)
    D = [32, 40, 48, 4]
    for i in range(3): A(f"s_load_dwordx8 s[{D[i]}:{D[i]+7}], s[20:21], s{12+i} glc")
    A("s_load_dwordx4 s[8:11], s[20:21], s15 glc"); A("s_load_dwordx4 s[16:19], s[20:21], s15 offset:16 glc")
    A("s_addk_i32 s62, 1")
    A("s_waitcnt lgkmcnt(0)")
    regs = list(range(32, 56)) + [8, 9, 10, 11, 16, 17, 18, 19]
    A("s_and_b64 s[28:29], s[32:33], s[34:35]"); A("s_or_b64 s[30:31], s[32:33], s[34:35]")
    for r in regs[4::2]:
        A(f"s_and_b64 s[28:29], s[28:29], s[{r}:{r+1}]"); A(f"s_or_b64 s[30:31], s[30:31], s[{r}:{r+1}]")
    A("s_and_b32 s28, s28, s29"); A("s_or_b32 s30, s30, s31")
    A(f"s_xor_b32 s28, s28, s{TAG}"); A(f"s_xor_b32 s30, s30, s{TAG}"); A("s_or_b32 s28, s28, s30")
    A(f"s_cbranch_scc0 {dn}")
    A(f"s_sleep {OPT['psleep']}")
    A(f"s_cmpk_lt_u32 s62, 0x{SPIN:x}"); A(f"s_cbranch_scc1 {lp}")
    A.label(dn)
    for i in range(4):
        A(f"s_add_u32 s28, s{sH}, {3*i}")
        if i == 3: A(f"s_cmp_lg_u32 s{sH}, 0"); A(f"s_cbranch_scc1 {dn}x")
        A("s_lshl_b32 s28, s28, 15"); A(f"s_add_u32 m0, s{sL}, {1024*i}"); A("s_add_u32 s28, s28, s27")
        A("buffer_load_dwordx4 v8, s[20:23], s28 offen sc1 lds")
    A.label(dn + "x")
    stamp(A, 7)
    A("v_bfe_u32 v2, v0, 2, 2"); A("v_lshlrev_b32 v2, 7, v2")
    A("v_lshrrev_b32 v3, 4, v0"); A("v_lshl_add_u32 v2, v3, 5, v2")
    A("v_and_b32 v3, 3, v0"); A("v_lshl_add_u32 v2, v3, 3, v2"); A(f"v_add_u32 v2, s{sL}, v2")
    A(f"s_mul_i32 s28, s{sH}, 48"); A(f"s_add_u32 s28, s28, s{sL}")
    A("v_lshlrev_b32 v3, 4, v0"); A("v_add_u32 v3, s28, v3")
    A("v_lshlrev_b32 v7, 2, v0"); A(f"v_add_u32 v7, s{sL}, v7")
    A("s_mov_b32 s30, 0xffff0000")
    A("s_waitcnt vmcnt(0)")
    ok = A.newlabel("ok")
    A(f"v_cmp_ne_u32 vcc, s{TAG}, v169"); A(f"s_cbranch_vccz {ok}")
    poll(A, 170, "s24", 168, 2, tagreg=169)
    A.label(ok)
    A("v_mov_b32 v4, v168")
    for i in range(4):
        A(f"ds_read_b64_tr_b16 v[{8+4*i}:{9+4*i}], v2 offset:{1024*i}")
        A(f"ds_read_b64_tr_b16 v[{10+4*i}:{11+4*i}], v2 offset:{1024*i+512}")
    A("v_sub_f32 v6, 1.0, v4")
    A(f"ds_write_b32 v7, v6 offset:{OMG}")
    A("s_waitcnt lgkmcnt(1)")
    for i in range(4):
        for k in range(4):
            r = 8+4*i+k
            A(f"v_lshlrev_b32 v24, 16, v{r}"); A(f"v_and_b32 v25, s30, v{r}")
            A("v_mul_f32 v24, v24, v4"); A("v_mul_f32 v25, v25, v4")
            A(f"v_cvt_pk_bf16_f32 v{r}, v24, v25")
        A(f"ds_write_b128 v3, v[{8+4*i}:{11+4*i}] offset:{A2O + A2S*i}")
    stamp(A, 8)

def build():
    A = Asm()
    A.raw(f"; @launch grid=(256,1,1) block=(512,1,1) lds={LDS_BYTES}")
    A.raw('.amdgcn_target "amdgcn-amd-amdhsa--gfx950"')
    kernel_begin(A, NAME)
    A("s_cmp_ge_u32 s2, 256"); A("s_cbranch_scc1 k_end")
    stamp_begin(A)
    if OPT["probe"] >= 0:
        A("s_memrealtime s[64:65]"); A("s_waitcnt lgkmcnt(0)"); A("s_mov_b32 s66, s64")
    A("s_load_dwordx16 s[32:47], s[0:1], 0")
    A("s_load_dwordx8 s[48:55], s[0:1], 64")
    A("s_load_dwordx4 s[56:59], s[0:1], 96")
    A("s_load_dwordx2 s[20:21], s[0:1], 112")
    A("v_lshrrev_b32 v1, 6, v0"); A("v_and_b32 v0, 63, v0"); A("v_readfirstlane_b32 s3, v1")
    A(f"s_and_b32 s{XCD}, s2, 7"); A(f"s_lshr_b32 s{RR}, s2, 3"); A(f"s_lshr_b32 s{R4}, s{XCD}, 1"); A(f"s_and_b32 s{C2}, s{XCD}, 1")
    A(f"s_lshl_b32 s4, s{R4}, 2"); A(f"s_and_b32 s5, s{RR}, 3"); A("s_add_u32 s4, s4, s5")
    A(f"s_lshl_b32 s5, s{C2}, 3"); A(f"s_lshr_b32 s6, s{RR}, 2"); A("s_add_u32 s5, s5, s6")
    A(f"s_lshl_b32 s6, s{R4}, 3"); A(f"s_and_b32 s7, s{RR}, 7"); A("s_add_u32 s6, s6, s7")
    A(f"s_lshl_b32 s7, s{C2}, 2"); A(f"s_lshr_b32 s8, s{RR}, 3"); A("s_add_u32 s7, s7, s8")
    A("s_mov_b32 s22, 0x%x" % WS_BYTES); A("s_mov_b32 s23, 0x20000")
    A("v_and_b32 v8, 31, v0"); A("v_cmp_gt_u32 vcc, 27, v8"); A("v_lshlrev_b32 v8, 2, v8"); A(f"v_add_u32 v8, {FLG}, v8")
    A("v_cndmask_b32 v9, 0, 1, vcc"); A("v_mov_b32 v10, 0")
    A("ds_write_b32 v8, v9")
    A("s_cmp_eq_u32 s3, 4"); A("s_cbranch_scc1 k_l")
    ev = [(0,1,1,2),(1,1,1,1),(1,2,2,1),(2,1,1,1),(0,0,0,0),(0,0,0,1),(1,0,0,2),(2,0,0,1)]
    od = [(0,1,1,1),(0,2,2,1),(1,1,1,1),(1,2,2,1),(0,0,0,0),(0,0,0,2),(1,0,0,2),(2,0,2,0)]
    enc = lambda t: sum((r | (sl << 2) | (p << 4) | (c << 6)) << (8*i) for i, (r, sl, p, c) in enumerate(t))
    A(f"s_lshr_b32 s18, s{RR}, 1"); A("s_lshl_b32 s18, s18, 3"); A(f"s_add_u32 s18, s18, s{XCD}")
    A(f"s_mov_b32 s10, 0x{enc(ev) & 0xffffffff:x}"); A(f"s_mov_b32 s11, 0x{enc(ev) >> 32:x}")
    A(f"s_and_b32 s8, s{RR}, 1")
    A(f"s_cselect_b32 s10, 0x{enc(od) & 0xffffffff:x}, s10"); A(f"s_cselect_b32 s11, 0x{enc(od) >> 32:x}, s11")
    A("s_lshl_b32 s9, s3, 3"); A("s_lshr_b64 s[10:11], s[10:11], s9")
    A(f"s_and_b32 s{LCH}, s10, 3"); A("s_bfe_u32 s9, s10, 0x20002"); A("s_bfe_u32 s17, s10, 0x20004"); A("s_bfe_u32 s16, s10, 0x20006")
    A(f"s_mul_i32 s{REG}, s{LCH}, {HS}"); A(f"s_add_u32 s{REG}, s{REG}, {HB}")
    A(f"s_mul_i32 s19, s9, {SS}"); A(f"s_add_u32 s19, s19, s{REG}")
    A("s_cmp_lt_u32 s3, 4"); A("s_cselect_b32 s14, s16, 1")
    A("s_mul_i32 s9, s8, 3"); A(f"s_add_u32 s9, s9, s{LCH}")
    A(f"s_cmp_eq_u32 s{LCH}, 2"); A("s_cselect_b32 s9, 2, s9"); A("s_cselect_b32 s13, s16, 0")
    A(f"s_mul_i32 s{CH}, s18, 5"); A(f"s_add_u32 s{CH}, s{CH}, s9")
    kpass(A)
    kgive(A)
    mwave(A)
    A.label("k_post")
    post(A)
    stamp_end(A, 0)
    if OPT["probe"] >= 0:
        A("s_waitcnt vmcnt(0)")
        stamp(A, 13)
        A("s_cmp_lg_u32 s3, 1"); A("s_cbranch_scc1 k_end")
        A(f"s_cmp_lg_u32 s2, {OPT['pwg']}"); A("s_cbranch_scc1 k_end")
        A("s_sub_u32 s70, s66, s64"); A("s_mul_i32 s70, s70, 4"); A("s_min_u32 s70, s70, 20000")
        A("s_memrealtime s[68:69]"); A("s_waitcnt lgkmcnt(0)")
        A.label("k_pr")
        A("s_memrealtime s[72:73]"); A("s_waitcnt lgkmcnt(0)")
        A("s_sub_u32 s72, s72, s68"); A("s_cmp_lt_u32 s72, s70"); A("s_cbranch_scc1 k_pr")
    A.label("k_end")
    A("s_endpgm")
    A.label("k_h")
    A(f"s_mov_b32 s{RMT}, s13")
    hwave(A)
    A.label("k_fin")
    finpre(A)
    A("s_branch k_post")
    A.label("k_l")
    loader(A)
    A("s_branch k_post")
    A.label("k_last")
    A("s_endpgm")
    kernel_desc(A, NAME, 256, 102)
    return re.sub(r"^    (\w+:)$", r"\1", A.text(), flags=re.M)

if __name__ == "__main__":
    gen1.DIAG = "--diag" in sys.argv
    for a in sys.argv[2:]:
        if "=" in a:
            k, v = a.split("="); OPT[k] = eval(v)
    open(sys.argv[1], "w").write(build())
```

```python
import sys, re, copy
from asmlib import *
import gen1
from gen1 import LOG2E, NLOG2E, LOG2E_LO, LN2, stamp, stamp_begin, stamp_end
NAME = "gated_mix__ssm_conv_s4d__swiglu_ffn__prompt_kernel"
OPT = dict(pk=4, pwg=77, probe=-1, hdiag=0, mprio=2, ctouch=1, epk=4, barks=2, barg=3, kdepth=1, thr2=0, cprio=1, psleep=3, sleep=1, wb=(0,40), ysleep=8, pulls=(4,6,7), lbar=36, pbf=1)
H_OFF = 0
UR_OFF = 6291456
YT_OFF = UR_OFF + 2621440
GG_OFF = YT_OFF + 2621440
HF_OFF = GG_OFF + 16384
UF_OFF = HF_OFF + 128*256
YF_OFF = UF_OFF + 16*256
WF_OFF = YF_OFF + 8*80*256
KF_OFF = WF_OFF + 16*256
KP_OFF = KF_OFF + 128*128
LAST_OFF = KP_OFF + 128*3072
WDF_OFF = 12 << 20
WS_BYTES = 1 << 25
GB = 16384; UB = GB + 12288 + 32; STG = 41024
HB = 3*STG; HS = 13184
FLG = HB + 3*HS
FT = FLG + 120
LDS_BYTES = FT + 256
RS = 272; SS = 16*RS
C0 = 64; C1 = C0 + 4160; CU = 8448
A2O = 4096; A2S = 1072; OMG = 8704
TB2 = 2*STG; GXO = TB2 + 24576; GWO = TB2 + 34816
PB = 176
PR = 336; PW = 64*PR
SPIN = 0x3000
U, LOGA, LOGDT, DSK, WG, WU, WD, GW, OUT, DBG = 32, 34, 42, 44, 48, 50, 52, 54, 56, 58
XCD, RR, R4, C2, LCH, REG = 96, 97, 98, 99, 100, 101
CH, TAG, RMT = 60, 61, 47
_stamp0 = stamp
def stamp(A, i, real=False):
    if OPT["hdiag"] and i != 1: return
    _stamp0(A, i, real)
    if OPT["probe"] == i:
        A("s_memrealtime s[66:67]"); A("s_waitcnt lgkmcnt(0)")
def P2(b): return f"v[{b}:{b+1}]"

def lds_wait(A, vaddr, vtmp, cond, off=0, sleep=0):
    l = A.newlabel("lw"); d = A.newlabel("lw")
    A("s_mov_b32 s62, 0")
    A.label(l)
    A(f"ds_read_b32 v{vtmp}, v{vaddr} offset:{off}")
    A("s_addk_i32 s62, 1")
    A("s_waitcnt lgkmcnt(0)")
    A(f"{cond}, v{vtmp}")
    A(f"s_cbranch_vccz {d}")
    if sleep: A(f"s_sleep {sleep}")
    A("s_cmpk_lt_u32 s62, 0x7000")
    A(f"s_cbranch_scc1 {l}")
    A.label(d)

def poll(A, vaddr, soff, vdst, n=1, tagreg=None):
    l = A.newlabel("pl"); d = A.newlabel("pl")
    tagreg = vdst if tagreg is None else tagreg
    A("s_mov_b32 s62, 0")
    A.label(l)
    A(f"buffer_load_dword{'x2' if n == 2 else ''} {vr(vdst, n)}, v{vaddr}, s[20:23], {soff} offen sc1")
    A("s_addk_i32 s62, 1")
    A("s_waitcnt vmcnt(0)")
    A(f"v_cmp_ne_u32 vcc, s{TAG}, v{tagreg}")
    A(f"s_cbranch_vccz {d}")
    A(f"s_sleep {OPT['psleep']}")
    A(f"s_cmpk_lt_u32 s62, 0x{SPIN:x}")
    A(f"s_cbranch_scc1 {l}")
    A.label(d)

def flag_store(A, soff, vt, rep=1, stride=0):
    A(f"v_mov_b32 v{vt}, s{TAG}")
    A(f"v_mul_u32_u24 v{vt+1}, {stride}, v0")
    A(f"s_mov_b64 exec, {(1 << rep) - 1}")
    A("s_waitcnt vmcnt(0)")
    A(f"buffer_store_dword v{vt}, v{vt+1}, s[20:23], {soff} offen sc1")
    A("s_mov_b64 exec, -1")

def tag_get(A, vt):
    l = A.newlabel("tg"); d = A.newlabel("tg")
    A(f"s_load_dword s{TAG}, s[{DBG}:{DBG+1}], 0")
    A("s_mov_b32 s62, 0")
    A("s_waitcnt lgkmcnt(0)")
    A.label(l)
    A(f"s_cmp_lg_u32 s{TAG}, 0"); A(f"s_cbranch_scc1 {d}")
    A(f"v_mov_b32 v{vt}, 0")
    A(f"global_load_dword v{vt}, v{vt}, s[{DBG}:{DBG+1}] sc1")
    A("s_addk_i32 s62, 1")
    A("s_waitcnt vmcnt(0)")
    A(f"v_readfirstlane_b32 s{TAG}, v{vt}")
    A(f"s_sleep {OPT['psleep']}")
    A(f"s_cmpk_lt_u32 s62, 0x{SPIN:x}"); A(f"s_cbranch_scc1 {l}")
    A.label(d)

def spoll(A, soff, n, sleep):
    l = A.newlabel("sp"); d = A.newlabel("sp")
    A("s_mov_b32 s62, 0")
    A.label(l)
    A(f"s_load_dword{'x8 s[36:43]' if n == 8 else ' s36'}, s[20:21], {soff} glc")
    A("s_addk_i32 s62, 1")
    A("s_waitcnt lgkmcnt(0)")
    if n == 8:
        A("s_min_u32 s44, s36, s37"); A("s_max_u32 s45, s36, s37")
        for i in range(2, 8):
            A(f"s_min_u32 s44, s44, s{36+i}"); A(f"s_max_u32 s45, s45, s{36+i}")
        A(f"s_xor_b32 s44, s44, s{TAG}"); A(f"s_xor_b32 s45, s45, s{TAG}"); A("s_or_b32 s44, s44, s45")
    else:
        A(f"s_cmp_lg_u32 s36, s{TAG}")
    A(f"s_cbranch_scc0 {d}")
    A(f"s_sleep {sleep}")
    A(f"s_cmpk_lt_u32 s62, 0x{SPIN:x}"); A(f"s_cbranch_scc1 {l}")
    A.label(d)

def loader(A):
    if OPT["ctouch"]:
        A("s_getpc_b64 s[24:25]")
        A.label("k_pc")
        A(f"s_sub_u32 s24, s24, k_pc - {NAME}"); A("s_subb_u32 s25, s25, 0")
        A(f"v_lshlrev_b32 v8, 5, v0"); A(f"v_add_u32 v8, s{RR}, v8"); A("v_lshlrev_b32 v8, 7, v8")
        A(f"v_min_u32 v8, k_last - {NAME}, v8")
        A("v_mov_b32 v23, s25"); A("v_add_co_u32 v22, vcc, s24, v8"); A("v_addc_co_u32 v23, vcc, 0, v23, vcc")
        A("s_mov_b64 exec, 0xff")
        A("global_load_dword v24, v[22:23], off")
        A("s_mov_b64 exec, -1")
    A("v_lshrrev_b32 v8, 3, v0"); A("v_mul_u32_u24 v8, 1280, v8")
    A("v_lshrrev_b32 v9, 4, v0"); A("v_and_b32 v10, 7, v0"); A("v_xor_b32 v9, v9, v10")
    A("v_lshl_add_u32 v2, v9, 4, v8")
    A("v_xor_b32 v9, 4, v9"); A("v_lshl_add_u32 v3, v9, 4, v8")
    A(f"v_add_u32 v3, {10240-1024}, v3"); A(f"v_add_u32 v4, {20480-2048}, v2"); A(f"v_add_u32 v5, {20480-2048}, v3")
    for i in range(3):
        A(f"v_add_u32 v9, {64*i}, v0"); A("v_mul_u32_u24 v10, 5462, v9"); A("v_lshrrev_b32 v10, 16, v10")
        A("v_mul_u32_u24 v10, 2880, v10"); A(f"v_lshl_add_u32 v{11+i}, v0, 4, v10")
    A("v_lshlrev_b32 v1, 4, v0")
    A("v_mov_b32 v14, 0x7ffffff0")
    A("v_and_b32 v15, 3, v0"); A("v_lshlrev_b32 v15, 2, v15"); A(f"v_add_u32 v15, {FLG}, v15")
    A("s_mul_i32 s26, s4, 163840"); A("s_mul_i32 s27, s5, 192")
    A("s_mov_b32 s29, 0"); A("s_mov_b32 s30, 0"); A(f"s_mov_b32 s31, {FT-4}")
    A("s_mov_b32 s10, 2621440"); A("s_mov_b32 s11, 0x20000")
    A("s_mov_b32 s14, 1966080"); A("s_mov_b32 s15, 0x20000")
    A("s_mov_b32 s18, 1966080"); A("s_mov_b32 s19, 0x20000")
    A("v_and_b32 v10, 7, v0"); A("v_lshl_add_u32 v16, v10, 4, v8")
    A(f"s_and_b32 s24, s{R4}, 1"); A("s_lshl_b32 s24, s24, 5"); A(f"s_add_u32 s24, s24, s{RR}")
    A("s_mul_i32 s24, s24, 3072"); A(f"s_mul_i32 s25, s{C2}, 1536"); A("s_add_u32 s24, s24, s25")
    A("v_min_u32 v18, 59, v0"); A("v_mul_u32_u24 v19, 43, v18"); A("v_lshrrev_b32 v19, 9, v19")
    A("v_mul_u32_u24 v19, %d, v19" % (196608 - 1536)); A("v_lshl_add_u32 v18, v18, 7, v19"); A("v_add_u32 v18, s24, v18")
    A("v_add_u32 v19, %d, v18" % (5*196608))
    A("s_waitcnt lgkmcnt(0)")
    A("s_and_b32 s24, s2, 31"); A("s_lshr_b32 s25, s2, 5")
    A("s_mul_i32 s44, s24, 81920"); A("s_lshl_b32 s25, s25, 7"); A("s_add_u32 s44, s44, s25")
    A("s_min_u32 s24, s2, 239"); A("s_mul_i32 s25, s24, 2731"); A("s_lshr_b32 s25, s25, 16")
    A("s_mul_i32 s28, s25, 24"); A("s_sub_u32 s24, s24, s28")
    A("s_mul_i32 s45, s24, 81920"); A("s_lshl_b32 s25, s25, 7"); A("s_add_u32 s45, s45, s25"); A("s_sub_u32 s45, s45, 10240")
    A(f"s_lshl_b32 s46, s{XCD}, 5"); A(f"s_add_u32 s46, s46, s{RR}"); A("s_mul_i32 s46, s46, 10240")
    A("s_barrier")
    A(f"s_mov_b32 s8, s{U}"); A(f"s_mov_b32 s9, s{U+1}")
    A(f"s_mov_b32 s12, s{WG}"); A(f"s_mov_b32 s13, s{WG+1}"); A(f"s_mov_b32 s16, s{WU}"); A(f"s_mov_b32 s17, s{WU+1}")
    A(f"s_cmp_ge_u32 s{R4}, 2"); A(f"s_cselect_b32 s24, s{WU}, s{WG}"); A(f"s_cselect_b32 s25, s{WU+1}, s{WG+1}")
    stamp(A, 1)
    A("global_load_dword v20, v18, s[24:25]")
    A(f"s_mov_b32 s36, s{WD}"); A(f"s_mov_b32 s37, s{WD+1}"); A("s_mov_b32 s38, 1966080"); A("s_mov_b32 s39, 0x20000")
    A(f"s_mov_b32 s40, s{GW}"); A(f"s_mov_b32 s41, s{GW+1}"); A("s_mov_b32 s42, 1280"); A("s_mov_b32 s43, 0x20000")
    def utile(h):
        for i in range(8):
            A(f"s_mov_b32 m0, {TB2 + 8192*h + 1024*i}"); A(f"v_xor_b32 v17, {16*i}, v16")
            A("buffer_load_dwordx4 v17, s[8:11], s44 offen lds"); A("s_add_u32 s44, s44, 10240")
    def tasks():
        utile(0)
        for i in range(8):
            A(f"s_mov_b32 m0, {TB2 + 8192 + 1024*i}"); A("s_add_u32 s45, s45, 10240")
            A("buffer_load_dwordx4 v16, s[36:39], s45 offen lds")
        n2 = A.newlabel("n2")
        A("s_cmp_ge_u32 s2, 64"); A(f"s_cbranch_scc1 {n2}")
        A(f"s_sub_u32 s44, s44, {81920 - 1024}")
        utile(2)
        A.label(n2)
        for (o, n) in ((0, 4), (4096, 4), (8192, 2)):
            A(f"s_mov_b32 m0, {GXO + o}"); A(f"s_add_u32 s28, s46, {o}")
            for i in range(n): A(f"buffer_load_dwordx4 v1, s[8:11], s28 offen offset:{1024*i} lds")
        A(f"s_mov_b32 m0, {GWO}"); A("s_nop 0")
        for i in range(2): A(f"buffer_load_dwordx4 v1, s[40:43], 0 offen offset:{1024*i} lds")
        A(f"s_mov_b32 m0, {FT}"); A("s_nop 0")
        A("buffer_load_dword v14, s[8:11], 0 offen lds")
    tasks()
    A("global_load_dword v21, v19, s[24:25]")
    nt0 = A.newlabel("mk")
    A("s_cmp_lg_u32 s2, 0"); A(f"s_cbranch_scc1 {nt0}")
    A(f"s_add_u32 s24, s20, {LAST_OFF}"); A("s_addc_u32 s25, s21, 0")
    A("s_load_dword s28, s[24:25], 0")
    A("v_mov_b32 v16, 0")
    A("s_waitcnt lgkmcnt(0)")
    A("s_add_u32 s28, s28, 1"); A("s_max_u32 s28, s28, 1")
    A("v_mov_b32 v17, s28")
    A("s_mov_b64 exec, 1")
    A(f"global_store_dword v16, v17, s[{DBG}:{DBG+1}] sc1")
    A("global_store_dword v16, v17, s[24:25] sc1")
    A("s_mov_b64 exec, -1")
    A.label(nt0)
    def flag(fill):
        A("s_mov_b32 m0, s31"); A(fill)
        A("buffer_load_dword v14, s[8:11], 0 offen lds")
    def tail():
        flag("s_sub_u32 s31, s31, 4")
        A(f"s_add_u32 s29, s29, {STG}"); A(f"s_cmp_eq_u32 s29, {3*STG}"); A("s_cselect_b32 s29, 0, s29")
        A("s_add_u32 s30, s30, 1")
    l1 = A.newlabel("ld")
    cnt = [0]
    extra = {1: [f"s_add_u32 s33, s29, {STG}"], 2: [f"s_cmp_eq_u32 s33, {3*STG}", "s_cselect_b32 s33, 0, s33"], 4: ["s_add_u32 s30, s30, 1"],
             26: ["s_add_u32 s26, s26, 128"], 37: ["s_add_u32 s27, s27, 196608"], 40: ["s_mov_b32 s29, s33"]}
    def dma(x):
        A(x); cnt[0] += 1
        for e in extra.get(cnt[0], []): A(e)
        if cnt[0] == OPT["lbar"]:
            sk = A.newlabel("sk")
            A("s_bitcmp1_b32 s34, s30"); A(f"s_cbranch_scc1 {sk}")
            A("s_barrier")
            A.label(sk)
    def xq(q):
        A(f"s_add_u32 m0, s29, {4096*q}"); A(f"s_add_u32 s28, s26, {40960*q}")
        for i in range(4): dma(f"buffer_load_dwordx4 v{2+i}, s[8:11], s28 offen offset:{1024*i} lds")
    def wq(q):
        A(f"s_add_u32 m0, s29, {GB + 3072*q}"); A(f"s_add_u32 s28, s27, {49152*q}")
        for i in range(3): dma(f"buffer_load_dwordx4 v{11+i}, s[12:15], s28 offen offset:{1024*i} lds")
        A(f"s_add_u32 m0, s29, {UB + 3072*q}"); A("s_nop 0")
        for i in range(3): dma(f"buffer_load_dwordx4 v{11+i}, s[16:19], s28 offen offset:{1024*i} lds")
    def fl():
        A("s_mov_b32 m0, s31"); A("s_sub_u32 s31, s31, 4")
        dma("buffer_load_dword v14, s[8:11], 0 offen lds")
    A("s_mov_b32 s34, 0x402")
    A.label(l1)
    wq(0); xq(0); xq(1); wq(1); xq(2); xq(3); fl(); wq(2); wq(3); fl()
    A("s_cmp_lt_u32 s30, 10"); A(f"s_cbranch_scc1 {l1}")
    stamp(A, 2)
    for p in OPT["wb"]:
        if p == 0: A("s_barrier")
    A("s_mul_i32 s26, s7, 245760"); A(f"s_add_u32 s26, s26, {WDF_OFF}")
    l2 = A.newlabel("ld"); l4 = A.newlabel("ld")
    def bars(n, cur):
        for p in OPT["wb"]:
            if p and p % 40 == n % 40:
                sk = A.newlabel("sk")
                A(f"s_cmp_lg_u32 s30, {10 + p//40}"); A(f"s_cbranch_scc1 {sk}"); A("s_barrier"); A.label(sk)
    A.label(l2)
    for w in range(4):
        for (o, n) in ((0, 4), (4096, 4), (8192, 2)):
            A(f"s_add_u32 m0, s29, {10240*w + o}"); A(f"s_add_u32 s28, s26, {61440*w + o}")
            if OPT["thr2"]: A(f"s_waitcnt vmcnt({OPT['thr2']})")
            for i in range(n): A(f"buffer_load_dwordx4 v1, s[20:23], s28 offen offset:{1024*i} sc1 lds")
        if w < 3: bars(10*w + 10, 0)
    tail()
    bars(40, 1)
    A("s_add_u32 s26, s26, 10240")
    A("s_cmp_lt_u32 s30, 13"); A(f"s_cbranch_scc1 {l2}")
    A("s_cmp_eq_u32 s30, 16"); A(f"s_cbranch_scc1 {l4}")
    A("s_sub_u32 s28, s30, 12")
    lds_wait(A, 15, 17, "v_cmp_gt_i32 vcc, s28", sleep=OPT["sleep"])
    A(f"s_branch {l2}")
    A.label(l4)
    stamp(A, 3)

ACC1 = 64
def msetup(A):
    A("s_lshr_b32 s8, s3, 1"); A("s_and_b32 s9, s3, 1")
    A("v_and_b32 v8, 31, v0"); A("v_lshrrev_b32 v9, 5, v0")
    A("v_bfe_u32 v10, v0, 1, 3"); A("v_xor_b32 v10, v10, v9")
    A("v_lshlrev_b32 v14, 7, v8"); A("s_lshl_b32 s10, s8, 13"); A("v_add_u32 v14, s10, v14")
    for ks in range(4):
        A(f"v_xor_b32 v12, {2*ks}, v10"); A(f"v_lshl_add_u32 v{2+ks}, v12, 4, v14")
    A("v_bfe_u32 v12, v0, 2, 2"); A("v_lshl_add_u32 v12, v9, 3, v12"); A("v_mul_u32_u24 v6, 192, v12")
    A("v_and_b32 v12, 3, v0"); A("v_lshl_add_u32 v6, v12, 3, v6")
    A("v_bfe_u32 v12, v0, 4, 1"); A(f"v_mul_u32_u24 v12, {UB-GB}, v12"); A("v_add_u32 v6, v6, v12")
    A("s_mul_i32 s10, s9, 96"); A(f"s_add_u32 s10, s10, {GB}"); A("v_add_u32 v6, s10, v6")
    A(f"v_mov_b32 v7, {FT-8}")
    A("s_lshl_b32 s10, s3, 2"); A(f"s_add_u32 s10, s10, {FLG}"); A("v_mov_b32 v8, s10")
    for i in range(48): A(f"v_pk_mov_b32 {P2(ACC1+2*i)}, 0, 0")
    A("s_mov_b32 s54, 0x%x" % NLOG2E); A("s_mov_b32 s55, 0x%x" % NLOG2E)
    A("v_and_b32 v10, 15, v0"); A("v_lshlrev_b32 v10, 4, v10"); A("v_lshl_add_u32 v10, v9, 8, v10")
    A("v_bfe_u32 v12, v0, 4, 1"); A("v_lshl_add_u32 v10, v12, 10, v10")
    A("s_lshl_b32 s18, s4, 1"); A("s_add_u32 s18, s18, s8")
    A("s_mul_i32 s11, s18, 196608"); A("s_mul_i32 s12, s5, 6"); A("s_mul_i32 s13, s9, 3"); A("s_add_u32 s12, s12, s13")
    for nt in range(3):
        A(f"s_add_u32 s13, s12, {nt}")
        A("s_lshr_b32 s10, s13, 1"); A("s_lshl_b32 s10, s10, 12")
        A("s_and_b32 s13, s13, 1"); A("s_lshl_b32 s13, s13, 9"); A("s_add_u32 s10, s10, s13")
        A(f"s_add_u32 s{48+nt}, s10, s11")
    A("s_lshl_b32 s51, s18, 2"); A("s_lshr_b32 s10, s5, 2"); A("s_add_u32 s51, s51, s10"); A("s_lshl_b32 s51, s51, 8")
    A("s_and_b32 s10, s5, 3"); A("s_lshl_b32 s10, s10, 1"); A("s_add_u32 s10, s10, s9"); A("s_lshl_b32 s10, s10, 2")
    A("s_add_u32 s51, s51, s10"); A(f"s_add_u32 s51, s51, {HF_OFF}")
    A("s_lshl_b32 s52, s6, 2"); A("s_add_u32 s52, s52, s3"); A("s_lshl_b32 s52, s52, 8"); A(f"s_add_u32 s52, s52, {HF_OFF}")
    A("s_mul_i32 s53, s6, 196608"); A("s_mul_i32 s10, s3, 49152"); A("s_add_u32 s53, s53, s10")
    A("s_mul_i32 s10, s3, 10240"); A("v_add_u32 v11, s10, v1")

def kgive(A):
    A("v_add_u32 v15, s19, v1")
    A("s_nop 4")
    for i in range(3): A(f"ds_write_b128 v15, v[{20+4*i}:{23+4*i}] offset:{1024*i}")

def mwave(A):
    sW = 3
    A("s_mov_b32 s16, 0x%x" % ((-2*STG) & 0xffffffff)); A(f"s_mov_b32 s17, {STG}")
    F = [16, 36]
    def reads(ks, f):
        r = []; b = F[f]
        r.append(f"ds_read_b128 v[{b}:{b+3}], v{2+ks}")
        for nt in range(3):
            o = b + 8 + 4*nt
            r.append(f"ds_read_b64_tr_b16 v[{o}:{o+1}], v6 offset:{3072*ks + 32*nt}")
            r.append(f"ds_read_b64_tr_b16 v[{o+2}:{o+3}], v6 offset:{3072*ks + 32*nt + 768}")
        r.append(f"ds_read_b128 v[{b+4}:{b+7}], v{2+ks} offset:4096")
        return r
    def mfmas(f):
        b = F[f]; r = []
        for a in range(2):
            for nt in range(3):
                c = ACC1 + 16*(3*a+nt)
                r.append(f"v_mfma_f32_32x32x16_bf16 v[{c}:{c+15}], v[{b+8+4*nt}:{b+11+4*nt}], v[{b+4*a}:{b+4*a+3}], v[{c}:{c+15}]")
        return r
    A("s_mov_b32 s11, 0"); A("s_mov_b32 s12, 0")
    A("s_waitcnt lgkmcnt(0)")
    stamp(A, 12)
    A("s_barrier")
    lds_wait(A, 7, 13, "v_cmp_ne_u32 vcc, 0", off=4)
    stamp(A, 2)
    PL = {0: [(1, 5), (1, 6)], 1: [(1, 7)], 2: [(2, 0)], 3: [(2, 1)], 4: [(2, 2), (2, 3)], 5: [(2, 4)]}
    need = {0: (0, 1, 2), 1: (3, 4), 2: (5, 6), 3: (7,), 4: (), 5: ()}
    lp = A.newlabel("g1"); ex_ = A.newlabel("g1x"); slow = A.newlabel("g1s"); back = A.newlabel("g1b")
    slow2 = A.newlabel("g1s"); back2 = A.newlabel("g1b"); nob = A.newlabel("g1n")
    def step_items(k, last):
        ks = k % 4; it = []; ms = mfmas(k % 2)
        for g in range(6):
            it.append(("m", ms[g], [(k, r) for r in need[g]]))
            if ks == 2 and g == 2 and not last:
                it.append(("w", "flag"))
                it += [("x", "v_cmp_ne_u32 vcc, 0, v13"), ("x", f"s_cbranch_vccnz {slow}"), ("x", f"{back}:")]
            if ks == 0 and g == 3:
                it.append(("w", "flagB"))
                it += [("x", "v_cmp_ne_u32 vcc, 0, v12"), ("x", f"s_cbranch_vccnz {slow2}"), ("x", f"{back2}:")]
            if ks == OPT["barks"] and g == OPT["barg"]:
                it.append(("w", (k - ks + 3, 7)))
                if last: it.append(("x", "s_barrier"))
                else: it += [("x", "s_cmp_gt_u32 s11, 7"), ("x", f"s_cbranch_scc1 {nob}"), ("x", "s_barrier"), ("x", f"{nob}:")]
            for (so, ri) in PL[g]:
                if last and ks + so > 3: continue
                it.append(("r", reads((k+so) % 4, (k+so) % 2)[ri], (k+so, ri)))
            ex = []
            if ks == 0 and g == 2: ex = ["s_add_u32 s12, s12, 1", "s_cmp_eq_u32 s12, 3", "s_cselect_b32 s13, s16, s17", "s_cselect_b32 s12, 0, s12"]
            if ks == 1 and g == 1: ex = ["v_add_u32 v2, s13, v2"]
            if ks == 0 and g == 5: ex = ["v_add_u32 v3, s13, v3", "v_subrev_u32 v7, 8, v7"]
            if ks == 1 and g == 2: ex = ["s_add_u32 s11, s11, 1"]
            if ks == 1 and g == 3: ex = ["v_add_u32 v4, s13, v4"]
            if ks == 1 and g == 5: ex = ["s_cmp_eq_u32 s11, 10"]
            if ks == 3 and g == 3 and not last: ex = ["v_add_u32 v5, s13, v5"]
            if ks == 2 and g == 1 and not last: ex = ["v_add_u32 v6, s13, v6"]
            for e in ex: it.append(("x", e))
            if ks == 1 and g == 5: it.append(("r", "ds_read_b32 v13, v7 offset:4", "flag"))
            if ks == 0 and g == 1: it.append(("r", "ds_read_b32 v12, v7", "flagB"))
        return it
    def emit(items, q):
        for i in items:
            tags = i[2] if i[0] == "m" else [i[1]] if i[0] == "w" else []
            if tags:
                pos = max(len(q["ops"]) - 1 - q["ops"][::-1].index(t) for t in tags)
                if pos >= q["done"]:
                    n = min(14, len(q["ops"]) - 1 - pos)
                    q["done"] = len(q["ops"]) - n
                    A(f"s_waitcnt lgkmcnt({n})")
            if i[0] in ("r", "l"): q["ops"].append(i[2] if i[0] == "r" else None)
            if i[0] != "w": A(i[1])
    q = dict(ops=[], done=0)
    emit([("r", reads(0, 0)[r], (0, r)) for r in range(8)] + [("r", reads(1, 1)[ri], (1, ri)) for g in range(6) for (so, ri) in PL[g] if so == 2], q)
    A.label(lp)
    for k in range(2): emit(step_items(k, False), q)
    A(f"s_cbranch_scc1 {ex_}")
    q2 = copy.deepcopy(q)
    for k in range(2, 4): emit(step_items(k, False), q)
    A(f"s_branch {lp}")
    A.label(slow)
    lds_wait(A, 7, 13, "v_cmp_ne_u32 vcc, 0", off=4)
    A(f"s_branch {back}")
    A.label(slow2)
    lds_wait(A, 7, 12, "v_cmp_ne_u32 vcc, 0")
    A(f"s_branch {back2}")
    A.label(ex_)
    if OPT["mprio"]: A(f"s_setprio {OPT['mprio']}")
    for k in range(2, 4): emit(step_items(k, True), q2)
    stamp(A, 3)
    A(f"v_mov_b32 v7, {FLG+16}"); A("v_mov_b32 v5, v11"); A(f"v_add_u32 v6, {2*STG}, v11"); A("s_nop 7")
    AF = [160+4*i for i in range(20)] + [56, 60, 64, 68, 72, 76, 240, 244, 248, 252]
    def areads(step):
        st = 10 + step // 2; slot = st % 3; r = []
        for dt in range(5):
            o = AF[5*(step % 6) + dt]
            off = (STG if slot == 1 else 0) + 5120*(step % 2) + 1024*dt
            va = 6 if slot == 2 else 5
            r.append(f"ds_read_b128 v[{o}:{o+3}], v{va} offset:{off}")
        return r
    def pull(st):
        lds_wait(A, 7, 13, "v_cmp_ne_u32 vcc, 0", off=4*(15-st))
        for x in areads(2*(st-10)) + areads(2*(st-10)+1): A(x)
        A(f"v_mov_b32 v12, {st-9}")
        A("ds_write_b32 v8, v12")
    E = 16
    for a in range(2):
        for nt in range(3):
            g = ACC1 + 16*(3*a+nt); u = g + 8
            o = 32 + 4*((3*a+nt) % 4)
            for j in range(3):
                if 3*a+nt == OPT["pulls"][j]: pull(10+j)
            if 3*a+nt < OPT['epk']:
                for i in range(4): A(f"v_pk_mul_f32 {P2(E+2*i)}, {P2(g+2*i)}, s[54:55]")
                for i in range(8): A(f"v_exp_f32 v{E+i}, v{E+i}")
                for i in range(4): A(f"v_pk_add_f32 {P2(E+2*i)}, {P2(E+2*i)}, 1.0 op_sel_hi:[1,0]")
                for i in range(8): A(f"v_rcp_f32 v{E+i}, v{E+i}")
                for i in range(4): A(f"v_pk_mul_f32 {P2(g+2*i)}, {P2(g+2*i)}, {P2(u+2*i)}")
                for i in range(4): A(f"v_pk_mul_f32 {P2(g+2*i)}, {P2(g+2*i)}, {P2(E+2*i)}")
            else:
                for i in range(8): A(f"v_mul_f32 v{E+i}, s54, v{g+i}")
                for i in range(8): A(f"v_exp_f32 v{E+i}, v{E+i}")
                for i in range(8): A(f"v_add_f32 v{E+i}, 1.0, v{E+i}")
                for i in range(8): A(f"v_rcp_f32 v{E+i}, v{E+i}")
                for i in range(8): A(f"v_mul_f32 v{g+i}, v{g+i}, v{u+i}")
                for i in range(8): A(f"v_mul_f32 v{g+i}, v{g+i}, v{E+i}")
            for i in range(4): A(f"v_cvt_pk_bf16_f32 v{o+i}, v{g+2*i}, v{g+2*i+1}")
            A(f"buffer_store_dwordx4 v[{o}:{o+3}], v10, s[20:23], s{48+nt} offen offset:{2048*a} sc1")
            if 3*a+nt == OPT["epk"] - 1: A("s_barrier")
    if OPT["mprio"]: A("s_setprio 0")
    stamp(A, 4)
    for j in range(3):
        if OPT["pulls"][j] == 6: pull(10+j)
    tag_get(A, 14)
    flag_store(A, "s51", 14)
    stamp(A, 5)
    for j in range(3):
        if OPT["pulls"][j] == 7: pull(10+j)
    stamp(A, 6)
    A("v_and_b32 v4, 15, v0"); A("v_lshrrev_b32 v3, 4, v0")
    A(f"v_mul_u32_u24 v2, {PB}, v4"); A("v_lshl_add_u32 v2, v3, 3, v2")
    A("s_mul_i32 s26, s3, 10240"); A("v_add_u32 v2, s26, v2")
    spoll(A, "s52", 8, OPT["psleep"])
    stamp(A, 7)
    ACC = 80; HR = 8
    def hloads(k):
        b = HR + 16*(k % 3)
        return [f"buffer_load_dwordx4 v[{b+4*i}:{b+4*i+3}], v1, s[20:23], s53 offen offset:{1024*i} sc1" for i in range(4)] + ["s_add_u32 s53, s53, 4096"]
    for k in range(3):
        for x in hloads(k): A(x)
    for k in range(12):
        A(f"s_waitcnt vmcnt({4*min(2, 11-k)})" + (" lgkmcnt(0)" if k in (0, 11) else " lgkmcnt(5)" if k >= 6 else ""))
        if k in (0, 6): stamp(A, 8 + k//6)
        b = HR + 16*(k % 3)
        for dt in range(5):
            for mt in range(4):
                c = ACC + 4*(4*dt+mt); af = AF[5*(k % 6) + dt]
                src = "0" if k == 0 else f"v[{c}:{c+3}]"
                A(f"v_mfma_f32_16x16x32_bf16 v[{c}:{c+3}], v[{af}:{af+3}], v[{b+4*mt}:{b+4*mt+3}], {src}")
        if k + 3 < 12:
            for x in hloads(k+3): A(x)
        j = k + 2
        if 6 <= j < 12:
            if j % 2 == 0: lds_wait(A, 7, 3, "v_cmp_ne_u32 vcc, 0", off=4*(5-j//2))
            for x in areads(j): A(x)
    stamp(A, 10)
    A("s_nop 1")
    for dt in range(5):
        for mt in range(4):
            c = ACC + 4*(4*dt+mt); o = 8 + 2*((4*dt+mt) % 16)
            A(f"v_cvt_pk_bf16_f32 v{o}, v{c}, v{c+1}"); A(f"v_cvt_pk_bf16_f32 v{o+1}, v{c+2}, v{c+3}")
            if 4*dt+mt >= 1: A(pw)
            pw = f"ds_write_b64 v2, v[{o}:{o+1}] offset:{(mt >> 1)*STG + 16*(mt & 1)*PB + 32*dt}"
    A(pw)

def post(A):
    A(f"s_mov_b32 s16, s{OUT}"); A(f"s_mov_b32 s17, s{OUT+1}")
    A("s_mov_b32 s18, 2621440"); A("s_mov_b32 s19, 0x20000")
    A("s_mov_b32 s30, 0xffff0000")
    A("s_mul_i32 s24, s6, 81920"); A("s_mul_i32 s25, s7, 160"); A("s_add_u32 s24, s24, s25")
    A("s_lshl_b32 s27, s3, 6")
    def addr(b):
        A(f"v_add_u32 v{b}, s27, v0")
        A(f"v_mul_u32_u24 v{b+1}, 6554, v{b}"); A(f"v_lshrrev_b32 v{b+1}, 16, v{b+1}")
        A(f"v_mul_u32_u24 v{b+2}, 10, v{b+1}"); A(f"v_sub_u32 v{b+2}, v{b}, v{b+2}")
        A(f"v_mul_u32_u24 v{b+3}, 1280, v{b+1}"); A(f"v_lshl_add_u32 v{b+3}, v{b+2}, 4, v{b+3}")
        A(f"v_mul_u32_u24 v{b+4}, {PB}, v{b+1}"); A(f"v_lshl_add_u32 v{b+4}, v{b+2}, 4, v{b+4}")
        A(f"v_lshrrev_b32 v{b+5}, 5, v{b+1}"); A(f"v_mul_u32_u24 v{b+5}, {STG - 32*PB}, v{b+5}"); A(f"v_add_u32 v{b+4}, v{b+4}, v{b+5}")
        A(f"v_mul_u32_u24 v{b+5}, 86, v{b+2}"); A(f"v_lshrrev_b32 v{b+5}, 8, v{b+5}")
        A(f"v_mul_u32_u24 v{b+6}, {HS+48}, v{b+2}"); A(f"v_mul_u32_u24 v{b+5}, {3*(HS+48) - A2S}, v{b+5}")
        A(f"v_sub_u32 v{b+6}, v{b+6}, v{b+5}"); A(f"v_lshl_add_u32 v{b+6}, v{b+1}, 4, v{b+6}"); A(f"v_add_u32 v{b+6}, {HB + A2O}, v{b+6}")
        A(f"v_lshlrev_b32 v{b+7}, 2, v{b+1}"); A(f"v_add_u32 v{b+7}, {HB + OMG}, v{b+7}")
    def rds(b, d):
        for w in range(4): A(f"ds_read_b128 v[{d+4*w}:{d+4*w+3}], v{b+4} offset:{w*10240}")
        A(f"ds_read_b128 v[{d+16}:{d+19}], v{b+6}")
        A(f"ds_read_b32 v{d+20}, v{b+7}")
    def calc(b, d, rest):
        t = 160
        for w in range(5):
            A(f"s_waitcnt lgkmcnt({rest + (5 - w if w < 4 else 0)})")
            for k in range(4):
                A(f"v_lshlrev_b32 v{t+8*w+2*k}, 16, v{d+4*w+k}"); A(f"v_and_b32 v{t+8*w+2*k+1}, s30, v{d+4*w+k}")
            if 1 <= w <= 3:
                for k in range(4): A(f"v_pk_add_f32 {P2(t+2*k)}, {P2(t+2*k)}, {P2(t+8*w+2*k)}")
        for k in range(4): A(f"v_pk_fma_f32 {P2(t+2*k)}, {P2(t+2*k)}, {P2(d+20)}, {P2(t+32+2*k)} op_sel_hi:[1,0,1]")
        for k in range(4): A(f"v_cvt_pk_bf16_f32 v{d+k}, v{t+2*k}, v{t+2*k+1}")
        A(f"buffer_store_dwordx4 v[{d}:{d+3}], v{b+3}, s[16:19], s24 offen")
    addr(40)
    one = A.newlabel("po"); lp = A.newlabel("po"); dn = A.newlabel("po"); o2 = A.newlabel("po")
    A("s_and_b32 s28, s3, 6"); A("s_cmp_lg_u32 s28, 4"); A(f"s_cbranch_scc1 {one}")
    A("s_add_u32 s27, s27, 256")
    addr(48)
    A.label(one)
    A("s_waitcnt lgkmcnt(0)")
    A("s_barrier")
    stamp(A, 11)
    A("s_cmp_lg_u32 s28, 4"); A(f"s_cbranch_scc1 {o2}")
    rds(48, 232)
    A.label(o2)
    rds(40, 208)
    A.label(lp)
    calc(40, 208, 0)
    A("s_cmp_lg_u32 s28, 4"); A(f"s_cbranch_scc1 {dn}")
    A("s_mov_b32 s28, 0"); A("v_mov_b32 v43, v51")
    for i in range(10, -1, -1): A(f"v_pk_mov_b32 {P2(208+2*i)}, {P2(232+2*i)}, {P2(232+2*i)} op_sel:[0,1]")
    A(f"s_branch {lp}")
    A.label(dn)

def pcmul(A, d, s, m):
    A(f"v_pk_mul_f32 {P2(d)}, {P2(s)}, {P2(m)} op_sel:[0,0] op_sel_hi:[1,0]")
    A(f"v_pk_fma_f32 {P2(d)}, {P2(s)}, {P2(m)}, {P2(d)} op_sel:[1,1,0] op_sel_hi:[0,1,1] neg_lo:[0,1,0]")

def kpass(A):
    RAW = 232; FA = 16; ACC = 20
    A(f"s_mul_i32 s28, s{CH}, 384"); A("s_lshl_b32 s29, s17, 7"); A("s_add_u32 s28, s28, s29")
    A("v_lshlrev_b32 v1, 1, v0"); A("v_add_u32 v1, s28, v1")
    A(f"s_lshr_b32 s28, s{CH}, 1"); A("s_lshl_b32 s28, s28, 2")
    A("s_mov_b32 m0, s19")
    A("v_and_b32 v17, 15, v0"); A("v_lshrrev_b32 v18, 4, v0")
    A("s_waitcnt lgkmcnt(0)")
    for a in range(4): A(f"global_load_ushort v{RAW+a}, v1, s[{LOGA+2*a}:{LOGA+2*a+1}]")
    A(f"s_load_dword s30, s[{LOGDT}:{LOGDT+1}], s28")
    A(f"s_load_dword s31, s[{DSK}:{DSK+1}], s28")
    A("s_cmp_lt_u32 s14, 2"); A("s_cbranch_scc1 k_one")
    for a in range(4): A(f"global_load_ushort v{RAW+4+a}, v1, s[{LOGA+2*a}:{LOGA+2*a+1}] offset:128")
    A.label("k_one")
    A("s_barrier")
    A("s_mov_b32 s24, 0x%x" % LOG2E); A("s_mov_b32 s25, 0x%x" % LOG2E_LO); A("s_mov_b32 s26, 0x%x" % LN2)
    A("s_mov_b32 s27, 0x41000000"); A("s_mov_b32 s28, 0x43000000")
    A(f"v_mul_u32_u24 v{FA}, {RS}, v17"); A(f"v_lshl_add_u32 v{FA}, v18, 4, v{FA}"); A(f"v_add_u32 v{FA}, s19, v{FA}")
    for i in range(6): A(f"v_pk_mov_b32 {P2(ACC+2*i)}, 0, 0")
    DT, DT2, NDT, ONE = 32, 34, 33, 36
    A(f"v_mov_b32 v{ONE}, 0x3f80")
    A("v_lshlrev_b32 v1, 4, v0")
    A("s_cmp_ge_u32 s3, 4"); A("s_cbranch_scc1 k_nosetup")
    msetup(A)
    A.label("k_nosetup")
    A("s_waitcnt lgkmcnt(0)")
    A(f"s_bitcmp1_b32 s{CH}, 0")
    A("s_cselect_b32 s29, 0, 16")
    A("s_lshl_b32 s30, s30, s29"); A("s_and_b32 s30, s30, 0xffff0000")
    A("s_lshl_b32 s31, s31, s29"); A("s_and_b32 s31, s31, 0xffff0000")
    A("s_cmp_eq_u32 s17, 0"); A("s_cselect_b32 s31, s31, 0")
    A("v_mov_b32 v37, s30")
    A(f"v_writelane_b32 v{ACC}, s31, 0")
    A("v_mul_f32 v38, s24, v37"); A("v_fma_f32 v39, v37, s24, -v38"); A("v_fmac_f32 v39, s25, v37")
    A("v_exp_f32 v38, v38"); A("v_mul_f32 v39, s26, v39"); A("v_fmac_f32 v38, v38, v39")
    A("v_cvt_pk_bf16_f32 v38, v38, v38")
    A(f"v_lshlrev_b32 v{DT}, 16, v38")
    A(f"v_add_f32 v{DT2}, v{DT}, v{DT}"); A(f"v_sub_f32 v{NDT}, 0, v{DT}")
    A("s_waitcnt vmcnt(0)")
    stamp(A, 1)
    A.label("k_loop")
    A1 = 38; TH = 39
    Z, W, Y = 40, 42, 44
    P = 48; T = 224; QA, QB = 226, 228; PK = 240
    QF, PF = 160, 176
    A(f"v_lshlrev_b32 v{T}, 16, v{RAW}"); A(f"v_mul_f32 v{T}, s24, v{T}")
    A(f"v_lshlrev_b32 v{TH}, 16, v{RAW+1}")
    A(f"v_exp_f32 v{T}, v{T}")
    A(f"v_lshlrev_b32 v{P}, 16, v{RAW+2}"); A(f"v_lshlrev_b32 v{P+1}, 16, v{RAW+3}")
    A(f"v_cvt_pk_bf16_f32 v{T}, v{T}, v{T}")
    A(f"v_mul_f32 v{TH}, v{TH}, v{DT}")
    A(f"v_lshlrev_b32 v{T}, 16, v{T}")
    A(f"v_mul_f32 v{TH}, 0.15915494, v{TH}")
    A(f"v_mul_f32 v{A1}, v{T}, v{NDT}")
    A(f"v_pk_mul_f32 {P2(P)}, {P2(P)}, {P2(DT2)} op_sel_hi:[1,0]")
    A(f"v_mul_f32 v{A1}, s24, v{A1}")
    A(f"v_pk_mov_b32 {P2(RAW)}, {P2(RAW+4)}, {P2(RAW+4)} op_sel:[0,1]"); A(f"v_pk_mov_b32 {P2(RAW+2)}, {P2(RAW+6)}, {P2(RAW+6)} op_sel:[0,1]")
    for (R, sc) in ((W, "s27"), (Z, None), (Y, "s28")):
        if sc:
            A(f"v_mul_f32 v{T}, {sc}, v{A1}"); A(f"v_mul_f32 v{T+1}, {sc}, v{TH}")
            A(f"v_exp_f32 v{T}, v{T}"); A(f"v_fract_f32 v{T+1}, v{T+1}")
        else:
            A(f"v_exp_f32 v{T}, v{A1}"); A(f"v_fract_f32 v{T+1}, v{TH}")
        A(f"v_cos_f32 v{R}, v{T+1}"); A(f"v_sin_f32 v{R+1}, v{T+1}")
        A("s_nop 0")
        A(f"v_pk_mul_f32 {P2(R)}, {P2(R)}, {P2(T)} op_sel_hi:[1,0]" + (" neg_hi:[1,0]" if R == W else ""))
    pkc = [0]
    def emit(row, r):
        k = PK + pkc[0] % 16; pkc[0] += 1
        A(f"v_cvt_pk_bf16_f32 v{k}, v{r}, v{r+1}")
        pend.append(f"ds_write_addtid_b32 v{k} offset:{row*RS}")
        while len(pend) > OPT["kdepth"]: A(pend.pop(0))
    pend = []
    def rd(base):
        while pend: A(pend.pop(0))
        for t in range(4): A(f"ds_read_b128 v[{base+4*t}:{base+4*t+3}], v{FA} offset:{64*t}")
    def mm(acc, base, n):
        A(f"s_waitcnt lgkmcnt({n})")
        for t in range(4):
            A(f"v_mfma_f32_16x16x32_bf16 v[{acc}:{acc+3}], v[{base+4*t}:{base+4*t+3}], v[{QF+4*t}:{QF+4*t+3}], v[{acc}:{acc+3}]")
    A(f"ds_write_addtid_b32 v{ONE} offset:0")
    qs = W
    for j in range(2, 17):
        dst = QA if j % 2 == 0 else QB
        if j < 16: pcmul(A, dst, qs, W)
        emit(j-1, qs)
        b = j - 1
        if b <= 7: pcmul(A, P+2*b, P+2*b-2, Z)
        qs = dst
    rd(QF)
    loc = {}
    for b in range(0, 8, 2):
        emit(b, P+2*b); emit(b+1, P+2*b+2)
        pcmul(A, T, P+2*b+2, Y); pcmul(A, P+2*b+2, P+2*b, Y)
        emit(8+b+1, T); emit(8+b, P+2*b+2)
        loc[b] = P+2*b+2
    rd(PF)
    def step(b, row):
        s = loc[b]; d = P+2*b if s == P+2*b+2 else P+2*b+2
        pcmul(A, d, s, Y); loc[b] = d
        return (row, d)
    for a in range(2):
        es = [step(b, 4*a + b//2) for b in (0, 2, 4, 6)]
        for e in es: emit(*e)
    for a in range(4):
        es = [step(b, 8 + 2*a + b//4) for b in (0, 4)]
        for e in es: emit(*e)
    rd(PF+16)
    e = step(0, 0)
    for a in range(1, 10):
        n = step(0, a) if a < 9 else None
        emit(*e); e = n
    rd(PF+32)
    mm(ACC, PF, 8); mm(ACC+4, PF+16, 4); mm(ACC+8, PF+32, 0)
    A("s_sub_u32 s14, s14, 1"); A("s_cmp_lg_u32 s14, 0"); A("s_cbranch_scc1 k_loop")
    A("s_cmp_ge_u32 s3, 4"); A("s_cbranch_scc1 k_h")

def kaddr(A):
    sL = REG
    A(f"v_add_u32 v39, s{sL}, v1")
    EB = C0
    A("v_lshlrev_b32 v40, 4, v17"); A(f"v_add_u32 v40, s{sL}, v40")
    A("v_lshl_add_u32 v41, v18, 10, v40"); A(f"v_add_u32 v41, {EB + 2048 - 8}, v41")
    A("v_and_b32 v42, 1, v0"); A("v_lshlrev_b32 v42, 3, v42"); A("v_sub_u32 v42, v41, v42")
    A("v_lshl_add_u32 v43, v18, 9, v40"); A("v_lshl_add_u32 v44, v18, 8, v40")
    A("v_lshrrev_b32 v45, 1, v18"); A("v_lshl_add_u32 v45, v45, 8, v40")
    A("v_and_b32 v46, 1, v18"); A("v_lshl_add_u32 v45, v46, 3, v45")
    A("v_mov_b32 v66, 0"); A("v_mov_b32 v67, 0")
    A("v_and_b32 v46, 7, v0"); A("v_lshlrev_b32 v46, 2, v46"); A(f"v_add_u32 v46, s{sL}, v46")
    A("v_lshlrev_b32 v47, 3, v0"); A(f"v_add_u32 v47, s{sL}, v47")

KC = {xy: 56+n for n, xy in enumerate([(0,0),(0,1),(1,1),(2,2),(2,3),(3,3),(1,2)])}
def kexp0(A):
    K0, K1, K2 = 20, 24, 28
    for r in range(4):
        A(f"v_cvt_pk_bf16_f32 v{48+2*r}, v{K2+r}, v{K2+r}"); A(f"v_mov_b32 v{49+2*r}, v{48+2*r}")
    for (x, y), r in KC.items(): A(f"v_cvt_pk_bf16_f32 v{r}, v{K1+x}, v{K1+y}")
    A(f"v_cvt_pk_bf16_f32 v64, v{K0}, v{K0+1}"); A(f"v_cvt_pk_bf16_f32 v65, v{K0+2}, v{K0+3}")
def kexp1(A):
    EB = C0; c = KC
    for r in range(4): A(f"ds_write2_b64 v41, v[{48+2*r}:{49+2*r}], v[{48+2*r}:{49+2*r}] offset0:{32*r} offset1:{32*r+1}")
    for r in range(4): A(f"ds_write_b16 v42, v{48+2*r} offset:{256*r+16}")
    A("s_mov_b32 exec_lo, 0")
    o = (EB - 4) // 4
    A(f"ds_write2_b32 v43, v{c[0,0]}, v{c[0,0]} offset0:{o} offset1:{o+1}")
    A(f"ds_write2_b32 v43, v{c[0,1]}, v{c[1,1]} offset0:{o+2} offset1:{o+3}")
    A(f"ds_write2_b32 v43, v{c[2,2]}, v{c[2,2]} offset0:{o+64} offset1:{o+65}")
    A(f"ds_write2_b32 v43, v{c[2,3]}, v{c[3,3]} offset0:{o+66} offset1:{o+67}")
    A("s_mov_b32 exec_lo, -1"); A("s_mov_b32 exec_hi, 0")
    o = EB + 512
    A(f"ds_write_b16 v44, v{c[0,0]} offset:{o-2}")
    A(f"ds_write2_b32 v44, v{c[0,0]}, v{c[1,2]} offset0:{o//4} offset1:{o//4+1}")
    A(f"ds_write_b32 v44, v{c[2,2]} offset:{o+8}")
    A(f"ds_write_b16 v44, v{c[3,3]} offset:{o+12}")
    A("s_mov_b64 exec, -1")
    A(f"ds_write_b64 v45, v[64:65] offset:{EB}")
    A(f"ds_write_b32 v46, v66 offset:{C0-32}"); A(f"ds_write_b32 v46, v66 offset:{C1-32}")
    A(f"ds_write_b64 v47, v[66:67] offset:{CU+4096}")
    for i in range(4):
        A(f"ds_read_b128 v[{80+8*i}:{83+8*i}], v39 offset:{EB+1024*i}")
        A(f"ds_read_b32 v{72+i}, v39 offset:{EB+1024*i-4}")
def kexp2(A):
    A("s_waitcnt lgkmcnt(0)")
    for i in range(4):
        b = 80+8*i
        A(f"v_alignbit_b32 v{b+4}, v{b}, v{72+i}, 16")
        for k in range(1, 4): A(f"v_alignbit_b32 v{b+4+k}, v{b+k}, v{b+k-1}, 16")
        A(f"ds_write_b128 v39, v[{b+4}:{b+7}] offset:{C1+1024*i}")

def caddr(A):
    sL = REG
    A("v_lshlrev_b32 v2, 4, v18"); A("v_lshlrev_b32 v6, 5, v17"); A("v_sub_u32 v2, v2, v6")
    A(f"v_add_u32 v2, {CU + 4064 - 3584}, v2"); A(f"v_add_u32 v2, s{sL}, v2")
    A("v_sub_u32 v6, 15, v17"); A("v_and_b32 v7, 1, v6"); A("v_sub_u32 v6, v6, v7")
    A(f"v_mul_u32_u24 v3, {C1-C0}, v7"); A("v_lshl_add_u32 v3, v18, 4, v3")
    A("v_lshlrev_b32 v6, 1, v6"); A("v_sub_u32 v3, v3, v6")
    A(f"v_add_u32 v3, {C0}, v3"); A(f"v_add_u32 v3, s{sL}, v3")
    for i in range(1, 4): A(f"v_add_u32 v{3+i}, {1024*i}, v3")
    A("v_lshlrev_b32 v7, 5, v17"); A("v_lshrrev_b32 v8, 1, v18"); A("v_lshl_add_u32 v7, v8, 4, v7")
    A("v_and_b32 v8, 1, v18"); A("v_lshl_add_u32 v7, v8, 9, v7")

def conv(A):
    Y = 172
    TB = [40, 104]
    def reads(f, extra):
        b = TB[f]; r = []
        for q in range(8):
            r.append(f"ds_read_b128 v[{b+32+4*q}:{b+35+4*q}], v2 offset:{512*(7-q) + extra}")
            o = (512*(q & 1) + extra) // 4
            r.append(f"ds_read2_b32 v[{b+4*q}:{b+4*q+1}], v{3+q//2} offset0:{o} offset1:{o+1}")
            r.append(f"ds_read2_b32 v[{b+4*q+2}:{b+4*q+3}], v{3+q//2} offset0:{o+2} offset1:{o+3}")
        return r
    def mfmas(f):
        b = TB[f]; r = []
        for q in range(8):
            for tau in range(8-q):
                t = q + tau
                r.append(f"v_mfma_f32_16x16x32_bf16 v[{Y+4*t}:{Y+4*t+3}], v[{b+4*q}:{b+4*q+3}], v[{b+32+4*tau}:{b+35+4*tau}], v[{Y+4*t}:{Y+4*t+3}]")
        return r
    def inter(ms, rs):
        for i, m in enumerate(ms):
            A(m)
            if i < len(rs): A(rs[i])
    A("s_waitcnt vmcnt(0)")
    for x in reads(0, 0): A(x)
    stamp(A, 9)
    if OPT["epk"]: A("s_barrier")
    stamp(A, 4)
    if OPT["cprio"]: A(f"s_setprio {OPT['cprio']}")
    A("s_mov_b32 s28, 0")
    lp = A.newlabel("cv")
    A.label(lp)
    A("s_waitcnt lgkmcnt(0)")
    inter(mfmas(0), reads(1, 64))
    A("s_add_u32 s28, s28, 1")
    A("s_waitcnt lgkmcnt(0)")
    inter(mfmas(1), reads(0, 128))
    for r in range(2, 7): A(f"v_add_u32 v{r}, 128, v{r}")
    A("s_cmp_lt_u32 s28, 4"); A(f"s_cbranch_scc1 {lp}")
    stamp(A, 5)
    A(f"s_add_u32 s30, s31, {YT_OFF}")
    A(f"s_lshr_b32 s28, s{CH}, 3"); A("s_lshl_b32 s28, s28, 8"); A(f"s_and_b32 s29, s{CH}, 7"); A("s_lshl_b32 s29, s29, 2")
    A("s_add_u32 s28, s28, s29"); A(f"s_add_u32 s28, s28, {YF_OFF}")
    A("s_waitcnt lgkmcnt(0)")
    A("s_nop 1")
    O = 40
    for t in range(8):
        A(f"v_cvt_pk_bf16_f32 v{O+2*t}, v{Y+4*t}, v{Y+4*t+1}"); A(f"v_cvt_pk_bf16_f32 v{O+2*t+1}, v{Y+4*t+2}, v{Y+4*t+3}")
    A("s_nop 1")
    for p in range(4):
        A(f"v_permlane16_swap_b32 v{O+4*p}, v{O+4*p+2}"); A(f"v_permlane16_swap_b32 v{O+4*p+1}, v{O+4*p+3}")
    A("s_nop 1")
    for p in range(4): A(f"buffer_store_dwordx4 v[{O+4*p}:{O+4*p+3}], v7, s[20:23], s30 offen offset:{1024*p} sc1")
    A("s_setprio 0")
    flag_store(A, "s28", 2, 8, 80*256)
    stamp(A, 6)

def hbar(A, i):
    if OPT["hdiag"] == 2: _stamp0(A, i + 2)
    A("s_barrier")
    if OPT["hdiag"] == 1: _stamp0(A, i + 2)

def hwave(A):
    ACC = 20; sL = REG
    def when(cmp, neg=False):
        l = A.newlabel("if"); A(cmp); A(f"s_cbranch_scc{1 if neg else 0} {l}"); return l
    stamp(A, 2)
    A(f"s_add_u32 s8, s2, 256"); A(f"s_cmp_eq_u32 s{LCH}, 0"); A("s_cselect_b32 s8, s2, s8")
    A(f"s_cmp_eq_u32 s{LCH}, 1"); A("s_cselect_b32 s8, 999, s8"); A("s_cselect_b32 s9, s2, 999")
    A(f"v_add_u32 v39, s{sL}, v1")
    A("v_lshrrev_b32 v2, 3, v0"); A("v_and_b32 v3, 7, v0")
    A(f"s_lshl_b32 s12, s{LCH}, 13"); A(f"s_add_u32 s12, s12, {TB2}")
    A(f"v_mov_b32 v42, {FLG}")
    lds_wait(A, 42, 41, "v_cmp_ne_u32 vcc, 0", off=120)
    w1 = A.newlabel("t"); w2 = A.newlabel("t")
    A(f"s_cmp_eq_u32 s{LCH}, 1"); A(f"s_cbranch_scc1 {w1}")
    A("v_xor_b32 v5, v2, v3"); A("v_lshlrev_b32 v5, 4, v5"); A("v_lshl_add_u32 v5, v3, 10, v5"); A("v_add_u32 v5, s12, v5")
    for e in range(8): A(f"ds_read_b128 v[{144+4*e}:{147+4*e}], v5 offset:{128*e}")
    A(f"s_cmp_eq_u32 s{LCH}, 0"); A(f"s_cbranch_scc1 {w2}")
    A("v_lshlrev_b32 v4, 4, v3"); A(f"v_add_u32 v4, {GXO}, v4"); A("v_mul_u32_u24 v5, 1280, v2"); A("v_add_u32 v5, v5, v4")
    for i in range(10):
        A(f"ds_read_b128 v[{176+4*i}:{179+4*i}], v5 offset:{128*i}")
        A(f"ds_read_b128 v[{216+4*i}:{219+4*i}], v4 offset:{GWO - GXO + 128*i}")
    A("v_mov_b32 v32, 0"); A("v_mov_b32 v33, 0")
    A("s_waitcnt lgkmcnt(0)")
    for k in range(40): A(f"v_dot2c_f32_bf16 v{32 + k % 2}, v{176+k}, v{216+k}")
    A(f"s_branch {w2}")
    A.label(w1)
    A("v_lshrrev_b32 v5, 5, v0"); A("v_lshlrev_b32 v5, 11, v5"); A("v_bfe_u32 v6, v0, 2, 3"); A("v_lshl_add_u32 v5, v6, 7, v5")
    A("v_and_b32 v6, 3, v0"); A("v_lshl_add_u32 v5, v6, 3, v5"); A("v_add_u32 v5, s12, v5")
    for dtl in range(4):
        for sg in range(2):
            o = 144 + 4*(2*dtl+sg)
            A(f"ds_read_b64_tr_b16 v[{o}:{o+1}], v5 offset:{4096*sg + 32*dtl}")
            A(f"ds_read_b64_tr_b16 v[{o+2}:{o+3}], v5 offset:{4096*sg + 32*dtl + 1024}")
    A.label(w2)
    A("s_waitcnt lgkmcnt(0)")
    stamp(A, 10)
    A("s_barrier")
    l = when("s_cmp_lt_u32 s8, 320")
    A("s_and_b32 s24, s8, 31"); A("s_lshr_b32 s25, s8, 5")
    A("v_lshlrev_b32 v6, 15, v2"); A("v_lshlrev_b32 v7, 4, v3"); A("v_sub_u32 v6, v6, v7"); A("v_add_u32 v6, 4080, v6")
    A("s_mov_b32 s28, 0x05040100"); A("s_mov_b32 s29, 0x07060302")
    A("s_lshl_b32 s30, s25, 18"); A("s_lshl_b32 s27, s24, 7"); A("s_sub_u32 s30, s30, s27"); A(f"s_add_u32 s30, s30, {UR_OFF}")
    for i in range(8):
        o = 112 + 4*i
        for p in range(4):
            lo = 144 + 4*(7-2*p) + i//2; hi = 144 + 4*(6-2*p) + i//2
            A(f"v_perm_b32 v{o+p}, v{hi}, v{lo}, s{28 + (i&1)}")
        A(f"buffer_store_dwordx4 v[{o}:{o+3}], v6, s[20:23], s30 offen sc1")
        A("s_add_u32 s30, s30, 4096")
    A.label(l)
    A("s_mul_i32 s19, s18, 3072"); A(f"s_add_u32 s19, s19, {KP_OFF}")
    l = when("s_cmp_eq_u32 s16, 0")
    for i in range(3): A(f"buffer_store_dwordx4 v[{ACC+4*i}:{ACC+4*i+3}], v1, s[20:23], s19 offen offset:{1024*i} sc1")
    A.label(l)
    A("s_min_u32 s10, s2, 239"); A("s_mul_i32 s11, s10, 2731"); A("s_lshr_b32 s11, s11, 16")
    A("s_mul_i32 s28, s11, 24"); A("s_sub_u32 s10, s10, s28")
    l = when("s_cmp_lt_u32 s9, 240")
    for dtl in range(4):
        A("s_lshl_b32 s26, s11, 2"); A(f"s_add_u32 s26, s26, {dtl}")
        A("s_mul_i32 s27, s26, 52429"); A("s_lshr_b32 s27, s27, 18"); A("s_mul_i32 s28, s27, 235"); A("s_add_u32 s26, s26, s28")
        A("s_mul_i32 s28, s10, 10"); A("s_add_u32 s26, s26, s28"); A("s_lshl_b32 s26, s26, 10"); A(f"s_add_u32 s26, s26, {WDF_OFF}")
        A("s_add_u32 s27, s26, 5120")
        o = 144 + 8*dtl
        A(f"buffer_store_dwordx4 v[{o}:{o+3}], v1, s[20:23], s26 offen sc1")
        A(f"buffer_store_dwordx4 v[{o+4}:{o+7}], v1, s[20:23], s27 offen sc1")
    A.label(l)
    hbar(A, 0)
    stamp(A, 12)
    for i in range(3): A(f"ds_read_b128 v[{80+4*i}:{83+4*i}], v39 offset:{SS + 1024*i}")
    for i in range(3): A(f"ds_read_b128 v[{92+4*i}:{95+4*i}], v39 offset:{2*SS + 1024*i}")
    A("s_waitcnt lgkmcnt(0)")
    l = when("s_cmp_ge_u32 s16, 1")
    for i in range(12): A(f"v_add_f32 v{ACC+i}, v{ACC+i}, v{80+i}")
    A.label(l)
    l = when("s_cmp_ge_u32 s16, 2")
    for i in range(12): A(f"v_add_f32 v{ACC+i}, v{ACC+i}, v{92+i}")
    A.label(l)
    hbar(A, 1)
    tag_get(A, 40)
    l = when(f"s_cmp_eq_u32 s{LCH}, 2")
    A("v_add_f32 v32, v32, v33"); A("s_mov_b32 s28, 0x%x" % NLOG2E)
    for m in ("quad_perm:[1,0,3,2]", "quad_perm:[2,3,0,1]", "row_half_mirror"):
        A("s_nop 1"); A(f"v_add_f32_dpp v32, v32, v32 {m} row_mask:0xf bank_mask:0xf")
    A("v_mul_f32 v32, s28, v32"); A("v_exp_f32 v32, v32"); A(f"v_mov_b32 v33, s{TAG}")
    A("v_add_f32 v32, 1.0, v32"); A("v_rcp_f32 v32, v32")
    A(f"s_lshl_b32 s26, s{XCD}, 5"); A(f"s_add_u32 s26, s26, s{RR}"); A("s_lshl_b32 s26, s26, 6"); A(f"s_add_u32 s26, s26, {GG_OFF}")
    A("s_mov_b32 exec_lo, 0x01010101"); A("s_mov_b32 exec_hi, 0x01010101")
    A("buffer_store_dwordx2 v[32:33], v0, s[20:23], s26 offen sc1")
    A("s_mov_b64 exec, -1")
    A.label(l)
    hbar(A, 2)
    l = when("s_cmp_lt_u32 s8, 320")
    A("s_lshl_b32 s30, s25, 8"); A("s_lshl_b32 s27, s24, 2"); A("s_add_u32 s30, s30, s27"); A(f"s_add_u32 s30, s30, {UF_OFF}")
    flag_store(A, "s30", 40)
    A.label(l)
    A("s_lshl_b32 s18, s18, 7"); A(f"s_add_u32 s18, s18, {KF_OFF}")
    l = when("s_cmp_eq_u32 s16, 0")
    flag_store(A, "s18", 40)
    A.label(l)
    l = when("s_cmp_lt_u32 s9, 240")
    A("s_lshl_b32 s26, s11, 8"); A("s_lshl_b32 s27, s10, 2"); A("s_add_u32 s26, s26, s27"); A(f"s_add_u32 s26, s26, {WF_OFF}")
    flag_store(A, "s26", 70)
    A.label(l)
    caddr(A); kaddr(A)
    for i in range(32): A(f"v_mov_b32 v{172+i}, 0")
    A("v_and_b32 v68, 31, v0"); A("v_lshlrev_b32 v68, 2, v68")
    A(f"s_lshr_b32 s29, s{CH}, 6"); A("s_lshl_b32 s29, s29, 8"); A(f"s_add_u32 s29, s29, {UF_OFF}")
    A(f"s_lshl_b32 s31, s{CH}, 12"); A(f"s_add_u32 s30, s31, {UR_OFF}")
    A(f"s_add_u32 m0, s{sL}, {CU}")
    hbar(A, 3)
    hbar(A, 4)
    hbar(A, 5)
    hbar(A, 6)
    A("buffer_load_dword v69, v68, s[20:23], s29 offen sc1")
    A("v_mov_b32 v70, 0")
    l = when(f"s_cmp_eq_u32 s{RMT}, 1")
    A("buffer_load_dword v71, v70, s[20:23], s18 offen sc1")
    A.label(l)
    l = when(f"s_cmp_eq_u32 s{LCH}, 0")
    A("v_min_u32 v70, 47, v0"); A("v_cmp_lt_u32 vcc, 23, v70"); A("v_lshlrev_b32 v70, 2, v70"); A("v_add_u32 v71, 160, v70")
    A("v_cndmask_b32 v70, v70, v71, vcc")
    A("s_mul_i32 s26, s7, 5"); A("s_lshr_b32 s26, s26, 2"); A("s_lshl_b32 s26, s26, 8"); A(f"s_add_u32 s26, s26, {WF_OFF}")
    A("buffer_load_dword v71, v70, s[20:23], s26 offen sc1")
    A.label(l)
    def check(va, so, vd):
        ok = A.newlabel("ok")
        A(f"v_cmp_ne_u32 vcc, s{TAG}, v{vd}"); A(f"s_cbranch_vccz {ok}")
        poll(A, va, so, vd)
        A.label(ok)
    A("s_waitcnt vmcnt(0)")
    l = when("s_cmp_eq_u32 s17, 0")
    check(68, "s29", 69)
    for i in range(4): A(f"buffer_load_dwordx4 v1, s[20:23], s30 offen offset:{1024*i} sc1 lds")
    A.label(l)
    l = when(f"s_cmp_eq_u32 s{RMT}, 1")
    check(70, "s18", 71)
    for i in range(3): A(f"buffer_load_dwordx4 v[{80+4*i}:{83+4*i}], v1, s[20:23], s19 offen offset:{1024*i} sc1")
    A.label(l)
    l = when(f"s_cmp_eq_u32 s{LCH}, 0")
    check(70, "s26", 71)
    A.label(l)
    stamp(A, 3)
    A("v_lshlrev_b32 v170, 3, v0")
    A("s_lshl_b32 s24, s6, 9"); A(f"s_add_u32 s24, s24, {GG_OFF}")
    A("buffer_load_dwordx2 v[168:169], v170, s[20:23], s24 offen sc1")
    A(f"v_mov_b32 v8, {FLG}")
    l = when("s_cmp_eq_u32 s16, 0")
    hbar(A, 9)
    if OPT["epk"]: A("s_barrier")
    lds_wait(A, 8, 9, "v_cmp_ne_u32 vcc, 0", off=16, sleep=4)
    A("s_branch k_fin")
    A.label(l)
    l = when(f"s_cmp_eq_u32 s{RMT}, 1")
    A("s_waitcnt vmcnt(1)")
    for i in range(12): A(f"v_add_f32 v{ACC+i}, v{ACC+i}, v{80+i}")
    A.label(l)
    kexp0(A)
    lds_wait(A, 8, 9, "v_cmp_ne_u32 vcc, 0", off=40)
    kexp1(A)
    hbar(A, 9)
    kexp2(A)
    conv(A)

def finpre(A):
    sH = LCH; sL = REG
    A("s_mul_i32 s26, s7, 2560"); A("s_lshr_b32 s25, s6, 2"); A("s_mul_i32 s25, s25, 20480"); A("s_add_u32 s26, s26, s25"); A(f"s_add_u32 s26, s26, {YF_OFF}")
    A("v_and_b32 v3, 7, v0")
    A("v_lshrrev_b32 v8, 3, v0"); A("v_lshlrev_b32 v8, 12, v8"); A("v_lshl_add_u32 v8, v3, 4, v8")
    A("s_mul_i32 s27, s7, 327680"); A("s_lshl_b32 s28, s6, 7"); A("s_add_u32 s27, s27, s28"); A(f"s_add_u32 s27, s27, {YT_OFF}")
    if OPT["ysleep"]: A(f"s_sleep {OPT['ysleep']}")
    A(f"s_lshl_b32 s29, s{sH}, 8"); A("s_add_u32 s12, s29, s26"); A("s_add_u32 s13, s12, 768"); A("s_add_u32 s14, s12, 1536")
    A(f"s_add_u32 s15, s26, {9*256}"); A(f"s_cmp_eq_u32 s{sH}, 0"); A("s_cselect_b32 s15, s15, s14")
    lp = A.newlabel("yl"); dn = A.newlabel("yl")
    A("s_mov_b32 s62, 0")
    A.label(lp)
    D = [32, 40, 48, 4]
    for i in range(3): A(f"s_load_dwordx8 s[{D[i]}:{D[i]+7}], s[20:21], s{12+i} glc")
    A("s_load_dwordx4 s[8:11], s[20:21], s15 glc"); A("s_load_dwordx4 s[16:19], s[20:21], s15 offset:16 glc")
    A("s_addk_i32 s62, 1")
    A("s_waitcnt lgkmcnt(0)")
    regs = list(range(32, 56)) + [8, 9, 10, 11, 16, 17, 18, 19]
    A("s_and_b64 s[28:29], s[32:33], s[34:35]"); A("s_or_b64 s[30:31], s[32:33], s[34:35]")
    for r in regs[4::2]:
        A(f"s_and_b64 s[28:29], s[28:29], s[{r}:{r+1}]"); A(f"s_or_b64 s[30:31], s[30:31], s[{r}:{r+1}]")
    A("s_and_b32 s28, s28, s29"); A("s_or_b32 s30, s30, s31")
    A(f"s_xor_b32 s28, s28, s{TAG}"); A(f"s_xor_b32 s30, s30, s{TAG}"); A("s_or_b32 s28, s28, s30")
    A(f"s_cbranch_scc0 {dn}")
    A(f"s_sleep {OPT['psleep']}")
    A(f"s_cmpk_lt_u32 s62, 0x{SPIN:x}"); A(f"s_cbranch_scc1 {lp}")
    A.label(dn)
    for i in range(4):
        A(f"s_add_u32 s28, s{sH}, {3*i}")
        if i == 3: A(f"s_cmp_lg_u32 s{sH}, 0"); A(f"s_cbranch_scc1 {dn}x")
        A("s_lshl_b32 s28, s28, 15"); A(f"s_add_u32 m0, s{sL}, {1024*i}"); A("s_add_u32 s28, s28, s27")
        A("buffer_load_dwordx4 v8, s[20:23], s28 offen sc1 lds")
    A.label(dn + "x")
    stamp(A, 7)
    A("v_bfe_u32 v2, v0, 2, 2"); A("v_lshlrev_b32 v2, 7, v2")
    A("v_lshrrev_b32 v3, 4, v0"); A("v_lshl_add_u32 v2, v3, 5, v2")
    A("v_and_b32 v3, 3, v0"); A("v_lshl_add_u32 v2, v3, 3, v2"); A(f"v_add_u32 v2, s{sL}, v2")
    A(f"s_mul_i32 s28, s{sH}, 48"); A(f"s_add_u32 s28, s28, s{sL}")
    A("v_lshlrev_b32 v3, 4, v0"); A("v_add_u32 v3, s28, v3")
    A("v_lshlrev_b32 v7, 2, v0"); A(f"v_add_u32 v7, s{sL}, v7")
    A("s_mov_b32 s30, 0xffff0000")
    A("s_waitcnt vmcnt(0)")
    ok = A.newlabel("ok")
    A(f"v_cmp_ne_u32 vcc, s{TAG}, v169"); A(f"s_cbranch_vccz {ok}")
    poll(A, 170, "s24", 168, 2, tagreg=169)
    A.label(ok)
    A("v_mov_b32 v4, v168")
    for i in range(4):
        A(f"ds_read_b64_tr_b16 v[{8+4*i}:{9+4*i}], v2 offset:{1024*i}")
        A(f"ds_read_b64_tr_b16 v[{10+4*i}:{11+4*i}], v2 offset:{1024*i+512}")
    A("v_sub_f32 v6, 1.0, v4")
    A(f"ds_write_b32 v7, v6 offset:{OMG}")
    A("s_waitcnt lgkmcnt(1)")
    for i in range(4):
        for k in range(4):
            r = 8+4*i+k
            A(f"v_lshlrev_b32 v24, 16, v{r}"); A(f"v_and_b32 v25, s30, v{r}")
            A("v_mul_f32 v24, v24, v4"); A("v_mul_f32 v25, v25, v4")
            A(f"v_cvt_pk_bf16_f32 v{r}, v24, v25")
        A(f"ds_write_b128 v3, v[{8+4*i}:{11+4*i}] offset:{A2O + A2S*i}")
    stamp(A, 8)

def build():
    A = Asm()
    A.raw(f"; @launch grid=(256,1,1) block=(512,1,1) lds={LDS_BYTES}")
    A.raw('.amdgcn_target "amdgcn-amd-amdhsa--gfx950"')
    kernel_begin(A, NAME)
    A("s_cmp_ge_u32 s2, 256"); A("s_cbranch_scc1 k_end")
    stamp_begin(A)
    if OPT["probe"] >= 0:
        A("s_memrealtime s[64:65]"); A("s_waitcnt lgkmcnt(0)"); A("s_mov_b32 s66, s64")
    A("s_load_dwordx16 s[32:47], s[0:1], 0")
    A("s_load_dwordx8 s[48:55], s[0:1], 64")
    A("s_load_dwordx4 s[56:59], s[0:1], 96")
    A("s_load_dwordx2 s[20:21], s[0:1], 112")
    A("v_lshrrev_b32 v1, 6, v0"); A("v_and_b32 v0, 63, v0"); A("v_readfirstlane_b32 s3, v1")
    A(f"s_and_b32 s{XCD}, s2, 7"); A(f"s_lshr_b32 s{RR}, s2, 3"); A(f"s_lshr_b32 s{R4}, s{XCD}, 1"); A(f"s_and_b32 s{C2}, s{XCD}, 1")
    A(f"s_lshl_b32 s4, s{R4}, 2"); A(f"s_and_b32 s5, s{RR}, 3"); A("s_add_u32 s4, s4, s5")
    A(f"s_lshl_b32 s5, s{C2}, 3"); A(f"s_lshr_b32 s6, s{RR}, 2"); A("s_add_u32 s5, s5, s6")
    A(f"s_lshl_b32 s6, s{R4}, 3"); A(f"s_and_b32 s7, s{RR}, 7"); A("s_add_u32 s6, s6, s7")
    A(f"s_lshl_b32 s7, s{C2}, 2"); A(f"s_lshr_b32 s8, s{RR}, 3"); A("s_add_u32 s7, s7, s8")
    A("s_mov_b32 s22, 0x%x" % WS_BYTES); A("s_mov_b32 s23, 0x20000")
    A("v_and_b32 v8, 31, v0"); A("v_cmp_lt_u32 vcc, 3, v8"); A("v_lshlrev_b32 v8, 2, v8"); A(f"v_add_u32 v8, {FLG}, v8")
    A("v_cndmask_b32 v9, 0, 1, vcc"); A("v_mov_b32 v10, 0"); A("v_mov_b32 v51, 0")
    A("ds_write_b32 v8, v9")
    A("s_cmp_eq_u32 s3, 4"); A("s_cbranch_scc1 k_l")
    ev = [(0,1,1,2),(1,1,1,1),(1,2,2,1),(2,1,1,1),(0,0,0,0),(0,0,0,1),(1,0,0,2),(2,0,0,1)]
    od = [(0,1,1,1),(0,2,2,1),(1,1,1,1),(1,2,2,1),(0,0,0,0),(0,0,0,2),(1,0,0,2),(2,0,2,0)]
    enc = lambda t: sum((r | (sl << 2) | (p << 4) | (c << 6)) << (8*i) for i, (r, sl, p, c) in enumerate(t))
    A(f"s_lshr_b32 s18, s{RR}, 1"); A("s_lshl_b32 s18, s18, 3"); A(f"s_add_u32 s18, s18, s{XCD}")
    A(f"s_mov_b32 s10, 0x{enc(ev) & 0xffffffff:x}"); A(f"s_mov_b32 s11, 0x{enc(ev) >> 32:x}")
    A(f"s_and_b32 s8, s{RR}, 1")
    A(f"s_cselect_b32 s10, 0x{enc(od) & 0xffffffff:x}, s10"); A(f"s_cselect_b32 s11, 0x{enc(od) >> 32:x}, s11")
    A("s_lshl_b32 s9, s3, 3"); A("s_lshr_b64 s[10:11], s[10:11], s9")
    A(f"s_and_b32 s{LCH}, s10, 3"); A("s_bfe_u32 s9, s10, 0x20002"); A("s_bfe_u32 s17, s10, 0x20004"); A("s_bfe_u32 s16, s10, 0x20006")
    A(f"s_mul_i32 s{REG}, s{LCH}, {HS}"); A(f"s_add_u32 s{REG}, s{REG}, {HB}")
    A(f"s_mul_i32 s19, s9, {SS}"); A(f"s_add_u32 s19, s19, s{REG}")
    A("s_cmp_lt_u32 s3, 4"); A("s_cselect_b32 s14, s16, 1")
    A("s_mul_i32 s9, s8, 3"); A(f"s_add_u32 s9, s9, s{LCH}")
    A(f"s_cmp_eq_u32 s{LCH}, 2"); A("s_cselect_b32 s9, 2, s9"); A("s_cselect_b32 s13, s16, 0")
    A(f"s_mul_i32 s{CH}, s18, 5"); A(f"s_add_u32 s{CH}, s{CH}, s9")
    kpass(A)
    kgive(A)
    mwave(A)
    A.label("k_post")
    post(A)
    stamp_end(A, 0)
    if OPT["probe"] >= 0:
        A("s_waitcnt vmcnt(0)")
        stamp(A, 13)
        A("s_cmp_lg_u32 s3, 1"); A("s_cbranch_scc1 k_end")
        A(f"s_cmp_lg_u32 s2, {OPT['pwg']}"); A("s_cbranch_scc1 k_end")
        A("s_sub_u32 s70, s66, s64"); A(f"s_mul_i32 s70, s70, {OPT['pk']}"); A("s_min_u32 s70, s70, 20000")
        A("s_memrealtime s[68:69]"); A("s_waitcnt lgkmcnt(0)")
        A.label("k_pr")
        A("s_memrealtime s[72:73]"); A("s_waitcnt lgkmcnt(0)")
        A("s_sub_u32 s72, s72, s68"); A("s_cmp_lt_u32 s72, s70"); A("s_cbranch_scc1 k_pr")
    A.label("k_end")
    A("s_endpgm")
    A.label("k_h")
    A(f"s_mov_b32 s{RMT}, s13")
    hwave(A)
    A.label("k_fin")
    finpre(A)
    A("s_branch k_post")
    A.label("k_l")
    loader(A)
    A("s_branch k_post")
    A.label("k_last")
    A("s_endpgm")
    kernel_desc(A, NAME, 256, 102)
    return re.sub(r"^    (\w+:)$", r"\1", A.text(), flags=re.M)

if __name__ == "__main__":
    gen1.DIAG = "--diag" in sys.argv
    for a in sys.argv[2:]:
        if "=" in a:
            k, v = a.split("="); OPT[k] = eval(v)
    open(sys.argv[1], "w").write(build())
```

```python
import sys, re, copy
from asmlib import *
import gen1
from gen1 import LOG2E, NLOG2E, LOG2E_LO, LN2, stamp, stamp_begin, stamp_end
NAME = "gated_mix__ssm_conv_s4d__swiglu_ffn__prompt_kernel"
OPT = dict(pk=4, pwg=77, probe=-1, hdiag=0, mprio=2, ctouch=1, epk=4, barks=2, barg=3, kdepth=1, thr2=0, cprio=1, psleep=1, wb=(0,40), lbar=36, ald=(24,4), wfbar=6)
H_OFF = 0
UR_OFF = 6291456
YT_OFF = UR_OFF + 2621440
GG_OFF = YT_OFF + 2621440
HF_OFF = GG_OFF + 16384
UF_OFF = HF_OFF + 128*256
YF_OFF = UF_OFF + 16*256
WF_OFF = YF_OFF + 8*80*256
KF_OFF = WF_OFF + 16*256
KP_OFF = KF_OFF + 128*128
LAST_OFF = KP_OFF + 128*3072
WDF_OFF = 12 << 20
WS_BYTES = 1 << 25
GB = 16384; UB = GB + 12288 + 32; STG = 41024
HB = 3*STG; HS = 13184
FLG = HB + 3*HS
FT = FLG + 120
LDS_BYTES = FT + 256
RS = 272; SS = 16*RS
C0 = 64; C1 = C0 + 4160; CU = 8448
A2O = 4096; A2S = 1072; OMG = 8704
TB2 = 2*STG; GXO = TB2 + 24576; GWO = TB2 + 34816
PB = 176
PR = 336; PW = 64*PR
SPIN = 0x3000
U, LOGA, LOGDT, DSK, WG, WU, WD, GW, OUT, DBG = 32, 34, 42, 44, 48, 50, 52, 54, 56, 58
XCD, RR, R4, C2, LCH, REG = 96, 97, 98, 99, 100, 101
CH, TAG, RMT = 60, 61, 47
_stamp0 = stamp
def stamp(A, i, real=False):
    if OPT["hdiag"] and i != 1: return
    _stamp0(A, i, real)
    if OPT["probe"] == i:
        A("s_memrealtime s[66:67]"); A("s_waitcnt lgkmcnt(0)")
def P2(b): return f"v[{b}:{b+1}]"

def lds_wait(A, vaddr, vtmp, cond, off=0, sleep=0):
    l = A.newlabel("lw"); d = A.newlabel("lw")
    A("s_mov_b32 s62, 0")
    A.label(l)
    A(f"ds_read_b32 v{vtmp}, v{vaddr} offset:{off}")
    A("s_addk_i32 s62, 1")
    A("s_waitcnt lgkmcnt(0)")
    A(f"{cond}, v{vtmp}")
    A(f"s_cbranch_vccz {d}")
    if sleep: A(f"s_sleep {sleep}")
    A("s_cmpk_lt_u32 s62, 0x7000")
    A(f"s_cbranch_scc1 {l}")
    A.label(d)

def poll(A, vaddr, soff, vdst, n=1, tagreg=None):
    l = A.newlabel("pl"); d = A.newlabel("pl")
    tagreg = vdst if tagreg is None else tagreg
    A("s_mov_b32 s62, 0")
    A.label(l)
    A(f"buffer_load_dword{'x2' if n == 2 else ''} {vr(vdst, n)}, v{vaddr}, s[20:23], {soff} offen sc1")
    A("s_addk_i32 s62, 1")
    A("s_waitcnt vmcnt(0)")
    A(f"v_cmp_ne_u32 vcc, s{TAG}, v{tagreg}")
    A(f"s_cbranch_vccz {d}")
    A(f"s_sleep {OPT['psleep']}")
    A(f"s_cmpk_lt_u32 s62, 0x{SPIN:x}")
    A(f"s_cbranch_scc1 {l}")
    A.label(d)

def flag_store(A, soff, vt, rep=1, stride=0):
    A(f"v_mov_b32 v{vt}, s{TAG}")
    A(f"v_mul_u32_u24 v{vt+1}, {stride}, v0")
    A(f"s_mov_b64 exec, {(1 << rep) - 1}")
    A("s_waitcnt vmcnt(0)")
    A(f"buffer_store_dword v{vt}, v{vt+1}, s[20:23], {soff} offen sc1")
    A("s_mov_b64 exec, -1")

def tag_get(A, vt, issued=False):
    l = A.newlabel("tg"); d = A.newlabel("tg")
    if not issued: A(f"s_load_dword s{TAG}, s[{DBG}:{DBG+1}], 0")
    A("s_mov_b32 s62, 0")
    A("s_waitcnt lgkmcnt(0)")
    A.label(l)
    A(f"s_cmp_lg_u32 s{TAG}, 0"); A(f"s_cbranch_scc1 {d}")
    A(f"v_mov_b32 v{vt}, 0")
    A(f"global_load_dword v{vt}, v{vt}, s[{DBG}:{DBG+1}] sc1")
    A("s_addk_i32 s62, 1")
    A("s_waitcnt vmcnt(0)")
    A(f"v_readfirstlane_b32 s{TAG}, v{vt}")
    A(f"s_sleep {OPT['psleep']}")
    A(f"s_cmpk_lt_u32 s62, 0x{SPIN:x}"); A(f"s_cbranch_scc1 {l}")
    A.label(d)

def spoll(A, soff, n, sleep):
    l = A.newlabel("sp"); d = A.newlabel("sp")
    A("s_mov_b32 s62, 0")
    A.label(l)
    A(f"s_load_dword{'x8 s[36:43]' if n == 8 else ' s36'}, s[20:21], {soff} glc")
    A("s_addk_i32 s62, 1")
    A("s_waitcnt lgkmcnt(0)")
    if n == 8:
        A("s_min_u32 s44, s36, s37"); A("s_max_u32 s45, s36, s37")
        for i in range(2, 8):
            A(f"s_min_u32 s44, s44, s{36+i}"); A(f"s_max_u32 s45, s45, s{36+i}")
        A(f"s_xor_b32 s44, s44, s{TAG}"); A(f"s_xor_b32 s45, s45, s{TAG}"); A("s_or_b32 s44, s44, s45")
    else:
        A(f"s_cmp_lg_u32 s36, s{TAG}")
    A(f"s_cbranch_scc0 {d}")
    A(f"s_sleep {sleep}")
    A(f"s_cmpk_lt_u32 s62, 0x{SPIN:x}"); A(f"s_cbranch_scc1 {l}")
    A.label(d)

def loader(A):
    if OPT["ctouch"]:
        A("s_getpc_b64 s[24:25]")
        A.label("k_pc")
        A(f"s_sub_u32 s24, s24, k_pc - {NAME}"); A("s_subb_u32 s25, s25, 0")
        A(f"v_lshlrev_b32 v8, 5, v0"); A(f"v_add_u32 v8, s{RR}, v8"); A("v_lshlrev_b32 v8, 7, v8")
        A(f"v_min_u32 v8, k_last - {NAME}, v8")
        A("v_mov_b32 v23, s25"); A("v_add_co_u32 v22, vcc, s24, v8"); A("v_addc_co_u32 v23, vcc, 0, v23, vcc")
        A("s_mov_b64 exec, 0xff")
        A("global_load_dword v24, v[22:23], off")
        A("s_mov_b64 exec, -1")
    A("v_lshrrev_b32 v8, 3, v0"); A("v_mul_u32_u24 v8, 1280, v8")
    A("v_lshrrev_b32 v9, 4, v0"); A("v_and_b32 v10, 7, v0"); A("v_xor_b32 v9, v9, v10")
    A("v_lshl_add_u32 v2, v9, 4, v8")
    A("v_xor_b32 v9, 4, v9"); A("v_lshl_add_u32 v3, v9, 4, v8")
    A(f"v_add_u32 v3, {10240-1024}, v3"); A(f"v_add_u32 v4, {20480-2048}, v2"); A(f"v_add_u32 v5, {20480-2048}, v3")
    for i in range(3):
        A(f"v_add_u32 v9, {64*i}, v0"); A("v_mul_u32_u24 v10, 5462, v9"); A("v_lshrrev_b32 v10, 16, v10")
        A("v_mul_u32_u24 v10, 2880, v10"); A(f"v_lshl_add_u32 v{11+i}, v0, 4, v10")
    A("v_lshlrev_b32 v1, 4, v0")
    A("v_mov_b32 v14, 0x7ffffff0")
    A("s_mul_i32 s26, s4, 163840"); A("s_mul_i32 s27, s5, 192")
    A("s_mov_b32 s29, 0"); A("s_mov_b32 s30, 0"); A(f"s_mov_b32 s31, {FT-4}")
    A("s_mov_b32 s10, 2621440"); A("s_mov_b32 s11, 0x20000")
    A("s_mov_b32 s14, 1966080"); A("s_mov_b32 s15, 0x20000")
    A("s_mov_b32 s18, 1966080"); A("s_mov_b32 s19, 0x20000")
    A("v_and_b32 v10, 7, v0"); A("v_lshl_add_u32 v16, v10, 4, v8")
    A(f"s_and_b32 s24, s{R4}, 1"); A("s_lshl_b32 s24, s24, 5"); A(f"s_add_u32 s24, s24, s{RR}")
    A("s_mul_i32 s24, s24, 3072"); A(f"s_mul_i32 s25, s{C2}, 1536"); A("s_add_u32 s24, s24, s25")
    A("v_min_u32 v18, 59, v0"); A("v_mul_u32_u24 v19, 43, v18"); A("v_lshrrev_b32 v19, 9, v19")
    A("v_mul_u32_u24 v19, %d, v19" % (196608 - 1536)); A("v_lshl_add_u32 v18, v18, 7, v19"); A("v_add_u32 v18, s24, v18")
    A("v_add_u32 v19, %d, v18" % (5*196608))
    A("s_waitcnt lgkmcnt(0)")
    A("s_and_b32 s24, s2, 31"); A("s_lshr_b32 s25, s2, 5")
    A("s_mul_i32 s44, s24, 81920"); A("s_lshl_b32 s25, s25, 7"); A("s_add_u32 s44, s44, s25")
    A("s_min_u32 s24, s2, 239"); A("s_mul_i32 s25, s24, 2731"); A("s_lshr_b32 s25, s25, 16")
    A("s_mul_i32 s28, s25, 24"); A("s_sub_u32 s24, s24, s28")
    A("s_mul_i32 s45, s24, 81920"); A("s_lshl_b32 s25, s25, 7"); A("s_add_u32 s45, s45, s25"); A("s_sub_u32 s45, s45, 10240")
    A(f"s_lshl_b32 s46, s{XCD}, 5"); A(f"s_add_u32 s46, s46, s{RR}"); A("s_mul_i32 s46, s46, 10240")
    A("s_barrier")
    A(f"s_mov_b32 s8, s{U}"); A(f"s_mov_b32 s9, s{U+1}")
    A(f"s_mov_b32 s12, s{WG}"); A(f"s_mov_b32 s13, s{WG+1}"); A(f"s_mov_b32 s16, s{WU}"); A(f"s_mov_b32 s17, s{WU+1}")
    A(f"s_cmp_ge_u32 s{R4}, 2"); A(f"s_cselect_b32 s24, s{WU}, s{WG}"); A(f"s_cselect_b32 s25, s{WU+1}, s{WG+1}")
    stamp(A, 1)
    A("global_load_dword v20, v18, s[24:25]")
    A(f"s_mov_b32 s36, s{WD}"); A(f"s_mov_b32 s37, s{WD+1}"); A("s_mov_b32 s38, 1966080"); A("s_mov_b32 s39, 0x20000")
    A(f"s_mov_b32 s40, s{GW}"); A(f"s_mov_b32 s41, s{GW+1}"); A("s_mov_b32 s42, 1280"); A("s_mov_b32 s43, 0x20000")
    def utile(h):
        for i in range(8):
            A(f"s_mov_b32 m0, {TB2 + 8192*h + 1024*i}"); A(f"v_xor_b32 v17, {16*i}, v16")
            A("buffer_load_dwordx4 v17, s[8:11], s44 offen lds"); A("s_add_u32 s44, s44, 10240")
    def tasks():
        utile(0)
        for i in range(8):
            A(f"s_mov_b32 m0, {TB2 + 8192 + 1024*i}"); A("s_add_u32 s45, s45, 10240")
            A("buffer_load_dwordx4 v16, s[36:39], s45 offen lds")
        n2 = A.newlabel("n2")
        A("s_cmp_ge_u32 s2, 64"); A(f"s_cbranch_scc1 {n2}")
        A(f"s_sub_u32 s44, s44, {81920 - 1024}")
        utile(2)
        A.label(n2)
        for (o, n) in ((0, 4), (4096, 4), (8192, 2)):
            A(f"s_mov_b32 m0, {GXO + o}"); A(f"s_add_u32 s28, s46, {o}")
            for i in range(n): A(f"buffer_load_dwordx4 v1, s[8:11], s28 offen offset:{1024*i} lds")
        A(f"s_mov_b32 m0, {GWO}"); A("s_nop 0")
        for i in range(2): A(f"buffer_load_dwordx4 v1, s[40:43], 0 offen offset:{1024*i} lds")
        A(f"s_mov_b32 m0, {FT}"); A("s_nop 0")
        A("buffer_load_dword v14, s[8:11], 0 offen lds")
    tasks()
    A("global_load_dword v21, v19, s[24:25]")
    nt0 = A.newlabel("mk")
    A("s_cmp_lg_u32 s2, 0"); A(f"s_cbranch_scc1 {nt0}")
    A(f"s_add_u32 s24, s20, {LAST_OFF}"); A("s_addc_u32 s25, s21, 0")
    A("s_load_dword s28, s[24:25], 0")
    A("v_mov_b32 v16, 0")
    A("s_waitcnt lgkmcnt(0)")
    A("s_add_u32 s28, s28, 1"); A("s_max_u32 s28, s28, 1")
    A("v_mov_b32 v17, s28")
    A("s_mov_b64 exec, 1")
    A(f"global_store_dword v16, v17, s[{DBG}:{DBG+1}] sc1")
    A("global_store_dword v16, v17, s[24:25] sc1")
    A("s_mov_b64 exec, -1")
    A.label(nt0)
    def flag(fill):
        A("s_mov_b32 m0, s31"); A(fill)
        A("buffer_load_dword v14, s[8:11], 0 offen lds")
    def tail():
        flag("s_sub_u32 s31, s31, 4")
        A(f"s_add_u32 s29, s29, {STG}"); A(f"s_cmp_eq_u32 s29, {3*STG}"); A("s_cselect_b32 s29, 0, s29")
        A("s_add_u32 s30, s30, 1")
    l1 = A.newlabel("ld")
    cnt = [0]
    extra = {1: [f"s_add_u32 s33, s29, {STG}"], 2: [f"s_cmp_eq_u32 s33, {3*STG}", "s_cselect_b32 s33, 0, s33"], 4: ["s_add_u32 s30, s30, 1"],
             26: ["s_add_u32 s26, s26, 128"], 37: ["s_add_u32 s27, s27, 196608"], 40: ["s_mov_b32 s29, s33"]}
    def dma(x):
        A(x); cnt[0] += 1
        for e in extra.get(cnt[0], []): A(e)
        if cnt[0] == OPT["lbar"]:
            sk = A.newlabel("sk")
            A("s_bitcmp1_b32 s34, s30"); A(f"s_cbranch_scc1 {sk}")
            A("s_barrier")
            A.label(sk)
    def xq(q):
        A(f"s_add_u32 m0, s29, {4096*q}"); A(f"s_add_u32 s28, s26, {40960*q}")
        for i in range(4): dma(f"buffer_load_dwordx4 v{2+i}, s[8:11], s28 offen offset:{1024*i} lds")
    def wq(q):
        A(f"s_add_u32 m0, s29, {GB + 3072*q}"); A(f"s_add_u32 s28, s27, {49152*q}")
        for i in range(3): dma(f"buffer_load_dwordx4 v{11+i}, s[12:15], s28 offen offset:{1024*i} lds")
        A(f"s_add_u32 m0, s29, {UB + 3072*q}"); A("s_nop 0")
        for i in range(3): dma(f"buffer_load_dwordx4 v{11+i}, s[16:19], s28 offen offset:{1024*i} lds")
    def fl():
        A("s_mov_b32 m0, s31"); A("s_sub_u32 s31, s31, 4")
        dma("buffer_load_dword v14, s[8:11], 0 offen lds")
    A("s_mov_b32 s34, 0x402")
    A.label(l1)
    wq(0); xq(0); xq(1); wq(1); xq(2); xq(3); fl(); wq(2); wq(3); fl()
    A("s_cmp_lt_u32 s30, 10"); A(f"s_cbranch_scc1 {l1}")
    stamp(A, 2)
    for p in OPT["wb"]:
        if p == 0: A("s_barrier")
    A("s_mul_i32 s26, s7, 245760"); A(f"s_add_u32 s26, s26, {WDF_OFF + 30720}")
    l2 = A.newlabel("ld"); l4 = A.newlabel("ld")
    def bars(n, cur):
        for p in OPT["wb"]:
            if p and p % 40 == n % 40:
                sk = A.newlabel("sk")
                A(f"s_cmp_lg_u32 s30, {10 + p//40}"); A(f"s_cbranch_scc1 {sk}"); A("s_barrier"); A.label(sk)
    A.label(l2)
    for w in range(4):
        for (o, n) in ((0, 4), (4096, 4), (8192, 2)):
            A(f"s_add_u32 m0, s29, {10240*w + o}"); A(f"s_add_u32 s28, s26, {61440*w + o}")
            if OPT["thr2"]: A(f"s_waitcnt vmcnt({OPT['thr2']})")
            for i in range(n): A(f"buffer_load_dwordx4 v1, s[20:23], s28 offen offset:{1024*i} sc1 lds")
        if w < 3: bars(10*w + 10, 0)
    tail()
    bars(40, 1)
    A("s_add_u32 s26, s26, 10240")
    A("s_cmp_lt_u32 s30, 13"); A(f"s_cbranch_scc1 {l2}")
    stamp(A, 3)

ACC1 = 64
def msetup(A):
    A("s_lshr_b32 s8, s3, 1"); A("s_and_b32 s9, s3, 1")
    A("v_and_b32 v8, 31, v0"); A("v_lshrrev_b32 v9, 5, v0")
    A("v_bfe_u32 v10, v0, 1, 3"); A("v_xor_b32 v10, v10, v9")
    A("v_lshlrev_b32 v14, 7, v8"); A("s_lshl_b32 s10, s8, 13"); A("v_add_u32 v14, s10, v14")
    for ks in range(4):
        A(f"v_xor_b32 v12, {2*ks}, v10"); A(f"v_lshl_add_u32 v{2+ks}, v12, 4, v14")
    A("v_bfe_u32 v12, v0, 2, 2"); A("v_lshl_add_u32 v12, v9, 3, v12"); A("v_mul_u32_u24 v6, 192, v12")
    A("v_and_b32 v12, 3, v0"); A("v_lshl_add_u32 v6, v12, 3, v6")
    A("v_bfe_u32 v12, v0, 4, 1"); A(f"v_mul_u32_u24 v12, {UB-GB}, v12"); A("v_add_u32 v6, v6, v12")
    A("s_mul_i32 s10, s9, 96"); A(f"s_add_u32 s10, s10, {GB}"); A("v_add_u32 v6, s10, v6")
    A(f"v_mov_b32 v7, {FT-8}")
    for i in range(48): A(f"v_pk_mov_b32 {P2(ACC1+2*i)}, 0, 0")
    A("s_mov_b32 s54, 0x%x" % NLOG2E); A("s_mov_b32 s55, 0x%x" % NLOG2E)
    A("v_and_b32 v10, 15, v0"); A("v_lshlrev_b32 v10, 4, v10"); A("v_lshl_add_u32 v10, v9, 8, v10")
    A("v_bfe_u32 v12, v0, 4, 1"); A("v_lshl_add_u32 v10, v12, 10, v10")
    A("s_lshl_b32 s18, s4, 1"); A("s_add_u32 s18, s18, s8")
    A("s_mul_i32 s11, s18, 196608"); A("s_mul_i32 s12, s5, 6"); A("s_mul_i32 s13, s9, 3"); A("s_add_u32 s12, s12, s13")
    for nt in range(3):
        A(f"s_add_u32 s13, s12, {nt}")
        A("s_lshr_b32 s10, s13, 1"); A("s_lshl_b32 s10, s10, 12")
        A("s_and_b32 s13, s13, 1"); A("s_lshl_b32 s13, s13, 9"); A("s_add_u32 s10, s10, s13")
        A(f"s_add_u32 s{48+nt}, s10, s11")
    A("s_lshl_b32 s51, s18, 2"); A("s_lshr_b32 s10, s5, 2"); A("s_add_u32 s51, s51, s10"); A("s_lshl_b32 s51, s51, 8")
    A("s_and_b32 s10, s5, 3"); A("s_lshl_b32 s10, s10, 1"); A("s_add_u32 s10, s10, s9"); A("s_lshl_b32 s10, s10, 2")
    A("s_add_u32 s51, s51, s10"); A(f"s_add_u32 s51, s51, {HF_OFF}")
    A("s_lshl_b32 s52, s6, 2"); A("s_add_u32 s52, s52, s3"); A("s_lshl_b32 s52, s52, 8"); A(f"s_add_u32 s52, s52, {HF_OFF}")
    A("s_mul_i32 s53, s6, 196608"); A("s_mul_i32 s10, s3, 49152"); A("s_add_u32 s53, s53, s10")
    A("s_mul_i32 s10, s3, 10240"); A("v_add_u32 v11, s10, v1")

def kgive(A):
    A("v_add_u32 v15, s19, v1")
    A("s_nop 4")
    for i in range(3): A(f"ds_write_b128 v15, v[{20+4*i}:{23+4*i}] offset:{1024*i}")

def mwave(A):
    sW = 3
    A("s_mov_b32 s16, 0x%x" % ((-2*STG) & 0xffffffff)); A(f"s_mov_b32 s17, {STG}")
    F = [16, 36]
    def reads(ks, f):
        r = []; b = F[f]
        r.append(f"ds_read_b128 v[{b}:{b+3}], v{2+ks}")
        for nt in range(3):
            o = b + 8 + 4*nt
            r.append(f"ds_read_b64_tr_b16 v[{o}:{o+1}], v6 offset:{3072*ks + 32*nt}")
            r.append(f"ds_read_b64_tr_b16 v[{o+2}:{o+3}], v6 offset:{3072*ks + 32*nt + 768}")
        r.append(f"ds_read_b128 v[{b+4}:{b+7}], v{2+ks} offset:4096")
        return r
    def mfmas(f):
        b = F[f]; r = []
        for a in range(2):
            for nt in range(3):
                c = ACC1 + 16*(3*a+nt)
                r.append(f"v_mfma_f32_32x32x16_bf16 v[{c}:{c+15}], v[{b+8+4*nt}:{b+11+4*nt}], v[{b+4*a}:{b+4*a+3}], v[{c}:{c+15}]")
        return r
    A("s_mov_b32 s11, 0"); A("s_mov_b32 s12, 0")
    A("s_mul_i32 s14, s7, 245760"); A("s_mul_i32 s15, s3, 61440"); A("s_add_u32 s14, s14, s15"); A(f"s_add_u32 s14, s14, {WDF_OFF}")
    A("s_waitcnt lgkmcnt(0)")
    stamp(A, 12)
    A("s_barrier")
    lds_wait(A, 7, 13, "v_cmp_ne_u32 vcc, 0", off=4)
    stamp(A, 2)
    PL = {0: [(1, 5), (1, 6)], 1: [(1, 7)], 2: [(2, 0)], 3: [(2, 1)], 4: [(2, 2), (2, 3)], 5: [(2, 4)]}
    need = {0: (0, 1, 2), 1: (3, 4), 2: (5, 6), 3: (7,), 4: (), 5: ()}
    lp = A.newlabel("g1"); ex_ = A.newlabel("g1x"); slow = A.newlabel("g1s"); back = A.newlabel("g1b")
    slow2 = A.newlabel("g1s"); back2 = A.newlabel("g1b"); nob = A.newlabel("g1n")
    AF = [160+4*i for i in range(24)] + [56, 60, 64, 68, 72, 76]
    def aload(n):
        r = [f"buffer_load_dwordx4 v[{AF[n]}:{AF[n]+3}], v1, s[20:23], s14 offen offset:{1024*(n % 4)} sc1"]
        if n % 4 == 3: r.append("s_add_u32 s14, s14, 4096")
        return r
    slows = []; na = [0]
    def step_items(k, mode):
        last = mode == 2
        ks = k % 4; it = []; ms = mfmas(k % 2)
        def chk(reg, off):
            sl = A.newlabel("g1s"); bk = A.newlabel("g1b"); slows.append((sl, bk, reg, off))
            return [("x", f"v_cmp_ne_u32 vcc, 0, v{reg}"), ("x", f"s_cbranch_vccnz {sl}"), ("x", f"{bk}:")]
        for g in range(6):
            it.append(("m", ms[g], [(k, r) for r in need[g]]))
            if ks == 2 and g == 2 and not last: it += [("w", "flag")] + chk(13, 4)
            if ks == 0 and g == 3: it += [("w", "flagB")] + chk(12, 0)
            if ks == OPT["barks"] and g == OPT["barg"] and mode != 1:
                it.append(("w", (k - ks + 3, 7)))
                if last: it += [("x", f"s_setprio {OPT['mprio']}"), ("x", "s_barrier")]
                else: it += [("x", "s_cmp_gt_u32 s11, 7"), ("x", f"s_cbranch_scc1 {nob}"), ("x", "s_barrier"), ("x", f"{nob}:")]
            for (so, ri) in PL[g]:
                if last and ks + so > 3: continue
                it.append(("r", reads((k+so) % 4, (k+so) % 2)[ri], (k+so, ri)))
            ex = []
            dl = "s13" if mode == 0 else "s16"
            if mode == 0:
                if ks == 0 and g == 2: ex = ["s_add_u32 s12, s12, 1", "s_cmp_eq_u32 s12, 3", "s_cselect_b32 s13, s16, s17", "s_cselect_b32 s12, 0, s12"]
                if ks == 1 and g == 2: ex = ["s_add_u32 s11, s11, 1"]
                if ks == 3 and g == 5: ex = ["s_cmp_lt_u32 s11, 8"]
            if not last:
                if ks == 1 and g == 1: ex = [f"v_add_u32 v2, {dl}, v2"]
                if ks == 0 and g == 5: ex = [f"v_add_u32 v3, {dl}, v3", "v_subrev_u32 v7, 8, v7"]
                if ks == 1 and g == 3: ex = [f"v_add_u32 v4, {dl}, v4"]
                if ks == 3 and g == 3: ex = [f"v_add_u32 v5, {dl}, v5"]
                if ks == 2 and g == 1: ex = [f"v_add_u32 v6, {dl}, v6"]
            if mode:
                pos = 24*(mode-1) + 6*ks + g - OPT["ald"][0]
                if pos >= 0 and g in (1, 2, 3, 5) and na[0] < 26: ex = ex + aload(na[0]); na[0] += 1
            for e in ex: it.append(("x", e))
            if ks == 1 and g == 5 and not last: it.append(("r", "ds_read_b32 v13, v7 offset:4", "flag"))
            if ks == 0 and g == 1: it.append(("r", "ds_read_b32 v12, v7", "flagB"))
        return it
    def emit(items, q):
        for i in items:
            tags = i[2] if i[0] == "m" else [i[1]] if i[0] == "w" else []
            if tags:
                pos = max(len(q["ops"]) - 1 - q["ops"][::-1].index(t) for t in tags)
                if pos >= q["done"]:
                    n = min(14, len(q["ops"]) - 1 - pos)
                    q["done"] = len(q["ops"]) - n
                    A(f"s_waitcnt lgkmcnt({n})")
            if i[0] in ("r", "l"): q["ops"].append(i[2] if i[0] == "r" else None)
            if i[0] != "w": A(i[1])
    q = dict(ops=[], done=0)
    emit([("r", reads(0, 0)[r], (0, r)) for r in range(8)] + [("r", reads(1, 1)[ri], (1, ri)) for g in range(6) for (so, ri) in PL[g] if so == 2], q)
    A.label(lp)
    for k in range(4): emit(step_items(k, 0), q)
    A(f"s_cbranch_scc1 {lp}")
    q["done"] = 0
    for k in range(4, 8): emit(step_items(k, 1), q)
    for k in range(8, 12): emit(step_items(k, 2), q)
    stamp(A, 3)
    A(f"s_load_dword s{TAG}, s[{DBG}:{DBG+1}], 0")
    A(f"v_mov_b32 v7, {FT-92}"); A("v_mov_b32 v5, v11"); A(f"v_add_u32 v6, {2*STG}, v11"); A("s_nop 6")
    def areads(step):
        slot = (10 + step // 2) % 3; r = []
        for dt in range(5):
            o = AF[5*(step % 6) + dt]
            off = (STG if slot == 1 else 0) + 5120*(step % 2) + 1024*dt
            r.append(f"ds_read_b128 v[{o}:{o+3}], v{6 if slot == 2 else 5} offset:{off}")
        return r
    E = 16
    for a in range(2):
        for nt in range(3):
            g = ACC1 + 16*(3*a+nt); u = g + 8
            o = 32 + 4*((3*a+nt) % 4)
            ti = 3*a+nt
            lim = 26 if ti == 0 else 30
            cnt = -(-(30 - na[0]) // max(1, OPT["ald"][1] - ti))
            ins = []
            while cnt > 0 and na[0] < lim:
                ins.append(aload(na[0])); na[0] += 1; cnt -= 1
            mark = len(A.lines)
            if 3*a+nt < OPT['epk']:
                for i in range(4): A(f"v_pk_mul_f32 {P2(E+2*i)}, {P2(g+2*i)}, s[54:55]")
                for i in range(8): A(f"v_exp_f32 v{E+i}, v{E+i}")
                for i in range(4): A(f"v_pk_add_f32 {P2(E+2*i)}, {P2(E+2*i)}, 1.0 op_sel_hi:[1,0]")
                for i in range(8): A(f"v_rcp_f32 v{E+i}, v{E+i}")
                for i in range(4): A(f"v_pk_mul_f32 {P2(g+2*i)}, {P2(g+2*i)}, {P2(u+2*i)}")
                for i in range(4): A(f"v_pk_mul_f32 {P2(g+2*i)}, {P2(g+2*i)}, {P2(E+2*i)}")
            else:
                for i in range(8): A(f"v_mul_f32 v{E+i}, s54, v{g+i}")
                for i in range(8): A(f"v_exp_f32 v{E+i}, v{E+i}")
                for i in range(8): A(f"v_add_f32 v{E+i}, 1.0, v{E+i}")
                for i in range(8): A(f"v_rcp_f32 v{E+i}, v{E+i}")
                for i in range(8): A(f"v_mul_f32 v{g+i}, v{g+i}, v{u+i}")
                for i in range(8): A(f"v_mul_f32 v{g+i}, v{g+i}, v{E+i}")
            if ins:
                body = A.lines[mark:]; del A.lines[mark:]
                step = max(1, len(body) // len(ins))
                for n, l in enumerate(body):
                    if n % step == 0 and ins:
                        for x in ins.pop(0): A(x)
                    A.lines.append(l)
                assert not ins
            for i in range(4): A(f"v_cvt_pk_bf16_f32 v{o+i}, v{g+2*i}, v{g+2*i+1}")
            A(f"buffer_store_dwordx4 v[{o}:{o+3}], v10, s[20:23], s{48+nt} offen offset:{2048*a} sc1")
            if 3*a+nt == OPT["epk"] - 1: A("s_barrier")
    if OPT["mprio"]: A("s_setprio 0")
    stamp(A, 4)
    assert na[0] == 30
    tag_get(A, 14, issued=True)
    flag_store(A, "s51", 14)
    stamp(A, 5)
    stamp(A, 6)
    A("v_and_b32 v4, 15, v0"); A("v_lshrrev_b32 v3, 4, v0")
    A(f"v_mul_u32_u24 v2, {PB}, v4"); A("v_lshl_add_u32 v2, v3, 3, v2")
    A("s_mul_i32 s26, s3, 10240"); A("v_add_u32 v2, s26, v2")
    spoll(A, "s52", 8, OPT["psleep"])
    stamp(A, 7)
    ACC = 80; HR = 8
    def hload(k, i):
        b = HR + 16*(k % 3)
        r = [f"buffer_load_dwordx4 v[{b+4*i}:{b+4*i+3}], v1, s[20:23], s53 offen offset:{1024*i} sc1"]
        if i == 3: r.append("s_add_u32 s53, s53, 4096")
        return r
    for k in range(3):
        for i in range(4):
            for x in hload(k, i): A(x)
    for k in range(12):
        b = HR + 16*(k % 3); j = k + 2
        ar = areads(j) if 6 <= j < 12 else []
        chk = bool(ar) and j % 2 == 0
        for mt in range(4):
            out = 11 if k + 3 < 12 else 4*(12-k) - mt - 1
            w = f"s_waitcnt vmcnt({out})"
            if mt == 0: w += " lgkmcnt(0)" if k in (0, 11) else " lgkmcnt(5)" if k >= 6 else ""
            A(w)
            if mt == 0 and k in (0, 6): stamp(A, 8 + k//6)
            for dt in range(5):
                c = ACC + 4*(4*dt+mt); af = AF[5*(k % 6) + dt]
                src = "0" if k == 0 else f"v[{c}:{c+3}]"
                A(f"v_mfma_f32_16x16x32_bf16 v[{c}:{c+3}], v[{af}:{af+3}], v[{b+4*mt}:{b+4*mt+3}], {src}")
                if chk and mt == 0 and dt == 0: A(f"ds_read_b32 v3, v7 offset:{4*(5-j//2)}")
                if chk and mt == 1 and dt == 3:
                    sl = A.newlabel("g2s"); bk = A.newlabel("g2b"); slows.append((sl, bk, 3, 4*(5-j//2)))
                    A("s_waitcnt lgkmcnt(0)"); A("v_cmp_ne_u32 vcc, 0, v3"); A(f"s_cbranch_vccnz {sl}"); A.label(bk)
                if ar and mt == 2: A(ar[dt])
            if k + 3 < 12:
                for x in hload(k+3, mt): A(x)
    A.tail_code = slows
    stamp(A, 10)
    A("s_nop 1")
    for mt in range(4):
        for dt in range(5):
            c = ACC + 4*(4*dt+mt); o = 8 + 2*((5*mt+dt) % 16)
            A(f"v_cvt_pk_bf16_f32 v{o}, v{c}, v{c+1}"); A(f"v_cvt_pk_bf16_f32 v{o+1}, v{c+2}, v{c+3}")
            if 5*mt+dt >= 1: A(pw)
            pw = f"ds_write_b64 v2, v[{o}:{o+1}] offset:{(mt >> 1)*STG + 16*(mt & 1)*PB + 32*dt}"
    A(pw)

def post(A):
    A(f"s_mov_b32 s16, s{OUT}"); A(f"s_mov_b32 s17, s{OUT+1}")
    A("s_mov_b32 s18, 2621440"); A("s_mov_b32 s19, 0x20000")
    A("s_mov_b32 s30, 0xffff0000")
    A("s_mul_i32 s24, s6, 81920"); A("s_mul_i32 s25, s7, 160"); A("s_add_u32 s24, s24, s25")
    A("s_lshl_b32 s27, s3, 6")
    def addr(b):
        A(f"v_add_u32 v{b}, s27, v0")
        A(f"v_mul_u32_u24 v{b+1}, 6554, v{b}"); A(f"v_lshrrev_b32 v{b+1}, 16, v{b+1}")
        A(f"v_mul_u32_u24 v{b+2}, 10, v{b+1}"); A(f"v_sub_u32 v{b+2}, v{b}, v{b+2}")
        A(f"v_mul_u32_u24 v{b+3}, 1280, v{b+1}"); A(f"v_lshl_add_u32 v{b+3}, v{b+2}, 4, v{b+3}")
        A(f"v_mul_u32_u24 v{b+4}, {PB}, v{b+1}"); A(f"v_lshl_add_u32 v{b+4}, v{b+2}, 4, v{b+4}")
        A(f"v_lshrrev_b32 v{b+5}, 5, v{b+1}"); A(f"v_mul_u32_u24 v{b+5}, {STG - 32*PB}, v{b+5}"); A(f"v_add_u32 v{b+4}, v{b+4}, v{b+5}")
        A(f"v_mul_u32_u24 v{b+5}, 86, v{b+2}"); A(f"v_lshrrev_b32 v{b+5}, 8, v{b+5}")
        A(f"v_mul_u32_u24 v{b+6}, {HS+48}, v{b+2}"); A(f"v_mul_u32_u24 v{b+5}, {3*(HS+48) - A2S}, v{b+5}")
        A(f"v_sub_u32 v{b+6}, v{b+6}, v{b+5}"); A(f"v_lshl_add_u32 v{b+6}, v{b+1}, 4, v{b+6}"); A(f"v_add_u32 v{b+6}, {HB + A2O}, v{b+6}")
        A(f"v_lshlrev_b32 v{b+7}, 2, v{b+1}"); A(f"v_add_u32 v{b+7}, {HB + OMG}, v{b+7}")
    def rds(b, d):
        for w in range(4): A(f"ds_read_b128 v[{d+4*w}:{d+4*w+3}], v{b+4} offset:{w*10240}")
        A(f"ds_read_b128 v[{d+16}:{d+19}], v{b+6}")
        A(f"ds_read_b32 v{d+20}, v{b+7}")
    def calc(b, d, rest):
        t = 160
        for w in range(5):
            A(f"s_waitcnt lgkmcnt({rest + (5 - w if w < 4 else 0)})")
            for k in range(4):
                A(f"v_lshlrev_b32 v{t+8*w+2*k}, 16, v{d+4*w+k}"); A(f"v_and_b32 v{t+8*w+2*k+1}, s30, v{d+4*w+k}")
            if 1 <= w <= 3:
                for k in range(4): A(f"v_pk_add_f32 {P2(t+2*k)}, {P2(t+2*k)}, {P2(t+8*w+2*k)}")
        for k in range(4): A(f"v_pk_add_f32 {P2(t+32+2*k)}, {P2(t+32+2*k)}, {P2(t+2*k)} neg_lo:[0,1] neg_hi:[0,1]")
        for k in range(4): A(f"v_pk_fma_f32 {P2(t+2*k)}, {P2(t+32+2*k)}, {P2(d+20)}, {P2(t+2*k)} op_sel_hi:[1,0,1]")
        for k in range(4): A(f"v_cvt_pk_bf16_f32 v{d+k}, v{t+2*k}, v{t+2*k+1}")
        A(f"buffer_store_dwordx4 v[{d}:{d+3}], v{b+3}, s[16:19], s24 offen")
    addr(40)
    one = A.newlabel("po"); lp = A.newlabel("po"); dn = A.newlabel("po"); o2 = A.newlabel("po")
    A("s_and_b32 s28, s3, 6"); A("s_cmp_lg_u32 s28, 4"); A(f"s_cbranch_scc1 {one}")
    A("s_add_u32 s27, s27, 256"); A("s_setprio 3")
    addr(48)
    A.label(one)
    A("s_waitcnt lgkmcnt(0)")
    A("s_barrier")
    stamp(A, 11)
    A("s_cmp_lg_u32 s28, 4"); A(f"s_cbranch_scc1 {o2}")
    rds(48, 232)
    A.label(o2)
    rds(40, 208)
    A.label(lp)
    calc(40, 208, 0)
    A("s_cmp_lg_u32 s28, 4"); A(f"s_cbranch_scc1 {dn}")
    A("s_mov_b32 s28, 0"); A("v_mov_b32 v43, v51")
    for i in range(10, -1, -1): A(f"v_pk_mov_b32 {P2(208+2*i)}, {P2(232+2*i)}, {P2(232+2*i)} op_sel:[0,1]")
    A(f"s_branch {lp}")
    A.label(dn)

def pcmul(A, d, s, m):
    A(f"v_pk_mul_f32 {P2(d)}, {P2(s)}, {P2(m)} op_sel:[0,0] op_sel_hi:[1,0]")
    A(f"v_pk_fma_f32 {P2(d)}, {P2(s)}, {P2(m)}, {P2(d)} op_sel:[1,1,0] op_sel_hi:[0,1,1] neg_lo:[0,1,0]")

def kpass(A):
    RAW = 232; FA = 16; ACC = 20
    A(f"s_mul_i32 s28, s{CH}, 384"); A("s_lshl_b32 s29, s17, 7"); A("s_add_u32 s28, s28, s29")
    A("v_lshlrev_b32 v1, 1, v0"); A("v_add_u32 v1, s28, v1")
    A(f"s_lshr_b32 s28, s{CH}, 1"); A("s_lshl_b32 s28, s28, 2")
    A("s_mov_b32 m0, s19")
    A("v_and_b32 v17, 15, v0"); A("v_lshrrev_b32 v18, 4, v0")
    A("s_waitcnt lgkmcnt(0)")
    for a in range(4): A(f"global_load_ushort v{RAW+a}, v1, s[{LOGA+2*a}:{LOGA+2*a+1}]")
    A(f"s_load_dword s30, s[{LOGDT}:{LOGDT+1}], s28")
    A(f"s_load_dword s31, s[{DSK}:{DSK+1}], s28")
    A("s_cmp_lt_u32 s14, 2"); A("s_cbranch_scc1 k_one")
    for a in range(4): A(f"global_load_ushort v{RAW+4+a}, v1, s[{LOGA+2*a}:{LOGA+2*a+1}] offset:128")
    A.label("k_one")
    A("s_barrier")
    A("s_mov_b32 s24, 0x%x" % LOG2E); A("s_mov_b32 s25, 0x%x" % LOG2E_LO); A("s_mov_b32 s26, 0x%x" % LN2)
    A("s_mov_b32 s27, 0x41000000"); A("s_mov_b32 s28, 0x43000000")
    A(f"v_mul_u32_u24 v{FA}, {RS}, v17"); A(f"v_lshl_add_u32 v{FA}, v18, 4, v{FA}"); A(f"v_add_u32 v{FA}, s19, v{FA}")
    for i in range(6): A(f"v_pk_mov_b32 {P2(ACC+2*i)}, 0, 0")
    DT, DT2, NDT, ONE = 32, 34, 33, 36
    A(f"v_mov_b32 v{ONE}, 0x3f80")
    A("v_lshlrev_b32 v1, 4, v0")
    A("s_cmp_ge_u32 s3, 4"); A("s_cbranch_scc1 k_nosetup")
    msetup(A)
    A.label("k_nosetup")
    A("s_waitcnt lgkmcnt(0)")
    A(f"s_bitcmp1_b32 s{CH}, 0")
    A("s_cselect_b32 s29, 0, 16")
    A("s_lshl_b32 s30, s30, s29"); A("s_and_b32 s30, s30, 0xffff0000")
    A("s_lshl_b32 s31, s31, s29"); A("s_and_b32 s31, s31, 0xffff0000")
    A("s_cmp_eq_u32 s17, 0"); A("s_cselect_b32 s31, s31, 0")
    A("v_mov_b32 v37, s30")
    A(f"v_writelane_b32 v{ACC}, s31, 0")
    A("v_mul_f32 v38, s24, v37"); A("v_fma_f32 v39, v37, s24, -v38"); A("v_fmac_f32 v39, s25, v37")
    A("v_exp_f32 v38, v38"); A("v_mul_f32 v39, s26, v39"); A("v_fmac_f32 v38, v38, v39")
    A("v_cvt_pk_bf16_f32 v38, v38, v38")
    A(f"v_lshlrev_b32 v{DT}, 16, v38")
    A(f"v_add_f32 v{DT2}, v{DT}, v{DT}"); A(f"v_sub_f32 v{NDT}, 0, v{DT}")
    A("s_waitcnt vmcnt(0)")
    stamp(A, 1)
    A.label("k_loop")
    A1 = 38; TH = 39
    Z, W, Y = 40, 42, 44
    P = 48; T = 224; QA, QB = 226, 228; PK = 240
    QF, PF = 160, 176
    A(f"v_lshlrev_b32 v{T}, 16, v{RAW}"); A(f"v_mul_f32 v{T}, s24, v{T}")
    A(f"v_lshlrev_b32 v{TH}, 16, v{RAW+1}")
    A(f"v_exp_f32 v{T}, v{T}")
    A(f"v_lshlrev_b32 v{P}, 16, v{RAW+2}"); A(f"v_lshlrev_b32 v{P+1}, 16, v{RAW+3}")
    A(f"v_cvt_pk_bf16_f32 v{T}, v{T}, v{T}")
    A(f"v_mul_f32 v{TH}, v{TH}, v{DT}")
    A(f"v_lshlrev_b32 v{T}, 16, v{T}")
    A(f"v_mul_f32 v{TH}, 0.15915494, v{TH}")
    A(f"v_mul_f32 v{A1}, v{T}, v{NDT}")
    A(f"v_pk_mul_f32 {P2(P)}, {P2(P)}, {P2(DT2)} op_sel_hi:[1,0]")
    A(f"v_mul_f32 v{A1}, s24, v{A1}")
    A(f"v_pk_mov_b32 {P2(RAW)}, {P2(RAW+4)}, {P2(RAW+4)} op_sel:[0,1]"); A(f"v_pk_mov_b32 {P2(RAW+2)}, {P2(RAW+6)}, {P2(RAW+6)} op_sel:[0,1]")
    for (R, sc) in ((W, "s27"), (Z, None), (Y, "s28")):
        if sc:
            A(f"v_mul_f32 v{T}, {sc}, v{A1}"); A(f"v_mul_f32 v{T+1}, {sc}, v{TH}")
            A(f"v_exp_f32 v{T}, v{T}"); A(f"v_fract_f32 v{T+1}, v{T+1}")
        else:
            A(f"v_exp_f32 v{T}, v{A1}"); A(f"v_fract_f32 v{T+1}, v{TH}")
        A(f"v_cos_f32 v{R}, v{T+1}"); A(f"v_sin_f32 v{R+1}, v{T+1}")
        A("s_nop 0")
        A(f"v_pk_mul_f32 {P2(R)}, {P2(R)}, {P2(T)} op_sel_hi:[1,0]" + (" neg_hi:[1,0]" if R == W else ""))
    pkc = [0]
    def emit(row, r):
        k = PK + pkc[0] % 16; pkc[0] += 1
        A(f"v_cvt_pk_bf16_f32 v{k}, v{r}, v{r+1}")
        pend.append(f"ds_write_addtid_b32 v{k} offset:{row*RS}")
        while len(pend) > OPT["kdepth"]: A(pend.pop(0))
    pend = []
    def rd(base):
        while pend: A(pend.pop(0))
        for t in range(4): A(f"ds_read_b128 v[{base+4*t}:{base+4*t+3}], v{FA} offset:{64*t}")
    def mm(acc, base, n):
        A(f"s_waitcnt lgkmcnt({n})")
        for t in range(4):
            A(f"v_mfma_f32_16x16x32_bf16 v[{acc}:{acc+3}], v[{base+4*t}:{base+4*t+3}], v[{QF+4*t}:{QF+4*t+3}], v[{acc}:{acc+3}]")
    A(f"ds_write_addtid_b32 v{ONE} offset:0")
    qs = W
    for j in range(2, 17):
        dst = QA if j % 2 == 0 else QB
        if j < 16: pcmul(A, dst, qs, W)
        emit(j-1, qs)
        b = j - 1
        if b <= 7: pcmul(A, P+2*b, P+2*b-2, Z)
        qs = dst
    rd(QF)
    loc = {}
    for b in range(0, 8, 2):
        emit(b, P+2*b); emit(b+1, P+2*b+2)
        pcmul(A, T, P+2*b+2, Y); pcmul(A, P+2*b+2, P+2*b, Y)
        emit(8+b+1, T); emit(8+b, P+2*b+2)
        loc[b] = P+2*b+2
    rd(PF)
    def step(b, row):
        s = loc[b]; d = P+2*b if s == P+2*b+2 else P+2*b+2
        pcmul(A, d, s, Y); loc[b] = d
        return (row, d)
    for a in range(2):
        es = [step(b, 4*a + b//2) for b in (0, 2, 4, 6)]
        for e in es: emit(*e)
    for a in range(4):
        es = [step(b, 8 + 2*a + b//4) for b in (0, 4)]
        for e in es: emit(*e)
    rd(PF+16)
    e = step(0, 0)
    for a in range(1, 10):
        n = step(0, a) if a < 9 else None
        emit(*e); e = n
    rd(PF+32)
    mm(ACC, PF, 8); mm(ACC+4, PF+16, 4); mm(ACC+8, PF+32, 0)
    A("s_sub_u32 s14, s14, 1"); A("s_cmp_lg_u32 s14, 0"); A("s_cbranch_scc1 k_loop")
    A("s_cmp_ge_u32 s3, 4"); A("s_cbranch_scc1 k_h")

def kaddr(A):
    sL = REG
    A(f"v_add_u32 v39, s{sL}, v1")
    EB = C0
    A("v_lshlrev_b32 v40, 4, v17"); A(f"v_add_u32 v40, s{sL}, v40")
    A("v_lshl_add_u32 v41, v18, 10, v40"); A(f"v_add_u32 v41, {EB + 2048 - 8}, v41")
    A("v_and_b32 v42, 1, v0"); A("v_lshlrev_b32 v42, 3, v42"); A("v_sub_u32 v42, v41, v42")
    A("v_lshl_add_u32 v43, v18, 9, v40"); A("v_lshl_add_u32 v44, v18, 8, v40")
    A("v_lshrrev_b32 v45, 1, v18"); A("v_lshl_add_u32 v45, v45, 8, v40")
    A("v_and_b32 v46, 1, v18"); A("v_lshl_add_u32 v45, v46, 3, v45")
    A("v_mov_b32 v66, 0"); A("v_mov_b32 v67, 0")
    A("v_and_b32 v46, 7, v0"); A("v_lshlrev_b32 v46, 2, v46"); A(f"v_add_u32 v46, s{sL}, v46")
    A("v_lshlrev_b32 v47, 3, v0"); A(f"v_add_u32 v47, s{sL}, v47")

KC = {xy: 56+n for n, xy in enumerate([(0,0),(0,1),(1,1),(2,2),(2,3),(3,3),(1,2)])}
def kexp0(A):
    K0, K1, K2 = 20, 24, 28
    for r in range(4):
        A(f"v_cvt_pk_bf16_f32 v{48+2*r}, v{K2+r}, v{K2+r}"); A(f"v_mov_b32 v{49+2*r}, v{48+2*r}")
    for (x, y), r in KC.items(): A(f"v_cvt_pk_bf16_f32 v{r}, v{K1+x}, v{K1+y}")
    A(f"v_cvt_pk_bf16_f32 v64, v{K0}, v{K0+1}"); A(f"v_cvt_pk_bf16_f32 v65, v{K0+2}, v{K0+3}")
def kexp1(A):
    EB = C0; c = KC
    for r in range(4): A(f"ds_write2_b64 v41, v[{48+2*r}:{49+2*r}], v[{48+2*r}:{49+2*r}] offset0:{32*r} offset1:{32*r+1}")
    for r in range(4): A(f"ds_write_b16 v42, v{48+2*r} offset:{256*r+16}")
    A("s_mov_b32 exec_lo, 0")
    o = (EB - 4) // 4
    A(f"ds_write2_b32 v43, v{c[0,0]}, v{c[0,0]} offset0:{o} offset1:{o+1}")
    A(f"ds_write2_b32 v43, v{c[0,1]}, v{c[1,1]} offset0:{o+2} offset1:{o+3}")
    A(f"ds_write2_b32 v43, v{c[2,2]}, v{c[2,2]} offset0:{o+64} offset1:{o+65}")
    A(f"ds_write2_b32 v43, v{c[2,3]}, v{c[3,3]} offset0:{o+66} offset1:{o+67}")
    A("s_mov_b32 exec_lo, -1"); A("s_mov_b32 exec_hi, 0")
    o = EB + 512
    A(f"ds_write_b16 v44, v{c[0,0]} offset:{o-2}")
    A(f"ds_write2_b32 v44, v{c[0,0]}, v{c[1,2]} offset0:{o//4} offset1:{o//4+1}")
    A(f"ds_write_b32 v44, v{c[2,2]} offset:{o+8}")
    A(f"ds_write_b16 v44, v{c[3,3]} offset:{o+12}")
    A("s_mov_b64 exec, -1")
    A(f"ds_write_b64 v45, v[64:65] offset:{EB}")
    A(f"ds_write_b32 v46, v66 offset:{C0-32}"); A(f"ds_write_b32 v46, v66 offset:{C1-32}")
    A(f"ds_write_b64 v47, v[66:67] offset:{CU+4096}")
    for i in range(4):
        A(f"ds_read_b128 v[{80+8*i}:{83+8*i}], v39 offset:{EB+1024*i}")
        A(f"ds_read_b32 v{72+i}, v39 offset:{EB+1024*i-4}")
def kexp2(A):
    A("s_waitcnt lgkmcnt(0)")
    for i in range(4):
        b = 80+8*i
        A(f"v_alignbit_b32 v{b+4}, v{b}, v{72+i}, 16")
        for k in range(1, 4): A(f"v_alignbit_b32 v{b+4+k}, v{b+k}, v{b+k-1}, 16")
        A(f"ds_write_b128 v39, v[{b+4}:{b+7}] offset:{C1+1024*i}")

def caddr(A):
    sL = REG
    A("v_lshlrev_b32 v2, 4, v18"); A("v_lshlrev_b32 v6, 5, v17"); A("v_sub_u32 v2, v2, v6")
    A(f"v_add_u32 v2, {CU + 4064 - 3584}, v2"); A(f"v_add_u32 v2, s{sL}, v2")
    A("v_sub_u32 v6, 15, v17"); A("v_and_b32 v7, 1, v6"); A("v_sub_u32 v6, v6, v7")
    A(f"v_mul_u32_u24 v3, {C1-C0}, v7"); A("v_lshl_add_u32 v3, v18, 4, v3")
    A("v_lshlrev_b32 v6, 1, v6"); A("v_sub_u32 v3, v3, v6")
    A(f"v_add_u32 v3, {C0}, v3"); A(f"v_add_u32 v3, s{sL}, v3")
    for i in range(1, 4): A(f"v_add_u32 v{3+i}, {1024*i}, v3")
    A("v_lshlrev_b32 v7, 5, v17"); A("v_lshrrev_b32 v8, 1, v18"); A("v_lshl_add_u32 v7, v8, 4, v7")
    A("v_and_b32 v8, 1, v18"); A("v_lshl_add_u32 v7, v8, 9, v7")

def conv(A):
    Y = 172
    TB = [40, 104]
    def reads(f, extra):
        b = TB[f]; r = []
        for q in range(8):
            r.append(f"ds_read_b128 v[{b+32+4*q}:{b+35+4*q}], v2 offset:{512*(7-q) + extra}")
            o = (512*(q & 1) + extra) // 4
            r.append(f"ds_read2_b32 v[{b+4*q}:{b+4*q+1}], v{3+q//2} offset0:{o} offset1:{o+1}")
            r.append(f"ds_read2_b32 v[{b+4*q+2}:{b+4*q+3}], v{3+q//2} offset0:{o+2} offset1:{o+3}")
        return r
    def mfmas(f):
        b = TB[f]; r = []
        for q in range(8):
            for tau in range(8-q):
                t = q + tau
                r.append(f"v_mfma_f32_16x16x32_bf16 v[{Y+4*t}:{Y+4*t+3}], v[{b+4*q}:{b+4*q+3}], v[{b+32+4*tau}:{b+35+4*tau}], v[{Y+4*t}:{Y+4*t+3}]")
        return r
    def inter(ms, rs):
        for i, m in enumerate(ms):
            A(m)
            if i < len(rs): A(rs[i])
    A("s_waitcnt vmcnt(0)")
    for x in reads(0, 0): A(x)
    stamp(A, 9)
    if OPT["epk"]: A("s_barrier")
    stamp(A, 4)
    if OPT["cprio"]: A(f"s_setprio {OPT['cprio']}")
    A("s_mov_b32 s28, 0")
    lp = A.newlabel("cv")
    A.label(lp)
    A("s_waitcnt lgkmcnt(0)")
    inter(mfmas(0), reads(1, 64))
    A("s_add_u32 s28, s28, 1")
    A("s_waitcnt lgkmcnt(0)")
    inter(mfmas(1), reads(0, 128))
    for r in range(2, 7): A(f"v_add_u32 v{r}, 128, v{r}")
    A("s_cmp_lt_u32 s28, 4"); A(f"s_cbranch_scc1 {lp}")
    stamp(A, 5)
    A(f"s_add_u32 s30, s31, {YT_OFF}")
    A(f"s_lshr_b32 s28, s{CH}, 3"); A("s_lshl_b32 s28, s28, 8"); A(f"s_and_b32 s29, s{CH}, 7"); A("s_lshl_b32 s29, s29, 2")
    A("s_add_u32 s28, s28, s29"); A(f"s_add_u32 s28, s28, {YF_OFF}")
    A("s_waitcnt lgkmcnt(0)")
    A("s_nop 1")
    O = 40
    for t in range(8):
        A(f"v_cvt_pk_bf16_f32 v{O+2*t}, v{Y+4*t}, v{Y+4*t+1}"); A(f"v_cvt_pk_bf16_f32 v{O+2*t+1}, v{Y+4*t+2}, v{Y+4*t+3}")
    A("s_nop 1")
    for p in range(4):
        A(f"v_permlane16_swap_b32 v{O+4*p}, v{O+4*p+2}"); A(f"v_permlane16_swap_b32 v{O+4*p+1}, v{O+4*p+3}")
    A("s_nop 1")
    for p in range(4): A(f"buffer_store_dwordx4 v[{O+4*p}:{O+4*p+3}], v7, s[20:23], s30 offen offset:{1024*p} sc1")
    A("s_setprio 0")
    flag_store(A, "s28", 2, 8, 80*256)
    A(f"v_mov_b32 v4, {FLG}"); A("v_mov_b32 v5, 0"); A("ds_write_b32 v4, v5")
    stamp(A, 6)

def hbar(A, i):
    if OPT["hdiag"] == 2: _stamp0(A, i + 2)
    A("s_barrier")
    if OPT["hdiag"] == 1: _stamp0(A, i + 2)

def hwave(A):
    ACC = 20; sL = REG
    def when(cmp, neg=False):
        l = A.newlabel("if"); A(cmp); A(f"s_cbranch_scc{1 if neg else 0} {l}"); return l
    stamp(A, 2)
    A(f"s_add_u32 s8, s2, 256"); A(f"s_cmp_eq_u32 s{LCH}, 0"); A("s_cselect_b32 s8, s2, s8")
    A(f"s_cmp_eq_u32 s{LCH}, 1"); A("s_cselect_b32 s8, 999, s8"); A("s_cselect_b32 s9, s2, 999")
    A(f"v_add_u32 v39, s{sL}, v1")
    A("v_lshrrev_b32 v2, 3, v0"); A("v_and_b32 v3, 7, v0")
    A(f"s_lshl_b32 s12, s{LCH}, 13"); A(f"s_add_u32 s12, s12, {TB2}")
    A(f"v_mov_b32 v42, {FLG}")
    lds_wait(A, 42, 41, "v_cmp_ne_u32 vcc, 0", off=120)
    w1 = A.newlabel("t"); w2 = A.newlabel("t")
    A(f"s_cmp_eq_u32 s{LCH}, 1"); A(f"s_cbranch_scc1 {w1}")
    A("v_xor_b32 v5, v2, v3"); A("v_lshlrev_b32 v5, 4, v5"); A("v_lshl_add_u32 v5, v3, 10, v5"); A("v_add_u32 v5, s12, v5")
    for e in range(8): A(f"ds_read_b128 v[{144+4*e}:{147+4*e}], v5 offset:{128*e}")
    A(f"s_cmp_eq_u32 s{LCH}, 0"); A(f"s_cbranch_scc1 {w2}")
    A("v_lshlrev_b32 v4, 4, v3"); A(f"v_add_u32 v4, {GXO}, v4"); A("v_mul_u32_u24 v5, 1280, v2"); A("v_add_u32 v5, v5, v4")
    for i in range(10):
        A(f"ds_read_b128 v[{176+4*i}:{179+4*i}], v5 offset:{128*i}")
        A(f"ds_read_b128 v[{216+4*i}:{219+4*i}], v4 offset:{GWO - GXO + 128*i}")
    A("v_mov_b32 v32, 0"); A("v_mov_b32 v33, 0")
    A("s_waitcnt lgkmcnt(0)")
    for k in range(40): A(f"v_dot2c_f32_bf16 v{32 + k % 2}, v{176+k}, v{216+k}")
    A(f"s_branch {w2}")
    A.label(w1)
    A("v_lshrrev_b32 v5, 5, v0"); A("v_lshlrev_b32 v5, 11, v5"); A("v_bfe_u32 v6, v0, 2, 3"); A("v_lshl_add_u32 v5, v6, 7, v5")
    A("v_and_b32 v6, 3, v0"); A("v_lshl_add_u32 v5, v6, 3, v5"); A("v_add_u32 v5, s12, v5")
    for dtl in range(4):
        for sg in range(2):
            o = 144 + 4*(2*dtl+sg)
            A(f"ds_read_b64_tr_b16 v[{o}:{o+1}], v5 offset:{4096*sg + 32*dtl}")
            A(f"ds_read_b64_tr_b16 v[{o+2}:{o+3}], v5 offset:{4096*sg + 32*dtl + 1024}")
    A.label(w2)
    A("s_waitcnt lgkmcnt(0)")
    stamp(A, 10)
    A("s_barrier")
    l = when("s_cmp_lt_u32 s8, 320")
    A("s_and_b32 s24, s8, 31"); A("s_lshr_b32 s25, s8, 5")
    A("v_lshlrev_b32 v6, 15, v2"); A("v_lshlrev_b32 v7, 4, v3"); A("v_sub_u32 v6, v6, v7"); A("v_add_u32 v6, 4080, v6")
    A("s_mov_b32 s28, 0x05040100"); A("s_mov_b32 s29, 0x07060302")
    A("s_lshl_b32 s30, s25, 18"); A("s_lshl_b32 s27, s24, 7"); A("s_sub_u32 s30, s30, s27"); A(f"s_add_u32 s30, s30, {UR_OFF}")
    for i in range(8):
        o = 112 + 4*i
        for p in range(4):
            lo = 144 + 4*(7-2*p) + i//2; hi = 144 + 4*(6-2*p) + i//2
            A(f"v_perm_b32 v{o+p}, v{hi}, v{lo}, s{28 + (i&1)}")
        A(f"buffer_store_dwordx4 v[{o}:{o+3}], v6, s[20:23], s30 offen sc1")
        A("s_add_u32 s30, s30, 4096")
    A.label(l)
    A("s_mul_i32 s19, s18, 3072"); A(f"s_add_u32 s19, s19, {KP_OFF}")
    l = when("s_cmp_eq_u32 s16, 0")
    for i in range(3): A(f"buffer_store_dwordx4 v[{ACC+4*i}:{ACC+4*i+3}], v1, s[20:23], s19 offen offset:{1024*i} sc1")
    A.label(l)
    A("s_min_u32 s10, s2, 239"); A("s_mul_i32 s11, s10, 2731"); A("s_lshr_b32 s11, s11, 16")
    A("s_mul_i32 s28, s11, 24"); A("s_sub_u32 s10, s10, s28")
    l = when("s_cmp_lt_u32 s9, 240")
    for dtl in range(4):
        A("s_lshl_b32 s26, s11, 2"); A(f"s_add_u32 s26, s26, {dtl}")
        A("s_mul_i32 s27, s26, 52429"); A("s_lshr_b32 s27, s27, 18"); A("s_mul_i32 s28, s27, 235"); A("s_add_u32 s26, s26, s28")
        A("s_mul_i32 s28, s10, 10"); A("s_add_u32 s26, s26, s28"); A("s_lshl_b32 s26, s26, 10"); A(f"s_add_u32 s26, s26, {WDF_OFF}")
        A("s_add_u32 s27, s26, 5120")
        o = 144 + 8*dtl
        A(f"buffer_store_dwordx4 v[{o}:{o+3}], v1, s[20:23], s26 offen sc1")
        A(f"buffer_store_dwordx4 v[{o+4}:{o+7}], v1, s[20:23], s27 offen sc1")
    A.label(l)
    hbar(A, 0)
    stamp(A, 12)
    for i in range(3): A(f"ds_read_b128 v[{80+4*i}:{83+4*i}], v39 offset:{SS + 1024*i}")
    for i in range(3): A(f"ds_read_b128 v[{92+4*i}:{95+4*i}], v39 offset:{2*SS + 1024*i}")
    A("s_waitcnt lgkmcnt(0)")
    l = when("s_cmp_ge_u32 s16, 1")
    for i in range(12): A(f"v_add_f32 v{ACC+i}, v{ACC+i}, v{80+i}")
    A.label(l)
    l = when("s_cmp_ge_u32 s16, 2")
    for i in range(12): A(f"v_add_f32 v{ACC+i}, v{ACC+i}, v{92+i}")
    A.label(l)
    hbar(A, 1)
    tag_get(A, 40)
    l = when(f"s_cmp_eq_u32 s{LCH}, 2")
    A("v_add_f32 v32, v32, v33"); A("s_mov_b32 s28, 0x%x" % NLOG2E)
    for m in ("quad_perm:[1,0,3,2]", "quad_perm:[2,3,0,1]", "row_half_mirror"):
        A("s_nop 1"); A(f"v_add_f32_dpp v32, v32, v32 {m} row_mask:0xf bank_mask:0xf")
    A("v_mul_f32 v32, s28, v32"); A("v_exp_f32 v32, v32"); A(f"v_mov_b32 v33, s{TAG}")
    A("v_add_f32 v32, 1.0, v32"); A("v_rcp_f32 v32, v32")
    A(f"s_lshl_b32 s26, s{XCD}, 5"); A(f"s_add_u32 s26, s26, s{RR}"); A("s_lshl_b32 s26, s26, 6"); A(f"s_add_u32 s26, s26, {GG_OFF}")
    A("s_mov_b32 exec_lo, 0x01010101"); A("s_mov_b32 exec_hi, 0x01010101")
    A("buffer_store_dwordx2 v[32:33], v0, s[20:23], s26 offen sc1")
    A("s_mov_b64 exec, -1")
    A.label(l)
    hbar(A, 2)
    l = when("s_cmp_lt_u32 s8, 320")
    A("s_lshl_b32 s30, s25, 8"); A("s_lshl_b32 s27, s24, 2"); A("s_add_u32 s30, s30, s27"); A(f"s_add_u32 s30, s30, {UF_OFF}")
    flag_store(A, "s30", 40)
    A.label(l)
    A("s_lshl_b32 s18, s18, 7"); A(f"s_add_u32 s18, s18, {KF_OFF}")
    l = when("s_cmp_eq_u32 s16, 0")
    flag_store(A, "s18", 40)
    A.label(l)
    l = when("s_cmp_lt_u32 s9, 240")
    A("s_lshl_b32 s26, s11, 8"); A("s_lshl_b32 s27, s10, 2"); A("s_add_u32 s26, s26, s27"); A(f"s_add_u32 s26, s26, {WF_OFF}")
    flag_store(A, "s26", 70)
    A.label(l)
    caddr(A); kaddr(A)
    for i in range(32): A(f"v_mov_b32 v{172+i}, 0")
    A("v_and_b32 v68, 31, v0"); A("v_lshlrev_b32 v68, 2, v68")
    A(f"s_lshr_b32 s29, s{CH}, 6"); A("s_lshl_b32 s29, s29, 8"); A(f"s_add_u32 s29, s29, {UF_OFF}")
    A(f"s_lshl_b32 s31, s{CH}, 12"); A(f"s_add_u32 s30, s31, {UR_OFF}")
    A(f"s_add_u32 m0, s{sL}, {CU}")
    hbar(A, 3)
    hbar(A, 4)
    def check(va, so, vd):
        ok = A.newlabel("ok")
        A(f"v_cmp_ne_u32 vcc, s{TAG}, v{vd}"); A(f"s_cbranch_vccz {ok}")
        poll(A, va, so, vd)
        A.label(ok)
    A("v_mov_b32 v74, 0")
    hbar(A, 5)
    l = when(f"s_cmp_eq_u32 s{LCH}, 0")
    A("v_min_u32 v74, 47, v0"); A("v_cmp_lt_u32 vcc, 23, v74"); A("v_lshlrev_b32 v74, 2, v74"); A("v_add_u32 v75, 160, v74")
    A("v_cndmask_b32 v74, v74, v75, vcc")
    A("s_mul_i32 s26, s7, 5"); A("s_lshr_b32 s26, s26, 2"); A("s_lshl_b32 s26, s26, 8"); A(f"s_add_u32 s26, s26, {WF_OFF}")
    A("buffer_load_dword v75, v74, s[20:23], s26 offen sc1")
    A("s_waitcnt vmcnt(0)")
    check(74, "s26", 75)
    A.label(l)
    hbar(A, 6)
    A("buffer_load_dword v69, v68, s[20:23], s29 offen sc1")
    A("v_mov_b32 v70, 0")
    l = when(f"s_cmp_eq_u32 s{RMT}, 1")
    A("buffer_load_dword v71, v70, s[20:23], s18 offen sc1")
    A.label(l)
    A("s_waitcnt vmcnt(0)")
    l = when("s_cmp_eq_u32 s17, 0")
    check(68, "s29", 69)
    for i in range(4): A(f"buffer_load_dwordx4 v1, s[20:23], s30 offen offset:{1024*i} sc1 lds")
    A.label(l)
    l = when(f"s_cmp_eq_u32 s{RMT}, 1")
    check(70, "s18", 71)
    for i in range(3): A(f"buffer_load_dwordx4 v[{80+4*i}:{83+4*i}], v1, s[20:23], s19 offen offset:{1024*i} sc1")
    A.label(l)
    stamp(A, 3)
    A("v_lshlrev_b32 v170, 3, v0")
    A("s_lshl_b32 s24, s6, 9"); A(f"s_add_u32 s24, s24, {GG_OFF}")
    A("buffer_load_dwordx2 v[168:169], v170, s[20:23], s24 offen sc1")
    A(f"v_mov_b32 v8, {FLG}")
    l = when("s_cmp_eq_u32 s16, 0")
    hbar(A, 9)
    if OPT["epk"]: A("s_barrier")
    lds_wait(A, 8, 9, "v_cmp_ne_u32 vcc, 0", sleep=4)
    A("s_branch k_fin")
    A.label(l)
    l = when(f"s_cmp_eq_u32 s{RMT}, 1")
    A("s_waitcnt vmcnt(1)")
    for i in range(12): A(f"v_add_f32 v{ACC+i}, v{ACC+i}, v{80+i}")
    A.label(l)
    kexp0(A)
    lds_wait(A, 8, 9, "v_cmp_ne_u32 vcc, 0", off=40)
    kexp1(A)
    hbar(A, 9)
    kexp2(A)
    conv(A)

def finpre(A):
    sH = LCH; sL = REG
    A("s_mul_i32 s26, s7, 2560"); A("s_lshr_b32 s25, s6, 2"); A("s_mul_i32 s25, s25, 20480"); A("s_add_u32 s26, s26, s25"); A(f"s_add_u32 s26, s26, {YF_OFF}")
    A("v_and_b32 v3, 7, v0")
    A("v_lshrrev_b32 v8, 3, v0"); A("v_lshlrev_b32 v8, 12, v8"); A("v_lshl_add_u32 v8, v3, 4, v8")
    A("s_mul_i32 s27, s7, 327680"); A("s_lshl_b32 s28, s6, 7"); A("s_add_u32 s27, s27, s28"); A(f"s_add_u32 s27, s27, {YT_OFF}")
    A("v_bfe_u32 v2, v0, 2, 2"); A("v_lshlrev_b32 v2, 7, v2")
    A("v_lshrrev_b32 v3, 4, v0"); A("v_lshl_add_u32 v2, v3, 5, v2")
    A("v_and_b32 v3, 3, v0"); A("v_lshl_add_u32 v2, v3, 3, v2"); A(f"v_add_u32 v2, s{sL}, v2")
    A(f"s_mul_i32 s28, s{sH}, 48"); A(f"s_add_u32 s28, s28, s{sL}")
    A("v_lshlrev_b32 v3, 4, v0"); A("v_add_u32 v3, s28, v3")
    A("v_lshlrev_b32 v7, 2, v0"); A(f"v_add_u32 v7, s{sL}, v7")
    A("s_waitcnt vmcnt(0)")
    ok = A.newlabel("ok")
    A(f"v_cmp_ne_u32 vcc, s{TAG}, v169"); A(f"s_cbranch_vccz {ok}")
    poll(A, 170, "s24", 168, 2, tagreg=169)
    A.label(ok)
    A(f"ds_write_b32 v7, v168 offset:{OMG}")
    A(f"s_lshl_b32 s29, s{sH}, 8"); A("s_add_u32 s12, s29, s26"); A("s_add_u32 s13, s12, 768"); A("s_add_u32 s14, s12, 1536")
    A(f"s_add_u32 s15, s26, {9*256}"); A(f"s_cmp_eq_u32 s{sH}, 0"); A("s_cselect_b32 s15, s15, s14")
    lp = A.newlabel("yl"); dn = A.newlabel("yl")
    A("s_mov_b32 s62, 0")
    A.label(lp)
    D = [32, 40, 48, 4]
    for i in range(3): A(f"s_load_dwordx8 s[{D[i]}:{D[i]+7}], s[20:21], s{12+i} glc")
    A("s_load_dwordx4 s[8:11], s[20:21], s15 glc"); A("s_load_dwordx4 s[16:19], s[20:21], s15 offset:16 glc")
    A("s_addk_i32 s62, 1")
    A("s_waitcnt lgkmcnt(0)")
    regs = list(range(32, 56)) + [8, 9, 10, 11, 16, 17, 18, 19]
    A("s_and_b64 s[28:29], s[32:33], s[34:35]"); A("s_or_b64 s[30:31], s[32:33], s[34:35]")
    for r in regs[4::2]:
        A(f"s_and_b64 s[28:29], s[28:29], s[{r}:{r+1}]"); A(f"s_or_b64 s[30:31], s[30:31], s[{r}:{r+1}]")
    A("s_and_b32 s28, s28, s29"); A("s_or_b32 s30, s30, s31")
    A(f"s_xor_b32 s28, s28, s{TAG}"); A(f"s_xor_b32 s30, s30, s{TAG}"); A("s_or_b32 s28, s28, s30")
    A(f"s_cbranch_scc0 {dn}")
    A(f"s_sleep {OPT['psleep']}")
    A(f"s_cmpk_lt_u32 s62, 0x{SPIN:x}"); A(f"s_cbranch_scc1 {lp}")
    A.label(dn)
    for i in range(4):
        A(f"s_add_u32 s28, s{sH}, {3*i}")
        if i == 3: A(f"s_cmp_lg_u32 s{sH}, 0"); A(f"s_cbranch_scc1 {dn}x")
        A("s_lshl_b32 s28, s28, 15"); A(f"s_add_u32 m0, s{sL}, {1024*i}"); A("s_add_u32 s28, s28, s27")
        A("buffer_load_dwordx4 v8, s[20:23], s28 offen sc1 lds")
    A.label(dn + "x")
    stamp(A, 7)
    A("s_waitcnt vmcnt(0)")
    for i in range(4):
        A(f"ds_read_b64_tr_b16 v[{8+4*i}:{9+4*i}], v2 offset:{1024*i}")
        A(f"ds_read_b64_tr_b16 v[{10+4*i}:{11+4*i}], v2 offset:{1024*i+512}")
    for i in range(4):
        A(f"s_waitcnt lgkmcnt({6-i})" if i < 3 else "s_waitcnt lgkmcnt(3)")
        A(f"ds_write_b128 v3, v[{8+4*i}:{11+4*i}] offset:{A2O + A2S*i}")
    stamp(A, 8)

def build():
    A = Asm()
    A.raw(f"; @launch grid=(256,1,1) block=(512,1,1) lds={LDS_BYTES}")
    A.raw('.amdgcn_target "amdgcn-amd-amdhsa--gfx950"')
    kernel_begin(A, NAME)
    A("s_cmp_ge_u32 s2, 256"); A("s_cbranch_scc1 k_end")
    stamp_begin(A)
    if OPT["probe"] >= 0:
        A("s_memrealtime s[64:65]"); A("s_waitcnt lgkmcnt(0)"); A("s_mov_b32 s66, s64")
    A("s_load_dwordx16 s[32:47], s[0:1], 0")
    A("s_load_dwordx8 s[48:55], s[0:1], 64")
    A("s_load_dwordx4 s[56:59], s[0:1], 96")
    A("s_load_dwordx2 s[20:21], s[0:1], 112")
    A("v_lshrrev_b32 v1, 6, v0"); A("v_and_b32 v0, 63, v0"); A("v_readfirstlane_b32 s3, v1")
    A(f"s_and_b32 s{XCD}, s2, 7"); A(f"s_lshr_b32 s{RR}, s2, 3"); A(f"s_lshr_b32 s{R4}, s{XCD}, 1"); A(f"s_and_b32 s{C2}, s{XCD}, 1")
    A(f"s_lshl_b32 s4, s{R4}, 2"); A(f"s_and_b32 s5, s{RR}, 3"); A("s_add_u32 s4, s4, s5")
    A(f"s_lshl_b32 s5, s{C2}, 3"); A(f"s_lshr_b32 s6, s{RR}, 2"); A("s_add_u32 s5, s5, s6")
    A(f"s_lshl_b32 s6, s{R4}, 3"); A(f"s_and_b32 s7, s{RR}, 7"); A("s_add_u32 s6, s6, s7")
    A(f"s_lshl_b32 s7, s{C2}, 2"); A(f"s_lshr_b32 s8, s{RR}, 3"); A("s_add_u32 s7, s7, s8")
    A("s_mov_b32 s22, 0x%x" % WS_BYTES); A("s_mov_b32 s23, 0x20000")
    A("v_lshlrev_b32 v8, 2, v0"); A(f"v_add_u32 v8, {FLG}, v8"); A("v_mov_b32 v9, 1")
    A("v_mov_b32 v10, 0"); A("v_mov_b32 v51, 0")
    A("ds_write_b32 v8, v9")
    A("s_cmp_eq_u32 s3, 4"); A("s_cbranch_scc1 k_l")
    ev = [(0,1,1,2),(1,1,1,1),(1,2,2,1),(2,1,1,1),(0,0,0,0),(0,0,0,1),(1,0,0,2),(2,0,0,1)]
    od = [(0,1,1,1),(0,2,2,1),(1,1,1,1),(1,2,2,1),(0,0,0,0),(0,0,0,2),(1,0,0,2),(2,0,2,0)]
    enc = lambda t: sum((r | (sl << 2) | (p << 4) | (c << 6)) << (8*i) for i, (r, sl, p, c) in enumerate(t))
    A(f"s_lshr_b32 s18, s{RR}, 1"); A("s_lshl_b32 s18, s18, 3"); A(f"s_add_u32 s18, s18, s{XCD}")
    A(f"s_mov_b32 s10, 0x{enc(ev) & 0xffffffff:x}"); A(f"s_mov_b32 s11, 0x{enc(ev) >> 32:x}")
    A(f"s_and_b32 s8, s{RR}, 1")
    A(f"s_cselect_b32 s10, 0x{enc(od) & 0xffffffff:x}, s10"); A(f"s_cselect_b32 s11, 0x{enc(od) >> 32:x}, s11")
    A("s_lshl_b32 s9, s3, 3"); A("s_lshr_b64 s[10:11], s[10:11], s9")
    A(f"s_and_b32 s{LCH}, s10, 3"); A("s_bfe_u32 s9, s10, 0x20002"); A("s_bfe_u32 s17, s10, 0x20004"); A("s_bfe_u32 s16, s10, 0x20006")
    A(f"s_mul_i32 s{REG}, s{LCH}, {HS}"); A(f"s_add_u32 s{REG}, s{REG}, {HB}")
    A(f"s_mul_i32 s19, s9, {SS}"); A(f"s_add_u32 s19, s19, s{REG}")
    A("s_cmp_lt_u32 s3, 4"); A("s_cselect_b32 s14, s16, 1")
    A("s_mul_i32 s9, s8, 3"); A(f"s_add_u32 s9, s9, s{LCH}")
    A(f"s_cmp_eq_u32 s{LCH}, 2"); A("s_cselect_b32 s9, 2, s9"); A("s_cselect_b32 s13, s16, 0")
    A(f"s_mul_i32 s{CH}, s18, 5"); A(f"s_add_u32 s{CH}, s{CH}, s9")
    kpass(A)
    kgive(A)
    mwave(A)
    A.label("k_post")
    post(A)
    stamp_end(A, 0)
    if OPT["probe"] >= 0:
        A("s_waitcnt vmcnt(0)")
        stamp(A, 13)
        A("s_cmp_lg_u32 s3, 1"); A("s_cbranch_scc1 k_end")
        A(f"s_cmp_lg_u32 s2, {OPT['pwg']}"); A("s_cbranch_scc1 k_end")
        A("s_sub_u32 s70, s66, s64"); A(f"s_mul_i32 s70, s70, {OPT['pk']}"); A("s_min_u32 s70, s70, 20000")
        A("s_memrealtime s[68:69]"); A("s_waitcnt lgkmcnt(0)")
        A.label("k_pr")
        A("s_memrealtime s[72:73]"); A("s_waitcnt lgkmcnt(0)")
        A("s_sub_u32 s72, s72, s68"); A("s_cmp_lt_u32 s72, s70"); A("s_cbranch_scc1 k_pr")
    A.label("k_end")
    A("s_endpgm")
    A.label("k_h")
    A(f"s_mov_b32 s{RMT}, s13")
    hwave(A)
    A.label("k_fin")
    finpre(A)
    A("s_branch k_post")
    A.label("k_l")
    loader(A)
    A("s_branch k_post")
    for sl, bk, reg, off in A.tail_code:
        A.label(sl); lds_wait(A, 7, reg, "v_cmp_ne_u32 vcc, 0", off=off); A(f"s_branch {bk}")
    A.label("k_last")
    A("s_endpgm")
    kernel_desc(A, NAME, 256, 102)
    return re.sub(r"^    (\w+:)$", r"\1", A.text(), flags=re.M)

if __name__ == "__main__":
    gen1.DIAG = "--diag" in sys.argv
    for a in sys.argv[2:]:
        if "=" in a:
            k, v = a.split("="); OPT[k] = eval(v)
    open(sys.argv[1], "w").write(build())
```

```python
import sys, re, copy
from asmlib import *
import gen1
from gen1 import LOG2E, NLOG2E, LOG2E_LO, LN2, stamp, stamp_begin, stamp_end
NAME = "gated_mix__ssm_conv_s4d__swiglu_ffn__prompt_kernel"
OPT = dict(fdma=1, arr=0, krot=0, pk=4, pwg=77, probe=-1, hdiag=0, mprio=2, ctouch=1, epk=4, barks=2, barg=3, kdepth=1, thr2=0, cprio=1, psleep=1, sleep=1, wb=(0,40), ysleep=0, hvec=0, pulls=(4,6,7), lbar=36, pbf=1)
H_OFF = 0
UR_OFF = 6291456
YT_OFF = UR_OFF + 2621440
GG_OFF = YT_OFF + 2621440
HF_OFF = GG_OFF + 16384
UF_OFF = HF_OFF + 128*256
YF_OFF = UF_OFF + 16*256
WF_OFF = YF_OFF + 8*80*256
KF_OFF = WF_OFF + 16*256
KP_OFF = KF_OFF + 128*128
LAST_OFF = KP_OFF + 128*3072
WDF_OFF = 12 << 20
WS_BYTES = 1 << 25
GB = 16384; UB = GB + 12288 + 32; STG = 41024
HB = 3*STG; HS = 13184
FRE = HB + 3*HS
FLG = FRE + 48
FT = FLG + 120
LDS_BYTES = FT + 256
RS = 272; SS = 16*RS
C0 = 64; C1 = C0 + 4160; CU = 8448
A2O = 4096; A2S = 1072; OMG = 8704
TB2 = 2*STG; GXO = TB2 + 24576; GWO = TB2 + 34816
PB = 176
PR = 336; PW = 64*PR
SPIN = 0x3000
U, LOGA, LOGDT, DSK, WG, WU, WD, GW, OUT, DBG = 32, 34, 42, 44, 48, 50, 52, 54, 56, 58
XCD, RR, R4, C2, LCH, REG = 96, 97, 98, 99, 100, 101
CH, TAG, RMT = 60, 61, 47
_stamp0 = stamp
def stamp(A, i, real=False):
    if OPT["hdiag"] and i != 1: return
    _stamp0(A, i, real)
    if OPT["probe"] == i:
        A("s_memrealtime s[66:67]"); A("s_waitcnt lgkmcnt(0)")
def P2(b): return f"v[{b}:{b+1}]"

def lds_wait(A, vaddr, vtmp, cond, off=0, sleep=0):
    l = A.newlabel("lw"); d = A.newlabel("lw")
    A("s_mov_b32 s62, 0")
    A.label(l)
    A(f"ds_read_b32 v{vtmp}, v{vaddr} offset:{off}")
    A("s_addk_i32 s62, 1")
    A("s_waitcnt lgkmcnt(0)")
    A(f"{cond}, v{vtmp}")
    A(f"s_cbranch_vccz {d}")
    if sleep: A(f"s_sleep {sleep}")
    A("s_cmpk_lt_u32 s62, 0x7000")
    A(f"s_cbranch_scc1 {l}")
    A.label(d)

def poll(A, vaddr, soff, vdst, n=1, tagreg=None):
    l = A.newlabel("pl"); d = A.newlabel("pl")
    tagreg = vdst if tagreg is None else tagreg
    A("s_mov_b32 s62, 0")
    A.label(l)
    A(f"buffer_load_dword{'x2' if n == 2 else ''} {vr(vdst, n)}, v{vaddr}, s[20:23], {soff} offen sc1")
    A("s_addk_i32 s62, 1")
    A("s_waitcnt vmcnt(0)")
    A(f"v_cmp_ne_u32 vcc, s{TAG}, v{tagreg}")
    A(f"s_cbranch_vccz {d}")
    A(f"s_sleep {OPT['psleep']}")
    A(f"s_cmpk_lt_u32 s62, 0x{SPIN:x}")
    A(f"s_cbranch_scc1 {l}")
    A.label(d)

def flag_store(A, soff, vt, rep=1, stride=0):
    A(f"v_mov_b32 v{vt}, s{TAG}")
    A(f"v_mul_u32_u24 v{vt+1}, {stride}, v0")
    A(f"s_mov_b64 exec, {(1 << rep) - 1}")
    A("s_waitcnt vmcnt(0)")
    A(f"buffer_store_dword v{vt}, v{vt+1}, s[20:23], {soff} offen sc1")
    A("s_mov_b64 exec, -1")

def tag_get(A, vt):
    l = A.newlabel("tg"); d = A.newlabel("tg")
    A(f"s_load_dword s{TAG}, s[{DBG}:{DBG+1}], 0")
    A("s_mov_b32 s62, 0")
    A("s_waitcnt lgkmcnt(0)")
    A.label(l)
    A(f"s_cmp_lg_u32 s{TAG}, 0"); A(f"s_cbranch_scc1 {d}")
    A(f"v_mov_b32 v{vt}, 0")
    A(f"global_load_dword v{vt}, v{vt}, s[{DBG}:{DBG+1}] sc1")
    A("s_addk_i32 s62, 1")
    A("s_waitcnt vmcnt(0)")
    A(f"v_readfirstlane_b32 s{TAG}, v{vt}")
    A(f"s_sleep {OPT['psleep']}")
    A(f"s_cmpk_lt_u32 s62, 0x{SPIN:x}"); A(f"s_cbranch_scc1 {l}")
    A.label(d)

def spoll(A, soff, n, sleep):
    l = A.newlabel("sp"); d = A.newlabel("sp")
    A("s_mov_b32 s62, 0")
    A.label(l)
    A(f"s_load_dword{'x8 s[36:43]' if n == 8 else ' s36'}, s[20:21], {soff} glc")
    A("s_addk_i32 s62, 1")
    A("s_waitcnt lgkmcnt(0)")
    if n == 8:
        A("s_min_u32 s44, s36, s37"); A("s_max_u32 s45, s36, s37")
        for i in range(2, 8):
            A(f"s_min_u32 s44, s44, s{36+i}"); A(f"s_max_u32 s45, s45, s{36+i}")
        A(f"s_xor_b32 s44, s44, s{TAG}"); A(f"s_xor_b32 s45, s45, s{TAG}"); A("s_or_b32 s44, s44, s45")
    else:
        A(f"s_cmp_lg_u32 s36, s{TAG}")
    A(f"s_cbranch_scc0 {d}")
    A(f"s_sleep {sleep}")
    A(f"s_cmpk_lt_u32 s62, 0x{SPIN:x}"); A(f"s_cbranch_scc1 {l}")
    A.label(d)

def loader(A):
    if OPT["ctouch"]:
        A("s_getpc_b64 s[24:25]")
        A.label("k_pc")
        A(f"s_sub_u32 s24, s24, k_pc - {NAME}"); A("s_subb_u32 s25, s25, 0")
        A(f"v_lshlrev_b32 v8, 5, v0"); A(f"v_add_u32 v8, s{RR}, v8"); A("v_lshlrev_b32 v8, 7, v8")
        A(f"v_min_u32 v8, k_last - {NAME}, v8")
        A("v_mov_b32 v23, s25"); A("v_add_co_u32 v22, vcc, s24, v8"); A("v_addc_co_u32 v23, vcc, 0, v23, vcc")
        A("s_mov_b64 exec, 0xff")
        A("global_load_dword v24, v[22:23], off")
        A("s_mov_b64 exec, -1")
    A("v_lshrrev_b32 v8, 3, v0"); A("v_mul_u32_u24 v8, 1280, v8")
    A("v_lshrrev_b32 v9, 4, v0"); A("v_and_b32 v10, 7, v0"); A("v_xor_b32 v9, v9, v10")
    A("v_lshl_add_u32 v2, v9, 4, v8")
    A("v_xor_b32 v9, 4, v9"); A("v_lshl_add_u32 v3, v9, 4, v8")
    A(f"v_add_u32 v3, {10240-1024}, v3"); A(f"v_add_u32 v4, {20480-2048}, v2"); A(f"v_add_u32 v5, {20480-2048}, v3")
    for i in range(3):
        A(f"v_add_u32 v9, {64*i}, v0"); A("v_mul_u32_u24 v10, 5462, v9"); A("v_lshrrev_b32 v10, 16, v10")
        A("v_mul_u32_u24 v10, 2880, v10"); A(f"v_lshl_add_u32 v{11+i}, v0, 4, v10")
    A("v_lshlrev_b32 v1, 4, v0")
    A("v_mov_b32 v14, 0x7ffffff0")
    A("v_and_b32 v15, 3, v0"); A("v_lshlrev_b32 v15, 2, v15"); A(f"v_add_u32 v15, {FRE if OPT['fdma'] else FLG}, v15")
    A("s_mul_i32 s26, s4, 163840"); A("s_mul_i32 s27, s5, 192")
    A("s_mov_b32 s29, 0"); A("s_mov_b32 s30, 0"); A(f"s_mov_b32 s31, {FT-4}")
    A("s_mov_b32 s10, 2621440"); A("s_mov_b32 s11, 0x20000")
    A("s_mov_b32 s14, 1966080"); A("s_mov_b32 s15, 0x20000")
    A("s_mov_b32 s18, 1966080"); A("s_mov_b32 s19, 0x20000")
    A("v_and_b32 v10, 7, v0"); A("v_lshl_add_u32 v16, v10, 4, v8")
    A(f"s_and_b32 s24, s{R4}, 1"); A("s_lshl_b32 s24, s24, 5"); A(f"s_add_u32 s24, s24, s{RR}")
    A("s_mul_i32 s24, s24, 3072"); A(f"s_mul_i32 s25, s{C2}, 1536"); A("s_add_u32 s24, s24, s25")
    A("v_min_u32 v18, 59, v0"); A("v_mul_u32_u24 v19, 43, v18"); A("v_lshrrev_b32 v19, 9, v19")
    A("v_mul_u32_u24 v19, %d, v19" % (196608 - 1536)); A("v_lshl_add_u32 v18, v18, 7, v19"); A("v_add_u32 v18, s24, v18")
    A("v_add_u32 v19, %d, v18" % (5*196608))
    A("s_waitcnt lgkmcnt(0)")
    A("s_and_b32 s24, s2, 31"); A("s_lshr_b32 s25, s2, 5")
    A("s_mul_i32 s44, s24, 81920"); A("s_lshl_b32 s25, s25, 7"); A("s_add_u32 s44, s44, s25")
    A("s_min_u32 s24, s2, 239"); A("s_mul_i32 s25, s24, 2731"); A("s_lshr_b32 s25, s25, 16")
    A("s_mul_i32 s28, s25, 24"); A("s_sub_u32 s24, s24, s28")
    A("s_mul_i32 s45, s24, 81920"); A("s_lshl_b32 s25, s25, 7"); A("s_add_u32 s45, s45, s25"); A("s_sub_u32 s45, s45, 10240")
    A(f"s_lshl_b32 s46, s{XCD}, 5"); A(f"s_add_u32 s46, s46, s{RR}"); A("s_mul_i32 s46, s46, 10240")
    A("s_barrier")
    A(f"s_mov_b32 s8, s{U}"); A(f"s_mov_b32 s9, s{U+1}")
    A(f"s_mov_b32 s12, s{WG}"); A(f"s_mov_b32 s13, s{WG+1}"); A(f"s_mov_b32 s16, s{WU}"); A(f"s_mov_b32 s17, s{WU+1}")
    A(f"s_cmp_ge_u32 s{R4}, 2"); A(f"s_cselect_b32 s24, s{WU}, s{WG}"); A(f"s_cselect_b32 s25, s{WU+1}, s{WG+1}")
    stamp(A, 1)
    A("global_load_dword v20, v18, s[24:25]")
    A(f"s_mov_b32 s36, s{WD}"); A(f"s_mov_b32 s37, s{WD+1}"); A("s_mov_b32 s38, 1966080"); A("s_mov_b32 s39, 0x20000")
    A(f"s_mov_b32 s40, s{GW}"); A(f"s_mov_b32 s41, s{GW+1}"); A("s_mov_b32 s42, 1280"); A("s_mov_b32 s43, 0x20000")
    def utile(h):
        for i in range(8):
            A(f"s_mov_b32 m0, {TB2 + 8192*h + 1024*i}"); A(f"v_xor_b32 v17, {16*i}, v16")
            A("buffer_load_dwordx4 v17, s[8:11], s44 offen lds"); A("s_add_u32 s44, s44, 10240")
    def tasks():
        utile(0)
        for i in range(8):
            A(f"s_mov_b32 m0, {TB2 + 8192 + 1024*i}"); A("s_add_u32 s45, s45, 10240")
            A("buffer_load_dwordx4 v16, s[36:39], s45 offen lds")
        n2 = A.newlabel("n2")
        A("s_cmp_ge_u32 s2, 64"); A(f"s_cbranch_scc1 {n2}")
        A(f"s_sub_u32 s44, s44, {81920 - 1024}")
        utile(2)
        A.label(n2)
        for (o, n) in ((0, 4), (4096, 4), (8192, 2)):
            A(f"s_mov_b32 m0, {GXO + o}"); A(f"s_add_u32 s28, s46, {o}")
            for i in range(n): A(f"buffer_load_dwordx4 v1, s[8:11], s28 offen offset:{1024*i} lds")
        A(f"s_mov_b32 m0, {GWO}"); A("s_nop 0")
        for i in range(2): A(f"buffer_load_dwordx4 v1, s[40:43], 0 offen offset:{1024*i} lds")
        A(f"s_mov_b32 m0, {FT}"); A("s_nop 0")
        A("buffer_load_dword v14, s[8:11], 0 offen lds")
    tasks()
    A("global_load_dword v21, v19, s[24:25]")
    nt0 = A.newlabel("mk")
    A("s_cmp_lg_u32 s2, 0"); A(f"s_cbranch_scc1 {nt0}")
    A(f"s_add_u32 s24, s20, {LAST_OFF}"); A("s_addc_u32 s25, s21, 0")
    A("s_load_dword s28, s[24:25], 0")
    A("v_mov_b32 v16, 0")
    A("s_waitcnt lgkmcnt(0)")
    A("s_add_u32 s28, s28, 1"); A("s_max_u32 s28, s28, 1")
    A("v_mov_b32 v17, s28")
    A("s_mov_b64 exec, 1")
    A(f"global_store_dword v16, v17, s[{DBG}:{DBG+1}] sc1")
    A("global_store_dword v16, v17, s[24:25] sc1")
    A("s_mov_b64 exec, -1")
    A.label(nt0)
    def flag(fill):
        A("s_mov_b32 m0, s31"); A(fill)
        A("buffer_load_dword v14, s[8:11], 0 offen lds")
    def tail():
        flag("s_sub_u32 s31, s31, 4")
        A(f"s_add_u32 s29, s29, {STG}"); A(f"s_cmp_eq_u32 s29, {3*STG}"); A("s_cselect_b32 s29, 0, s29")
        A("s_add_u32 s30, s30, 1")
    l1 = A.newlabel("ld")
    cnt = [0]
    extra = {1: [f"s_add_u32 s33, s29, {STG}"], 2: [f"s_cmp_eq_u32 s33, {3*STG}", "s_cselect_b32 s33, 0, s33"], 4: ["s_add_u32 s30, s30, 1"],
             26: ["s_add_u32 s26, s26, 128"], 37: ["s_add_u32 s27, s27, 196608"], 40: ["s_mov_b32 s29, s33"]}
    def dma(x):
        A(x); cnt[0] += 1
        for e in extra.get(cnt[0], []): A(e)
        if cnt[0] == OPT["lbar"]:
            sk = A.newlabel("sk")
            A("s_bitcmp1_b32 s34, s30"); A(f"s_cbranch_scc1 {sk}")
            A("s_barrier")
            A.label(sk)
    def xq(q):
        A(f"s_add_u32 m0, s29, {4096*q}"); A(f"s_add_u32 s28, s26, {40960*q}")
        for i in range(4): dma(f"buffer_load_dwordx4 v{2+i}, s[8:11], s28 offen offset:{1024*i} lds")
    def wq(q):
        A(f"s_add_u32 m0, s29, {GB + 3072*q}"); A(f"s_add_u32 s28, s27, {49152*q}")
        for i in range(3): dma(f"buffer_load_dwordx4 v{11+i}, s[12:15], s28 offen offset:{1024*i} lds")
        A(f"s_add_u32 m0, s29, {UB + 3072*q}"); A("s_nop 0")
        for i in range(3): dma(f"buffer_load_dwordx4 v{11+i}, s[16:19], s28 offen offset:{1024*i} lds")
    def fl():
        A("s_mov_b32 m0, s31"); A("s_sub_u32 s31, s31, 4")
        dma("buffer_load_dword v14, s[8:11], 0 offen lds")
    A("s_mov_b32 s34, 0x402")
    A.label(l1)
    wq(0); xq(0); xq(1); wq(1); xq(2); xq(3); fl(); wq(2); wq(3); fl()
    A("s_cmp_lt_u32 s30, 10"); A(f"s_cbranch_scc1 {l1}")
    stamp(A, 2)
    for p in OPT["wb"]:
        if p == 0: A("s_barrier")
    A("s_mul_i32 s26, s7, 245760"); A(f"s_add_u32 s26, s26, {WDF_OFF}")
    if OPT["krot"]:
        A("s_and_b32 s27, s7, 1"); A("s_mul_i32 s27, s27, 30720"); A("s_add_u32 s26, s26, s27"); A("s_lshl_b32 s27, s27, 1")
    l2 = A.newlabel("ld"); l4 = A.newlabel("ld")
    def bars(n, cur):
        for p in OPT["wb"]:
            if p and p % 40 == n % 40:
                sk = A.newlabel("sk")
                A(f"s_cmp_lg_u32 s30, {10 + p//40}"); A(f"s_cbranch_scc1 {sk}"); A("s_barrier"); A.label(sk)
    A.label(l2)
    for w in range(4):
        for (o, n) in ((0, 4), (4096, 4), (8192, 2)):
            A(f"s_add_u32 m0, s29, {10240*w + o}"); A(f"s_add_u32 s28, s26, {61440*w + o}")
            if OPT["thr2"]: A(f"s_waitcnt vmcnt({OPT['thr2']})")
            for i in range(n): A(f"buffer_load_dwordx4 v1, s[20:23], s28 offen offset:{1024*i} sc1 lds")
        if w < 3: bars(10*w + 10, 0)
    tail()
    bars(40, 1)
    A("s_add_u32 s26, s26, 10240")
    A("s_cmp_lt_u32 s30, 13"); A(f"s_cbranch_scc1 {l2}")
    if OPT["krot"]:
        A("s_sub_u32 s26, s26, s27"); A("s_mov_b32 s27, 0")
    A("s_cmp_eq_u32 s30, 16"); A(f"s_cbranch_scc1 {l4}")
    if OPT["fdma"]:
        lds_wait(A, 15, 17, "v_cmp_ne_u32 vcc, 0", sleep=OPT["sleep"])
        A("v_add_u32 v15, 16, v15")
    else:
        A("s_sub_u32 s28, s30, 12")
        lds_wait(A, 15, 17, "v_cmp_gt_i32 vcc, s28", sleep=OPT["sleep"])
    A(f"s_branch {l2}")
    A.label(l4)
    stamp(A, 3)

ACC1 = 64
def msetup(A):
    A("s_lshr_b32 s8, s3, 1"); A("s_and_b32 s9, s3, 1")
    A("v_and_b32 v8, 31, v0"); A("v_lshrrev_b32 v9, 5, v0")
    A("v_bfe_u32 v10, v0, 1, 3"); A("v_xor_b32 v10, v10, v9")
    A("v_lshlrev_b32 v14, 7, v8"); A("s_lshl_b32 s10, s8, 13"); A("v_add_u32 v14, s10, v14")
    for ks in range(4):
        A(f"v_xor_b32 v12, {2*ks}, v10"); A(f"v_lshl_add_u32 v{2+ks}, v12, 4, v14")
    A("v_bfe_u32 v12, v0, 2, 2"); A("v_lshl_add_u32 v12, v9, 3, v12"); A("v_mul_u32_u24 v6, 192, v12")
    A("v_and_b32 v12, 3, v0"); A("v_lshl_add_u32 v6, v12, 3, v6")
    A("v_bfe_u32 v12, v0, 4, 1"); A(f"v_mul_u32_u24 v12, {UB-GB}, v12"); A("v_add_u32 v6, v6, v12")
    A("s_mul_i32 s10, s9, 96"); A(f"s_add_u32 s10, s10, {GB}"); A("v_add_u32 v6, s10, v6")
    A(f"v_mov_b32 v7, {FT-8}")
    A("s_lshl_b32 s10, s3, 2"); A(f"s_add_u32 s10, s10, {FLG}"); A("v_mov_b32 v8, s10")
    for i in range(48): A(f"v_pk_mov_b32 {P2(ACC1+2*i)}, 0, 0")
    A("s_mov_b32 s54, 0x%x" % NLOG2E); A("s_mov_b32 s55, 0x%x" % NLOG2E)
    A("v_and_b32 v10, 15, v0"); A("v_lshlrev_b32 v10, 4, v10"); A("v_lshl_add_u32 v10, v9, 8, v10")
    A("v_bfe_u32 v12, v0, 4, 1"); A("v_lshl_add_u32 v10, v12, 10, v10")
    A("s_lshl_b32 s18, s4, 1"); A("s_add_u32 s18, s18, s8")
    A("s_mul_i32 s11, s18, 196608"); A("s_mul_i32 s12, s5, 6"); A("s_mul_i32 s13, s9, 3"); A("s_add_u32 s12, s12, s13")
    for nt in range(3):
        A(f"s_add_u32 s13, s12, {nt}")
        A("s_lshr_b32 s10, s13, 1"); A("s_lshl_b32 s10, s10, 12")
        A("s_and_b32 s13, s13, 1"); A("s_lshl_b32 s13, s13, 9"); A("s_add_u32 s10, s10, s13")
        A(f"s_add_u32 s{48+nt}, s10, s11")
    A("s_lshl_b32 s51, s18, 2"); A("s_lshr_b32 s10, s5, 2"); A("s_add_u32 s51, s51, s10"); A("s_lshl_b32 s51, s51, 8")
    A("s_and_b32 s10, s5, 3"); A("s_lshl_b32 s10, s10, 1"); A("s_add_u32 s10, s10, s9"); A("s_lshl_b32 s10, s10, 2")
    A("s_add_u32 s51, s51, s10"); A(f"s_add_u32 s51, s51, {HF_OFF}")
    A("s_lshl_b32 s52, s6, 2"); A("s_add_u32 s52, s52, s3"); A("s_lshl_b32 s52, s52, 8"); A(f"s_add_u32 s52, s52, {HF_OFF}")
    A("s_mul_i32 s53, s6, 196608"); A("s_mul_i32 s10, s3, 49152"); A("s_add_u32 s53, s53, s10")
    A("s_mul_i32 s10, s3, 10240"); A("v_add_u32 v11, s10, v1")

def kgive(A):
    A("v_add_u32 v15, s19, v1")
    A("s_nop 4")
    for i in range(3): A(f"ds_write_b128 v15, v[{20+4*i}:{23+4*i}] offset:{1024*i}")

def mwave(A):
    sW = 3
    A("s_mov_b32 s16, 0x%x" % ((-2*STG) & 0xffffffff)); A(f"s_mov_b32 s17, {STG}")
    F = [16, 36]
    def reads(ks, f):
        r = []; b = F[f]
        r.append(f"ds_read_b128 v[{b}:{b+3}], v{2+ks}")
        for nt in range(3):
            o = b + 8 + 4*nt
            r.append(f"ds_read_b64_tr_b16 v[{o}:{o+1}], v6 offset:{3072*ks + 32*nt}")
            r.append(f"ds_read_b64_tr_b16 v[{o+2}:{o+3}], v6 offset:{3072*ks + 32*nt + 768}")
        r.append(f"ds_read_b128 v[{b+4}:{b+7}], v{2+ks} offset:4096")
        return r
    def mfmas(f):
        b = F[f]; r = []
        for a in range(2):
            for nt in range(3):
                c = ACC1 + 16*(3*a+nt)
                r.append(f"v_mfma_f32_32x32x16_bf16 v[{c}:{c+15}], v[{b+8+4*nt}:{b+11+4*nt}], v[{b+4*a}:{b+4*a+3}], v[{c}:{c+15}]")
        return r
    A("s_mov_b32 s11, 0"); A("s_mov_b32 s12, 0")
    A("s_waitcnt lgkmcnt(0)")
    stamp(A, 12)
    A("s_barrier")
    lds_wait(A, 7, 13, "v_cmp_ne_u32 vcc, 0", off=4)
    stamp(A, 2)
    PL = {0: [(1, 5), (1, 6)], 1: [(1, 7)], 2: [(2, 0)], 3: [(2, 1)], 4: [(2, 2), (2, 3)], 5: [(2, 4)]}
    need = {0: (0, 1, 2), 1: (3, 4), 2: (5, 6), 3: (7,), 4: (), 5: ()}
    lp = A.newlabel("g1"); ex_ = A.newlabel("g1x"); slow = A.newlabel("g1s"); back = A.newlabel("g1b")
    slow2 = A.newlabel("g1s"); back2 = A.newlabel("g1b"); nob = A.newlabel("g1n")
    def step_items(k, last):
        ks = k % 4; it = []; ms = mfmas(k % 2)
        for g in range(6):
            it.append(("m", ms[g], [(k, r) for r in need[g]]))
            if ks == 2 and g == 2 and not last:
                it.append(("w", "flag"))
                it += [("x", "v_cmp_ne_u32 vcc, 0, v13"), ("x", f"s_cbranch_vccnz {slow}"), ("x", f"{back}:")]
            if ks == 0 and g == 3:
                it.append(("w", "flagB"))
                it += [("x", "v_cmp_ne_u32 vcc, 0, v12"), ("x", f"s_cbranch_vccnz {slow2}"), ("x", f"{back2}:")]
            if ks == OPT["barks"] and g == OPT["barg"]:
                it.append(("w", (k - ks + 3, 7)))
                if last: it.append(("x", "s_barrier"))
                else: it += [("x", "s_cmp_gt_u32 s11, 7"), ("x", f"s_cbranch_scc1 {nob}"), ("x", "s_barrier"), ("x", f"{nob}:")]
            for (so, ri) in PL[g]:
                if last and ks + so > 3: continue
                it.append(("r", reads((k+so) % 4, (k+so) % 2)[ri], (k+so, ri)))
            ex = []
            if ks == 0 and g == 2: ex = ["s_add_u32 s12, s12, 1", "s_cmp_eq_u32 s12, 3", "s_cselect_b32 s13, s16, s17", "s_cselect_b32 s12, 0, s12"]
            if ks == 1 and g == 1: ex = ["v_add_u32 v2, s13, v2"]
            if ks == 0 and g == 5: ex = ["v_add_u32 v3, s13, v3", "v_subrev_u32 v7, 8, v7"]
            if ks == 1 and g == 2: ex = ["s_add_u32 s11, s11, 1"]
            if ks == 1 and g == 3: ex = ["v_add_u32 v4, s13, v4"]
            if ks == 1 and g == 5: ex = ["s_cmp_eq_u32 s11, 10"]
            if ks == 3 and g == 3 and not last: ex = ["v_add_u32 v5, s13, v5"]
            if ks == 2 and g == 1 and not last: ex = ["v_add_u32 v6, s13, v6"]
            for e in ex: it.append(("x", e))
            if ks == 1 and g == 5: it.append(("r", "ds_read_b32 v13, v7 offset:4", "flag"))
            if ks == 0 and g == 1: it.append(("r", "ds_read_b32 v12, v7", "flagB"))
        return it
    def emit(items, q):
        for i in items:
            tags = i[2] if i[0] == "m" else [i[1]] if i[0] == "w" else []
            if tags:
                pos = max(len(q["ops"]) - 1 - q["ops"][::-1].index(t) for t in tags)
                if pos >= q["done"]:
                    n = min(14, len(q["ops"]) - 1 - pos)
                    q["done"] = len(q["ops"]) - n
                    A(f"s_waitcnt lgkmcnt({n})")
            if i[0] in ("r", "l"): q["ops"].append(i[2] if i[0] == "r" else None)
            if i[0] != "w": A(i[1])
    q = dict(ops=[], done=0)
    emit([("r", reads(0, 0)[r], (0, r)) for r in range(8)] + [("r", reads(1, 1)[ri], (1, ri)) for g in range(6) for (so, ri) in PL[g] if so == 2], q)
    A.label(lp)
    for k in range(2): emit(step_items(k, False), q)
    A(f"s_cbranch_scc1 {ex_}")
    q2 = copy.deepcopy(q)
    for k in range(2, 4): emit(step_items(k, False), q)
    A(f"s_branch {lp}")
    A.label(slow)
    lds_wait(A, 7, 13, "v_cmp_ne_u32 vcc, 0", off=4)
    A(f"s_branch {back}")
    A.label(slow2)
    lds_wait(A, 7, 12, "v_cmp_ne_u32 vcc, 0")
    A(f"s_branch {back2}")
    A.label(ex_)
    if OPT["mprio"]: A(f"s_setprio {OPT['mprio']}")
    for k in range(2, 4): emit(step_items(k, True), q2)
    stamp(A, 3)
    A(f"v_mov_b32 v7, {FLG+16}"); A("v_mov_b32 v5, v11")
    if OPT["fdma"]:
        A("v_mov_b32 v8, 0x7ffffff0"); A("s_lshl_b32 s14, s3, 2"); A(f"s_add_u32 s14, s14, {FRE}")
    A(f"v_add_u32 v6, {2*STG}, v11"); A("s_nop 7")
    AF = [160+4*i for i in range(20)] + [56, 60, 64, 68, 72, 76, 240, 244, 248, 252]
    def areads(step):
        st = 10 + step // 2; slot = st % 3; r = []
        for dt in range(5):
            o = AF[5*(step % 6) + dt]
            off = (STG if slot == 1 else 0) + 5120*(step % 2) + 1024*dt
            va = 6 if slot == 2 else 5
            r.append(f"ds_read_b128 v[{o}:{o+3}], v{va} offset:{off}")
        return r
    def pull(st):
        lds_wait(A, 7, 13, "v_cmp_ne_u32 vcc, 0", off=4*(15-st))
        for x in areads(2*(st-10)) + areads(2*(st-10)+1): A(x)
        if OPT["fdma"]:
            A(f"s_add_u32 m0, s14, {16*(st-10)}"); A("s_waitcnt lgkmcnt(0)"); A("s_mov_b64 exec, 1")
            A("buffer_load_dword v8, s[20:23], 0 offen lds"); A("s_mov_b64 exec, -1")
        else:
            A(f"v_mov_b32 v12, {st-9}")
            A("ds_write_b32 v8, v12")
    E = 16
    for a in range(2):
        for nt in range(3):
            g = ACC1 + 16*(3*a+nt); u = g + 8
            o = 32 + 4*((3*a+nt) % 4)
            for j in range(3):
                if 3*a+nt == OPT["pulls"][j]: pull(10+j)
            if 3*a+nt < OPT['epk']:
                for i in range(4): A(f"v_pk_mul_f32 {P2(E+2*i)}, {P2(g+2*i)}, s[54:55]")
                for i in range(8): A(f"v_exp_f32 v{E+i}, v{E+i}")
                for i in range(4): A(f"v_pk_add_f32 {P2(E+2*i)}, {P2(E+2*i)}, 1.0 op_sel_hi:[1,0]")
                for i in range(8): A(f"v_rcp_f32 v{E+i}, v{E+i}")
                for i in range(4): A(f"v_pk_mul_f32 {P2(g+2*i)}, {P2(g+2*i)}, {P2(u+2*i)}")
                for i in range(4): A(f"v_pk_mul_f32 {P2(g+2*i)}, {P2(g+2*i)}, {P2(E+2*i)}")
            else:
                for i in range(8): A(f"v_mul_f32 v{E+i}, s54, v{g+i}")
                for i in range(8): A(f"v_exp_f32 v{E+i}, v{E+i}")
                for i in range(8): A(f"v_add_f32 v{E+i}, 1.0, v{E+i}")
                for i in range(8): A(f"v_rcp_f32 v{E+i}, v{E+i}")
                for i in range(8): A(f"v_mul_f32 v{g+i}, v{g+i}, v{u+i}")
                for i in range(8): A(f"v_mul_f32 v{g+i}, v{g+i}, v{E+i}")
            for i in range(4): A(f"v_cvt_pk_bf16_f32 v{o+i}, v{g+2*i}, v{g+2*i+1}")
            A(f"buffer_store_dwordx4 v[{o}:{o+3}], v10, s[20:23], s{48+nt} offen offset:{2048*a} sc1")
            if 3*a+nt == OPT["epk"] - 1: A("s_barrier")
    if OPT["mprio"]: A("s_setprio 0")
    stamp(A, 4)
    for j in range(3):
        if OPT["pulls"][j] == 6: pull(10+j)
    tag_get(A, 14)
    flag_store(A, "s51", 14)
    stamp(A, 5)
    for j in range(3):
        if OPT["pulls"][j] == 7: pull(10+j)
    stamp(A, 6)
    A("v_and_b32 v4, 15, v0"); A("v_lshrrev_b32 v3, 4, v0")
    A(f"v_mul_u32_u24 v2, {PB}, v4"); A("v_lshl_add_u32 v2, v3, 3, v2")
    A("s_mul_i32 s26, s3, 10240"); A("v_add_u32 v2, s26, v2")
    A("s_mov_b32 s15, 4096")
    if OPT["krot"]:
        A("s_and_b32 s26, s7, 1"); A(f"s_cselect_b32 s15, {(4096 - 49152) & 0xffffffff}, s15"); A("s_mul_i32 s26, s26, 24576"); A("s_add_u32 s53, s53, s26")
    if OPT["hvec"]:
        A("v_and_b32 v4, 7, v0"); A("v_lshlrev_b32 v4, 2, v4")
        poll(A, 4, "s52", 3)
    else: spoll(A, "s52", 8, OPT["psleep"])
    for j in range(3):
        if OPT["pulls"][j] == 8: pull(10+j)
    stamp(A, 7)
    ACC = 80; HR = 8
    def hload(k, i):
        b = HR + 16*(k % 3)
        r = [f"buffer_load_dwordx4 v[{b+4*i}:{b+4*i+3}], v1, s[20:23], s53 offen offset:{1024*i} sc1"]
        if i == 3: r.append("s_add_u32 s53, s53, s15" if k == 5 else "s_add_u32 s53, s53, 4096")
        return r
    for k in range(3):
        for i in range(4):
            for x in hload(k, i): A(x)
    slows = []
    for k in range(12):
        b = HR + 16*(k % 3); j = k + 2
        ar = areads(j) if 6 <= j < 12 else []
        chk = bool(ar) and j % 2 == 0
        for mt in range(4):
            out = 11 if k + 3 < 12 else 4*(12-k) - mt - 1
            w = f"s_waitcnt vmcnt({out})"
            if mt == 0: w += " lgkmcnt(0)" if k in (0, 11) else " lgkmcnt(5)" if k >= 6 else ""
            A(w)
            if mt == 0 and k in (0, 6): stamp(A, 8 + k//6)
            for dt in range(5):
                c = ACC + 4*(4*dt+mt); af = AF[5*(k % 6) + dt]
                src = "0" if k == 0 else f"v[{c}:{c+3}]"
                A(f"v_mfma_f32_16x16x32_bf16 v[{c}:{c+3}], v[{af}:{af+3}], v[{b+4*mt}:{b+4*mt+3}], {src}")
                if chk and mt == 0 and dt == 0: A(f"ds_read_b32 v3, v7 offset:{4*(5-j//2)}")
                if chk and mt == 1 and dt == 3:
                    sl = A.newlabel("g2s"); bk = A.newlabel("g2b"); slows.append((sl, bk, 4*(5-j//2)))
                    A("s_waitcnt lgkmcnt(0)"); A("v_cmp_ne_u32 vcc, 0, v3"); A(f"s_cbranch_vccnz {sl}"); A.label(bk)
                if ar and mt == 2: A(ar[dt])
            if k + 3 < 12:
                for x in hload(k+3, mt): A(x)
    A.tail_code = slows
    stamp(A, 10)
    A("s_nop 1")
    for mt in range(4):
        for dt in range(5):
            c = ACC + 4*(4*dt+mt); o = 8 + 2*((5*mt+dt) % 16)
            A(f"v_cvt_pk_bf16_f32 v{o}, v{c}, v{c+1}"); A(f"v_cvt_pk_bf16_f32 v{o+1}, v{c+2}, v{c+3}")
            if 5*mt+dt >= 1: A(pw)
            pw = f"ds_write_b64 v2, v[{o}:{o+1}] offset:{(mt >> 1)*STG + 16*(mt & 1)*PB + 32*dt}"
    A(pw)

def post(A):
    A(f"s_mov_b32 s16, s{OUT}"); A(f"s_mov_b32 s17, s{OUT+1}")
    A("s_mov_b32 s18, 2621440"); A("s_mov_b32 s19, 0x20000")
    A("s_mov_b32 s30, 0xffff0000")
    A("s_mul_i32 s24, s6, 81920"); A("s_mul_i32 s25, s7, 160"); A("s_add_u32 s24, s24, s25")
    A("s_lshl_b32 s27, s3, 6")
    def addr(b):
        A(f"v_add_u32 v{b}, s27, v0")
        A(f"v_mul_u32_u24 v{b+1}, 6554, v{b}"); A(f"v_lshrrev_b32 v{b+1}, 16, v{b+1}")
        A(f"v_mul_u32_u24 v{b+2}, 10, v{b+1}"); A(f"v_sub_u32 v{b+2}, v{b}, v{b+2}")
        A(f"v_mul_u32_u24 v{b+3}, 1280, v{b+1}"); A(f"v_lshl_add_u32 v{b+3}, v{b+2}, 4, v{b+3}")
        A(f"v_mul_u32_u24 v{b+4}, {PB}, v{b+1}"); A(f"v_lshl_add_u32 v{b+4}, v{b+2}, 4, v{b+4}")
        A(f"v_lshrrev_b32 v{b+5}, 5, v{b+1}"); A(f"v_mul_u32_u24 v{b+5}, {STG - 32*PB}, v{b+5}"); A(f"v_add_u32 v{b+4}, v{b+4}, v{b+5}")
        A(f"v_mul_u32_u24 v{b+5}, 86, v{b+2}"); A(f"v_lshrrev_b32 v{b+5}, 8, v{b+5}")
        A(f"v_mul_u32_u24 v{b+6}, {HS+48}, v{b+2}"); A(f"v_mul_u32_u24 v{b+5}, {3*(HS+48) - A2S}, v{b+5}")
        A(f"v_sub_u32 v{b+6}, v{b+6}, v{b+5}"); A(f"v_lshl_add_u32 v{b+6}, v{b+1}, 4, v{b+6}"); A(f"v_add_u32 v{b+6}, {HB + A2O}, v{b+6}")
        A(f"v_lshlrev_b32 v{b+7}, 2, v{b+1}"); A(f"v_add_u32 v{b+7}, {HB + OMG}, v{b+7}")
    def rds(b, d):
        for w in range(4): A(f"ds_read_b128 v[{d+4*w}:{d+4*w+3}], v{b+4} offset:{w*10240}")
        A(f"ds_read_b128 v[{d+16}:{d+19}], v{b+6}")
        A(f"ds_read_b32 v{d+20}, v{b+7}")
    def calc(b, d, rest):
        t = 160
        for w in range(5):
            A(f"s_waitcnt lgkmcnt({rest + (5 - w if w < 4 else 0)})")
            for k in range(4):
                A(f"v_lshlrev_b32 v{t+8*w+2*k}, 16, v{d+4*w+k}"); A(f"v_and_b32 v{t+8*w+2*k+1}, s30, v{d+4*w+k}")
            if 1 <= w <= 3:
                for k in range(4): A(f"v_pk_add_f32 {P2(t+2*k)}, {P2(t+2*k)}, {P2(t+8*w+2*k)}")
        for k in range(4): A(f"v_pk_add_f32 {P2(t+32+2*k)}, {P2(t+32+2*k)}, {P2(t+2*k)} neg_lo:[0,1] neg_hi:[0,1]")
        for k in range(4): A(f"v_pk_fma_f32 {P2(t+2*k)}, {P2(t+32+2*k)}, {P2(d+20)}, {P2(t+2*k)} op_sel_hi:[1,0,1]")
        for k in range(4): A(f"v_cvt_pk_bf16_f32 v{d+k}, v{t+2*k}, v{t+2*k+1}")
        A(f"buffer_store_dwordx4 v[{d}:{d+3}], v{b+3}, s[16:19], s24 offen")
    addr(40)
    one = A.newlabel("po"); lp = A.newlabel("po"); dn = A.newlabel("po"); o2 = A.newlabel("po")
    A("s_and_b32 s28, s3, 6"); A("s_cmp_lg_u32 s28, 4"); A(f"s_cbranch_scc1 {one}")
    A("s_add_u32 s27, s27, 256"); A("s_setprio 3")
    addr(48)
    A.label(one)
    A("s_waitcnt lgkmcnt(0)")
    A("s_barrier")
    stamp(A, 11)
    A("s_cmp_lg_u32 s28, 4"); A(f"s_cbranch_scc1 {o2}")
    rds(48, 232)
    A.label(o2)
    rds(40, 208)
    A.label(lp)
    calc(40, 208, 0)
    A("s_cmp_lg_u32 s28, 4"); A(f"s_cbranch_scc1 {dn}")
    A("s_mov_b32 s28, 0"); A("v_mov_b32 v43, v51")
    for i in range(10, -1, -1): A(f"v_pk_mov_b32 {P2(208+2*i)}, {P2(232+2*i)}, {P2(232+2*i)} op_sel:[0,1]")
    A(f"s_branch {lp}")
    A.label(dn)

def pcmul(A, d, s, m):
    A(f"v_pk_mul_f32 {P2(d)}, {P2(s)}, {P2(m)} op_sel:[0,0] op_sel_hi:[1,0]")
    A(f"v_pk_fma_f32 {P2(d)}, {P2(s)}, {P2(m)}, {P2(d)} op_sel:[1,1,0] op_sel_hi:[0,1,1] neg_lo:[0,1,0]")

def kpass(A):
    RAW = 232; FA = 16; ACC = 20
    A(f"s_mul_i32 s28, s{CH}, 384"); A("s_lshl_b32 s29, s17, 7"); A("s_add_u32 s28, s28, s29")
    A("v_lshlrev_b32 v1, 1, v0"); A("v_add_u32 v1, s28, v1")
    A(f"s_lshr_b32 s28, s{CH}, 1"); A("s_lshl_b32 s28, s28, 2")
    A("s_mov_b32 m0, s19")
    A("v_and_b32 v17, 15, v0"); A("v_lshrrev_b32 v18, 4, v0")
    A("s_waitcnt lgkmcnt(0)")
    for a in range(4): A(f"global_load_ushort v{RAW+a}, v1, s[{LOGA+2*a}:{LOGA+2*a+1}]")
    A(f"s_load_dword s30, s[{LOGDT}:{LOGDT+1}], s28")
    A(f"s_load_dword s31, s[{DSK}:{DSK+1}], s28")
    A("s_cmp_lt_u32 s14, 2"); A("s_cbranch_scc1 k_one")
    for a in range(4): A(f"global_load_ushort v{RAW+4+a}, v1, s[{LOGA+2*a}:{LOGA+2*a+1}] offset:128")
    A.label("k_one")
    A("s_barrier")
    A("s_mov_b32 s24, 0x%x" % LOG2E); A("s_mov_b32 s25, 0x%x" % LOG2E_LO); A("s_mov_b32 s26, 0x%x" % LN2)
    A("s_mov_b32 s27, 0x41000000"); A("s_mov_b32 s28, 0x43000000")
    A(f"v_mul_u32_u24 v{FA}, {RS}, v17"); A(f"v_lshl_add_u32 v{FA}, v18, 4, v{FA}"); A(f"v_add_u32 v{FA}, s19, v{FA}")
    for i in range(6): A(f"v_pk_mov_b32 {P2(ACC+2*i)}, 0, 0")
    DT, DT2, NDT, ONE = 32, 34, 33, 36
    A(f"v_mov_b32 v{ONE}, 0x3f80")
    A("v_lshlrev_b32 v1, 4, v0")
    A("s_cmp_ge_u32 s3, 4"); A("s_cbranch_scc1 k_nosetup")
    msetup(A)
    A.label("k_nosetup")
    A("s_waitcnt lgkmcnt(0)")
    A(f"s_bitcmp1_b32 s{CH}, 0")
    A("s_cselect_b32 s29, 0, 16")
    A("s_lshl_b32 s30, s30, s29"); A("s_and_b32 s30, s30, 0xffff0000")
    A("s_lshl_b32 s31, s31, s29"); A("s_and_b32 s31, s31, 0xffff0000")
    A("s_cmp_eq_u32 s17, 0"); A("s_cselect_b32 s31, s31, 0")
    A("v_mov_b32 v37, s30")
    A(f"v_writelane_b32 v{ACC}, s31, 0")
    A("v_mul_f32 v38, s24, v37"); A("v_fma_f32 v39, v37, s24, -v38"); A("v_fmac_f32 v39, s25, v37")
    A("v_exp_f32 v38, v38"); A("v_mul_f32 v39, s26, v39"); A("v_fmac_f32 v38, v38, v39")
    A("v_cvt_pk_bf16_f32 v38, v38, v38")
    A(f"v_lshlrev_b32 v{DT}, 16, v38")
    A(f"v_add_f32 v{DT2}, v{DT}, v{DT}"); A(f"v_sub_f32 v{NDT}, 0, v{DT}")
    A("s_waitcnt vmcnt(0)")
    stamp(A, 1)
    A.label("k_loop")
    A1 = 38; TH = 39
    Z, W, Y = 40, 42, 44
    P = 48; T = 224; QA, QB = 226, 228; PK = 240
    QF, PF = 160, 176
    A(f"v_lshlrev_b32 v{T}, 16, v{RAW}"); A(f"v_mul_f32 v{T}, s24, v{T}")
    A(f"v_lshlrev_b32 v{TH}, 16, v{RAW+1}")
    A(f"v_exp_f32 v{T}, v{T}")
    A(f"v_lshlrev_b32 v{P}, 16, v{RAW+2}"); A(f"v_lshlrev_b32 v{P+1}, 16, v{RAW+3}")
    A(f"v_cvt_pk_bf16_f32 v{T}, v{T}, v{T}")
    A(f"v_mul_f32 v{TH}, v{TH}, v{DT}")
    A(f"v_lshlrev_b32 v{T}, 16, v{T}")
    A(f"v_mul_f32 v{TH}, 0.15915494, v{TH}")
    A(f"v_mul_f32 v{A1}, v{T}, v{NDT}")
    A(f"v_pk_mul_f32 {P2(P)}, {P2(P)}, {P2(DT2)} op_sel_hi:[1,0]")
    A(f"v_mul_f32 v{A1}, s24, v{A1}")
    A(f"v_pk_mov_b32 {P2(RAW)}, {P2(RAW+4)}, {P2(RAW+4)} op_sel:[0,1]"); A(f"v_pk_mov_b32 {P2(RAW+2)}, {P2(RAW+6)}, {P2(RAW+6)} op_sel:[0,1]")
    for (R, sc) in ((W, "s27"), (Z, None), (Y, "s28")):
        if sc:
            A(f"v_mul_f32 v{T}, {sc}, v{A1}"); A(f"v_mul_f32 v{T+1}, {sc}, v{TH}")
            A(f"v_exp_f32 v{T}, v{T}"); A(f"v_fract_f32 v{T+1}, v{T+1}")
        else:
            A(f"v_exp_f32 v{T}, v{A1}"); A(f"v_fract_f32 v{T+1}, v{TH}")
        A(f"v_cos_f32 v{R}, v{T+1}"); A(f"v_sin_f32 v{R+1}, v{T+1}")
        A("s_nop 0")
        A(f"v_pk_mul_f32 {P2(R)}, {P2(R)}, {P2(T)} op_sel_hi:[1,0]" + (" neg_hi:[1,0]" if R == W else ""))
    pkc = [0]
    def emit(row, r):
        k = PK + pkc[0] % 16; pkc[0] += 1
        A(f"v_cvt_pk_bf16_f32 v{k}, v{r}, v{r+1}")
        pend.append(f"ds_write_addtid_b32 v{k} offset:{row*RS}")
        while len(pend) > OPT["kdepth"]: A(pend.pop(0))
    pend = []
    def rd(base):
        while pend: A(pend.pop(0))
        for t in range(4): A(f"ds_read_b128 v[{base+4*t}:{base+4*t+3}], v{FA} offset:{64*t}")
    def mm(acc, base, n):
        A(f"s_waitcnt lgkmcnt({n})")
        for t in range(4):
            A(f"v_mfma_f32_16x16x32_bf16 v[{acc}:{acc+3}], v[{base+4*t}:{base+4*t+3}], v[{QF+4*t}:{QF+4*t+3}], v[{acc}:{acc+3}]")
    A(f"ds_write_addtid_b32 v{ONE} offset:0")
    qs = W
    for j in range(2, 17):
        dst = QA if j % 2 == 0 else QB
        if j < 16: pcmul(A, dst, qs, W)
        emit(j-1, qs)
        b = j - 1
        if b <= 7: pcmul(A, P+2*b, P+2*b-2, Z)
        qs = dst
    rd(QF)
    loc = {}
    for b in range(0, 8, 2):
        emit(b, P+2*b); emit(b+1, P+2*b+2)
        pcmul(A, T, P+2*b+2, Y); pcmul(A, P+2*b+2, P+2*b, Y)
        emit(8+b+1, T); emit(8+b, P+2*b+2)
        loc[b] = P+2*b+2
    rd(PF)
    def step(b, row):
        s = loc[b]; d = P+2*b if s == P+2*b+2 else P+2*b+2
        pcmul(A, d, s, Y); loc[b] = d
        return (row, d)
    for a in range(2):
        es = [step(b, 4*a + b//2) for b in (0, 2, 4, 6)]
        for e in es: emit(*e)
    for a in range(4):
        es = [step(b, 8 + 2*a + b//4) for b in (0, 4)]
        for e in es: emit(*e)
    rd(PF+16)
    e = step(0, 0)
    for a in range(1, 10):
        n = step(0, a) if a < 9 else None
        emit(*e); e = n
    rd(PF+32)
    mm(ACC, PF, 8); mm(ACC+4, PF+16, 4); mm(ACC+8, PF+32, 0)
    A("s_sub_u32 s14, s14, 1"); A("s_cmp_lg_u32 s14, 0"); A("s_cbranch_scc1 k_loop")
    A("s_cmp_ge_u32 s3, 4"); A("s_cbranch_scc1 k_h")

def kaddr(A):
    sL = REG
    A(f"v_add_u32 v39, s{sL}, v1")
    EB = C0
    A("v_lshlrev_b32 v40, 4, v17"); A(f"v_add_u32 v40, s{sL}, v40")
    A("v_lshl_add_u32 v41, v18, 10, v40"); A(f"v_add_u32 v41, {EB + 2048 - 8}, v41")
    A("v_and_b32 v42, 1, v0"); A("v_lshlrev_b32 v42, 3, v42"); A("v_sub_u32 v42, v41, v42")
    A("v_lshl_add_u32 v43, v18, 9, v40"); A("v_lshl_add_u32 v44, v18, 8, v40")
    A("v_lshrrev_b32 v45, 1, v18"); A("v_lshl_add_u32 v45, v45, 8, v40")
    A("v_and_b32 v46, 1, v18"); A("v_lshl_add_u32 v45, v46, 3, v45")
    A("v_mov_b32 v66, 0"); A("v_mov_b32 v67, 0")
    A("v_and_b32 v46, 7, v0"); A("v_lshlrev_b32 v46, 2, v46"); A(f"v_add_u32 v46, s{sL}, v46")
    A("v_lshlrev_b32 v47, 3, v0"); A(f"v_add_u32 v47, s{sL}, v47")

KC = {xy: 56+n for n, xy in enumerate([(0,0),(0,1),(1,1),(2,2),(2,3),(3,3),(1,2)])}
def kexp0(A):
    K0, K1, K2 = 20, 24, 28
    for r in range(4):
        A(f"v_cvt_pk_bf16_f32 v{48+2*r}, v{K2+r}, v{K2+r}"); A(f"v_mov_b32 v{49+2*r}, v{48+2*r}")
    for (x, y), r in KC.items(): A(f"v_cvt_pk_bf16_f32 v{r}, v{K1+x}, v{K1+y}")
    A(f"v_cvt_pk_bf16_f32 v64, v{K0}, v{K0+1}"); A(f"v_cvt_pk_bf16_f32 v65, v{K0+2}, v{K0+3}")
def kexp1(A):
    EB = C0; c = KC
    for r in range(4): A(f"ds_write2_b64 v41, v[{48+2*r}:{49+2*r}], v[{48+2*r}:{49+2*r}] offset0:{32*r} offset1:{32*r+1}")
    for r in range(4): A(f"ds_write_b16 v42, v{48+2*r} offset:{256*r+16}")
    A("s_mov_b32 exec_lo, 0")
    o = (EB - 4) // 4
    A(f"ds_write2_b32 v43, v{c[0,0]}, v{c[0,0]} offset0:{o} offset1:{o+1}")
    A(f"ds_write2_b32 v43, v{c[0,1]}, v{c[1,1]} offset0:{o+2} offset1:{o+3}")
    A(f"ds_write2_b32 v43, v{c[2,2]}, v{c[2,2]} offset0:{o+64} offset1:{o+65}")
    A(f"ds_write2_b32 v43, v{c[2,3]}, v{c[3,3]} offset0:{o+66} offset1:{o+67}")
    A("s_mov_b32 exec_lo, -1"); A("s_mov_b32 exec_hi, 0")
    o = EB + 512
    A(f"ds_write_b16 v44, v{c[0,0]} offset:{o-2}")
    A(f"ds_write2_b32 v44, v{c[0,0]}, v{c[1,2]} offset0:{o//4} offset1:{o//4+1}")
    A(f"ds_write_b32 v44, v{c[2,2]} offset:{o+8}")
    A(f"ds_write_b16 v44, v{c[3,3]} offset:{o+12}")
    A("s_mov_b64 exec, -1")
    A(f"ds_write_b64 v45, v[64:65] offset:{EB}")
    A(f"ds_write_b32 v46, v66 offset:{C0-32}"); A(f"ds_write_b32 v46, v66 offset:{C1-32}")
    A(f"ds_write_b64 v47, v[66:67] offset:{CU+4096}")
    for i in range(4):
        A(f"ds_read_b128 v[{80+8*i}:{83+8*i}], v39 offset:{EB+1024*i}")
        A(f"ds_read_b32 v{72+i}, v39 offset:{EB+1024*i-4}")
def kexp2(A):
    A("s_waitcnt lgkmcnt(0)")
    for i in range(4):
        b = 80+8*i
        A(f"v_alignbit_b32 v{b+4}, v{b}, v{72+i}, 16")
        for k in range(1, 4): A(f"v_alignbit_b32 v{b+4+k}, v{b+k}, v{b+k-1}, 16")
        A(f"ds_write_b128 v39, v[{b+4}:{b+7}] offset:{C1+1024*i}")

def caddr(A):
    sL = REG
    A("v_lshlrev_b32 v2, 4, v18"); A("v_lshlrev_b32 v6, 5, v17"); A("v_sub_u32 v2, v2, v6")
    A(f"v_add_u32 v2, {CU + 4064 - 3584}, v2"); A(f"v_add_u32 v2, s{sL}, v2")
    A("v_sub_u32 v6, 15, v17"); A("v_and_b32 v7, 1, v6"); A("v_sub_u32 v6, v6, v7")
    A(f"v_mul_u32_u24 v3, {C1-C0}, v7"); A("v_lshl_add_u32 v3, v18, 4, v3")
    A("v_lshlrev_b32 v6, 1, v6"); A("v_sub_u32 v3, v3, v6")
    A(f"v_add_u32 v3, {C0}, v3"); A(f"v_add_u32 v3, s{sL}, v3")
    for i in range(1, 4): A(f"v_add_u32 v{3+i}, {1024*i}, v3")
    A("v_lshlrev_b32 v7, 5, v17"); A("v_lshrrev_b32 v8, 1, v18"); A("v_lshl_add_u32 v7, v8, 4, v7")
    A("v_and_b32 v8, 1, v18"); A("v_lshl_add_u32 v7, v8, 9, v7")

def conv(A):
    Y = 172
    TB = [40, 104]
    def reads(f, extra):
        b = TB[f]; r = []
        for q in range(8):
            r.append(f"ds_read_b128 v[{b+32+4*q}:{b+35+4*q}], v2 offset:{512*(7-q) + extra}")
            o = (512*(q & 1) + extra) // 4
            r.append(f"ds_read2_b32 v[{b+4*q}:{b+4*q+1}], v{3+q//2} offset0:{o} offset1:{o+1}")
            r.append(f"ds_read2_b32 v[{b+4*q+2}:{b+4*q+3}], v{3+q//2} offset0:{o+2} offset1:{o+3}")
        return r
    def mfmas(f):
        b = TB[f]; r = []
        for q in range(8):
            for tau in range(8-q):
                t = q + tau
                r.append(f"v_mfma_f32_16x16x32_bf16 v[{Y+4*t}:{Y+4*t+3}], v[{b+4*q}:{b+4*q+3}], v[{b+32+4*tau}:{b+35+4*tau}], v[{Y+4*t}:{Y+4*t+3}]")
        return r
    def inter(ms, rs):
        for i, m in enumerate(ms):
            A(m)
            if i < len(rs): A(rs[i])
    A("s_waitcnt vmcnt(0)")
    for x in reads(0, 0): A(x)
    stamp(A, 9)
    if OPT["epk"]: A("s_barrier")
    stamp(A, 4)
    if OPT["cprio"]: A(f"s_setprio {OPT['cprio']}")
    A("s_mov_b32 s28, 0")
    lp = A.newlabel("cv")
    A.label(lp)
    A("s_waitcnt lgkmcnt(0)")
    inter(mfmas(0), reads(1, 64))
    A("s_add_u32 s28, s28, 1")
    A("s_waitcnt lgkmcnt(0)")
    inter(mfmas(1), reads(0, 128))
    for r in range(2, 7): A(f"v_add_u32 v{r}, 128, v{r}")
    A("s_cmp_lt_u32 s28, 4"); A(f"s_cbranch_scc1 {lp}")
    stamp(A, 5)
    A(f"s_add_u32 s30, s31, {YT_OFF}")
    A(f"s_lshr_b32 s28, s{CH}, 3"); A("s_lshl_b32 s28, s28, 8"); A(f"s_and_b32 s29, s{CH}, 7"); A("s_lshl_b32 s29, s29, 2")
    A("s_add_u32 s28, s28, s29"); A(f"s_add_u32 s28, s28, {YF_OFF}")
    A("s_waitcnt lgkmcnt(0)")
    A("s_nop 1")
    O = 40
    for t in range(8):
        A(f"v_cvt_pk_bf16_f32 v{O+2*t}, v{Y+4*t}, v{Y+4*t+1}"); A(f"v_cvt_pk_bf16_f32 v{O+2*t+1}, v{Y+4*t+2}, v{Y+4*t+3}")
    A("s_nop 1")
    for p in range(4):
        A(f"v_permlane16_swap_b32 v{O+4*p}, v{O+4*p+2}"); A(f"v_permlane16_swap_b32 v{O+4*p+1}, v{O+4*p+3}")
    A("s_nop 1")
    for p in range(4): A(f"buffer_store_dwordx4 v[{O+4*p}:{O+4*p+3}], v7, s[20:23], s30 offen offset:{1024*p} sc1")
    A("s_setprio 0")
    flag_store(A, "s28", 2, 8, 80*256)
    stamp(A, 6)

def hbar(A, i):
    if OPT["hdiag"] == 2: _stamp0(A, i + 2)
    A("s_barrier")
    if OPT["hdiag"] == 1: _stamp0(A, i + 2)

def hwave(A):
    ACC = 20; sL = REG
    def when(cmp, neg=False):
        l = A.newlabel("if"); A(cmp); A(f"s_cbranch_scc{1 if neg else 0} {l}"); return l
    stamp(A, 2)
    A(f"s_add_u32 s8, s2, 256"); A(f"s_cmp_eq_u32 s{LCH}, 0"); A("s_cselect_b32 s8, s2, s8")
    A(f"s_cmp_eq_u32 s{LCH}, 1"); A("s_cselect_b32 s8, 999, s8"); A("s_cselect_b32 s9, s2, 999")
    A(f"v_add_u32 v39, s{sL}, v1")
    A("v_lshrrev_b32 v2, 3, v0"); A("v_and_b32 v3, 7, v0")
    A(f"s_lshl_b32 s12, s{LCH}, 13"); A(f"s_add_u32 s12, s12, {TB2}")
    A(f"v_mov_b32 v42, {FLG}")
    lds_wait(A, 42, 41, "v_cmp_ne_u32 vcc, 0", off=120)
    w1 = A.newlabel("t"); w2 = A.newlabel("t")
    A(f"s_cmp_eq_u32 s{LCH}, 1"); A(f"s_cbranch_scc1 {w1}")
    A("v_xor_b32 v5, v2, v3"); A("v_lshlrev_b32 v5, 4, v5"); A("v_lshl_add_u32 v5, v3, 10, v5"); A("v_add_u32 v5, s12, v5")
    for e in range(8): A(f"ds_read_b128 v[{144+4*e}:{147+4*e}], v5 offset:{128*e}")
    A(f"s_cmp_eq_u32 s{LCH}, 0"); A(f"s_cbranch_scc1 {w2}")
    A("v_lshlrev_b32 v4, 4, v3"); A(f"v_add_u32 v4, {GXO}, v4"); A("v_mul_u32_u24 v5, 1280, v2"); A("v_add_u32 v5, v5, v4")
    for i in range(10):
        A(f"ds_read_b128 v[{176+4*i}:{179+4*i}], v5 offset:{128*i}")
        A(f"ds_read_b128 v[{216+4*i}:{219+4*i}], v4 offset:{GWO - GXO + 128*i}")
    A("v_mov_b32 v32, 0"); A("v_mov_b32 v33, 0")
    A("s_waitcnt lgkmcnt(0)")
    for k in range(40): A(f"v_dot2c_f32_bf16 v{32 + k % 2}, v{176+k}, v{216+k}")
    A(f"s_branch {w2}")
    A.label(w1)
    A("v_lshrrev_b32 v5, 5, v0"); A("v_lshlrev_b32 v5, 11, v5"); A("v_bfe_u32 v6, v0, 2, 3"); A("v_lshl_add_u32 v5, v6, 7, v5")
    A("v_and_b32 v6, 3, v0"); A("v_lshl_add_u32 v5, v6, 3, v5"); A("v_add_u32 v5, s12, v5")
    for dtl in range(4):
        for sg in range(2):
            o = 144 + 4*(2*dtl+sg)
            A(f"ds_read_b64_tr_b16 v[{o}:{o+1}], v5 offset:{4096*sg + 32*dtl}")
            A(f"ds_read_b64_tr_b16 v[{o+2}:{o+3}], v5 offset:{4096*sg + 32*dtl + 1024}")
    A.label(w2)
    A("s_waitcnt lgkmcnt(0)")
    stamp(A, 10)
    A("s_barrier")
    l = when("s_cmp_lt_u32 s8, 320")
    A("s_and_b32 s24, s8, 31"); A("s_lshr_b32 s25, s8, 5")
    A("v_lshlrev_b32 v6, 15, v2"); A("v_lshlrev_b32 v7, 4, v3"); A("v_sub_u32 v6, v6, v7"); A("v_add_u32 v6, 4080, v6")
    A("s_mov_b32 s28, 0x05040100"); A("s_mov_b32 s29, 0x07060302")
    A("s_lshl_b32 s30, s25, 18"); A("s_lshl_b32 s27, s24, 7"); A("s_sub_u32 s30, s30, s27"); A(f"s_add_u32 s30, s30, {UR_OFF}")
    for i in range(8):
        o = 112 + 4*i
        for p in range(4):
            lo = 144 + 4*(7-2*p) + i//2; hi = 144 + 4*(6-2*p) + i//2
            A(f"v_perm_b32 v{o+p}, v{hi}, v{lo}, s{28 + (i&1)}")
        A(f"buffer_store_dwordx4 v[{o}:{o+3}], v6, s[20:23], s30 offen sc1")
        A("s_add_u32 s30, s30, 4096")
    A.label(l)
    A("s_mul_i32 s19, s18, 3072"); A(f"s_add_u32 s19, s19, {KP_OFF}")
    l = when("s_cmp_eq_u32 s16, 0")
    for i in range(3): A(f"buffer_store_dwordx4 v[{ACC+4*i}:{ACC+4*i+3}], v1, s[20:23], s19 offen offset:{1024*i} sc1")
    A.label(l)
    A("s_min_u32 s10, s2, 239"); A("s_mul_i32 s11, s10, 2731"); A("s_lshr_b32 s11, s11, 16")
    A("s_mul_i32 s28, s11, 24"); A("s_sub_u32 s10, s10, s28")
    l = when("s_cmp_lt_u32 s9, 240")
    for dtl in range(4):
        A("s_lshl_b32 s26, s11, 2"); A(f"s_add_u32 s26, s26, {dtl}")
        A("s_mul_i32 s27, s26, 52429"); A("s_lshr_b32 s27, s27, 18"); A("s_mul_i32 s28, s27, 235"); A("s_add_u32 s26, s26, s28")
        A("s_mul_i32 s28, s10, 10"); A("s_add_u32 s26, s26, s28"); A("s_lshl_b32 s26, s26, 10"); A(f"s_add_u32 s26, s26, {WDF_OFF}")
        A("s_add_u32 s27, s26, 5120")
        o = 144 + 8*dtl
        A(f"buffer_store_dwordx4 v[{o}:{o+3}], v1, s[20:23], s26 offen sc1")
        A(f"buffer_store_dwordx4 v[{o+4}:{o+7}], v1, s[20:23], s27 offen sc1")
    A.label(l)
    hbar(A, 0)
    stamp(A, 12)
    for i in range(3): A(f"ds_read_b128 v[{80+4*i}:{83+4*i}], v39 offset:{SS + 1024*i}")
    for i in range(3): A(f"ds_read_b128 v[{92+4*i}:{95+4*i}], v39 offset:{2*SS + 1024*i}")
    A("s_waitcnt lgkmcnt(0)")
    l = when("s_cmp_ge_u32 s16, 1")
    for i in range(12): A(f"v_add_f32 v{ACC+i}, v{ACC+i}, v{80+i}")
    A.label(l)
    l = when("s_cmp_ge_u32 s16, 2")
    for i in range(12): A(f"v_add_f32 v{ACC+i}, v{ACC+i}, v{92+i}")
    A.label(l)
    hbar(A, 1)
    tag_get(A, 40)
    l = when(f"s_cmp_eq_u32 s{LCH}, 2")
    A("v_add_f32 v32, v32, v33"); A("s_mov_b32 s28, 0x%x" % NLOG2E)
    for m in ("quad_perm:[1,0,3,2]", "quad_perm:[2,3,0,1]", "row_half_mirror"):
        A("s_nop 1"); A(f"v_add_f32_dpp v32, v32, v32 {m} row_mask:0xf bank_mask:0xf")
    A("v_mul_f32 v32, s28, v32"); A("v_exp_f32 v32, v32"); A(f"v_mov_b32 v33, s{TAG}")
    A("v_add_f32 v32, 1.0, v32"); A("v_rcp_f32 v32, v32")
    A(f"s_lshl_b32 s26, s{XCD}, 5"); A(f"s_add_u32 s26, s26, s{RR}"); A("s_lshl_b32 s26, s26, 6"); A(f"s_add_u32 s26, s26, {GG_OFF}")
    A("s_mov_b32 exec_lo, 0x01010101"); A("s_mov_b32 exec_hi, 0x01010101")
    A("buffer_store_dwordx2 v[32:33], v0, s[20:23], s26 offen sc1")
    A("s_mov_b64 exec, -1")
    A.label(l)
    hbar(A, 2)
    l = when("s_cmp_lt_u32 s8, 320")
    A("s_lshl_b32 s30, s25, 8"); A("s_lshl_b32 s27, s24, 2"); A("s_add_u32 s30, s30, s27"); A(f"s_add_u32 s30, s30, {UF_OFF}")
    flag_store(A, "s30", 40)
    A.label(l)
    A("s_lshl_b32 s18, s18, 7"); A(f"s_add_u32 s18, s18, {KF_OFF}")
    l = when("s_cmp_eq_u32 s16, 0")
    flag_store(A, "s18", 40)
    A.label(l)
    l = when("s_cmp_lt_u32 s9, 240")
    A("s_lshl_b32 s26, s11, 8"); A("s_lshl_b32 s27, s10, 2"); A("s_add_u32 s26, s26, s27"); A(f"s_add_u32 s26, s26, {WF_OFF}")
    flag_store(A, "s26", 70)
    A.label(l)
    caddr(A); kaddr(A)
    for i in range(32): A(f"v_mov_b32 v{172+i}, 0")
    A("v_and_b32 v68, 31, v0"); A("v_lshlrev_b32 v68, 2, v68")
    A(f"s_lshr_b32 s29, s{CH}, 6"); A("s_lshl_b32 s29, s29, 8"); A(f"s_add_u32 s29, s29, {UF_OFF}")
    A(f"s_lshl_b32 s31, s{CH}, 12"); A(f"s_add_u32 s30, s31, {UR_OFF}")
    A(f"s_add_u32 m0, s{sL}, {CU}")
    hbar(A, 3)
    hbar(A, 4)
    hbar(A, 5)
    hbar(A, 6)
    A("buffer_load_dword v69, v68, s[20:23], s29 offen sc1")
    A("v_mov_b32 v70, 0")
    l = when(f"s_cmp_eq_u32 s{RMT}, 1")
    A("buffer_load_dword v71, v70, s[20:23], s18 offen sc1")
    A.label(l)
    l = when(f"s_cmp_eq_u32 s{LCH}, 0")
    A("v_min_u32 v70, 47, v0"); A("v_cmp_lt_u32 vcc, 23, v70"); A("v_lshlrev_b32 v70, 2, v70"); A("v_add_u32 v71, 160, v70")
    A("v_cndmask_b32 v70, v70, v71, vcc")
    A("s_mul_i32 s26, s7, 5"); A("s_lshr_b32 s26, s26, 2"); A("s_lshl_b32 s26, s26, 8"); A(f"s_add_u32 s26, s26, {WF_OFF}")
    A("buffer_load_dword v71, v70, s[20:23], s26 offen sc1")
    A.label(l)
    def check(va, so, vd):
        ok = A.newlabel("ok")
        A(f"v_cmp_ne_u32 vcc, s{TAG}, v{vd}"); A(f"s_cbranch_vccz {ok}")
        poll(A, va, so, vd)
        A.label(ok)
    A("s_waitcnt vmcnt(0)")
    l = when("s_cmp_eq_u32 s17, 0")
    check(68, "s29", 69)
    for i in range(4): A(f"buffer_load_dwordx4 v1, s[20:23], s30 offen offset:{1024*i} sc1 lds")
    A.label(l)
    l = when(f"s_cmp_eq_u32 s{RMT}, 1")
    check(70, "s18", 71)
    for i in range(3): A(f"buffer_load_dwordx4 v[{80+4*i}:{83+4*i}], v1, s[20:23], s19 offen offset:{1024*i} sc1")
    A.label(l)
    l = when(f"s_cmp_eq_u32 s{LCH}, 0")
    check(70, "s26", 71)
    A.label(l)
    stamp(A, 3)
    A("v_lshlrev_b32 v170, 3, v0")
    A("s_lshl_b32 s24, s6, 9"); A(f"s_add_u32 s24, s24, {GG_OFF}")
    A("buffer_load_dwordx2 v[168:169], v170, s[20:23], s24 offen sc1")
    A(f"v_mov_b32 v8, {FLG}")
    l = when("s_cmp_eq_u32 s16, 0")
    hbar(A, 9)
    if OPT["epk"]: A("s_barrier")
    lds_wait(A, 8, 9, "v_cmp_ne_u32 vcc, 0", off=16, sleep=4)
    A("s_branch k_fin")
    A.label(l)
    l = when(f"s_cmp_eq_u32 s{RMT}, 1")
    A("s_waitcnt vmcnt(1)")
    for i in range(12): A(f"v_add_f32 v{ACC+i}, v{ACC+i}, v{80+i}")
    A.label(l)
    kexp0(A)
    lds_wait(A, 8, 9, "v_cmp_ne_u32 vcc, 0", off=40)
    kexp1(A)
    hbar(A, 9)
    kexp2(A)
    conv(A)

def finpre(A):
    sH = LCH; sL = REG
    A("s_mul_i32 s26, s7, 2560"); A("s_lshr_b32 s25, s6, 2"); A("s_mul_i32 s25, s25, 20480"); A("s_add_u32 s26, s26, s25"); A(f"s_add_u32 s26, s26, {YF_OFF}")
    A("v_and_b32 v3, 7, v0")
    A("v_lshrrev_b32 v8, 3, v0"); A("v_lshlrev_b32 v8, 12, v8"); A("v_lshl_add_u32 v8, v3, 4, v8")
    A("s_mul_i32 s27, s7, 327680"); A("s_lshl_b32 s28, s6, 7"); A("s_add_u32 s27, s27, s28"); A(f"s_add_u32 s27, s27, {YT_OFF}")
    A("v_bfe_u32 v2, v0, 2, 2"); A("v_lshlrev_b32 v2, 7, v2")
    A("v_lshrrev_b32 v3, 4, v0"); A("v_lshl_add_u32 v2, v3, 5, v2")
    A("v_and_b32 v3, 3, v0"); A("v_lshl_add_u32 v2, v3, 3, v2"); A(f"v_add_u32 v2, s{sL}, v2")
    A(f"s_mul_i32 s28, s{sH}, 48"); A(f"s_add_u32 s28, s28, s{sL}")
    A("v_lshlrev_b32 v3, 4, v0"); A("v_add_u32 v3, s28, v3")
    A("v_lshlrev_b32 v7, 2, v0"); A(f"v_add_u32 v7, s{sL}, v7")
    A("s_waitcnt vmcnt(0)")
    ok = A.newlabel("ok")
    A(f"v_cmp_ne_u32 vcc, s{TAG}, v169"); A(f"s_cbranch_vccz {ok}")
    poll(A, 170, "s24", 168, 2, tagreg=169)
    A.label(ok)
    A(f"ds_write_b32 v7, v168 offset:{OMG}")
    if OPT["ysleep"]: A(f"s_sleep {OPT['ysleep']}")
    A(f"s_lshl_b32 s29, s{sH}, 8"); A("s_add_u32 s12, s29, s26"); A("s_add_u32 s13, s12, 768"); A("s_add_u32 s14, s12, 1536")
    A(f"s_add_u32 s15, s26, {9*256}"); A(f"s_cmp_eq_u32 s{sH}, 0"); A("s_cselect_b32 s15, s15, s14")
    lp = A.newlabel("yl"); dn = A.newlabel("yl")
    A("s_mov_b32 s62, 0")
    A.label(lp)
    D = [32, 40, 48, 4]
    for i in range(3): A(f"s_load_dwordx8 s[{D[i]}:{D[i]+7}], s[20:21], s{12+i} glc")
    A("s_load_dwordx4 s[8:11], s[20:21], s15 glc"); A("s_load_dwordx4 s[16:19], s[20:21], s15 offset:16 glc")
    A("s_addk_i32 s62, 1")
    A("s_waitcnt lgkmcnt(0)")
    regs = list(range(32, 56)) + [8, 9, 10, 11, 16, 17, 18, 19]
    A("s_and_b64 s[28:29], s[32:33], s[34:35]"); A("s_or_b64 s[30:31], s[32:33], s[34:35]")
    for r in regs[4::2]:
        A(f"s_and_b64 s[28:29], s[28:29], s[{r}:{r+1}]"); A(f"s_or_b64 s[30:31], s[30:31], s[{r}:{r+1}]")
    A("s_and_b32 s28, s28, s29"); A("s_or_b32 s30, s30, s31")
    A(f"s_xor_b32 s28, s28, s{TAG}"); A(f"s_xor_b32 s30, s30, s{TAG}"); A("s_or_b32 s28, s28, s30")
    A(f"s_cbranch_scc0 {dn}")
    A(f"s_sleep {OPT['psleep']}")
    A(f"s_cmpk_lt_u32 s62, 0x{SPIN:x}"); A(f"s_cbranch_scc1 {lp}")
    A.label(dn)
    for i in range(4):
        A(f"s_add_u32 s28, s{sH}, {3*i}")
        if i == 3: A(f"s_cmp_lg_u32 s{sH}, 0"); A(f"s_cbranch_scc1 {dn}x")
        A("s_lshl_b32 s28, s28, 15"); A(f"s_add_u32 m0, s{sL}, {1024*i}"); A("s_add_u32 s28, s28, s27")
        A("buffer_load_dwordx4 v8, s[20:23], s28 offen sc1 lds")
    A.label(dn + "x")
    stamp(A, 7)
    A("s_waitcnt vmcnt(0)")
    for i in range(4):
        A(f"ds_read_b64_tr_b16 v[{8+4*i}:{9+4*i}], v2 offset:{1024*i}")
        A(f"ds_read_b64_tr_b16 v[{10+4*i}:{11+4*i}], v2 offset:{1024*i+512}")
    for i in range(4):
        A(f"s_waitcnt lgkmcnt({6-i})" if i < 3 else "s_waitcnt lgkmcnt(3)")
        A(f"ds_write_b128 v3, v[{8+4*i}:{11+4*i}] offset:{A2O + A2S*i}")
    stamp(A, 8)

def build():
    A = Asm()
    A.raw(f"; @launch grid=(256,1,1) block=(512,1,1) lds={LDS_BYTES}")
    A.raw('.amdgcn_target "amdgcn-amd-amdhsa--gfx950"')
    kernel_begin(A, NAME)
    A("s_cmp_ge_u32 s2, 256"); A("s_cbranch_scc1 k_end")
    stamp_begin(A)
    if OPT["probe"] >= 0:
        A("s_memrealtime s[64:65]"); A("s_waitcnt lgkmcnt(0)"); A("s_mov_b32 s66, s64")
    A("s_load_dwordx16 s[32:47], s[0:1], 0")
    A("s_load_dwordx8 s[48:55], s[0:1], 64")
    A("s_load_dwordx4 s[56:59], s[0:1], 96")
    A("s_load_dwordx2 s[20:21], s[0:1], 112")
    A("v_lshrrev_b32 v1, 6, v0"); A("v_and_b32 v0, 63, v0"); A("v_readfirstlane_b32 s3, v1")
    A(f"s_and_b32 s{XCD}, s2, 7"); A(f"s_lshr_b32 s{RR}, s2, 3"); A(f"s_lshr_b32 s{R4}, s{XCD}, 1"); A(f"s_and_b32 s{C2}, s{XCD}, 1")
    A(f"s_lshl_b32 s4, s{R4}, 2"); A(f"s_and_b32 s5, s{RR}, 3"); A("s_add_u32 s4, s4, s5")
    A(f"s_lshl_b32 s5, s{C2}, 3"); A(f"s_lshr_b32 s6, s{RR}, 2"); A("s_add_u32 s5, s5, s6")
    if OPT["arr"] == 0:
        A(f"s_lshl_b32 s6, s{R4}, 3"); A(f"s_and_b32 s7, s{RR}, 7"); A("s_add_u32 s6, s6, s7")
        A(f"s_lshl_b32 s7, s{C2}, 2"); A(f"s_lshr_b32 s8, s{RR}, 3"); A("s_add_u32 s7, s7, s8")
    else:
        A(f"s_lshl_b32 s6, s{XCD}, 2"); A(f"s_and_b32 s7, s{RR}, 3"); A("s_add_u32 s6, s6, s7")
        A(f"s_lshr_b32 s7, s{RR}, 2")
    A("s_mov_b32 s22, 0x%x" % WS_BYTES); A("s_mov_b32 s23, 0x20000")
    if OPT["fdma"]:
        A("v_lshlrev_b32 v8, 2, v0"); A(f"v_add_u32 v8, {FRE}, v8"); A("v_mov_b32 v9, 1")
    else:
        A("v_and_b32 v8, 31, v0"); A("v_cmp_lt_u32 vcc, 3, v8"); A("v_lshlrev_b32 v8, 2, v8"); A(f"v_add_u32 v8, {FLG}, v8")
        A("v_cndmask_b32 v9, 0, 1, vcc")
    A("v_mov_b32 v10, 0"); A("v_mov_b32 v51, 0")
    A("ds_write_b32 v8, v9")
    A("s_cmp_eq_u32 s3, 4"); A("s_cbranch_scc1 k_l")
    ev = [(0,1,1,2),(1,1,1,1),(1,2,2,1),(2,1,1,1),(0,0,0,0),(0,0,0,1),(1,0,0,2),(2,0,0,1)]
    od = [(0,1,1,1),(0,2,2,1),(1,1,1,1),(1,2,2,1),(0,0,0,0),(0,0,0,2),(1,0,0,2),(2,0,2,0)]
    enc = lambda t: sum((r | (sl << 2) | (p << 4) | (c << 6)) << (8*i) for i, (r, sl, p, c) in enumerate(t))
    A(f"s_lshr_b32 s18, s{RR}, 1"); A("s_lshl_b32 s18, s18, 3"); A(f"s_add_u32 s18, s18, s{XCD}")
    A(f"s_mov_b32 s10, 0x{enc(ev) & 0xffffffff:x}"); A(f"s_mov_b32 s11, 0x{enc(ev) >> 32:x}")
    A(f"s_and_b32 s8, s{RR}, 1")
    A(f"s_cselect_b32 s10, 0x{enc(od) & 0xffffffff:x}, s10"); A(f"s_cselect_b32 s11, 0x{enc(od) >> 32:x}, s11")
    A("s_lshl_b32 s9, s3, 3"); A("s_lshr_b64 s[10:11], s[10:11], s9")
    A(f"s_and_b32 s{LCH}, s10, 3"); A("s_bfe_u32 s9, s10, 0x20002"); A("s_bfe_u32 s17, s10, 0x20004"); A("s_bfe_u32 s16, s10, 0x20006")
    A(f"s_mul_i32 s{REG}, s{LCH}, {HS}"); A(f"s_add_u32 s{REG}, s{REG}, {HB}")
    A(f"s_mul_i32 s19, s9, {SS}"); A(f"s_add_u32 s19, s19, s{REG}")
    A("s_cmp_lt_u32 s3, 4"); A("s_cselect_b32 s14, s16, 1")
    A("s_mul_i32 s9, s8, 3"); A(f"s_add_u32 s9, s9, s{LCH}")
    A(f"s_cmp_eq_u32 s{LCH}, 2"); A("s_cselect_b32 s9, 2, s9"); A("s_cselect_b32 s13, s16, 0")
    A(f"s_mul_i32 s{CH}, s18, 5"); A(f"s_add_u32 s{CH}, s{CH}, s9")
    kpass(A)
    kgive(A)
    mwave(A)
    A.label("k_post")
    post(A)
    stamp_end(A, 0)
    if OPT["probe"] >= 0:
        A("s_waitcnt vmcnt(0)")
        stamp(A, 13)
        A("s_cmp_lg_u32 s3, 1"); A("s_cbranch_scc1 k_end")
        A(f"s_cmp_lg_u32 s2, {OPT['pwg']}"); A("s_cbranch_scc1 k_end")
        A("s_sub_u32 s70, s66, s64"); A(f"s_mul_i32 s70, s70, {OPT['pk']}"); A("s_min_u32 s70, s70, 20000")
        A("s_memrealtime s[68:69]"); A("s_waitcnt lgkmcnt(0)")
        A.label("k_pr")
        A("s_memrealtime s[72:73]"); A("s_waitcnt lgkmcnt(0)")
        A("s_sub_u32 s72, s72, s68"); A("s_cmp_lt_u32 s72, s70"); A("s_cbranch_scc1 k_pr")
    A.label("k_end")
    A("s_endpgm")
    A.label("k_h")
    A(f"s_mov_b32 s{RMT}, s13")
    hwave(A)
    A.label("k_fin")
    finpre(A)
    A("s_branch k_post")
    A.label("k_l")
    loader(A)
    A("s_branch k_post")
    for sl, bk, off in A.tail_code:
        A.label(sl); lds_wait(A, 7, 3, "v_cmp_ne_u32 vcc, 0", off=off); A(f"s_branch {bk}")
    A.label("k_last")
    A("s_endpgm")
    kernel_desc(A, NAME, 256, 102)
    return re.sub(r"^    (\w+:)$", r"\1", A.text(), flags=re.M)

if __name__ == "__main__":
    gen1.DIAG = "--diag" in sys.argv
    for a in sys.argv[2:]:
        if "=" in a:
            k, v = a.split("="); OPT[k] = eval(v)
    open(sys.argv[1], "w").write(build())
```

```python
import sys, re, copy
from asmlib import *
import gen1
from gen1 import LOG2E, NLOG2E, LOG2E_LO, LN2, stamp, stamp_begin, stamp_end
NAME = "gated_mix__ssm_conv_s4d__swiglu_ffn__prompt_kernel"
OPT = dict(pk=4, pwg=77, probe=-1, hdiag=0, mprio=2, epk=4, barks=2, barg=5, fpos=(3,0), kdepth=8, thr2=0, cprio=1, psleep=1, wb=(0,0), lbar=40, ald=(16,3), xord=2, m16=0, thr0=0, clate=0, bark=0)
H_OFF = 0
UR_OFF = 6291456
YT_OFF = UR_OFF + 2621440
GG_OFF = YT_OFF + 2621440
HF_OFF = GG_OFF + 16384
UF_OFF = HF_OFF + 128*256
YF_OFF = UF_OFF + 16*256
WF_OFF = YF_OFF + 8*80*256
KF_OFF = WF_OFF + 16*256
KP_OFF = KF_OFF + 128*128
LAST_OFF = KP_OFF + 128*3072
WDF_OFF = 12 << 20
WS_BYTES = 1 << 25
GB = 16384; UB = GB + 12288 + 32; STG = 41024
HB = 3*STG; HS = 13184
FLG = HB + 3*HS
FT = FLG + 120
GL = FT + 256
LDS_BYTES = GL + 256
RS = 272; SS = 16*RS
C0 = 64; C1 = C0 + 4160; CU = 8448
A2O = 4096; A2S = 1072; OMG = 8704
TB2 = 2*STG; GXO = TB2 + 24576; GWO = TB2 + 34816
PB = 176
PR = 336; PW = 64*PR
SPIN = 0x3000
U, LOGA, LOGDT, DSK, WG, WU, WD, GW, OUT, DBG = 32, 34, 42, 44, 48, 50, 52, 54, 56, 58
XCD, RR, R4, C2, LCH, REG = 96, 97, 98, 99, 100, 101
CH, TAG, RMT = 60, 61, 47
_stamp0 = stamp
def stamp(A, i, real=False):
    if OPT["hdiag"] and i != 1: return
    _stamp0(A, i, real)
    if OPT["probe"] == i:
        A("s_memrealtime s[66:67]"); A("s_waitcnt lgkmcnt(0)")
def P2(b): return f"v[{b}:{b+1}]"

def lds_wait(A, vaddr, vtmp, cond, off=0, sleep=0):
    l = A.newlabel("lw"); d = A.newlabel("lw")
    A("s_mov_b32 s62, 0")
    A.label(l)
    A(f"ds_read_b32 v{vtmp}, v{vaddr} offset:{off}")
    A("s_addk_i32 s62, 1")
    A("s_waitcnt lgkmcnt(0)")
    A(f"{cond}, v{vtmp}")
    A(f"s_cbranch_vccz {d}")
    if sleep: A(f"s_sleep {sleep}")
    A("s_cmpk_lt_u32 s62, 0x7000")
    A(f"s_cbranch_scc1 {l}")
    A.label(d)

def poll(A, vaddr, soff, vdst, n=1, tagreg=None):
    l = A.newlabel("pl"); d = A.newlabel("pl")
    tagreg = vdst if tagreg is None else tagreg
    A("s_mov_b32 s62, 0")
    A.label(l)
    A(f"buffer_load_dword{'x2' if n == 2 else ''} {vr(vdst, n)}, v{vaddr}, s[20:23], {soff} offen sc1")
    A("s_addk_i32 s62, 1")
    A("s_waitcnt vmcnt(0)")
    A(f"v_cmp_ne_u32 vcc, s{TAG}, v{tagreg}")
    A(f"s_cbranch_vccz {d}")
    A(f"s_sleep {OPT['psleep']}")
    A(f"s_cmpk_lt_u32 s62, 0x{SPIN:x}")
    A(f"s_cbranch_scc1 {l}")
    A.label(d)

def flag_store(A, soff, vt, rep=1, stride=0, wait=True):
    A(f"v_mov_b32 v{vt}, s{TAG}")
    A(f"v_mul_u32_u24 v{vt+1}, {stride}, v0")
    A(f"s_mov_b64 exec, {(1 << rep) - 1}")
    if wait: A("s_waitcnt vmcnt(0)")
    A(f"buffer_store_dword v{vt}, v{vt+1}, s[20:23], {soff} offen sc1")
    A("s_mov_b64 exec, -1")

def tag_get(A, vt, issued=False):
    l = A.newlabel("tg"); d = A.newlabel("tg")
    if not issued: A(f"s_load_dword s{TAG}, s[{DBG}:{DBG+1}], 0")
    A("s_mov_b32 s62, 0")
    A("s_waitcnt lgkmcnt(0)")
    A.label(l)
    A(f"s_cmp_lg_u32 s{TAG}, 0"); A(f"s_cbranch_scc1 {d}")
    A(f"v_mov_b32 v{vt}, 0")
    A(f"global_load_dword v{vt}, v{vt}, s[{DBG}:{DBG+1}] sc1")
    A("s_addk_i32 s62, 1")
    A("s_waitcnt vmcnt(0)")
    A(f"v_readfirstlane_b32 s{TAG}, v{vt}")
    A(f"s_sleep {OPT['psleep']}")
    A(f"s_cmpk_lt_u32 s62, 0x{SPIN:x}"); A(f"s_cbranch_scc1 {l}")
    A.label(d)

def spoll(A, soff, n, sleep):
    l = A.newlabel("sp"); d = A.newlabel("sp")
    A("s_mov_b32 s62, 0")
    A.label(l)
    A(f"s_load_dword{'x8 s[36:43]' if n == 8 else ' s36'}, s[20:21], {soff} glc")
    A("s_addk_i32 s62, 1")
    A("s_waitcnt lgkmcnt(0)")
    if n == 8:
        A("s_min_u32 s44, s36, s37"); A("s_max_u32 s45, s36, s37")
        for i in range(2, 8):
            A(f"s_min_u32 s44, s44, s{36+i}"); A(f"s_max_u32 s45, s45, s{36+i}")
        A(f"s_xor_b32 s44, s44, s{TAG}"); A(f"s_xor_b32 s45, s45, s{TAG}"); A("s_or_b32 s44, s44, s45")
    else:
        A(f"s_cmp_lg_u32 s36, s{TAG}")
    A(f"s_cbranch_scc0 {d}")
    A(f"s_sleep {sleep}")
    A(f"s_cmpk_lt_u32 s62, 0x{SPIN:x}"); A(f"s_cbranch_scc1 {l}")
    A.label(d)

def tiles(A):
    A(f"s_and_b32 s4, s{RR}, 15"); A(f"s_lshl_b32 s5, s{XCD}, 1"); A(f"s_lshr_b32 s6, s{RR}, 4"); A("s_add_u32 s5, s5, s6")
    A(f"s_lshr_b32 s6, s{XCD}, 1"); A("s_lshl_b32 s6, s6, 3"); A(f"s_and_b32 s7, s{RR}, 7"); A("s_add_u32 s6, s6, s7")
    A(f"s_and_b32 s7, s{XCD}, 1"); A("s_lshl_b32 s7, s7, 2"); A(f"s_lshr_b32 s22, s{RR}, 3"); A("s_add_u32 s7, s7, s22")
    A("s_mov_b32 s22, 0x%x" % WS_BYTES); A("s_mov_b32 s23, 0x20000")

def loader(A):
    A("s_getpc_b64 s[24:25]")
    A.label("k_pc")
    A(f"s_sub_u32 s24, s24, k_pc - {NAME}"); A("s_subb_u32 s25, s25, 0")
    A(f"v_lshlrev_b32 v8, 5, v0"); A(f"v_add_u32 v8, s{RR}, v8"); A("v_lshlrev_b32 v8, 7, v8")
    A(f"v_min_u32 v8, k_last - {NAME}, v8")
    A("v_mov_b32 v23, s25"); A("v_add_co_u32 v22, vcc, s24, v8"); A("v_addc_co_u32 v23, vcc, 0, v23, vcc")
    def ct():
        A("s_mov_b64 exec, 0xff"); A("global_load_dword v24, v[22:23], off"); A("s_mov_b64 exec, -1")
    if not OPT["clate"]: ct()
    A("v_lshlrev_b32 v8, 2, v0"); A(f"v_add_u32 v8, {FLG}, v8"); A("v_mov_b32 v9, 1")
    A("ds_write_b32 v8, v9")
    A(f"s_and_b32 s24, s{RR}, 15"); A("s_mul_i32 s24, s24, 12288"); A(f"s_mul_i32 s25, s{XCD}, 384"); A("s_add_u32 s24, s24, s25")
    A("v_min_u32 v18, 59, v0"); A("v_mul_u32_u24 v19, 43, v18"); A("v_lshrrev_b32 v19, 9, v19")
    A("v_mul_u32_u24 v9, 171, v18"); A("v_lshrrev_b32 v9, 9, v9")
    A("v_mul_u32_u24 v19, %d, v19" % (196608 - 4*3072)); A("v_mul_u32_u24 v9, %d, v9" % (3072 - 384))
    A("v_lshl_add_u32 v18, v18, 7, v19"); A("v_add3_u32 v18, v18, v9, s24")
    A("v_lshrrev_b32 v8, 3, v0"); A("v_mul_u32_u24 v8, 1280, v8"); A("v_and_b32 v10, 7, v0"); A("v_lshl_add_u32 v16, v10, 4, v8")
    A("s_and_b32 s26, s2, 31"); A("s_lshr_b32 s27, s2, 5")
    A("s_mul_i32 s28, s26, 81920"); A("s_lshl_b32 s27, s27, 7"); A("s_add_u32 s28, s28, s27")
    A("s_mov_b32 s10, 2621440"); A("s_mov_b32 s11, 0x20000")
    A(f"s_cmp_ge_u32 s{RR}, 16")
    A("s_waitcnt lgkmcnt(0)")
    A(f"s_cselect_b32 s24, s{WU}, s{WG}"); A(f"s_cselect_b32 s25, s{WU+1}, s{WG+1}")
    A(f"s_mov_b32 s8, s{U}"); A(f"s_mov_b32 s9, s{U+1}")
    A("s_barrier")
    stamp(A, 1)
    if OPT["clate"]: ct()
    A("global_load_dword v20, v18, s[24:25] nt")
    def utile(h):
        for i in range(8):
            A(f"s_mov_b32 m0, {TB2 + 8192*h + 1024*i}"); A(f"v_xor_b32 v17, {16*i}, v16")
            A("buffer_load_dwordx4 v17, s[8:11], s28 offen lds"); A("s_add_u32 s28, s28, 10240")
    utile(0)
    A(f"s_mov_b32 s36, s{WD}"); A(f"s_mov_b32 s37, s{WD+1}"); A("s_mov_b32 s38, 1966080"); A("s_mov_b32 s39, 0x20000")
    A("s_mul_i32 s27, s2, 2731"); A("s_lshr_b32 s27, s27, 16"); A("s_mul_i32 s26, s27, 24"); A("s_sub_u32 s26, s2, s26")
    A("s_mul_i32 s45, s26, 81920"); A("s_lshl_b32 s27, s27, 7"); A("s_add_u32 s45, s45, s27"); A("s_sub_u32 s45, s45, 10240")
    n1 = A.newlabel("n1"); n2 = A.newlabel("n2")
    A("s_cmp_ge_u32 s2, 240"); A(f"s_cbranch_scc1 {n1}")
    for i in range(8):
        A(f"s_mov_b32 m0, {TB2 + 8192 + 1024*i}"); A("s_add_u32 s45, s45, 10240")
        A("buffer_load_dwordx4 v16, s[36:39], s45 offen nt lds")
    A.label(n1)
    A("s_cmp_ge_u32 s2, 64"); A(f"s_cbranch_scc1 {n2}")
    A(f"s_sub_u32 s28, s28, {81920 - 1024}")
    utile(2)
    A.label(n2)
    A("v_lshlrev_b32 v1, 4, v0"); A("v_mov_b32 v14, 0x7ffffff0")
    A(f"s_mov_b32 s40, s{GW}"); A(f"s_mov_b32 s41, s{GW+1}"); A("s_mov_b32 s42, 1280"); A("s_mov_b32 s43, 0x20000")
    A("s_mul_i32 s46, s2, 10240")
    for (o, n) in ((0, 4), (4096, 4), (8192, 2)):
        A(f"s_mov_b32 m0, {GXO + o}"); A(f"s_add_u32 s28, s46, {o}")
        for i in range(n): A(f"buffer_load_dwordx4 v1, s[8:11], s28 offen offset:{1024*i} lds")
    A(f"s_mov_b32 m0, {GWO}"); A("v_add_u32 v19, %d, v18" % (5*196608))
    for i in range(2): A(f"buffer_load_dwordx4 v1, s[40:43], 0 offen offset:{1024*i} lds")
    A(f"s_mov_b32 m0, {FT}"); A("s_nop 0")
    A("buffer_load_dword v14, s[8:11], 0 offen lds")
    A("global_load_dword v21, v19, s[24:25] nt")
    tiles(A)
    A("v_lshrrev_b32 v9, 4, v0"); A("v_xor_b32 v9, v9, v10"); A("v_lshl_add_u32 v2, v9, 4, v8")
    A("v_xor_b32 v9, 4, v9"); A("v_lshl_add_u32 v3, v9, 4, v8")
    A(f"v_add_u32 v3, {10240-1024}, v3"); A(f"v_add_u32 v4, {20480-2048}, v2"); A(f"v_add_u32 v5, {20480-2048}, v3")
    for i in range(3):
        A(f"v_add_u32 v9, {64*i}, v0"); A("v_mul_u32_u24 v10, 5462, v9"); A("v_lshrrev_b32 v10, 16, v10")
        A("v_mul_u32_u24 v10, 2880, v10"); A(f"v_lshl_add_u32 v{11+i}, v0, 4, v10")
    A("v_mov_b32 v51, 0")
    A("s_mul_i32 s26, s4, 163840"); A("s_mul_i32 s27, s5, 192")
    A("s_mov_b32 s29, 0"); A("s_mov_b32 s30, 0"); A(f"s_mov_b32 s31, {FT-4}")
    A(f"s_mov_b32 s12, s{WG}"); A(f"s_mov_b32 s13, s{WG+1}"); A("s_mov_b32 s14, 1966080"); A("s_mov_b32 s15, 0x20000")
    A(f"s_mov_b32 s16, s{WU}"); A(f"s_mov_b32 s17, s{WU+1}"); A("s_mov_b32 s18, 1966080"); A("s_mov_b32 s19, 0x20000")
    def flag(fill):
        A("s_mov_b32 m0, s31"); A(fill)
        A("buffer_load_dword v14, s[8:11], 0 offen lds")
    def tail():
        flag("s_sub_u32 s31, s31, 4")
        A(f"s_add_u32 s29, s29, {STG}"); A(f"s_cmp_eq_u32 s29, {3*STG}"); A("s_cselect_b32 s29, 0, s29")
        A("s_add_u32 s30, s30, 1")
    l1 = A.newlabel("ld")
    cnt = [0]
    extra = {1: [f"s_add_u32 s33, s29, {STG}"], 2: [f"s_cmp_eq_u32 s33, {3*STG}", "s_cselect_b32 s33, 0, s33"], 4: ["s_add_u32 s30, s30, 1"],
             26: ["s_add_u32 s26, s26, 128"], 37: ["s_add_u32 s27, s27, 196608"], 40: ["s_mov_b32 s29, s33"]}
    def dma(x):
        A(x); cnt[0] += 1
        for e in extra.get(cnt[0], []): A(e)
        if cnt[0] == OPT["lbar"]:
            sk = A.newlabel("sk")
            A("s_bitcmp1_b32 s34, s30"); A(f"s_cbranch_scc1 {sk}")
            A("s_barrier")
            A.label(sk)
    def xq(q):
        A(f"s_add_u32 m0, s29, {4096*q}"); A(f"s_add_u32 s28, s26, {40960*q}")
        for i in range(4): dma(f"buffer_load_dwordx4 v{2+i}, s[8:11], s28 offen offset:{1024*i} lds")
    def wq(q):
        A(f"s_add_u32 m0, s29, {GB + 3072*q}"); A(f"s_add_u32 s28, s27, {49152*q}")
        for i in range(3): dma(f"buffer_load_dwordx4 v{11+i}, s[12:15], s28 offen offset:{1024*i} lds")
        A(f"s_add_u32 m0, s29, {UB + 3072*q}"); A("s_nop 0")
        for i in range(3): dma(f"buffer_load_dwordx4 v{11+i}, s[16:19], s28 offen offset:{1024*i} lds")
    def fl():
        A("s_mov_b32 m0, s31"); A("s_sub_u32 s31, s31, 4")
        dma("buffer_load_dword v14, s[8:11], 0 offen lds")
    A("s_mov_b32 s34, 0x402")
    A.label(l1)
    if OPT["xord"] == 0: wq(0); xq(0); xq(1); wq(1); xq(2); xq(3)
    elif OPT["xord"] == 1: xq(0); xq(1); xq(2); xq(3); wq(0); wq(1)
    elif OPT["xord"] == 2: wq(0); wq(1); xq(0); xq(1); xq(2); xq(3)
    fl(); wq(2); wq(3); fl()
    A("s_cmp_lt_u32 s30, 10"); A(f"s_cbranch_scc1 {l1}")
    stamp(A, 2)
    for p in OPT["wb"]:
        if p == 0: A("s_barrier")
    A("s_mul_i32 s26, s7, 245760"); A(f"s_add_u32 s26, s26, {WDF_OFF + 30720}")
    l2 = A.newlabel("ld"); l4 = A.newlabel("ld")
    def bars(n, cur):
        for p in OPT["wb"]:
            if p and p % 40 == n % 40:
                sk = A.newlabel("sk")
                A(f"s_cmp_lg_u32 s30, {10 + p//40}"); A(f"s_cbranch_scc1 {sk}"); A("s_barrier"); A.label(sk)
    A.label(l2)
    for w in range(4):
        for (o, n) in ((0, 4), (4096, 4), (8192, 2)):
            A(f"s_add_u32 m0, s29, {10240*w + o}"); A(f"s_add_u32 s28, s26, {61440*w + o}")
            if OPT["thr2"]: A(f"s_waitcnt vmcnt({OPT['thr2']})")
            for i in range(n): A(f"buffer_load_dwordx4 v1, s[20:23], s28 offen offset:{1024*i} sc1 lds")
        if w < 3: bars(10*w + 10, 0)
    tail()
    bars(40, 1)
    A("s_add_u32 s26, s26, 10240")
    A("s_cmp_lt_u32 s30, 13"); A(f"s_cbranch_scc1 {l2}")
    stamp(A, 3)

ACC1 = 64
def msetup(A):
    A("s_lshr_b32 s8, s3, 1"); A("s_and_b32 s9, s3, 1")
    A("v_and_b32 v8, 31, v0"); A("v_lshrrev_b32 v9, 5, v0")
    A("v_bfe_u32 v10, v0, 1, 3"); A("v_xor_b32 v10, v10, v9")
    A("v_lshlrev_b32 v14, 7, v8"); A("s_lshl_b32 s10, s8, 13"); A("v_add_u32 v14, s10, v14")
    for ks in range(4):
        A(f"v_xor_b32 v12, {2*ks}, v10"); A(f"v_lshl_add_u32 v{2+ks}, v12, 4, v14")
    A("v_bfe_u32 v12, v0, 2, 2"); A("v_lshl_add_u32 v12, v9, 3, v12"); A("v_mul_u32_u24 v6, 192, v12")
    A("v_and_b32 v12, 3, v0"); A("v_lshl_add_u32 v6, v12, 3, v6")
    A("v_bfe_u32 v12, v0, 4, 1"); A(f"v_mul_u32_u24 v12, {UB-GB}, v12"); A("v_add_u32 v6, v6, v12")
    A("s_mul_i32 s10, s9, 96"); A(f"s_add_u32 s10, s10, {GB}"); A("v_add_u32 v6, s10, v6")
    A(f"v_mov_b32 v7, {FT-8}")
    for i in range(48): A(f"v_pk_mov_b32 {P2(ACC1+2*i)}, 0, 0")
    A("s_mov_b32 s54, 0x%x" % NLOG2E); A("s_mov_b32 s55, 0x%x" % NLOG2E)
    A("v_and_b32 v10, 15, v0"); A("v_lshlrev_b32 v10, 4, v10"); A("v_lshl_add_u32 v10, v9, 8, v10")
    A("v_bfe_u32 v12, v0, 4, 1"); A("v_lshl_add_u32 v10, v12, 10, v10")
    A("s_lshl_b32 s18, s4, 1"); A("s_add_u32 s18, s18, s8")
    A("s_mul_i32 s11, s18, 196608"); A("s_mul_i32 s12, s5, 6"); A("s_mul_i32 s13, s9, 3"); A("s_add_u32 s12, s12, s13")
    for nt in range(3):
        A(f"s_add_u32 s13, s12, {nt}")
        A("s_lshr_b32 s10, s13, 1"); A("s_lshl_b32 s10, s10, 12")
        A("s_and_b32 s13, s13, 1"); A("s_lshl_b32 s13, s13, 9"); A("s_add_u32 s10, s10, s13")
        A(f"s_add_u32 s{48+nt}, s10, s11")
    A("s_lshl_b32 s51, s18, 2"); A("s_lshr_b32 s10, s5, 2"); A("s_add_u32 s51, s51, s10"); A("s_lshl_b32 s51, s51, 8")
    A("s_and_b32 s10, s5, 3"); A("s_lshl_b32 s10, s10, 1"); A("s_add_u32 s10, s10, s9"); A("s_lshl_b32 s10, s10, 2")
    A("s_add_u32 s51, s51, s10"); A(f"s_add_u32 s51, s51, {HF_OFF}")
    A("s_lshl_b32 s52, s6, 2"); A("s_add_u32 s52, s52, s3"); A("s_lshl_b32 s52, s52, 8"); A(f"s_add_u32 s52, s52, {HF_OFF}")
    A("s_mul_i32 s53, s6, 196608"); A("s_mul_i32 s10, s3, 49152"); A("s_add_u32 s53, s53, s10")
    A("s_mul_i32 s10, s3, 10240"); A("v_add_u32 v11, s10, v1")

def kgive(A):
    A("v_add_u32 v15, s19, v1")
    A("s_nop 4")
    for i in range(3): A(f"ds_write_b128 v15, v[{20+4*i}:{23+4*i}] offset:{1024*i}")

def mtasks(A):
    dn = A.newlabel("mt"); wd = A.newlabel("mt"); ur = A.newlabel("mt")
    A("s_cmp_eq_u32 s3, 0"); A(f"s_cbranch_scc1 {dn}")
    A("v_lshrrev_b32 v16, 3, v0"); A("v_and_b32 v17, 7, v0"); A(f"v_mov_b32 v18, {FT}")
    lds_wait(A, 18, 19, "v_cmp_ne_u32 vcc, 0", sleep=1)
    A("s_cmp_eq_u32 s3, 2"); A(f"s_cbranch_scc1 {wd}")
    A("s_mov_b32 s24, s2"); A(f"s_mov_b32 s25, {TB2}")
    A("s_cmp_eq_u32 s3, 1"); A(f"s_cbranch_scc1 {ur}")
    A("v_lshlrev_b32 v18, 4, v17"); A(f"v_add_u32 v18, {GXO}, v18"); A("v_mul_u32_u24 v19, 1280, v16"); A("v_add_u32 v19, v19, v18")
    for i in range(10):
        A(f"ds_read_b128 v[{160+4*i}:{163+4*i}], v19 offset:{128*i}")
        A(f"ds_read_b128 v[{200+4*i}:{203+4*i}], v18 offset:{GWO - GXO + 128*i}")
    A("v_mov_b32 v20, 0"); A("v_mov_b32 v21, 0"); A("v_lshlrev_b32 v22, 2, v0"); A(f"v_add_u32 v22, {GL}, v22")
    A("s_waitcnt lgkmcnt(0)")
    for k in range(40): A(f"v_dot2c_f32_bf16 v{20 + k % 2}, v{160+k}, v{200+k}")
    A("s_add_u32 s24, s2, 256"); A(f"s_mov_b32 s25, {TB2 + 16384}"); A("s_cmp_ge_u32 s2, 64")
    A("v_add_f32 v20, v20, v21")
    A("ds_write_b32 v22, v20")
    A(f"s_cbranch_scc1 {dn}")
    A.label(ur)
    A("v_xor_b32 v18, v16, v17"); A("v_lshlrev_b32 v18, 4, v18"); A("v_lshl_add_u32 v18, v17, 10, v18"); A("v_add_u32 v18, s25, v18")
    for e in range(8): A(f"ds_read_b128 v[{160+4*e}:{163+4*e}], v18 offset:{128*e}")
    A("v_lshlrev_b32 v19, 15, v16"); A("v_lshlrev_b32 v17, 4, v17"); A("v_sub_u32 v19, v19, v17"); A("v_add_u32 v19, 4080, v19")
    A("s_mov_b32 s28, 0x05040100"); A("s_mov_b32 s29, 0x07060302")
    A("s_lshr_b32 s25, s24, 5"); A("s_and_b32 s24, s24, 31")
    A("s_lshl_b32 s25, s25, 18"); A("s_lshl_b32 s24, s24, 7"); A("s_sub_u32 s25, s25, s24"); A(f"s_add_u32 s25, s25, {UR_OFF}")
    A("s_waitcnt lgkmcnt(0)")
    for i in range(8):
        o = 192 + 4*i
        for p in range(4):
            lo = 160 + 4*(7-2*p) + i//2; hi = 160 + 4*(6-2*p) + i//2
            A(f"v_perm_b32 v{o+p}, v{hi}, v{lo}, s{28 + (i&1)}")
        A(f"buffer_store_dwordx4 v[{o}:{o+3}], v19, s[20:23], s25 offen sc1")
        A("s_add_u32 s25, s25, 4096")
    A(f"s_branch {dn}")
    A.label(wd)
    A("s_cmp_ge_u32 s2, 240"); A(f"s_cbranch_scc1 {dn}")
    A("v_lshrrev_b32 v18, 5, v0"); A("v_lshlrev_b32 v18, 11, v18"); A("v_bfe_u32 v19, v0, 2, 3"); A("v_lshl_add_u32 v18, v19, 7, v18")
    A("v_and_b32 v19, 3, v0"); A("v_lshl_add_u32 v18, v19, 3, v18"); A(f"v_add_u32 v18, {TB2 + 8192}, v18")
    for dtl in range(4):
        for sg in range(2):
            o = 160 + 4*(2*dtl+sg)
            A(f"ds_read_b64_tr_b16 v[{o}:{o+1}], v18 offset:{4096*sg + 32*dtl}")
            A(f"ds_read_b64_tr_b16 v[{o+2}:{o+3}], v18 offset:{4096*sg + 32*dtl + 1024}")
    A("s_mul_i32 s25, s2, 2731"); A("s_lshr_b32 s25, s25, 16"); A("s_mul_i32 s24, s25, 24"); A("s_sub_u32 s24, s2, s24")
    A("s_mul_i32 s24, s24, 10"); A("s_lshl_b32 s25, s25, 2")
    for dtl in range(4):
        A(f"s_add_u32 s26, s25, {dtl}")
        A("s_mul_i32 s27, s26, 52429"); A("s_lshr_b32 s27, s27, 18"); A("s_mul_i32 s27, s27, 235"); A("s_add_u32 s26, s26, s27")
        A("s_add_u32 s26, s26, s24"); A("s_lshl_b32 s26, s26, 10"); A(f"s_add_u32 s26, s26, {WDF_OFF}"); A("s_add_u32 s27, s26, 5120")
        A(f"s_waitcnt lgkmcnt({12 - 4*dtl})")
        o = 160 + 8*dtl
        A(f"buffer_store_dwordx4 v[{o}:{o+3}], v1, s[20:23], s26 offen sc1")
        A(f"buffer_store_dwordx4 v[{o+4}:{o+7}], v1, s[20:23], s27 offen sc1")
    A.label(dn)

def mwave(A):
    stamp(A, 6)
    mtasks(A)
    sW = 3
    A("s_mov_b32 s16, 0x%x" % ((-2*STG) & 0xffffffff)); A(f"s_mov_b32 s17, {STG}")
    F = [16, 36]
    def reads(ks, f):
        r = []; b = F[f]
        r.append(f"ds_read_b128 v[{b}:{b+3}], v{2+ks}")
        for nt in range(3):
            o = b + 8 + 4*nt
            r.append(f"ds_read_b64_tr_b16 v[{o}:{o+1}], v6 offset:{3072*ks + 32*nt}")
            r.append(f"ds_read_b64_tr_b16 v[{o+2}:{o+3}], v6 offset:{3072*ks + 32*nt + 768}")
        r.append(f"ds_read_b128 v[{b+4}:{b+7}], v{2+ks} offset:4096")
        return r
    def mfmas(f):
        b = F[f]; r = []
        for a in range(2):
            for nt in range(3):
                c = ACC1 + 16*(3*a+nt)
                if OPT["m16"]:
                    c += 8*f
                    r.append(f"v_mfma_f32_16x16x32_bf16 v[{c}:{c+3}], v[{b+8+4*nt}:{b+11+4*nt}], v[{b+4*a}:{b+4*a+3}], v[{c}:{c+3}]@"
                             f"v_mfma_f32_16x16x32_bf16 v[{c+4}:{c+7}], v[{b+4*a}:{b+4*a+3}], v[{b+8+4*nt}:{b+11+4*nt}], v[{c+4}:{c+7}]")
                else:
                    r.append(f"v_mfma_f32_32x32x16_bf16 v[{c}:{c+15}], v[{b+8+4*nt}:{b+11+4*nt}], v[{b+4*a}:{b+4*a+3}], v[{c}:{c+15}]")
        return r
    A("s_mov_b32 s11, 0"); A("s_mov_b32 s12, 0")
    A("s_mul_i32 s14, s7, 245760"); A("s_mul_i32 s15, s3, 61440"); A("s_add_u32 s14, s14, s15"); A(f"s_add_u32 s14, s14, {WDF_OFF}")
    A("s_waitcnt lgkmcnt(0)")
    stamp(A, 12)
    A("s_barrier")
    lds_wait(A, 7, 13, "v_cmp_ne_u32 vcc, 0", off=4)
    stamp(A, 2)
    PL = {0: [(1, 5), (1, 6)], 1: [(1, 7)], 2: [(2, 0)], 3: [(2, 1)], 4: [(2, 2), (2, 3)], 5: [(2, 4)]}
    need = {0: (0, 1, 2), 1: (3, 4), 2: (5, 6), 3: (7,), 4: (), 5: ()}
    lp = A.newlabel("g1"); ex_ = A.newlabel("g1x"); slow = A.newlabel("g1s"); back = A.newlabel("g1b")
    slow2 = A.newlabel("g1s"); back2 = A.newlabel("g1b"); nob = A.newlabel("g1n")
    AF = [160+4*i for i in range(24)] + [56, 60, 64, 68, 72, 76]
    def aload(n):
        r = [f"buffer_load_dwordx4 v[{AF[n]}:{AF[n]+3}], v1, s[20:23], s14 offen offset:{1024*(n % 4)} sc1"]
        if n % 4 == 3: r.append("s_add_u32 s14, s14, 4096")
        return r
    slows = []; na = [0]
    def step_items(k, mode):
        last = mode == 2
        ks = k % 4; it = []; ms = mfmas(k % 2)
        def chk(reg, off):
            sl = A.newlabel("g1s"); bk = A.newlabel("g1b"); slows.append((sl, bk, reg, off))
            return [("x", f"v_cmp_ne_u32 vcc, 0, v{reg}"), ("x", f"s_cbranch_vccnz {sl}"), ("x", f"{bk}:")]
        for g in range(6):
            it.append(("m", ms[g], [(k, r) for r in need[g]]))
            if ks == 2 and g == 2 and not last: it += [("w", "flag")] + chk(13, 4)
            if ks == 0 and g == 3: it += [("w", "flagB")] + chk(12, 0)
            if ks == OPT["barks"] and g == OPT["barg"] and mode != 1:
                it.append(("w", (k - ks + 3, 7)))
                if last: it += [("x", f"s_setprio {OPT['mprio']}"), ("x", "s_barrier")]
                else: it += [("x", "s_cmp_gt_u32 s11, 7"), ("x", f"s_cbranch_scc1 {nob}"), ("x", "s_waitcnt vmcnt(0)"), ("x", "s_barrier"), ("x", f"{nob}:")]
            for (so, ri) in PL[g]:
                if last and ks + so > 3: continue
                it.append(("r", reads((k+so) % 4, (k+so) % 2)[ri], (k+so, ri)))
            ex = []
            dl = "s13" if mode == 0 else "s16"
            if mode == 0:
                if ks == 0 and g == 2: ex = ["s_add_u32 s12, s12, 1", "s_cmp_eq_u32 s12, 3", "s_cselect_b32 s13, s16, s17", "s_cselect_b32 s12, 0, s12"]
                if ks == 1 and g == 2: ex = ["s_add_u32 s11, s11, 1"]
                if ks == 3 and g == 5: ex = ["s_cmp_lt_u32 s11, 8"]
            if not last:
                if ks == 1 and g == 1: ex = [f"v_add_u32 v2, {dl}, v2"]
                if ks == 0 and g == 5: ex = [f"v_add_u32 v3, {dl}, v3", "v_subrev_u32 v7, 8, v7"]
                if ks == 1 and g == 3: ex = [f"v_add_u32 v4, {dl}, v4"]
                if ks == 3 and g == 3: ex = [f"v_add_u32 v5, {dl}, v5"]
                if ks == 2 and g == 1: ex = [f"v_add_u32 v6, {dl}, v6"]
            if mode:
                pos = 24*(mode-1) + 6*ks + g - OPT["ald"][0]
                if pos >= 0 and g in (1, 2, 3, 5) and na[0] < 26: ex = ex + aload(na[0]); na[0] += 1
            for e in ex: it.append(("x", e))
            if ks == 1 and g == OPT["fpos"][0] and not last: it.append(("r", "ds_read_b32 v13, v7 offset:4", "flag"))
            if ks == 0 and g == OPT["fpos"][1]: it.append(("r", "ds_read_b32 v12, v7", "flagB"))
        return it
    def emit(items, q):
        for i in items:
            tags = i[2] if i[0] == "m" else [i[1]] if i[0] == "w" else []
            if tags:
                pos = max(len(q["ops"]) - 1 - q["ops"][::-1].index(t) for t in tags)
                if pos >= q["done"]:
                    n = min(14, len(q["ops"]) - 1 - pos)
                    q["done"] = len(q["ops"]) - n
                    A(f"s_waitcnt lgkmcnt({n})")
            if i[0] in ("r", "l"): q["ops"].append(i[2] if i[0] == "r" else None)
            if i[0] != "w": A(i[1])
    q = dict(ops=[], done=0)
    emit([("r", reads(0, 0)[r], (0, r)) for r in range(8)] + [("r", reads(1, 1)[ri], (1, ri)) for g in range(6) for (so, ri) in PL[g] if so == 2], q)
    A.label(lp)
    for k in range(4): emit(step_items(k, 0), q)
    A(f"s_cbranch_scc1 {lp}")
    q["done"] = 0
    for k in range(4, 8): emit(step_items(k, 1), q)
    for k in range(8, 12): emit(step_items(k, 2), q)
    stamp(A, 3)
    A(f"s_load_dword s{TAG}, s[{DBG}:{DBG+1}], 0")
    A(f"v_mov_b32 v7, {FT-92}"); A("v_mov_b32 v5, v11"); A(f"v_add_u32 v6, {2*STG}, v11"); A("s_nop 6")
    def areads(step):
        slot = (10 + step // 2) % 3; r = []
        for dt in range(5):
            o = AF[5*(step % 6) + dt]
            off = (STG if slot == 1 else 0) + 5120*(step % 2) + 1024*dt
            r.append(f"ds_read_b128 v[{o}:{o+3}], v{6 if slot == 2 else 5} offset:{off}")
        return r
    E = 16
    for a in range(2):
        for nt in range(3):
            g = ACC1 + 16*(3*a+nt); u = g + 8
            o = 32 + 4*((3*a+nt) % 4)
            ti = 3*a+nt
            lim = 26 if ti == 0 else 30
            cnt = -(-(30 - na[0]) // max(1, OPT["ald"][1] - ti))
            ins = []
            while cnt > 0 and na[0] < lim:
                ins.append(aload(na[0])); na[0] += 1; cnt -= 1
            mark = len(A.lines)
            if 3*a+nt < OPT['epk']:
                for i in range(4): A(f"v_pk_mul_f32 {P2(E+2*i)}, {P2(g+2*i)}, s[54:55]")
                for i in range(8): A(f"v_exp_f32 v{E+i}, v{E+i}")
                for i in range(4): A(f"v_pk_add_f32 {P2(E+2*i)}, {P2(E+2*i)}, 1.0 op_sel_hi:[1,0]")
                for i in range(8): A(f"v_rcp_f32 v{E+i}, v{E+i}")
                for i in range(4): A(f"v_pk_mul_f32 {P2(g+2*i)}, {P2(g+2*i)}, {P2(u+2*i)}")
                for i in range(4): A(f"v_pk_mul_f32 {P2(g+2*i)}, {P2(g+2*i)}, {P2(E+2*i)}")
            else:
                for i in range(8): A(f"v_mul_f32 v{E+i}, s54, v{g+i}")
                for i in range(8): A(f"v_exp_f32 v{E+i}, v{E+i}")
                for i in range(8): A(f"v_add_f32 v{E+i}, 1.0, v{E+i}")
                for i in range(8): A(f"v_rcp_f32 v{E+i}, v{E+i}")
                for i in range(8): A(f"v_mul_f32 v{g+i}, v{g+i}, v{u+i}")
                for i in range(8): A(f"v_mul_f32 v{g+i}, v{g+i}, v{E+i}")
            if ins:
                body = A.lines[mark:]; del A.lines[mark:]
                step = max(1, len(body) // len(ins))
                for n, l in enumerate(body):
                    if n % step == 0 and ins:
                        for x in ins.pop(0): A(x)
                    A.lines.append(l)
                assert not ins
            for i in range(4): A(f"v_cvt_pk_bf16_f32 v{o+i}, v{g+2*i}, v{g+2*i+1}")
            A(f"buffer_store_dwordx4 v[{o}:{o+3}], v10, s[20:23], s{48+nt} offen offset:{2048*a} sc1")
            if 3*a+nt == OPT["epk"] - 1: A("s_barrier")
    if OPT["mprio"]: A("s_setprio 0")
    stamp(A, 4)
    assert na[0] == 30
    tag_get(A, 14, issued=True)
    flag_store(A, "s51", 14)
    stamp(A, 5)
    A("v_and_b32 v4, 15, v0"); A("v_lshrrev_b32 v3, 4, v0")
    A(f"v_mul_u32_u24 v2, {PB}, v4"); A("v_lshl_add_u32 v2, v3, 3, v2")
    A("s_mul_i32 s26, s3, 10240"); A("v_add_u32 v2, s26, v2")
    spoll(A, "s52", 8, OPT["psleep"])
    stamp(A, 7)
    ACC = 80; HR = 8
    def hload(k, i):
        b = HR + 16*(k % 3)
        r = [f"buffer_load_dwordx4 v[{b+4*i}:{b+4*i+3}], v1, s[20:23], s53 offen offset:{1024*i} sc1"]
        if i == 3: r.append("s_add_u32 s53, s53, 4096")
        return r
    for k in range(3):
        for i in range(4):
            for x in hload(k, i): A(x)
    for k in range(12):
        b = HR + 16*(k % 3); j = k + 2
        ar = areads(j) if 6 <= j < 12 else []
        chk = bool(ar) and j % 2 == 0
        for mt in range(4):
            out = 11 if k + 3 < 12 else 4*(12-k) - mt - 1
            w = f"s_waitcnt vmcnt({out})"
            if mt == 0: w += " lgkmcnt(0)" if k in (0, 11) else " lgkmcnt(5)" if k >= 6 else ""
            A(w)
            if mt == 0 and k in (0, 6): stamp(A, 8 + k//6)
            for dt in range(5):
                c = ACC + 4*(4*dt+mt); af = AF[5*(k % 6) + dt]
                src = "0" if k == 0 else f"v[{c}:{c+3}]"
                A(f"v_mfma_f32_16x16x32_bf16 v[{c}:{c+3}], v[{af}:{af+3}], v[{b+4*mt}:{b+4*mt+3}], {src}")
                if chk and mt == 0 and dt == 0: A(f"ds_read_b32 v3, v7 offset:{4*(5-j//2)}")
                if chk and mt == 1 and dt == 3:
                    sl = A.newlabel("g2s"); bk = A.newlabel("g2b"); slows.append((sl, bk, 3, 4*(5-j//2)))
                    A("s_waitcnt lgkmcnt(0)"); A("v_cmp_ne_u32 vcc, 0, v3"); A(f"s_cbranch_vccnz {sl}"); A.label(bk)
                if ar and mt == 2: A(ar[dt])
            if k + 3 < 12:
                for x in hload(k+3, mt): A(x)
    A.tail_code = slows
    stamp(A, 10)
    A("s_nop 1")
    for mt in range(4):
        for dt in range(5):
            c = ACC + 4*(4*dt+mt); o = 8 + 2*((5*mt+dt) % 16)
            A(f"v_cvt_pk_bf16_f32 v{o}, v{c}, v{c+1}"); A(f"v_cvt_pk_bf16_f32 v{o+1}, v{c+2}, v{c+3}")
            if 5*mt+dt >= 1: A(pw)
            pw = f"ds_write_b64 v2, v[{o}:{o+1}] offset:{(mt >> 1)*STG + 16*(mt & 1)*PB + 32*dt}"
    A(pw)

def post(A):
    A(f"s_mov_b32 s16, s{OUT}"); A(f"s_mov_b32 s17, s{OUT+1}")
    A("s_mov_b32 s18, 2621440"); A("s_mov_b32 s19, 0x20000")
    A("s_mul_i32 s24, s6, 81920"); A("s_mul_i32 s25, s7, 160"); A("s_add_u32 s24, s24, s25")
    A("s_lshl_b32 s27, s3, 6")
    def addr(b):
        A(f"v_add_u32 v{b}, s27, v0")
        A(f"v_mul_u32_u24 v{b+1}, 6554, v{b}"); A(f"v_lshrrev_b32 v{b+1}, 16, v{b+1}")
        A(f"v_mul_u32_u24 v{b+2}, 10, v{b+1}"); A(f"v_sub_u32 v{b+2}, v{b}, v{b+2}")
        A(f"v_mul_u32_u24 v{b+3}, 1280, v{b+1}"); A(f"v_lshl_add_u32 v{b+3}, v{b+2}, 4, v{b+3}")
        A(f"v_mul_u32_u24 v{b+4}, {PB}, v{b+1}"); A(f"v_lshl_add_u32 v{b+4}, v{b+2}, 4, v{b+4}")
        A(f"v_lshrrev_b32 v{b+5}, 5, v{b+1}"); A(f"v_mul_u32_u24 v{b+5}, {STG - 32*PB}, v{b+5}"); A(f"v_add_u32 v{b+4}, v{b+4}, v{b+5}")
        A(f"v_mul_u32_u24 v{b+5}, 86, v{b+2}"); A(f"v_lshrrev_b32 v{b+5}, 8, v{b+5}")
        A(f"v_mul_u32_u24 v{b+6}, {HS+48}, v{b+2}"); A(f"v_mul_u32_u24 v{b+5}, {3*(HS+48) - A2S}, v{b+5}")
        A(f"v_sub_u32 v{b+6}, v{b+6}, v{b+5}"); A(f"v_lshl_add_u32 v{b+6}, v{b+1}, 4, v{b+6}"); A(f"v_add_u32 v{b+6}, {HB + A2O}, v{b+6}")
        A(f"v_lshlrev_b32 v{b+7}, 4, v{b+1}"); A(f"v_add_u32 v{b+7}, {HB + OMG}, v{b+7}")
    def rds(b, d):
        A(f"ds_read_b128 v[{d+20}:{d+23}], v{b+7}")
        for w in range(4): A(f"ds_read_b128 v[{d+4*w}:{d+4*w+3}], v{b+4} offset:{w*10240}")
        A(f"ds_read_b128 v[{d+16}:{d+19}], v{b+6}")
    def calc(b, d, t, rest):
        for w in range(5):
            A(f"s_waitcnt lgkmcnt({rest + 4 - w})")
            c = d + 20 + (2 if w == 4 else 0)
            for k in range(4):
                A(f"v_dot2c_f32_bf16 v{t+2*k}, v{d+4*w+k}, v{c}"); A(f"v_dot2c_f32_bf16 v{t+2*k+1}, v{d+4*w+k}, v{c+1}")
        A("s_nop 0")
        for k in range(4): A(f"v_cvt_pk_bf16_f32 v{d+k}, v{t+2*k}, v{t+2*k+1}")
        A(f"buffer_store_dwordx4 v[{d}:{d+3}], v{b+3}, s[16:19], s24 offen")
    addr(40)
    for i in range(4): A(f"v_pk_mov_b32 {P2(160+2*i)}, 0, 0")
    one = A.newlabel("po"); dn = A.newlabel("po"); o2 = A.newlabel("po")
    A("s_and_b32 s28, s3, 6"); A("s_cmp_lg_u32 s28, 4"); A(f"s_cbranch_scc1 {one}")
    A("s_add_u32 s27, s27, 256"); A("s_setprio 3")
    addr(48)
    for i in range(4): A(f"v_pk_mov_b32 {P2(168+2*i)}, 0, 0")
    A.label(one)
    A("s_waitcnt lgkmcnt(0)")
    A("s_barrier")
    stamp(A, 11)
    A("s_cmp_lg_u32 s28, 4"); A(f"s_cbranch_scc1 {o2}")
    rds(48, 232)
    A.label(o2)
    rds(40, 208)
    calc(40, 208, 160, 0)
    A("s_cmp_lg_u32 s28, 4"); A(f"s_cbranch_scc1 {dn}")
    calc(48, 232, 168, 0)
    A.label(dn)

def pcmul(A, d, s, m):
    A(f"v_pk_mul_f32 {P2(d)}, {P2(s)}, {P2(m)} op_sel:[0,0] op_sel_hi:[1,0]")
    A(f"v_pk_fma_f32 {P2(d)}, {P2(s)}, {P2(m)}, {P2(d)} op_sel:[1,1,0] op_sel_hi:[0,1,1] neg_lo:[0,1,0]")

def kpass(A):
    RAW = 232; FA = 16; ACC = 20
    A(f"s_mul_i32 s28, s{CH}, 384"); A("s_lshl_b32 s29, s17, 7"); A("s_add_u32 s28, s28, s29")
    A("v_lshl_add_u32 v1, v0, 1, s28")
    A(f"s_lshl_b32 s28, s{CH}, 1"); A("s_and_b32 s28, s28, -4")
    A("s_cmp_lt_u32 s14, 2")
    A("s_waitcnt lgkmcnt(0)")
    for a in range(4): A(f"global_load_ushort v{RAW+a}, v1, s[{LOGA+2*a}:{LOGA+2*a+1}] nt")
    A("s_cbranch_scc1 k_one")
    for a in range(4): A(f"global_load_ushort v{RAW+4+a}, v1, s[{LOGA+2*a}:{LOGA+2*a+1}] offset:128 nt")
    A.label("k_one")
    A(f"s_load_dword s30, s[{LOGDT}:{LOGDT+1}], s28")
    A(f"s_load_dword s31, s[{DSK}:{DSK+1}], s28")
    A("s_barrier")
    nt0 = A.newlabel("mk")
    A("s_lshl_b32 s24, s2, 3"); A("s_add_u32 s24, s24, s3"); A("s_cmp_lg_u32 s24, 71"); A(f"s_cbranch_scc1 {nt0}")
    A(f"s_add_u32 s24, s20, {LAST_OFF}"); A("s_addc_u32 s25, s21, 0")
    A("s_load_dword s28, s[24:25], 0")
    A("v_mov_b32 v16, 0")
    A("s_waitcnt lgkmcnt(0)")
    A("s_add_u32 s28, s28, 1"); A("s_max_u32 s28, s28, 1")
    A("v_mov_b32 v17, s28")
    A("s_mov_b64 exec, 1")
    A(f"global_store_dword v16, v17, s[{DBG}:{DBG+1}] sc1")
    A("global_store_dword v16, v17, s[24:25] sc1")
    A("s_mov_b64 exec, -1")
    A.label(nt0)
    tiles(A)
    A("s_bfe_u32 s9, s10, 0x20002")
    A(f"s_mul_i32 s{REG}, s{LCH}, {HS}"); A(f"s_add_u32 s{REG}, s{REG}, {HB}")
    A(f"s_mul_i32 s19, s9, {SS}"); A(f"s_add_u32 s19, s19, s{REG}"); A("s_mov_b32 m0, s19")
    A("v_and_b32 v17, 15, v0"); A("v_lshrrev_b32 v18, 4, v0"); A("v_mov_b32 v10, 0")
    A("s_mov_b32 s24, 0x%x" % LOG2E); A("s_mov_b32 s25, 0x%x" % LOG2E_LO); A("s_mov_b32 s26, 0x%x" % LN2)
    A("s_mov_b32 s27, 0x41000000"); A("s_mov_b32 s28, 0x43000000")
    A(f"v_mul_u32_u24 v{FA}, {RS}, v17"); A(f"v_lshl_add_u32 v{FA}, v18, 4, v{FA}"); A(f"v_add_u32 v{FA}, s19, v{FA}")
    for i in range(6): A(f"v_pk_mov_b32 {P2(ACC+2*i)}, 0, 0")
    DT, DT2, NDT, ONE = 32, 34, 33, 36
    A(f"v_mov_b32 v{ONE}, 0x3f80")
    A("v_lshlrev_b32 v1, 4, v0")
    A("s_cmp_ge_u32 s3, 4"); A("s_cbranch_scc1 k_nosetup")
    msetup(A)
    A.label("k_nosetup")
    A("s_waitcnt lgkmcnt(0)")
    A(f"s_bitcmp1_b32 s{CH}, 0")
    A("s_cselect_b32 s29, 0, 16")
    A("s_lshl_b32 s30, s30, s29"); A("s_and_b32 s30, s30, 0xffff0000")
    A("s_lshl_b32 s31, s31, s29"); A("s_and_b32 s31, s31, 0xffff0000")
    A("s_cmp_eq_u32 s17, 0"); A("s_cselect_b32 s31, s31, 0")
    A("v_mov_b32 v37, s30")
    A(f"v_writelane_b32 v{ACC}, s31, 0")
    A("v_mul_f32 v38, s24, v37"); A("v_fma_f32 v39, v37, s24, -v38"); A("v_fmac_f32 v39, s25, v37")
    A("v_exp_f32 v38, v38"); A("v_mul_f32 v39, s26, v39"); A("v_fmac_f32 v38, v38, v39")
    A("v_cvt_pk_bf16_f32 v38, v38, v38")
    A(f"v_lshlrev_b32 v{DT}, 16, v38")
    A(f"v_add_f32 v{DT2}, v{DT}, v{DT}"); A(f"v_sub_f32 v{NDT}, 0, v{DT}")
    A("s_waitcnt vmcnt(0)")
    stamp(A, 1)
    A.label("k_loop")
    A1 = 38; TH = 39
    Z, W, Y = 40, 42, 44
    P = 48; T = 224; QA, QB = 226, 228; PK = 240
    QF, PF = 160, 176
    A(f"v_lshlrev_b32 v{T}, 16, v{RAW}"); A(f"v_mul_f32 v{T}, s24, v{T}")
    A(f"v_lshlrev_b32 v{TH}, 16, v{RAW+1}")
    A(f"v_exp_f32 v{T}, v{T}")
    A(f"v_lshlrev_b32 v{P}, 16, v{RAW+2}"); A(f"v_lshlrev_b32 v{P+1}, 16, v{RAW+3}")
    A(f"v_cvt_pk_bf16_f32 v{T}, v{T}, v{T}")
    A(f"v_mul_f32 v{TH}, v{TH}, v{DT}")
    A(f"v_lshlrev_b32 v{T}, 16, v{T}")
    A(f"v_mul_f32 v{TH}, 0.15915494, v{TH}")
    A(f"v_mul_f32 v{A1}, v{T}, v{NDT}")
    A(f"v_pk_mul_f32 {P2(P)}, {P2(P)}, {P2(DT2)} op_sel_hi:[1,0]")
    A(f"v_mul_f32 v{A1}, s24, v{A1}")
    A(f"v_pk_mov_b32 {P2(RAW)}, {P2(RAW+4)}, {P2(RAW+4)} op_sel:[0,1]"); A(f"v_pk_mov_b32 {P2(RAW+2)}, {P2(RAW+6)}, {P2(RAW+6)} op_sel:[0,1]")
    for (R, sc) in ((W, "s27"), (Z, None), (Y, "s28")):
        if sc:
            A(f"v_mul_f32 v{T}, {sc}, v{A1}"); A(f"v_mul_f32 v{T+1}, {sc}, v{TH}")
            A(f"v_exp_f32 v{T}, v{T}"); A(f"v_fract_f32 v{T+1}, v{T+1}")
        else:
            A(f"v_exp_f32 v{T}, v{A1}"); A(f"v_fract_f32 v{T+1}, v{TH}")
        A(f"v_cos_f32 v{R}, v{T+1}"); A(f"v_sin_f32 v{R+1}, v{T+1}")
        A("s_nop 0")
        A(f"v_pk_mul_f32 {P2(R)}, {P2(R)}, {P2(T)} op_sel_hi:[1,0]" + (" neg_hi:[1,0]" if R == W else ""))
    pkc = [0]
    def emit(row, r):
        k = PK + pkc[0] % 16; pkc[0] += 1
        A(f"v_cvt_pk_bf16_f32 v{k}, v{r}, v{r+1}")
        pend.append(f"ds_write_addtid_b32 v{k} offset:{row*RS}")
        while len(pend) > OPT["kdepth"]: A(pend.pop(0))
    pend = []
    def rd(base):
        while pend: A(pend.pop(0))
        for t in range(4): A(f"ds_read_b128 v[{base+4*t}:{base+4*t+3}], v{FA} offset:{64*t}")
    def mm(acc, base, n):
        A(f"s_waitcnt lgkmcnt({n})")
        for t in range(4):
            A(f"v_mfma_f32_16x16x32_bf16 v[{acc}:{acc+3}], v[{base+4*t}:{base+4*t+3}], v[{QF+4*t}:{QF+4*t+3}], v[{acc}:{acc+3}]")
    A(f"ds_write_addtid_b32 v{ONE} offset:0")
    qs = W
    for j in range(2, 17):
        dst = QA if j % 2 == 0 else QB
        if j < 16: pcmul(A, dst, qs, W)
        emit(j-1, qs)
        b = j - 1
        if b <= 7: pcmul(A, P+2*b, P+2*b-2, Z)
        qs = dst
    rd(QF)
    loc = {}
    for b in range(0, 8, 2):
        emit(b, P+2*b); emit(b+1, P+2*b+2)
        pcmul(A, T, P+2*b+2, Y); pcmul(A, P+2*b+2, P+2*b, Y)
        emit(8+b+1, T); emit(8+b, P+2*b+2)
        loc[b] = P+2*b+2
    rd(PF)
    def step(b, row):
        s = loc[b]; d = P+2*b if s == P+2*b+2 else P+2*b+2
        pcmul(A, d, s, Y); loc[b] = d
        return (row, d)
    for a in range(2):
        es = [step(b, 4*a + b//2) for b in (0, 2, 4, 6)]
        for e in es: emit(*e)
    for a in range(4):
        es = [step(b, 8 + 2*a + b//4) for b in (0, 4)]
        for e in es: emit(*e)
    rd(PF+16)
    e = step(0, 0)
    for a in range(1, 10):
        n = step(0, a) if a < 9 else None
        emit(*e); e = n
    rd(PF+32)
    mm(ACC, PF, 8); mm(ACC+4, PF+16, 4); mm(ACC+8, PF+32, 0)
    A("s_sub_u32 s14, s14, 1"); A("s_cmp_lg_u32 s14, 0"); A("s_cbranch_scc1 k_loop")
    A("s_cmp_ge_u32 s3, 4"); A("s_cbranch_scc1 k_h")

def kaddr(A):
    sL = REG
    A(f"v_add_u32 v39, s{sL}, v1")
    EB = C0
    A("v_lshlrev_b32 v40, 4, v17"); A(f"v_add_u32 v40, s{sL}, v40")
    A("v_lshl_add_u32 v41, v18, 10, v40"); A(f"v_add_u32 v41, {EB + 2048 - 8}, v41")
    A("v_and_b32 v42, 1, v0"); A("v_lshlrev_b32 v42, 3, v42"); A("v_sub_u32 v42, v41, v42")
    A("v_lshl_add_u32 v43, v18, 9, v40"); A("v_lshl_add_u32 v44, v18, 8, v40")
    A("v_lshrrev_b32 v45, 1, v18"); A("v_lshl_add_u32 v45, v45, 8, v40")
    A("v_and_b32 v46, 1, v18"); A("v_lshl_add_u32 v45, v46, 3, v45")
    A("v_mov_b32 v66, 0"); A("v_mov_b32 v67, 0")
    A("v_and_b32 v46, 7, v0"); A("v_lshlrev_b32 v46, 2, v46"); A(f"v_add_u32 v46, s{sL}, v46")
    A("v_lshlrev_b32 v47, 3, v0"); A(f"v_add_u32 v47, s{sL}, v47")

KC = {xy: 56+n for n, xy in enumerate([(0,0),(0,1),(1,1),(2,2),(2,3),(3,3),(1,2)])}
def kexp0(A):
    K0, K1, K2 = 20, 24, 28
    for r in range(4):
        A(f"v_cvt_pk_bf16_f32 v{48+2*r}, v{K2+r}, v{K2+r}"); A(f"v_mov_b32 v{49+2*r}, v{48+2*r}")
    for (x, y), r in KC.items(): A(f"v_cvt_pk_bf16_f32 v{r}, v{K1+x}, v{K1+y}")
    A(f"v_cvt_pk_bf16_f32 v64, v{K0}, v{K0+1}"); A(f"v_cvt_pk_bf16_f32 v65, v{K0+2}, v{K0+3}")
def kexp1(A):
    EB = C0; c = KC
    for r in range(4): A(f"ds_write2_b64 v41, v[{48+2*r}:{49+2*r}], v[{48+2*r}:{49+2*r}] offset0:{32*r} offset1:{32*r+1}")
    for r in range(4): A(f"ds_write_b16 v42, v{48+2*r} offset:{256*r+16}")
    A("s_mov_b32 exec_lo, 0")
    o = (EB - 4) // 4
    A(f"ds_write2_b32 v43, v{c[0,0]}, v{c[0,0]} offset0:{o} offset1:{o+1}")
    A(f"ds_write2_b32 v43, v{c[0,1]}, v{c[1,1]} offset0:{o+2} offset1:{o+3}")
    A(f"ds_write2_b32 v43, v{c[2,2]}, v{c[2,2]} offset0:{o+64} offset1:{o+65}")
    A(f"ds_write2_b32 v43, v{c[2,3]}, v{c[3,3]} offset0:{o+66} offset1:{o+67}")
    A("s_mov_b32 exec_lo, -1"); A("s_mov_b32 exec_hi, 0")
    o = EB + 512
    A(f"ds_write_b16 v44, v{c[0,0]} offset:{o-2}")
    A(f"ds_write2_b32 v44, v{c[0,0]}, v{c[1,2]} offset0:{o//4} offset1:{o//4+1}")
    A(f"ds_write_b32 v44, v{c[2,2]} offset:{o+8}")
    A(f"ds_write_b16 v44, v{c[3,3]} offset:{o+12}")
    A("s_mov_b64 exec, -1")
    A(f"ds_write_b64 v45, v[64:65] offset:{EB}")
    A(f"ds_write_b32 v46, v66 offset:{C0-32}"); A(f"ds_write_b32 v46, v66 offset:{C1-32}")
    A(f"ds_write_b64 v47, v[66:67] offset:{CU+4096}")
    for i in range(4):
        A(f"ds_read_b128 v[{80+8*i}:{83+8*i}], v39 offset:{EB+1024*i}")
        A(f"ds_read_b32 v{72+i}, v39 offset:{EB+1024*i-4}")
def kexp2(A):
    A("s_waitcnt lgkmcnt(0)")
    for i in range(4):
        b = 80+8*i
        A(f"v_alignbit_b32 v{b+4}, v{b}, v{72+i}, 16")
        for k in range(1, 4): A(f"v_alignbit_b32 v{b+4+k}, v{b+k}, v{b+k-1}, 16")
        A(f"ds_write_b128 v39, v[{b+4}:{b+7}] offset:{C1+1024*i}")

def caddr(A):
    sL = REG
    A("v_lshlrev_b32 v2, 4, v18"); A("v_lshlrev_b32 v6, 5, v17"); A("v_sub_u32 v2, v2, v6")
    A(f"v_add_u32 v2, {CU + 4064 - 3584}, v2"); A(f"v_add_u32 v2, s{sL}, v2")
    A("v_sub_u32 v6, 15, v17"); A("v_and_b32 v7, 1, v6"); A("v_sub_u32 v6, v6, v7")
    A(f"v_mul_u32_u24 v3, {C1-C0}, v7"); A("v_lshl_add_u32 v3, v18, 4, v3")
    A("v_lshlrev_b32 v6, 1, v6"); A("v_sub_u32 v3, v3, v6")
    A(f"v_add_u32 v3, {C0}, v3"); A(f"v_add_u32 v3, s{sL}, v3")
    for i in range(1, 4): A(f"v_add_u32 v{3+i}, {1024*i}, v3")
    A("v_lshlrev_b32 v7, 5, v17"); A("v_lshrrev_b32 v8, 1, v18"); A("v_lshl_add_u32 v7, v8, 4, v7")
    A("v_and_b32 v8, 1, v18"); A("v_lshl_add_u32 v7, v8, 9, v7")

def conv(A):
    Y = 172
    TB = [40, 104]
    def reads(f, extra):
        b = TB[f]; r = []
        for q in range(8):
            r.append(f"ds_read_b128 v[{b+32+4*q}:{b+35+4*q}], v2 offset:{512*(7-q) + extra}")
            o = (512*(q & 1) + extra) // 4
            r.append(f"ds_read2_b32 v[{b+4*q}:{b+4*q+1}], v{3+q//2} offset0:{o} offset1:{o+1}")
            r.append(f"ds_read2_b32 v[{b+4*q+2}:{b+4*q+3}], v{3+q//2} offset0:{o+2} offset1:{o+3}")
        return r
    def mfmas(f):
        b = TB[f]; r = []
        for q in range(8):
            for tau in range(8-q):
                t = q + tau
                r.append(f"v_mfma_f32_16x16x32_bf16 v[{Y+4*t}:{Y+4*t+3}], v[{b+4*q}:{b+4*q+3}], v[{b+32+4*tau}:{b+35+4*tau}], v[{Y+4*t}:{Y+4*t+3}]")
        return r
    def inter(ms, rs):
        for i, m in enumerate(ms):
            A(m)
            if i < len(rs): A(rs[i])
    A("s_waitcnt vmcnt(0)")
    for x in reads(0, 0): A(x)
    stamp(A, 9)
    if OPT["epk"]: A("s_barrier")
    stamp(A, 4)
    if OPT["cprio"]: A(f"s_setprio {OPT['cprio']}")
    A("s_mov_b32 s28, 0")
    lp = A.newlabel("cv")
    A.label(lp)
    A("s_waitcnt lgkmcnt(0)")
    inter(mfmas(0), reads(1, 64) + ["s_add_u32 s28, s28, 1"])
    A("s_waitcnt lgkmcnt(0)")
    inter(mfmas(1), reads(0, 128) + [f"v_add_u32 v{r}, 128, v{r}" for r in range(2, 7)] + ["s_cmp_lt_u32 s28, 4"])
    A(f"s_cbranch_scc1 {lp}")
    stamp(A, 5)
    A(f"s_add_u32 s30, s31, {YT_OFF}")
    A(f"s_lshr_b32 s28, s{CH}, 3"); A("s_lshl_b32 s28, s28, 8"); A(f"s_and_b32 s29, s{CH}, 7"); A("s_lshl_b32 s29, s29, 2")
    A("s_add_u32 s28, s28, s29"); A(f"s_add_u32 s28, s28, {YF_OFF}")
    O = 104
    for t in range(8):
        A(f"v_cvt_pk_bf16_f32 v{O+2*t}, v{Y+4*t}, v{Y+4*t+1}"); A(f"v_cvt_pk_bf16_f32 v{O+2*t+1}, v{Y+4*t+2}, v{Y+4*t+3}")
    A("s_nop 1")
    for p in range(4):
        A(f"v_permlane16_swap_b32 v{O+4*p}, v{O+4*p+2}"); A(f"v_permlane16_swap_b32 v{O+4*p+1}, v{O+4*p+3}")
    A("s_nop 1")
    for p in range(4): A(f"buffer_store_dwordx4 v[{O+4*p}:{O+4*p+3}], v7, s[20:23], s30 offen offset:{1024*p} sc1")
    A("s_setprio 0")
    flag_store(A, "s28", 2, 8, 80*256)
    A(f"v_mov_b32 v4, {FLG}"); A("v_mov_b32 v5, 0"); A("ds_write_b32 v4, v5")
    stamp(A, 6)

def hbar(A, i):
    if OPT["hdiag"] == 2: _stamp0(A, i + 2)
    A("s_barrier")
    if OPT["hdiag"] == 1: _stamp0(A, i + 2)

def hwave(A):
    ACC = 20; sL = REG
    def when(cmp, neg=False):
        l = A.newlabel("if"); A(cmp); A(f"s_cbranch_scc{1 if neg else 0} {l}"); return l
    stamp(A, 2)
    A(f"s_add_u32 s8, s2, 256"); A(f"s_cmp_eq_u32 s{LCH}, 0"); A("s_cselect_b32 s8, s2, s8")
    A(f"s_cmp_eq_u32 s{LCH}, 1"); A("s_cselect_b32 s8, 999, s8"); A("s_cselect_b32 s9, s2, 999")
    A(f"v_add_u32 v39, s{sL}, v1")
    A("s_mul_i32 s19, s18, 3072"); A(f"s_add_u32 s19, s19, {KP_OFF}")
    A("s_lshl_b32 s18, s18, 7"); A(f"s_add_u32 s18, s18, {KF_OFF}")
    l = when("s_cmp_eq_u32 s16, 0")
    for i in range(3): A(f"buffer_store_dwordx4 v[{ACC+4*i}:{ACC+4*i+3}], v1, s[20:23], s19 offen offset:{1024*i} sc1")
    A.label(l)
    A("s_barrier")
    A("v_lshlrev_b32 v33, 2, v0"); A(f"v_add_u32 v33, {GL}, v33"); A("ds_read_b32 v32, v33")
    for i in range(3): A(f"ds_read_b128 v[{80+4*i}:{83+4*i}], v39 offset:{SS + 1024*i}")
    for i in range(3): A(f"ds_read_b128 v[{92+4*i}:{95+4*i}], v39 offset:{2*SS + 1024*i}")
    A("s_waitcnt lgkmcnt(0)")
    l = when("s_cmp_ge_u32 s16, 1")
    for i in range(12): A(f"v_add_f32 v{ACC+i}, v{ACC+i}, v{80+i}")
    A.label(l)
    l = when("s_cmp_ge_u32 s16, 2")
    for i in range(12): A(f"v_add_f32 v{ACC+i}, v{ACC+i}, v{92+i}")
    A.label(l)
    hbar(A, 0)
    stamp(A, 12)
    def flags():
        l = when("s_cmp_lt_u32 s8, 320")
        A("s_lshr_b32 s26, s8, 5"); A("s_lshl_b32 s26, s26, 8"); A("s_and_b32 s27, s8, 31"); A("s_lshl_b32 s27, s27, 2")
        A("s_add_u32 s26, s26, s27"); A(f"s_add_u32 s26, s26, {UF_OFF}")
        flag_store(A, "s26", 70)
        A.label(l)
        l = when("s_cmp_eq_u32 s16, 0")
        flag_store(A, "s18", 70, wait=False)
        A.label(l)
        l = when("s_cmp_lt_u32 s9, 240")
        A("s_mul_i32 s26, s9, 2731"); A("s_lshr_b32 s26, s26, 16"); A("s_mul_i32 s26, s26, 160"); A("s_lshl_b32 s27, s9, 2")
        A("s_add_u32 s26, s26, s27"); A(f"s_add_u32 s26, s26, {WF_OFF}")
        flag_store(A, "s26", 70)
        A.label(l)
    tag_get(A, 40)
    A("s_waitcnt vmcnt(0)")
    flags()
    l = when(f"s_cmp_eq_u32 s{LCH}, 2")
    A("s_mov_b32 s13, 0x%x" % NLOG2E)
    for m in ("quad_perm:[1,0,3,2]", "quad_perm:[2,3,0,1]", "row_half_mirror"):
        A("s_nop 1"); A(f"v_add_f32_dpp v32, v32, v32 {m} row_mask:0xf bank_mask:0xf")
    A("v_mul_f32 v32, s13, v32"); A("v_exp_f32 v32, v32"); A(f"v_mov_b32 v33, s{TAG}")
    A("v_add_f32 v32, 1.0, v32"); A("v_rcp_f32 v32, v32")
    A("s_lshl_b32 s14, s2, 6"); A(f"s_add_u32 s14, s14, {GG_OFF}")
    A("s_mov_b32 exec_lo, 0x01010101"); A("s_mov_b32 exec_hi, 0x01010101")
    A("buffer_store_dwordx2 v[32:33], v0, s[20:23], s14 offen sc1")
    A("s_mov_b64 exec, -1")
    A.label(l)
    hbar(A, 1)
    caddr(A); kaddr(A)
    for i in range(32): A(f"v_mov_b32 v{172+i}, 0")
    A("v_and_b32 v68, 31, v0"); A("v_lshlrev_b32 v68, 2, v68")
    A(f"s_lshr_b32 s29, s{CH}, 6"); A("s_lshl_b32 s29, s29, 8"); A(f"s_add_u32 s29, s29, {UF_OFF}")
    A(f"s_lshl_b32 s31, s{CH}, 12"); A(f"s_add_u32 s30, s31, {UR_OFF}")
    A(f"s_add_u32 m0, s{sL}, {CU}")
    hbar(A, 2)
    hbar(A, 3)
    hbar(A, 4)
    def check(va, so, vd):
        ok = A.newlabel("ok")
        A(f"v_cmp_ne_u32 vcc, s{TAG}, v{vd}"); A(f"s_cbranch_vccz {ok}")
        poll(A, va, so, vd)
        A.label(ok)
    A("v_mov_b32 v74, 0")
    hbar(A, 5)
    l = when(f"s_cmp_eq_u32 s{LCH}, 0")
    A("v_min_u32 v74, 47, v0"); A("v_cmp_lt_u32 vcc, 23, v74"); A("v_lshlrev_b32 v74, 2, v74"); A("v_add_u32 v75, 160, v74")
    A("v_cndmask_b32 v74, v74, v75, vcc")
    A("s_mul_i32 s26, s7, 5"); A("s_lshr_b32 s26, s26, 2"); A("s_lshl_b32 s26, s26, 8"); A(f"s_add_u32 s26, s26, {WF_OFF}")
    A("buffer_load_dword v75, v74, s[20:23], s26 offen sc1")
    A("s_waitcnt vmcnt(0)")
    check(74, "s26", 75)
    A.label(l)
    hbar(A, 6)
    A("buffer_load_dword v69, v68, s[20:23], s29 offen sc1")
    A("v_mov_b32 v70, 0")
    l = when(f"s_cmp_eq_u32 s{RMT}, 1")
    A("buffer_load_dword v71, v70, s[20:23], s18 offen sc1")
    A.label(l)
    A("s_waitcnt vmcnt(0)")
    l = when("s_cmp_eq_u32 s17, 0")
    check(68, "s29", 69)
    for i in range(4): A(f"buffer_load_dwordx4 v1, s[20:23], s30 offen offset:{1024*i} sc1 lds")
    A.label(l)
    l = when(f"s_cmp_eq_u32 s{RMT}, 1")
    check(70, "s18", 71)
    for i in range(3): A(f"buffer_load_dwordx4 v[{80+4*i}:{83+4*i}], v1, s[20:23], s19 offen offset:{1024*i} sc1")
    A.label(l)
    stamp(A, 3)
    A("v_lshlrev_b32 v170, 3, v0")
    A("s_lshl_b32 s24, s6, 9"); A(f"s_add_u32 s24, s24, {GG_OFF}")
    A("buffer_load_dwordx2 v[168:169], v170, s[20:23], s24 offen sc1")
    A(f"v_mov_b32 v8, {FLG}")
    l = when("s_cmp_eq_u32 s16, 0")
    hbar(A, 9)
    if OPT["epk"]: A("s_barrier")
    lds_wait(A, 8, 9, "v_cmp_ne_u32 vcc, 0", sleep=4)
    A("s_branch k_fin")
    A.label(l)
    l = when(f"s_cmp_eq_u32 s{RMT}, 1")
    A("s_waitcnt vmcnt(1)")
    for i in range(12): A(f"v_add_f32 v{ACC+i}, v{ACC+i}, v{80+i}")
    A.label(l)
    kexp0(A)
    lds_wait(A, 8, 9, "v_cmp_ne_u32 vcc, 0", off=40)
    kexp1(A)
    hbar(A, 9)
    kexp2(A)
    conv(A)

def finpre(A):
    sH = LCH; sL = REG
    A("s_mul_i32 s26, s7, 2560"); A("s_lshr_b32 s25, s6, 2"); A("s_mul_i32 s25, s25, 20480"); A("s_add_u32 s26, s26, s25"); A(f"s_add_u32 s26, s26, {YF_OFF}")
    A("v_and_b32 v3, 7, v0")
    A("v_lshrrev_b32 v8, 3, v0"); A("v_lshlrev_b32 v8, 12, v8"); A("v_lshl_add_u32 v8, v3, 4, v8")
    A("s_mul_i32 s27, s7, 327680"); A("s_lshl_b32 s28, s6, 7"); A("s_add_u32 s27, s27, s28"); A(f"s_add_u32 s27, s27, {YT_OFF}")
    A("v_bfe_u32 v2, v0, 2, 2"); A("v_lshlrev_b32 v2, 7, v2")
    A("v_lshrrev_b32 v3, 4, v0"); A("v_lshl_add_u32 v2, v3, 5, v2")
    A("v_and_b32 v3, 3, v0"); A("v_lshl_add_u32 v2, v3, 3, v2"); A(f"v_add_u32 v2, s{sL}, v2")
    A(f"s_mul_i32 s28, s{sH}, 48"); A(f"s_add_u32 s28, s28, s{sL}")
    A("v_lshlrev_b32 v3, 4, v0"); A("v_add_u32 v3, s28, v3")
    A("v_lshlrev_b32 v7, 4, v0"); A(f"v_add_u32 v7, s{sL}, v7")
    A("s_waitcnt vmcnt(0)")
    ok = A.newlabel("ok")
    A(f"v_cmp_ne_u32 vcc, s{TAG}, v169"); A(f"s_cbranch_vccz {ok}")
    poll(A, 170, "s24", 168, 2, tagreg=169)
    A.label(ok)
    A("v_cvt_pk_bf16_f32 v14, v168, 0"); A("v_lshlrev_b32 v15, 16, v14")
    A("v_sub_f32 v12, 1.0, v15"); A("v_cvt_pk_bf16_f32 v12, v12, 0"); A("v_lshlrev_b32 v13, 16, v12")
    A(f"ds_write_b128 v7, v[12:15] offset:{OMG}")
    A(f"s_lshl_b32 s29, s{sH}, 8"); A("s_add_u32 s12, s29, s26"); A("s_add_u32 s13, s12, 768"); A("s_add_u32 s14, s12, 1536")
    A(f"s_add_u32 s15, s26, {9*256}"); A(f"s_cmp_eq_u32 s{sH}, 0"); A("s_cselect_b32 s15, s15, s14")
    lp = A.newlabel("yl"); dn = A.newlabel("yl")
    A("s_mov_b32 s62, 0")
    A.label(lp)
    D = [32, 40, 48, 4]
    for i in range(3): A(f"s_load_dwordx8 s[{D[i]}:{D[i]+7}], s[20:21], s{12+i} glc")
    A("s_load_dwordx4 s[8:11], s[20:21], s15 glc"); A("s_load_dwordx4 s[16:19], s[20:21], s15 offset:16 glc")
    A("s_addk_i32 s62, 1")
    A("s_waitcnt lgkmcnt(0)")
    regs = list(range(32, 56)) + [8, 9, 10, 11, 16, 17, 18, 19]
    A("s_and_b64 s[28:29], s[32:33], s[34:35]"); A("s_or_b64 s[30:31], s[32:33], s[34:35]")
    for r in regs[4::2]:
        A(f"s_and_b64 s[28:29], s[28:29], s[{r}:{r+1}]"); A(f"s_or_b64 s[30:31], s[30:31], s[{r}:{r+1}]")
    A("s_and_b32 s28, s28, s29"); A("s_or_b32 s30, s30, s31")
    A(f"s_xor_b32 s28, s28, s{TAG}"); A(f"s_xor_b32 s30, s30, s{TAG}"); A("s_or_b32 s28, s28, s30")
    A(f"s_cbranch_scc0 {dn}")
    A(f"s_sleep {OPT['psleep']}")
    A(f"s_cmpk_lt_u32 s62, 0x{SPIN:x}"); A(f"s_cbranch_scc1 {lp}")
    A.label(dn)
    for i in range(4):
        A(f"s_add_u32 s28, s{sH}, {3*i}")
        if i == 3: A(f"s_cmp_lg_u32 s{sH}, 0"); A(f"s_cbranch_scc1 {dn}x")
        A("s_lshl_b32 s28, s28, 15"); A(f"s_add_u32 m0, s{sL}, {1024*i}"); A("s_add_u32 s28, s28, s27")
        A("buffer_load_dwordx4 v8, s[20:23], s28 offen sc1 lds")
    A.label(dn + "x")
    stamp(A, 7)
    A("s_waitcnt vmcnt(0)")
    for i in range(4):
        A(f"ds_read_b64_tr_b16 v[{8+4*i}:{9+4*i}], v2 offset:{1024*i}")
        A(f"ds_read_b64_tr_b16 v[{10+4*i}:{11+4*i}], v2 offset:{1024*i+512}")
    for i in range(4):
        A(f"s_waitcnt lgkmcnt({6-i})" if i < 3 else "s_waitcnt lgkmcnt(3)")
        A(f"ds_write_b128 v3, v[{8+4*i}:{11+4*i}] offset:{A2O + A2S*i}")
    stamp(A, 8)

def build():
    A = Asm()
    A.raw(f"; @launch grid=(256,1,1) block=(512,1,1) lds={LDS_BYTES}")
    A.raw('.amdgcn_target "amdgcn-amd-amdhsa--gfx950"')
    kernel_begin(A, NAME)
    A("s_cmp_ge_u32 s2, 256"); A("s_cbranch_scc1 k_end")
    stamp_begin(A)
    if OPT["probe"] >= 0:
        A("s_memrealtime s[64:65]"); A("s_waitcnt lgkmcnt(0)"); A("s_mov_b32 s66, s64")
    A("s_load_dwordx16 s[32:47], s[0:1], 0")
    A("s_load_dwordx8 s[48:55], s[0:1], 64")
    A("s_load_dwordx4 s[56:59], s[0:1], 96")
    A("s_load_dwordx2 s[20:21], s[0:1], 112")
    A("v_lshrrev_b32 v1, 6, v0"); A("v_and_b32 v0, 63, v0"); A("v_readfirstlane_b32 s3, v1")
    A(f"s_and_b32 s{XCD}, s2, 7"); A(f"s_lshr_b32 s{RR}, s2, 3")
    ev = [(0,1,1,2),(1,1,1,1),(1,2,2,1),(2,1,1,1),(0,0,0,0),(0,0,0,1),(1,0,0,2),(2,0,0,1)]
    od = [(0,1,1,1),(0,2,2,1),(1,1,1,1),(1,2,2,1),(0,0,0,0),(0,0,0,2),(1,0,0,2),(2,0,2,0)]
    enc = lambda t: sum((r | (sl << 2) | (p << 4) | (c << 6)) << (8*i) for i, (r, sl, p, c) in enumerate(t))
    A(f"s_mov_b32 s10, 0x{enc(ev) & 0xffffffff:x}"); A(f"s_mov_b32 s11, 0x{enc(ev) >> 32:x}")
    A("s_cmp_eq_u32 s3, 4"); A("s_cbranch_scc1 k_l")
    A(f"s_lshr_b32 s18, s{RR}, 1"); A("s_lshl_b32 s18, s18, 3"); A(f"s_add_u32 s18, s18, s{XCD}")
    A(f"s_and_b32 s8, s{RR}, 1")
    A(f"s_cselect_b32 s10, 0x{enc(od) & 0xffffffff:x}, s10"); A(f"s_cselect_b32 s11, 0x{enc(od) >> 32:x}, s11")
    A("s_lshl_b32 s9, s3, 3"); A("s_lshr_b64 s[10:11], s[10:11], s9")
    A(f"s_and_b32 s{LCH}, s10, 3"); A("s_bfe_u32 s17, s10, 0x20004"); A("s_bfe_u32 s16, s10, 0x20006")
    A("s_cmp_lt_u32 s3, 4"); A("s_cselect_b32 s14, s16, 1")
    A("s_mul_i32 s9, s8, 3"); A(f"s_add_u32 s9, s9, s{LCH}")
    A(f"s_cmp_eq_u32 s{LCH}, 2"); A("s_cselect_b32 s9, 2, s9"); A("s_cselect_b32 s13, s16, 0")
    A(f"s_mul_i32 s{CH}, s18, 5"); A(f"s_add_u32 s{CH}, s{CH}, s9")
    kpass(A)
    kgive(A)
    mwave(A)
    A.label("k_post")
    post(A)
    stamp_end(A, 0)
    if OPT["probe"] >= 0:
        A("s_waitcnt vmcnt(0)")
        stamp(A, 13)
        A("s_cmp_lg_u32 s3, 1"); A("s_cbranch_scc1 k_end")
        A(f"s_cmp_lg_u32 s2, {OPT['pwg']}"); A("s_cbranch_scc1 k_end")
        A("s_sub_u32 s70, s66, s64"); A(f"s_mul_i32 s70, s70, {OPT['pk']}"); A("s_min_u32 s70, s70, 20000")
        A("s_memrealtime s[68:69]"); A("s_waitcnt lgkmcnt(0)")
        A.label("k_pr")
        A("s_memrealtime s[72:73]"); A("s_waitcnt lgkmcnt(0)")
        A("s_sub_u32 s72, s72, s68"); A("s_cmp_lt_u32 s72, s70"); A("s_cbranch_scc1 k_pr")
    A.label("k_end")
    A("s_endpgm")
    A.label("k_h")
    A(f"s_mov_b32 s{RMT}, s13")
    hwave(A)
    A.label("k_fin")
    finpre(A)
    A("s_branch k_post")
    A.label("k_l")
    loader(A)
    A("s_branch k_post")
    for sl, bk, reg, off in A.tail_code:
        A.label(sl); lds_wait(A, 7, reg, "v_cmp_ne_u32 vcc, 0", off=off); A(f"s_branch {bk}")
    A.label("k_last")
    A("s_endpgm")
    kernel_desc(A, NAME, 256, 102)
    if OPT["m16"]:
        out = []; L = A.lines; i = 0
        while i < len(L):
            if "@" in L[i] and "mfma" in L[i]:
                m1, m2 = L[i].split("@"); out.append(m1)
                if "ds_read" in L[i+1]: out.append(L[i+1]); i += 1
                out.append("    " + m2)
            else: out.append(L[i])
            i += 1
        A.lines = out
    return re.sub(r"^    (\w+:)$", r"\1", A.text(), flags=re.M)

if __name__ == "__main__":
    gen1.DIAG = "--diag" in sys.argv
    for a in sys.argv[2:]:
        if "=" in a:
            k, v = a.split("="); OPT[k] = eval(v)
    open(sys.argv[1], "w").write(build())
```

```python
import sys, re, copy
from asmlib import *
import gen1
from gen1 import LOG2E, NLOG2E, LOG2E_LO, LN2, stamp, stamp_begin, stamp_end
NAME = "gated_mix__ssm_conv_s4d__swiglu_ffn__prompt_kernel"
OPT = dict(pk=4, pwg=77, probe=-1, hdiag=0, mprio=2, epk=4, barks=2, barg=5, fpos=(3,0), kdepth=8, thr2=0, cprio=1, psleep=1, wb=(0,0), lbar=40, ald=(16,3), xord=2, nt=7, xp=0, m16=0, thr0=0, clate=0, bark=0)
H_OFF = 0
UR_OFF = 6291456
YT_OFF = UR_OFF + 2621440
GG_OFF = YT_OFF + 2621440
HF_OFF = GG_OFF + 16384
UF_OFF = HF_OFF + 128*256
YF_OFF = UF_OFF + 16*256
WF_OFF = YF_OFF + 8*80*256
KF_OFF = WF_OFF + 16*256
KP_OFF = KF_OFF + 128*128
LAST_OFF = KP_OFF + 128*3072
WDF_OFF = 12 << 20
WS_BYTES = 1 << 25
GB = 16384; UB = GB + 12288 + 32; STG = 41024
HB = 3*STG; HS = 13184
FLG = HB + 3*HS
FT = FLG + 120
GL = FT + 256
LDS_BYTES = GL + 256
RS = 272; SS = 16*RS
C0 = 64; C1 = C0 + 4160; CU = 8448
A2O = 4096; A2S = 1072; OMG = 8704
TB2 = 2*STG; GXO = TB2 + 24576; GWO = TB2 + 34816
PB = 176
PR = 336; PW = 64*PR
SPIN = 0x3000
U, LOGA, LOGDT, DSK, WG, WU, WD, GW, OUT, DBG = 32, 34, 42, 44, 48, 50, 52, 54, 56, 58
XCD, RR, R4, C2, LCH, REG = 96, 97, 98, 99, 100, 101
CH, TAG, RMT = 60, 61, 47
_stamp0 = stamp
def stamp(A, i, real=False):
    if OPT["hdiag"] and i != 1: return
    _stamp0(A, i, real)
    if OPT["probe"] == i:
        A("s_memrealtime s[66:67]"); A("s_waitcnt lgkmcnt(0)")
def P2(b): return f"v[{b}:{b+1}]"

def lds_wait(A, vaddr, vtmp, cond, off=0, sleep=0):
    l = A.newlabel("lw"); d = A.newlabel("lw")
    A("s_mov_b32 s62, 0")
    A.label(l)
    A(f"ds_read_b32 v{vtmp}, v{vaddr} offset:{off}")
    A("s_addk_i32 s62, 1")
    A("s_waitcnt lgkmcnt(0)")
    A(f"{cond}, v{vtmp}")
    A(f"s_cbranch_vccz {d}")
    if sleep: A(f"s_sleep {sleep}")
    A("s_cmpk_lt_u32 s62, 0x7000")
    A(f"s_cbranch_scc1 {l}")
    A.label(d)

def poll(A, vaddr, soff, vdst, n=1, tagreg=None):
    l = A.newlabel("pl"); d = A.newlabel("pl")
    tagreg = vdst if tagreg is None else tagreg
    A("s_mov_b32 s62, 0")
    A.label(l)
    A(f"buffer_load_dword{'x2' if n == 2 else ''} {vr(vdst, n)}, v{vaddr}, s[20:23], {soff} offen sc1")
    A("s_addk_i32 s62, 1")
    A("s_waitcnt vmcnt(0)")
    A(f"v_cmp_ne_u32 vcc, s{TAG}, v{tagreg}")
    A(f"s_cbranch_vccz {d}")
    A(f"s_sleep {OPT['psleep']}")
    A(f"s_cmpk_lt_u32 s62, 0x{SPIN:x}")
    A(f"s_cbranch_scc1 {l}")
    A.label(d)

def flag_store(A, soff, vt, rep=1, stride=0, wait=True):
    A(f"v_mov_b32 v{vt}, s{TAG}")
    A(f"v_mul_u32_u24 v{vt+1}, {stride}, v0")
    A(f"s_mov_b64 exec, {(1 << rep) - 1}")
    if wait: A("s_waitcnt vmcnt(0)")
    A(f"buffer_store_dword v{vt}, v{vt+1}, s[20:23], {soff} offen sc1")
    A("s_mov_b64 exec, -1")

def tag_get(A, vt, issued=False):
    l = A.newlabel("tg"); d = A.newlabel("tg")
    if not issued: A(f"s_load_dword s{TAG}, s[{DBG}:{DBG+1}], 0")
    A("s_mov_b32 s62, 0")
    A("s_waitcnt lgkmcnt(0)")
    A.label(l)
    A(f"s_cmp_lg_u32 s{TAG}, 0"); A(f"s_cbranch_scc1 {d}")
    A(f"v_mov_b32 v{vt}, 0")
    A(f"global_load_dword v{vt}, v{vt}, s[{DBG}:{DBG+1}] sc1")
    A("s_addk_i32 s62, 1")
    A("s_waitcnt vmcnt(0)")
    A(f"v_readfirstlane_b32 s{TAG}, v{vt}")
    A(f"s_sleep {OPT['psleep']}")
    A(f"s_cmpk_lt_u32 s62, 0x{SPIN:x}"); A(f"s_cbranch_scc1 {l}")
    A.label(d)

def spoll(A, soff, n, sleep):
    l = A.newlabel("sp"); d = A.newlabel("sp")
    A("s_mov_b32 s62, 0")
    A.label(l)
    A(f"s_load_dword{'x8 s[36:43]' if n == 8 else ' s36'}, s[20:21], {soff} glc")
    A("s_addk_i32 s62, 1")
    A("s_waitcnt lgkmcnt(0)")
    if n == 8:
        A("s_min_u32 s44, s36, s37"); A("s_max_u32 s45, s36, s37")
        for i in range(2, 8):
            A(f"s_min_u32 s44, s44, s{36+i}"); A(f"s_max_u32 s45, s45, s{36+i}")
        A(f"s_xor_b32 s44, s44, s{TAG}"); A(f"s_xor_b32 s45, s45, s{TAG}"); A("s_or_b32 s44, s44, s45")
    else:
        A(f"s_cmp_lg_u32 s36, s{TAG}")
    A(f"s_cbranch_scc0 {d}")
    A(f"s_sleep {sleep}")
    A(f"s_cmpk_lt_u32 s62, 0x{SPIN:x}"); A(f"s_cbranch_scc1 {l}")
    A.label(d)

def tiles(A):
    A(f"s_and_b32 s4, s{RR}, 15"); A(f"s_lshl_b32 s5, s{XCD}, 1"); A(f"s_lshr_b32 s6, s{RR}, 4"); A("s_add_u32 s5, s5, s6")
    A(f"s_lshr_b32 s6, s{XCD}, 1"); A("s_lshl_b32 s6, s6, 3"); A(f"s_and_b32 s7, s{RR}, 7"); A("s_add_u32 s6, s6, s7")
    A(f"s_and_b32 s7, s{XCD}, 1"); A("s_lshl_b32 s7, s7, 2"); A(f"s_lshr_b32 s22, s{RR}, 3"); A("s_add_u32 s7, s7, s22")
    A("s_mov_b32 s22, 0x%x" % WS_BYTES); A("s_mov_b32 s23, 0x20000")

def loader(A):
    A("s_getpc_b64 s[24:25]")
    A.label("k_pc")
    A(f"s_sub_u32 s24, s24, k_pc - {NAME}"); A("s_subb_u32 s25, s25, 0")
    A(f"v_lshlrev_b32 v8, 5, v0"); A(f"v_add_u32 v8, s{RR}, v8"); A("v_lshlrev_b32 v8, 7, v8")
    A(f"v_min_u32 v8, k_last - {NAME}, v8")
    A("v_mov_b32 v23, s25"); A("v_add_co_u32 v22, vcc, s24, v8"); A("v_addc_co_u32 v23, vcc, 0, v23, vcc")
    def ct():
        A("s_mov_b64 exec, 0xff"); A("global_load_dword v24, v[22:23], off"); A("s_mov_b64 exec, -1")
    if not OPT["clate"]: ct()
    A("v_lshlrev_b32 v8, 2, v0"); A(f"v_add_u32 v8, {FLG}, v8"); A("v_mov_b32 v9, 1")
    A("ds_write_b32 v8, v9")
    A(f"s_and_b32 s24, s{RR}, 15"); A("s_mul_i32 s24, s24, 12288"); A(f"s_mul_i32 s25, s{XCD}, 384"); A("s_add_u32 s24, s24, s25")
    A("v_min_u32 v18, 59, v0"); A("v_mul_u32_u24 v19, 43, v18"); A("v_lshrrev_b32 v19, 9, v19")
    A("v_mul_u32_u24 v9, 171, v18"); A("v_lshrrev_b32 v9, 9, v9")
    A("v_mul_u32_u24 v19, %d, v19" % (196608 - 4*3072)); A("v_mul_u32_u24 v9, %d, v9" % (3072 - 384))
    A("v_lshl_add_u32 v18, v18, 7, v19"); A("v_add3_u32 v18, v18, v9, s24")
    A("v_lshrrev_b32 v8, 3, v0"); A("v_mul_u32_u24 v8, 1280, v8"); A("v_and_b32 v10, 7, v0"); A("v_lshl_add_u32 v16, v10, 4, v8")
    A("s_and_b32 s26, s2, 31"); A("s_lshr_b32 s27, s2, 5")
    A("s_mul_i32 s28, s26, 81920"); A("s_lshl_b32 s27, s27, 7"); A("s_add_u32 s28, s28, s27")
    A("s_mov_b32 s10, 2621440"); A("s_mov_b32 s11, 0x20000")
    A(f"s_cmp_ge_u32 s{RR}, 16")
    A("s_waitcnt lgkmcnt(0)")
    A(f"s_cselect_b32 s24, s{WU}, s{WG}"); A(f"s_cselect_b32 s25, s{WU+1}, s{WG+1}")
    A(f"s_mov_b32 s8, s{U}"); A(f"s_mov_b32 s9, s{U+1}")
    A("s_barrier")
    stamp(A, 1)
    if OPT["clate"]: ct()
    A("global_load_dword v20, v18, s[24:25] nt")
    def utile(h):
        for i in range(8):
            A(f"s_mov_b32 m0, {TB2 + 8192*h + 1024*i}"); A(f"v_xor_b32 v17, {16*i}, v16")
            A("buffer_load_dwordx4 v17, s[8:11], s28 offen lds"); A("s_add_u32 s28, s28, 10240")
    utile(0)
    A(f"s_mov_b32 s36, s{WD}"); A(f"s_mov_b32 s37, s{WD+1}"); A("s_mov_b32 s38, 1966080"); A("s_mov_b32 s39, 0x20000")
    A("s_mul_i32 s27, s2, 2731"); A("s_lshr_b32 s27, s27, 16"); A("s_mul_i32 s26, s27, 24"); A("s_sub_u32 s26, s2, s26")
    A("s_mul_i32 s45, s26, 81920"); A("s_lshl_b32 s27, s27, 7"); A("s_add_u32 s45, s45, s27"); A("s_sub_u32 s45, s45, 10240")
    n1 = A.newlabel("n1"); n2 = A.newlabel("n2")
    A("s_cmp_ge_u32 s2, 240"); A(f"s_cbranch_scc1 {n1}")
    for i in range(8):
        A(f"s_mov_b32 m0, {TB2 + 8192 + 1024*i}"); A("s_add_u32 s45, s45, 10240")
        A("buffer_load_dwordx4 v16, s[36:39], s45 offen nt lds")
    A.label(n1)
    A("s_cmp_ge_u32 s2, 64"); A(f"s_cbranch_scc1 {n2}")
    A(f"s_sub_u32 s28, s28, {81920 - 1024}")
    utile(2)
    A.label(n2)
    A("v_lshlrev_b32 v1, 4, v0"); A("v_mov_b32 v14, 0x7ffffff0")
    A(f"s_mov_b32 s40, s{GW}"); A(f"s_mov_b32 s41, s{GW+1}"); A("s_mov_b32 s42, 1280"); A("s_mov_b32 s43, 0x20000")
    A("s_mul_i32 s46, s2, 10240")
    for (o, n) in ((0, 4), (4096, 4), (8192, 2)):
        A(f"s_mov_b32 m0, {GXO + o}"); A(f"s_add_u32 s28, s46, {o}")
        for i in range(n): A(f"buffer_load_dwordx4 v1, s[8:11], s28 offen offset:{1024*i} lds")
    A(f"s_mov_b32 m0, {GWO}"); A("v_add_u32 v19, %d, v18" % (5*196608))
    for i in range(2): A(f"buffer_load_dwordx4 v1, s[40:43], 0 offen offset:{1024*i} lds")
    A(f"s_mov_b32 m0, {FT}"); A("s_nop 0")
    A("buffer_load_dword v14, s[8:11], 0 offen lds")
    A("global_load_dword v21, v19, s[24:25] nt")
    tiles(A)
    A("v_lshrrev_b32 v9, 4, v0"); A("v_xor_b32 v9, v9, v10"); A("v_lshl_add_u32 v2, v9, 4, v8")
    A("v_xor_b32 v9, 4, v9"); A("v_lshl_add_u32 v3, v9, 4, v8")
    A(f"v_add_u32 v3, {10240-1024}, v3"); A(f"v_add_u32 v4, {20480-2048}, v2"); A(f"v_add_u32 v5, {20480-2048}, v3")
    for i in range(3):
        A(f"v_add_u32 v9, {64*i}, v0"); A("v_mul_u32_u24 v10, 5462, v9"); A("v_lshrrev_b32 v10, 16, v10")
        A("v_mul_u32_u24 v10, 2880, v10"); A(f"v_lshl_add_u32 v{11+i}, v0, 4, v10")
    A("v_mov_b32 v51, 0")
    A("s_mul_i32 s26, s4, 163840"); A("s_mul_i32 s27, s5, 192")
    A("s_mov_b32 s29, 0"); A("s_mov_b32 s30, 0"); A(f"s_mov_b32 s31, {FT-4}")
    A(f"s_mov_b32 s12, s{WG}"); A(f"s_mov_b32 s13, s{WG+1}"); A("s_mov_b32 s14, 1966080"); A("s_mov_b32 s15, 0x20000")
    A(f"s_mov_b32 s16, s{WU}"); A(f"s_mov_b32 s17, s{WU+1}"); A("s_mov_b32 s18, 1966080"); A("s_mov_b32 s19, 0x20000")
    def flag(fill):
        A("s_mov_b32 m0, s31"); A(fill)
        A("buffer_load_dword v14, s[8:11], 0 offen lds")
    def tail():
        flag("s_sub_u32 s31, s31, 4")
        A(f"s_add_u32 s29, s29, {STG}"); A(f"s_cmp_eq_u32 s29, {3*STG}"); A("s_cselect_b32 s29, 0, s29")
        A("s_add_u32 s30, s30, 1")
    l1 = A.newlabel("ld")
    cnt = [0]
    extra = {1: [f"s_add_u32 s33, s29, {STG}"], 2: [f"s_cmp_eq_u32 s33, {3*STG}", "s_cselect_b32 s33, 0, s33"], 4: ["s_add_u32 s30, s30, 1"],
             26: ["s_add_u32 s26, s26, 128"], 37: ["s_add_u32 s27, s27, 196608"], 40: ["s_mov_b32 s29, s33"]}
    def dma(x):
        A(x); cnt[0] += 1
        for e in extra.get(cnt[0], []): A(e)
        if cnt[0] == OPT["lbar"]:
            sk = A.newlabel("sk")
            A("s_bitcmp1_b32 s34, s30"); A(f"s_cbranch_scc1 {sk}")
            A("s_barrier")
            A.label(sk)
    def xq(q):
        A(f"s_add_u32 m0, s29, {4096*q}"); A(f"s_add_u32 s28, s26, {40960*q}")
        for i in range(4): dma(f"buffer_load_dwordx4 v{2+i}, s[8:11], s28 offen offset:{1024*i} lds")
    def wq(q):
        A(f"s_add_u32 m0, s29, {GB + 3072*q}"); A(f"s_add_u32 s28, s27, {49152*q}")
        for i in range(3): dma(f"buffer_load_dwordx4 v{11+i}, s[12:15], s28 offen offset:{1024*i} lds")
        A(f"s_add_u32 m0, s29, {UB + 3072*q}"); A("s_nop 0")
        for i in range(3): dma(f"buffer_load_dwordx4 v{11+i}, s[16:19], s28 offen offset:{1024*i} lds")
    def fl():
        A("s_mov_b32 m0, s31"); A("s_sub_u32 s31, s31, 4")
        dma("buffer_load_dword v14, s[8:11], 0 offen lds")
    A("s_mov_b32 s34, 0x402")
    A.label(l1)
    if OPT["xord"] == 0: wq(0); xq(0); xq(1); wq(1); xq(2); xq(3)
    elif OPT["xord"] == 1: xq(0); xq(1); xq(2); xq(3); wq(0); wq(1)
    elif OPT["xord"] == 2: wq(0); wq(1); xq(0); xq(1); xq(2); xq(3)
    fl(); wq(2); wq(3); fl()
    A("s_cmp_lt_u32 s30, 10"); A(f"s_cbranch_scc1 {l1}")
    stamp(A, 2)
    for p in OPT["wb"]:
        if p == 0: A("s_barrier")
    A("s_mul_i32 s26, s7, 245760"); A(f"s_add_u32 s26, s26, {WDF_OFF + 30720}")
    l2 = A.newlabel("ld"); l4 = A.newlabel("ld")
    def bars(n, cur):
        for p in OPT["wb"]:
            if p and p % 40 == n % 40:
                sk = A.newlabel("sk")
                A(f"s_cmp_lg_u32 s30, {10 + p//40}"); A(f"s_cbranch_scc1 {sk}"); A("s_barrier"); A.label(sk)
    A.label(l2)
    for w in range(4):
        for (o, n) in ((0, 4), (4096, 4), (8192, 2)):
            A(f"s_add_u32 m0, s29, {10240*w + o}"); A(f"s_add_u32 s28, s26, {61440*w + o}")
            if OPT["thr2"]: A(f"s_waitcnt vmcnt({OPT['thr2']})")
            for i in range(n): A(f"buffer_load_dwordx4 v1, s[20:23], s28 offen offset:{1024*i} sc1 lds")
        if w < 3: bars(10*w + 10, 0)
    tail()
    bars(40, 1)
    A("s_add_u32 s26, s26, 10240")
    A("s_cmp_lt_u32 s30, 13"); A(f"s_cbranch_scc1 {l2}")
    stamp(A, 3)

ACC1 = 64
def msetup(A):
    A("s_lshr_b32 s8, s3, 1"); A("s_and_b32 s9, s3, 1")
    A("v_and_b32 v8, 31, v0"); A("v_lshrrev_b32 v9, 5, v0")
    A("v_bfe_u32 v10, v0, 1, 3"); A("v_xor_b32 v10, v10, v9")
    A("v_lshlrev_b32 v14, 7, v8"); A("s_lshl_b32 s10, s8, 13"); A("v_add_u32 v14, s10, v14")
    for ks in range(4):
        A(f"v_xor_b32 v12, {2*ks}, v10"); A(f"v_lshl_add_u32 v{2+ks}, v12, 4, v14")
    A("v_bfe_u32 v12, v0, 2, 2"); A("v_lshl_add_u32 v12, v9, 3, v12"); A("v_mul_u32_u24 v6, 192, v12")
    A("v_and_b32 v12, 3, v0"); A("v_lshl_add_u32 v6, v12, 3, v6")
    A("v_bfe_u32 v12, v0, 4, 1"); A(f"v_mul_u32_u24 v12, {UB-GB}, v12"); A("v_add_u32 v6, v6, v12")
    A("s_mul_i32 s10, s9, 96"); A(f"s_add_u32 s10, s10, {GB}"); A("v_add_u32 v6, s10, v6")
    A(f"v_mov_b32 v7, {FT-8}")
    for i in range(48): A(f"v_pk_mov_b32 {P2(ACC1+2*i)}, 0, 0")
    A("s_mov_b32 s54, 0x%x" % NLOG2E); A("s_mov_b32 s55, 0x%x" % NLOG2E)
    A("v_and_b32 v10, 15, v0"); A("v_lshlrev_b32 v10, 4, v10"); A("v_lshl_add_u32 v10, v9, 8, v10")
    A("v_bfe_u32 v12, v0, 4, 1"); A("v_lshl_add_u32 v10, v12, 10, v10")
    A("s_lshl_b32 s18, s4, 1"); A("s_add_u32 s18, s18, s8")
    A("s_mul_i32 s11, s18, 196608"); A("s_mul_i32 s12, s5, 6"); A("s_mul_i32 s13, s9, 3"); A("s_add_u32 s12, s12, s13")
    for nt in range(3):
        A(f"s_add_u32 s13, s12, {nt}")
        A("s_lshr_b32 s10, s13, 1"); A("s_lshl_b32 s10, s10, 12")
        A("s_and_b32 s13, s13, 1"); A("s_lshl_b32 s13, s13, 9"); A("s_add_u32 s10, s10, s13")
        A(f"s_add_u32 s{48+nt}, s10, s11")
    A("s_lshl_b32 s51, s18, 2"); A("s_lshr_b32 s10, s5, 2"); A("s_add_u32 s51, s51, s10"); A("s_lshl_b32 s51, s51, 8")
    A("s_and_b32 s10, s5, 3"); A("s_lshl_b32 s10, s10, 1"); A("s_add_u32 s10, s10, s9"); A("s_lshl_b32 s10, s10, 2")
    A("s_add_u32 s51, s51, s10"); A(f"s_add_u32 s51, s51, {HF_OFF}")
    A("s_lshl_b32 s52, s6, 2"); A("s_add_u32 s52, s52, s3"); A("s_lshl_b32 s52, s52, 8"); A(f"s_add_u32 s52, s52, {HF_OFF}")
    A("s_mul_i32 s53, s6, 196608"); A("s_mul_i32 s10, s3, 49152"); A("s_add_u32 s53, s53, s10")
    A("s_mul_i32 s10, s3, 10240"); A("v_add_u32 v11, s10, v1")

def kgive(A):
    A("v_add_u32 v15, s19, v1")
    A("s_nop 4")
    for i in range(3): A(f"ds_write_b128 v15, v[{20+4*i}:{23+4*i}] offset:{1024*i}")

def mtasks(A):
    dn = A.newlabel("mt"); wd = A.newlabel("mt"); ur = A.newlabel("mt")
    A("s_cmp_eq_u32 s3, 0"); A(f"s_cbranch_scc1 {dn}")
    A("v_lshrrev_b32 v16, 3, v0"); A("v_and_b32 v17, 7, v0"); A(f"v_mov_b32 v18, {FT}")
    lds_wait(A, 18, 19, "v_cmp_ne_u32 vcc, 0", sleep=1)
    A("s_cmp_eq_u32 s3, 2"); A(f"s_cbranch_scc1 {wd}")
    A("s_mov_b32 s24, s2"); A(f"s_mov_b32 s25, {TB2}")
    A("s_cmp_eq_u32 s3, 1"); A(f"s_cbranch_scc1 {ur}")
    A("v_lshlrev_b32 v18, 4, v17"); A(f"v_add_u32 v18, {GXO}, v18"); A("v_mul_u32_u24 v19, 1280, v16"); A("v_add_u32 v19, v19, v18")
    for i in range(10):
        A(f"ds_read_b128 v[{160+4*i}:{163+4*i}], v19 offset:{128*i}")
        A(f"ds_read_b128 v[{200+4*i}:{203+4*i}], v18 offset:{GWO - GXO + 128*i}")
    A("v_mov_b32 v20, 0"); A("v_mov_b32 v21, 0"); A("v_lshlrev_b32 v22, 2, v0"); A(f"v_add_u32 v22, {GL}, v22")
    A("s_waitcnt lgkmcnt(0)")
    for k in range(40): A(f"v_dot2c_f32_bf16 v{20 + k % 2}, v{160+k}, v{200+k}")
    A("s_add_u32 s24, s2, 256"); A(f"s_mov_b32 s25, {TB2 + 16384}"); A("s_cmp_ge_u32 s2, 64")
    A("v_add_f32 v20, v20, v21")
    A("ds_write_b32 v22, v20")
    A(f"s_cbranch_scc1 {dn}")
    A.label(ur)
    A("v_xor_b32 v18, v16, v17"); A("v_lshlrev_b32 v18, 4, v18"); A("v_lshl_add_u32 v18, v17, 10, v18"); A("v_add_u32 v18, s25, v18")
    for e in range(8): A(f"ds_read_b128 v[{160+4*e}:{163+4*e}], v18 offset:{128*e}")
    A("v_lshlrev_b32 v19, 15, v16"); A("v_lshlrev_b32 v17, 4, v17"); A("v_sub_u32 v19, v19, v17"); A("v_add_u32 v19, 4080, v19")
    A("s_mov_b32 s28, 0x05040100"); A("s_mov_b32 s29, 0x07060302")
    A("s_lshr_b32 s25, s24, 5"); A("s_and_b32 s24, s24, 31")
    A("s_lshl_b32 s25, s25, 18"); A("s_lshl_b32 s24, s24, 7"); A("s_sub_u32 s25, s25, s24"); A(f"s_add_u32 s25, s25, {UR_OFF}")
    A("s_waitcnt lgkmcnt(0)")
    for i in range(8):
        o = 192 + 4*i
        for p in range(4):
            lo = 160 + 4*(7-2*p) + i//2; hi = 160 + 4*(6-2*p) + i//2
            A(f"v_perm_b32 v{o+p}, v{hi}, v{lo}, s{28 + (i&1)}")
        A(f"buffer_store_dwordx4 v[{o}:{o+3}], v19, s[20:23], s25 offen sc1")
        A("s_add_u32 s25, s25, 4096")
    A(f"s_branch {dn}")
    A.label(wd)
    A("s_cmp_ge_u32 s2, 240"); A(f"s_cbranch_scc1 {dn}")
    A("v_lshrrev_b32 v18, 5, v0"); A("v_lshlrev_b32 v18, 11, v18"); A("v_bfe_u32 v19, v0, 2, 3"); A("v_lshl_add_u32 v18, v19, 7, v18")
    A("v_and_b32 v19, 3, v0"); A("v_lshl_add_u32 v18, v19, 3, v18"); A(f"v_add_u32 v18, {TB2 + 8192}, v18")
    for dtl in range(4):
        for sg in range(2):
            o = 160 + 4*(2*dtl+sg)
            A(f"ds_read_b64_tr_b16 v[{o}:{o+1}], v18 offset:{4096*sg + 32*dtl}")
            A(f"ds_read_b64_tr_b16 v[{o+2}:{o+3}], v18 offset:{4096*sg + 32*dtl + 1024}")
    A("s_mul_i32 s25, s2, 2731"); A("s_lshr_b32 s25, s25, 16"); A("s_mul_i32 s24, s25, 24"); A("s_sub_u32 s24, s2, s24")
    A("s_mul_i32 s24, s24, 10"); A("s_lshl_b32 s25, s25, 2")
    for dtl in range(4):
        A(f"s_add_u32 s26, s25, {dtl}")
        A("s_mul_i32 s27, s26, 52429"); A("s_lshr_b32 s27, s27, 18"); A("s_mul_i32 s27, s27, 235"); A("s_add_u32 s26, s26, s27")
        A("s_add_u32 s26, s26, s24"); A("s_lshl_b32 s26, s26, 10"); A(f"s_add_u32 s26, s26, {WDF_OFF}"); A("s_add_u32 s27, s26, 5120")
        A(f"s_waitcnt lgkmcnt({12 - 4*dtl})")
        o = 160 + 8*dtl
        A(f"buffer_store_dwordx4 v[{o}:{o+3}], v1, s[20:23], s26 offen sc1")
        A(f"buffer_store_dwordx4 v[{o+4}:{o+7}], v1, s[20:23], s27 offen sc1")
    A.label(dn)

def mwave(A):
    stamp(A, 6)
    mtasks(A)
    sW = 3
    A("s_mov_b32 s16, 0x%x" % ((-2*STG) & 0xffffffff)); A(f"s_mov_b32 s17, {STG}")
    F = [16, 36]
    def reads(ks, f):
        r = []; b = F[f]
        r.append(f"ds_read_b128 v[{b}:{b+3}], v{2+ks}")
        for nt in range(3):
            o = b + 8 + 4*nt
            r.append(f"ds_read_b64_tr_b16 v[{o}:{o+1}], v6 offset:{3072*ks + 32*nt}")
            r.append(f"ds_read_b64_tr_b16 v[{o+2}:{o+3}], v6 offset:{3072*ks + 32*nt + 768}")
        r.append(f"ds_read_b128 v[{b+4}:{b+7}], v{2+ks} offset:4096")
        return r
    def mfmas(f):
        b = F[f]; r = []
        for a in range(2):
            for nt in range(3):
                c = ACC1 + 16*(3*a+nt)
                if OPT["m16"]:
                    c += 8*f
                    r.append(f"v_mfma_f32_16x16x32_bf16 v[{c}:{c+3}], v[{b+8+4*nt}:{b+11+4*nt}], v[{b+4*a}:{b+4*a+3}], v[{c}:{c+3}]@"
                             f"v_mfma_f32_16x16x32_bf16 v[{c+4}:{c+7}], v[{b+4*a}:{b+4*a+3}], v[{b+8+4*nt}:{b+11+4*nt}], v[{c+4}:{c+7}]")
                else:
                    r.append(f"v_mfma_f32_32x32x16_bf16 v[{c}:{c+15}], v[{b+8+4*nt}:{b+11+4*nt}], v[{b+4*a}:{b+4*a+3}], v[{c}:{c+15}]")
        return r
    A("s_mov_b32 s11, 0"); A("s_mov_b32 s12, 0")
    A("s_mul_i32 s14, s7, 245760"); A("s_mul_i32 s15, s3, 61440"); A("s_add_u32 s14, s14, s15"); A(f"s_add_u32 s14, s14, {WDF_OFF}")
    A("s_waitcnt lgkmcnt(0)")
    stamp(A, 12)
    A("s_barrier")
    lds_wait(A, 7, 13, "v_cmp_ne_u32 vcc, 0", off=4)
    stamp(A, 2)
    PL = {0: [(1, 5), (1, 6)], 1: [(1, 7)], 2: [(2, 0)], 3: [(2, 1)], 4: [(2, 2), (2, 3)], 5: [(2, 4)]}
    need = {0: (0, 1, 2), 1: (3, 4), 2: (5, 6), 3: (7,), 4: (), 5: ()}
    lp = A.newlabel("g1"); ex_ = A.newlabel("g1x"); slow = A.newlabel("g1s"); back = A.newlabel("g1b")
    slow2 = A.newlabel("g1s"); back2 = A.newlabel("g1b"); nob = A.newlabel("g1n")
    AF = [160+4*i for i in range(24)] + [56, 60, 64, 68, 72, 76]
    def aload(n):
        r = [f"buffer_load_dwordx4 v[{AF[n]}:{AF[n]+3}], v1, s[20:23], s14 offen offset:{1024*(n % 4)} sc1"]
        if n % 4 == 3: r.append("s_add_u32 s14, s14, 4096")
        return r
    slows = []; na = [0]
    def step_items(k, mode):
        last = mode == 2
        ks = k % 4; it = []; ms = mfmas(k % 2)
        def chk(reg, off):
            sl = A.newlabel("g1s"); bk = A.newlabel("g1b"); slows.append((sl, bk, reg, off))
            return [("x", f"v_cmp_ne_u32 vcc, 0, v{reg}"), ("x", f"s_cbranch_vccnz {sl}"), ("x", f"{bk}:")]
        for g in range(6):
            it.append(("m", ms[g], [(k, r) for r in need[g]]))
            if ks == 2 and g == 2 and not last: it += [("w", "flag")] + chk(13, 4)
            if ks == 0 and g == 3: it += [("w", "flagB")] + chk(12, 0)
            if ks == OPT["barks"] and g == OPT["barg"] and mode != 1:
                it.append(("w", (k - ks + 3, 7)))
                if last: it += [("x", f"s_setprio {OPT['mprio']}"), ("x", "s_barrier")]
                else: it += [("x", "s_cmp_gt_u32 s11, 7"), ("x", f"s_cbranch_scc1 {nob}"), ("x", "s_waitcnt vmcnt(0)"), ("x", "s_barrier"), ("x", f"{nob}:")]
            for (so, ri) in PL[g]:
                if last and ks + so > 3: continue
                it.append(("r", reads((k+so) % 4, (k+so) % 2)[ri], (k+so, ri)))
            ex = []
            dl = "s13" if mode == 0 else "s16"
            if mode == 0:
                if ks == 0 and g == 2: ex = ["s_add_u32 s12, s12, 1", "s_cmp_eq_u32 s12, 3", "s_cselect_b32 s13, s16, s17", "s_cselect_b32 s12, 0, s12"]
                if ks == 1 and g == 2: ex = ["s_add_u32 s11, s11, 1"]
                if ks == 3 and g == 5: ex = ["s_cmp_lt_u32 s11, 8"]
            if not last:
                if ks == 1 and g == 1: ex = [f"v_add_u32 v2, {dl}, v2"]
                if ks == 0 and g == 5: ex = [f"v_add_u32 v3, {dl}, v3", "v_subrev_u32 v7, 8, v7"]
                if ks == 1 and g == 3: ex = [f"v_add_u32 v4, {dl}, v4"]
                if ks == 3 and g == 3: ex = [f"v_add_u32 v5, {dl}, v5"]
                if ks == 2 and g == 1: ex = [f"v_add_u32 v6, {dl}, v6"]
            if mode:
                pos = 24*(mode-1) + 6*ks + g - OPT["ald"][0]
                if pos >= 0 and g in (1, 2, 3, 5) and na[0] < 26: ex = ex + aload(na[0]); na[0] += 1
            for e in ex: it.append(("x", e))
            if ks == 1 and g == OPT["fpos"][0] and not last: it.append(("r", "ds_read_b32 v13, v7 offset:4", "flag"))
            if ks == 0 and g == OPT["fpos"][1]: it.append(("r", "ds_read_b32 v12, v7", "flagB"))
        return it
    def emit(items, q):
        for i in items:
            tags = i[2] if i[0] == "m" else [i[1]] if i[0] == "w" else []
            if tags:
                pos = max(len(q["ops"]) - 1 - q["ops"][::-1].index(t) for t in tags)
                if pos >= q["done"]:
                    n = min(14, len(q["ops"]) - 1 - pos)
                    q["done"] = len(q["ops"]) - n
                    A(f"s_waitcnt lgkmcnt({n})")
            if i[0] in ("r", "l"): q["ops"].append(i[2] if i[0] == "r" else None)
            if i[0] != "w": A(i[1])
    q = dict(ops=[], done=0)
    emit([("r", reads(0, 0)[r], (0, r)) for r in range(8)] + [("r", reads(1, 1)[ri], (1, ri)) for g in range(6) for (so, ri) in PL[g] if so == 2], q)
    A.label(lp)
    for k in range(4): emit(step_items(k, 0), q)
    A(f"s_cbranch_scc1 {lp}")
    q["done"] = 0
    for k in range(4, 8): emit(step_items(k, 1), q)
    for k in range(8, 12): emit(step_items(k, 2), q)
    stamp(A, 3)
    A(f"s_load_dword s{TAG}, s[{DBG}:{DBG+1}], 0")
    A(f"v_mov_b32 v7, {FT-92}"); A("v_mov_b32 v5, v11"); A(f"v_add_u32 v6, {2*STG}, v11"); A("s_nop 6")
    def areads(step):
        slot = (10 + step // 2) % 3; r = []
        for dt in range(5):
            o = AF[5*(step % 6) + dt]
            off = (STG if slot == 1 else 0) + 5120*(step % 2) + 1024*dt
            r.append(f"ds_read_b128 v[{o}:{o+3}], v{6 if slot == 2 else 5} offset:{off}")
        return r
    E = 16
    for a in range(2):
        for nt in range(3):
            g = ACC1 + 16*(3*a+nt); u = g + 8
            o = 32 + 4*((3*a+nt) % 4)
            ti = 3*a+nt
            lim = 26 if ti == 0 else 30
            cnt = -(-(30 - na[0]) // max(1, OPT["ald"][1] - ti))
            ins = []
            while cnt > 0 and na[0] < lim:
                ins.append(aload(na[0])); na[0] += 1; cnt -= 1
            mark = len(A.lines)
            if 3*a+nt < OPT['epk']:
                for i in range(4): A(f"v_pk_mul_f32 {P2(E+2*i)}, {P2(g+2*i)}, s[54:55]")
                for i in range(8): A(f"v_exp_f32 v{E+i}, v{E+i}")
                for i in range(4): A(f"v_pk_add_f32 {P2(E+2*i)}, {P2(E+2*i)}, 1.0 op_sel_hi:[1,0]")
                for i in range(8): A(f"v_rcp_f32 v{E+i}, v{E+i}")
                for i in range(4): A(f"v_pk_mul_f32 {P2(g+2*i)}, {P2(g+2*i)}, {P2(u+2*i)}")
                for i in range(4): A(f"v_pk_mul_f32 {P2(g+2*i)}, {P2(g+2*i)}, {P2(E+2*i)}")
            else:
                for i in range(8): A(f"v_mul_f32 v{E+i}, s54, v{g+i}")
                for i in range(8): A(f"v_exp_f32 v{E+i}, v{E+i}")
                for i in range(8): A(f"v_add_f32 v{E+i}, 1.0, v{E+i}")
                for i in range(8): A(f"v_rcp_f32 v{E+i}, v{E+i}")
                for i in range(8): A(f"v_mul_f32 v{g+i}, v{g+i}, v{u+i}")
                for i in range(8): A(f"v_mul_f32 v{g+i}, v{g+i}, v{E+i}")
            if ins:
                body = A.lines[mark:]; del A.lines[mark:]
                step = max(1, len(body) // len(ins))
                for n, l in enumerate(body):
                    if n % step == 0 and ins:
                        for x in ins.pop(0): A(x)
                    A.lines.append(l)
                assert not ins
            for i in range(4): A(f"v_cvt_pk_bf16_f32 v{o+i}, v{g+2*i}, v{g+2*i+1}")
            A(f"buffer_store_dwordx4 v[{o}:{o+3}], v10, s[20:23], s{48+nt} offen offset:{2048*a} sc1")
            if 3*a+nt == OPT["epk"] - 1: A("s_barrier")
    if OPT["mprio"]: A("s_setprio 0")
    stamp(A, 4)
    assert na[0] == 30
    tag_get(A, 14, issued=True)
    flag_store(A, "s51", 14)
    stamp(A, 5)
    A("v_and_b32 v4, 15, v0"); A("v_lshrrev_b32 v3, 4, v0")
    A(f"v_mul_u32_u24 v2, {PB}, v4"); A("v_lshl_add_u32 v2, v3, 3, v2")
    A("s_mul_i32 s26, s3, 10240"); A("v_add_u32 v2, s26, v2")
    spoll(A, "s52", 8, OPT["psleep"])
    stamp(A, 7)
    ACC = 80; HR = 8
    def hload(k, i):
        b = HR + 16*(k % 3)
        r = [f"buffer_load_dwordx4 v[{b+4*i}:{b+4*i+3}], v1, s[20:23], s53 offen offset:{1024*i} sc1"]
        if i == 3: r.append("s_add_u32 s53, s53, 4096")
        return r
    for k in range(3):
        for i in range(4):
            for x in hload(k, i): A(x)
    for k in range(12):
        b = HR + 16*(k % 3); j = k + 2
        ar = areads(j) if 6 <= j < 12 else []
        chk = bool(ar) and j % 2 == 0
        for mt in range(4):
            out = 11 if k + 3 < 12 else 4*(12-k) - mt - 1
            w = f"s_waitcnt vmcnt({out})"
            if mt == 0: w += " lgkmcnt(0)" if k in (0, 11) else " lgkmcnt(5)" if k >= 6 else ""
            A(w)
            if mt == 0 and k in (0, 6): stamp(A, 8 + k//6)
            for dt in range(5):
                c = ACC + 4*(4*dt+mt); af = AF[5*(k % 6) + dt]
                src = "0" if k == 0 else f"v[{c}:{c+3}]"
                A(f"v_mfma_f32_16x16x32_bf16 v[{c}:{c+3}], v[{af}:{af+3}], v[{b+4*mt}:{b+4*mt+3}], {src}")
                if chk and mt == 0 and dt == 0: A(f"ds_read_b32 v3, v7 offset:{4*(5-j//2)}")
                if chk and mt == 1 and dt == 3:
                    sl = A.newlabel("g2s"); bk = A.newlabel("g2b"); slows.append((sl, bk, 3, 4*(5-j//2)))
                    A("s_waitcnt lgkmcnt(0)"); A("v_cmp_ne_u32 vcc, 0, v3"); A(f"s_cbranch_vccnz {sl}"); A.label(bk)
                if ar and mt == 2: A(ar[dt])
            if k + 3 < 12:
                for x in hload(k+3, mt): A(x)
    A.tail_code = slows
    stamp(A, 10)
    A("s_nop 1")
    for mt in range(4):
        for dt in range(5):
            c = ACC + 4*(4*dt+mt); o = 8 + 2*((5*mt+dt) % 16)
            A(f"v_cvt_pk_bf16_f32 v{o}, v{c}, v{c+1}"); A(f"v_cvt_pk_bf16_f32 v{o+1}, v{c+2}, v{c+3}")
            if 5*mt+dt >= 1: A(pw)
            pw = f"ds_write_b64 v2, v[{o}:{o+1}] offset:{(mt >> 1)*STG + 16*(mt & 1)*PB + 32*dt}"
    A(pw)

def post(A):
    A(f"s_mov_b32 s16, s{OUT}"); A(f"s_mov_b32 s17, s{OUT+1}")
    A("s_mov_b32 s18, 2621440"); A("s_mov_b32 s19, 0x20000")
    A("s_mul_i32 s24, s6, 81920"); A("s_mul_i32 s25, s7, 160"); A("s_add_u32 s24, s24, s25")
    A("s_lshl_b32 s27, s3, 6")
    def addr(b):
        A(f"v_add_u32 v{b}, s27, v0")
        A(f"v_mul_u32_u24 v{b+1}, 6554, v{b}"); A(f"v_lshrrev_b32 v{b+1}, 16, v{b+1}")
        A(f"v_mul_u32_u24 v{b+2}, 10, v{b+1}"); A(f"v_sub_u32 v{b+2}, v{b}, v{b+2}")
        A(f"v_mul_u32_u24 v{b+3}, 1280, v{b+1}"); A(f"v_lshl_add_u32 v{b+3}, v{b+2}, 4, v{b+3}")
        A(f"v_mul_u32_u24 v{b+4}, {PB}, v{b+1}"); A(f"v_lshl_add_u32 v{b+4}, v{b+2}, 4, v{b+4}")
        A(f"v_lshrrev_b32 v{b+5}, 5, v{b+1}"); A(f"v_mul_u32_u24 v{b+5}, {STG - 32*PB}, v{b+5}"); A(f"v_add_u32 v{b+4}, v{b+4}, v{b+5}")
        A(f"v_mul_u32_u24 v{b+5}, 86, v{b+2}"); A(f"v_lshrrev_b32 v{b+5}, 8, v{b+5}")
        A(f"v_mul_u32_u24 v{b+6}, {HS+48}, v{b+2}"); A(f"v_mul_u32_u24 v{b+5}, {3*(HS+48) - A2S}, v{b+5}")
        A(f"v_sub_u32 v{b+6}, v{b+6}, v{b+5}"); A(f"v_lshl_add_u32 v{b+6}, v{b+1}, 4, v{b+6}"); A(f"v_add_u32 v{b+6}, {HB + A2O}, v{b+6}")
        A(f"v_lshlrev_b32 v{b+7}, 4, v{b+1}"); A(f"v_add_u32 v{b+7}, {HB + OMG}, v{b+7}")
    def rds(b, d):
        A(f"ds_read_b128 v[{d+20}:{d+23}], v{b+7}")
        for w in range(4): A(f"ds_read_b128 v[{d+4*w}:{d+4*w+3}], v{b+4} offset:{w*10240}")
        A(f"ds_read_b128 v[{d+16}:{d+19}], v{b+6}")
    def calc(b, d, t, rest):
        for w in range(5):
            A(f"s_waitcnt lgkmcnt({rest + 4 - w})")
            c = d + 20 + (2 if w == 4 else 0)
            for k in range(4):
                A(f"v_dot2c_f32_bf16 v{t+2*k}, v{d+4*w+k}, v{c}"); A(f"v_dot2c_f32_bf16 v{t+2*k+1}, v{d+4*w+k}, v{c+1}")
        A("s_nop 0")
        for k in range(4): A(f"v_cvt_pk_bf16_f32 v{d+k}, v{t+2*k}, v{t+2*k+1}")
        A(f"buffer_store_dwordx4 v[{d}:{d+3}], v{b+3}, s[16:19], s24 offen")
    addr(40)
    for i in range(4): A(f"v_pk_mov_b32 {P2(160+2*i)}, 0, 0")
    one = A.newlabel("po"); dn = A.newlabel("po"); o2 = A.newlabel("po")
    A("s_and_b32 s28, s3, 6"); A("s_cmp_lg_u32 s28, 4"); A(f"s_cbranch_scc1 {one}")
    A("s_add_u32 s27, s27, 256"); A("s_setprio 3")
    addr(48)
    for i in range(4): A(f"v_pk_mov_b32 {P2(168+2*i)}, 0, 0")
    A.label(one)
    A("s_waitcnt lgkmcnt(0)")
    A("s_barrier")
    stamp(A, 11)
    A("s_cmp_lg_u32 s28, 4"); A(f"s_cbranch_scc1 {o2}")
    rds(48, 232)
    A.label(o2)
    rds(40, 208)
    calc(40, 208, 160, 0)
    A("s_cmp_lg_u32 s28, 4"); A(f"s_cbranch_scc1 {dn}")
    calc(48, 232, 168, 0)
    A.label(dn)

def pcmul(A, d, s, m):
    A(f"v_pk_mul_f32 {P2(d)}, {P2(s)}, {P2(m)} op_sel:[0,0] op_sel_hi:[1,0]")
    A(f"v_pk_fma_f32 {P2(d)}, {P2(s)}, {P2(m)}, {P2(d)} op_sel:[1,1,0] op_sel_hi:[0,1,1] neg_lo:[0,1,0]")

def kpass(A):
    RAW = 232; FA = 16; ACC = 20
    A(f"s_mul_i32 s28, s{CH}, 384"); A("s_lshl_b32 s29, s17, 7"); A("s_add_u32 s28, s28, s29")
    A("v_lshl_add_u32 v1, v0, 1, s28")
    A(f"s_lshl_b32 s28, s{CH}, 1"); A("s_and_b32 s28, s28, -4")
    A("s_cmp_lt_u32 s14, 2")
    A("s_waitcnt lgkmcnt(0)")
    for a in range(4): A(f"global_load_ushort v{RAW+a}, v1, s[{LOGA+2*a}:{LOGA+2*a+1}] nt")
    A("s_cbranch_scc1 k_one")
    for a in range(4): A(f"global_load_ushort v{RAW+4+a}, v1, s[{LOGA+2*a}:{LOGA+2*a+1}] offset:128 nt")
    A.label("k_one")
    A(f"s_load_dword s30, s[{LOGDT}:{LOGDT+1}], s28")
    A(f"s_load_dword s31, s[{DSK}:{DSK+1}], s28")
    A("s_barrier")
    nt0 = A.newlabel("mk")
    A("s_lshl_b32 s24, s2, 3"); A("s_add_u32 s24, s24, s3"); A("s_cmp_lg_u32 s24, 71"); A(f"s_cbranch_scc1 {nt0}")
    A(f"s_add_u32 s24, s20, {LAST_OFF}"); A("s_addc_u32 s25, s21, 0")
    A("s_load_dword s28, s[24:25], 0")
    A("v_mov_b32 v16, 0")
    A("s_waitcnt lgkmcnt(0)")
    A("s_add_u32 s28, s28, 1"); A("s_max_u32 s28, s28, 1")
    A("v_mov_b32 v17, s28")
    A("s_mov_b64 exec, 1")
    A(f"global_store_dword v16, v17, s[{DBG}:{DBG+1}] sc1")
    A("global_store_dword v16, v17, s[24:25] sc1")
    A("s_mov_b64 exec, -1")
    A.label(nt0)
    tiles(A)
    A("s_bfe_u32 s9, s10, 0x20002")
    A(f"s_mul_i32 s{REG}, s{LCH}, {HS}"); A(f"s_add_u32 s{REG}, s{REG}, {HB}")
    A(f"s_mul_i32 s19, s9, {SS}"); A(f"s_add_u32 s19, s19, s{REG}"); A("s_mov_b32 m0, s19")
    A("v_and_b32 v17, 15, v0"); A("v_lshrrev_b32 v18, 4, v0"); A("v_mov_b32 v10, 0")
    A("s_mov_b32 s24, 0x%x" % LOG2E); A("s_mov_b32 s25, 0x%x" % LOG2E_LO); A("s_mov_b32 s26, 0x%x" % LN2)
    A("s_mov_b32 s27, 0x41000000"); A("s_mov_b32 s28, 0x43000000")
    A(f"v_mul_u32_u24 v{FA}, {RS}, v17"); A(f"v_lshl_add_u32 v{FA}, v18, 4, v{FA}"); A(f"v_add_u32 v{FA}, s19, v{FA}")
    for i in range(6): A(f"v_pk_mov_b32 {P2(ACC+2*i)}, 0, 0")
    DT, DT2, NDT, ONE = 32, 34, 33, 36
    A(f"v_mov_b32 v{ONE}, 0x3f80")
    A("v_lshlrev_b32 v1, 4, v0")
    A("s_cmp_ge_u32 s3, 4"); A("s_cbranch_scc1 k_nosetup")
    msetup(A)
    A.label("k_nosetup")
    A("s_waitcnt lgkmcnt(0)")
    A(f"s_bitcmp1_b32 s{CH}, 0")
    A("s_cselect_b32 s29, 0, 16")
    A("s_lshl_b32 s30, s30, s29"); A("s_and_b32 s30, s30, 0xffff0000")
    A("s_lshl_b32 s31, s31, s29"); A("s_and_b32 s31, s31, 0xffff0000")
    A("s_cmp_eq_u32 s17, 0"); A("s_cselect_b32 s31, s31, 0")
    A("v_mov_b32 v37, s30")
    A(f"v_writelane_b32 v{ACC}, s31, 0")
    A("v_mul_f32 v38, s24, v37"); A("v_fma_f32 v39, v37, s24, -v38"); A("v_fmac_f32 v39, s25, v37")
    A("v_exp_f32 v38, v38"); A("v_mul_f32 v39, s26, v39"); A("v_fmac_f32 v38, v38, v39")
    A("v_cvt_pk_bf16_f32 v38, v38, v38")
    A(f"v_lshlrev_b32 v{DT}, 16, v38")
    A(f"v_add_f32 v{DT2}, v{DT}, v{DT}"); A(f"v_sub_f32 v{NDT}, 0, v{DT}")
    A("s_waitcnt vmcnt(0)")
    stamp(A, 1)
    A.label("k_loop")
    A1 = 38; TH = 39
    Z, W, Y = 40, 42, 44
    P = 48; T = 224; QA, QB = 226, 228; PK = 240
    QF, PF = 160, 176
    A(f"v_lshlrev_b32 v{T}, 16, v{RAW}"); A(f"v_mul_f32 v{T}, s24, v{T}")
    A(f"v_lshlrev_b32 v{TH}, 16, v{RAW+1}")
    A(f"v_exp_f32 v{T}, v{T}")
    A(f"v_lshlrev_b32 v{P}, 16, v{RAW+2}"); A(f"v_lshlrev_b32 v{P+1}, 16, v{RAW+3}")
    A(f"v_cvt_pk_bf16_f32 v{T}, v{T}, v{T}")
    A(f"v_mul_f32 v{TH}, v{TH}, v{DT}")
    A(f"v_lshlrev_b32 v{T}, 16, v{T}")
    A(f"v_mul_f32 v{TH}, 0.15915494, v{TH}")
    A(f"v_mul_f32 v{A1}, v{T}, v{NDT}")
    A(f"v_pk_mul_f32 {P2(P)}, {P2(P)}, {P2(DT2)} op_sel_hi:[1,0]")
    A(f"v_mul_f32 v{A1}, s24, v{A1}")
    A(f"v_pk_mov_b32 {P2(RAW)}, {P2(RAW+4)}, {P2(RAW+4)} op_sel:[0,1]"); A(f"v_pk_mov_b32 {P2(RAW+2)}, {P2(RAW+6)}, {P2(RAW+6)} op_sel:[0,1]")
    for (R, sc) in ((W, "s27"), (Z, None), (Y, "s28")):
        if sc:
            A(f"v_mul_f32 v{T}, {sc}, v{A1}"); A(f"v_mul_f32 v{T+1}, {sc}, v{TH}")
            A(f"v_exp_f32 v{T}, v{T}"); A(f"v_fract_f32 v{T+1}, v{T+1}")
        else:
            A(f"v_exp_f32 v{T}, v{A1}"); A(f"v_fract_f32 v{T+1}, v{TH}")
        A(f"v_cos_f32 v{R}, v{T+1}"); A(f"v_sin_f32 v{R+1}, v{T+1}")
        A("s_nop 0")
        A(f"v_pk_mul_f32 {P2(R)}, {P2(R)}, {P2(T)} op_sel_hi:[1,0]" + (" neg_hi:[1,0]" if R == W else ""))
    pkc = [0]
    def emit(row, r):
        k = PK + pkc[0] % 16; pkc[0] += 1
        A(f"v_cvt_pk_bf16_f32 v{k}, v{r}, v{r+1}")
        pend.append(f"ds_write_addtid_b32 v{k} offset:{row*RS}")
        while len(pend) > OPT["kdepth"]: A(pend.pop(0))
    pend = []
    def rd(base):
        while pend: A(pend.pop(0))
        for t in range(4): A(f"ds_read_b128 v[{base+4*t}:{base+4*t+3}], v{FA} offset:{64*t}")
    def mm(acc, base, n):
        A(f"s_waitcnt lgkmcnt({n})")
        for t in range(4):
            A(f"v_mfma_f32_16x16x32_bf16 v[{acc}:{acc+3}], v[{base+4*t}:{base+4*t+3}], v[{QF+4*t}:{QF+4*t+3}], v[{acc}:{acc+3}]")
    A(f"ds_write_addtid_b32 v{ONE} offset:0")
    qs = W
    for j in range(2, 17):
        dst = QA if j % 2 == 0 else QB
        if j < 16: pcmul(A, dst, qs, W)
        emit(j-1, qs)
        b = j - 1
        if b <= 7: pcmul(A, P+2*b, P+2*b-2, Z)
        qs = dst
    rd(QF)
    loc = {}
    for b in range(0, 8, 2):
        emit(b, P+2*b); emit(b+1, P+2*b+2)
        pcmul(A, T, P+2*b+2, Y); pcmul(A, P+2*b+2, P+2*b, Y)
        emit(8+b+1, T); emit(8+b, P+2*b+2)
        loc[b] = P+2*b+2
    rd(PF)
    def step(b, row):
        s = loc[b]; d = P+2*b if s == P+2*b+2 else P+2*b+2
        pcmul(A, d, s, Y); loc[b] = d
        return (row, d)
    for a in range(2):
        es = [step(b, 4*a + b//2) for b in (0, 2, 4, 6)]
        for e in es: emit(*e)
    for a in range(4):
        es = [step(b, 8 + 2*a + b//4) for b in (0, 4)]
        for e in es: emit(*e)
    rd(PF+16)
    e = step(0, 0)
    for a in range(1, 10):
        n = step(0, a) if a < 9 else None
        emit(*e); e = n
    rd(PF+32)
    mm(ACC, PF, 8); mm(ACC+4, PF+16, 4); mm(ACC+8, PF+32, 0)
    A("s_sub_u32 s14, s14, 1"); A("s_cmp_lg_u32 s14, 0"); A("s_cbranch_scc1 k_loop")
    A("s_cmp_ge_u32 s3, 4"); A("s_cbranch_scc1 k_h")

def kaddr(A):
    sL = REG
    A(f"v_add_u32 v39, s{sL}, v1")
    EB = C0
    A("v_lshlrev_b32 v40, 4, v17"); A(f"v_add_u32 v40, s{sL}, v40")
    A("v_lshl_add_u32 v41, v18, 10, v40"); A(f"v_add_u32 v41, {EB + 2048 - 8}, v41")
    A("v_and_b32 v42, 1, v0"); A("v_lshlrev_b32 v42, 3, v42"); A("v_sub_u32 v42, v41, v42")
    A("v_lshl_add_u32 v43, v18, 9, v40"); A("v_lshl_add_u32 v44, v18, 8, v40")
    A("v_lshrrev_b32 v45, 1, v18"); A("v_lshl_add_u32 v45, v45, 8, v40")
    A("v_and_b32 v46, 1, v18"); A("v_lshl_add_u32 v45, v46, 3, v45")
    A("v_mov_b32 v66, 0"); A("v_mov_b32 v67, 0")
    A("v_and_b32 v46, 7, v0"); A("v_lshlrev_b32 v46, 2, v46"); A(f"v_add_u32 v46, s{sL}, v46")
    A("v_lshlrev_b32 v47, 3, v0"); A(f"v_add_u32 v47, s{sL}, v47")

KC = {xy: 56+n for n, xy in enumerate([(0,0),(0,1),(1,1),(2,2),(2,3),(3,3),(1,2)])}
def kexp0(A):
    K0, K1, K2 = 20, 24, 28
    for r in range(4):
        A(f"v_cvt_pk_bf16_f32 v{48+2*r}, v{K2+r}, v{K2+r}"); A(f"v_mov_b32 v{49+2*r}, v{48+2*r}")
    for (x, y), r in KC.items(): A(f"v_cvt_pk_bf16_f32 v{r}, v{K1+x}, v{K1+y}")
    A(f"v_cvt_pk_bf16_f32 v64, v{K0}, v{K0+1}"); A(f"v_cvt_pk_bf16_f32 v65, v{K0+2}, v{K0+3}")
def kexp1(A):
    EB = C0; c = KC
    for r in range(4): A(f"ds_write2_b64 v41, v[{48+2*r}:{49+2*r}], v[{48+2*r}:{49+2*r}] offset0:{32*r} offset1:{32*r+1}")
    for r in range(4): A(f"ds_write_b16 v42, v{48+2*r} offset:{256*r+16}")
    A("s_mov_b32 exec_lo, 0")
    o = (EB - 4) // 4
    A(f"ds_write2_b32 v43, v{c[0,0]}, v{c[0,0]} offset0:{o} offset1:{o+1}")
    A(f"ds_write2_b32 v43, v{c[0,1]}, v{c[1,1]} offset0:{o+2} offset1:{o+3}")
    A(f"ds_write2_b32 v43, v{c[2,2]}, v{c[2,2]} offset0:{o+64} offset1:{o+65}")
    A(f"ds_write2_b32 v43, v{c[2,3]}, v{c[3,3]} offset0:{o+66} offset1:{o+67}")
    A("s_mov_b32 exec_lo, -1"); A("s_mov_b32 exec_hi, 0")
    o = EB + 512
    A(f"ds_write_b16 v44, v{c[0,0]} offset:{o-2}")
    A(f"ds_write2_b32 v44, v{c[0,0]}, v{c[1,2]} offset0:{o//4} offset1:{o//4+1}")
    A(f"ds_write_b32 v44, v{c[2,2]} offset:{o+8}")
    A(f"ds_write_b16 v44, v{c[3,3]} offset:{o+12}")
    A("s_mov_b64 exec, -1")
    A(f"ds_write_b64 v45, v[64:65] offset:{EB}")
    A(f"ds_write_b32 v46, v66 offset:{C0-32}"); A(f"ds_write_b32 v46, v66 offset:{C1-32}")
    A(f"ds_write_b64 v47, v[66:67] offset:{CU+4096}")
    for i in range(4):
        A(f"ds_read_b128 v[{80+8*i}:{83+8*i}], v39 offset:{EB+1024*i}")
        A(f"ds_read_b32 v{72+i}, v39 offset:{EB+1024*i-4}")
def kexp2(A):
    A("s_waitcnt lgkmcnt(0)")
    for i in range(4):
        b = 80+8*i
        A(f"v_alignbit_b32 v{b+4}, v{b}, v{72+i}, 16")
        for k in range(1, 4): A(f"v_alignbit_b32 v{b+4+k}, v{b+k}, v{b+k-1}, 16")
        A(f"ds_write_b128 v39, v[{b+4}:{b+7}] offset:{C1+1024*i}")

def caddr(A):
    sL = REG
    A("v_lshlrev_b32 v2, 4, v18"); A("v_lshlrev_b32 v6, 5, v17"); A("v_sub_u32 v2, v2, v6")
    A(f"v_add_u32 v2, {CU + 4064 - 3584}, v2"); A(f"v_add_u32 v2, s{sL}, v2")
    A("v_sub_u32 v6, 15, v17"); A("v_and_b32 v7, 1, v6"); A("v_sub_u32 v6, v6, v7")
    A(f"v_mul_u32_u24 v3, {C1-C0}, v7"); A("v_lshl_add_u32 v3, v18, 4, v3")
    A("v_lshlrev_b32 v6, 1, v6"); A("v_sub_u32 v3, v3, v6")
    A(f"v_add_u32 v3, {C0}, v3"); A(f"v_add_u32 v3, s{sL}, v3")
    for i in range(1, 4): A(f"v_add_u32 v{3+i}, {1024*i}, v3")
    A("v_lshlrev_b32 v7, 5, v17"); A("v_lshrrev_b32 v8, 1, v18"); A("v_lshl_add_u32 v7, v8, 4, v7")
    A("v_and_b32 v8, 1, v18"); A("v_lshl_add_u32 v7, v8, 9, v7")

def conv(A):
    Y = 172
    TB = [40, 104]
    def reads(f, extra):
        b = TB[f]; r = []
        for q in range(8):
            r.append(f"ds_read_b128 v[{b+32+4*q}:{b+35+4*q}], v2 offset:{512*(7-q) + extra}")
            o = (512*(q & 1) + extra) // 4
            r.append(f"ds_read2_b32 v[{b+4*q}:{b+4*q+1}], v{3+q//2} offset0:{o} offset1:{o+1}")
            r.append(f"ds_read2_b32 v[{b+4*q+2}:{b+4*q+3}], v{3+q//2} offset0:{o+2} offset1:{o+3}")
        return r
    def mfmas(f):
        b = TB[f]; r = []
        for q in range(8):
            for tau in range(8-q):
                t = q + tau
                r.append(f"v_mfma_f32_16x16x32_bf16 v[{Y+4*t}:{Y+4*t+3}], v[{b+4*q}:{b+4*q+3}], v[{b+32+4*tau}:{b+35+4*tau}], v[{Y+4*t}:{Y+4*t+3}]")
        return r
    def inter(ms, rs):
        for i, m in enumerate(ms):
            A(m)
            if i < len(rs): A(rs[i])
    A("s_waitcnt vmcnt(0)")
    for x in reads(0, 0): A(x)
    stamp(A, 9)
    if OPT["epk"]: A("s_barrier")
    stamp(A, 4)
    if OPT["cprio"]: A(f"s_setprio {OPT['cprio']}")
    A("s_mov_b32 s28, 0")
    lp = A.newlabel("cv")
    A.label(lp)
    A("s_waitcnt lgkmcnt(0)")
    inter(mfmas(0), reads(1, 64) + ["s_add_u32 s28, s28, 1"])
    A("s_waitcnt lgkmcnt(0)")
    inter(mfmas(1), reads(0, 128) + [f"v_add_u32 v{r}, 128, v{r}" for r in range(2, 7)] + ["s_cmp_lt_u32 s28, 4"])
    A(f"s_cbranch_scc1 {lp}")
    stamp(A, 5)
    A(f"s_add_u32 s30, s31, {YT_OFF}")
    A(f"s_lshr_b32 s28, s{CH}, 3"); A("s_lshl_b32 s28, s28, 8"); A(f"s_and_b32 s29, s{CH}, 7"); A("s_lshl_b32 s29, s29, 2")
    A("s_add_u32 s28, s28, s29"); A(f"s_add_u32 s28, s28, {YF_OFF}")
    O = 104
    for t in range(8):
        A(f"v_cvt_pk_bf16_f32 v{O+2*t}, v{Y+4*t}, v{Y+4*t+1}"); A(f"v_cvt_pk_bf16_f32 v{O+2*t+1}, v{Y+4*t+2}, v{Y+4*t+3}")
    A("s_nop 1")
    for p in range(4):
        A(f"v_permlane16_swap_b32 v{O+4*p}, v{O+4*p+2}"); A(f"v_permlane16_swap_b32 v{O+4*p+1}, v{O+4*p+3}")
    A("s_nop 1")
    for p in range(4): A(f"buffer_store_dwordx4 v[{O+4*p}:{O+4*p+3}], v7, s[20:23], s30 offen offset:{1024*p} sc1")
    A("s_setprio 0")
    flag_store(A, "s28", 2, 8, 80*256)
    A(f"v_mov_b32 v4, {FLG}"); A("v_mov_b32 v5, 0"); A("ds_write_b32 v4, v5")
    stamp(A, 6)

def hbar(A, i):
    if OPT["hdiag"] == 2: _stamp0(A, i + 2)
    A("s_barrier")
    if OPT["hdiag"] == 1: _stamp0(A, i + 2)

def hwave(A):
    ACC = 20; sL = REG
    def when(cmp, neg=False):
        l = A.newlabel("if"); A(cmp); A(f"s_cbranch_scc{1 if neg else 0} {l}"); return l
    stamp(A, 2)
    A(f"s_add_u32 s8, s2, 256"); A(f"s_cmp_eq_u32 s{LCH}, 0"); A("s_cselect_b32 s8, s2, s8")
    A(f"s_cmp_eq_u32 s{LCH}, 1"); A("s_cselect_b32 s8, 999, s8"); A("s_cselect_b32 s9, s2, 999")
    A(f"v_add_u32 v39, s{sL}, v1")
    A("s_mul_i32 s19, s18, 3072"); A(f"s_add_u32 s19, s19, {KP_OFF}")
    A("s_lshl_b32 s18, s18, 7"); A(f"s_add_u32 s18, s18, {KF_OFF}")
    l = when("s_cmp_eq_u32 s16, 0")
    for i in range(3): A(f"buffer_store_dwordx4 v[{ACC+4*i}:{ACC+4*i+3}], v1, s[20:23], s19 offen offset:{1024*i} sc1")
    A.label(l)
    A("s_barrier")
    A("v_lshlrev_b32 v33, 2, v0"); A(f"v_add_u32 v33, {GL}, v33"); A("ds_read_b32 v32, v33")
    for i in range(3): A(f"ds_read_b128 v[{80+4*i}:{83+4*i}], v39 offset:{SS + 1024*i}")
    for i in range(3): A(f"ds_read_b128 v[{92+4*i}:{95+4*i}], v39 offset:{2*SS + 1024*i}")
    A("s_waitcnt lgkmcnt(0)")
    l = when("s_cmp_ge_u32 s16, 1")
    for i in range(12): A(f"v_add_f32 v{ACC+i}, v{ACC+i}, v{80+i}")
    A.label(l)
    l = when("s_cmp_ge_u32 s16, 2")
    for i in range(12): A(f"v_add_f32 v{ACC+i}, v{ACC+i}, v{92+i}")
    A.label(l)
    hbar(A, 0)
    stamp(A, 12)
    def flags():
        l = when("s_cmp_lt_u32 s8, 320")
        A("s_lshr_b32 s26, s8, 5"); A("s_lshl_b32 s26, s26, 8"); A("s_and_b32 s27, s8, 31"); A("s_lshl_b32 s27, s27, 2")
        A("s_add_u32 s26, s26, s27"); A(f"s_add_u32 s26, s26, {UF_OFF}")
        flag_store(A, "s26", 70)
        A.label(l)
        l = when("s_cmp_eq_u32 s16, 0")
        flag_store(A, "s18", 70, wait=False)
        A.label(l)
        l = when("s_cmp_lt_u32 s9, 240")
        A("s_mul_i32 s26, s9, 2731"); A("s_lshr_b32 s26, s26, 16"); A("s_mul_i32 s26, s26, 160"); A("s_lshl_b32 s27, s9, 2")
        A("s_add_u32 s26, s26, s27"); A(f"s_add_u32 s26, s26, {WF_OFF}")
        flag_store(A, "s26", 70)
        A.label(l)
    tag_get(A, 40)
    A("s_waitcnt vmcnt(0)")
    flags()
    l = when(f"s_cmp_eq_u32 s{LCH}, 2")
    A("s_mov_b32 s13, 0x%x" % NLOG2E)
    for m in ("quad_perm:[1,0,3,2]", "quad_perm:[2,3,0,1]", "row_half_mirror"):
        A("s_nop 1"); A(f"v_add_f32_dpp v32, v32, v32 {m} row_mask:0xf bank_mask:0xf")
    A("v_mul_f32 v32, s13, v32"); A("v_exp_f32 v32, v32"); A(f"v_mov_b32 v33, s{TAG}")
    A("v_add_f32 v32, 1.0, v32"); A("v_rcp_f32 v32, v32")
    A("s_lshl_b32 s14, s2, 6"); A(f"s_add_u32 s14, s14, {GG_OFF}")
    A("s_mov_b32 exec_lo, 0x01010101"); A("s_mov_b32 exec_hi, 0x01010101")
    A("buffer_store_dwordx2 v[32:33], v0, s[20:23], s14 offen sc1")
    A("s_mov_b64 exec, -1")
    A.label(l)
    hbar(A, 1)
    caddr(A); kaddr(A)
    for i in range(32): A(f"v_mov_b32 v{172+i}, 0")
    A("v_and_b32 v68, 31, v0"); A("v_lshlrev_b32 v68, 2, v68")
    A(f"s_lshr_b32 s29, s{CH}, 6"); A("s_lshl_b32 s29, s29, 8"); A(f"s_add_u32 s29, s29, {UF_OFF}")
    A(f"s_lshl_b32 s31, s{CH}, 12"); A(f"s_add_u32 s30, s31, {UR_OFF}")
    A(f"s_add_u32 m0, s{sL}, {CU}")
    hbar(A, 2)
    hbar(A, 3)
    hbar(A, 4)
    def check(va, so, vd):
        ok = A.newlabel("ok")
        A(f"v_cmp_ne_u32 vcc, s{TAG}, v{vd}"); A(f"s_cbranch_vccz {ok}")
        poll(A, va, so, vd)
        A.label(ok)
    A("v_mov_b32 v74, 0")
    hbar(A, 5)
    l = when(f"s_cmp_eq_u32 s{LCH}, 0")
    A("v_min_u32 v74, 47, v0"); A("v_cmp_lt_u32 vcc, 23, v74"); A("v_lshlrev_b32 v74, 2, v74"); A("v_add_u32 v75, 160, v74")
    A("v_cndmask_b32 v74, v74, v75, vcc")
    A("s_mul_i32 s26, s7, 5"); A("s_lshr_b32 s26, s26, 2"); A("s_lshl_b32 s26, s26, 8"); A(f"s_add_u32 s26, s26, {WF_OFF}")
    A("buffer_load_dword v75, v74, s[20:23], s26 offen sc1")
    A("s_waitcnt vmcnt(0)")
    check(74, "s26", 75)
    A.label(l)
    hbar(A, 6)
    A("buffer_load_dword v69, v68, s[20:23], s29 offen sc1")
    A("v_mov_b32 v70, 0")
    l = when(f"s_cmp_eq_u32 s{RMT}, 1")
    A("buffer_load_dword v71, v70, s[20:23], s18 offen sc1")
    A.label(l)
    A("s_waitcnt vmcnt(0)")
    l = when("s_cmp_eq_u32 s17, 0")
    check(68, "s29", 69)
    for i in range(4): A(f"buffer_load_dwordx4 v1, s[20:23], s30 offen offset:{1024*i} sc1 lds")
    A.label(l)
    l = when(f"s_cmp_eq_u32 s{RMT}, 1")
    check(70, "s18", 71)
    for i in range(3): A(f"buffer_load_dwordx4 v[{80+4*i}:{83+4*i}], v1, s[20:23], s19 offen offset:{1024*i} sc1")
    A.label(l)
    stamp(A, 3)
    A("v_lshlrev_b32 v170, 3, v0")
    A("s_lshl_b32 s24, s6, 9"); A(f"s_add_u32 s24, s24, {GG_OFF}")
    A("buffer_load_dwordx2 v[168:169], v170, s[20:23], s24 offen sc1")
    A(f"v_mov_b32 v8, {FLG}")
    l = when("s_cmp_eq_u32 s16, 0")
    hbar(A, 9)
    if OPT["epk"]: A("s_barrier")
    lds_wait(A, 8, 9, "v_cmp_ne_u32 vcc, 0", sleep=4)
    A("s_branch k_fin")
    A.label(l)
    l = when(f"s_cmp_eq_u32 s{RMT}, 1")
    A("s_waitcnt vmcnt(1)")
    for i in range(12): A(f"v_add_f32 v{ACC+i}, v{ACC+i}, v{80+i}")
    A.label(l)
    kexp0(A)
    lds_wait(A, 8, 9, "v_cmp_ne_u32 vcc, 0", off=40)
    kexp1(A)
    hbar(A, 9)
    kexp2(A)
    conv(A)

def finpre(A):
    sH = LCH; sL = REG
    A("s_mul_i32 s26, s7, 2560"); A("s_lshr_b32 s25, s6, 2"); A("s_mul_i32 s25, s25, 20480"); A("s_add_u32 s26, s26, s25"); A(f"s_add_u32 s26, s26, {YF_OFF}")
    A("v_and_b32 v3, 7, v0")
    A("v_lshrrev_b32 v8, 3, v0"); A("v_lshlrev_b32 v8, 12, v8"); A("v_lshl_add_u32 v8, v3, 4, v8")
    A("s_mul_i32 s27, s7, 327680"); A("s_lshl_b32 s28, s6, 7"); A("s_add_u32 s27, s27, s28"); A(f"s_add_u32 s27, s27, {YT_OFF}")
    A("v_bfe_u32 v2, v0, 2, 2"); A("v_lshlrev_b32 v2, 7, v2")
    A("v_lshrrev_b32 v3, 4, v0"); A("v_lshl_add_u32 v2, v3, 5, v2")
    A("v_and_b32 v3, 3, v0"); A("v_lshl_add_u32 v2, v3, 3, v2"); A(f"v_add_u32 v2, s{sL}, v2")
    A(f"s_mul_i32 s28, s{sH}, 48"); A(f"s_add_u32 s28, s28, s{sL}")
    A("v_lshlrev_b32 v3, 4, v0"); A("v_add_u32 v3, s28, v3")
    A("v_lshlrev_b32 v7, 4, v0"); A(f"v_add_u32 v7, s{sL}, v7")
    A("s_waitcnt vmcnt(0)")
    ok = A.newlabel("ok")
    A(f"v_cmp_ne_u32 vcc, s{TAG}, v169"); A(f"s_cbranch_vccz {ok}")
    poll(A, 170, "s24", 168, 2, tagreg=169)
    A.label(ok)
    A("v_cvt_pk_bf16_f32 v14, v168, 0"); A("v_lshlrev_b32 v15, 16, v14")
    A("v_sub_f32 v12, 1.0, v15"); A("v_cvt_pk_bf16_f32 v12, v12, 0"); A("v_lshlrev_b32 v13, 16, v12")
    A(f"ds_write_b128 v7, v[12:15] offset:{OMG}")
    A(f"s_lshl_b32 s29, s{sH}, 8"); A("s_add_u32 s12, s29, s26"); A("s_add_u32 s13, s12, 768"); A("s_add_u32 s14, s12, 1536")
    A(f"s_add_u32 s15, s26, {9*256}"); A(f"s_cmp_eq_u32 s{sH}, 0"); A("s_cselect_b32 s15, s15, s14")
    lp = A.newlabel("yl"); dn = A.newlabel("yl")
    A("s_mov_b32 s62, 0")
    A.label(lp)
    D = [32, 40, 48, 4]
    for i in range(3): A(f"s_load_dwordx8 s[{D[i]}:{D[i]+7}], s[20:21], s{12+i} glc")
    A("s_load_dwordx4 s[8:11], s[20:21], s15 glc"); A("s_load_dwordx4 s[16:19], s[20:21], s15 offset:16 glc")
    A("s_addk_i32 s62, 1")
    A("s_waitcnt lgkmcnt(0)")
    regs = list(range(32, 56)) + [8, 9, 10, 11, 16, 17, 18, 19]
    A("s_and_b64 s[28:29], s[32:33], s[34:35]"); A("s_or_b64 s[30:31], s[32:33], s[34:35]")
    for r in regs[4::2]:
        A(f"s_and_b64 s[28:29], s[28:29], s[{r}:{r+1}]"); A(f"s_or_b64 s[30:31], s[30:31], s[{r}:{r+1}]")
    A("s_and_b32 s28, s28, s29"); A("s_or_b32 s30, s30, s31")
    A(f"s_xor_b32 s28, s28, s{TAG}"); A(f"s_xor_b32 s30, s30, s{TAG}"); A("s_or_b32 s28, s28, s30")
    A(f"s_cbranch_scc0 {dn}")
    A(f"s_sleep {OPT['psleep']}")
    A(f"s_cmpk_lt_u32 s62, 0x{SPIN:x}"); A(f"s_cbranch_scc1 {lp}")
    A.label(dn)
    for i in range(4):
        A(f"s_add_u32 s28, s{sH}, {3*i}")
        if i == 3: A(f"s_cmp_lg_u32 s{sH}, 0"); A(f"s_cbranch_scc1 {dn}x")
        A("s_lshl_b32 s28, s28, 15"); A(f"s_add_u32 m0, s{sL}, {1024*i}"); A("s_add_u32 s28, s28, s27")
        A("buffer_load_dwordx4 v8, s[20:23], s28 offen sc1 lds")
    A.label(dn + "x")
    stamp(A, 7)
    A("s_waitcnt vmcnt(0)")
    for i in range(4):
        A(f"ds_read_b64_tr_b16 v[{8+4*i}:{9+4*i}], v2 offset:{1024*i}")
        A(f"ds_read_b64_tr_b16 v[{10+4*i}:{11+4*i}], v2 offset:{1024*i+512}")
    for i in range(4):
        A(f"s_waitcnt lgkmcnt({6-i})" if i < 3 else "s_waitcnt lgkmcnt(3)")
        A(f"ds_write_b128 v3, v[{8+4*i}:{11+4*i}] offset:{A2O + A2S*i}")
    stamp(A, 8)

def build():
    A = Asm()
    A.raw("; gated_mix: S4D long conv (Toeplitz MFMA) + SwiGLU FFN + gate, single persistent launch (generated)")
    A.raw(f"; @launch grid=(256,1,1) block=(512,1,1) lds={LDS_BYTES}")
    A.raw('.amdgcn_target "amdgcn-amd-amdhsa--gfx950"')
    kernel_begin(A, NAME)
    A("s_cmp_ge_u32 s2, 256"); A("s_cbranch_scc1 k_end")
    stamp_begin(A)
    if OPT["probe"] >= 0:
        A("s_memrealtime s[64:65]"); A("s_waitcnt lgkmcnt(0)"); A("s_mov_b32 s66, s64")
    A("s_load_dwordx16 s[32:47], s[0:1], 0")
    A("s_load_dwordx8 s[48:55], s[0:1], 64")
    A("s_load_dwordx4 s[56:59], s[0:1], 96")
    A("s_load_dwordx2 s[20:21], s[0:1], 112")
    A("v_lshrrev_b32 v1, 6, v0"); A("v_and_b32 v0, 63, v0"); A("v_readfirstlane_b32 s3, v1")
    A(f"s_and_b32 s{XCD}, s2, 7"); A(f"s_lshr_b32 s{RR}, s2, 3")
    ev = [(0,1,1,2),(1,1,1,1),(1,2,2,1),(2,1,1,1),(0,0,0,0),(0,0,0,1),(1,0,0,2),(2,0,0,1)]
    od = [(0,1,1,1),(0,2,2,1),(1,1,1,1),(1,2,2,1),(0,0,0,0),(0,0,0,2),(1,0,0,2),(2,0,2,0)]
    enc = lambda t: sum((r | (sl << 2) | (p << 4) | (c << 6)) << (8*i) for i, (r, sl, p, c) in enumerate(t))
    A(f"s_mov_b32 s10, 0x{enc(ev) & 0xffffffff:x}"); A(f"s_mov_b32 s11, 0x{enc(ev) >> 32:x}")
    A("s_cmp_eq_u32 s3, 4"); A("s_cbranch_scc1 k_l")
    A(f"s_lshr_b32 s18, s{RR}, 1"); A("s_lshl_b32 s18, s18, 3"); A(f"s_add_u32 s18, s18, s{XCD}")
    A(f"s_and_b32 s8, s{RR}, 1")
    A(f"s_cselect_b32 s10, 0x{enc(od) & 0xffffffff:x}, s10"); A(f"s_cselect_b32 s11, 0x{enc(od) >> 32:x}, s11")
    A("s_lshl_b32 s9, s3, 3"); A("s_lshr_b64 s[10:11], s[10:11], s9")
    A(f"s_and_b32 s{LCH}, s10, 3"); A("s_bfe_u32 s17, s10, 0x20004"); A("s_bfe_u32 s16, s10, 0x20006")
    A("s_cmp_lt_u32 s3, 4"); A("s_cselect_b32 s14, s16, 1")
    A("s_mul_i32 s9, s8, 3"); A(f"s_add_u32 s9, s9, s{LCH}")
    A(f"s_cmp_eq_u32 s{LCH}, 2"); A("s_cselect_b32 s9, 2, s9"); A("s_cselect_b32 s13, s16, 0")
    A(f"s_mul_i32 s{CH}, s18, 5"); A(f"s_add_u32 s{CH}, s{CH}, s9")
    kpass(A)
    kgive(A)
    mwave(A)
    A.label("k_post")
    post(A)
    stamp_end(A, 0)
    if OPT["probe"] >= 0:
        A("s_waitcnt vmcnt(0)")
        stamp(A, 13)
        A("s_cmp_lg_u32 s3, 1"); A("s_cbranch_scc1 k_end")
        A(f"s_cmp_lg_u32 s2, {OPT['pwg']}"); A("s_cbranch_scc1 k_end")
        A("s_sub_u32 s70, s66, s64"); A(f"s_mul_i32 s70, s70, {OPT['pk']}"); A("s_min_u32 s70, s70, 20000")
        if OPT["xp"]:
            A("s_getreg_b32 s70, hwreg(HW_REG_XCC_ID)"); A("s_and_b32 s70, s70, 7"); A("s_add_u32 s70, s70, 1"); A("s_mul_i32 s70, s70, 1000")
        A("s_memrealtime s[68:69]"); A("s_waitcnt lgkmcnt(0)")
        A.label("k_pr")
        A("s_memrealtime s[72:73]"); A("s_waitcnt lgkmcnt(0)")
        A("s_sub_u32 s72, s72, s68"); A("s_cmp_lt_u32 s72, s70"); A("s_cbranch_scc1 k_pr")
    A.label("k_end")
    A("s_endpgm")
    A.label("k_h")
    A(f"s_mov_b32 s{RMT}, s13")
    hwave(A)
    A.label("k_fin")
    finpre(A)
    A("s_branch k_post")
    A.label("k_l")
    loader(A)
    A("s_branch k_post")
    for sl, bk, reg, off in A.tail_code:
        A.label(sl); lds_wait(A, 7, reg, "v_cmp_ne_u32 vcc, 0", off=off); A(f"s_branch {bk}")
    A.label("k_last")
    A("s_endpgm")
    kernel_desc(A, NAME, 256, 102)
    if OPT["m16"]:
        out = []; L = A.lines; i = 0
        while i < len(L):
            if "@" in L[i] and "mfma" in L[i]:
                m1, m2 = L[i].split("@"); out.append(m1)
                if "ds_read" in L[i+1]: out.append(L[i+1]); i += 1
                out.append("    " + m2)
            else: out.append(L[i])
            i += 1
        A.lines = out
    for i, l in enumerate(A.lines):
        if " nt" in l:
            bit = 1 if "ushort" in l else 2 if "lds" in l else 4
            if not OPT["nt"] & bit: A.lines[i] = l.replace(" nt", "")
    return re.sub(r"^    (\w+:)$", r"\1", A.text(), flags=re.M)

if __name__ == "__main__":
    gen1.DIAG = "--diag" in sys.argv
    for a in sys.argv[2:]:
        if "=" in a:
            k, v = a.split("="); OPT[k] = eval(v)
    open(sys.argv[1], "w").write(build())
```

```python
import sys, re, copy
from asmlib import *
import gen1
from gen1 import LOG2E, NLOG2E, LOG2E_LO, LN2, stamp, stamp_begin, stamp_end
NAME = "gated_mix__ssm_conv_s4d__swiglu_ffn__prompt_kernel"
OPT = dict(nf=1, nfg=3, pk=4, pwg=77, probe=-1, hdiag=0, mprio=2, epk=4, barks=2, barg=5, fpos=(3,0), kdepth=8, thr2=0, cprio=1, psleep=1, wb=(0,), lbar=(42,42,42,42,42,42,42,42), ald=(16,3), xord=2, nt=0, arr=2, touch=0, kwait=0, tpos=1, defer=0, b9=1, rs=272, kprio=0, xp=0, m16=0, thr0=0, clate=0, bark=0)
H_OFF = 0
UR_OFF = 6291456
YT_OFF = UR_OFF + 2621440
GG_OFF = YT_OFF + 2621440
HF_OFF = GG_OFF + 16384
UF_OFF = HF_OFF + 128*256
YF_OFF = UF_OFF + 16*256
WF_OFF = YF_OFF + 8*80*256
KF_OFF = WF_OFF + 16*256
KP_OFF = KF_OFF + 128*128
LAST_OFF = KP_OFF + 128*3072
WDF_OFF = 12 << 20
WS_BYTES = 1 << 25
GB = 16384; UB = GB + 12288 + 32; STG = 41024
HB = 3*STG; HS = 13184
FLG = HB + 3*HS
FT = FLG + 120
GL = FT + 256
LDS_BYTES = GL + 256
RS = 272; SS = 16*RS
C0 = 64; C1 = C0 + 4160; CU = 8448
A2O = 4096; A2S = 1072; OMG = 8704
TB2 = 2*STG; GXO = TB2 + 24576; GWO = TB2 + 34816
PB = 176
PR = 336; PW = 64*PR
SPIN = 0x3000
U, LOGA, LOGDT, DSK, WG, WU, WD, GW, OUT, DBG = 32, 34, 42, 44, 48, 50, 52, 54, 56, 58
XCD, RR, R4, C2, LCH, REG = 96, 97, 98, 99, 100, 101
CH, TAG, RMT = 60, 61, 47
_stamp0 = stamp
def stamp(A, i, real=False):
    if OPT["hdiag"] and i != 1: return
    _stamp0(A, i, real)
    if OPT["probe"] == i:
        A("s_memrealtime s[66:67]"); A("s_waitcnt lgkmcnt(0)")
def P2(b): return f"v[{b}:{b+1}]"

def lds_wait(A, vaddr, vtmp, cond, off=0, sleep=0):
    l = A.newlabel("lw"); d = A.newlabel("lw")
    A("s_mov_b32 s62, 0")
    A.label(l)
    A(f"ds_read_b32 v{vtmp}, v{vaddr} offset:{off}")
    A("s_addk_i32 s62, 1")
    A("s_waitcnt lgkmcnt(0)")
    A(f"{cond}, v{vtmp}")
    A(f"s_cbranch_vccz {d}")
    if sleep: A(f"s_sleep {sleep}")
    A("s_cmpk_lt_u32 s62, 0x7000")
    A(f"s_cbranch_scc1 {l}")
    A.label(d)

def poll(A, vaddr, soff, vdst, n=1, tagreg=None):
    l = A.newlabel("pl"); d = A.newlabel("pl")
    tagreg = vdst if tagreg is None else tagreg
    A("s_mov_b32 s62, 0")
    A.label(l)
    A(f"buffer_load_dword{'x2' if n == 2 else ''} {vr(vdst, n)}, v{vaddr}, s[20:23], {soff} offen sc1")
    A("s_addk_i32 s62, 1")
    A("s_waitcnt vmcnt(0)")
    A(f"v_cmp_ne_u32 vcc, s{TAG}, v{tagreg}")
    A(f"s_cbranch_vccz {d}")
    A(f"s_sleep {OPT['psleep']}")
    A(f"s_cmpk_lt_u32 s62, 0x{SPIN:x}")
    A(f"s_cbranch_scc1 {l}")
    A.label(d)

def flag_store(A, soff, vt, rep=1, stride=0, wait=True):
    A(f"v_mov_b32 v{vt}, s{TAG}")
    A(f"v_mul_u32_u24 v{vt+1}, {stride}, v0")
    A(f"s_mov_b64 exec, {(1 << rep) - 1}")
    if wait: A("s_waitcnt vmcnt(0)")
    A(f"buffer_store_dword v{vt}, v{vt+1}, s[20:23], {soff} offen sc1")
    A("s_mov_b64 exec, -1")

def tag_get(A, vt, issued=False):
    l = A.newlabel("tg"); d = A.newlabel("tg")
    if not issued: A(f"s_load_dword s{TAG}, s[{DBG}:{DBG+1}], 0")
    A("s_mov_b32 s62, 0")
    A("s_waitcnt lgkmcnt(0)")
    A.label(l)
    A(f"s_cmp_lg_u32 s{TAG}, 0"); A(f"s_cbranch_scc1 {d}")
    A(f"v_mov_b32 v{vt}, 0")
    A(f"global_load_dword v{vt}, v{vt}, s[{DBG}:{DBG+1}] sc1")
    A("s_addk_i32 s62, 1")
    A("s_waitcnt vmcnt(0)")
    A(f"v_readfirstlane_b32 s{TAG}, v{vt}")
    A(f"s_sleep {OPT['psleep']}")
    A(f"s_cmpk_lt_u32 s62, 0x{SPIN:x}"); A(f"s_cbranch_scc1 {l}")
    A.label(d)

def spoll(A, soff, n, sleep):
    l = A.newlabel("sp"); d = A.newlabel("sp")
    A("s_mov_b32 s62, 0")
    A.label(l)
    A(f"s_load_dword{'x8 s[36:43]' if n == 8 else ' s36'}, s[20:21], {soff} glc")
    A("s_addk_i32 s62, 1")
    A("s_waitcnt lgkmcnt(0)")
    if n == 8:
        A("s_min_u32 s44, s36, s37"); A("s_max_u32 s45, s36, s37")
        for i in range(2, 8):
            A(f"s_min_u32 s44, s44, s{36+i}"); A(f"s_max_u32 s45, s45, s{36+i}")
        A(f"s_xor_b32 s44, s44, s{TAG}"); A(f"s_xor_b32 s45, s45, s{TAG}"); A("s_or_b32 s44, s44, s45")
    else:
        A(f"s_cmp_lg_u32 s36, s{TAG}")
    A(f"s_cbranch_scc0 {d}")
    A(f"s_sleep {sleep}")
    A(f"s_cmpk_lt_u32 s62, 0x{SPIN:x}"); A(f"s_cbranch_scc1 {l}")
    A.label(d)

def tiles(A):
    if OPT["arr"] == 1:
        A(f"s_and_b32 s4, s{RR}, 15"); A(f"s_lshl_b32 s5, s{XCD}, 1"); A(f"s_lshr_b32 s6, s{RR}, 4"); A("s_add_u32 s5, s5, s6")
    elif OPT["arr"] == 0:
        A(f"s_lshr_b32 s4, s{XCD}, 1"); A("s_lshl_b32 s4, s4, 2"); A(f"s_and_b32 s5, s{RR}, 3"); A("s_add_u32 s4, s4, s5")
        A(f"s_and_b32 s5, s{XCD}, 1"); A("s_lshl_b32 s5, s5, 3"); A(f"s_lshr_b32 s6, s{RR}, 2"); A("s_add_u32 s5, s5, s6")
    else:
        A(f"s_lshr_b32 s4, s{XCD}, 2"); A("s_lshl_b32 s4, s4, 3"); A(f"s_and_b32 s5, s{RR}, 7"); A("s_add_u32 s4, s4, s5")
        A(f"s_and_b32 s5, s{XCD}, 3"); A("s_lshl_b32 s5, s5, 2"); A(f"s_lshr_b32 s6, s{RR}, 3"); A("s_add_u32 s5, s5, s6")
    A(f"s_lshr_b32 s6, s{XCD}, 1"); A("s_lshl_b32 s6, s6, 3"); A(f"s_and_b32 s7, s{RR}, 7"); A("s_add_u32 s6, s6, s7")
    A(f"s_and_b32 s7, s{XCD}, 1"); A("s_lshl_b32 s7, s7, 2"); A(f"s_lshr_b32 s22, s{RR}, 3"); A("s_add_u32 s7, s7, s22")
    A("s_mov_b32 s22, 0x%x" % WS_BYTES); A("s_mov_b32 s23, 0x20000")

def loader(A):
    A("s_getpc_b64 s[24:25]")
    A.label("k_pc")
    A(f"s_sub_u32 s24, s24, k_pc - {NAME}"); A("s_subb_u32 s25, s25, 0")
    A(f"v_lshlrev_b32 v8, 5, v0"); A(f"v_add_u32 v8, s{RR}, v8"); A("v_lshlrev_b32 v8, 7, v8")
    A(f"v_min_u32 v8, k_last - {NAME}, v8")
    A("v_mov_b32 v23, s25"); A("v_add_co_u32 v22, vcc, s24, v8"); A("v_addc_co_u32 v23, vcc, 0, v23, vcc")
    def ct():
        A("s_mov_b64 exec, 0xff"); A("global_load_dword v24, v[22:23], off"); A("s_mov_b64 exec, -1")
    if not OPT["clate"]: ct()
    A("v_lshlrev_b32 v8, 2, v0"); A(f"v_add_u32 v8, {FLG}, v8"); A("v_mov_b32 v9, 1")
    A("ds_write_b32 v8, v9")
    A(f"s_and_b32 s24, s{RR}, 15"); A("s_mul_i32 s24, s24, 12288");
    if OPT["arr"] == 1: A(f"s_mul_i32 s25, s{XCD}, 384")
    elif OPT["arr"] == 0:
        A(f"s_and_b32 s25, s{XCD}, 1"); A("s_lshl_b32 s25, s25, 2"); A(f"s_lshr_b32 s26, s{XCD}, 1"); A("s_add_u32 s25, s25, s26"); A("s_mul_i32 s25, s25, 384")
    else:
        A(f"s_and_b32 s25, s{XCD}, 3"); A("s_lshl_b32 s25, s25, 1"); A(f"s_lshr_b32 s26, s{XCD}, 2"); A("s_add_u32 s25, s25, s26"); A("s_mul_i32 s25, s25, 384")
    A("s_add_u32 s24, s24, s25")
    A("v_min_u32 v18, 59, v0"); A("v_mul_u32_u24 v19, 43, v18"); A("v_lshrrev_b32 v19, 9, v19")
    A("v_mul_u32_u24 v9, 171, v18"); A("v_lshrrev_b32 v9, 9, v9")
    A("v_mul_u32_u24 v19, %d, v19" % (196608 - 4*3072)); A("v_mul_u32_u24 v9, %d, v9" % (3072 - 384))
    A("v_lshl_add_u32 v18, v18, 7, v19"); A("v_add3_u32 v18, v18, v9, s24")
    A("v_lshrrev_b32 v8, 3, v0"); A("v_mul_u32_u24 v8, 1280, v8"); A("v_and_b32 v10, 7, v0"); A("v_lshl_add_u32 v16, v10, 4, v8")
    A("s_and_b32 s26, s2, 31"); A("s_lshr_b32 s27, s2, 5")
    A("s_mul_i32 s28, s26, 81920"); A("s_lshl_b32 s27, s27, 7"); A("s_add_u32 s28, s28, s27")
    A("s_mov_b32 s10, 2621440"); A("s_mov_b32 s11, 0x20000")
    A(f"s_cmp_ge_u32 s{RR}, 16")
    A("s_waitcnt lgkmcnt(0)")
    A(f"s_cselect_b32 s24, s{WU}, s{WG}"); A(f"s_cselect_b32 s25, s{WU+1}, s{WG+1}")
    A(f"s_mov_b32 s8, s{U}"); A(f"s_mov_b32 s9, s{U+1}")
    A("s_barrier")
    stamp(A, 1)
    if OPT["clate"]: ct()
    if OPT["touch"] & 1: A("global_load_dword v20, v18, s[24:25] nt")
    def utile(h):
        for i in range(8):
            A(f"s_mov_b32 m0, {TB2 + 8192*h + 1024*i}"); A(f"v_xor_b32 v17, {16*i}, v16")
            A("buffer_load_dwordx4 v17, s[8:11], s28 offen lds"); A("s_add_u32 s28, s28, 10240")
    utile(0)
    A(f"s_mov_b32 s36, s{WD}"); A(f"s_mov_b32 s37, s{WD+1}"); A("s_mov_b32 s38, 1966080"); A("s_mov_b32 s39, 0x20000")
    A("s_mul_i32 s27, s2, 2731"); A("s_lshr_b32 s27, s27, 16"); A("s_mul_i32 s26, s27, 24"); A("s_sub_u32 s26, s2, s26")
    A("s_mul_i32 s45, s26, 81920"); A("s_lshl_b32 s27, s27, 7"); A("s_add_u32 s45, s45, s27"); A("s_sub_u32 s45, s45, 10240")
    n1 = A.newlabel("n1"); n2 = A.newlabel("n2")
    A("s_cmp_ge_u32 s2, 240"); A(f"s_cbranch_scc1 {n1}")
    for i in range(8):
        A(f"s_mov_b32 m0, {TB2 + 8192 + 1024*i}"); A("s_add_u32 s45, s45, 10240")
        A("buffer_load_dwordx4 v16, s[36:39], s45 offen nt lds")
    A.label(n1)
    A("s_cmp_ge_u32 s2, 64"); A(f"s_cbranch_scc1 {n2}")
    A(f"s_sub_u32 s28, s28, {81920 - 1024}")
    utile(2)
    A.label(n2)
    A("v_lshlrev_b32 v1, 4, v0"); A("v_mov_b32 v14, 0x7ffffff0")
    A(f"s_mov_b32 s40, s{GW}"); A(f"s_mov_b32 s41, s{GW+1}"); A("s_mov_b32 s42, 1280"); A("s_mov_b32 s43, 0x20000")
    A("s_mul_i32 s46, s2, 10240")
    for (o, n) in ((0, 4), (4096, 4), (8192, 2)):
        A(f"s_mov_b32 m0, {GXO + o}"); A(f"s_add_u32 s28, s46, {o}")
        for i in range(n): A(f"buffer_load_dwordx4 v1, s[8:11], s28 offen offset:{1024*i} lds")
    A(f"s_mov_b32 m0, {GWO}"); A("v_add_u32 v19, %d, v18" % (5*196608))
    for i in range(2): A(f"buffer_load_dwordx4 v1, s[40:43], 0 offen offset:{1024*i} lds")
    A(f"s_mov_b32 m0, {FT}"); A("s_nop 0")
    A("buffer_load_dword v14, s[8:11], 0 offen lds")
    if OPT["touch"] & 2: A("global_load_dword v21, v19, s[24:25] nt")
    tiles(A)
    A("v_lshrrev_b32 v9, 4, v0"); A("v_xor_b32 v9, v9, v10"); A("v_lshl_add_u32 v2, v9, 4, v8")
    A("v_xor_b32 v9, 4, v9"); A("v_lshl_add_u32 v3, v9, 4, v8")
    A(f"v_add_u32 v3, {10240-1024}, v3"); A(f"v_add_u32 v4, {20480-2048}, v2"); A(f"v_add_u32 v5, {20480-2048}, v3")
    for i in range(3):
        A(f"v_add_u32 v9, {64*i}, v0"); A("v_mul_u32_u24 v10, 5462, v9"); A("v_lshrrev_b32 v10, 16, v10")
        A("v_mul_u32_u24 v10, 2880, v10"); A(f"v_lshl_add_u32 v{11+i}, v0, 4, v10")
    A("v_mov_b32 v51, 0")
    A("s_mul_i32 s26, s4, 163840"); A("s_mul_i32 s27, s5, 192")
    A("s_mov_b32 s29, 0"); A("s_mov_b32 s30, 0"); A(f"s_mov_b32 s31, {FT-4}")
    A(f"s_mov_b32 s12, s{WG}"); A(f"s_mov_b32 s13, s{WG+1}"); A("s_mov_b32 s14, 1966080"); A("s_mov_b32 s15, 0x20000")
    A(f"s_mov_b32 s16, s{WU}"); A(f"s_mov_b32 s17, s{WU+1}"); A("s_mov_b32 s18, 1966080"); A("s_mov_b32 s19, 0x20000")
    def flag(fill):
        A("s_mov_b32 m0, s31"); A(fill)
        A("buffer_load_dword v14, s[8:11], 0 offen lds")
    def tail():
        flag("s_sub_u32 s31, s31, 4")
        A(f"s_add_u32 s29, s29, {STG}"); A(f"s_cmp_eq_u32 s29, {3*STG}"); A("s_cselect_b32 s29, 0, s29")
        A("s_add_u32 s30, s30, 1")
    l1 = A.newlabel("ld")
    cnt = [0]
    extra = {1: [f"s_add_u32 s33, s29, {STG}"], 2: [f"s_cmp_eq_u32 s33, {3*STG}", "s_cselect_b32 s33, 0, s33"], 4: ["s_add_u32 s30, s30, 1"],
             26: ["s_add_u32 s26, s26, 128"], 37: ["s_add_u32 s27, s27, 196608"], 40: ["s_mov_b32 s29, s33"]}
    def dma(x):
        A(x); cnt[0] += 1
        for e in extra.get(cnt[0], []): A(e)
        if cnt[0] in OPT["lbar"]:
            sk = A.newlabel("sk")
            A(f"s_bitcmp0_b32 s{36 + sites.index(cnt[0])}, s30"); A(f"s_cbranch_scc1 {sk}")
            if OPT["nf"]: A(f"s_waitcnt vmcnt({cnt[0]})")
            A("s_barrier")
            A.label(sk)
    def xq(q):
        A(f"s_add_u32 m0, s29, {4096*q}"); A(f"s_add_u32 s28, s26, {40960*q}")
        for i in range(4): dma(f"buffer_load_dwordx4 v{2+i}, s[8:11], s28 offen offset:{1024*i} lds")
    def wq(q):
        A(f"s_add_u32 m0, s29, {GB + 3072*q}"); A(f"s_add_u32 s28, s27, {49152*q}")
        for i in range(3): dma(f"buffer_load_dwordx4 v{11+i}, s[12:15], s28 offen offset:{1024*i} lds")
        A(f"s_add_u32 m0, s29, {UB + 3072*q}"); A("s_nop 0")
        for i in range(3): dma(f"buffer_load_dwordx4 v{11+i}, s[16:19], s28 offen offset:{1024*i} lds")
    def fl():
        A("s_mov_b32 m0, s31"); A("s_sub_u32 s31, s31, 4")
        dma("buffer_load_dword v14, s[8:11], 0 offen lds")
    sites = sorted(set(OPT["lbar"]))
    for i, p in enumerate(sites): A(f"s_mov_b32 s{36+i}, {sum(1 << (k+2) for k, q in enumerate(OPT['lbar']) if q == p)}")
    A.label(l1)
    if OPT["xord"] == 0: wq(0); xq(0); xq(1); wq(1); xq(2); xq(3)
    elif OPT["xord"] == 1: xq(0); xq(1); xq(2); xq(3); wq(0); wq(1)
    elif OPT["xord"] == 2: wq(0); wq(1); xq(0); xq(1); xq(2); xq(3)
    fl(); wq(2); wq(3); fl()
    A("s_cmp_lt_u32 s30, 10"); A(f"s_cbranch_scc1 {l1}")
    stamp(A, 2)
    for p in OPT["wb"]:
        if p == 0: A("s_barrier")
    A("s_mul_i32 s26, s7, 245760"); A(f"s_add_u32 s26, s26, {WDF_OFF + 30720}")
    l2 = A.newlabel("ld"); l4 = A.newlabel("ld")
    def bars(n, cur):
        for p in OPT["wb"]:
            if p and p % 40 == n % 40:
                sk = A.newlabel("sk")
                A(f"s_cmp_lg_u32 s30, {10 + p//40}"); A(f"s_cbranch_scc1 {sk}"); A("s_barrier"); A.label(sk)
    A.label(l2)
    for w in range(4):
        for (o, n) in ((0, 4), (4096, 4), (8192, 2)):
            A(f"s_add_u32 m0, s29, {10240*w + o}"); A(f"s_add_u32 s28, s26, {61440*w + o}")
            if OPT["thr2"]: A(f"s_waitcnt vmcnt({OPT['thr2']})")
            for i in range(n): A(f"buffer_load_dwordx4 v1, s[20:23], s28 offen offset:{1024*i} sc1 lds")
        if w < 3: bars(10*w + 10, 0)
    tail()
    bars(40, 1)
    A("s_add_u32 s26, s26, 10240")
    A("s_cmp_lt_u32 s30, 13"); A(f"s_cbranch_scc1 {l2}")
    stamp(A, 3)

ACC1 = 64
def msetup(A):
    A("s_lshr_b32 s8, s3, 1"); A("s_and_b32 s9, s3, 1")
    A("v_and_b32 v8, 31, v0"); A("v_lshrrev_b32 v9, 5, v0")
    A("v_bfe_u32 v10, v0, 1, 3"); A("v_xor_b32 v10, v10, v9")
    A("v_lshlrev_b32 v14, 7, v8"); A("s_lshl_b32 s10, s8, 13"); A("v_add_u32 v14, s10, v14")
    for ks in range(4):
        A(f"v_xor_b32 v12, {2*ks}, v10"); A(f"v_lshl_add_u32 v{2+ks}, v12, 4, v14")
    A("v_bfe_u32 v12, v0, 2, 2"); A("v_lshl_add_u32 v12, v9, 3, v12"); A("v_mul_u32_u24 v6, 192, v12")
    A("v_and_b32 v12, 3, v0"); A("v_lshl_add_u32 v6, v12, 3, v6")
    A("v_bfe_u32 v12, v0, 4, 1"); A(f"v_mul_u32_u24 v12, {UB-GB}, v12"); A("v_add_u32 v6, v6, v12")
    A("s_mul_i32 s10, s9, 96"); A(f"s_add_u32 s10, s10, {GB}"); A("v_add_u32 v6, s10, v6")
    A(f"v_mov_b32 v7, {FT - 8 - (56 if OPT['nf'] else 0)}")
    A("s_mov_b32 s54, 0x%x" % NLOG2E); A("s_mov_b32 s55, 0x%x" % NLOG2E)
    A("v_and_b32 v10, 15, v0"); A("v_lshlrev_b32 v10, 4, v10"); A("v_lshl_add_u32 v10, v9, 8, v10")
    A("v_bfe_u32 v12, v0, 4, 1"); A("v_lshl_add_u32 v10, v12, 10, v10")
    A("s_lshl_b32 s18, s4, 1"); A("s_add_u32 s18, s18, s8")
    A("s_mul_i32 s11, s18, 196608"); A("s_mul_i32 s12, s5, 6"); A("s_mul_i32 s13, s9, 3"); A("s_add_u32 s12, s12, s13")
    for nt in range(3):
        A(f"s_add_u32 s13, s12, {nt}")
        A("s_lshr_b32 s10, s13, 1"); A("s_lshl_b32 s10, s10, 12")
        A("s_and_b32 s13, s13, 1"); A("s_lshl_b32 s13, s13, 9"); A("s_add_u32 s10, s10, s13")
        A(f"s_add_u32 s{48+nt}, s10, s11")
    A("s_lshl_b32 s51, s18, 2"); A("s_lshr_b32 s10, s5, 2"); A("s_add_u32 s51, s51, s10"); A("s_lshl_b32 s51, s51, 8")
    A("s_and_b32 s10, s5, 3"); A("s_lshl_b32 s10, s10, 1"); A("s_add_u32 s10, s10, s9"); A("s_lshl_b32 s10, s10, 2")
    A("s_add_u32 s51, s51, s10"); A(f"s_add_u32 s51, s51, {HF_OFF}")
    A("s_lshl_b32 s52, s6, 2"); A("s_add_u32 s52, s52, s3"); A("s_lshl_b32 s52, s52, 8"); A(f"s_add_u32 s52, s52, {HF_OFF}")
    A("s_mul_i32 s53, s6, 196608"); A("s_mul_i32 s10, s3, 49152"); A("s_add_u32 s53, s53, s10")
    A("s_mul_i32 s10, s3, 10240"); A("v_add_u32 v11, s10, v1")

def kgive(A):
    A("v_add_u32 v15, s19, v1")
    A("s_nop 4")
    for i in range(3): A(f"ds_write_b128 v15, v[{20+4*i}:{23+4*i}] offset:{1024*i}")

def mtasks(A):
    dn = A.newlabel("mt"); wd = A.newlabel("mt"); ur = A.newlabel("mt")
    A("s_sub_u32 s24, s3, 1"); A("s_cmp_ge_u32 s24, 3"); A(f"s_cbranch_scc1 {dn}")
    A("v_lshrrev_b32 v40, 3, v0"); A("v_and_b32 v41, 7, v0"); A(f"v_mov_b32 v42, {FT}")
    lds_wait(A, 42, 43, "v_cmp_ne_u32 vcc, 0", sleep=1)
    A("s_cmp_eq_u32 s3, 2"); A(f"s_cbranch_scc1 {wd}")
    A("s_mov_b32 s24, s2"); A(f"s_mov_b32 s25, {TB2}")
    A("s_cmp_eq_u32 s3, 1"); A(f"s_cbranch_scc1 {ur}")
    A("v_lshlrev_b32 v42, 4, v41"); A(f"v_add_u32 v42, {GXO}, v42"); A("v_mul_u32_u24 v43, 1280, v40"); A("v_add_u32 v43, v43, v42")
    for i in range(10):
        A(f"ds_read_b128 v[{160+4*i}:{163+4*i}], v43 offset:{128*i}")
        A(f"ds_read_b128 v[{200+4*i}:{203+4*i}], v42 offset:{GWO - GXO + 128*i}")
    A("v_mov_b32 v44, 0"); A("v_mov_b32 v45, 0"); A("v_lshlrev_b32 v46, 2, v0"); A(f"v_add_u32 v46, {GL}, v46")
    A("s_waitcnt lgkmcnt(0)")
    for k in range(40): A(f"v_dot2c_f32_bf16 v{44 + k % 2}, v{160+k}, v{200+k}")
    A("s_add_u32 s24, s2, 256"); A(f"s_mov_b32 s25, {TB2 + 16384}"); A("s_cmp_ge_u32 s2, 64")
    A("v_add_f32 v44, v44, v45")
    A("ds_write_b32 v46, v44")
    A(f"s_cbranch_scc1 {dn}")
    A.label(ur)
    A("v_xor_b32 v42, v40, v41"); A("v_lshlrev_b32 v42, 4, v42"); A("v_lshl_add_u32 v42, v41, 10, v42"); A("v_add_u32 v42, s25, v42")
    for e in range(8): A(f"ds_read_b128 v[{160+4*e}:{163+4*e}], v42 offset:{128*e}")
    A("v_lshlrev_b32 v43, 15, v40"); A("v_lshlrev_b32 v41, 4, v41"); A("v_sub_u32 v43, v43, v41"); A("v_add_u32 v43, 4080, v43")
    A("s_mov_b32 s28, 0x05040100"); A("s_mov_b32 s29, 0x07060302")
    A("s_lshr_b32 s25, s24, 5"); A("s_and_b32 s24, s24, 31")
    A("s_lshl_b32 s25, s25, 18"); A("s_lshl_b32 s24, s24, 7"); A("s_sub_u32 s25, s25, s24"); A(f"s_add_u32 s25, s25, {UR_OFF}")
    A("s_waitcnt lgkmcnt(0)")
    for i in range(8):
        o = 192 + 4*i
        for p in range(4):
            lo = 160 + 4*(7-2*p) + i//2; hi = 160 + 4*(6-2*p) + i//2
            A(f"v_perm_b32 v{o+p}, v{hi}, v{lo}, s{28 + (i&1)}")
        A(f"buffer_store_dwordx4 v[{o}:{o+3}], v43, s[20:23], s25 offen sc1")
        A("s_add_u32 s25, s25, 4096")
    A(f"s_branch {dn}")
    A.label(wd)
    A("s_cmp_ge_u32 s2, 240"); A(f"s_cbranch_scc1 {dn}")
    A("v_lshrrev_b32 v42, 5, v0"); A("v_lshlrev_b32 v42, 11, v42"); A("v_bfe_u32 v43, v0, 2, 3"); A("v_lshl_add_u32 v42, v43, 7, v42")
    A("v_and_b32 v43, 3, v0"); A("v_lshl_add_u32 v42, v43, 3, v42"); A(f"v_add_u32 v42, {TB2 + 8192}, v42")
    for dtl in range(4):
        for sg in range(2):
            o = 160 + 4*(2*dtl+sg)
            A(f"ds_read_b64_tr_b16 v[{o}:{o+1}], v42 offset:{4096*sg + 32*dtl}")
            A(f"ds_read_b64_tr_b16 v[{o+2}:{o+3}], v42 offset:{4096*sg + 32*dtl + 1024}")
    A("s_mul_i32 s25, s2, 2731"); A("s_lshr_b32 s25, s25, 16"); A("s_mul_i32 s24, s25, 24"); A("s_sub_u32 s24, s2, s24")
    A("s_mul_i32 s24, s24, 10"); A("s_lshl_b32 s25, s25, 2")
    for dtl in range(4):
        A(f"s_add_u32 s26, s25, {dtl}")
        A("s_mul_i32 s27, s26, 52429"); A("s_lshr_b32 s27, s27, 18"); A("s_mul_i32 s27, s27, 235"); A("s_add_u32 s26, s26, s27")
        A("s_add_u32 s26, s26, s24"); A("s_lshl_b32 s26, s26, 10"); A(f"s_add_u32 s26, s26, {WDF_OFF}"); A("s_add_u32 s27, s26, 5120")
        A(f"s_waitcnt lgkmcnt({12 - 4*dtl})")
        o = 160 + 8*dtl
        A(f"buffer_store_dwordx4 v[{o}:{o+3}], v1, s[20:23], s26 offen sc1")
        A(f"buffer_store_dwordx4 v[{o+4}:{o+7}], v1, s[20:23], s27 offen sc1")
    A.label(dn)

def mwave(A):
    if OPT['tpos'] == 1: mtasks(A)
    sW = 3
    A("s_mov_b32 s16, 0x%x" % ((-2*STG) & 0xffffffff)); A(f"s_mov_b32 s17, {STG}")
    F = [16, 36]
    def reads(ks, f):
        r = []; b = F[f]
        r.append(f"ds_read_b128 v[{b}:{b+3}], v{2+ks}")
        for nt in range(3):
            o = b + 8 + 4*nt
            r.append(f"ds_read_b64_tr_b16 v[{o}:{o+1}], v6 offset:{3072*ks + 32*nt}")
            r.append(f"ds_read_b64_tr_b16 v[{o+2}:{o+3}], v6 offset:{3072*ks + 32*nt + 768}")
        r.append(f"ds_read_b128 v[{b+4}:{b+7}], v{2+ks} offset:4096")
        return r
    def mfmas(f):
        b = F[f]; r = []
        for a in range(2):
            for nt in range(3):
                c = ACC1 + 16*(3*a+nt)
                if OPT["m16"]:
                    c += 8*f
                    r.append(f"v_mfma_f32_16x16x32_bf16 v[{c}:{c+3}], v[{b+8+4*nt}:{b+11+4*nt}], v[{b+4*a}:{b+4*a+3}], v[{c}:{c+3}]@"
                             f"v_mfma_f32_16x16x32_bf16 v[{c+4}:{c+7}], v[{b+4*a}:{b+4*a+3}], v[{b+8+4*nt}:{b+11+4*nt}], v[{c+4}:{c+7}]")
                else:
                    r.append(f"v_mfma_f32_32x32x16_bf16 v[{c}:{c+15}], v[{b+8+4*nt}:{b+11+4*nt}], v[{b+4*a}:{b+4*a+3}], v[{c}:{c+15}]")
        return r
    A("s_mov_b32 s11, 0"); A("s_mov_b32 s12, 0")
    A("s_mul_i32 s14, s7, 245760"); A("s_mul_i32 s15, s3, 61440"); A("s_add_u32 s14, s14, s15"); A(f"s_add_u32 s14, s14, {WDF_OFF}")
    A("s_waitcnt lgkmcnt(0)")
    stamp(A, 12)
    A("s_barrier")
    if not OPT["nf"]: lds_wait(A, 7, 13, "v_cmp_ne_u32 vcc, 0", off=4)
    stamp(A, 2)
    PL = {0: [(1, 5), (1, 6)], 1: [(1, 7)], 2: [(2, 0)], 3: [(2, 1)], 4: [(2, 2), (2, 3)], 5: [(2, 4)]}
    need = {0: (0, 1, 2), 1: (3, 4), 2: (5, 6), 3: (7,), 4: (), 5: ()}
    lp = A.newlabel("g1"); ex_ = A.newlabel("g1x"); slow = A.newlabel("g1s"); back = A.newlabel("g1b")
    slow2 = A.newlabel("g1s"); back2 = A.newlabel("g1b"); nob = A.newlabel("g1n")
    AF = [160+4*i for i in range(24)] + [56, 60, 64, 68, 72, 76]
    def aload(n):
        r = [f"buffer_load_dwordx4 v[{AF[n]}:{AF[n]+3}], v1, s[20:23], s14 offen offset:{1024*(n % 4)} sc1"]
        if n % 4 == 3: r.append("s_add_u32 s14, s14, 4096")
        return r
    slows = []; na = [0]
    def step_items(k, mode):
        last = mode == 2; nf = OPT["nf"]
        ks = k % 4; it = []; ms = mfmas(k % 2)
        def chk(reg, off):
            sl = A.newlabel("g1s"); bk = A.newlabel("g1b"); slows.append((sl, bk, reg, off))
            return [("x", f"v_cmp_ne_u32 vcc, 0, v{reg}"), ("x", f"s_cbranch_vccnz {sl}"), ("x", f"{bk}:")]
        ca = not last and not (nf and mode == 0)
        cb = not (nf and mode in (0, 3))
        held = []
        for g in range(6):
            it.append(("m", ms[g], [(k, r) for r in need[g]]))
            if ks == 2 and g == 2 and ca: it += [("w", "flag")] + chk(13, 4)
            if ks == 0 and g == 3 and cb: it += [("w", "flagB")] + chk(12, 0)
            if nf:
                if mode == 0 and ks == 2 and g == OPT["nfg"]: it += [("w", (k+1, 7)), ("x", "s_barrier")]
                if last and ks == 2 and g == 5: it += [("x", f"s_setprio {OPT['mprio']}")]
            elif ks == OPT["barks"] and g == OPT["barg"] and mode != 1:
                it.append(("w", (k - ks + 3, 7)))
                if last: it += [("x", f"s_setprio {OPT['mprio']}")]
                else: it += [("x", "s_cmp_gt_u32 s11, 7"), ("x", f"s_cbranch_scc1 {nob}"), ("x", "s_waitcnt vmcnt(0)"), ("x", "s_barrier"), ("x", f"{nob}:")]
            for (so, ri) in PL[g]:
                if last and ks + so > 3: continue
                held.append(("r", reads((k+so) % 4, (k+so) % 2)[ri], (k+so, ri)))
            if not (nf and mode == 0 and ks == 2 and 2 <= g < OPT["nfg"]):
                it += held; held = []
            ex = []
            dl = {0: "s13", 3: "s17", 1: "s16", 2: ""}[mode]
            if mode == 0:
                if ks == 0 and g == 2: ex = ["s_add_u32 s12, s12, 1", "s_cmp_eq_u32 s12, 3"]
                if ks == 0 and g == 3: ex = ["s_cselect_b32 s13, s16, s17", "s_cselect_b32 s12, 0, s12"]
                if not nf and ks == 0 and g == 2: ex += ["s_cselect_b32 s13, s16, s17", "s_cselect_b32 s12, 0, s12"]
                if not nf and ks == 0 and g == 3: ex = []
                if ks == 1 and g == 2: ex = ["s_add_u32 s11, s11, 1"]
                if nf and ks == 2 and g == 2: ex = ["s_waitcnt vmcnt(0)"]
                if ks == 3 and g == 2: ex = [f"s_cmp_lt_u32 s11, {7 if nf else 8}"]
            if not last:
                if ks == 1 and g == 1: ex = [f"v_add_u32 v2, {dl}, v2"]
                if ks == 0 and g == 5: ex = [f"v_add_u32 v3, {dl}, v3"] + ([] if nf and mode == 0 else ["v_subrev_u32 v7, 8, v7"])
                if ks == 1 and g == 3: ex = [f"v_add_u32 v4, {dl}, v4"]
                if ks == 3 and g == 3: ex = [f"v_add_u32 v5, {dl}, v5"]
                if ks == 2 and g == 1: ex = [f"v_add_u32 v6, {dl}, v6"]
            if mode in (1, 2):
                pos = 24*(mode-1) + 6*ks + g - OPT["ald"][0]
                if pos >= 0 and g in (1, 2, 3, 5) and na[0] < 26: ex = ex + aload(na[0]); na[0] += 1
            for e in ex: it.append(("x", e))
            if ks == 1 and g == OPT["fpos"][0] and ca: it.append(("r", "ds_read_b32 v13, v7 offset:4", "flag"))
            if ks == 0 and g == OPT["fpos"][1] and cb: it.append(("r", "ds_read_b32 v12, v7", "flagB"))
        return it
    def emit(items, q):
        for i in items:
            tags = i[2] if i[0] == "m" else [i[1]] if i[0] == "w" else []
            if tags:
                pos = max(len(q["ops"]) - 1 - q["ops"][::-1].index(t) for t in tags)
                if pos >= q["done"]:
                    n = min(14, len(q["ops"]) - 1 - pos)
                    q["done"] = len(q["ops"]) - n
                    A(f"s_waitcnt lgkmcnt({n})")
            if i[0] in ("r", "l"): q["ops"].append(i[2] if i[0] == "r" else None)
            if i[0] != "w": A(i[1])
    q = dict(ops=[], done=0)
    emit([("r", reads(0, 0)[r], (0, r)) for r in range(8)] + [("r", reads(1, 1)[ri], (1, ri)) for g in range(6) for (so, ri) in PL[g] if so == 2], q)
    q0 = copy.deepcopy(q); st1 = A.newlabel("g1e")
    emit([(i[0], re.sub(r"v\[\d+:\d+\]$", "0", i[1]), i[2]) if i[0] == "m" else i for i in step_items(0, 0)], q0)
    A(f"s_branch {st1}")
    A.label(lp)
    for k in range(4):
        if k == 1: A.label(st1)
        emit(step_items(k, 0), q)
    A(f"s_cbranch_scc1 {lp}")
    q["done"] = 0
    k0 = 4
    for mode in ([3] if OPT["nf"] else []) + [1, 2]:
        for k in range(k0, k0 + 4): emit(step_items(k, mode), q)
        k0 += 4
    stamp(A, 3)
    A(f"s_load_dword s{TAG}, s[{DBG}:{DBG+1}], 0")
    A(f"v_mov_b32 v7, {FT-92}"); A("v_mov_b32 v5, v11"); A(f"v_add_u32 v6, {2*STG}, v11"); A("s_nop 6")
    def areads(step):
        slot = (10 + step // 2) % 3; r = []
        for dt in range(5):
            o = AF[5*(step % 6) + dt]
            off = (STG if slot == 1 else 0) + 5120*(step % 2) + 1024*dt
            r.append(f"ds_read_b128 v[{o}:{o+3}], v{6 if slot == 2 else 5} offset:{off}")
        return r
    E = 16
    for a in range(2):
        for nt in range(3):
            g = ACC1 + 16*(3*a+nt); u = g + 8
            o = 32 + 4*((3*a+nt) % 4)
            ti = 3*a+nt
            lim = 26 if ti == 0 else 30
            cnt = -(-(30 - na[0]) // max(1, OPT["ald"][1] - ti))
            ins = []
            while cnt > 0 and na[0] < lim:
                ins.append(aload(na[0])); na[0] += 1; cnt -= 1
            mark = len(A.lines)
            if 3*a+nt < OPT['epk']:
                for i in range(4): A(f"v_pk_mul_f32 {P2(E+2*i)}, {P2(g+2*i)}, s[54:55]")
                for i in range(8): A(f"v_exp_f32 v{E+i}, v{E+i}")
                for i in range(4): A(f"v_pk_add_f32 {P2(E+2*i)}, {P2(E+2*i)}, 1.0 op_sel_hi:[1,0]")
                for i in range(8): A(f"v_rcp_f32 v{E+i}, v{E+i}")
                for i in range(4): A(f"v_pk_mul_f32 {P2(g+2*i)}, {P2(g+2*i)}, {P2(u+2*i)}")
                for i in range(4): A(f"v_pk_mul_f32 {P2(g+2*i)}, {P2(g+2*i)}, {P2(E+2*i)}")
            else:
                for i in range(8): A(f"v_mul_f32 v{E+i}, s54, v{g+i}")
                for i in range(8): A(f"v_exp_f32 v{E+i}, v{E+i}")
                for i in range(8): A(f"v_add_f32 v{E+i}, 1.0, v{E+i}")
                for i in range(8): A(f"v_rcp_f32 v{E+i}, v{E+i}")
                for i in range(8): A(f"v_mul_f32 v{g+i}, v{g+i}, v{u+i}")
                for i in range(8): A(f"v_mul_f32 v{g+i}, v{g+i}, v{E+i}")
            if ins:
                body = A.lines[mark:]; del A.lines[mark:]
                step = max(1, len(body) // len(ins))
                for n, l in enumerate(body):
                    if n % step == 0 and ins:
                        for x in ins.pop(0): A(x)
                    A.lines.append(l)
                assert not ins
            for i in range(4): A(f"v_cvt_pk_bf16_f32 v{o+i}, v{g+2*i}, v{g+2*i+1}")
            A(f"buffer_store_dwordx4 v[{o}:{o+3}], v10, s[20:23], s{48+nt} offen offset:{2048*a} sc1")
            if 3*a+nt == OPT["epk"] - 1: A("s_barrier")
    if OPT["mprio"]: A("s_setprio 0")
    stamp(A, 4)
    assert na[0] == 30
    tag_get(A, 14, issued=True)
    flag_store(A, "s51", 14)
    stamp(A, 5)
    A("v_and_b32 v4, 15, v0"); A("v_lshrrev_b32 v3, 4, v0")
    A(f"v_mul_u32_u24 v2, {PB}, v4"); A("v_lshl_add_u32 v2, v3, 3, v2")
    A("s_mul_i32 s26, s3, 10240"); A("v_add_u32 v2, s26, v2")
    spoll(A, "s52", 8, OPT["psleep"])
    stamp(A, 7)
    ACC = 80; HR = 8
    def hload(k, i):
        b = HR + 16*(k % 3)
        r = [f"buffer_load_dwordx4 v[{b+4*i}:{b+4*i+3}], v1, s[20:23], s53 offen offset:{1024*i} sc1"]
        if i == 3: r.append("s_add_u32 s53, s53, 4096")
        return r
    for k in range(3):
        for i in range(4):
            for x in hload(k, i): A(x)
    for k in range(12):
        b = HR + 16*(k % 3); j = k + 2
        ar = areads(j) if 6 <= j < 12 else []
        chk = bool(ar) and j % 2 == 0
        for mt in range(4):
            out = 11 if k + 3 < 12 else 4*(12-k) - mt - 1
            w = f"s_waitcnt vmcnt({out})"
            if mt == 0: w += " lgkmcnt(0)" if k in (0, 11) else " lgkmcnt(5)" if k >= 6 else ""
            A(w)
            if mt == 0 and k in (0, 6): stamp(A, 8 + k//6)
            for dt in range(5):
                c = ACC + 4*(4*dt+mt); af = AF[5*(k % 6) + dt]
                src = "0" if k == 0 else f"v[{c}:{c+3}]"
                A(f"v_mfma_f32_16x16x32_bf16 v[{c}:{c+3}], v[{af}:{af+3}], v[{b+4*mt}:{b+4*mt+3}], {src}")
                if chk and mt == 0 and dt == 0: A(f"ds_read_b32 v3, v7 offset:{4*(5-j//2)}")
                if chk and mt == 1 and dt == 3:
                    sl = A.newlabel("g2s"); bk = A.newlabel("g2b"); slows.append((sl, bk, 3, 4*(5-j//2)))
                    A("s_waitcnt lgkmcnt(0)"); A("v_cmp_ne_u32 vcc, 0, v3"); A(f"s_cbranch_vccnz {sl}"); A.label(bk)
                if ar and mt == 2: A(ar[dt])
            if k + 3 < 12:
                for x in hload(k+3, mt): A(x)
    A.tail_code = slows
    stamp(A, 10)
    A("s_nop 1")
    for mt in range(4):
        for dt in range(5):
            c = ACC + 4*(4*dt+mt); o = 8 + 2*((5*mt+dt) % 16)
            A(f"v_cvt_pk_bf16_f32 v{o}, v{c}, v{c+1}"); A(f"v_cvt_pk_bf16_f32 v{o+1}, v{c+2}, v{c+3}")
            if 5*mt+dt >= 1: A(pw)
            pw = f"ds_write_b64 v2, v[{o}:{o+1}] offset:{(mt >> 1)*STG + 16*(mt & 1)*PB + 32*dt}"
    A(pw)

def post(A):
    A(f"s_mov_b32 s16, s{OUT}"); A(f"s_mov_b32 s17, s{OUT+1}")
    A("s_mov_b32 s18, 2621440"); A("s_mov_b32 s19, 0x20000")
    A("s_mul_i32 s24, s6, 81920"); A("s_mul_i32 s25, s7, 160"); A("s_add_u32 s24, s24, s25")
    A("s_lshl_b32 s27, s3, 6")
    def addr(b):
        A(f"v_add_u32 v{b}, s27, v0")
        A(f"v_mul_u32_u24 v{b+1}, 6554, v{b}"); A(f"v_lshrrev_b32 v{b+1}, 16, v{b+1}")
        A(f"v_mul_u32_u24 v{b+2}, 10, v{b+1}"); A(f"v_sub_u32 v{b+2}, v{b}, v{b+2}")
        A(f"v_mul_u32_u24 v{b+3}, 1280, v{b+1}"); A(f"v_lshl_add_u32 v{b+3}, v{b+2}, 4, v{b+3}")
        A(f"v_mul_u32_u24 v{b+4}, {PB}, v{b+1}"); A(f"v_lshl_add_u32 v{b+4}, v{b+2}, 4, v{b+4}")
        A(f"v_lshrrev_b32 v{b+5}, 5, v{b+1}"); A(f"v_mul_u32_u24 v{b+5}, {STG - 32*PB}, v{b+5}"); A(f"v_add_u32 v{b+4}, v{b+4}, v{b+5}")
        A(f"v_mul_u32_u24 v{b+5}, 86, v{b+2}"); A(f"v_lshrrev_b32 v{b+5}, 8, v{b+5}")
        A(f"v_mul_u32_u24 v{b+6}, {HS+48}, v{b+2}"); A(f"v_mul_u32_u24 v{b+5}, {3*(HS+48) - A2S}, v{b+5}")
        A(f"v_sub_u32 v{b+6}, v{b+6}, v{b+5}"); A(f"v_lshl_add_u32 v{b+6}, v{b+1}, 4, v{b+6}"); A(f"v_add_u32 v{b+6}, {HB + A2O}, v{b+6}")
        A(f"v_lshlrev_b32 v{b+7}, 4, v{b+1}"); A(f"v_add_u32 v{b+7}, {HB + OMG}, v{b+7}")
    def rds(b, d):
        A(f"ds_read_b128 v[{d+20}:{d+23}], v{b+7}")
        for w in range(4): A(f"ds_read_b128 v[{d+4*w}:{d+4*w+3}], v{b+4} offset:{w*10240}")
        A(f"ds_read_b128 v[{d+16}:{d+19}], v{b+6}")
    def calc(b, d, t, rest):
        for w in range(5):
            A(f"s_waitcnt lgkmcnt({rest + 4 - w})")
            c = d + 20 + (2 if w == 4 else 0)
            for k in range(4):
                A(f"v_dot2c_f32_bf16 v{t+2*k}, v{d+4*w+k}, v{c}"); A(f"v_dot2c_f32_bf16 v{t+2*k+1}, v{d+4*w+k}, v{c+1}")
        A("s_nop 0")
        for k in range(4): A(f"v_cvt_pk_bf16_f32 v{d+k}, v{t+2*k}, v{t+2*k+1}")
        A(f"buffer_store_dwordx4 v[{d}:{d+3}], v{b+3}, s[16:19], s24 offen")
    addr(40)
    for i in range(4): A(f"v_pk_mov_b32 {P2(160+2*i)}, 0, 0")
    one = A.newlabel("po"); dn = A.newlabel("po"); o2 = A.newlabel("po")
    A("s_and_b32 s28, s3, 6"); A("s_cmp_lg_u32 s28, 4"); A(f"s_cbranch_scc1 {one}")
    A("s_add_u32 s27, s27, 256"); A("s_setprio 3")
    addr(48)
    for i in range(4): A(f"v_pk_mov_b32 {P2(168+2*i)}, 0, 0")
    A.label(one)
    A("s_waitcnt lgkmcnt(0)")
    A("s_barrier")
    stamp(A, 11)
    A("s_cmp_lg_u32 s28, 4"); A(f"s_cbranch_scc1 {o2}")
    rds(48, 232)
    A.label(o2)
    rds(40, 208)
    calc(40, 208, 160, 0)
    A("s_cmp_lg_u32 s28, 4"); A(f"s_cbranch_scc1 {dn}")
    calc(48, 232, 168, 0)
    A.label(dn)

def pcmul(A, d, s, m):
    A(f"v_pk_mul_f32 {P2(d)}, {P2(s)}, {P2(m)} op_sel:[0,0] op_sel_hi:[1,0]")
    A(f"v_pk_fma_f32 {P2(d)}, {P2(s)}, {P2(m)}, {P2(d)} op_sel:[1,1,0] op_sel_hi:[0,1,1] neg_lo:[0,1,0]")

def kpass(A):
    RAW = 246; FA = 16; ACC = 20
    A(f"s_mul_i32 s28, s{CH}, 384"); A("s_lshl_b32 s29, s17, 7"); A("s_add_u32 s28, s28, s29")
    A("v_lshl_add_u32 v1, v0, 1, s28")
    A(f"s_lshl_b32 s28, s{CH}, 1"); A("s_and_b32 s28, s28, -4")
    A("s_cmp_lt_u32 s14, 2")
    A("s_waitcnt lgkmcnt(0)")
    for a in range(4): A(f"global_load_ushort v{RAW+a}, v1, s[{LOGA+2*a}:{LOGA+2*a+1}] nt")
    A("s_cbranch_scc1 k_one")
    for a in range(4): A(f"global_load_ushort v{RAW+4+a}, v1, s[{LOGA+2*a}:{LOGA+2*a+1}] offset:128 nt")
    A.label("k_one")
    A(f"s_load_dword s30, s[{LOGDT}:{LOGDT+1}], s28")
    A(f"s_load_dword s31, s[{DSK}:{DSK+1}], s28")
    A("s_barrier")
    nt0 = A.newlabel("mk")
    A("s_lshl_b32 s24, s2, 3"); A("s_add_u32 s24, s24, s3"); A("s_cmp_lg_u32 s24, 71"); A(f"s_cbranch_scc1 {nt0}")
    A(f"s_add_u32 s24, s20, {LAST_OFF}"); A("s_addc_u32 s25, s21, 0")
    A("s_load_dword s28, s[24:25], 0")
    A("v_mov_b32 v16, 0")
    A("s_waitcnt lgkmcnt(0)")
    A("s_add_u32 s28, s28, 1"); A("s_max_u32 s28, s28, 1")
    A("v_mov_b32 v17, s28")
    A("s_mov_b64 exec, 1")
    A(f"global_store_dword v16, v17, s[{DBG}:{DBG+1}] sc1")
    A("global_store_dword v16, v17, s[24:25] sc1")
    A("s_mov_b64 exec, -1")
    A.label(nt0)
    tiles(A)
    A("s_bfe_u32 s9, s10, 0x20002")
    A(f"s_mul_i32 s{REG}, s{LCH}, {HS}"); A(f"s_add_u32 s{REG}, s{REG}, {HB}")
    A(f"s_mul_i32 s19, s9, {SS}"); A(f"s_add_u32 s19, s19, s{REG}"); A("s_mov_b32 m0, s19")
    A("v_and_b32 v17, 15, v0"); A("v_lshrrev_b32 v18, 4, v0"); A("v_mov_b32 v10, 0")
    A("s_mov_b32 s24, 0x%x" % LOG2E); A("s_mov_b32 s25, 0x%x" % LOG2E_LO); A("s_mov_b32 s26, 0x%x" % LN2)
    A("s_mov_b32 s27, 0x41000000"); A("s_mov_b32 s28, 0x43000000")
    A(f"v_mul_u32_u24 v{FA}, {RS}, v17"); A(f"v_lshl_add_u32 v{FA}, v18, 4, v{FA}"); A(f"v_add_u32 v{FA}, s19, v{FA}")
    for i in range(6): A(f"v_pk_mov_b32 {P2(ACC+2*i)}, 0, 0")
    DT, DT2, NDT, ONE = 32, 34, 33, 36
    A(f"v_mov_b32 v{ONE}, 0x3f80")
    A("v_lshlrev_b32 v1, 4, v0")
    A("s_cmp_ge_u32 s3, 4"); A("s_cbranch_scc1 k_nosetup")
    msetup(A)
    A.label("k_nosetup")
    A("s_waitcnt lgkmcnt(0)")
    A(f"s_bitcmp1_b32 s{CH}, 0")
    A("s_cselect_b32 s29, 0, 16")
    A("s_lshl_b32 s30, s30, s29"); A("s_and_b32 s30, s30, 0xffff0000")
    A("s_lshl_b32 s31, s31, s29"); A("s_and_b32 s31, s31, 0xffff0000")
    A("s_cmp_eq_u32 s17, 0"); A("s_cselect_b32 s31, s31, 0")
    A("v_mov_b32 v37, s30")
    A(f"v_writelane_b32 v{ACC}, s31, 0")
    A("v_mul_f32 v38, s24, v37"); A("v_fma_f32 v39, v37, s24, -v38"); A("v_fmac_f32 v39, s25, v37")
    A("v_exp_f32 v38, v38"); A("v_mul_f32 v39, s26, v39"); A("v_fmac_f32 v38, v38, v39")
    A("v_cvt_pk_bf16_f32 v38, v38, v38")
    A(f"v_lshlrev_b32 v{DT}, 16, v38")
    A(f"v_add_f32 v{DT2}, v{DT}, v{DT}"); A(f"v_sub_f32 v{NDT}, 0, v{DT}")
    A("s_waitcnt vmcnt(0)")
    stamp(A, 1)
    if OPT["kprio"]:
        A("s_cmp_lt_u32 s3, 4"); A("s_cbranch_scc1 k_loop"); A("s_setprio 1")
    A.label("k_loop")
    A1 = 38; TH = 39
    Z, W, Y = 40, 42, 44
    P = 48; T = 240; QA, QB = 242, 244; PK = 64; B2 = 120
    QF, PF = 176, 192
    A(f"v_lshlrev_b32 v{T}, 16, v{RAW}"); A(f"v_mul_f32 v{T}, s24, v{T}")
    A(f"v_lshlrev_b32 v{TH}, 16, v{RAW+1}")
    A(f"v_exp_f32 v{T}, v{T}")
    A(f"v_lshlrev_b32 v{P}, 16, v{RAW+2}"); A(f"v_lshlrev_b32 v{P+1}, 16, v{RAW+3}")
    A(f"v_cvt_pk_bf16_f32 v{T}, v{T}, v{T}")
    A(f"v_mul_f32 v{TH}, v{TH}, v{DT}")
    A(f"v_lshlrev_b32 v{T}, 16, v{T}")
    A(f"v_mul_f32 v{TH}, 0.15915494, v{TH}")
    A(f"v_mul_f32 v{A1}, v{T}, v{NDT}")
    A(f"v_pk_mul_f32 {P2(P)}, {P2(P)}, {P2(DT2)} op_sel_hi:[1,0]")
    A(f"v_mul_f32 v{A1}, s24, v{A1}")
    A(f"v_pk_mov_b32 {P2(RAW)}, {P2(RAW+4)}, {P2(RAW+4)} op_sel:[0,1]"); A(f"v_pk_mov_b32 {P2(RAW+2)}, {P2(RAW+6)}, {P2(RAW+6)} op_sel:[0,1]")
    for (R, sc) in ((W, "s27"), (Z, None), (Y, "s28")):
        if sc:
            A(f"v_mul_f32 v{T}, {sc}, v{A1}"); A(f"v_mul_f32 v{T+1}, {sc}, v{TH}")
            A(f"v_exp_f32 v{T}, v{T}"); A(f"v_fract_f32 v{T+1}, v{T+1}")
        else:
            A(f"v_exp_f32 v{T}, v{A1}"); A(f"v_fract_f32 v{T+1}, v{TH}")
        A(f"v_cos_f32 v{R}, v{T+1}"); A(f"v_sin_f32 v{R+1}, v{T+1}")
        A("s_nop 0")
        A(f"v_pk_mul_f32 {P2(R)}, {P2(R)}, {P2(T)} op_sel_hi:[1,0]" + (" neg_hi:[1,0]" if R == W else ""))
    pkc = [0]; wph = [f"ds_write_addtid_b32 v{ONE} offset:0"]
    def emit(row, r):
        k = PK + pkc[0]; pkc[0] += 1
        A(f"v_cvt_pk_bf16_f32 v{k}, v{r}, v{r+1}")
        wph.append(f"ds_write_addtid_b32 v{k} offset:{row*RS}")
    def rd(base):
        for t in range(4): wph.append(f"ds_read_b128 v[{base+4*t}:{base+4*t+3}], v{FA} offset:{64*t}")
    def mm(acc, base, n):
        A(f"s_waitcnt lgkmcnt({n})")
        for t in range(4):
            A(f"v_mfma_f32_16x16x32_bf16 v[{acc}:{acc+3}], v[{base+4*t}:{base+4*t+3}], v[{QF+4*t}:{QF+4*t+3}], v[{acc}:{acc+3}]")
    qs = W
    for j in range(2, 17):
        dst = QA if j % 2 == 0 else QB
        if j < 16: pcmul(A, dst, qs, W)
        emit(j-1, qs)
        b = j - 1
        if b <= 7: pcmul(A, P+2*b, P+2*b-2, Z)
        qs = dst
    rd(QF)
    loc = {}
    for b in range(0, 8, 2):
        emit(b, P+2*b); emit(b+1, P+2*b+2)
        pcmul(A, T, P+2*b+2, Y); pcmul(A, P+2*b+2, P+2*b, Y)
        emit(8+b+1, T); emit(8+b, P+2*b+2)
        loc[b] = P+2*b+2
    rd(PF)
    def step(b, row):
        s = loc[b]; d = P+2*b if s == P+2*b+2 else P+2*b+2
        pcmul(A, d, s, Y); loc[b] = d
        return (row, d)
    for a in range(2):
        es = [step(b, 4*a + b//2) for b in (0, 2, 4, 6)]
        for e in es: emit(*e)
    for a in range(4):
        es = [step(b, 8 + 2*a + b//4) for b in (0, 4)]
        for e in es: emit(*e)
    rd(PF+16)
    e = step(0, 0)
    for a in range(1, 10):
        n = step(0, a) if a < 9 else None
        emit(*e); e = n
    rd(PF+32)
    assert pkc[0] == 56
    A("s_cmp_lg_u32 s14, 2"); A("s_cbranch_scc1 k_v1")
    for i in range(28): A(f"v_pk_mov_b32 {P2(B2+2*i)}, {P2(PK+2*i)}, {P2(PK+2*i)} op_sel:[0,1]")
    A("s_mov_b32 s14, 3"); A("s_branch k_loop")
    A.label("k_v1")
    stamp(A, 6)
    if OPT["tpos"] == 0: mtasks(A)
    if OPT["kwait"]:
        A(f"v_mov_b32 v40, {FT - 4*(2 + OPT['kwait'])}")
        lds_wait(A, 40, 41, "v_cmp_ne_u32 vcc, 0", sleep=1)
    stamp(A, 10)
    A.label("k_w")
    n0 = wph.index([x for x in wph if f"v[{PF+16}:" in x][0])
    for x in wph[:n0]: A(x)
    mm(ACC, PF, 14)
    for x in wph[n0:]: A(x)
    mm(ACC+4, PF+16, 13); mm(ACC+8, PF+32, 0)
    A("s_cmp_lg_u32 s14, 3"); A("s_cbranch_scc1 k_w1")
    for i in range(28): A(f"v_pk_mov_b32 {P2(PK+2*i)}, {P2(B2+2*i)}, {P2(B2+2*i)} op_sel:[0,1]")
    A("s_mov_b32 s14, 0"); A("s_branch k_w")
    A.label("k_w1")
    A("s_cmp_ge_u32 s3, 4"); A("s_cbranch_scc1 k_h")

def kaddr(A):
    sL = REG
    A(f"v_add_u32 v39, s{sL}, v1")
    EB = C0
    A("v_lshlrev_b32 v40, 4, v17"); A(f"v_add_u32 v40, s{sL}, v40")
    A("v_lshl_add_u32 v41, v18, 10, v40"); A(f"v_add_u32 v41, {EB + 2048 - 8}, v41")
    A("v_and_b32 v42, 1, v0"); A("v_lshlrev_b32 v42, 3, v42"); A("v_sub_u32 v42, v41, v42")
    A("v_lshl_add_u32 v43, v18, 9, v40"); A("v_lshl_add_u32 v44, v18, 8, v40")
    A("v_lshrrev_b32 v45, 1, v18"); A("v_lshl_add_u32 v45, v45, 8, v40")
    A("v_and_b32 v46, 1, v18"); A("v_lshl_add_u32 v45, v46, 3, v45")
    A("v_mov_b32 v34, 0"); A("v_mov_b32 v35, 0")
    A("v_and_b32 v46, 7, v0"); A("v_lshlrev_b32 v46, 2, v46"); A(f"v_add_u32 v46, s{sL}, v46")
    A("v_lshlrev_b32 v47, 3, v0"); A(f"v_add_u32 v47, s{sL}, v47")

KC = {xy: 56+n for n, xy in enumerate([(0,0),(0,1),(1,1),(2,2),(2,3),(3,3),(1,2)])}
def kexp0(A):
    K0, K1, K2 = 20, 24, 28
    for r in range(4):
        A(f"v_cvt_pk_bf16_f32 v{48+2*r}, v{K2+r}, v{K2+r}"); A(f"v_mov_b32 v{49+2*r}, v{48+2*r}")
    for (x, y), r in KC.items(): A(f"v_cvt_pk_bf16_f32 v{r}, v{K1+x}, v{K1+y}")
    A(f"v_cvt_pk_bf16_f32 v64, v{K0}, v{K0+1}"); A(f"v_cvt_pk_bf16_f32 v65, v{K0+2}, v{K0+3}")
def kexp1(A):
    EB = C0; c = KC
    for r in range(4): A(f"ds_write2_b64 v41, v[{48+2*r}:{49+2*r}], v[{48+2*r}:{49+2*r}] offset0:{32*r} offset1:{32*r+1}")
    for r in range(4): A(f"ds_write_b16 v42, v{48+2*r} offset:{256*r+16}")
    A("s_mov_b32 exec_lo, 0")
    o = (EB - 4) // 4
    A(f"ds_write2_b32 v43, v{c[0,0]}, v{c[0,0]} offset0:{o} offset1:{o+1}")
    A(f"ds_write2_b32 v43, v{c[0,1]}, v{c[1,1]} offset0:{o+2} offset1:{o+3}")
    A(f"ds_write2_b32 v43, v{c[2,2]}, v{c[2,2]} offset0:{o+64} offset1:{o+65}")
    A(f"ds_write2_b32 v43, v{c[2,3]}, v{c[3,3]} offset0:{o+66} offset1:{o+67}")
    A("s_mov_b32 exec_lo, -1"); A("s_mov_b32 exec_hi, 0")
    o = EB + 512
    A(f"ds_write_b16 v44, v{c[0,0]} offset:{o-2}")
    A(f"ds_write2_b32 v44, v{c[0,0]}, v{c[1,2]} offset0:{o//4} offset1:{o//4+1}")
    A(f"ds_write_b32 v44, v{c[2,2]} offset:{o+8}")
    A(f"ds_write_b16 v44, v{c[3,3]} offset:{o+12}")
    A("s_mov_b64 exec, -1")
    A(f"ds_write_b64 v45, v[64:65] offset:{EB}")
    A(f"ds_write_b32 v46, v34 offset:{C0-32}"); A(f"ds_write_b32 v46, v34 offset:{C1-32}")
    A(f"ds_write_b64 v47, v[34:35] offset:{CU+4096}")
    for i in range(4):
        A(f"ds_read_b128 v[{80+8*i}:{83+8*i}], v39 offset:{EB+1024*i}")
        A(f"ds_read_b32 v{72+i}, v39 offset:{EB+1024*i-4}")
def kexp2(A):
    A("s_waitcnt lgkmcnt(0)")
    for i in range(4):
        b = 80+8*i
        A(f"v_alignbit_b32 v{b+4}, v{b}, v{72+i}, 16")
        for k in range(1, 4): A(f"v_alignbit_b32 v{b+4+k}, v{b+k}, v{b+k-1}, 16")
        A(f"ds_write_b128 v39, v[{b+4}:{b+7}] offset:{C1+1024*i}")

def caddr(A):
    sL = REG
    A("v_lshlrev_b32 v2, 4, v18"); A("v_lshlrev_b32 v6, 5, v17"); A("v_sub_u32 v2, v2, v6")
    A(f"v_add_u32 v2, {CU + 4064 - 3584}, v2"); A(f"v_add_u32 v2, s{sL}, v2")
    A("v_sub_u32 v6, 15, v17"); A("v_and_b32 v7, 1, v6"); A("v_sub_u32 v6, v6, v7")
    A(f"v_mul_u32_u24 v3, {C1-C0}, v7"); A("v_lshl_add_u32 v3, v18, 4, v3")
    A("v_lshlrev_b32 v6, 1, v6"); A("v_sub_u32 v3, v3, v6")
    A(f"v_add_u32 v3, {C0}, v3"); A(f"v_add_u32 v3, s{sL}, v3")
    for i in range(1, 4): A(f"v_add_u32 v{3+i}, {1024*i}, v3")
    A("v_lshlrev_b32 v7, 5, v17"); A("v_lshrrev_b32 v8, 1, v18"); A("v_lshl_add_u32 v7, v8, 4, v7")
    A("v_and_b32 v8, 1, v18"); A("v_lshl_add_u32 v7, v8, 9, v7")

def conv(A):
    Y = 172
    TB = [40, 104]
    def reads(f, extra):
        b = TB[f]; r = []
        for q in range(8):
            r.append(f"ds_read_b128 v[{b+32+4*q}:{b+35+4*q}], v2 offset:{512*(7-q) + extra}")
            o = (512*(q & 1) + extra) // 4
            r.append(f"ds_read2_b32 v[{b+4*q}:{b+4*q+1}], v{3+q//2} offset0:{o} offset1:{o+1}")
            r.append(f"ds_read2_b32 v[{b+4*q+2}:{b+4*q+3}], v{3+q//2} offset0:{o+2} offset1:{o+3}")
        return r
    def mfmas(f):
        b = TB[f]; r = []
        for q in range(8):
            for tau in range(8-q):
                t = q + tau
                r.append(f"v_mfma_f32_16x16x32_bf16 v[{Y+4*t}:{Y+4*t+3}], v[{b+4*q}:{b+4*q+3}], v[{b+32+4*tau}:{b+35+4*tau}], v[{Y+4*t}:{Y+4*t+3}]")
        return r
    def inter(ms, rs):
        for i, m in enumerate(ms):
            A(m)
            if i < len(rs): A(rs[i])
    A("s_waitcnt vmcnt(0)")
    for x in reads(0, 0): A(x)
    stamp(A, 9)
    if OPT["epk"]: A("s_barrier")
    stamp(A, 4)
    if OPT["cprio"]: A(f"s_setprio {OPT['cprio']}")
    A("s_mov_b32 s28, 0")
    lp = A.newlabel("cv")
    A.label(lp)
    A("s_waitcnt lgkmcnt(0)")
    inter(mfmas(0), reads(1, 64) + ["s_add_u32 s28, s28, 1"])
    A("s_waitcnt lgkmcnt(0)")
    inter(mfmas(1), reads(0, 128) + [f"v_add_u32 v{r}, 128, v{r}" for r in range(2, 7)] + ["s_cmp_lt_u32 s28, 4"])
    A(f"s_cbranch_scc1 {lp}")
    stamp(A, 5)
    A(f"s_add_u32 s30, s31, {YT_OFF}")
    A(f"s_lshr_b32 s28, s{CH}, 3"); A("s_lshl_b32 s28, s28, 8"); A(f"s_and_b32 s29, s{CH}, 7"); A("s_lshl_b32 s29, s29, 2")
    A("s_add_u32 s28, s28, s29"); A(f"s_add_u32 s28, s28, {YF_OFF}")
    O = 104
    for t in range(8):
        A(f"v_cvt_pk_bf16_f32 v{O+2*t}, v{Y+4*t}, v{Y+4*t+1}"); A(f"v_cvt_pk_bf16_f32 v{O+2*t+1}, v{Y+4*t+2}, v{Y+4*t+3}")
    A("s_nop 1")
    for p in range(4):
        A(f"v_permlane16_swap_b32 v{O+4*p}, v{O+4*p+2}"); A(f"v_permlane16_swap_b32 v{O+4*p+1}, v{O+4*p+3}")
    A("s_nop 1")
    for p in range(4): A(f"buffer_store_dwordx4 v[{O+4*p}:{O+4*p+3}], v7, s[20:23], s30 offen offset:{1024*p} sc1")
    A("s_setprio 0")
    flag_store(A, "s28", 2, 8, 80*256)
    A(f"v_mov_b32 v4, {FLG}"); A("v_mov_b32 v5, 0"); A("ds_write_b32 v4, v5")
    stamp(A, 6)

def hbar(A, i):
    if OPT["hdiag"] == 2: _stamp0(A, i + 2)
    A("s_barrier")
    if OPT["hdiag"] == 1: _stamp0(A, i + 2)

def hwave(A):
    ACC = 20; sL = REG
    def when(cmp, neg=False):
        l = A.newlabel("if"); A(cmp); A(f"s_cbranch_scc{1 if neg else 0} {l}"); return l
    A("s_setprio 0")
    stamp(A, 2)
    A(f"s_add_u32 s8, s2, 256"); A(f"s_cmp_eq_u32 s{LCH}, 0"); A("s_cselect_b32 s8, s2, s8")
    A(f"s_cmp_eq_u32 s{LCH}, 1"); A("s_cselect_b32 s8, 999, s8"); A("s_cselect_b32 s9, s2, 999")
    A(f"v_add_u32 v39, s{sL}, v1")
    A("s_mul_i32 s19, s18, 3072"); A(f"s_add_u32 s19, s19, {KP_OFF}")
    A("s_lshl_b32 s18, s18, 7"); A(f"s_add_u32 s18, s18, {KF_OFF}")
    l = when("s_cmp_eq_u32 s16, 0")
    for i in range(3): A(f"buffer_store_dwordx4 v[{ACC+4*i}:{ACC+4*i+3}], v1, s[20:23], s19 offen offset:{1024*i} sc1")
    A.label(l)
    A("s_barrier")
    A("v_lshlrev_b32 v33, 2, v0"); A(f"v_add_u32 v33, {GL}, v33"); A("ds_read_b32 v32, v33")
    for i in range(3): A(f"ds_read_b128 v[{120+4*i}:{123+4*i}], v39 offset:{SS + 1024*i}")
    for i in range(3): A(f"ds_read_b128 v[{132+4*i}:{135+4*i}], v39 offset:{2*SS + 1024*i}")
    A("s_waitcnt lgkmcnt(0)")
    l = when("s_cmp_ge_u32 s16, 1")
    for i in range(12): A(f"v_add_f32 v{ACC+i}, v{ACC+i}, v{120+i}")
    A.label(l)
    l = when("s_cmp_ge_u32 s16, 2")
    for i in range(12): A(f"v_add_f32 v{ACC+i}, v{ACC+i}, v{132+i}")
    A.label(l)
    hbar(A, 0)
    stamp(A, 12)
    def flags():
        l = when("s_cmp_lt_u32 s8, 320")
        A("s_lshr_b32 s26, s8, 5"); A("s_lshl_b32 s26, s26, 8"); A("s_and_b32 s27, s8, 31"); A("s_lshl_b32 s27, s27, 2")
        A("s_add_u32 s26, s26, s27"); A(f"s_add_u32 s26, s26, {UF_OFF}")
        flag_store(A, "s26", 146)
        A.label(l)
        l = when("s_cmp_eq_u32 s16, 0")
        flag_store(A, "s18", 146, wait=False)
        A.label(l)
        l = when("s_cmp_lt_u32 s9, 240")
        A("s_mul_i32 s26, s9, 2731"); A("s_lshr_b32 s26, s26, 16"); A("s_mul_i32 s26, s26, 160"); A("s_lshl_b32 s27, s9, 2")
        A("s_add_u32 s26, s26, s27"); A(f"s_add_u32 s26, s26, {WF_OFF}")
        flag_store(A, "s26", 146)
        A.label(l)
    tag_get(A, 40)
    A("s_waitcnt vmcnt(0)")
    flags()
    l = when(f"s_cmp_eq_u32 s{LCH}, 2")
    A("s_mov_b32 s13, 0x%x" % NLOG2E)
    for m in ("quad_perm:[1,0,3,2]", "quad_perm:[2,3,0,1]", "row_half_mirror"):
        A("s_nop 1"); A(f"v_add_f32_dpp v32, v32, v32 {m} row_mask:0xf bank_mask:0xf")
    A("v_mul_f32 v32, s13, v32"); A("v_exp_f32 v32, v32"); A(f"v_mov_b32 v33, s{TAG}")
    A("v_add_f32 v32, 1.0, v32"); A("v_rcp_f32 v32, v32")
    A("s_lshl_b32 s15, s2, 6"); A(f"s_add_u32 s15, s15, {GG_OFF}")
    A("s_mov_b32 exec_lo, 0x01010101"); A("s_mov_b32 exec_hi, 0x01010101")
    A("buffer_store_dwordx2 v[32:33], v0, s[20:23], s15 offen sc1")
    A("s_mov_b64 exec, -1")
    A.label(l)
    hbar(A, 1)
    caddr(A); kaddr(A)
    for i in range(32): A(f"v_mov_b32 v{172+i}, 0")
    A("v_and_b32 v144, 31, v0"); A("v_lshlrev_b32 v144, 2, v144")
    A(f"s_lshr_b32 s29, s{CH}, 6"); A("s_lshl_b32 s29, s29, 8"); A(f"s_add_u32 s29, s29, {UF_OFF}")
    A(f"s_lshl_b32 s31, s{CH}, 12"); A(f"s_add_u32 s30, s31, {UR_OFF}")
    A(f"s_add_u32 m0, s{sL}, {CU}")
    hbar(A, 2)
    hbar(A, 3)
    hbar(A, 4)
    def check(va, so, vd):
        ok = A.newlabel("ok")
        A(f"v_cmp_ne_u32 vcc, s{TAG}, v{vd}"); A(f"s_cbranch_vccz {ok}")
        poll(A, va, so, vd)
        A.label(ok)
    A("v_mov_b32 v150, 0")
    hbar(A, 5)
    l = when(f"s_cmp_eq_u32 s{LCH}, 0")
    A("v_min_u32 v150, 47, v0"); A("v_cmp_lt_u32 vcc, 23, v150"); A("v_lshlrev_b32 v150, 2, v150"); A("v_add_u32 v151, 160, v150")
    A("v_cndmask_b32 v150, v150, v151, vcc")
    A("s_mul_i32 s26, s7, 5"); A("s_lshr_b32 s26, s26, 2"); A("s_lshl_b32 s26, s26, 8"); A(f"s_add_u32 s26, s26, {WF_OFF}")
    A("buffer_load_dword v151, v150, s[20:23], s26 offen sc1")
    A("s_waitcnt vmcnt(0)")
    check(150, "s26", 151)
    A.label(l)
    hbar(A, 6)
    A("buffer_load_dword v145, v144, s[20:23], s29 offen sc1")
    A("v_mov_b32 v146, 0")
    l = when(f"s_cmp_eq_u32 s{RMT}, 1")
    A("buffer_load_dword v147, v146, s[20:23], s18 offen sc1")
    A.label(l)
    A("s_waitcnt vmcnt(0)")
    l = when("s_cmp_eq_u32 s17, 0")
    check(144, "s29", 145)
    for i in range(4): A(f"buffer_load_dwordx4 v1, s[20:23], s30 offen offset:{1024*i} sc1 lds")
    A.label(l)
    l = when(f"s_cmp_eq_u32 s{RMT}, 1")
    check(146, "s18", 147)
    for i in range(3): A(f"buffer_load_dwordx4 v[{120+4*i}:{123+4*i}], v1, s[20:23], s19 offen offset:{1024*i} sc1")
    A.label(l)
    stamp(A, 3)
    A("v_lshlrev_b32 v170, 3, v0")
    A("s_lshl_b32 s24, s6, 9"); A(f"s_add_u32 s24, s24, {GG_OFF}")
    A("buffer_load_dwordx2 v[168:169], v170, s[20:23], s24 offen sc1")
    A(f"v_mov_b32 v8, {FLG}")
    l = when("s_cmp_eq_u32 s16, 0")
    A("s_barrier")
    lds_wait(A, 8, 9, "v_cmp_ne_u32 vcc, 0", sleep=4)
    A("s_branch k_fin")
    A.label(l)
    l = when(f"s_cmp_eq_u32 s{RMT}, 1")
    A("s_waitcnt vmcnt(1)")
    for i in range(12): A(f"v_add_f32 v{ACC+i}, v{ACC+i}, v{120+i}")
    A.label(l)
    if True:
        kexp0(A)
        lds_wait(A, 8, 9, "v_cmp_ne_u32 vcc, 0", off=40)
        kexp1(A)
    kexp2(A)
    conv(A)

def finpre(A):
    sH = LCH; sL = REG
    A("s_mul_i32 s26, s7, 2560"); A("s_lshr_b32 s25, s6, 2"); A("s_mul_i32 s25, s25, 20480"); A("s_add_u32 s26, s26, s25"); A(f"s_add_u32 s26, s26, {YF_OFF}")
    A("v_and_b32 v3, 7, v0")
    A("v_lshrrev_b32 v8, 3, v0"); A("v_lshlrev_b32 v8, 12, v8"); A("v_lshl_add_u32 v8, v3, 4, v8")
    A("s_mul_i32 s27, s7, 327680"); A("s_lshl_b32 s28, s6, 7"); A("s_add_u32 s27, s27, s28"); A(f"s_add_u32 s27, s27, {YT_OFF}")
    A("v_bfe_u32 v2, v0, 2, 2"); A("v_lshlrev_b32 v2, 7, v2")
    A("v_lshrrev_b32 v3, 4, v0"); A("v_lshl_add_u32 v2, v3, 5, v2")
    A("v_and_b32 v3, 3, v0"); A("v_lshl_add_u32 v2, v3, 3, v2"); A(f"v_add_u32 v2, s{sL}, v2")
    A(f"s_mul_i32 s28, s{sH}, 48"); A(f"s_add_u32 s28, s28, s{sL}")
    A("v_lshlrev_b32 v3, 4, v0"); A("v_add_u32 v3, s28, v3")
    A("v_lshlrev_b32 v7, 4, v0"); A(f"v_add_u32 v7, s{sL}, v7")
    A("s_waitcnt vmcnt(0)")
    ok = A.newlabel("ok")
    A(f"v_cmp_ne_u32 vcc, s{TAG}, v169"); A(f"s_cbranch_vccz {ok}")
    poll(A, 170, "s24", 168, 2, tagreg=169)
    A.label(ok)
    A("v_cvt_pk_bf16_f32 v14, v168, 0"); A("v_lshlrev_b32 v15, 16, v14")
    A("v_sub_f32 v12, 1.0, v15"); A("v_cvt_pk_bf16_f32 v12, v12, 0"); A("v_lshlrev_b32 v13, 16, v12")
    A(f"ds_write_b128 v7, v[12:15] offset:{OMG}")
    A(f"s_lshl_b32 s29, s{sH}, 8"); A("s_add_u32 s12, s29, s26"); A("s_add_u32 s13, s12, 768"); A("s_add_u32 s14, s12, 1536")
    A(f"s_add_u32 s15, s26, {9*256}"); A(f"s_cmp_eq_u32 s{sH}, 0"); A("s_cselect_b32 s15, s15, s14")
    lp = A.newlabel("yl"); dn = A.newlabel("yl")
    A("s_mov_b32 s62, 0")
    A.label(lp)
    D = [32, 40, 48, 4]
    for i in range(3): A(f"s_load_dwordx8 s[{D[i]}:{D[i]+7}], s[20:21], s{12+i} glc")
    A("s_load_dwordx4 s[8:11], s[20:21], s15 glc"); A("s_load_dwordx4 s[16:19], s[20:21], s15 offset:16 glc")
    A("s_addk_i32 s62, 1")
    A("s_waitcnt lgkmcnt(0)")
    regs = list(range(32, 56)) + [8, 9, 10, 11, 16, 17, 18, 19]
    A("s_and_b64 s[28:29], s[32:33], s[34:35]"); A("s_or_b64 s[30:31], s[32:33], s[34:35]")
    for r in regs[4::2]:
        A(f"s_and_b64 s[28:29], s[28:29], s[{r}:{r+1}]"); A(f"s_or_b64 s[30:31], s[30:31], s[{r}:{r+1}]")
    A("s_and_b32 s28, s28, s29"); A("s_or_b32 s30, s30, s31")
    A(f"s_xor_b32 s28, s28, s{TAG}"); A(f"s_xor_b32 s30, s30, s{TAG}"); A("s_or_b32 s28, s28, s30")
    A(f"s_cbranch_scc0 {dn}")
    A(f"s_sleep {OPT['psleep']}")
    A(f"s_cmpk_lt_u32 s62, 0x{SPIN:x}"); A(f"s_cbranch_scc1 {lp}")
    A.label(dn)
    for i in range(4):
        A(f"s_add_u32 s28, s{sH}, {3*i}")
        if i == 3: A(f"s_cmp_lg_u32 s{sH}, 0"); A(f"s_cbranch_scc1 {dn}x")
        A("s_lshl_b32 s28, s28, 15"); A(f"s_add_u32 m0, s{sL}, {1024*i}"); A("s_add_u32 s28, s28, s27")
        A("buffer_load_dwordx4 v8, s[20:23], s28 offen sc1 lds")
    A.label(dn + "x")
    stamp(A, 7)
    A("s_waitcnt vmcnt(0)")
    for i in range(4):
        A(f"ds_read_b64_tr_b16 v[{8+4*i}:{9+4*i}], v2 offset:{1024*i}")
        A(f"ds_read_b64_tr_b16 v[{10+4*i}:{11+4*i}], v2 offset:{1024*i+512}")
    for i in range(4):
        A(f"s_waitcnt lgkmcnt({6-i})" if i < 3 else "s_waitcnt lgkmcnt(3)")
        A(f"ds_write_b128 v3, v[{8+4*i}:{11+4*i}] offset:{A2O + A2S*i}")
    stamp(A, 8)

def build():
    A = Asm()
    A.raw("; gated_mix: S4D long conv (Toeplitz MFMA) + SwiGLU FFN + gate, single persistent launch (generated)")
    A.raw(f"; @launch grid=(256,1,1) block=(512,1,1) lds={LDS_BYTES}")
    A.raw('.amdgcn_target "amdgcn-amd-amdhsa--gfx950"')
    kernel_begin(A, NAME)
    A("s_cmp_ge_u32 s2, 256"); A("s_cbranch_scc1 k_end")
    stamp_begin(A)
    if OPT["probe"] >= 0:
        A("s_memrealtime s[64:65]"); A("s_waitcnt lgkmcnt(0)"); A("s_mov_b32 s66, s64")
    A("s_load_dwordx16 s[32:47], s[0:1], 0")
    A("s_load_dwordx8 s[48:55], s[0:1], 64")
    A("s_load_dwordx4 s[56:59], s[0:1], 96")
    A("s_load_dwordx2 s[20:21], s[0:1], 112")
    A("v_lshrrev_b32 v1, 6, v0"); A("v_and_b32 v0, 63, v0"); A("v_readfirstlane_b32 s3, v1")
    A(f"s_and_b32 s{XCD}, s2, 7"); A(f"s_lshr_b32 s{RR}, s2, 3")
    ev = [(0,1,1,2),(1,1,1,1),(1,2,2,1),(2,1,1,1),(0,0,0,0),(0,0,0,1),(1,0,0,2),(2,0,0,1)]
    od = [(0,1,1,1),(0,2,2,1),(1,1,1,1),(1,2,2,1),(0,0,0,0),(0,0,0,2),(1,0,0,2),(2,0,2,0)]
    enc = lambda t: sum((r | (sl << 2) | (p << 4) | (c << 6)) << (8*i) for i, (r, sl, p, c) in enumerate(t))
    A(f"s_mov_b32 s10, 0x{enc(ev) & 0xffffffff:x}"); A(f"s_mov_b32 s11, 0x{enc(ev) >> 32:x}")
    A("s_cmp_eq_u32 s3, 4"); A("s_cbranch_scc1 k_l")
    A(f"s_lshr_b32 s18, s{RR}, 1"); A("s_lshl_b32 s18, s18, 3"); A(f"s_add_u32 s18, s18, s{XCD}")
    A(f"s_and_b32 s8, s{RR}, 1")
    A(f"s_cselect_b32 s10, 0x{enc(od) & 0xffffffff:x}, s10"); A(f"s_cselect_b32 s11, 0x{enc(od) >> 32:x}, s11")
    A("s_lshl_b32 s9, s3, 3"); A("s_lshr_b64 s[10:11], s[10:11], s9")
    A(f"s_and_b32 s{LCH}, s10, 3"); A("s_bfe_u32 s17, s10, 0x20004"); A("s_bfe_u32 s16, s10, 0x20006")
    A("s_cmp_lt_u32 s3, 4"); A("s_cselect_b32 s14, s16, 1")
    A("s_mul_i32 s9, s8, 3"); A(f"s_add_u32 s9, s9, s{LCH}")
    A(f"s_cmp_eq_u32 s{LCH}, 2"); A("s_cselect_b32 s9, 2, s9"); A("s_cselect_b32 s13, s16, 0")
    A(f"s_mul_i32 s{CH}, s18, 5"); A(f"s_add_u32 s{CH}, s{CH}, s9")
    kpass(A)
    kgive(A)
    mwave(A)
    A.label("k_post")
    post(A)
    stamp_end(A, 0)
    if OPT["probe"] >= 0:
        A("s_waitcnt vmcnt(0)")
        stamp(A, 13)
        A("s_cmp_lg_u32 s3, 1"); A("s_cbranch_scc1 k_end")
        A(f"s_cmp_lg_u32 s2, {OPT['pwg']}"); A("s_cbranch_scc1 k_end")
        A("s_sub_u32 s70, s66, s64"); A(f"s_mul_i32 s70, s70, {OPT['pk']}"); A("s_min_u32 s70, s70, 20000")
        if OPT["xp"]:
            A("s_getreg_b32 s70, hwreg(HW_REG_XCC_ID)"); A("s_and_b32 s70, s70, 7"); A("s_add_u32 s70, s70, 1"); A("s_mul_i32 s70, s70, 1000")
        A("s_memrealtime s[68:69]"); A("s_waitcnt lgkmcnt(0)")
        A.label("k_pr")
        A("s_memrealtime s[72:73]"); A("s_waitcnt lgkmcnt(0)")
        A("s_sub_u32 s72, s72, s68"); A("s_cmp_lt_u32 s72, s70"); A("s_cbranch_scc1 k_pr")
    A.label("k_end")
    A("s_endpgm")
    A.label("k_h")
    A(f"s_mov_b32 s{RMT}, s13")
    hwave(A)
    A.label("k_fin")
    finpre(A)
    A("s_branch k_post")
    A.label("k_l")
    loader(A)
    A("s_branch k_post")
    for sl, bk, reg, off in A.tail_code:
        A.label(sl); lds_wait(A, 7, reg, "v_cmp_ne_u32 vcc, 0", off=off); A(f"s_branch {bk}")
    A.label("k_last")
    A("s_endpgm")
    kernel_desc(A, NAME, 256, 102)
    if OPT["m16"]:
        out = []; L = A.lines; i = 0
        while i < len(L):
            if "@" in L[i] and "mfma" in L[i]:
                m1, m2 = L[i].split("@"); out.append(m1)
                if "ds_read" in L[i+1]: out.append(L[i+1]); i += 1
                out.append("    " + m2)
            else: out.append(L[i])
            i += 1
        A.lines = out
    for i, l in enumerate(A.lines):
        if " nt" in l:
            bit = 1 if "ushort" in l else 2 if "lds" in l else 4
            if not OPT["nt"] & bit: A.lines[i] = l.replace(" nt", "")
    return re.sub(r"^    (\w+:)$", r"\1", A.text(), flags=re.M)

if __name__ == "__main__":
    gen1.DIAG = "--diag" in sys.argv
    for a in sys.argv[2:]:
        if "=" in a:
            k, v = a.split("="); OPT[k] = eval(v)
    open(sys.argv[1], "w").write(build())
```

```python
import sys, re, copy
from asmlib import *
import gen1
from gen1 import LOG2E, NLOG2E, LOG2E_LO, LN2, stamp, stamp_begin, stamp_end
NAME = "gated_mix__ssm_conv_s4d__swiglu_ffn__prompt_kernel"
OPT = dict(al=8, nfg=3, pk=4, pwg=77, probe=-1, xp=0, hdiag=0, mprio=2, epk=4, fpos=(3,0), thr2=0, cprio=1, psleep=1, lbar=42, ald=(12,3), wgo=1, alate=0)
H_OFF = 0
UR_OFF = 6291456
YT_OFF = UR_OFF + 2621440
GG_OFF = YT_OFF + 2621440
HF_OFF = GG_OFF + 16384
UF_OFF = HF_OFF + 128*256
YF_OFF = UF_OFF + 16*256
WF_OFF = YF_OFF + 8*80*256
KF_OFF = WF_OFF + 16*256
KP_OFF = KF_OFF + 128*128
LAST_OFF = KP_OFF + 128*3072
WDF_OFF = 12 << 20
WS_BYTES = 1 << 25
GB = 16384; UB = GB + 12288 + 32; STG = 41024
HB = 3*STG; HS = 13184
FLG = HB + 3*HS
FT = FLG + 120
GL = FT + 256
LDS_BYTES = GL + 256
RS = 272; SS = 16*RS
C0 = 64; C1 = C0 + 4160; CU = 8448
A2O = 4096; A2S = 1072; OMG = 8704
GR = 24576; URG = GR + 8192 + 64
TB2 = 2*STG; GXO = TB2 + 24576; GWO = TB2 + 34816
PB = 176
PR = 336; PW = 64*PR
SPIN = 0x3000
U, LOGA, LOGDT, DSK, WG, WU, WD, GW, OUT, DBG = 32, 34, 42, 44, 48, 50, 52, 54, 56, 58
XCD, RR, R5, CG, LCH, REG = 96, 97, 98, 99, 100, 101
CH, TAG, RMT = 60, 61, 47
_stamp0 = stamp
def stamp(A, i, real=False):
    if OPT["hdiag"] and i != 1: return
    _stamp0(A, i, real)
    if OPT["probe"] == i:
        A("s_memrealtime s[66:67]"); A("s_waitcnt lgkmcnt(0)")
def P2(b): return f"v[{b}:{b+1}]"

def lds_wait(A, vaddr, vtmp, cond, off=0, sleep=0):
    l = A.newlabel("lw"); d = A.newlabel("lw")
    A("s_mov_b32 s62, 0")
    A.label(l)
    A(f"ds_read_b32 v{vtmp}, v{vaddr} offset:{off}")
    A("s_addk_i32 s62, 1")
    A("s_waitcnt lgkmcnt(0)")
    A(f"{cond}, v{vtmp}")
    A(f"s_cbranch_vccz {d}")
    if sleep: A(f"s_sleep {sleep}")
    A("s_cmpk_lt_u32 s62, 0x7000")
    A(f"s_cbranch_scc1 {l}")
    A.label(d)

def poll(A, vaddr, soff, vdst, n=1, tagreg=None):
    l = A.newlabel("pl"); d = A.newlabel("pl")
    tagreg = vdst if tagreg is None else tagreg
    A("s_mov_b32 s62, 0")
    A.label(l)
    A(f"buffer_load_dword{'x2' if n == 2 else ''} {vr(vdst, n)}, v{vaddr}, s[20:23], {soff} offen sc1")
    A("s_addk_i32 s62, 1")
    A("s_waitcnt vmcnt(0)")
    A(f"v_cmp_ne_u32 vcc, s{TAG}, v{tagreg}")
    A(f"s_cbranch_vccz {d}")
    A(f"s_sleep {OPT['psleep']}")
    A(f"s_cmpk_lt_u32 s62, 0x{SPIN:x}")
    A(f"s_cbranch_scc1 {l}")
    A.label(d)

def flag_store(A, soff, vt, rep=1, stride=0, wait=True):
    A(f"v_mov_b32 v{vt}, s{TAG}")
    A(f"v_mul_u32_u24 v{vt+1}, {stride}, v0")
    A(f"s_mov_b64 exec, {(1 << rep) - 1}")
    if wait: A("s_waitcnt vmcnt(0)")
    A(f"buffer_store_dword v{vt}, v{vt+1}, s[20:23], {soff} offen sc1")
    A("s_mov_b64 exec, -1")

def tag_get(A, vt, issued=False):
    l = A.newlabel("tg"); d = A.newlabel("tg")
    if not issued: A(f"s_load_dword s{TAG}, s[{DBG}:{DBG+1}], 0")
    A("s_mov_b32 s62, 0")
    A("s_waitcnt lgkmcnt(0)")
    A.label(l)
    A(f"s_cmp_lg_u32 s{TAG}, 0"); A(f"s_cbranch_scc1 {d}")
    A(f"v_mov_b32 v{vt}, 0")
    A(f"global_load_dword v{vt}, v{vt}, s[{DBG}:{DBG+1}] sc1")
    A("s_addk_i32 s62, 1")
    A("s_waitcnt vmcnt(0)")
    A(f"v_readfirstlane_b32 s{TAG}, v{vt}")
    A(f"s_sleep {OPT['psleep']}")
    A(f"s_cmpk_lt_u32 s62, 0x{SPIN:x}"); A(f"s_cbranch_scc1 {l}")
    A.label(d)

def spoll(A, soff, sleep):
    l = A.newlabel("sp"); d = A.newlabel("sp")
    A("s_mov_b32 s62, 0")
    A.label(l)
    A(f"s_load_dwordx16 s[32:47], s[20:21], {soff} glc"); A(f"s_load_dwordx8 s[24:31], s[20:21], {soff} offset:64 glc")
    A("s_addk_i32 s62, 1")
    A("s_waitcnt lgkmcnt(0)")
    A("s_and_b64 s[10:11], s[24:25], s[26:27]"); A("s_or_b64 s[12:13], s[24:25], s[26:27]")
    for r in range(28, 48, 2):
        A(f"s_and_b64 s[10:11], s[10:11], s[{r}:{r+1}]"); A(f"s_or_b64 s[12:13], s[12:13], s[{r}:{r+1}]")
    A("s_and_b32 s10, s10, s11"); A("s_or_b32 s12, s12, s13")
    A(f"s_xor_b32 s10, s10, s{TAG}"); A(f"s_xor_b32 s12, s12, s{TAG}"); A("s_or_b32 s10, s10, s12")
    A(f"s_cbranch_scc0 {d}")
    A(f"s_sleep {sleep}")
    A(f"s_cmpk_lt_u32 s62, 0x{SPIN:x}"); A(f"s_cbranch_scc1 {l}")
    A.label(d)

def tiles(A):
    A(f"s_mul_i32 s{R5}, s{RR}, 52"); A(f"s_lshr_b32 s{R5}, s{R5}, 8"); A(f"s_and_b32 s{CG}, s{XCD}, 3"); A(f"s_lshr_b32 s6, s{XCD}, 2")
    A(f"s_sub_u32 s4, s6, s{R5}"); A("s_mul_i32 s4, s4, 5"); A(f"s_add_u32 s4, s4, s{RR}")
    A(f"s_mul_i32 s5, s{CG}, 6"); A(f"s_add_u32 s5, s5, s{R5}")
    A(f"s_lshl_b32 s7, s{CG}, 1"); A("s_add_u32 s7, s7, s6"); A("s_lshl_b32 s7, s7, 1"); A(f"s_add_u32 s7, s7, s{RR}"); A("s_sub_u32 s7, s7, 30")
    A("s_cmp_ge_u32 s2, 240"); A("s_cselect_b32 s4, 15, s4"); A("s_cselect_b32 s5, s7, s5")
    A(f"s_lshr_b32 s6, s{XCD}, 1"); A("s_lshl_b32 s6, s6, 3"); A(f"s_and_b32 s7, s{RR}, 7"); A("s_add_u32 s6, s6, s7")
    A(f"s_and_b32 s7, s{XCD}, 1"); A("s_lshl_b32 s7, s7, 2"); A(f"s_lshr_b32 s22, s{RR}, 3"); A("s_add_u32 s7, s7, s22")
    A("s_mov_b32 s22, 0x%x" % WS_BYTES); A("s_mov_b32 s23, 0x20000")

def loader(A):
    A(f"s_and_b32 s24, s{RR}, 15"); A("s_mul_i32 s24, s24, 12288");
    A(f"s_and_b32 s25, s{XCD}, 3"); A("s_lshl_b32 s25, s25, 1"); A(f"s_lshr_b32 s26, s{XCD}, 2"); A("s_add_u32 s25, s25, s26"); A("s_mul_i32 s25, s25, 384")
    A("s_add_u32 s24, s24, s25")
    A("v_min_u32 v18, 59, v0"); A("v_mul_u32_u24 v19, 43, v18"); A("v_lshrrev_b32 v19, 9, v19")
    A("v_mul_u32_u24 v9, 171, v18"); A("v_lshrrev_b32 v9, 9, v9")
    A("v_mul_u32_u24 v19, %d, v19" % (196608 - 4*3072)); A("v_mul_u32_u24 v9, %d, v9" % (3072 - 384))
    A("v_lshl_add_u32 v18, v18, 7, v19"); A("v_add3_u32 v18, v18, v9, s24")
    A("v_lshrrev_b32 v8, 3, v0"); A("v_mul_u32_u24 v8, 1280, v8"); A("v_and_b32 v10, 7, v0"); A("v_lshl_add_u32 v16, v10, 4, v8")
    A("s_and_b32 s26, s2, 31"); A("s_lshr_b32 s27, s2, 5")
    A("s_mul_i32 s28, s26, 81920"); A("s_lshl_b32 s27, s27, 7"); A("s_add_u32 s28, s28, s27")
    A("s_mov_b32 s10, 2621440"); A("s_mov_b32 s11, 0x20000")
    A(f"s_cmp_ge_u32 s{RR}, 16")
    A("s_waitcnt lgkmcnt(0)")
    A(f"s_cselect_b32 s24, s{WU}, s{WG}"); A(f"s_cselect_b32 s25, s{WU+1}, s{WG+1}")
    A(f"s_mov_b32 s8, s{U}"); A(f"s_mov_b32 s9, s{U+1}")
    A("s_barrier")
    stamp(A, 1)
    A("global_load_dword v20, v18, s[24:25]")
    def utile(h):
        for i in range(8):
            A(f"s_mov_b32 m0, {TB2 + 8192*h + 1024*i}"); A(f"v_xor_b32 v17, {16*i}, v16")
            A("buffer_load_dwordx4 v17, s[8:11], s28 offen lds"); A("s_add_u32 s28, s28, 10240")
    n1 = A.newlabel("n1"); n2 = A.newlabel("n2")
    A("s_cmp_ge_u32 s2, 240"); A(f"s_cbranch_scc1 {n2}")
    utile(0)
    A(f"s_mov_b32 s36, s{WD}"); A(f"s_mov_b32 s37, s{WD+1}"); A("s_mov_b32 s38, 1966080"); A("s_mov_b32 s39, 0x20000")
    A("s_mul_i32 s27, s2, 2731"); A("s_lshr_b32 s27, s27, 16"); A("s_mul_i32 s26, s27, 24"); A("s_sub_u32 s26, s2, s26")
    A("s_mul_i32 s45, s26, 81920"); A("s_lshl_b32 s27, s27, 7"); A("s_add_u32 s45, s45, s27"); A("s_sub_u32 s45, s45, 10240")
    for i in range(8):
        A(f"s_mov_b32 m0, {TB2 + 8192 + 1024*i}"); A("s_add_u32 s45, s45, 10240")
        A("buffer_load_dwordx4 v16, s[36:39], s45 offen lds")
    A("s_cmp_ge_u32 s2, 80"); A(f"s_cbranch_scc1 {n2}")
    A("s_add_u32 s27, s2, 240"); A("s_and_b32 s26, s27, 31"); A("s_lshr_b32 s27, s27, 5")
    A("s_mul_i32 s28, s26, 81920"); A("s_lshl_b32 s27, s27, 7"); A("s_add_u32 s28, s28, s27")
    utile(2)
    A.label(n2)
    A("v_lshlrev_b32 v1, 4, v0"); A("v_mov_b32 v14, 0x7ffffff0")
    A(f"s_mov_b32 s40, s{GW}"); A(f"s_mov_b32 s41, s{GW+1}"); A("s_mov_b32 s42, 1280"); A("s_mov_b32 s43, 0x20000")
    A("s_mul_i32 s46, s2, 10240")
    for (o, n) in ((0, 4), (4096, 4), (8192, 2)):
        A(f"s_mov_b32 m0, {GXO + o}"); A(f"s_add_u32 s28, s46, {o}")
        for i in range(n): A(f"buffer_load_dwordx4 v1, s[8:11], s28 offen offset:{1024*i} lds")
    A(f"s_mov_b32 m0, {GWO}"); A("v_add_u32 v19, %d, v18" % (5*196608))
    for i in range(2): A(f"buffer_load_dwordx4 v1, s[40:43], 0 offen offset:{1024*i} lds")
    A(f"s_mov_b32 m0, {FT}"); A("s_nop 0")
    A("buffer_load_dword v14, s[8:11], 0 offen lds")
    A("global_load_dword v21, v19, s[24:25]")
    tiles(A)
    A("v_lshrrev_b32 v9, 4, v0"); A("v_xor_b32 v9, v9, v10"); A("v_lshl_add_u32 v2, v9, 4, v8")
    A("v_xor_b32 v9, 4, v9"); A("v_lshl_add_u32 v3, v9, 4, v8")
    A(f"v_add_u32 v3, {10240-1024}, v3"); A(f"v_add_u32 v4, {20480-2048}, v2"); A(f"v_add_u32 v5, {20480-2048}, v3")
    A("v_mov_b32 v51, 0")
    A("s_mov_b32 s29, 0"); A("s_mov_b32 s30, 0"); A(f"s_mov_b32 s31, {FT-4}")
    A(f"s_mov_b32 s12, s{WG}"); A(f"s_mov_b32 s13, s{WG+1}"); A("s_mov_b32 s14, 1966080"); A("s_mov_b32 s15, 0x20000")
    A(f"s_mov_b32 s16, s{WU}"); A(f"s_mov_b32 s17, s{WU+1}"); A("s_mov_b32 s18, 1966080"); A("s_mov_b32 s19, 0x20000")
    def flag(fill):
        A("s_mov_b32 m0, s31"); A(fill)
        A("buffer_load_dword v14, s[8:11], 0 offen lds")
    def tail():
        flag("s_sub_u32 s31, s31, 4")
        A(f"s_add_u32 s29, s29, {STG}"); A(f"s_cmp_eq_u32 s29, {3*STG}"); A("s_cselect_b32 s29, 0, s29")
        A("s_add_u32 s30, s30, 1")
    def gloop(reg):
        l1 = A.newlabel("ld"); cnt = [0]
        extra = {1: [f"s_add_u32 s33, s29, {STG}"], 2: [f"s_cmp_eq_u32 s33, {3*STG}", "s_cselect_b32 s33, 0, s33"], 5: ["s_add_u32 s30, s30, 1"],
                 (30 if reg else 26): ["s_add_u32 s26, s26, 128"], (35 if reg else 37): ["s_add_u32 s27, s27, 196608"], 40: ["s_mov_b32 s29, s33"]}
        def dma(x):
            A(x); cnt[0] += 1
            for e in extra.get(cnt[0], []): A(e)
            if cnt[0] == OPT["lbar"]:
                sk = A.newlabel("sk")
                A("s_bitcmp0_b32 s36, s30"); A(f"s_cbranch_scc1 {sk}")
                A(f"s_waitcnt vmcnt({cnt[0]})")
                A("s_barrier")
                A.label(sk)
        def xq(q):
            A(f"s_add_u32 m0, s29, {4096*q}"); A(f"s_add_u32 s28, s26, {40960*q}")
            for i in range(4): dma(f"buffer_load_dwordx4 v{2+i}, s[8:11], s28 offen offset:{1024*i} lds")
        def wq(q):
            n = 4 if reg else 3
            A(f"s_add_u32 m0, s29, {(GR if reg else GB) + 1024*n*q}"); A(f"s_add_u32 s28, s27, {(98304 if reg else 49152)*q}")
            for i in range(n): dma(f"buffer_load_dwordx4 v{10+i}, s[12:15], s28 offen offset:{1024*i} lds")
            A(f"s_add_u32 m0, s29, {(URG if reg else UB) + 1024*n*q}"); A("s_nop 0")
            for i in range(n): dma(f"buffer_load_dwordx4 v{10+i}, s[16:19], s28 offen offset:{1024*i} lds")
        def fl():
            A("s_mov_b32 m0, s31"); A("s_sub_u32 s31, s31, 4")
            dma("buffer_load_dword v14, s[8:11], 0 offen lds")
        A.label(l1)
        if reg:
            wq(0)
            for q in range(6): xq(q)
            fl(); wq(1); fl()
        else:
            wq(0); wq(1); xq(0); xq(1); xq(2); xq(3); fl(); wq(2); wq(3); fl()
        assert cnt[0] == 42
        A("s_cmp_lt_u32 s30, 10"); A(f"s_cbranch_scc1 {l1}")
    A("s_mov_b32 s36, 0x3fc")
    A("s_cmp_ge_u32 s2, 240"); A("s_cbranch_scc1 k_ls")
    A("v_lshrrev_b32 v9, 3, v0"); A("v_and_b32 v22, 2, v9"); A("v_xor_b32 v22, v22, v10"); A("v_mul_u32_u24 v9, 3072, v9"); A("v_lshl_add_u32 v10, v22, 4, v9")
    for i in range(1, 4): A(f"v_add_u32 v{10+i}, {(24576-1024)*i}, v10")
    A("s_mul_i32 s26, s4, 245760"); A("s_lshl_b32 s27, s5, 7")
    gloop(True)
    A.label("k_lj")
    def special():
        A.label("k_ls")
        for i in range(3):
            A(f"v_add_u32 v9, {64*i}, v0"); A("v_mul_u32_u24 v22, 5462, v9"); A("v_lshrrev_b32 v22, 16, v22")
            A("v_mul_u32_u24 v22, 2880, v22"); A(f"v_lshl_add_u32 v{10+i}, v0, 4, v22")
        A("s_mul_i32 s26, s4, 163840"); A("s_mul_i32 s27, s5, 192")
        gloop(False)
        A("s_branch k_lj")
    A.later.append(special)
    stamp(A, 2)
    A("s_barrier")
    if OPT["wgo"]:
        A("v_and_b32 v2, 3, v0"); A("v_lshlrev_b32 v2, 2, v2"); A(f"v_add_u32 v2, {FLG+4}, v2")
        lds_wait(A, 2, 3, "v_cmp_ne_u32 vcc, 0", sleep=1)
    A("s_mul_i32 s26, s7, 245760"); A(f"s_add_u32 s26, s26, {WDF_OFF + 30720}")
    l2 = A.newlabel("ld"); l4 = A.newlabel("ld")
    A.label(l2)
    for w in range(4):
        for (o, n) in ((0, 4), (4096, 4), (8192, 2)):
            A(f"s_add_u32 m0, s29, {10240*w + o}"); A(f"s_add_u32 s28, s26, {61440*w + o}")
            if OPT["thr2"]: A(f"s_waitcnt vmcnt({OPT['thr2']})")
            for i in range(n): A(f"buffer_load_dwordx4 v1, s[20:23], s28 offen offset:{1024*i} sc1 lds")
    tail()
    A("s_add_u32 s26, s26, 10240")
    A("s_cmp_lt_u32 s30, 13"); A(f"s_cbranch_scc1 {l2}")
    stamp(A, 3)

ACC1 = 64
def msetup(A):
    A("s_lshr_b32 s8, s3, 1"); A("s_and_b32 s9, s3, 1")
    A("v_and_b32 v8, 31, v0"); A("v_lshrrev_b32 v9, 5, v0")
    A("v_bfe_u32 v10, v0, 1, 3"); A("v_xor_b32 v10, v10, v9")
    A("s_movk_i32 s10, 0x3000"); A("s_cmp_ge_u32 s2, 240"); A("s_cselect_b32 s10, 0x2000, s10"); A("s_mul_i32 s10, s10, s8")
    A("v_lshlrev_b32 v14, 7, v8"); A("v_add_u32 v14, s10, v14")
    for ks in range(4):
        A(f"v_xor_b32 v12, {2*ks}, v10"); A(f"v_lshl_add_u32 v{2+ks}, v12, 4, v14")
    A(f"v_mov_b32 v7, {FT - 64}")
    A("s_mov_b32 s54, 0x%x" % NLOG2E); A("s_mov_b32 s55, 0x%x" % NLOG2E)
    A("v_and_b32 v10, 15, v0"); A("v_lshlrev_b32 v10, 4, v10"); A("v_lshl_add_u32 v10, v9, 8, v10")
    A("v_bfe_u32 v13, v0, 4, 1"); A("v_lshl_add_u32 v10, v13, 10, v10")
    A("s_lshl_b32 s52, s6, 2"); A("s_add_u32 s52, s52, s3"); A("s_lshl_b32 s52, s52, 8"); A(f"s_add_u32 s52, s52, {HF_OFF}")
    A("s_mul_i32 s53, s6, 196608"); A("s_mul_i32 s10, s3, 49152"); A("s_add_u32 s53, s53, s10")
    A("s_mul_i32 s10, s3, 10240"); A("v_add_u32 v11, s10, v1")
    A("v_bfe_u32 v12, v0, 2, 2"); A("v_lshl_add_u32 v12, v9, 3, v12"); A("v_and_b32 v14, 3, v0"); A("v_lshlrev_b32 v14, 3, v14")
    A("s_cmp_ge_u32 s2, 240"); A("s_cbranch_scc1 k_ss")
    A("v_lshl_add_u32 v6, v12, 7, v14"); A("v_bfe_u32 v12, v0, 3, 1"); A("v_lshl_add_u32 v6, v12, 5, v6")
    A(f"v_mul_u32_u24 v13, {URG-GR}, v13"); A("s_lshl_b32 s10, s9, 6"); A(f"s_add_u32 s10, s10, {GR}"); A("v_add3_u32 v6, v6, v13, s10")
    A("v_xor_b32 v8, 32, v6"); A("v_add_u32 v9, 512, v10")
    A("s_lshl_b32 s11, s4, 1"); A("s_add_u32 s11, s11, s8"); A("s_mul_i32 s11, s11, 3")
    A("s_lshl_b32 s12, s5, 1"); A("s_add_u32 s12, s12, s9"); A("s_lshl_b32 s12, s12, 12")
    for a in range(3):
        A(f"s_add_u32 s13, s11, {a}"); A("s_lshr_b32 s10, s13, 1"); A("s_mul_i32 s10, s10, 196608")
        A("s_and_b32 s13, s13, 1"); A("s_lshl_b32 s13, s13, 11"); A("s_add_u32 s10, s10, s13"); A(f"s_add_u32 s{48+a}, s10, s12")
    A("s_mul_i32 s51, s4, 12"); A(f"s_add_u32 s51, s51, s{CG}"); A("s_lshl_b32 s51, s51, 8")
    A(f"s_lshl_b32 s10, s{R5}, 1"); A("s_add_u32 s10, s10, s9"); A("s_lshl_b32 s10, s10, 3")
    A("s_add_u32 s51, s51, s10"); A(f"s_add_u32 s51, s51, {HF_OFF}")
    A("s_lshl_b32 s46, s8, 11"); A("s_lshl_b32 s47, s8, 2"); A("s_add_u32 s47, s47, 0x400")
    def special():
        A.label("k_ss")
        A("v_mul_u32_u24 v6, 192, v12"); A("v_add_u32 v6, v6, v14")
        A(f"v_mul_u32_u24 v13, {UB-GB}, v13"); A("s_mul_i32 s10, s9, 96"); A(f"s_add_u32 s10, s10, {GB}"); A("v_add3_u32 v6, v6, v13, s10")
        A("v_add_u32 v9, 2048, v10")
        A("s_add_u32 s18, s8, 30")
        A("s_mul_i32 s11, s18, 196608"); A("s_mul_i32 s12, s5, 6"); A("s_mul_i32 s13, s9, 3"); A("s_add_u32 s12, s12, s13")
        for nt in range(3):
            A(f"s_add_u32 s13, s12, {nt}")
            A("s_lshr_b32 s10, s13, 1"); A("s_lshl_b32 s10, s10, 12")
            A("s_and_b32 s13, s13, 1"); A("s_lshl_b32 s13, s13, 9"); A("s_add_u32 s10, s10, s13")
            A(f"s_add_u32 s{48+nt}, s10, s11")
        A("s_lshl_b32 s51, s18, 2"); A("s_lshr_b32 s10, s5, 2"); A("s_add_u32 s51, s51, s10"); A("s_lshl_b32 s51, s51, 8")
        A("s_and_b32 s10, s5, 3"); A("s_lshl_b32 s10, s10, 1"); A("s_add_u32 s10, s10, s9"); A("s_mul_i32 s10, s10, 12")
        A("s_add_u32 s51, s51, s10"); A(f"s_add_u32 s51, s51, {HF_OFF}"); A("s_mov_b32 s46, 0"); A("s_mov_b32 s47, 8")
        A("s_branch k_nosetup")
    A.later.append(special)

def kgive(A):
    A("v_add_u32 v15, s19, v1")
    A("s_nop 4")
    for i in range(3): A(f"ds_write_b128 v15, v[{20+4*i}:{23+4*i}] offset:{1024*i}")

def mtasks(A):
    dn = A.newlabel("mt"); wd = A.newlabel("mt"); ur = A.newlabel("mt")
    A("s_sub_u32 s24, s3, 1"); A("s_cmp_ge_u32 s24, 3"); A(f"s_cbranch_scc1 {dn}")
    A("v_lshrrev_b32 v40, 3, v0"); A("v_and_b32 v41, 7, v0"); A(f"v_mov_b32 v42, {FT}")
    lds_wait(A, 42, 43, "v_cmp_ne_u32 vcc, 0", sleep=1)
    A("s_cmp_eq_u32 s3, 2"); A(f"s_cbranch_scc1 {wd}")
    A("s_mov_b32 s24, s2"); A(f"s_mov_b32 s25, {TB2}")
    A("s_cmp_eq_u32 s3, 1"); A(f"s_cbranch_scc1 {ur}")
    A("v_lshlrev_b32 v42, 4, v41"); A(f"v_add_u32 v42, {GXO}, v42"); A("v_mul_u32_u24 v43, 1280, v40"); A("v_add_u32 v43, v43, v42")
    for i in range(10):
        A(f"ds_read_b128 v[{160+4*i}:{163+4*i}], v43 offset:{128*i}")
        A(f"ds_read_b128 v[{200+4*i}:{203+4*i}], v42 offset:{GWO - GXO + 128*i}")
    A("v_mov_b32 v44, 0"); A("v_mov_b32 v45, 0"); A("v_lshlrev_b32 v46, 2, v0"); A(f"v_add_u32 v46, {GL}, v46")
    A("s_waitcnt lgkmcnt(0)")
    for k in range(40): A(f"v_dot2c_f32_bf16 v{44 + k % 2}, v{160+k}, v{200+k}")
    A("s_add_u32 s24, s2, 240"); A(f"s_mov_b32 s25, {TB2 + 16384}"); A("s_cmp_ge_u32 s2, 80")
    A("v_add_f32 v44, v44, v45")
    A("ds_write_b32 v46, v44")
    A(f"s_cbranch_scc1 {dn}")
    A.label(ur)
    A("s_cmp_ge_u32 s2, 240"); A(f"s_cbranch_scc1 {dn}")
    A("v_xor_b32 v42, v40, v41"); A("v_lshlrev_b32 v42, 4, v42"); A("v_lshl_add_u32 v42, v41, 10, v42"); A("v_add_u32 v42, s25, v42")
    for e in range(8): A(f"ds_read_b128 v[{160+4*e}:{163+4*e}], v42 offset:{128*e}")
    A("v_lshlrev_b32 v43, 15, v40"); A("v_lshlrev_b32 v41, 4, v41"); A("v_sub_u32 v43, v43, v41"); A("v_add_u32 v43, 4080, v43")
    A("s_mov_b32 s28, 0x05040100"); A("s_mov_b32 s29, 0x07060302")
    A("s_lshr_b32 s25, s24, 5"); A("s_and_b32 s24, s24, 31")
    A("s_lshl_b32 s25, s25, 18"); A("s_lshl_b32 s24, s24, 7"); A("s_sub_u32 s25, s25, s24"); A(f"s_add_u32 s25, s25, {UR_OFF}")
    A("s_waitcnt lgkmcnt(0)")
    for i in range(8):
        o = 192 + 4*i
        for p in range(4):
            lo = 160 + 4*(7-2*p) + i//2; hi = 160 + 4*(6-2*p) + i//2
            A(f"v_perm_b32 v{o+p}, v{hi}, v{lo}, s{28 + (i&1)}")
        A(f"buffer_store_dwordx4 v[{o}:{o+3}], v43, s[20:23], s25 offen sc1")
        A("s_add_u32 s25, s25, 4096")
    A(f"s_branch {dn}")
    A.label(wd)
    A("s_cmp_ge_u32 s2, 240"); A(f"s_cbranch_scc1 {dn}")
    A("v_lshrrev_b32 v42, 5, v0"); A("v_lshlrev_b32 v42, 11, v42"); A("v_bfe_u32 v43, v0, 2, 3"); A("v_lshl_add_u32 v42, v43, 7, v42")
    A("v_and_b32 v43, 3, v0"); A("v_lshl_add_u32 v42, v43, 3, v42"); A(f"v_add_u32 v42, {TB2 + 8192}, v42")
    for dtl in range(4):
        for sg in range(2):
            o = 160 + 4*(2*dtl+sg)
            A(f"ds_read_b64_tr_b16 v[{o}:{o+1}], v42 offset:{4096*sg + 32*dtl}")
            A(f"ds_read_b64_tr_b16 v[{o+2}:{o+3}], v42 offset:{4096*sg + 32*dtl + 1024}")
    A("s_mul_i32 s25, s2, 2731"); A("s_lshr_b32 s25, s25, 16"); A("s_mul_i32 s24, s25, 24"); A("s_sub_u32 s24, s2, s24")
    A("s_mul_i32 s24, s24, 10"); A("s_lshl_b32 s25, s25, 2")
    for dtl in range(4):
        A(f"s_add_u32 s26, s25, {dtl}")
        A("s_mul_i32 s27, s26, 52429"); A("s_lshr_b32 s27, s27, 18"); A("s_mul_i32 s27, s27, 235"); A("s_add_u32 s26, s26, s27")
        A("s_add_u32 s26, s26, s24"); A("s_lshl_b32 s26, s26, 10"); A(f"s_add_u32 s26, s26, {WDF_OFF}"); A("s_add_u32 s27, s26, 5120")
        A(f"s_waitcnt lgkmcnt({12 - 4*dtl})")
        o = 160 + 8*dtl
        A(f"buffer_store_dwordx4 v[{o}:{o+3}], v1, s[20:23], s26 offen sc1")
        A(f"buffer_store_dwordx4 v[{o+4}:{o+7}], v1, s[20:23], s27 offen sc1")
    A.label(dn)

def mwave(A):
    mtasks(A)
    A("s_mov_b32 s16, 0x%x" % ((-2*STG) & 0xffffffff)); A(f"s_mov_b32 s17, {STG}")
    A("s_mov_b32 s11, 0"); A("s_mov_b32 s12, 0")
    A("s_mul_i32 s14, s7, 245760"); A("s_mul_i32 s15, s3, 61440"); A("s_add_u32 s14, s14, s15"); A(f"s_add_u32 s14, s14, {WDF_OFF}")
    A("s_cmp_ge_u32 s2, 240")
    A("s_waitcnt lgkmcnt(0)")
    stamp(A, 12)
    A("s_cbranch_scc1 k_ms")
    F = [16, 36]
    AF = [160+4*i for i in range(24)] + [56, 60, 64, 68, 72, 76]
    def aload(n):
        r = [f"buffer_load_dwordx4 v[{AF[n]}:{AF[n]+3}], v1, s[20:23], s14 offen offset:{1024*(n % 4)} sc1"]
        if n % 4 == 3: r.append("s_add_u32 s14, s14, 4096")
        return r
    slows = []; na = [0]
    def gemm1(reg):
        na[0] = 0
        def reads(ks, f):
            b = F[f]
            if reg:
                w = lambda o, v: [f"ds_read_b64_tr_b16 v[{o}:{o+1}], v{v} offset:{2048*ks}", f"ds_read_b64_tr_b16 v[{o+2}:{o+3}], v{v} offset:{2048*ks + 512}"]
                return w(b, 6) + [f"ds_read_b128 v[{b+8+4*a}:{b+11+4*a}], v{2+ks} offset:{4096*a}" for a in range(3)] + w(b+4, 8)
            r = [f"ds_read_b128 v[{b}:{b+3}], v{2+ks}"]
            for nt in range(3):
                o = b + 8 + 4*nt
                r.append(f"ds_read_b64_tr_b16 v[{o}:{o+1}], v6 offset:{3072*ks + 32*nt}")
                r.append(f"ds_read_b64_tr_b16 v[{o+2}:{o+3}], v6 offset:{3072*ks + 32*nt + 768}")
            return r + [f"ds_read_b128 v[{b+4}:{b+7}], v{2+ks} offset:4096"]
        def mfmas(f):
            b = F[f]; r = []
            for p in range(2):
                for j in range(3):
                    c = ACC1 + 16*(3*p+j); pr = f"v[{b+4*p}:{b+4*p+3}]"; tr = f"v[{b+8+4*j}:{b+11+4*j}]"
                    r.append(f"v_mfma_f32_32x32x16_bf16 v[{c}:{c+15}], {pr if reg else tr}, {tr if reg else pr}, v[{c}:{c+15}]")
            return r
        if reg:
            PL = {0: [(1, 5)], 1: [(1, 6)], 2: [(2, 0)], 3: [(2, 1), (2, 2)], 4: [(2, 3)], 5: [(2, 4)]}
            need = {0: (0, 1, 2), 1: (3,), 2: (4,), 3: (5, 6), 4: (), 5: ()}; NR = 7; gB = 2; slots = (0, 1, 4, 5)
        else:
            PL = {0: [(1, 5), (1, 6)], 1: [(1, 7)], 2: [(2, 0)], 3: [(2, 1)], 4: [(2, 2), (2, 3)], 5: [(2, 4)]}
            need = {0: (0, 1, 2), 1: (3, 4), 2: (5, 6), 3: (7,), 4: (), 5: ()}; NR = 8; gB = 3; slots = (1, 2, 3, 5)
        def step_items(k, mode):
            last = mode == 2
            ks = k % 4; it = []; ms = mfmas(k % 2)
            def chk(rg, off):
                sl = A.newlabel("g1s"); bk = A.newlabel("g1b"); slows.append((sl, bk, rg, off))
                return [("x", f"v_cmp_ne_u32 vcc, 0, v{rg}"), ("x", f"s_cbranch_vccnz {sl}"), ("x", f"{bk}:")]
            ca = mode in (3, 1); cb = mode in (1, 2)
            held = []
            for g in range(6):
                it.append(("m", ms[g], [(k, r) for r in need[g]]))
                if ks == 2 and g == 2 and ca: it += [("w", "flag")] + chk(13, 4)
                if ks == 0 and g == gB and cb: it += [("w", "flagB")] + chk(12, 0)
                if mode == 0 and ks == 2 and g == OPT["nfg"]: it += [("w", (k+1, NR-1)), ("x", "s_barrier")]
                if last and ks == 2 and g == 5: it += [("x", f"s_setprio {OPT['mprio']}")]
                for (so, ri) in PL[g]:
                    if last and ks + so > 3: continue
                    held.append(("r", reads((k+so) % 4, (k+so) % 2)[ri], (k+so, ri)))
                if not (mode == 0 and ks == 2 and 2 <= g < OPT["nfg"]):
                    it += held; held = []
                ex = []
                dl = {0: "s13", 3: "s17", 1: "s16", 2: ""}[mode]
                if mode == 0:
                    if ks == 0 and g == 1: ex = ["s_add_u32 s12, s12, 1", "s_cmp_eq_u32 s12, 3"]
                    if ks == 0 and g == 2: ex = ["s_cselect_b32 s13, s16, s17", "s_cselect_b32 s12, 0, s12"]
                    if ks == 1 and g == 2: ex = ["s_add_u32 s11, s11, 1"]
                    if ks == 2 and g == 2: ex = ["s_waitcnt vmcnt(0)"]
                    if ks == 3 and g == 2: ex = ["s_cmp_lt_u32 s11, 7"]
                if not last:
                    if ks == 1 and g == 1: ex = [f"v_add_u32 v2, {dl}, v2"]
                    if ks == 0 and g == 5: ex = [f"v_add_u32 v3, {dl}, v3"] + ([] if mode == 0 else ["v_subrev_u32 v7, 8, v7"])
                    if ks == 1 and g == 5: ex = [f"v_add_u32 v4, {dl}, v4"]
                    if ks == 3 and g == 1: ex = [f"v_add_u32 v5, {dl}, v5"]
                    if ks == 2 and g == 1: ex = [f"v_add_u32 v6, {dl}, v6"]
                    if ks == 2 and g == 5 and reg: ex = [f"v_add_u32 v8, {dl}, v8"]
                if mode in (1, 2):
                    pos = 24*(mode-1) + 6*ks - OPT["ald"][0]
                    if pos >= 0 and g in slots and na[0] < 26: ex = ex + aload(na[0]); na[0] += 1
                for e in ex: it.append(("x", e))
                if ks == 1 and g == OPT["fpos"][0] and ca: it.append(("r", "ds_read_b32 v13, v7 offset:4", "flag"))
                if ks == 0 and g == OPT["fpos"][1] and cb: it.append(("r", "ds_read_b32 v12, v7", "flagB"))
            return it
        def emit(items, q):
            for i in items:
                tags = i[2] if i[0] == "m" else [i[1]] if i[0] == "w" else []
                if tags:
                    pos = max(len(q["ops"]) - 1 - q["ops"][::-1].index(t) for t in tags)
                    if pos >= q["done"]:
                        n = min(14, len(q["ops"]) - 1 - pos)
                        q["done"] = len(q["ops"]) - n
                        A(f"s_waitcnt lgkmcnt({n})")
                if i[0] == "r": q["ops"].append(i[2])
                if i[0] != "w": A(i[1])
        A("s_barrier")
        stamp(A, 2)
        q = dict(ops=[], done=0); lp = A.newlabel("g1"); st1 = A.newlabel("g1e")
        emit([("r", reads(0, 0)[r], (0, r)) for r in range(NR)] + [("r", reads(1, 1)[ri], (1, ri)) for g in range(6) for (so, ri) in PL[g] if so == 2], q)
        q0 = copy.deepcopy(q)
        emit([(i[0], re.sub(r"v\[\d+:\d+\]$", "0", i[1]), i[2]) if i[0] == "m" else i for i in step_items(0, 0)], q0)
        A(f"s_branch {st1}")
        A.label(lp)
        for k in range(4):
            if k == 1: A.label(st1)
            emit(step_items(k, 0), q)
        A(f"s_cbranch_scc1 {lp}")
        q["done"] = 0; k0 = 4
        for mode in (3, 1, 2):
            for k in range(k0, k0 + 4): emit(step_items(k, mode), q)
            k0 += 4
        return na[0]
    n_reg = gemm1(True)
    A.label("k_mj")
    def special():
        A.label("k_ms")
        assert gemm1(False) == n_reg
        A("s_branch k_mj")
    A.later.append(special)
    stamp(A, 3)
    A(f"s_load_dword s{TAG}, s[{DBG}:{DBG+1}], 0")
    A(f"v_mov_b32 v7, {FT-92}"); A("v_mov_b32 v5, v11"); A(f"v_add_u32 v6, {2*STG}, v11"); A("s_nop 6")
    def areads(step):
        slot = (10 + step // 2) % 3; r = []
        for dt in range(5):
            o = AF[5*(step % 6) + dt]
            off = (STG if slot == 1 else 0) + 5120*(step % 2) + 1024*dt
            r.append(f"ds_read_b128 v[{o}:{o+3}], v{6 if slot == 2 else 5} offset:{off}")
        return r
    E = 16
    for a in range(2):
        for nt in range(3):
            g = ACC1 + 16*(3*a+nt); u = g + 8
            o = 32 + 4*((3*a+nt) % 4)
            ti = 3*a+nt
            lim = 26 if ti == 0 or OPT['alate'] else 30
            cnt = -(-(30 - na[0]) // max(1, OPT["ald"][1] - ti))
            ins = []
            while cnt > 0 and na[0] < lim:
                ins.append(aload(na[0])); na[0] += 1; cnt -= 1
            mark = len(A.lines)
            if 3*a+nt < OPT['epk']:
                for i in range(4): A(f"v_pk_mul_f32 {P2(E+2*i)}, {P2(g+2*i)}, s[54:55]")
                for i in range(8): A(f"v_exp_f32 v{E+i}, v{E+i}")
                for i in range(4): A(f"v_pk_add_f32 {P2(E+2*i)}, {P2(E+2*i)}, 1.0 op_sel_hi:[1,0]")
                for i in range(8): A(f"v_rcp_f32 v{E+i}, v{E+i}")
                for i in range(4): A(f"v_pk_mul_f32 {P2(g+2*i)}, {P2(g+2*i)}, {P2(u+2*i)}")
                for i in range(4): A(f"v_pk_mul_f32 {P2(g+2*i)}, {P2(g+2*i)}, {P2(E+2*i)}")
            else:
                for i in range(8): A(f"v_mul_f32 v{E+i}, s54, v{g+i}")
                for i in range(8): A(f"v_exp_f32 v{E+i}, v{E+i}")
                for i in range(8): A(f"v_add_f32 v{E+i}, 1.0, v{E+i}")
                for i in range(8): A(f"v_rcp_f32 v{E+i}, v{E+i}")
                for i in range(8): A(f"v_mul_f32 v{g+i}, v{g+i}, v{u+i}")
                for i in range(8): A(f"v_mul_f32 v{g+i}, v{g+i}, v{E+i}")
            if ins:
                body = A.lines[mark:]; del A.lines[mark:]
                step = max(1, len(body) // len(ins))
                for n, l in enumerate(body):
                    if n % step == 0 and ins:
                        for x in ins.pop(0): A(x)
                    A.lines.append(l)
                assert not ins
            for i in range(4): A(f"v_cvt_pk_bf16_f32 v{o+i}, v{g+2*i}, v{g+2*i+1}")
            A(f"buffer_store_dwordx4 v[{o}:{o+3}], v{9 if a else 10}, s[20:23], s{48+nt} offen sc1")
            if 3*a+nt == OPT["epk"] - 1: A("s_barrier")
    if OPT["mprio"]: A("s_setprio 0")
    stamp(A, 4)
    if OPT["wgo"] == 1:
        A("s_lshl_b32 s10, s3, 2"); A(f"s_add_u32 s10, s10, {FLG+4}"); A("v_mov_b32 v12, s10"); A("v_mov_b32 v13, 0"); A("ds_write_b32 v12, v13")
    tag_get(A, 14, issued=True)
    A(f"v_mov_b32 v14, s{TAG}"); A("v_lshl_add_u32 v15, v0, 2, s46"); A("v_writelane_b32 v15, s47, 2")
    A("s_mov_b64 exec, 7"); A("s_waitcnt vmcnt(0)")
    A("buffer_store_dword v14, v15, s[20:23], s51 offen sc1"); A("s_mov_b64 exec, -1")
    if OPT["wgo"] == 2:
        A("s_lshl_b32 s10, s3, 2"); A(f"s_add_u32 s10, s10, {FLG+4}"); A("v_mov_b32 v12, s10"); A("v_mov_b32 v13, 0"); A("ds_write_b32 v12, v13")
    while na[0] < 30:
        for x in aload(na[0]): A(x)
        na[0] += 1
    stamp(A, 5)
    A("v_and_b32 v4, 15, v0"); A("v_lshrrev_b32 v3, 4, v0")
    A(f"v_mul_u32_u24 v2, {PB}, v4"); A("v_lshl_add_u32 v2, v3, 3, v2")
    A("s_mul_i32 s26, s3, 10240"); A("v_add_u32 v2, s26, v2")
    spoll(A, "s52", OPT["psleep"])
    stamp(A, 7)
    ACC = 80; HR = 8
    def hload(k, i):
        b = HR + 16*(k % 3)
        r = [f"buffer_load_dwordx4 v[{b+4*i}:{b+4*i+3}], v1, s[20:23], s53 offen offset:{1024*i} sc1"]
        if i == 3: r.append("s_add_u32 s53, s53, 4096")
        return r
    for k in range(3):
        for i in range(4):
            for x in hload(k, i): A(x)
    for k in range(12):
        b = HR + 16*(k % 3); j = k + 2
        ar = areads(j) if 6 <= j < 12 else []
        chk = bool(ar) and j % 2 == 0
        for mt in range(4):
            out = 11 if k + 3 < 12 else 4*(12-k) - mt - 1
            w = f"s_waitcnt vmcnt({out})"
            if mt == 0: w += " lgkmcnt(0)" if k in (0, 11) else " lgkmcnt(5)" if k >= 6 else ""
            A(w)
            if mt == 0 and k in (0, 6): stamp(A, 8 + k//6)
            for dt in range(5):
                c = ACC + 4*(4*dt+mt); af = AF[5*(k % 6) + dt]
                src = "0" if k == 0 else f"v[{c}:{c+3}]"
                A(f"v_mfma_f32_16x16x32_bf16 v[{c}:{c+3}], v[{af}:{af+3}], v[{b+4*mt}:{b+4*mt+3}], {src}")
                if chk and mt == 0 and dt == 0: A(f"ds_read_b32 v3, v7 offset:{4*(5-j//2)}")
                if chk and mt == 1 and dt == 3:
                    sl = A.newlabel("g2s"); bk = A.newlabel("g2b"); slows.append((sl, bk, 3, 4*(5-j//2)))
                    A("s_waitcnt lgkmcnt(0)"); A("v_cmp_ne_u32 vcc, 0, v3"); A(f"s_cbranch_vccnz {sl}"); A.label(bk)
                if ar and mt == 2: A(ar[dt])
            if k + 3 < 12:
                for x in hload(k+3, mt): A(x)
    A.tail_code = slows
    stamp(A, 10)
    A("s_nop 1")
    for mt in range(4):
        for dt in range(5):
            c = ACC + 4*(4*dt+mt); o = 8 + 2*((5*mt+dt) % 16)
            A(f"v_cvt_pk_bf16_f32 v{o}, v{c}, v{c+1}"); A(f"v_cvt_pk_bf16_f32 v{o+1}, v{c+2}, v{c+3}")
            if 5*mt+dt >= 1: A(pw)
            pw = f"ds_write_b64 v2, v[{o}:{o+1}] offset:{(mt >> 1)*STG + 16*(mt & 1)*PB + 32*dt}"
    A(pw)

def post(A):
    A(f"s_mov_b32 s16, s{OUT}"); A(f"s_mov_b32 s17, s{OUT+1}")
    A("s_mov_b32 s18, 2621440"); A("s_mov_b32 s19, 0x20000")
    A("s_mul_i32 s24, s6, 81920"); A("s_mul_i32 s25, s7, 160"); A("s_add_u32 s24, s24, s25")
    A("s_lshl_b32 s27, s3, 6")
    def addr(b):
        A(f"v_add_u32 v{b}, s27, v0")
        A(f"v_mul_u32_u24 v{b+1}, 6554, v{b}"); A(f"v_lshrrev_b32 v{b+1}, 16, v{b+1}")
        A(f"v_mul_u32_u24 v{b+2}, 10, v{b+1}"); A(f"v_sub_u32 v{b+2}, v{b}, v{b+2}")
        A(f"v_mul_u32_u24 v{b+3}, 1280, v{b+1}"); A(f"v_lshl_add_u32 v{b+3}, v{b+2}, 4, v{b+3}")
        A(f"v_mul_u32_u24 v{b+4}, {PB}, v{b+1}"); A(f"v_lshl_add_u32 v{b+4}, v{b+2}, 4, v{b+4}")
        A(f"v_lshrrev_b32 v{b+5}, 5, v{b+1}"); A(f"v_mul_u32_u24 v{b+5}, {STG - 32*PB}, v{b+5}"); A(f"v_add_u32 v{b+4}, v{b+4}, v{b+5}")
        A(f"v_mul_u32_u24 v{b+5}, 86, v{b+2}"); A(f"v_lshrrev_b32 v{b+5}, 8, v{b+5}")
        A(f"v_mul_u32_u24 v{b+6}, {HS+48}, v{b+2}"); A(f"v_mul_u32_u24 v{b+5}, {3*(HS+48) - A2S}, v{b+5}")
        A(f"v_sub_u32 v{b+6}, v{b+6}, v{b+5}"); A(f"v_lshl_add_u32 v{b+6}, v{b+1}, 4, v{b+6}"); A(f"v_add_u32 v{b+6}, {HB + A2O}, v{b+6}")
        A(f"v_lshlrev_b32 v{b+7}, 4, v{b+1}"); A(f"v_add_u32 v{b+7}, {HB + OMG}, v{b+7}")
    def rds(b, d):
        A(f"ds_read_b128 v[{d+20}:{d+23}], v{b+7}")
        for w in range(4): A(f"ds_read_b128 v[{d+4*w}:{d+4*w+3}], v{b+4} offset:{w*10240}")
        A(f"ds_read_b128 v[{d+16}:{d+19}], v{b+6}")
    def calc(b, d, t, rest):
        for w in range(5):
            A(f"s_waitcnt lgkmcnt({rest + 4 - w})")
            c = d + 20 + (2 if w == 4 else 0)
            for k in range(4):
                A(f"v_dot2c_f32_bf16 v{t+2*k}, v{d+4*w+k}, v{c}"); A(f"v_dot2c_f32_bf16 v{t+2*k+1}, v{d+4*w+k}, v{c+1}")
        A("s_nop 0")
        for k in range(4): A(f"v_cvt_pk_bf16_f32 v{d+k}, v{t+2*k}, v{t+2*k+1}")
        A(f"buffer_store_dwordx4 v[{d}:{d+3}], v{b+3}, s[16:19], s24 offen")
    addr(40)
    for i in range(4): A(f"v_pk_mov_b32 {P2(160+2*i)}, 0, 0")
    one = A.newlabel("po"); dn = A.newlabel("po"); o2 = A.newlabel("po")
    A("s_and_b32 s28, s3, 6"); A("s_cmp_lg_u32 s28, 4"); A(f"s_cbranch_scc1 {one}")
    A("s_add_u32 s27, s27, 256"); A("s_setprio 3")
    addr(48)
    for i in range(4): A(f"v_pk_mov_b32 {P2(168+2*i)}, 0, 0")
    A.label(one)
    A("s_waitcnt lgkmcnt(0)")
    A("s_barrier")
    stamp(A, 11)
    A("s_cmp_lg_u32 s28, 4"); A(f"s_cbranch_scc1 {o2}")
    rds(48, 232)
    A.label(o2)
    rds(40, 208)
    calc(40, 208, 160, 0)
    A("s_cmp_lg_u32 s28, 4"); A(f"s_cbranch_scc1 {dn}")
    calc(48, 232, 168, 0)
    A.label(dn)

def pcmul(A, d, s, m):
    A(f"v_pk_mul_f32 {P2(d)}, {P2(s)}, {P2(m)} op_sel:[0,0] op_sel_hi:[1,0]")
    A(f"v_pk_fma_f32 {P2(d)}, {P2(s)}, {P2(m)}, {P2(d)} op_sel:[1,1,0] op_sel_hi:[0,1,1] neg_lo:[0,1,0]")

def kpass(A):
    RAW = 246; FA = 16; ACC = 20
    A(f"s_mul_i32 s28, s{CH}, 384"); A("s_lshl_b32 s29, s17, 7"); A("s_add_u32 s28, s28, s29")
    A("v_lshl_add_u32 v1, v0, 1, s28")
    A(f"s_lshl_b32 s28, s{CH}, 1"); A("s_and_b32 s28, s28, -4")
    if OPT["hdiag"] == 4: _stamp0(A, 2)
    A("s_cmp_lt_u32 s14, 2")
    A("s_waitcnt lgkmcnt(0)")
    for a in range(4): A(f"global_load_ushort v{RAW+a}, v1, s[{LOGA+2*a}:{LOGA+2*a+1}]")
    A("s_cbranch_scc1 k_one")
    for a in range(4): A(f"global_load_ushort v{RAW+4+a}, v1, s[{LOGA+2*a}:{LOGA+2*a+1}] offset:128")
    A.label("k_one")
    A(f"s_load_dword s30, s[{LOGDT}:{LOGDT+1}], s28"); A(f"s_load_dword s31, s[{DSK}:{DSK+1}], s28")
    A("s_barrier")
    nt0 = A.newlabel("mk")
    A("s_lshl_b32 s24, s2, 3"); A("s_add_u32 s24, s24, s3"); A("s_cmp_lg_u32 s24, 71"); A(f"s_cbranch_scc1 {nt0}")
    A(f"s_add_u32 s24, s20, {LAST_OFF}"); A("s_addc_u32 s25, s21, 0")
    A("s_load_dword s28, s[24:25], 0")
    A("v_mov_b32 v16, 0")
    A("s_waitcnt lgkmcnt(0)")
    A("s_add_u32 s28, s28, 1"); A("s_max_u32 s28, s28, 1")
    A("v_mov_b32 v17, s28")
    A("s_mov_b64 exec, 1")
    A(f"global_store_dword v16, v17, s[{DBG}:{DBG+1}] sc1")
    A("global_store_dword v16, v17, s[24:25] sc1")
    A("s_mov_b64 exec, -1")
    A.label(nt0)
    tiles(A)
    A("s_bfe_u32 s9, s10, 0x20002")
    A(f"s_mul_i32 s{REG}, s{LCH}, {HS}"); A(f"s_add_u32 s{REG}, s{REG}, {HB}")
    A(f"s_mul_i32 s19, s9, {SS}"); A(f"s_add_u32 s19, s19, s{REG}"); A("s_mov_b32 m0, s19")
    A("v_and_b32 v17, 15, v0"); A("v_lshrrev_b32 v18, 4, v0"); A("v_mov_b32 v10, 0"); A("v_mov_b32 v9, 0")
    A("s_mov_b32 s24, 0x%x" % LOG2E); A("s_mov_b32 s25, 0x%x" % LOG2E_LO); A("s_mov_b32 s26, 0x%x" % LN2)
    A("s_mov_b32 s27, 0x41000000"); A("s_mov_b32 s28, 0x43000000")
    A("v_add_u32 v37, 4, v17"); A(f"v_and_b32 v{FA}, 7, v37"); A(f"v_mul_u32_u24 v{FA}, 544, v{FA}"); A("v_and_b32 v37, 8, v37")
    A(f"v_lshl_add_u32 v{FA}, v37, 5, v{FA}"); A(f"v_lshl_add_u32 v{FA}, v18, 4, v{FA}"); A(f"v_add_u32 v{FA}, s19, v{FA}")
    rowo = lambda i: 544*((i+4) & 7) + 32*((i+4) & 8)
    for i in range(6): A(f"v_pk_mov_b32 {P2(ACC+2*i)}, 0, 0")
    DT, DT2, NDT, ONE = 32, 34, 33, 36
    A(f"v_mov_b32 v{ONE}, 0x3f80")
    A("v_lshlrev_b32 v1, 4, v0")
    A("s_cmp_ge_u32 s3, 4"); A("s_cbranch_scc1 k_nosetup")
    msetup(A)
    A.label("k_nosetup")
    if OPT["hdiag"] == 4: A("s_memtime s[70:71]")
    A("s_waitcnt lgkmcnt(0)")
    if OPT["hdiag"] == 4: _stamp0(A, 4)
    A(f"s_bitcmp1_b32 s{CH}, 0")
    A("s_cselect_b32 s29, 0, 16")
    A("s_lshl_b32 s30, s30, s29"); A("s_and_b32 s30, s30, 0xffff0000")
    A("s_lshl_b32 s31, s31, s29"); A("s_and_b32 s31, s31, 0xffff0000")
    A("s_cmp_eq_u32 s17, 0"); A("s_cselect_b32 s31, s31, 0")
    A("v_mov_b32 v37, s30")
    A(f"v_writelane_b32 v{ACC}, s31, 0")
    A("v_mul_f32 v38, s24, v37"); A("v_fma_f32 v39, v37, s24, -v38"); A("v_fmac_f32 v39, s25, v37")
    A("v_exp_f32 v38, v38"); A("v_mul_f32 v39, s26, v39"); A("v_fmac_f32 v38, v38, v39")
    A("v_cvt_pk_bf16_f32 v38, v38, v38")
    A(f"v_lshlrev_b32 v{DT}, 16, v38")
    A(f"v_add_f32 v{DT2}, v{DT}, v{DT}"); A(f"v_sub_f32 v{NDT}, 0, v{DT}")
    if OPT["hdiag"] == 4:
        _stamp0(A, 5)
        for n in (3, 2, 1): A(f"s_waitcnt vmcnt({n})"); _stamp0(A, 9 - n)
    A("s_waitcnt vmcnt(0)")
    stamp(A, 1)
    A.label("k_loop")
    A1 = 38; TH = 39
    Z, W, Y = 40, 42, 44
    P = 48; T = 240; QA, QB = 242, 244; PK = 64; B2 = 120
    QF, PF = 176, 192
    A(f"v_lshlrev_b32 v{T}, 16, v{RAW}"); A(f"v_mul_f32 v{T}, s24, v{T}")
    A(f"v_lshlrev_b32 v{TH}, 16, v{RAW+1}")
    A(f"v_exp_f32 v{T}, v{T}")
    A(f"v_lshlrev_b32 v{P}, 16, v{RAW+2}"); A(f"v_lshlrev_b32 v{P+1}, 16, v{RAW+3}")
    A(f"v_cvt_pk_bf16_f32 v{T}, v{T}, v{T}")
    A(f"v_mul_f32 v{TH}, v{TH}, v{DT}")
    A(f"v_lshlrev_b32 v{T}, 16, v{T}")
    A(f"v_mul_f32 v{TH}, 0.15915494, v{TH}")
    A(f"v_mul_f32 v{A1}, v{T}, v{NDT}")
    A(f"v_pk_mul_f32 {P2(P)}, {P2(P)}, {P2(DT2)} op_sel_hi:[1,0]")
    A(f"v_mul_f32 v{A1}, s24, v{A1}")
    A(f"v_pk_mov_b32 {P2(RAW)}, {P2(RAW+4)}, {P2(RAW+4)} op_sel:[0,1]"); A(f"v_pk_mov_b32 {P2(RAW+2)}, {P2(RAW+6)}, {P2(RAW+6)} op_sel:[0,1]")
    for (R, sc) in ((W, "s27"), (Z, None), (Y, "s28")):
        if sc:
            A(f"v_mul_f32 v{T}, {sc}, v{A1}"); A(f"v_mul_f32 v{T+1}, {sc}, v{TH}")
            A(f"v_exp_f32 v{T}, v{T}"); A(f"v_fract_f32 v{T+1}, v{T+1}")
        else:
            A(f"v_exp_f32 v{T}, v{A1}"); A(f"v_fract_f32 v{T+1}, v{TH}")
        A(f"v_cos_f32 v{R}, v{T+1}"); A(f"v_sin_f32 v{R+1}, v{T+1}")
        A("s_nop 0")
        A(f"v_pk_mul_f32 {P2(R)}, {P2(R)}, {P2(T)} op_sel_hi:[1,0]" + (" neg_hi:[1,0]" if R == W else ""))
    pkc = [0]; wph = [f"ds_write_addtid_b32 v{ONE} offset:{rowo(0)}"]
    def emit(row, r):
        k = PK + pkc[0]; pkc[0] += 1
        A(f"v_cvt_pk_bf16_f32 v{k}, v{r}, v{r+1}")
        wph.append(f"ds_write_addtid_b32 v{k} offset:{rowo(row)}")
    def rd(base):
        for t in range(4): wph.append(f"ds_read_b128 v[{base+4*t}:{base+4*t+3}], v{FA} offset:{64*t}")
    def mm(acc, base, n):
        A(f"s_waitcnt lgkmcnt({n})")
        for t in range(4):
            A(f"v_mfma_f32_16x16x32_bf16 v[{acc}:{acc+3}], v[{base+4*t}:{base+4*t+3}], v[{QF+4*t}:{QF+4*t+3}], v[{acc}:{acc+3}]")
    qs = W
    for j in range(2, 17):
        dst = QA if j % 2 == 0 else QB
        if j < 16: pcmul(A, dst, qs, W)
        emit(j-1, qs)
        b = j - 1
        if b <= 7: pcmul(A, P+2*b, P+2*b-2, Z)
        qs = dst
    rd(QF)
    loc = {}
    for b in range(0, 8, 2):
        emit(b, P+2*b); emit(b+1, P+2*b+2)
        pcmul(A, T, P+2*b+2, Y); pcmul(A, P+2*b+2, P+2*b, Y)
        emit(8+b+1, T); emit(8+b, P+2*b+2)
        loc[b] = P+2*b+2
    rd(PF)
    def step(b, row):
        s = loc[b]; d = P+2*b if s == P+2*b+2 else P+2*b+2
        pcmul(A, d, s, Y); loc[b] = d
        return (row, d)
    for a in range(2):
        es = [step(b, 4*a + b//2) for b in (0, 2, 4, 6)]
        for e in es: emit(*e)
    for a in range(4):
        es = [step(b, 8 + 2*a + b//4) for b in (0, 4)]
        for e in es: emit(*e)
    rd(PF+16)
    e = step(0, 0)
    for a in range(1, 10):
        n = step(0, a) if a < 9 else None
        emit(*e); e = n
    rd(PF+32)
    assert pkc[0] == 56
    A("s_cmp_lg_u32 s14, 2"); A("s_cbranch_scc1 k_v1")
    for i in range(28): A(f"v_pk_mov_b32 {P2(B2+2*i)}, {P2(PK+2*i)}, {P2(PK+2*i)} op_sel:[0,1]")
    A("s_mov_b32 s14, 3"); A("s_branch k_loop")
    A.label("k_v1")
    stamp(A, 6)
    stamp(A, 10)
    A.label("k_w")
    n0 = wph.index([x for x in wph if f"v[{PF+16}:" in x][0])
    for x in wph[:n0]: A(x)
    mm(ACC, PF, 14)
    for x in wph[n0:]: A(x)
    mm(ACC+4, PF+16, 13); mm(ACC+8, PF+32, 0)
    A("s_cmp_lg_u32 s14, 3"); A("s_cbranch_scc1 k_w1")
    for i in range(28): A(f"v_pk_mov_b32 {P2(PK+2*i)}, {P2(B2+2*i)}, {P2(B2+2*i)} op_sel:[0,1]")
    A("s_mov_b32 s14, 0"); A("s_branch k_w")
    A.label("k_w1")
    A("s_cmp_ge_u32 s3, 4"); A("s_cbranch_scc1 k_h")

def kaddr(A):
    sL = REG
    A(f"v_add_u32 v39, s{sL}, v1")
    EB = C0
    A("v_lshlrev_b32 v40, 4, v17"); A(f"v_add_u32 v40, s{sL}, v40")
    A("v_lshl_add_u32 v41, v18, 10, v40"); A(f"v_add_u32 v41, {EB + 2048 - 8}, v41")
    A("v_and_b32 v42, 1, v0"); A("v_lshlrev_b32 v42, 3, v42"); A("v_sub_u32 v42, v41, v42")
    A("v_lshl_add_u32 v43, v18, 9, v40"); A("v_lshl_add_u32 v44, v18, 8, v40")
    A("v_lshrrev_b32 v45, 1, v18"); A("v_lshl_add_u32 v45, v45, 8, v40")
    A("v_and_b32 v46, 1, v18"); A("v_lshl_add_u32 v45, v46, 3, v45")
    A("v_mov_b32 v34, 0"); A("v_mov_b32 v35, 0")
    A("v_and_b32 v46, 7, v0"); A("v_lshlrev_b32 v46, 2, v46"); A(f"v_add_u32 v46, s{sL}, v46")
    A("v_lshlrev_b32 v47, 3, v0"); A(f"v_add_u32 v47, s{sL}, v47")

KC = {xy: 56+n for n, xy in enumerate([(0,0),(0,1),(1,1),(2,2),(2,3),(3,3),(1,2)])}
def kexp0(A):
    K0, K1, K2 = 20, 24, 28
    for r in range(4):
        A(f"v_cvt_pk_bf16_f32 v{48+2*r}, v{K2+r}, v{K2+r}"); A(f"v_mov_b32 v{49+2*r}, v{48+2*r}")
    for (x, y), r in KC.items(): A(f"v_cvt_pk_bf16_f32 v{r}, v{K1+x}, v{K1+y}")
    A(f"v_cvt_pk_bf16_f32 v64, v{K0}, v{K0+1}"); A(f"v_cvt_pk_bf16_f32 v65, v{K0+2}, v{K0+3}")
def kexp1(A):
    EB = C0; c = KC
    for r in range(4): A(f"ds_write2_b64 v41, v[{48+2*r}:{49+2*r}], v[{48+2*r}:{49+2*r}] offset0:{32*r} offset1:{32*r+1}")
    for r in range(4): A(f"ds_write_b16 v42, v{48+2*r} offset:{256*r+16}")
    A("s_mov_b32 exec_lo, 0")
    o = (EB - 4) // 4
    A(f"ds_write2_b32 v43, v{c[0,0]}, v{c[0,0]} offset0:{o} offset1:{o+1}")
    A(f"ds_write2_b32 v43, v{c[0,1]}, v{c[1,1]} offset0:{o+2} offset1:{o+3}")
    A(f"ds_write2_b32 v43, v{c[2,2]}, v{c[2,2]} offset0:{o+64} offset1:{o+65}")
    A(f"ds_write2_b32 v43, v{c[2,3]}, v{c[3,3]} offset0:{o+66} offset1:{o+67}")
    A("s_mov_b32 exec_lo, -1"); A("s_mov_b32 exec_hi, 0")
    o = EB + 512
    A(f"ds_write_b16 v44, v{c[0,0]} offset:{o-2}")
    A(f"ds_write2_b32 v44, v{c[0,0]}, v{c[1,2]} offset0:{o//4} offset1:{o//4+1}")
    A(f"ds_write_b32 v44, v{c[2,2]} offset:{o+8}")
    A(f"ds_write_b16 v44, v{c[3,3]} offset:{o+12}")
    A("s_mov_b64 exec, -1")
    A(f"ds_write_b64 v45, v[64:65] offset:{EB}")
    A(f"ds_write_b32 v46, v34 offset:{C0-32}"); A(f"ds_write_b32 v46, v34 offset:{C1-32}")
    A(f"ds_write_b64 v47, v[34:35] offset:{CU+4096}")
    for i in range(4):
        A(f"ds_read_b128 v[{80+8*i}:{83+8*i}], v39 offset:{EB+1024*i}")
        A(f"ds_read_b32 v{72+i}, v39 offset:{EB+1024*i-4}")
def kexp2(A):
    A("s_waitcnt lgkmcnt(0)")
    for i in range(4):
        b = 80+8*i
        A(f"v_alignbit_b32 v{b+4}, v{b}, v{72+i}, 16")
        for k in range(1, 4): A(f"v_alignbit_b32 v{b+4+k}, v{b+k}, v{b+k-1}, 16")
        A(f"ds_write_b128 v39, v[{b+4}:{b+7}] offset:{C1+1024*i}")

def caddr(A):
    sL = REG
    A("v_lshlrev_b32 v2, 4, v18"); A("v_lshlrev_b32 v6, 5, v17"); A("v_sub_u32 v2, v2, v6")
    A(f"v_add_u32 v2, {CU + 4064 - 3584}, v2"); A(f"v_add_u32 v2, s{sL}, v2")
    A("v_sub_u32 v6, 15, v17"); A("v_and_b32 v7, 1, v6"); A("v_sub_u32 v6, v6, v7")
    A(f"v_mul_u32_u24 v3, {C1-C0}, v7"); A("v_lshl_add_u32 v3, v18, 4, v3")
    A("v_lshlrev_b32 v6, 1, v6"); A("v_sub_u32 v3, v3, v6")
    A(f"v_add_u32 v3, {C0}, v3"); A(f"v_add_u32 v3, s{sL}, v3")
    for i in range(1, 4): A(f"v_add_u32 v{3+i}, {1024*i}, v3")
    A("v_lshlrev_b32 v7, 5, v17"); A("v_lshrrev_b32 v8, 1, v18"); A("v_lshl_add_u32 v7, v8, 4, v7")
    A("v_and_b32 v8, 1, v18"); A("v_lshl_add_u32 v7, v8, 9, v7")

def conv(A):
    Y = 172
    TB = [40, 104]
    def reads(f, extra):
        b = TB[f]; r = []
        for q in range(8):
            r.append(f"ds_read_b128 v[{b+32+4*q}:{b+35+4*q}], v2 offset:{512*(7-q) + extra}")
            o = (512*(q & 1) + extra) // 4
            r.append(f"ds_read2_b32 v[{b+4*q}:{b+4*q+1}], v{3+q//2} offset0:{o} offset1:{o+1}")
            r.append(f"ds_read2_b32 v[{b+4*q+2}:{b+4*q+3}], v{3+q//2} offset0:{o+2} offset1:{o+3}")
        return r
    def mfmas(f):
        b = TB[f]; r = []
        for q in range(8):
            for tau in range(8-q):
                t = q + tau
                r.append(f"v_mfma_f32_16x16x32_bf16 v[{Y+4*t}:{Y+4*t+3}], v[{b+4*q}:{b+4*q+3}], v[{b+32+4*tau}:{b+35+4*tau}], v[{Y+4*t}:{Y+4*t+3}]")
        return r
    def inter(ms, rs):
        for i, m in enumerate(ms):
            A(m)
            if i < len(rs): A(rs[i])
    A("s_waitcnt vmcnt(0)")
    for x in reads(0, 0): A(x)
    stamp(A, 9)
    A("s_barrier")
    stamp(A, 4)
    if OPT["cprio"]: A(f"s_setprio {OPT['cprio']}")
    A("s_mov_b32 s28, 0")
    lp = A.newlabel("cv")
    A.label(lp)
    A("s_waitcnt lgkmcnt(0)")
    inter(mfmas(0), reads(1, 64) + ["s_add_u32 s28, s28, 1"])
    A("s_waitcnt lgkmcnt(0)")
    inter(mfmas(1), reads(0, 128) + [f"v_add_u32 v{r}, 128, v{r}" for r in range(2, 7)] + ["s_cmp_lt_u32 s28, 4"])
    A(f"s_cbranch_scc1 {lp}")
    stamp(A, 5)
    A(f"s_add_u32 s30, s31, {YT_OFF}")
    A(f"s_lshr_b32 s28, s{CH}, 3"); A("s_lshl_b32 s28, s28, 8"); A(f"s_and_b32 s29, s{CH}, 7"); A("s_lshl_b32 s29, s29, 2")
    A("s_add_u32 s28, s28, s29"); A(f"s_add_u32 s28, s28, {YF_OFF}")
    O = 104
    for t in range(8):
        A(f"v_cvt_pk_bf16_f32 v{O+2*t}, v{Y+4*t}, v{Y+4*t+1}"); A(f"v_cvt_pk_bf16_f32 v{O+2*t+1}, v{Y+4*t+2}, v{Y+4*t+3}")
    A("s_nop 1")
    for p in range(4):
        A(f"v_permlane16_swap_b32 v{O+4*p}, v{O+4*p+2}"); A(f"v_permlane16_swap_b32 v{O+4*p+1}, v{O+4*p+3}")
    A("s_nop 1")
    for p in range(4): A(f"buffer_store_dwordx4 v[{O+4*p}:{O+4*p+3}], v7, s[20:23], s30 offen offset:{1024*p} sc1")
    A("s_setprio 0")
    flag_store(A, "s28", 2, 8, 80*256)
    A(f"v_mov_b32 v4, {FLG}"); A("v_mov_b32 v5, 0"); A("ds_write_b32 v4, v5")
    stamp(A, 6)

def hbar(A, i):
    if OPT["hdiag"] == 2: _stamp0(A, i + 2)
    A("s_barrier")
    if OPT["hdiag"] == 1: _stamp0(A, i + 2)

def hwave(A):
    ACC = 20; sL = REG
    def when(cmp, neg=False):
        l = A.newlabel("if"); A(cmp); A(f"s_cbranch_scc{1 if neg else 0} {l}"); return l
    stamp(A, 2)
    A(f"s_add_u32 s8, s2, 240"); A(f"s_cmp_eq_u32 s{LCH}, 0"); A("s_cselect_b32 s8, s2, s8"); A("s_cmp_ge_u32 s2, 240"); A("s_cselect_b32 s8, 999, s8")
    A(f"s_cmp_eq_u32 s{LCH}, 1"); A("s_cselect_b32 s8, 999, s8"); A("s_cselect_b32 s9, s2, 999")
    A(f"v_add_u32 v39, s{sL}, v1")
    A("s_mul_i32 s19, s18, 3072"); A(f"s_add_u32 s19, s19, {KP_OFF}")
    A("s_lshl_b32 s18, s18, 7"); A(f"s_add_u32 s18, s18, {KF_OFF}")
    l = when("s_cmp_eq_u32 s16, 0")
    for i in range(3): A(f"buffer_store_dwordx4 v[{ACC+4*i}:{ACC+4*i+3}], v1, s[20:23], s19 offen offset:{1024*i} sc1")
    A.label(l)
    A("s_barrier")
    A("v_lshlrev_b32 v33, 2, v0"); A(f"v_add_u32 v33, {GL}, v33"); A("ds_read_b32 v32, v33")
    for i in range(3): A(f"ds_read_b128 v[{120+4*i}:{123+4*i}], v39 offset:{SS + 1024*i}")
    for i in range(3): A(f"ds_read_b128 v[{132+4*i}:{135+4*i}], v39 offset:{2*SS + 1024*i}")
    A("s_waitcnt lgkmcnt(0)")
    l = when("s_cmp_ge_u32 s16, 1")
    for i in range(12): A(f"v_add_f32 v{ACC+i}, v{ACC+i}, v{120+i}")
    A.label(l)
    l = when("s_cmp_ge_u32 s16, 2")
    for i in range(12): A(f"v_add_f32 v{ACC+i}, v{ACC+i}, v{132+i}")
    A.label(l)
    hbar(A, 0)
    stamp(A, 12)
    def flags():
        l = when("s_cmp_lt_u32 s8, 320")
        A("s_lshr_b32 s26, s8, 5"); A("s_lshl_b32 s26, s26, 8"); A("s_and_b32 s27, s8, 31"); A("s_lshl_b32 s27, s27, 2")
        A("s_add_u32 s26, s26, s27"); A(f"s_add_u32 s26, s26, {UF_OFF}")
        flag_store(A, "s26", 146)
        A.label(l)
        l = when("s_cmp_eq_u32 s16, 0")
        flag_store(A, "s18", 146, wait=False)
        A.label(l)
        l = when("s_cmp_lt_u32 s9, 240")
        A("s_mul_i32 s26, s9, 2731"); A("s_lshr_b32 s26, s26, 16"); A("s_mul_i32 s26, s26, 160"); A("s_lshl_b32 s27, s9, 2")
        A("s_add_u32 s26, s26, s27"); A(f"s_add_u32 s26, s26, {WF_OFF}")
        flag_store(A, "s26", 146)
        A.label(l)
    tag_get(A, 40)
    A("s_waitcnt vmcnt(0)")
    flags()
    l = when(f"s_cmp_eq_u32 s{LCH}, 2")
    A("s_mov_b32 s13, 0x%x" % NLOG2E)
    for m in ("quad_perm:[1,0,3,2]", "quad_perm:[2,3,0,1]", "row_half_mirror"):
        A("s_nop 1"); A(f"v_add_f32_dpp v32, v32, v32 {m} row_mask:0xf bank_mask:0xf")
    A("v_mul_f32 v32, s13, v32"); A("v_exp_f32 v32, v32"); A(f"v_mov_b32 v33, s{TAG}")
    A("v_add_f32 v32, 1.0, v32"); A("v_rcp_f32 v32, v32")
    A("s_lshl_b32 s15, s2, 6"); A(f"s_add_u32 s15, s15, {GG_OFF}")
    A("s_mov_b32 exec_lo, 0x01010101"); A("s_mov_b32 exec_hi, 0x01010101")
    A("buffer_store_dwordx2 v[32:33], v0, s[20:23], s15 offen sc1")
    A("s_mov_b64 exec, -1")
    A.label(l)
    hbar(A, 1)
    caddr(A)
    A("v_and_b32 v144, 31, v0"); A("v_lshlrev_b32 v144, 2, v144")
    A(f"s_lshr_b32 s29, s{CH}, 6"); A("s_lshl_b32 s29, s29, 8"); A(f"s_add_u32 s29, s29, {UF_OFF}")
    A(f"s_lshl_b32 s31, s{CH}, 12"); A(f"s_add_u32 s30, s31, {UR_OFF}")
    A(f"s_add_u32 m0, s{sL}, {CU}")
    hbar(A, 2)
    kaddr(A)
    hbar(A, 3)
    for i in range(32): A(f"v_mov_b32 v{172+i}, 0")
    hbar(A, 4)
    def check(va, so, vd):
        ok = A.newlabel("ok")
        A(f"v_cmp_ne_u32 vcc, s{TAG}, v{vd}"); A(f"s_cbranch_vccz {ok}")
        poll(A, va, so, vd)
        A.label(ok)
    A("v_mov_b32 v150, 0")
    hbar(A, 5)
    l = when(f"s_cmp_eq_u32 s{LCH}, 0")
    A("v_min_u32 v150, 47, v0"); A("v_cmp_lt_u32 vcc, 23, v150"); A("v_lshlrev_b32 v150, 2, v150"); A("v_add_u32 v151, 160, v150")
    A("v_cndmask_b32 v150, v150, v151, vcc")
    A("s_mul_i32 s26, s7, 5"); A("s_lshr_b32 s26, s26, 2"); A("s_lshl_b32 s26, s26, 8"); A(f"s_add_u32 s26, s26, {WF_OFF}")
    A("buffer_load_dword v151, v150, s[20:23], s26 offen sc1")
    A("s_waitcnt vmcnt(0)")
    check(150, "s26", 151)
    A.label(l)
    hbar(A, 6)
    A("buffer_load_dword v145, v144, s[20:23], s29 offen sc1")
    A("v_mov_b32 v146, 0")
    l = when(f"s_cmp_eq_u32 s{RMT}, 1")
    A("buffer_load_dword v147, v146, s[20:23], s18 offen sc1")
    A.label(l)
    A("s_waitcnt vmcnt(0)")
    l = when("s_cmp_eq_u32 s17, 0")
    check(144, "s29", 145)
    for i in range(4): A(f"buffer_load_dwordx4 v1, s[20:23], s30 offen offset:{1024*i} sc1 lds")
    A.label(l)
    l = when(f"s_cmp_eq_u32 s{RMT}, 1")
    check(146, "s18", 147)
    for i in range(3): A(f"buffer_load_dwordx4 v[{120+4*i}:{123+4*i}], v1, s[20:23], s19 offen offset:{1024*i} sc1")
    A.label(l)
    stamp(A, 3)
    A("v_lshlrev_b32 v170, 3, v0")
    A("s_lshl_b32 s24, s6, 9"); A(f"s_add_u32 s24, s24, {GG_OFF}")
    A("buffer_load_dwordx2 v[168:169], v170, s[20:23], s24 offen sc1")
    A(f"v_mov_b32 v8, {FLG}")
    l = when("s_cmp_eq_u32 s16, 0")
    A("s_barrier")
    lds_wait(A, 8, 9, "v_cmp_ne_u32 vcc, 0", sleep=4)
    A("s_branch k_fin")
    A.label(l)
    l = when(f"s_cmp_eq_u32 s{RMT}, 1")
    A("s_waitcnt vmcnt(1)")
    for i in range(12): A(f"v_add_f32 v{ACC+i}, v{ACC+i}, v{120+i}")
    A.label(l)
    if True:
        kexp0(A)
        lds_wait(A, 8, 9, "v_cmp_ne_u32 vcc, 0", off=40)
        kexp1(A)
    kexp2(A)
    conv(A)

def finpre(A):
    sH = LCH; sL = REG
    A("s_mul_i32 s26, s7, 2560"); A("s_lshr_b32 s25, s6, 2"); A("s_mul_i32 s25, s25, 20480"); A("s_add_u32 s26, s26, s25"); A(f"s_add_u32 s26, s26, {YF_OFF}")
    A("v_and_b32 v3, 7, v0")
    A("v_lshrrev_b32 v8, 3, v0"); A("v_lshlrev_b32 v8, 12, v8"); A("v_lshl_add_u32 v8, v3, 4, v8")
    A("s_mul_i32 s27, s7, 327680"); A("s_lshl_b32 s28, s6, 7"); A("s_add_u32 s27, s27, s28"); A(f"s_add_u32 s27, s27, {YT_OFF}")
    A("v_bfe_u32 v2, v0, 2, 2"); A("v_lshlrev_b32 v2, 7, v2")
    A("v_lshrrev_b32 v3, 4, v0"); A("v_lshl_add_u32 v2, v3, 5, v2")
    A("v_and_b32 v3, 3, v0"); A("v_lshl_add_u32 v2, v3, 3, v2"); A(f"v_add_u32 v2, s{sL}, v2")
    A(f"s_mul_i32 s28, s{sH}, 48"); A(f"s_add_u32 s28, s28, s{sL}")
    A("v_lshlrev_b32 v3, 4, v0"); A("v_add_u32 v3, s28, v3")
    A("v_lshlrev_b32 v7, 4, v0"); A(f"v_add_u32 v7, s{sL}, v7")
    A("s_waitcnt vmcnt(0)")
    ok = A.newlabel("ok")
    A(f"v_cmp_ne_u32 vcc, s{TAG}, v169"); A(f"s_cbranch_vccz {ok}")
    poll(A, 170, "s24", 168, 2, tagreg=169)
    A.label(ok)
    A("v_cvt_pk_bf16_f32 v14, v168, 0"); A("v_lshlrev_b32 v15, 16, v14")
    A("v_sub_f32 v12, 1.0, v15"); A("v_cvt_pk_bf16_f32 v12, v12, 0"); A("v_lshlrev_b32 v13, 16, v12")
    A(f"ds_write_b128 v7, v[12:15] offset:{OMG}")
    A(f"s_lshl_b32 s29, s{sH}, 8"); A("s_add_u32 s12, s29, s26"); A("s_add_u32 s13, s12, 768"); A("s_add_u32 s14, s12, 1536")
    A(f"s_add_u32 s15, s26, {9*256}"); A(f"s_cmp_eq_u32 s{sH}, 0"); A("s_cselect_b32 s15, s15, s14")
    lp = A.newlabel("yl"); dn = A.newlabel("yl")
    A("s_mov_b32 s62, 0")
    A.label(lp)
    D = [32, 40, 48, 4]
    for i in range(3): A(f"s_load_dwordx8 s[{D[i]}:{D[i]+7}], s[20:21], s{12+i} glc")
    A("s_load_dwordx4 s[8:11], s[20:21], s15 glc"); A("s_load_dwordx4 s[16:19], s[20:21], s15 offset:16 glc")
    A("s_addk_i32 s62, 1")
    A("s_waitcnt lgkmcnt(0)")
    regs = list(range(32, 56)) + [8, 9, 10, 11, 16, 17, 18, 19]
    A("s_and_b64 s[28:29], s[32:33], s[34:35]"); A("s_or_b64 s[30:31], s[32:33], s[34:35]")
    for r in regs[4::2]:
        A(f"s_and_b64 s[28:29], s[28:29], s[{r}:{r+1}]"); A(f"s_or_b64 s[30:31], s[30:31], s[{r}:{r+1}]")
    A("s_and_b32 s28, s28, s29"); A("s_or_b32 s30, s30, s31")
    A(f"s_xor_b32 s28, s28, s{TAG}"); A(f"s_xor_b32 s30, s30, s{TAG}"); A("s_or_b32 s28, s28, s30")
    A(f"s_cbranch_scc0 {dn}")
    A(f"s_sleep {OPT['psleep']}")
    A(f"s_cmpk_lt_u32 s62, 0x{SPIN:x}"); A(f"s_cbranch_scc1 {lp}")
    A.label(dn)
    for i in range(4):
        A(f"s_add_u32 s28, s{sH}, {3*i}")
        if i == 3: A(f"s_cmp_lg_u32 s{sH}, 0"); A(f"s_cbranch_scc1 {dn}x")
        A("s_lshl_b32 s28, s28, 15"); A(f"s_add_u32 m0, s{sL}, {1024*i}"); A("s_add_u32 s28, s28, s27")
        A("buffer_load_dwordx4 v8, s[20:23], s28 offen sc1 lds")
    A.label(dn + "x")
    stamp(A, 7)
    A("s_waitcnt vmcnt(0)")
    for i in range(4):
        A(f"ds_read_b64_tr_b16 v[{8+4*i}:{9+4*i}], v2 offset:{1024*i}")
        A(f"ds_read_b64_tr_b16 v[{10+4*i}:{11+4*i}], v2 offset:{1024*i+512}")
    for i in range(4):
        A(f"s_waitcnt lgkmcnt({6-i})" if i < 3 else "s_waitcnt lgkmcnt(3)")
        A(f"ds_write_b128 v3, v[{8+4*i}:{11+4*i}] offset:{A2O + A2S*i}")
    stamp(A, 8)

def build():
    A = Asm(); A.later = []
    A.raw(f"; @launch grid=(256,1,1) block=(512,1,1) lds={LDS_BYTES}")
    A.raw('.amdgcn_target "amdgcn-amd-amdhsa--gfx950"')
    kernel_begin(A, NAME)
    A("s_cmp_ge_u32 s2, 256"); A("s_cbranch_scc1 k_end")
    stamp_begin(A)
    if OPT["probe"] >= 0:
        A("s_memrealtime s[64:65]"); A("s_waitcnt lgkmcnt(0)"); A("s_mov_b32 s66, s64")
    A("s_getpc_b64 s[24:25]")
    A.label("k_pc")
    A("s_load_dwordx16 s[32:47], s[0:1], 0")
    A(f"s_lshr_b32 s{RR}, s2, 3")
    A("v_lshrrev_b32 v1, 6, v0"); A(f"v_lshl_add_u32 v2, v1, 5, s{RR}"); A("v_lshlrev_b32 v2, 7, v2")
    A("v_min_u32 v2, k_last - k_pc, v2")
    A("v_mov_b32 v5, s25"); A("v_add_co_u32 v4, vcc, s24, v2"); A("v_addc_co_u32 v5, vcc, 0, v5, vcc")
    A("global_load_dword v15, v[4:5], off")
    A("v_readfirstlane_b32 s3, v1")
    A("s_load_dwordx8 s[48:55], s[0:1], 64")
    A("s_load_dwordx4 s[56:59], s[0:1], 96")
    A("s_load_dwordx2 s[20:21], s[0:1], 112")
    A("v_and_b32 v0, 63, v0"); A(f"s_and_b32 s{XCD}, s2, 7")
    A("s_cmp_lg_u32 s3, 4"); A("s_cbranch_scc1 k_k")
    A("v_lshlrev_b32 v8, 2, v0"); A(f"v_add_u32 v8, {FLG}, v8"); A("v_mov_b32 v9, 1")
    A("ds_write_b32 v8, v9")
    A("s_branch k_l")
    A.label("k_k")
    ev = [(0,1,1,2),(1,1,1,1),(1,2,2,1),(2,1,1,1),(0,0,0,0),(0,0,0,1),(1,0,0,2),(2,0,0,1)]
    od = [(0,1,1,1),(0,2,2,1),(1,1,1,1),(1,2,2,1),(0,0,0,0),(0,0,0,2),(1,0,0,2),(2,0,2,0)]
    enc = lambda t: sum((r | (sl << 2) | (p << 4) | (c << 6)) << (8*i) for i, (r, sl, p, c) in enumerate(t))
    A(f"s_mov_b32 s10, 0x{enc(ev) & 0xffffffff:x}"); A(f"s_mov_b32 s11, 0x{enc(ev) >> 32:x}")
    A(f"s_lshr_b32 s18, s{RR}, 1"); A("s_lshl_b32 s18, s18, 3"); A(f"s_add_u32 s18, s18, s{XCD}")
    A(f"s_and_b32 s8, s{RR}, 1")
    A(f"s_cselect_b32 s10, 0x{enc(od) & 0xffffffff:x}, s10"); A(f"s_cselect_b32 s11, 0x{enc(od) >> 32:x}, s11")
    A("s_lshl_b32 s9, s3, 3"); A("s_lshr_b64 s[10:11], s[10:11], s9")
    A(f"s_and_b32 s{LCH}, s10, 3"); A("s_bfe_u32 s17, s10, 0x20004"); A("s_bfe_u32 s16, s10, 0x20006")
    A("s_cmp_lt_u32 s3, 4"); A("s_cselect_b32 s14, s16, 1")
    A("s_mul_i32 s9, s8, 3"); A(f"s_add_u32 s9, s9, s{LCH}")
    A(f"s_cmp_eq_u32 s{LCH}, 2"); A("s_cselect_b32 s9, 2, s9"); A("s_cselect_b32 s13, s16, 0")
    A(f"s_mul_i32 s{CH}, s18, 5"); A(f"s_add_u32 s{CH}, s{CH}, s9")
    kpass(A)
    kgive(A)
    mwave(A)
    A.label("k_post")
    post(A)
    stamp_end(A, 0)
    if OPT["probe"] >= 0:
        A("s_waitcnt vmcnt(0)")
        stamp(A, 13)
        A("s_cmp_lg_u32 s3, 1"); A("s_cbranch_scc1 k_end")
        A(f"s_cmp_lg_u32 s2, {OPT['pwg']}"); A("s_cbranch_scc1 k_end")
        A("s_sub_u32 s70, s66, s64"); A(f"s_mul_i32 s70, s70, {OPT['pk']}"); A("s_min_u32 s70, s70, 20000")
        if OPT["xp"]:
            A("s_getreg_b32 s70, hwreg(HW_REG_XCC_ID)"); A("s_and_b32 s70, s70, 7"); A("s_add_u32 s70, s70, 1"); A("s_mul_i32 s70, s70, 1000")
        A("s_memrealtime s[68:69]"); A("s_waitcnt lgkmcnt(0)")
        A.label("k_pr")
        A("s_memrealtime s[72:73]"); A("s_waitcnt lgkmcnt(0)")
        A("s_sub_u32 s72, s72, s68"); A("s_cmp_lt_u32 s72, s70"); A("s_cbranch_scc1 k_pr")
    A.label("k_end")
    A("s_endpgm")
    A.label("k_h")
    A(f"s_mov_b32 s{RMT}, s13")
    hwave(A)
    A.label("k_fin")
    finpre(A)
    A("s_branch k_post")
    A.label("k_l")
    loader(A)
    A("s_branch k_post")
    for f in A.later: f()
    for sl, bk, reg, off in A.tail_code:
        A.label(sl); lds_wait(A, 7, reg, "v_cmp_ne_u32 vcc, 0", off=off); A(f"s_branch {bk}")
    A.label("k_last")
    A("s_endpgm")
    kernel_desc(A, NAME, 256, 102)
    return re.sub(r"^    (\w+:)$", r"\1", A.text(), flags=re.M)

if __name__ == "__main__":
    gen1.DIAG = "--diag" in sys.argv
    for a in sys.argv[2:]:
        if "=" in a:
            k, v = a.split("="); OPT[k] = eval(v)
    open(sys.argv[1], "w").write(build())
    if OPT["al"]:
        import align
        align.fix(sys.argv[1], OPT["al"])
```

```python
import sys, re, copy
from asmlib import *
import gen1
from gen1 import LOG2E, NLOG2E, LOG2E_LO, LN2, stamp, stamp_begin, stamp_end
NAME = "gated_mix__ssm_conv_s4d__swiglu_ffn__prompt_kernel"
OPT = dict(al=8, nfg=3, pk=4, pwg=77, probe=-1, xp=0, hdiag=0, mprio=2, epk=4, fpos=(3,0), thr2=0, cprio=1, psleep=1, lbar=42, ald=(12,3), wgo=1, m16=1, rt=0, bg=7,  defer=0, alate=0)
H_OFF = 0
UR_OFF = 6291456
YT_OFF = UR_OFF + 2621440
GG_OFF = YT_OFF + 2621440
HF_OFF = GG_OFF + 16384
UF_OFF = HF_OFF + 128*256
YF_OFF = UF_OFF + 16*256
WF_OFF = YF_OFF + 8*80*256
KF_OFF = WF_OFF + 16*256
KP_OFF = KF_OFF + 128*128
LAST_OFF = KP_OFF + 128*3072
WDF_OFF = 12 << 20
WS_BYTES = 1 << 25
GB = 16384; UB = GB + 12288 + 32; STG = 41024
HB = 3*STG; HS = 13184
FLG = HB + 3*HS
FT = FLG + 120
GL = FT + 256
LDS_BYTES = GL + 256
RS = 272; SS = 16*RS
C0 = 64; C1 = C0 + 4160; CU = 8448
A2O = 4096; A2S = 1072; OMG = 8704
GR = 24576; URG = GR + 8192 + 64
TB2 = 2*STG; GXO = TB2 + 24576; GWO = TB2 + 34816
PB = 176
PR = 336; PW = 64*PR
SPIN = 0x3000
U, LOGA, LOGDT, DSK, WG, WU, WD, GW, OUT, DBG = 32, 34, 42, 44, 48, 50, 52, 54, 56, 58
XCD, RR, R5, CG, LCH, REG = 96, 97, 98, 99, 100, 101
CH, TAG, RMT = 60, 61, 47
_stamp0 = stamp
def stamp(A, i, real=False):
    if OPT["hdiag"] and i != 1: return
    _stamp0(A, i, real or bool(OPT['rt']))
    if OPT["probe"] == i:
        A("s_memrealtime s[66:67]"); A("s_waitcnt lgkmcnt(0)")
def P2(b): return f"v[{b}:{b+1}]"

def lds_wait(A, vaddr, vtmp, cond, off=0, sleep=0):
    l = A.newlabel("lw"); d = A.newlabel("lw")
    A("s_mov_b32 s62, 0")
    A.label(l)
    A(f"ds_read_b32 v{vtmp}, v{vaddr} offset:{off}")
    A("s_addk_i32 s62, 1")
    A("s_waitcnt lgkmcnt(0)")
    A(f"{cond}, v{vtmp}")
    A(f"s_cbranch_vccz {d}")
    if sleep: A(f"s_sleep {sleep}")
    A("s_cmpk_lt_u32 s62, 0x7000")
    A(f"s_cbranch_scc1 {l}")
    A.label(d)

def poll(A, vaddr, soff, vdst, n=1, tagreg=None):
    l = A.newlabel("pl"); d = A.newlabel("pl")
    tagreg = vdst if tagreg is None else tagreg
    A("s_mov_b32 s62, 0")
    A.label(l)
    A(f"buffer_load_dword{'x2' if n == 2 else ''} {vr(vdst, n)}, v{vaddr}, s[20:23], {soff} offen sc1")
    A("s_addk_i32 s62, 1")
    A("s_waitcnt vmcnt(0)")
    A(f"v_cmp_ne_u32 vcc, s{TAG}, v{tagreg}")
    A(f"s_cbranch_vccz {d}")
    A(f"s_sleep {OPT['psleep']}")
    A(f"s_cmpk_lt_u32 s62, 0x{SPIN:x}")
    A(f"s_cbranch_scc1 {l}")
    A.label(d)

def flag_store(A, soff, vt, rep=1, stride=0, wait=True):
    A(f"v_mov_b32 v{vt}, s{TAG}")
    A(f"v_mul_u32_u24 v{vt+1}, {stride}, v0")
    A(f"s_mov_b64 exec, {(1 << rep) - 1}")
    if wait: A("s_waitcnt vmcnt(0)")
    A(f"buffer_store_dword v{vt}, v{vt+1}, s[20:23], {soff} offen sc1")
    A("s_mov_b64 exec, -1")

def tag_get(A, vt, issued=False):
    l = A.newlabel("tg"); d = A.newlabel("tg")
    if not issued: A(f"s_load_dword s{TAG}, s[{DBG}:{DBG+1}], 0")
    A("s_mov_b32 s62, 0")
    A("s_waitcnt lgkmcnt(0)")
    A.label(l)
    A(f"s_cmp_lg_u32 s{TAG}, 0"); A(f"s_cbranch_scc1 {d}")
    A(f"v_mov_b32 v{vt}, 0")
    A(f"global_load_dword v{vt}, v{vt}, s[{DBG}:{DBG+1}] sc1")
    A("s_addk_i32 s62, 1")
    A("s_waitcnt vmcnt(0)")
    A(f"v_readfirstlane_b32 s{TAG}, v{vt}")
    A(f"s_sleep {OPT['psleep']}")
    A(f"s_cmpk_lt_u32 s62, 0x{SPIN:x}"); A(f"s_cbranch_scc1 {l}")
    A.label(d)

def spoll(A, soff, sleep):
    l = A.newlabel("sp"); d = A.newlabel("sp")
    A("s_mov_b32 s62, 0")
    A.label(l)
    A(f"s_load_dwordx16 s[32:47], s[20:21], {soff} glc"); A(f"s_load_dwordx8 s[24:31], s[20:21], {soff} offset:64 glc")
    A("s_addk_i32 s62, 1")
    A("s_waitcnt lgkmcnt(0)")
    A("s_and_b64 s[10:11], s[24:25], s[26:27]"); A("s_or_b64 s[12:13], s[24:25], s[26:27]")
    for r in range(28, 48, 2):
        A(f"s_and_b64 s[10:11], s[10:11], s[{r}:{r+1}]"); A(f"s_or_b64 s[12:13], s[12:13], s[{r}:{r+1}]")
    A("s_and_b32 s10, s10, s11"); A("s_or_b32 s12, s12, s13")
    A(f"s_xor_b32 s10, s10, s{TAG}"); A(f"s_xor_b32 s12, s12, s{TAG}"); A("s_or_b32 s10, s10, s12")
    A(f"s_cbranch_scc0 {d}")
    A(f"s_sleep {sleep}")
    A(f"s_cmpk_lt_u32 s62, 0x{SPIN:x}"); A(f"s_cbranch_scc1 {l}")
    A.label(d)

def xtask(A, d, t):
    A(f"s_lshr_b32 s{d}, s{RR}, 1"); A(f"s_lshl_b32 s{d}, s{d}, 3"); A(f"s_add_u32 s{d}, s{d}, s{XCD}"); A(f"s_add_u32 s{d}, s{d}, 240")
    A(f"s_and_b32 s{t}, s{RR}, 1"); A(f"s_cselect_b32 s{d}, s{d}, 999")

def tiles(A):
    A(f"s_mul_i32 s{R5}, s{RR}, 52"); A(f"s_lshr_b32 s{R5}, s{R5}, 8"); A(f"s_and_b32 s{CG}, s{XCD}, 3"); A(f"s_lshr_b32 s6, s{XCD}, 2")
    A(f"s_sub_u32 s4, s6, s{R5}"); A("s_mul_i32 s4, s4, 5"); A(f"s_add_u32 s4, s4, s{RR}")
    A(f"s_mul_i32 s5, s{CG}, 6"); A(f"s_add_u32 s5, s5, s{R5}")
    A(f"s_lshl_b32 s7, s{CG}, 1"); A("s_add_u32 s7, s7, s6"); A("s_lshl_b32 s7, s7, 1"); A(f"s_add_u32 s7, s7, s{RR}"); A("s_sub_u32 s7, s7, 30")
    A("s_cmp_ge_u32 s2, 240"); A("s_cselect_b32 s4, 15, s4"); A("s_cselect_b32 s5, s7, s5")
    A(f"s_lshr_b32 s6, s{XCD}, 1"); A("s_lshl_b32 s6, s6, 3"); A(f"s_and_b32 s7, s{RR}, 7"); A("s_add_u32 s6, s6, s7")
    A(f"s_and_b32 s7, s{XCD}, 1"); A("s_lshl_b32 s7, s7, 2"); A(f"s_lshr_b32 s22, s{RR}, 3"); A("s_add_u32 s7, s7, s22")
    A("s_mov_b32 s22, 0x%x" % WS_BYTES); A("s_mov_b32 s23, 0x20000")

def loader(A):
    A(f"s_and_b32 s24, s{RR}, 15"); A("s_mul_i32 s24, s24, 12288");
    A(f"s_and_b32 s25, s{XCD}, 3"); A("s_lshl_b32 s25, s25, 1"); A(f"s_lshr_b32 s26, s{XCD}, 2"); A("s_add_u32 s25, s25, s26"); A("s_mul_i32 s25, s25, 384")
    A("s_add_u32 s24, s24, s25")
    A("v_min_u32 v18, 59, v0"); A("v_mul_u32_u24 v19, 43, v18"); A("v_lshrrev_b32 v19, 9, v19")
    A("v_mul_u32_u24 v9, 171, v18"); A("v_lshrrev_b32 v9, 9, v9")
    A("v_mul_u32_u24 v19, %d, v19" % (196608 - 4*3072)); A("v_mul_u32_u24 v9, %d, v9" % (3072 - 384))
    A("v_lshl_add_u32 v18, v18, 7, v19"); A("v_add3_u32 v18, v18, v9, s24")
    A("v_lshrrev_b32 v8, 3, v0"); A("v_mul_u32_u24 v8, 1280, v8"); A("v_and_b32 v10, 7, v0"); A("v_lshl_add_u32 v16, v10, 4, v8")
    A("s_and_b32 s26, s2, 31"); A("s_lshr_b32 s27, s2, 5")
    A("s_mul_i32 s28, s26, 81920"); A("s_lshl_b32 s27, s27, 7"); A("s_add_u32 s28, s28, s27")
    A("s_mov_b32 s10, 2621440"); A("s_mov_b32 s11, 0x20000")
    A(f"s_cmp_ge_u32 s{RR}, 16")
    A("s_waitcnt lgkmcnt(0)")
    A(f"s_cselect_b32 s24, s{WU}, s{WG}"); A(f"s_cselect_b32 s25, s{WU+1}, s{WG+1}")
    A(f"s_mov_b32 s8, s{U}"); A(f"s_mov_b32 s9, s{U+1}")
    A("s_barrier")
    stamp(A, 1)
    A("global_load_dword v20, v18, s[24:25]")
    def utile(h):
        for i in range(8):
            A(f"s_mov_b32 m0, {TB2 + 8192*h + 1024*i}"); A(f"v_xor_b32 v17, {16*i}, v16")
            A("buffer_load_dwordx4 v17, s[8:11], s28 offen lds"); A("s_add_u32 s28, s28, 10240")
    n1 = A.newlabel("n1"); n2 = A.newlabel("n2")
    A("s_cmp_ge_u32 s2, 240"); A(f"s_cbranch_scc1 {n2}")
    utile(0)
    A(f"s_mov_b32 s36, s{WD}"); A(f"s_mov_b32 s37, s{WD+1}"); A("s_mov_b32 s38, 1966080"); A("s_mov_b32 s39, 0x20000")
    A("s_mul_i32 s27, s2, 2731"); A("s_lshr_b32 s27, s27, 16"); A("s_mul_i32 s26, s27, 24"); A("s_sub_u32 s26, s2, s26")
    A("s_mul_i32 s45, s26, 81920"); A("s_lshl_b32 s27, s27, 7"); A("s_add_u32 s45, s45, s27"); A("s_sub_u32 s45, s45, 10240")
    for i in range(8):
        A(f"s_mov_b32 m0, {TB2 + 8192 + 1024*i}"); A("s_add_u32 s45, s45, 10240")
        A("buffer_load_dwordx4 v16, s[36:39], s45 offen lds")
    xtask(A, 27, 26)
    A("s_cmp_ge_u32 s27, 320"); A(f"s_cbranch_scc1 {n2}")
    A("s_and_b32 s26, s27, 31"); A("s_lshr_b32 s27, s27, 5")
    A("s_mul_i32 s28, s26, 81920"); A("s_lshl_b32 s27, s27, 7"); A("s_add_u32 s28, s28, s27")
    utile(2)
    A.label(n2)
    A("v_lshlrev_b32 v1, 4, v0"); A("v_mov_b32 v14, 0x7ffffff0")
    A(f"s_mov_b32 s40, s{GW}"); A(f"s_mov_b32 s41, s{GW+1}"); A("s_mov_b32 s42, 1280"); A("s_mov_b32 s43, 0x20000")
    A("s_mul_i32 s46, s2, 10240")
    for (o, n) in ((0, 4), (4096, 4), (8192, 2)):
        A(f"s_mov_b32 m0, {GXO + o}"); A(f"s_add_u32 s28, s46, {o}")
        for i in range(n): A(f"buffer_load_dwordx4 v1, s[8:11], s28 offen offset:{1024*i} lds")
    A(f"s_mov_b32 m0, {GWO}"); A("v_add_u32 v19, %d, v18" % (5*196608))
    for i in range(2): A(f"buffer_load_dwordx4 v1, s[40:43], 0 offen offset:{1024*i} lds")
    A(f"s_mov_b32 m0, {FT}"); A("s_nop 0")
    A("buffer_load_dword v14, s[8:11], 0 offen lds")
    A("global_load_dword v21, v19, s[24:25]")
    tiles(A)
    A("v_lshrrev_b32 v9, 4, v0"); A("v_xor_b32 v9, v9, v10"); A("v_lshl_add_u32 v2, v9, 4, v8")
    A("v_xor_b32 v9, 4, v9"); A("v_lshl_add_u32 v3, v9, 4, v8")
    A(f"v_add_u32 v3, {10240-1024}, v3"); A(f"v_add_u32 v4, {20480-2048}, v2"); A(f"v_add_u32 v5, {20480-2048}, v3")
    A("v_mov_b32 v51, 0")
    A("s_mov_b32 s29, 0"); A("s_mov_b32 s30, 0"); A(f"s_mov_b32 s31, {FT-4}")
    A(f"s_mov_b32 s12, s{WG}"); A(f"s_mov_b32 s13, s{WG+1}"); A("s_mov_b32 s14, 1966080"); A("s_mov_b32 s15, 0x20000")
    A(f"s_mov_b32 s16, s{WU}"); A(f"s_mov_b32 s17, s{WU+1}"); A("s_mov_b32 s18, 1966080"); A("s_mov_b32 s19, 0x20000")
    def flag(fill):
        A("s_mov_b32 m0, s31"); A(fill)
        A("buffer_load_dword v14, s[8:11], 0 offen lds")
    def tail():
        flag("s_sub_u32 s31, s31, 4")
        A(f"s_add_u32 s29, s29, {STG}"); A(f"s_cmp_eq_u32 s29, {3*STG}"); A("s_cselect_b32 s29, 0, s29")
        A("s_add_u32 s30, s30, 1")
    def gloop(reg):
        l1 = A.newlabel("ld"); cnt = [0]
        extra = {1: [f"s_add_u32 s33, s29, {STG}"], 2: [f"s_cmp_eq_u32 s33, {3*STG}", "s_cselect_b32 s33, 0, s33"], 5: ["s_add_u32 s30, s30, 1"],
                 (30 if reg else 26): ["s_add_u32 s26, s26, 128"], (35 if reg else 37): ["s_add_u32 s27, s27, 196608"], 40: ["s_mov_b32 s29, s33"]}
        def dma(x):
            A(x); cnt[0] += 1
            for e in extra.get(cnt[0], []): A(e)
            if cnt[0] == OPT["lbar"]:
                sk = A.newlabel("sk")
                A("s_bitcmp0_b32 s36, s30"); A(f"s_cbranch_scc1 {sk}")
                A(f"s_waitcnt vmcnt({cnt[0]})")
                A("s_barrier")
                A.label(sk)
        def xq(q):
            A(f"s_add_u32 m0, s29, {4096*q}"); A(f"s_add_u32 s28, s26, {40960*q}")
            for i in range(4): dma(f"buffer_load_dwordx4 v{2+i}, s[8:11], s28 offen offset:{1024*i} lds")
        def wq(q):
            n = 4 if reg else 3
            A(f"s_add_u32 m0, s29, {(GR if reg else GB) + 1024*n*q}"); A(f"s_add_u32 s28, s27, {(98304 if reg else 49152)*q}")
            for i in range(n): dma(f"buffer_load_dwordx4 v{10+i}, s[12:15], s28 offen offset:{1024*i} lds")
            A(f"s_add_u32 m0, s29, {(URG if reg else UB) + 1024*n*q}"); A("s_nop 0")
            for i in range(n): dma(f"buffer_load_dwordx4 v{10+i}, s[16:19], s28 offen offset:{1024*i} lds")
        def fl():
            A("s_mov_b32 m0, s31"); A("s_sub_u32 s31, s31, 4")
            dma("buffer_load_dword v14, s[8:11], 0 offen lds")
        A.label(l1)
        if reg:
            wq(0)
            for q in range(6): xq(q)
            fl(); wq(1); fl()
        else:
            wq(0); wq(1); xq(0); xq(1); xq(2); xq(3); fl(); wq(2); wq(3); fl()
        assert cnt[0] == 42
        A("s_cmp_lt_u32 s30, 10"); A(f"s_cbranch_scc1 {l1}")
    A("s_mov_b32 s36, 0x3fc")
    A("s_cmp_ge_u32 s2, 240"); A("s_cbranch_scc1 k_ls")
    A("v_lshrrev_b32 v9, 3, v0"); A("v_mul_u32_u24 v9, 3072, v9")
    if OPT["m16"]:
        A("v_bfe_u32 v22, v0, 4, 1"); A("v_and_b32 v10, 7, v0"); A("v_xor_b32 v22, v22, v10"); A("v_lshl_add_u32 v10, v22, 4, v9")
        A("v_xor_b32 v11, 64, v10"); A(f"v_add_u32 v11, {24576-1024}, v11")
        A(f"v_add_u32 v12, {2*(24576-1024)}, v10"); A(f"v_add_u32 v13, {2*(24576-1024)}, v11")
    else:
        for i in range(1, 4): A(f"v_add_u32 v{10+i}, {(24576-1024)*i}, v10")
    A("s_mul_i32 s26, s4, 245760"); A("s_lshl_b32 s27, s5, 7")
    gloop(True)
    A.label("k_lj")
    def special():
        A.label("k_ls")
        for i in range(3):
            A(f"v_add_u32 v9, {64*i}, v0"); A("v_mul_u32_u24 v22, 5462, v9"); A("v_lshrrev_b32 v22, 16, v22")
            A("v_mul_u32_u24 v22, 2880, v22"); A(f"v_lshl_add_u32 v{10+i}, v0, 4, v22")
        A("s_mul_i32 s26, s4, 163840"); A("s_mul_i32 s27, s5, 192")
        gloop(False)
        A("s_branch k_lj")
    A.later.append(special)
    stamp(A, 2)
    A("s_barrier")
    if OPT["wgo"]:
        A("v_and_b32 v2, 3, v0"); A("v_lshlrev_b32 v2, 2, v2"); A(f"v_add_u32 v2, {FLG+4}, v2")
        lds_wait(A, 2, 3, "v_cmp_ne_u32 vcc, 0", sleep=1)
    A("s_mul_i32 s26, s7, 245760"); A(f"s_add_u32 s26, s26, {WDF_OFF + 30720}")
    l2 = A.newlabel("ld"); l4 = A.newlabel("ld")
    A.label(l2)
    for w in range(4):
        for (o, n) in ((0, 4), (4096, 4), (8192, 2)):
            A(f"s_add_u32 m0, s29, {10240*w + o}"); A(f"s_add_u32 s28, s26, {61440*w + o}")
            if OPT["thr2"]: A(f"s_waitcnt vmcnt({OPT['thr2']})")
            for i in range(n): A(f"buffer_load_dwordx4 v1, s[20:23], s28 offen offset:{1024*i} sc1 lds")
    tail()
    A("s_add_u32 s26, s26, 10240")
    A("s_cmp_lt_u32 s30, 13"); A(f"s_cbranch_scc1 {l2}")
    stamp(A, 3)

ACC1 = 64
def msetup(A):
    A("s_lshr_b32 s8, s3, 1"); A("s_and_b32 s9, s3, 1")
    A(f"v_mov_b32 v7, {FT - 64}")
    A("s_mov_b32 s54, 0x%x" % NLOG2E); A("s_mov_b32 s55, 0x%x" % NLOG2E)
    A("s_lshl_b32 s52, s6, 2"); A("s_add_u32 s52, s52, s3"); A("s_lshl_b32 s52, s52, 8"); A(f"s_add_u32 s52, s52, {HF_OFF}")
    A("s_mul_i32 s53, s6, 196608"); A("s_mul_i32 s10, s3, 49152"); A("s_add_u32 s53, s53, s10")
    A("s_mul_i32 s10, s3, 10240"); A("v_add_u32 v11, s10, v1")
    A("s_cmp_ge_u32 s2, 240"); A("s_cbranch_scc1 k_ss")
    if True:
        A("v_bfe_u32 v12, v0, 1, 3"); A("v_xor_b32 v12, v12, v18"); A("v_lshlrev_b32 v2, 7, v17"); A("v_lshl_add_u32 v2, v12, 4, v2")
        A("s_mul_i32 s10, s8, 0x3000"); A("v_add_u32 v2, s10, v2"); A("v_xor_b32 v3, 64, v2")
        A("v_bfe_u32 v12, v0, 2, 2"); A("v_lshl_add_u32 v12, v18, 3, v12"); A("v_lshlrev_b32 v6, 7, v12")
        A("v_bfe_u32 v12, v0, 4, 1"); A("v_xor_b32 v12, s9, v12"); A("v_lshl_add_u32 v6, v12, 6, v6")
        A("v_bfe_u32 v12, v0, 1, 1"); A("v_lshl_add_u32 v6, v12, 5, v6")
        A("v_bfe_u32 v12, v0, 3, 1"); A("v_lshl_add_u32 v6, v12, 4, v6")
        A("v_and_b32 v12, 1, v0"); A("v_lshl_add_u32 v6, v12, 3, v6"); A(f"v_add_u32 v6, {GR}, v6")
        A("v_xor_b32 v8, 16, v6"); A("v_mov_b32 v10, v1"); A("v_add_u32 v9, 1024, v1")
    A("s_lshl_b32 s11, s4, 1"); A("s_add_u32 s11, s11, s8"); A("s_mul_i32 s11, s11, 3")
    A("s_lshl_b32 s12, s5, 1"); A("s_add_u32 s12, s12, s9"); A("s_lshl_b32 s12, s12, 12")
    for a in range(3):
        A(f"s_add_u32 s13, s11, {a}"); A("s_lshr_b32 s10, s13, 1"); A("s_mul_i32 s10, s10, 196608")
        A("s_and_b32 s13, s13, 1"); A("s_lshl_b32 s13, s13, 11"); A("s_add_u32 s10, s10, s13"); A(f"s_add_u32 s{48+a}, s10, s12")
    A("s_mul_i32 s51, s4, 12"); A(f"s_add_u32 s51, s51, s{CG}"); A("s_lshl_b32 s51, s51, 8")
    A(f"s_lshl_b32 s10, s{R5}, 1"); A("s_add_u32 s10, s10, s9"); A("s_lshl_b32 s10, s10, 3")
    A("s_add_u32 s51, s51, s10"); A(f"s_add_u32 s51, s51, {HF_OFF}")
    A("s_lshl_b32 s46, s8, 11"); A("s_lshl_b32 s47, s8, 2"); A("s_add_u32 s47, s47, 0x400")
    def special():
        A.label("k_ss")
        A("v_and_b32 v8, 31, v0"); A("v_lshrrev_b32 v9, 5, v0")
        A("v_bfe_u32 v10, v0, 1, 3"); A("v_xor_b32 v10, v10, v9")
        A("s_lshl_b32 s10, s8, 13")
        A("v_lshlrev_b32 v14, 7, v8"); A("v_add_u32 v14, s10, v14")
        for ks in range(4):
            A(f"v_xor_b32 v12, {2*ks}, v10"); A(f"v_lshl_add_u32 v{2+ks}, v12, 4, v14")
        A("v_and_b32 v10, 15, v0"); A("v_lshlrev_b32 v10, 4, v10"); A("v_lshl_add_u32 v10, v9, 8, v10")
        A("v_bfe_u32 v13, v0, 4, 1"); A("v_lshl_add_u32 v10, v13, 10, v10")
        A("v_bfe_u32 v12, v0, 2, 2"); A("v_lshl_add_u32 v12, v9, 3, v12"); A("v_and_b32 v14, 3, v0"); A("v_lshlrev_b32 v14, 3, v14")
        A("v_mul_u32_u24 v6, 192, v12"); A("v_add_u32 v6, v6, v14")
        A(f"v_mul_u32_u24 v13, {UB-GB}, v13"); A("s_mul_i32 s10, s9, 96"); A(f"s_add_u32 s10, s10, {GB}"); A("v_add3_u32 v6, v6, v13, s10")
        A("v_add_u32 v9, 2048, v10")
        A("s_add_u32 s18, s8, 30")
        A("s_mul_i32 s11, s18, 196608"); A("s_mul_i32 s12, s5, 6"); A("s_mul_i32 s13, s9, 3"); A("s_add_u32 s12, s12, s13")
        for nt in range(3):
            A(f"s_add_u32 s13, s12, {nt}")
            A("s_lshr_b32 s10, s13, 1"); A("s_lshl_b32 s10, s10, 12")
            A("s_and_b32 s13, s13, 1"); A("s_lshl_b32 s13, s13, 9"); A("s_add_u32 s10, s10, s13")
            A(f"s_add_u32 s{48+nt}, s10, s11")
        A("s_lshl_b32 s51, s18, 2"); A("s_lshr_b32 s10, s5, 2"); A("s_add_u32 s51, s51, s10"); A("s_lshl_b32 s51, s51, 8")
        A("s_and_b32 s10, s5, 3"); A("s_lshl_b32 s10, s10, 1"); A("s_add_u32 s10, s10, s9"); A("s_mul_i32 s10, s10, 12")
        A("s_add_u32 s51, s51, s10"); A(f"s_add_u32 s51, s51, {HF_OFF}"); A("s_mov_b32 s46, 0"); A("s_mov_b32 s47, 8")
        A("s_branch k_nosetup")
    A.later.append(special)

def kgive(A):
    A("v_add_u32 v15, s19, v1")
    A("s_nop 4")
    for i in range(3): A(f"ds_write_b128 v15, v[{20+4*i}:{23+4*i}] offset:{1024*i}")

def mtasks(A):
    dn = A.newlabel("mt"); wd = A.newlabel("mt"); ur = A.newlabel("mt")
    A("s_sub_u32 s24, s3, 1"); A("s_cmp_ge_u32 s24, 3"); A(f"s_cbranch_scc1 {dn}")
    A("v_lshrrev_b32 v40, 3, v0"); A("v_and_b32 v41, 7, v0"); A(f"v_mov_b32 v42, {FT}")
    lds_wait(A, 42, 43, "v_cmp_ne_u32 vcc, 0", sleep=1)
    A("s_cmp_eq_u32 s3, 2"); A(f"s_cbranch_scc1 {wd}")
    A("s_mov_b32 s24, s2"); A(f"s_mov_b32 s25, {TB2}")
    A("s_cmp_eq_u32 s3, 1"); A(f"s_cbranch_scc1 {ur}")
    A("v_lshlrev_b32 v42, 4, v41"); A(f"v_add_u32 v42, {GXO}, v42"); A("v_mul_u32_u24 v43, 1280, v40"); A("v_add_u32 v43, v43, v42")
    for i in range(10):
        A(f"ds_read_b128 v[{160+4*i}:{163+4*i}], v43 offset:{128*i}")
        A(f"ds_read_b128 v[{200+4*i}:{203+4*i}], v42 offset:{GWO - GXO + 128*i}")
    A("v_mov_b32 v44, 0"); A("v_mov_b32 v45, 0"); A("v_lshlrev_b32 v46, 2, v0"); A(f"v_add_u32 v46, {GL}, v46")
    A("s_waitcnt lgkmcnt(0)")
    for k in range(40): A(f"v_dot2c_f32_bf16 v{44 + k % 2}, v{160+k}, v{200+k}")
    xtask(A, 24, 25)
    A(f"s_mov_b32 s25, {TB2 + 16384}"); A("s_cmp_ge_u32 s24, 320")
    A("v_add_f32 v44, v44, v45")
    A("ds_write_b32 v46, v44")
    A(f"s_cbranch_scc1 {dn}")
    A.label(ur)
    A("s_cmp_ge_u32 s2, 240"); A(f"s_cbranch_scc1 {dn}")
    A("v_xor_b32 v42, v40, v41"); A("v_lshlrev_b32 v42, 4, v42"); A("v_lshl_add_u32 v42, v41, 10, v42"); A("v_add_u32 v42, s25, v42")
    for e in range(8): A(f"ds_read_b128 v[{160+4*e}:{163+4*e}], v42 offset:{128*e}")
    A("v_lshlrev_b32 v43, 15, v40"); A("v_lshlrev_b32 v41, 4, v41"); A("v_sub_u32 v43, v43, v41"); A("v_add_u32 v43, 4080, v43")
    A("s_mov_b32 s28, 0x05040100"); A("s_mov_b32 s29, 0x07060302")
    A("s_lshr_b32 s25, s24, 5"); A("s_and_b32 s24, s24, 31")
    A("s_lshl_b32 s25, s25, 18"); A("s_lshl_b32 s24, s24, 7"); A("s_sub_u32 s25, s25, s24"); A(f"s_add_u32 s25, s25, {UR_OFF}")
    A("s_waitcnt lgkmcnt(0)")
    for i in range(8):
        o = 192 + 4*i
        for p in range(4):
            lo = 160 + 4*(7-2*p) + i//2; hi = 160 + 4*(6-2*p) + i//2
            A(f"v_perm_b32 v{o+p}, v{hi}, v{lo}, s{28 + (i&1)}")
        A(f"buffer_store_dwordx4 v[{o}:{o+3}], v43, s[20:23], s25 offen sc1")
        A("s_add_u32 s25, s25, 4096")
    A(f"s_branch {dn}")
    A.label(wd)
    A("s_cmp_ge_u32 s2, 240"); A(f"s_cbranch_scc1 {dn}")
    A("v_lshrrev_b32 v42, 5, v0"); A("v_lshlrev_b32 v42, 11, v42"); A("v_bfe_u32 v43, v0, 2, 3"); A("v_lshl_add_u32 v42, v43, 7, v42")
    A("v_and_b32 v43, 3, v0"); A("v_lshl_add_u32 v42, v43, 3, v42"); A(f"v_add_u32 v42, {TB2 + 8192}, v42")
    for dtl in range(4):
        for sg in range(2):
            o = 160 + 4*(2*dtl+sg)
            A(f"ds_read_b64_tr_b16 v[{o}:{o+1}], v42 offset:{4096*sg + 32*dtl}")
            A(f"ds_read_b64_tr_b16 v[{o+2}:{o+3}], v42 offset:{4096*sg + 32*dtl + 1024}")
    A("s_mul_i32 s25, s2, 2731"); A("s_lshr_b32 s25, s25, 16"); A("s_mul_i32 s24, s25, 24"); A("s_sub_u32 s24, s2, s24")
    A("s_mul_i32 s24, s24, 10"); A("s_lshl_b32 s25, s25, 2")
    for dtl in range(4):
        A(f"s_add_u32 s26, s25, {dtl}")
        A("s_mul_i32 s27, s26, 52429"); A("s_lshr_b32 s27, s27, 18"); A("s_mul_i32 s27, s27, 235"); A("s_add_u32 s26, s26, s27")
        A("s_add_u32 s26, s26, s24"); A("s_lshl_b32 s26, s26, 10"); A(f"s_add_u32 s26, s26, {WDF_OFF}"); A("s_add_u32 s27, s26, 5120")
        A(f"s_waitcnt lgkmcnt({12 - 4*dtl})")
        o = 160 + 8*dtl
        A(f"buffer_store_dwordx4 v[{o}:{o+3}], v1, s[20:23], s26 offen sc1")
        A(f"buffer_store_dwordx4 v[{o+4}:{o+7}], v1, s[20:23], s27 offen sc1")
    A.label(dn)

def mwave(A):
    mtasks(A)
    A("s_mov_b32 s16, 0x%x" % ((-2*STG) & 0xffffffff)); A(f"s_mov_b32 s17, {STG}")
    A("s_mov_b32 s11, 0"); A("s_mov_b32 s12, 0")
    A("s_mul_i32 s14, s7, 245760"); A("s_mul_i32 s15, s3, 61440"); A("s_add_u32 s14, s14, s15"); A(f"s_add_u32 s14, s14, {WDF_OFF}")
    A("s_cmp_ge_u32 s2, 240")
    A("s_waitcnt lgkmcnt(0)")
    stamp(A, 12)
    A("s_cbranch_scc1 k_ms")
    F = [16, 36]
    AF = [160+4*i for i in range(24)] + [56, 60, 64, 68, 72, 76]
    def aload(n):
        r = [f"buffer_load_dwordx4 v[{AF[n]}:{AF[n]+3}], v1, s[20:23], s14 offen offset:{1024*(n % 4)} sc1"]
        if n % 4 == 3: r.append("s_add_u32 s14, s14, 4096")
        return r
    slows = []; na = [0]; NE = 22 if OPT["m16"] else 26
    def emit(items, q):
        for i in items:
            tags = i[2] if i[0] == "m" else [i[1]] if i[0] == "w" else []
            if tags:
                pos = max(len(q["ops"]) - 1 - q["ops"][::-1].index(t) for t in tags)
                if pos >= q["done"]:
                    n = min(14, len(q["ops"]) - 1 - pos)
                    q["done"] = len(q["ops"]) - n
                    A(f"s_waitcnt lgkmcnt({n})")
            if i[0] == "r": q["ops"].append(i[2])
            if i[0] != "w": A(i[1])
    def chk(rg, off):
        sl = A.newlabel("g1s"); bk = A.newlabel("g1b"); slows.append((sl, bk, rg, off))
        return [("x", f"v_cmp_ne_u32 vcc, 0, v{rg}"), ("x", f"s_cbranch_vccnz {sl}"), ("x", f"{bk}:")]
    def gemm16():
        na[0] = 0
        XS = [48, 52, 56, 60, 248, 252]; BG = OPT["bg"]
        def xr(n): return ("r", f"ds_read_b128 v[{XS[n % 6]}:{XS[n % 6]+3}], v{2 + (n // 6) % 2} offset:{2048*(n % 6)}", ("x", n))
        def wr(st, i):
            f, h = i // 2, i % 2; o = 16 + 16*(st % 2) + 4*f + 2*h
            return ("r", f"ds_read_b64_tr_b16 v[{o}:{o+1}], v{8 if f & 1 else 6} offset:{(URG-GR)*(f >> 1) + 4096*(st % 2) + 512*h}", ("w", st, i))
        def stage(s0, mode, zero=False, half=None):
            last = mode == 2; ca = mode in (3, 1); cb = mode in (1, 2); it = []
            dl = {0: "s13", 3: "s17", 1: "s16", 2: ""}[mode]
            slot = {}
            def put(g, m, x): slot.setdefault((g, m), []).append(x if isinstance(x, tuple) else ("x", x))
            n0 = 12*s0; st0 = 2*s0
            for i in range(8): put(1 + i // 3, i % 3, wr(st0 + 1, i))
            for g in range(6): put(g, 3, xr(n0 + g + 6))
            if cb:
                put(0, 0, ("r", "ds_read_b32 v12, v7", "flagB")); slot[(1, 0)] = [("w", "flagB")] + chk(12, 0) + slot[(1, 0)]
            if not last:
                if mode == 0:
                    put(BG, 0, ("w", ("x", n0 + 11))); put(BG, 0, "s_barrier"); put(BG - 1, 1, "s_waitcnt vmcnt(0)")
                else:
                    put(BG - 2, 2, ("r", "ds_read_b32 v13, v7 offset:4", "flag")); put(BG, 0, ("w", "flag"))
                    for x in chk(13, 4): put(BG, 0, x)
                seq = [wr(st0 + 2, 0), wr(st0 + 2, 1), xr(n0 + 12)] + [wr(st0 + 2, i) for i in range(2, 8)] + [xr(n0 + 12 + g) for g in range(1, BG - 6)]
                pos = [(g, m) for g in range(BG, 12) for m in range(3)]
                for x, p in zip(seq, pos): put(p[0], p[1], x)
                for g in range(max(BG, 7), 12): put(g, 3, xr(n0 + g + 6))
                if mode == 0:
                    put(0, 0, "s_add_u32 s12, s12, 1"); put(0, 1, "s_cmp_eq_u32 s12, 3"); put(0, 2, "s_cselect_b32 s13, s16, s17"); put(3, 2, "s_cselect_b32 s12, 0, s12")
                    put(5, 0, "s_add_u32 s11, s11, 1"); put(11, 2, "s_cmp_lt_u32 s11, 7")
                else: put(3, 2, "v_subrev_u32 v7, 8, v7")
                put(4, 0, f"v_add_u32 v2, {dl}, v2"); put(4, 1, f"v_add_u32 v6, {dl}, v6"); put(4, 2, f"v_add_u32 v8, {dl}, v8"); put(6, 0, f"v_add_u32 v3, {dl}, v3")
            else: put(8, 0, f"s_setprio {OPT['mprio']}")
            for g in range(12):
                if half is not None and g // 6 != half: continue
                n = n0 + g; st = st0 + g // 6; a = g % 6
                for m in range(4):
                    c = ACC1 + 16*(3*(a & 1) + a // 2) + 4*m; w = 16 + 16*(st % 2) + 4*m
                    need = ([("x", n)] if m == 0 else []) + ([("w", st, 7)] if a == 0 and m == 0 else [])
                    it.append(("m", f"v_mfma_f32_16x16x32_bf16 v[{c}:{c+3}], v[{w}:{w+3}], v[{XS[a]}:{XS[a]+3}], " + ("0" if zero else f"v[{c}:{c+3}]"), need))
                    it += slot.get((g, m), [])
                    if mode in (1, 2) and 24*(mode-1) + 2*g >= OPT["ald"][0] and na[0] < NE and (m == 1 or (m == 2 and g % 3 == 1)):
                        it += [("x", e) for e in aload(na[0])]; na[0] += 1
            return it
        A("s_barrier")
        stamp(A, 2)
        q = dict(ops=[], done=0); lp = A.newlabel("g1"); st1 = A.newlabel("g1e")
        tail = [i for i in stage(-1, 0) if i[0] == "r" and (i[2][1] >= 0)]
        emit(tail, q)
        q0 = copy.deepcopy(q)
        emit(stage(0, 0, zero=True, half=0), q0)
        A(f"s_branch {st1}")
        A.label(lp)
        emit(stage(0, 0, half=0), q)
        A.label(st1)
        emit(stage(0, 0, half=1), q)
        A(f"s_cbranch_scc1 {lp}")
        q["done"] = 0
        for k, mode in enumerate((3, 1, 2)): emit(stage(k + 1, mode), q)
        while na[0] < NE:
            for x in aload(na[0]): A(x)
            na[0] += 1
        return na[0]
    def gemm1(reg):
        na[0] = 0
        def reads(ks, f):
            b = F[f]
            if reg:
                w = lambda o, v: [f"ds_read_b64_tr_b16 v[{o}:{o+1}], v{v} offset:{2048*ks}", f"ds_read_b64_tr_b16 v[{o+2}:{o+3}], v{v} offset:{2048*ks + 512}"]
                return w(b, 6) + [f"ds_read_b128 v[{b+8+4*a}:{b+11+4*a}], v{2+ks} offset:{4096*a}" for a in range(3)] + w(b+4, 8)
            r = [f"ds_read_b128 v[{b}:{b+3}], v{2+ks}"]
            for nt in range(3):
                o = b + 8 + 4*nt
                r.append(f"ds_read_b64_tr_b16 v[{o}:{o+1}], v6 offset:{3072*ks + 32*nt}")
                r.append(f"ds_read_b64_tr_b16 v[{o+2}:{o+3}], v6 offset:{3072*ks + 32*nt + 768}")
            return r + [f"ds_read_b128 v[{b+4}:{b+7}], v{2+ks} offset:4096"]
        def mfmas(f):
            b = F[f]; r = []
            for p in range(2):
                for j in range(3):
                    c = ACC1 + 16*(3*p+j); pr = f"v[{b+4*p}:{b+4*p+3}]"; tr = f"v[{b+8+4*j}:{b+11+4*j}]"
                    r.append(f"v_mfma_f32_32x32x16_bf16 v[{c}:{c+15}], {pr if reg else tr}, {tr if reg else pr}, v[{c}:{c+15}]")
            return r
        if reg:
            PL = {0: [(1, 5)], 1: [(1, 6)], 2: [(2, 0)], 3: [(2, 1), (2, 2)], 4: [(2, 3)], 5: [(2, 4)]}
            need = {0: (0, 1, 2), 1: (3,), 2: (4,), 3: (5, 6), 4: (), 5: ()}; NR = 7; gB = 2; slots = (0, 1, 4, 5)
        else:
            PL = {0: [(1, 5), (1, 6)], 1: [(1, 7)], 2: [(2, 0)], 3: [(2, 1)], 4: [(2, 2), (2, 3)], 5: [(2, 4)]}
            need = {0: (0, 1, 2), 1: (3, 4), 2: (5, 6), 3: (7,), 4: (), 5: ()}; NR = 8; gB = 3; slots = (1, 2, 3, 5)
        def step_items(k, mode):
            last = mode == 2
            ks = k % 4; it = []; ms = mfmas(k % 2)
            ca = mode in (3, 1); cb = mode in (1, 2)
            held = []
            for g in range(6):
                it.append(("m", ms[g], [(k, r) for r in need[g]]))
                if ks == 2 and g == 2 and ca: it += [("w", "flag")] + chk(13, 4)
                if ks == 0 and g == gB and cb: it += [("w", "flagB")] + chk(12, 0)
                if mode == 0 and ks == 2 and g == OPT["nfg"]: it += [("w", (k+1, NR-1)), ("x", "s_barrier")]
                if last and ks == 2 and g == 5: it += [("x", f"s_setprio {OPT['mprio']}")]
                for (so, ri) in PL[g]:
                    if last and ks + so > 3: continue
                    held.append(("r", reads((k+so) % 4, (k+so) % 2)[ri], (k+so, ri)))
                if not (mode == 0 and ks == 2 and 2 <= g < OPT["nfg"]):
                    it += held; held = []
                ex = []
                dl = {0: "s13", 3: "s17", 1: "s16", 2: ""}[mode]
                if mode == 0:
                    if ks == 0 and g == 1: ex = ["s_add_u32 s12, s12, 1", "s_cmp_eq_u32 s12, 3"]
                    if ks == 0 and g == 2: ex = ["s_cselect_b32 s13, s16, s17", "s_cselect_b32 s12, 0, s12"]
                    if ks == 1 and g == 2: ex = ["s_add_u32 s11, s11, 1"]
                    if ks == 2 and g == 2: ex = ["s_waitcnt vmcnt(0)"]
                    if ks == 3 and g == 2: ex = ["s_cmp_lt_u32 s11, 7"]
                if not last:
                    if ks == 1 and g == 1: ex = [f"v_add_u32 v2, {dl}, v2"]
                    if ks == 0 and g == 5: ex = [f"v_add_u32 v3, {dl}, v3"] + ([] if mode == 0 else ["v_subrev_u32 v7, 8, v7"])
                    if ks == 1 and g == 5: ex = [f"v_add_u32 v4, {dl}, v4"]
                    if ks == 3 and g == 1: ex = [f"v_add_u32 v5, {dl}, v5"]
                    if ks == 2 and g == 1: ex = [f"v_add_u32 v6, {dl}, v6"]
                    if ks == 2 and g == 5 and reg: ex = [f"v_add_u32 v8, {dl}, v8"]
                if mode in (1, 2):
                    pos = 24*(mode-1) + 6*ks - OPT["ald"][0]
                    if pos >= 0 and g in slots and na[0] < NE: ex = ex + aload(na[0]); na[0] += 1
                for e in ex: it.append(("x", e))
                if ks == 1 and g == OPT["fpos"][0] and ca: it.append(("r", "ds_read_b32 v13, v7 offset:4", "flag"))
                if ks == 0 and g == OPT["fpos"][1] and cb: it.append(("r", "ds_read_b32 v12, v7", "flagB"))
            return it
        A("s_barrier")
        stamp(A, 2)
        q = dict(ops=[], done=0); lp = A.newlabel("g1"); st1 = A.newlabel("g1e")
        emit([("r", reads(0, 0)[r], (0, r)) for r in range(NR)] + [("r", reads(1, 1)[ri], (1, ri)) for g in range(6) for (so, ri) in PL[g] if so == 2], q)
        q0 = copy.deepcopy(q)
        emit([(i[0], re.sub(r"v\[\d+:\d+\]$", "0", i[1]), i[2]) if i[0] == "m" else i for i in step_items(0, 0)], q0)
        A(f"s_branch {st1}")
        A.label(lp)
        for k in range(4):
            if k == 1: A.label(st1)
            emit(step_items(k, 0), q)
        A(f"s_cbranch_scc1 {lp}")
        q["done"] = 0; k0 = 4
        for mode in (3, 1, 2):
            for k in range(k0, k0 + 4): emit(step_items(k, mode), q)
            k0 += 4
        while OPT['m16'] and na[0] < NE:
            for x in aload(na[0]): A(x)
            na[0] += 1
        return na[0]
    n_reg = gemm16() if OPT['m16'] else gemm1(True)
    A.label("k_mj")
    def special():
        A.label("k_ms")
        assert gemm1(False) == n_reg
        A("s_branch k_mj")
    A.later.append(special)
    stamp(A, 3)
    A(f"s_load_dword s{TAG}, s[{DBG}:{DBG+1}], 0")
    A(f"v_mov_b32 v7, {FT-92}"); A("v_mov_b32 v5, v11"); A(f"v_add_u32 v6, {2*STG}, v11"); A("s_nop 6")
    def areads(step):
        slot = (10 + step // 2) % 3; r = []
        for dt in range(5):
            o = AF[5*(step % 6) + dt]
            off = (STG if slot == 1 else 0) + 5120*(step % 2) + 1024*dt
            r.append(f"ds_read_b128 v[{o}:{o+3}], v{6 if slot == 2 else 5} offset:{off}")
        return r
    E = 16
    for a in range(2):
        for nt in range(3):
            g = ACC1 + 16*(3*a+nt); u = g + 8
            o = 32 + 4*((3*a+nt) % 4)
            ti = 3*a+nt
            lim = 26 if ti == 0 else 30
            cnt = -(-(30 - na[0]) // max(1, OPT["ald"][1] - ti))
            ins = []
            while cnt > 0 and na[0] < lim:
                ins.append(aload(na[0])); na[0] += 1; cnt -= 1
            mark = len(A.lines)
            if 3*a+nt < OPT['epk']:
                for i in range(4): A(f"v_pk_mul_f32 {P2(E+2*i)}, {P2(g+2*i)}, s[54:55]")
                for i in range(8): A(f"v_exp_f32 v{E+i}, v{E+i}")
                for i in range(4): A(f"v_pk_add_f32 {P2(E+2*i)}, {P2(E+2*i)}, 1.0 op_sel_hi:[1,0]")
                for i in range(8): A(f"v_rcp_f32 v{E+i}, v{E+i}")
                for i in range(4): A(f"v_pk_mul_f32 {P2(g+2*i)}, {P2(g+2*i)}, {P2(u+2*i)}")
                for i in range(4): A(f"v_pk_mul_f32 {P2(g+2*i)}, {P2(g+2*i)}, {P2(E+2*i)}")
            else:
                for i in range(8): A(f"v_mul_f32 v{E+i}, s54, v{g+i}")
                for i in range(8): A(f"v_exp_f32 v{E+i}, v{E+i}")
                for i in range(8): A(f"v_add_f32 v{E+i}, 1.0, v{E+i}")
                for i in range(8): A(f"v_rcp_f32 v{E+i}, v{E+i}")
                for i in range(8): A(f"v_mul_f32 v{g+i}, v{g+i}, v{u+i}")
                for i in range(8): A(f"v_mul_f32 v{g+i}, v{g+i}, v{E+i}")
            if ins:
                body = A.lines[mark:]; del A.lines[mark:]
                step = max(1, len(body) // len(ins))
                for n, l in enumerate(body):
                    if n % step == 0 and ins:
                        for x in ins.pop(0): A(x)
                    A.lines.append(l)
                assert not ins
            for i in range(4): A(f"v_cvt_pk_bf16_f32 v{o+i}, v{g+2*i}, v{g+2*i+1}")
            A(f"buffer_store_dwordx4 v[{o}:{o+3}], v{9 if a else 10}, s[20:23], s{48+nt} offen sc1")
            if 3*a+nt == OPT["epk"] - 1: A("s_barrier")
    if OPT["mprio"]: A("s_setprio 0")
    stamp(A, 4)
    if OPT["wgo"] == 1:
        A("s_lshl_b32 s10, s3, 2"); A(f"s_add_u32 s10, s10, {FLG+4}"); A("v_mov_b32 v12, s10"); A("v_mov_b32 v13, 0"); A("ds_write_b32 v12, v13")
    tag_get(A, 14, issued=True)
    A(f"v_mov_b32 v14, s{TAG}"); A("v_lshl_add_u32 v15, v0, 2, s46"); A("v_writelane_b32 v15, s47, 2")
    A("s_mov_b64 exec, 7"); A("s_waitcnt vmcnt(0)")
    A("buffer_store_dword v14, v15, s[20:23], s51 offen sc1"); A("s_mov_b64 exec, -1")
    if OPT["wgo"] == 2:
        A("s_lshl_b32 s10, s3, 2"); A(f"s_add_u32 s10, s10, {FLG+4}"); A("v_mov_b32 v12, s10"); A("v_mov_b32 v13, 0"); A("ds_write_b32 v12, v13")
    while na[0] < 30:
        for x in aload(na[0]): A(x)
        na[0] += 1
    stamp(A, 5)
    A("v_and_b32 v4, 15, v0"); A("v_lshrrev_b32 v3, 4, v0")
    A(f"v_mul_u32_u24 v2, {PB}, v4"); A("v_lshl_add_u32 v2, v3, 3, v2")
    A("s_mul_i32 s26, s3, 10240"); A("v_add_u32 v2, s26, v2")
    spoll(A, "s52", OPT["psleep"])
    stamp(A, 7)
    ACC = 80; HR = 8
    def hload(k, i):
        b = HR + 16*(k % 3)
        r = [f"buffer_load_dwordx4 v[{b+4*i}:{b+4*i+3}], v1, s[20:23], s53 offen offset:{1024*i} sc1"]
        if i == 3: r.append("s_add_u32 s53, s53, 4096")
        return r
    for k in range(3):
        for i in range(4):
            for x in hload(k, i): A(x)
    for k in range(12):
        b = HR + 16*(k % 3); j = k + 2
        ar = areads(j) if 6 <= j < 12 else []
        wchk = bool(ar) and j % 2 == 0
        for mt in range(4):
            out = 11 if k + 3 < 12 else 4*(12-k) - mt - 1
            w = f"s_waitcnt vmcnt({out})"
            if mt == 0: w += " lgkmcnt(0)" if k in (0, 11) else " lgkmcnt(5)" if k >= 6 else ""
            A(w)
            if mt == 0 and k in (0, 6): stamp(A, 8 + k//6)
            for dt in range(5):
                c = ACC + 4*(4*dt+mt); af = AF[5*(k % 6) + dt]
                src = "0" if k == 0 else f"v[{c}:{c+3}]"
                A(f"v_mfma_f32_16x16x32_bf16 v[{c}:{c+3}], v[{af}:{af+3}], v[{b+4*mt}:{b+4*mt+3}], {src}")
                if wchk and mt == 0 and dt == 0: A(f"ds_read_b32 v3, v7 offset:{4*(5-j//2)}")
                if wchk and mt == 1 and dt == 3:
                    sl = A.newlabel("g2s"); bk = A.newlabel("g2b"); slows.append((sl, bk, 3, 4*(5-j//2)))
                    A("s_waitcnt lgkmcnt(0)"); A("v_cmp_ne_u32 vcc, 0, v3"); A(f"s_cbranch_vccnz {sl}"); A.label(bk)
                if ar and mt == 2: A(ar[dt])
            if k + 3 < 12:
                for x in hload(k+3, mt): A(x)
    A.tail_code = slows
    stamp(A, 10)
    A("s_nop 1")
    for mt in range(4):
        for dt in range(5):
            c = ACC + 4*(4*dt+mt); o = 8 + 2*((5*mt+dt) % 16)
            A(f"v_cvt_pk_bf16_f32 v{o}, v{c}, v{c+1}"); A(f"v_cvt_pk_bf16_f32 v{o+1}, v{c+2}, v{c+3}")
            if 5*mt+dt >= 1: A(pw)
            pw = f"ds_write_b64 v2, v[{o}:{o+1}] offset:{(mt >> 1)*STG + 16*(mt & 1)*PB + 32*dt}"
    A(pw)

def post(A):
    A(f"s_mov_b32 s16, s{OUT}"); A(f"s_mov_b32 s17, s{OUT+1}")
    A("s_mov_b32 s18, 2621440"); A("s_mov_b32 s19, 0x20000")
    A("s_mul_i32 s24, s6, 81920"); A("s_mul_i32 s25, s7, 160"); A("s_add_u32 s24, s24, s25")
    A("s_lshl_b32 s27, s3, 6")
    def addr(b):
        A(f"v_add_u32 v{b}, s27, v0")
        A(f"v_mul_u32_u24 v{b+1}, 6554, v{b}"); A(f"v_lshrrev_b32 v{b+1}, 16, v{b+1}")
        A(f"v_mul_u32_u24 v{b+2}, 10, v{b+1}"); A(f"v_sub_u32 v{b+2}, v{b}, v{b+2}")
        A(f"v_mul_u32_u24 v{b+3}, 1280, v{b+1}"); A(f"v_lshl_add_u32 v{b+3}, v{b+2}, 4, v{b+3}")
        A(f"v_mul_u32_u24 v{b+4}, {PB}, v{b+1}"); A(f"v_lshl_add_u32 v{b+4}, v{b+2}, 4, v{b+4}")
        A(f"v_lshrrev_b32 v{b+5}, 5, v{b+1}"); A(f"v_mul_u32_u24 v{b+5}, {STG - 32*PB}, v{b+5}"); A(f"v_add_u32 v{b+4}, v{b+4}, v{b+5}")
        A(f"v_mul_u32_u24 v{b+5}, 86, v{b+2}"); A(f"v_lshrrev_b32 v{b+5}, 8, v{b+5}")
        A(f"v_mul_u32_u24 v{b+6}, {HS+48}, v{b+2}"); A(f"v_mul_u32_u24 v{b+5}, {3*(HS+48) - A2S}, v{b+5}")
        A(f"v_sub_u32 v{b+6}, v{b+6}, v{b+5}"); A(f"v_lshl_add_u32 v{b+6}, v{b+1}, 4, v{b+6}"); A(f"v_add_u32 v{b+6}, {HB + A2O}, v{b+6}")
        A(f"v_lshlrev_b32 v{b+7}, 4, v{b+1}"); A(f"v_add_u32 v{b+7}, {HB + OMG}, v{b+7}")
    def rds(b, d):
        A(f"ds_read_b128 v[{d+20}:{d+23}], v{b+7}")
        for w in range(4): A(f"ds_read_b128 v[{d+4*w}:{d+4*w+3}], v{b+4} offset:{w*10240}")
        A(f"ds_read_b128 v[{d+16}:{d+19}], v{b+6}")
    def calc(b, d, t, rest):
        for w in range(5):
            A(f"s_waitcnt lgkmcnt({rest + 4 - w})")
            c = d + 20 + (2 if w == 4 else 0)
            for k in range(4):
                A(f"v_dot2c_f32_bf16 v{t+2*k}, v{d+4*w+k}, v{c}"); A(f"v_dot2c_f32_bf16 v{t+2*k+1}, v{d+4*w+k}, v{c+1}")
        A("s_nop 0")
        for k in range(4): A(f"v_cvt_pk_bf16_f32 v{d+k}, v{t+2*k}, v{t+2*k+1}")
        A(f"buffer_store_dwordx4 v[{d}:{d+3}], v{b+3}, s[16:19], s24 offen")
    addr(40)
    for i in range(4): A(f"v_pk_mov_b32 {P2(160+2*i)}, 0, 0")
    one = A.newlabel("po"); dn = A.newlabel("po"); o2 = A.newlabel("po")
    A("s_and_b32 s28, s3, 6"); A("s_cmp_lg_u32 s28, 4"); A(f"s_cbranch_scc1 {one}")
    A("s_add_u32 s27, s27, 256"); A("s_setprio 3")
    addr(48)
    for i in range(4): A(f"v_pk_mov_b32 {P2(168+2*i)}, 0, 0")
    A.label(one)
    A("s_waitcnt lgkmcnt(0)")
    A("s_barrier")
    stamp(A, 11)
    A("s_cmp_lg_u32 s28, 4"); A(f"s_cbranch_scc1 {o2}")
    rds(48, 232)
    A.label(o2)
    rds(40, 208)
    calc(40, 208, 160, 0)
    A("s_cmp_lg_u32 s28, 4"); A(f"s_cbranch_scc1 {dn}")
    calc(48, 232, 168, 0)
    A.label(dn)

def pcmul(A, d, s, m):
    A(f"v_pk_mul_f32 {P2(d)}, {P2(s)}, {P2(m)} op_sel:[0,0] op_sel_hi:[1,0]")
    A(f"v_pk_fma_f32 {P2(d)}, {P2(s)}, {P2(m)}, {P2(d)} op_sel:[1,1,0] op_sel_hi:[0,1,1] neg_lo:[0,1,0]")

def kpass(A):
    RAW = 246; FA = 16; ACC = 20
    A(f"s_mul_i32 s28, s{CH}, 384"); A("s_lshl_b32 s29, s17, 7"); A("s_add_u32 s28, s28, s29")
    A("v_lshl_add_u32 v1, v0, 1, s28")
    A(f"s_lshl_b32 s28, s{CH}, 1"); A("s_and_b32 s28, s28, -4")
    if OPT["hdiag"] == 4: _stamp0(A, 2)
    A("s_cmp_lt_u32 s14, 2")
    A("s_waitcnt lgkmcnt(0)")
    for a in range(4): A(f"global_load_ushort v{RAW+a}, v1, s[{LOGA+2*a}:{LOGA+2*a+1}]")
    A("s_cbranch_scc1 k_one")
    for a in range(4): A(f"global_load_ushort v{RAW+4+a}, v1, s[{LOGA+2*a}:{LOGA+2*a+1}] offset:128")
    A.label("k_one")
    A(f"s_load_dword s30, s[{LOGDT}:{LOGDT+1}], s28"); A(f"s_load_dword s31, s[{DSK}:{DSK+1}], s28")
    A("s_barrier")
    nt0 = A.newlabel("mk")
    A("s_lshl_b32 s24, s2, 3"); A("s_add_u32 s24, s24, s3"); A("s_cmp_lg_u32 s24, 71"); A(f"s_cbranch_scc1 {nt0}")
    A(f"s_add_u32 s24, s20, {LAST_OFF}"); A("s_addc_u32 s25, s21, 0")
    A("s_load_dword s28, s[24:25], 0")
    A("v_mov_b32 v16, 0")
    A("s_waitcnt lgkmcnt(0)")
    A("s_add_u32 s28, s28, 1"); A("s_max_u32 s28, s28, 1")
    A("v_mov_b32 v17, s28")
    A("s_mov_b64 exec, 1")
    A(f"global_store_dword v16, v17, s[{DBG}:{DBG+1}] sc1")
    A("global_store_dword v16, v17, s[24:25] sc1")
    A("s_mov_b64 exec, -1")
    A.label(nt0)
    tiles(A)
    A("s_bfe_u32 s9, s10, 0x20002")
    A(f"s_mul_i32 s{REG}, s{LCH}, {HS}"); A(f"s_add_u32 s{REG}, s{REG}, {HB}")
    A(f"s_mul_i32 s19, s9, {SS}"); A(f"s_add_u32 s19, s19, s{REG}"); A("s_mov_b32 m0, s19")
    A("v_and_b32 v17, 15, v0"); A("v_lshrrev_b32 v18, 4, v0"); A("v_mov_b32 v10, 0"); A("v_mov_b32 v9, 0"); A("v_mov_b32 v7, 0"); A("v_mov_b32 v170, 0")
    A("s_mov_b32 s24, 0x%x" % LOG2E); A("s_mov_b32 s25, 0x%x" % LOG2E_LO); A("s_mov_b32 s26, 0x%x" % LN2)
    A("s_mov_b32 s27, 0x41000000"); A("s_mov_b32 s28, 0x43000000")
    A("v_add_u32 v37, 4, v17"); A(f"v_and_b32 v{FA}, 7, v37"); A(f"v_mul_u32_u24 v{FA}, 544, v{FA}"); A("v_and_b32 v37, 8, v37")
    A(f"v_lshl_add_u32 v{FA}, v37, 5, v{FA}"); A(f"v_lshl_add_u32 v{FA}, v18, 4, v{FA}"); A(f"v_add_u32 v{FA}, s19, v{FA}")
    rowo = lambda i: 544*((i+4) & 7) + 32*((i+4) & 8)
    for i in range(6): A(f"v_pk_mov_b32 {P2(ACC+2*i)}, 0, 0")
    DT, DT2, NDT, ONE = 32, 34, 33, 36
    A(f"v_mov_b32 v{ONE}, 0x3f80")
    A("v_lshlrev_b32 v1, 4, v0")
    A("s_cmp_ge_u32 s3, 4"); A("s_cbranch_scc1 k_nosetup")
    msetup(A)
    A.label("k_nosetup")
    if OPT["hdiag"] == 4: A("s_memtime s[70:71]")
    A("s_waitcnt lgkmcnt(0)")
    if OPT["hdiag"] == 4: _stamp0(A, 4)
    A(f"s_bitcmp1_b32 s{CH}, 0")
    A("s_cselect_b32 s29, 0, 16")
    A("s_lshl_b32 s30, s30, s29"); A("s_and_b32 s30, s30, 0xffff0000")
    A("s_lshl_b32 s31, s31, s29"); A("s_and_b32 s31, s31, 0xffff0000")
    A("s_cmp_eq_u32 s17, 0"); A("s_cselect_b32 s31, s31, 0")
    A("v_mov_b32 v37, s30")
    A(f"v_writelane_b32 v{ACC}, s31, 0")
    A("v_mul_f32 v38, s24, v37"); A("v_fma_f32 v39, v37, s24, -v38"); A("v_fmac_f32 v39, s25, v37")
    A("v_exp_f32 v38, v38"); A("v_mul_f32 v39, s26, v39"); A("v_fmac_f32 v38, v38, v39")
    A("v_cvt_pk_bf16_f32 v38, v38, v38")
    A(f"v_lshlrev_b32 v{DT}, 16, v38")
    A(f"v_add_f32 v{DT2}, v{DT}, v{DT}"); A(f"v_sub_f32 v{NDT}, 0, v{DT}")
    if OPT["hdiag"] == 4:
        _stamp0(A, 5)
        for n in (3, 2, 1): A(f"s_waitcnt vmcnt({n})"); _stamp0(A, 9 - n)
    A("s_waitcnt vmcnt(0)")
    stamp(A, 1)
    A.label("k_loop")
    A1 = 38; TH = 39
    Z, W, Y = 40, 42, 44
    P = 48; T = 240; QA, QB = 242, 244; PK = 64; B2 = 120
    QF, PF = 176, 192
    A(f"v_lshlrev_b32 v{T}, 16, v{RAW}"); A(f"v_mul_f32 v{T}, s24, v{T}")
    A(f"v_lshlrev_b32 v{TH}, 16, v{RAW+1}")
    A(f"v_exp_f32 v{T}, v{T}")
    A(f"v_lshlrev_b32 v{P}, 16, v{RAW+2}"); A(f"v_lshlrev_b32 v{P+1}, 16, v{RAW+3}")
    A(f"v_cvt_pk_bf16_f32 v{T}, v{T}, v{T}")
    A(f"v_mul_f32 v{TH}, v{TH}, v{DT}")
    A(f"v_lshlrev_b32 v{T}, 16, v{T}")
    A(f"v_mul_f32 v{TH}, 0.15915494, v{TH}")
    A(f"v_mul_f32 v{A1}, v{T}, v{NDT}")
    A(f"v_pk_mul_f32 {P2(P)}, {P2(P)}, {P2(DT2)} op_sel_hi:[1,0]")
    A(f"v_mul_f32 v{A1}, s24, v{A1}")
    A(f"v_pk_mov_b32 {P2(RAW)}, {P2(RAW+4)}, {P2(RAW+4)} op_sel:[0,1]"); A(f"v_pk_mov_b32 {P2(RAW+2)}, {P2(RAW+6)}, {P2(RAW+6)} op_sel:[0,1]")
    for (R, sc) in ((W, "s27"), (Z, None), (Y, "s28")):
        if sc:
            A(f"v_mul_f32 v{T}, {sc}, v{A1}"); A(f"v_mul_f32 v{T+1}, {sc}, v{TH}")
            A(f"v_exp_f32 v{T}, v{T}"); A(f"v_fract_f32 v{T+1}, v{T+1}")
        else:
            A(f"v_exp_f32 v{T}, v{A1}"); A(f"v_fract_f32 v{T+1}, v{TH}")
        A(f"v_cos_f32 v{R}, v{T+1}"); A(f"v_sin_f32 v{R+1}, v{T+1}")
        A("s_nop 0")
        A(f"v_pk_mul_f32 {P2(R)}, {P2(R)}, {P2(T)} op_sel_hi:[1,0]" + (" neg_hi:[1,0]" if R == W else ""))
    pkc = [0]; wph = [f"ds_write_addtid_b32 v{ONE} offset:{rowo(0)}"]
    def emit(row, r):
        k = PK + pkc[0]; pkc[0] += 1
        A(f"v_cvt_pk_bf16_f32 v{k}, v{r}, v{r+1}")
        wph.append(f"ds_write_addtid_b32 v{k} offset:{rowo(row)}")
    def rd(base):
        for t in range(4): wph.append(f"ds_read_b128 v[{base+4*t}:{base+4*t+3}], v{FA} offset:{64*t}")
    def mm(acc, base, n):
        A(f"s_waitcnt lgkmcnt({n})")
        for t in range(4):
            A(f"v_mfma_f32_16x16x32_bf16 v[{acc}:{acc+3}], v[{base+4*t}:{base+4*t+3}], v[{QF+4*t}:{QF+4*t+3}], v[{acc}:{acc+3}]")
    qs = W
    for j in range(2, 17):
        dst = QA if j % 2 == 0 else QB
        if j < 16: pcmul(A, dst, qs, W)
        emit(j-1, qs)
        b = j - 1
        if b <= 7: pcmul(A, P+2*b, P+2*b-2, Z)
        qs = dst
    rd(QF)
    loc = {}
    for b in range(0, 8, 2):
        emit(b, P+2*b); emit(b+1, P+2*b+2)
        pcmul(A, T, P+2*b+2, Y); pcmul(A, P+2*b+2, P+2*b, Y)
        emit(8+b+1, T); emit(8+b, P+2*b+2)
        loc[b] = P+2*b+2
    rd(PF)
    def step(b, row):
        s = loc[b]; d = P+2*b if s == P+2*b+2 else P+2*b+2
        pcmul(A, d, s, Y); loc[b] = d
        return (row, d)
    for a in range(2):
        es = [step(b, 4*a + b//2) for b in (0, 2, 4, 6)]
        for e in es: emit(*e)
    for a in range(4):
        es = [step(b, 8 + 2*a + b//4) for b in (0, 4)]
        for e in es: emit(*e)
    rd(PF+16)
    e = step(0, 0)
    for a in range(1, 10):
        n = step(0, a) if a < 9 else None
        emit(*e); e = n
    rd(PF+32)
    assert pkc[0] == 56
    A("s_cmp_lg_u32 s14, 2"); A("s_cbranch_scc1 k_v1")
    for i in range(28): A(f"v_pk_mov_b32 {P2(B2+2*i)}, {P2(PK+2*i)}, {P2(PK+2*i)} op_sel:[0,1]")
    A("s_mov_b32 s14, 3"); A("s_branch k_loop")
    A.label("k_v1")
    stamp(A, 6)
    stamp(A, 10)
    if OPT["defer"]:
        A("s_lshl_b32 s24, s17, 2"); A("s_add_u32 s24, s24, s14"); A("s_cmp_eq_u32 s24, 1"); A("s_cbranch_scc1 k_h")
    A.label("k_w")
    n0 = wph.index([x for x in wph if f"v[{PF+16}:" in x][0])
    for x in wph[:n0]: A(x)
    mm(ACC, PF, 14)
    for x in wph[n0:]: A(x)
    mm(ACC+4, PF+16, 13); mm(ACC+8, PF+32, 0)
    A("s_cmp_lg_u32 s14, 3"); A("s_cbranch_scc1 k_w1")
    for i in range(28): A(f"v_pk_mov_b32 {P2(PK+2*i)}, {P2(B2+2*i)}, {P2(B2+2*i)} op_sel:[0,1]")
    A("s_mov_b32 s14, 0"); A("s_branch k_h" if OPT["defer"] == 2 else "s_branch k_w")
    A.label("k_w1")
    if OPT["defer"]: A("s_cmp_eq_u32 s14, 4"); A("s_cbranch_scc1 k_hret")
    A("s_cmp_ge_u32 s3, 4"); A("s_cbranch_scc1 k_h")

def kaddr(A):
    sL = REG
    A(f"v_add_u32 v39, s{sL}, v1")
    EB = C0
    A("v_lshlrev_b32 v40, 4, v17"); A(f"v_add_u32 v40, s{sL}, v40")
    A("v_lshl_add_u32 v41, v18, 10, v40"); A(f"v_add_u32 v41, {EB + 2048 - 8}, v41")
    A("v_and_b32 v42, 1, v0"); A("v_lshlrev_b32 v42, 3, v42"); A("v_sub_u32 v42, v41, v42")
    A("v_lshl_add_u32 v43, v18, 9, v40"); A("v_lshl_add_u32 v44, v18, 8, v40")
    A("v_lshrrev_b32 v45, 1, v18"); A("v_lshl_add_u32 v45, v45, 8, v40")
    A("v_and_b32 v46, 1, v18"); A("v_lshl_add_u32 v45, v46, 3, v45")
    A("v_mov_b32 v34, 0"); A("v_mov_b32 v35, 0")
    A("v_and_b32 v46, 7, v0"); A("v_lshlrev_b32 v46, 2, v46"); A(f"v_add_u32 v46, s{sL}, v46")
    A("v_lshlrev_b32 v47, 3, v0"); A(f"v_add_u32 v47, s{sL}, v47")

KC = {xy: 56+n for n, xy in enumerate([(0,0),(0,1),(1,1),(2,2),(2,3),(3,3),(1,2)])}
def kexp0(A):
    K0, K1, K2 = 20, 24, 28
    for r in range(4):
        A(f"v_cvt_pk_bf16_f32 v{48+2*r}, v{K2+r}, v{K2+r}"); A(f"v_mov_b32 v{49+2*r}, v{48+2*r}")
    for (x, y), r in KC.items(): A(f"v_cvt_pk_bf16_f32 v{r}, v{K1+x}, v{K1+y}")
    A(f"v_cvt_pk_bf16_f32 v64, v{K0}, v{K0+1}"); A(f"v_cvt_pk_bf16_f32 v65, v{K0+2}, v{K0+3}")
def kexp1(A):
    EB = C0; c = KC
    for r in range(4): A(f"ds_write2_b64 v41, v[{48+2*r}:{49+2*r}], v[{48+2*r}:{49+2*r}] offset0:{32*r} offset1:{32*r+1}")
    for r in range(4): A(f"ds_write_b16 v42, v{48+2*r} offset:{256*r+16}")
    A("s_mov_b32 exec_lo, 0")
    o = (EB - 4) // 4
    A(f"ds_write2_b32 v43, v{c[0,0]}, v{c[0,0]} offset0:{o} offset1:{o+1}")
    A(f"ds_write2_b32 v43, v{c[0,1]}, v{c[1,1]} offset0:{o+2} offset1:{o+3}")
    A(f"ds_write2_b32 v43, v{c[2,2]}, v{c[2,2]} offset0:{o+64} offset1:{o+65}")
    A(f"ds_write2_b32 v43, v{c[2,3]}, v{c[3,3]} offset0:{o+66} offset1:{o+67}")
    A("s_mov_b32 exec_lo, -1"); A("s_mov_b32 exec_hi, 0")
    o = EB + 512
    A(f"ds_write_b16 v44, v{c[0,0]} offset:{o-2}")
    A(f"ds_write2_b32 v44, v{c[0,0]}, v{c[1,2]} offset0:{o//4} offset1:{o//4+1}")
    A(f"ds_write_b32 v44, v{c[2,2]} offset:{o+8}")
    A(f"ds_write_b16 v44, v{c[3,3]} offset:{o+12}")
    A("s_mov_b64 exec, -1")
    A(f"ds_write_b64 v45, v[64:65] offset:{EB}")
    A(f"ds_write_b32 v46, v34 offset:{C0-32}"); A(f"ds_write_b32 v46, v34 offset:{C1-32}")
    A(f"ds_write_b64 v47, v[34:35] offset:{CU+4096}")
    for i in range(4):
        A(f"ds_read_b128 v[{80+8*i}:{83+8*i}], v39 offset:{EB+1024*i}")
        A(f"ds_read_b32 v{72+i}, v39 offset:{EB+1024*i-4}")
def kexp2(A):
    A("s_waitcnt lgkmcnt(0)")
    for i in range(4):
        b = 80+8*i
        A(f"v_alignbit_b32 v{b+4}, v{b}, v{72+i}, 16")
        for k in range(1, 4): A(f"v_alignbit_b32 v{b+4+k}, v{b+k}, v{b+k-1}, 16")
        A(f"ds_write_b128 v39, v[{b+4}:{b+7}] offset:{C1+1024*i}")

def caddr(A):
    sL = REG
    A("v_lshlrev_b32 v2, 4, v18"); A("v_lshlrev_b32 v6, 5, v17"); A("v_sub_u32 v2, v2, v6")
    A(f"v_add_u32 v2, {CU + 4064 - 3584}, v2"); A(f"v_add_u32 v2, s{sL}, v2")
    A("v_sub_u32 v6, 15, v17"); A("v_and_b32 v7, 1, v6"); A("v_sub_u32 v6, v6, v7")
    A(f"v_mul_u32_u24 v3, {C1-C0}, v7"); A("v_lshl_add_u32 v3, v18, 4, v3")
    A("v_lshlrev_b32 v6, 1, v6"); A("v_sub_u32 v3, v3, v6")
    A(f"v_add_u32 v3, {C0}, v3"); A(f"v_add_u32 v3, s{sL}, v3")
    for i in range(1, 4): A(f"v_add_u32 v{3+i}, {1024*i}, v3")
    A("v_lshlrev_b32 v7, 5, v17"); A("v_lshrrev_b32 v8, 1, v18"); A("v_lshl_add_u32 v7, v8, 4, v7")
    A("v_and_b32 v8, 1, v18"); A("v_lshl_add_u32 v7, v8, 9, v7")

def conv(A):
    Y = 172
    TB = [40, 104]
    def reads(f, extra):
        b = TB[f]; r = []
        for q in range(8):
            r.append(f"ds_read_b128 v[{b+32+4*q}:{b+35+4*q}], v2 offset:{512*(7-q) + extra}")
            o = (512*(q & 1) + extra) // 4
            r.append(f"ds_read2_b32 v[{b+4*q}:{b+4*q+1}], v{3+q//2} offset0:{o} offset1:{o+1}")
            r.append(f"ds_read2_b32 v[{b+4*q+2}:{b+4*q+3}], v{3+q//2} offset0:{o+2} offset1:{o+3}")
        return r
    def mfmas(f):
        b = TB[f]; r = []
        for q in range(8):
            for tau in range(8-q):
                t = q + tau
                r.append(f"v_mfma_f32_16x16x32_bf16 v[{Y+4*t}:{Y+4*t+3}], v[{b+4*q}:{b+4*q+3}], v[{b+32+4*tau}:{b+35+4*tau}], v[{Y+4*t}:{Y+4*t+3}]")
        return r
    def inter(ms, rs):
        for i, m in enumerate(ms):
            A(m)
            if i < len(rs): A(rs[i])
    A("s_waitcnt vmcnt(0)")
    for x in reads(0, 0): A(x)
    stamp(A, 9)
    A("s_barrier")
    stamp(A, 4)
    if OPT["cprio"]: A(f"s_setprio {OPT['cprio']}")
    A("s_mov_b32 s28, 0")
    lp = A.newlabel("cv")
    A.label(lp)
    A("s_waitcnt lgkmcnt(0)")
    inter(mfmas(0), reads(1, 64) + ["s_add_u32 s28, s28, 1"])
    A("s_waitcnt lgkmcnt(0)")
    inter(mfmas(1), reads(0, 128) + [f"v_add_u32 v{r}, 128, v{r}" for r in range(2, 7)] + ["s_cmp_lt_u32 s28, 4"])
    A(f"s_cbranch_scc1 {lp}")
    stamp(A, 5)
    A(f"s_add_u32 s30, s31, {YT_OFF}")
    A(f"s_lshr_b32 s28, s{CH}, 3"); A("s_lshl_b32 s28, s28, 8"); A(f"s_and_b32 s29, s{CH}, 7"); A("s_lshl_b32 s29, s29, 2")
    A("s_add_u32 s28, s28, s29"); A(f"s_add_u32 s28, s28, {YF_OFF}")
    O = 104
    for t in range(8):
        A(f"v_cvt_pk_bf16_f32 v{O+2*t}, v{Y+4*t}, v{Y+4*t+1}"); A(f"v_cvt_pk_bf16_f32 v{O+2*t+1}, v{Y+4*t+2}, v{Y+4*t+3}")
    A("s_nop 1")
    for p in range(4):
        A(f"v_permlane16_swap_b32 v{O+4*p}, v{O+4*p+2}"); A(f"v_permlane16_swap_b32 v{O+4*p+1}, v{O+4*p+3}")
    A("s_nop 1")
    for p in range(4): A(f"buffer_store_dwordx4 v[{O+4*p}:{O+4*p+3}], v7, s[20:23], s30 offen offset:{1024*p} sc1")
    A("s_setprio 0")
    flag_store(A, "s28", 2, 8, 80*256)
    A(f"v_mov_b32 v4, {FLG}"); A("v_mov_b32 v5, 0"); A("ds_write_b32 v4, v5")
    stamp(A, 6)

def hbar(A, i):
    if OPT["hdiag"] == 2: _stamp0(A, i + 2)
    A("s_barrier")
    if OPT["hdiag"] == 1: _stamp0(A, i + 2)

def hwave(A):
    ACC = 20; sL = REG
    def when(cmp, neg=False):
        l = A.newlabel("if"); A(cmp); A(f"s_cbranch_scc{1 if neg else 0} {l}"); return l
    stamp(A, 2)
    xtask(A, 8, 9)
    A(f"s_cmp_eq_u32 s{LCH}, 0"); A("s_cselect_b32 s8, s2, s8"); A("s_cmp_ge_u32 s2, 240"); A("s_cselect_b32 s8, 999, s8")
    A(f"s_cmp_eq_u32 s{LCH}, 1"); A("s_cselect_b32 s8, 999, s8"); A("s_cselect_b32 s9, s2, 999")
    A(f"v_add_u32 v39, s{sL}, v1")
    A("s_mul_i32 s19, s18, 3072"); A(f"s_add_u32 s19, s19, {KP_OFF}")
    A("s_lshl_b32 s18, s18, 7"); A(f"s_add_u32 s18, s18, {KF_OFF}")
    l = when("s_cmp_eq_u32 s16, 0")
    for i in range(3): A(f"buffer_store_dwordx4 v[{ACC+4*i}:{ACC+4*i+3}], v1, s[20:23], s19 offen offset:{1024*i} sc1")
    A.label(l)
    A("s_barrier")
    A("v_lshlrev_b32 v33, 2, v0"); A(f"v_add_u32 v33, {GL}, v33"); A("ds_read_b32 v32, v33")
    for i in range(3): A(f"ds_read_b128 v[{120+4*i}:{123+4*i}], v39 offset:{SS + 1024*i}")
    for i in range(3): A(f"ds_read_b128 v[{132+4*i}:{135+4*i}], v39 offset:{2*SS + 1024*i}")
    A("s_waitcnt lgkmcnt(0)")
    l = when("s_cmp_ge_u32 s16, 1")
    for i in range(12): A(f"v_add_f32 v{ACC+i}, v{ACC+i}, v{120+i}")
    A.label(l)
    l = when("s_cmp_ge_u32 s16, 2")
    for i in range(12): A(f"v_add_f32 v{ACC+i}, v{ACC+i}, v{132+i}")
    A.label(l)
    hbar(A, 0)
    stamp(A, 12)
    def flags():
        l = when("s_cmp_lt_u32 s8, 320")
        A("s_lshr_b32 s26, s8, 5"); A("s_lshl_b32 s26, s26, 8"); A("s_and_b32 s27, s8, 31"); A("s_lshl_b32 s27, s27, 2")
        A("s_add_u32 s26, s26, s27"); A(f"s_add_u32 s26, s26, {UF_OFF}")
        flag_store(A, "s26", 146)
        A.label(l)
        l = when("s_cmp_eq_u32 s16, 0")
        flag_store(A, "s18", 146, wait=False)
        A.label(l)
        l = when("s_cmp_lt_u32 s9, 240")
        A("s_mul_i32 s26, s9, 2731"); A("s_lshr_b32 s26, s26, 16"); A("s_mul_i32 s26, s26, 160"); A("s_lshl_b32 s27, s9, 2")
        A("s_add_u32 s26, s26, s27"); A(f"s_add_u32 s26, s26, {WF_OFF}")
        flag_store(A, "s26", 146)
        A.label(l)
    tag_get(A, 40)
    A("s_waitcnt vmcnt(0)")
    flags()
    l = when(f"s_cmp_eq_u32 s{LCH}, 2")
    A("s_mov_b32 s13, 0x%x" % NLOG2E)
    for m in ("quad_perm:[1,0,3,2]", "quad_perm:[2,3,0,1]", "row_half_mirror"):
        A("s_nop 1"); A(f"v_add_f32_dpp v32, v32, v32 {m} row_mask:0xf bank_mask:0xf")
    A("v_mul_f32 v32, s13, v32"); A("v_exp_f32 v32, v32"); A(f"v_mov_b32 v33, s{TAG}")
    A("v_add_f32 v32, 1.0, v32"); A("v_rcp_f32 v32, v32")
    A("s_lshl_b32 s15, s2, 6"); A(f"s_add_u32 s15, s15, {GG_OFF}")
    A("s_mov_b32 exec_lo, 0x01010101"); A("s_mov_b32 exec_hi, 0x01010101")
    A("buffer_store_dwordx2 v[32:33], v0, s[20:23], s15 offen sc1")
    A("s_mov_b64 exec, -1")
    A.label(l)
    hbar(A, 1)
    caddr(A)
    A("v_and_b32 v144, 31, v0"); A("v_lshlrev_b32 v144, 2, v144")
    A(f"s_lshr_b32 s29, s{CH}, 6"); A("s_lshl_b32 s29, s29, 8"); A(f"s_add_u32 s29, s29, {UF_OFF}")
    A(f"s_lshl_b32 s31, s{CH}, 12"); A(f"s_add_u32 s30, s31, {UR_OFF}")
    A(f"s_add_u32 m0, s{sL}, {CU}")
    hbar(A, 2)
    kaddr(A)
    hbar(A, 3)
    if not OPT["defer"]:
        for i in range(32): A(f"v_mov_b32 v{172+i}, 0")
    hbar(A, 4)
    def check(va, so, vd):
        ok = A.newlabel("ok")
        A(f"v_cmp_ne_u32 vcc, s{TAG}, v{vd}"); A(f"s_cbranch_vccz {ok}")
        poll(A, va, so, vd)
        A.label(ok)
    A("v_mov_b32 v150, 0")
    hbar(A, 5)
    l = when(f"s_cmp_eq_u32 s{LCH}, 0")
    A("v_min_u32 v150, 47, v0"); A("v_cmp_lt_u32 vcc, 23, v150"); A("v_lshlrev_b32 v150, 2, v150"); A("v_add_u32 v151, 160, v150")
    A("v_cndmask_b32 v150, v150, v151, vcc")
    A("s_mul_i32 s26, s7, 5"); A("s_lshr_b32 s26, s26, 2"); A("s_lshl_b32 s26, s26, 8"); A(f"s_add_u32 s26, s26, {WF_OFF}")
    A("buffer_load_dword v151, v150, s[20:23], s26 offen sc1")
    A("s_waitcnt vmcnt(0)")
    check(150, "s26", 151)
    A.label(l)
    hbar(A, 6)
    A("buffer_load_dword v145, v144, s[20:23], s29 offen sc1")
    A("v_mov_b32 v146, 0")
    l = when(f"s_cmp_eq_u32 s{RMT}, 1")
    A("buffer_load_dword v147, v146, s[20:23], s18 offen sc1")
    A.label(l)
    A("s_waitcnt vmcnt(0)")
    l = when("s_cmp_eq_u32 s17, 0")
    check(144, "s29", 145)
    for i in range(4): A(f"buffer_load_dwordx4 v1, s[20:23], s30 offen offset:{1024*i} sc1 lds")
    A.label(l)
    l = when(f"s_cmp_eq_u32 s{RMT}, 1")
    check(146, "s18", 147)
    for i in range(3): A(f"buffer_load_dwordx4 v[{120+4*i}:{123+4*i}], v1, s[20:23], s19 offen offset:{1024*i} sc1")
    A.label(l)
    stamp(A, 3)
    A("v_lshlrev_b32 v170, 3, v0")
    A("s_lshl_b32 s24, s6, 9"); A(f"s_add_u32 s24, s24, {GG_OFF}")
    A("buffer_load_dwordx2 v[168:169], v170, s[20:23], s24 offen sc1")
    A(f"v_mov_b32 v8, {FLG}")
    l = when("s_cmp_eq_u32 s16, 0")
    A("s_barrier")
    lds_wait(A, 8, 9, "v_cmp_ne_u32 vcc, 0", sleep=4)
    A("s_branch k_fin")
    A.label(l)
    l = when(f"s_cmp_eq_u32 s{RMT}, 1")
    A("s_waitcnt vmcnt(1)")
    for i in range(12): A(f"v_add_f32 v{ACC+i}, v{ACC+i}, v{120+i}")
    A.label(l)
    if OPT["defer"]:
        A(f"s_mov_b32 m0, s{sL}"); A("s_mov_b32 s14, 4")
        lds_wait(A, 8, 9, "v_cmp_ne_u32 vcc, 0", off=40)
        A("s_setprio 3"); A("s_branch k_w")
        A.label("k_hret")
        A("s_setprio 0"); A("s_nop 3")
        kexp0(A); kexp1(A)
        for i in range(32): A(f"v_mov_b32 v{172+i}, 0")
    else:
        kexp0(A)
        lds_wait(A, 8, 9, "v_cmp_ne_u32 vcc, 0", off=40)
        kexp1(A)
    kexp2(A)
    conv(A)

def finpre(A):
    sH = LCH; sL = REG
    A("s_mul_i32 s26, s7, 2560"); A("s_lshr_b32 s25, s6, 2"); A("s_mul_i32 s25, s25, 20480"); A("s_add_u32 s26, s26, s25"); A(f"s_add_u32 s26, s26, {YF_OFF}")
    A("v_and_b32 v3, 7, v0")
    A("v_lshrrev_b32 v8, 3, v0"); A("v_lshlrev_b32 v8, 12, v8"); A("v_lshl_add_u32 v8, v3, 4, v8")
    A("s_mul_i32 s27, s7, 327680"); A("s_lshl_b32 s28, s6, 7"); A("s_add_u32 s27, s27, s28"); A(f"s_add_u32 s27, s27, {YT_OFF}")
    A("v_bfe_u32 v2, v0, 2, 2"); A("v_lshlrev_b32 v2, 7, v2")
    A("v_lshrrev_b32 v3, 4, v0"); A("v_lshl_add_u32 v2, v3, 5, v2")
    A("v_and_b32 v3, 3, v0"); A("v_lshl_add_u32 v2, v3, 3, v2"); A(f"v_add_u32 v2, s{sL}, v2")
    A(f"s_mul_i32 s28, s{sH}, 48"); A(f"s_add_u32 s28, s28, s{sL}")
    A("v_lshlrev_b32 v3, 4, v0"); A("v_add_u32 v3, s28, v3")
    A("v_lshlrev_b32 v7, 4, v0"); A(f"v_add_u32 v7, s{sL}, v7")
    A("s_waitcnt vmcnt(0)")
    ok = A.newlabel("ok")
    A(f"v_cmp_ne_u32 vcc, s{TAG}, v169"); A(f"s_cbranch_vccz {ok}")
    poll(A, 170, "s24", 168, 2, tagreg=169)
    A.label(ok)
    A("v_cvt_pk_bf16_f32 v14, v168, 0"); A("v_lshlrev_b32 v15, 16, v14")
    A("v_sub_f32 v12, 1.0, v15"); A("v_cvt_pk_bf16_f32 v12, v12, 0"); A("v_lshlrev_b32 v13, 16, v12")
    A(f"ds_write_b128 v7, v[12:15] offset:{OMG}")
    A(f"s_lshl_b32 s29, s{sH}, 8"); A("s_add_u32 s12, s29, s26"); A("s_add_u32 s13, s12, 768"); A("s_add_u32 s14, s12, 1536")
    A(f"s_add_u32 s15, s26, {9*256}"); A(f"s_cmp_eq_u32 s{sH}, 0"); A("s_cselect_b32 s15, s15, s14")
    lp = A.newlabel("yl"); dn = A.newlabel("yl")
    A("s_mov_b32 s62, 0")
    A.label(lp)
    D = [32, 40, 48, 4]
    for i in range(3): A(f"s_load_dwordx8 s[{D[i]}:{D[i]+7}], s[20:21], s{12+i} glc")
    A("s_load_dwordx4 s[8:11], s[20:21], s15 glc"); A("s_load_dwordx4 s[16:19], s[20:21], s15 offset:16 glc")
    A("s_addk_i32 s62, 1")
    A("s_waitcnt lgkmcnt(0)")
    regs = list(range(32, 56)) + [8, 9, 10, 11, 16, 17, 18, 19]
    A("s_and_b64 s[28:29], s[32:33], s[34:35]"); A("s_or_b64 s[30:31], s[32:33], s[34:35]")
    for r in regs[4::2]:
        A(f"s_and_b64 s[28:29], s[28:29], s[{r}:{r+1}]"); A(f"s_or_b64 s[30:31], s[30:31], s[{r}:{r+1}]")
    A("s_and_b32 s28, s28, s29"); A("s_or_b32 s30, s30, s31")
    A(f"s_xor_b32 s28, s28, s{TAG}"); A(f"s_xor_b32 s30, s30, s{TAG}"); A("s_or_b32 s28, s28, s30")
    A(f"s_cbranch_scc0 {dn}")
    A(f"s_sleep {OPT['psleep']}")
    A(f"s_cmpk_lt_u32 s62, 0x{SPIN:x}"); A(f"s_cbranch_scc1 {lp}")
    A.label(dn)
    for i in range(4):
        A(f"s_add_u32 s28, s{sH}, {3*i}")
        if i == 3: A(f"s_cmp_lg_u32 s{sH}, 0"); A(f"s_cbranch_scc1 {dn}x")
        A("s_lshl_b32 s28, s28, 15"); A(f"s_add_u32 m0, s{sL}, {1024*i}"); A("s_add_u32 s28, s28, s27")
        A("buffer_load_dwordx4 v8, s[20:23], s28 offen sc1 lds")
    A.label(dn + "x")
    stamp(A, 7)
    A("s_waitcnt vmcnt(0)")
    for i in range(4):
        A(f"ds_read_b64_tr_b16 v[{8+4*i}:{9+4*i}], v2 offset:{1024*i}")
        A(f"ds_read_b64_tr_b16 v[{10+4*i}:{11+4*i}], v2 offset:{1024*i+512}")
    for i in range(4):
        A(f"s_waitcnt lgkmcnt({6-i})" if i < 3 else "s_waitcnt lgkmcnt(3)")
        A(f"ds_write_b128 v3, v[{8+4*i}:{11+4*i}] offset:{A2O + A2S*i}")
    stamp(A, 8)

def build():
    A = Asm(); A.later = []
    A.raw(f"; @launch grid=(256,1,1) block=(512,1,1) lds={LDS_BYTES}")
    A.raw('.amdgcn_target "amdgcn-amd-amdhsa--gfx950"')
    kernel_begin(A, NAME)
    A("s_cmp_ge_u32 s2, 256"); A("s_cbranch_scc1 k_end")
    stamp_begin(A)
    if OPT["rt"]: A("s_mov_b32 s64, s92")
    if OPT["probe"] >= 0:
        A("s_memrealtime s[64:65]"); A("s_waitcnt lgkmcnt(0)"); A("s_mov_b32 s66, s64")
    A("s_getpc_b64 s[24:25]")
    A.label("k_pc")
    A("s_load_dwordx16 s[32:47], s[0:1], 0")
    A(f"s_lshr_b32 s{RR}, s2, 3")
    A("v_lshrrev_b32 v1, 6, v0"); A(f"v_lshl_add_u32 v2, v1, 5, s{RR}"); A("v_lshlrev_b32 v2, 7, v2")
    A("v_min_u32 v2, k_last - k_pc, v2")
    A("v_mov_b32 v5, s25"); A("v_add_co_u32 v4, vcc, s24, v2"); A("v_addc_co_u32 v5, vcc, 0, v5, vcc")
    A("global_load_dword v15, v[4:5], off")
    A("v_readfirstlane_b32 s3, v1")
    A("s_load_dwordx8 s[48:55], s[0:1], 64")
    A("s_load_dwordx4 s[56:59], s[0:1], 96")
    A("s_load_dwordx2 s[20:21], s[0:1], 112")
    A("v_and_b32 v0, 63, v0"); A(f"s_and_b32 s{XCD}, s2, 7")
    A("s_cmp_lg_u32 s3, 4"); A("s_cbranch_scc1 k_k")
    A("v_lshlrev_b32 v8, 2, v0"); A(f"v_add_u32 v8, {FLG}, v8"); A("v_mov_b32 v9, 1")
    A("ds_write_b32 v8, v9")
    A("s_branch k_l")
    A.label("k_k")
    ev = [(0,1,1,2),(1,1,1,1),(1,2,2,1),(2,1,1,1),(0,0,0,0),(0,0,0,1),(1,0,0,2),(2,0,0,1)]
    if OPT["defer"] == 2: ev[0] = (0,1,2,1)
    od = [(0,1,1,1),(0,2,2,1),(1,1,1,1),(1,2,2,1),(0,0,0,0),(0,0,0,2),(1,0,0,2),(2,0,2,0)]
    enc = lambda t: sum((r | (sl << 2) | (p << 4) | (c << 6)) << (8*i) for i, (r, sl, p, c) in enumerate(t))
    A(f"s_mov_b32 s10, 0x{enc(ev) & 0xffffffff:x}"); A(f"s_mov_b32 s11, 0x{enc(ev) >> 32:x}")
    A(f"s_lshr_b32 s18, s{RR}, 1"); A("s_lshl_b32 s18, s18, 3"); A(f"s_add_u32 s18, s18, s{XCD}")
    A(f"s_and_b32 s8, s{RR}, 1")
    A(f"s_cselect_b32 s10, 0x{enc(od) & 0xffffffff:x}, s10"); A(f"s_cselect_b32 s11, 0x{enc(od) >> 32:x}, s11")
    A("s_lshl_b32 s9, s3, 3"); A("s_lshr_b64 s[10:11], s[10:11], s9")
    A(f"s_and_b32 s{LCH}, s10, 3"); A("s_bfe_u32 s17, s10, 0x20004"); A("s_bfe_u32 s16, s10, 0x20006")
    if OPT["defer"] == 2:
        A("s_lshl_b32 s9, s8, 3"); A("s_add_u32 s9, s9, s3"); A("s_cmp_eq_u32 s9, 5"); A("s_cselect_b32 s14, 2, 1")
    else:
        A("s_cmp_lt_u32 s3, 4"); A("s_cselect_b32 s14, s16, 1")
    A("s_mul_i32 s9, s8, 3"); A(f"s_add_u32 s9, s9, s{LCH}")
    A(f"s_cmp_eq_u32 s{LCH}, 2"); A("s_cselect_b32 s9, 2, s9"); A("s_cselect_b32 s13, s16, 0")
    A(f"s_mul_i32 s{CH}, s18, 5"); A(f"s_add_u32 s{CH}, s{CH}, s9")
    kpass(A)
    kgive(A)
    mwave(A)
    A.label("k_post")
    post(A)
    stamp_end(A, 0)
    if OPT["probe"] >= 0:
        A("s_waitcnt vmcnt(0)")
        stamp(A, 13)
        A("s_cmp_lg_u32 s3, 1"); A("s_cbranch_scc1 k_end")
        A(f"s_cmp_lg_u32 s2, {OPT['pwg']}"); A("s_cbranch_scc1 k_end")
        A("s_sub_u32 s70, s66, s64"); A(f"s_mul_i32 s70, s70, {OPT['pk']}"); A("s_min_u32 s70, s70, 20000")
        if OPT["xp"]:
            A("s_getreg_b32 s70, hwreg(HW_REG_XCC_ID)"); A("s_and_b32 s70, s70, 7"); A("s_add_u32 s70, s70, 1"); A("s_mul_i32 s70, s70, 1000")
        A("s_memrealtime s[68:69]"); A("s_waitcnt lgkmcnt(0)")
        A.label("k_pr")
        A("s_memrealtime s[72:73]"); A("s_waitcnt lgkmcnt(0)")
        A("s_sub_u32 s72, s72, s68"); A("s_cmp_lt_u32 s72, s70"); A("s_cbranch_scc1 k_pr")
    A.label("k_end")
    A("s_endpgm")
    A.label("k_h")
    A(f"s_mov_b32 s{RMT}, s13")
    hwave(A)
    A.label("k_fin")
    finpre(A)
    A("s_branch k_post")
    A.label("k_l")
    loader(A)
    A("s_branch k_post")
    for f in A.later: f()
    for sl, bk, reg, off in A.tail_code:
        A.label(sl); lds_wait(A, 7, reg, "v_cmp_ne_u32 vcc, 0", off=off); A(f"s_branch {bk}")
    A.label("k_last")
    A("s_endpgm")
    kernel_desc(A, NAME, 256, 102)
    return re.sub(r"^    (\w+:)$", r"\1", A.text(), flags=re.M)

if __name__ == "__main__":
    gen1.DIAG = "--diag" in sys.argv
    for a in sys.argv[2:]:
        if "=" in a:
            k, v = a.split("="); OPT[k] = eval(v)
    open(sys.argv[1], "w").write(build())
    if OPT["al"]:
        import align
        align.fix(sys.argv[1], OPT["al"])
```

```python
import sys, re, copy
from asmlib import *
import gen1
from gen1 import LOG2E, NLOG2E, LOG2E_LO, LN2, stamp, stamp_begin, stamp_end
NAME = "gated_mix__ssm_conv_s4d__swiglu_ffn__prompt_kernel"
OPT = dict(al=8, nfg=3, pk=4, pwg=77, probe=-1, xp=0, hdiag=0, mprio=2, epk=6, fpos=(3,0), thr2=0, cprio=1, psleep=1, lbar=42, ald=(12,3), wgo=1, m16=1, lay=0, ufirst=1, lite=0, g2x=0, krot=1, split=1, ppos=22, mw=1, pil=1, arr2=0, noy=0, hloc=0, rt=0, bg=7,  defer=0, alate=0)
H_OFF = 0
UR_OFF = 6291456
YT_OFF = UR_OFF + 2621440
GG_OFF = YT_OFF + 2621440
HF_OFF = GG_OFF + 16384
UF_OFF = HF_OFF + 128*256
YF_OFF = UF_OFF + 16*256
WF_OFF = YF_OFF + 8*80*256
KF_OFF = WF_OFF + 16*256
KP_OFF = KF_OFF + 128*128
LAST_OFF = KP_OFF + 128*3072
WDF_OFF = 12 << 20
WS_BYTES = 1 << 25
GB = 16384; UB = GB + 12288 + 32; STG = 41024
HB = 3*STG; HS = 13184
FLG = HB + 3*HS
FT = FLG + 120
GL = FT + 256
LDS_BYTES = GL + 256
RS = 272; SS = 16*RS
C0 = 64; C1 = C0 + 4160; CU = 8448
A2O = 4096; A2S = 1072; OMG = 8704
GR = 24576; URG = GR + 8192 + 64
TB2 = 2*STG; GXO = TB2 + 24576; GWO = TB2 + 34816
PB = 176
PR = 336; PW = 64*PR
SPIN = 0x3000
U, LOGA, LOGDT, DSK, WG, WU, WD, GW, OUT, DBG = 32, 34, 42, 44, 48, 50, 52, 54, 56, 58
XCD, RR, R5, CG, LCH, REG = 96, 97, 98, 99, 100, 101
CH, TAG, RMT = 60, 61, 47
_stamp0 = stamp
def stamp(A, i, real=False):
    if OPT["lite"]: return
    if OPT["hdiag"] and i != 1: return
    _stamp0(A, i, real or bool(OPT['rt']))
    if OPT["probe"] == i:
        A("s_memrealtime s[66:67]"); A("s_waitcnt lgkmcnt(0)")
def P2(b): return f"v[{b}:{b+1}]"

def lds_wait(A, vaddr, vtmp, cond, off=0, sleep=0):
    l = A.newlabel("lw"); d = A.newlabel("lw")
    A("s_mov_b32 s62, 0")
    A.label(l)
    A(f"ds_read_b32 v{vtmp}, v{vaddr} offset:{off}")
    A("s_addk_i32 s62, 1")
    A("s_waitcnt lgkmcnt(0)")
    A(f"{cond}, v{vtmp}")
    A(f"s_cbranch_vccz {d}")
    if sleep: A(f"s_sleep {sleep}")
    A("s_cmpk_lt_u32 s62, 0x7000")
    A(f"s_cbranch_scc1 {l}")
    A.label(d)

def poll(A, vaddr, soff, vdst, n=1, tagreg=None):
    l = A.newlabel("pl"); d = A.newlabel("pl")
    tagreg = vdst if tagreg is None else tagreg
    A("s_mov_b32 s62, 0")
    A.label(l)
    A(f"buffer_load_dword{'x2' if n == 2 else ''} {vr(vdst, n)}, v{vaddr}, s[20:23], {soff} offen sc1")
    A("s_addk_i32 s62, 1")
    A("s_waitcnt vmcnt(0)")
    A(f"v_cmp_ne_u32 vcc, s{TAG}, v{tagreg}")
    A(f"s_cbranch_vccz {d}")
    A(f"s_sleep {OPT['psleep']}")
    A(f"s_cmpk_lt_u32 s62, 0x{SPIN:x}")
    A(f"s_cbranch_scc1 {l}")
    A.label(d)

def flag_store(A, soff, vt, rep=1, stride=0, wait=True):
    A(f"v_mov_b32 v{vt}, s{TAG}")
    A(f"v_mul_u32_u24 v{vt+1}, {stride}, v0")
    A(f"s_mov_b64 exec, {(1 << rep) - 1}")
    if wait: A("s_waitcnt vmcnt(0)")
    A(f"buffer_store_dword v{vt}, v{vt+1}, s[20:23], {soff} offen sc1")
    A("s_mov_b64 exec, -1")

def tag_get(A, vt, issued=False):
    l = A.newlabel("tg"); d = A.newlabel("tg")
    if not issued: A(f"s_load_dword s{TAG}, s[{DBG}:{DBG+1}], 0")
    A("s_mov_b32 s62, 0")
    A("s_waitcnt lgkmcnt(0)")
    A.label(l)
    A(f"s_cmp_lg_u32 s{TAG}, 0"); A(f"s_cbranch_scc1 {d}")
    A(f"v_mov_b32 v{vt}, 0")
    A(f"global_load_dword v{vt}, v{vt}, s[{DBG}:{DBG+1}] sc1")
    A("s_addk_i32 s62, 1")
    A("s_waitcnt vmcnt(0)")
    A(f"v_readfirstlane_b32 s{TAG}, v{vt}")
    A(f"s_sleep {OPT['psleep']}")
    A(f"s_cmpk_lt_u32 s62, 0x{SPIN:x}"); A(f"s_cbranch_scc1 {l}")
    A.label(d)

def spoll_issue(A, soff):
    A(f"s_load_dwordx16 s[32:47], s[20:21], {soff} glc"); A(f"s_load_dwordx8 s[24:31], s[20:21], {soff} offset:64 glc")
def spoll(A, soff, sleep, issued=False):
    l = A.newlabel("sp"); d = A.newlabel("sp"); c = A.newlabel("sp")
    A("s_mov_b32 s62, 0")
    if issued: A(f"s_branch {c}")
    A.label(l)
    spoll_issue(A, soff)
    A.label(c)
    A("s_addk_i32 s62, 1")
    A("s_waitcnt lgkmcnt(0)")
    A("s_and_b64 s[10:11], s[24:25], s[26:27]"); A("s_or_b64 s[12:13], s[24:25], s[26:27]")
    for r in range(28, 48, 2):
        A(f"s_and_b64 s[10:11], s[10:11], s[{r}:{r+1}]"); A(f"s_or_b64 s[12:13], s[12:13], s[{r}:{r+1}]")
    A("s_and_b32 s10, s10, s11"); A("s_or_b32 s12, s12, s13")
    A(f"s_xor_b32 s10, s10, s{TAG}"); A(f"s_xor_b32 s12, s12, s{TAG}"); A("s_or_b32 s10, s10, s12")
    A(f"s_cbranch_scc0 {d}")
    A(f"s_sleep {sleep}")
    A(f"s_cmpk_lt_u32 s62, 0x{SPIN:x}"); A(f"s_cbranch_scc1 {l}")
    A.label(d)

def xtask(A, d, t):
    A(f"s_lshr_b32 s{d}, s{RR}, 1"); A(f"s_lshl_b32 s{d}, s{d}, 3"); A(f"s_add_u32 s{d}, s{d}, s{XCD}"); A(f"s_add_u32 s{d}, s{d}, 240")
    A(f"s_and_b32 s{t}, s{RR}, 1"); A(f"s_cselect_b32 s{d}, s{d}, 999")

def tiles(A):
    A(f"s_mul_i32 s{R5}, s{RR}, 52"); A(f"s_lshr_b32 s{R5}, s{R5}, 8"); A(f"s_and_b32 s{CG}, s{XCD}, 3"); A(f"s_lshr_b32 s6, s{XCD}, 2")
    A(f"s_sub_u32 s4, s6, s{R5}"); A("s_mul_i32 s4, s4, 5"); A(f"s_add_u32 s4, s4, s{RR}")
    A(f"s_mul_i32 s5, s{CG}, 6"); A(f"s_add_u32 s5, s5, s{R5}")
    A(f"s_lshl_b32 s7, s{CG}, 1"); A("s_add_u32 s7, s7, s6"); A("s_lshl_b32 s7, s7, 1"); A(f"s_add_u32 s7, s7, s{RR}"); A("s_sub_u32 s7, s7, 30")
    A("s_cmp_ge_u32 s2, 240"); A("s_cselect_b32 s4, 15, s4"); A("s_cselect_b32 s5, s7, s5")
    if OPT["arr2"]:
        A(f"s_lshl_b32 s6, s{XCD}, 2"); A(f"s_and_b32 s7, s{RR}, 3"); A("s_add_u32 s6, s6, s7"); A(f"s_lshr_b32 s7, s{RR}, 2")
    else:
        A(f"s_lshr_b32 s6, s{XCD}, 1"); A("s_lshl_b32 s6, s6, 3"); A(f"s_and_b32 s7, s{RR}, 7"); A("s_add_u32 s6, s6, s7")
        A(f"s_and_b32 s7, s{XCD}, 1"); A("s_lshl_b32 s7, s7, 2"); A(f"s_lshr_b32 s22, s{RR}, 3"); A("s_add_u32 s7, s7, s22")
    A("s_mov_b32 s22, 0x%x" % WS_BYTES); A("s_mov_b32 s23, 0x20000")

def loader(A):
    def taddr():
        A(f"s_and_b32 s24, s{RR}, 15"); A("s_mul_i32 s24, s24, 12288");
        A(f"s_and_b32 s25, s{XCD}, 3"); A("s_lshl_b32 s25, s25, 1"); A(f"s_lshr_b32 s26, s{XCD}, 2"); A("s_add_u32 s25, s25, s26"); A("s_mul_i32 s25, s25, 384")
        A("s_add_u32 s24, s24, s25")
        A("v_min_u32 v18, 59, v0"); A("v_mul_u32_u24 v19, 43, v18"); A("v_lshrrev_b32 v19, 9, v19")
        A("v_mul_u32_u24 v9, 171, v18"); A("v_lshrrev_b32 v9, 9, v9")
        A("v_mul_u32_u24 v19, %d, v19" % (196608 - 4*3072)); A("v_mul_u32_u24 v9, %d, v9" % (3072 - 384))
        A("v_lshl_add_u32 v18, v18, 7, v19"); A("v_add3_u32 v18, v18, v9, s24")
        A(f"s_cmp_ge_u32 s{RR}, 16")
    if not OPT["ufirst"]: taddr()
    A("v_lshrrev_b32 v8, 3, v0"); A("v_mul_u32_u24 v8, 1280, v8"); A("v_and_b32 v10, 7, v0"); A("v_lshl_add_u32 v16, v10, 4, v8")
    A("s_and_b32 s26, s2, 31"); A("s_lshr_b32 s27, s2, 5")
    A("s_mul_i32 s28, s26, 81920"); A("s_lshl_b32 s27, s27, 7"); A("s_add_u32 s28, s28, s27")
    A("s_mov_b32 s10, 2621440"); A("s_mov_b32 s11, 0x20000")
    def touch1():
        A(f"s_cmp_ge_u32 s{RR}, 16"); A(f"s_cselect_b32 s24, s{WU}, s{WG}"); A(f"s_cselect_b32 s25, s{WU+1}, s{WG+1}")
        A("global_load_dword v20, v18, s[24:25]")
    A("s_waitcnt lgkmcnt(0)")
    A(f"s_mov_b32 s8, s{U}"); A(f"s_mov_b32 s9, s{U+1}")
    A("s_barrier")
    stamp(A, 1)
    if not OPT["ufirst"]: touch1()
    def utile(h):
        for i in range(8):
            A(f"s_mov_b32 m0, {TB2 + 8192*h + 1024*i}"); A(f"v_xor_b32 v17, {16*i}, v16")
            A("buffer_load_dwordx4 v17, s[8:11], s28 offen lds"); A("s_add_u32 s28, s28, 10240")
    n1 = A.newlabel("n1"); n2 = A.newlabel("n2")
    if OPT["ufirst"]:
        A("s_cmp_ge_u32 s2, 240"); A(f"s_cbranch_scc1 {n1}")
        utile(0)
        A.label(n1)
        taddr(); touch1()
        A("s_cmp_ge_u32 s2, 240"); A(f"s_cbranch_scc1 {n2}")
    else:
        A("s_cmp_ge_u32 s2, 240"); A(f"s_cbranch_scc1 {n2}")
        utile(0)
    A(f"s_mov_b32 s12, s{WD}"); A(f"s_mov_b32 s13, s{WD+1}"); A("s_mov_b32 s14, 1966080"); A("s_mov_b32 s15, 0x20000")
    A("s_mul_i32 s27, s2, 2731"); A("s_lshr_b32 s27, s27, 16"); A("s_mul_i32 s26, s27, 24"); A("s_sub_u32 s26, s2, s26")
    A("s_mul_i32 s45, s26, 81920"); A("s_lshl_b32 s27, s27, 7"); A("s_add_u32 s45, s45, s27"); A("s_sub_u32 s45, s45, 10240")
    for i in range(8):
        A(f"s_mov_b32 m0, {TB2 + 8192 + 1024*i}"); A("s_add_u32 s45, s45, 10240")
        A("buffer_load_dwordx4 v16, s[12:15], s45 offen lds")
    xtask(A, 27, 26)
    A("s_cmp_ge_u32 s27, 320"); A(f"s_cbranch_scc1 {n2}")
    A("s_and_b32 s26, s27, 31"); A("s_lshr_b32 s27, s27, 5")
    A("s_mul_i32 s28, s26, 81920"); A("s_lshl_b32 s27, s27, 7"); A("s_add_u32 s28, s28, s27")
    utile(2)
    A.label(n2)
    A("v_lshlrev_b32 v1, 4, v0"); A("v_mov_b32 v14, 0x7ffffff0")
    A(f"s_mov_b32 s16, s{GW}"); A(f"s_mov_b32 s17, s{GW+1}"); A("s_mov_b32 s18, 1280"); A("s_mov_b32 s19, 0x20000")
    A("s_mul_i32 s46, s2, 10240")
    for (o, n) in ((0, 4), (4096, 4), (8192, 2)):
        A(f"s_mov_b32 m0, {GXO + o}"); A(f"s_add_u32 s28, s46, {o}")
        for i in range(n): A(f"buffer_load_dwordx4 v1, s[8:11], s28 offen offset:{1024*i} lds")
    A(f"s_mov_b32 m0, {GWO}"); A("v_add_u32 v19, %d, v18" % (5*196608))
    for i in range(2): A(f"buffer_load_dwordx4 v1, s[16:19], 0 offen offset:{1024*i} lds")
    A(f"s_mov_b32 m0, {FT}"); A("s_nop 0")
    A("buffer_load_dword v14, s[8:11], 0 offen lds")
    A("global_load_dword v21, v19, s[24:25]")
    tiles(A)
    A("v_lshrrev_b32 v9, 4, v0"); A("v_xor_b32 v9, v9, v10"); A("v_lshl_add_u32 v2, v9, 4, v8")
    A("v_xor_b32 v9, 4, v9"); A("v_lshl_add_u32 v3, v9, 4, v8")
    A(f"v_add_u32 v3, {10240-1024}, v3"); A(f"v_add_u32 v4, {20480-2048}, v2"); A(f"v_add_u32 v5, {20480-2048}, v3")
    A("v_mov_b32 v51, 0")
    A("s_mov_b32 s29, 0"); A("s_mov_b32 s30, 0"); A(f"s_mov_b32 s31, {FT-4}")
    A(f"s_mov_b32 s12, s{WG}"); A(f"s_mov_b32 s13, s{WG+1}"); A("s_mov_b32 s14, 1966080"); A("s_mov_b32 s15, 0x20000")
    A(f"s_mov_b32 s16, s{WU}"); A(f"s_mov_b32 s17, s{WU+1}"); A("s_mov_b32 s18, 1966080"); A("s_mov_b32 s19, 0x20000")
    def flag(fill):
        A("s_mov_b32 m0, s31"); A(fill)
        A("buffer_load_dword v14, s[8:11], 0 offen lds")
    def tail():
        flag("s_sub_u32 s31, s31, 4")
        A(f"s_add_u32 s29, s29, {STG}"); A(f"s_cmp_eq_u32 s29, {3*STG}"); A("s_cselect_b32 s29, 0, s29")
        A("s_add_u32 s30, s30, 1")
    def gloop(reg):
        l1 = A.newlabel("ld"); cnt = [0]
        extra = {1: [f"s_add_u32 s33, s29, {STG}"], 2: [f"s_cmp_eq_u32 s33, {3*STG}", "s_cselect_b32 s33, 0, s33"], 5: ["s_add_u32 s30, s30, 1"],
                 (30 if reg else 26): ["s_add_u32 s26, s26, 128"], (35 if reg else 37): ["s_add_u32 s27, s27, 196608"], 40: ["s_mov_b32 s29, s33"]}
        def dma(x):
            A(x); cnt[0] += 1
            for e in extra.get(cnt[0], []): A(e)
            if cnt[0] == OPT["lbar"]:
                sk = A.newlabel("sk")
                A("s_bitcmp0_b32 s36, s30"); A(f"s_cbranch_scc1 {sk}")
                A(f"s_waitcnt vmcnt({cnt[0]})")
                A("s_barrier")
                A.label(sk)
        def xq(q):
            A(f"s_add_u32 m0, s29, {4096*q}"); A(f"s_add_u32 s28, s26, {40960*q}")
            for i in range(4): dma(f"buffer_load_dwordx4 v{2+i}, s[8:11], s28 offen offset:{1024*i} lds")
        def wq(q):
            n = 4 if reg else 3
            A(f"s_add_u32 m0, s29, {(GR if reg else GB) + 1024*n*q}"); A(f"s_add_u32 s28, s27, {(98304 if reg else 49152)*q}")
            for i in range(n): dma(f"buffer_load_dwordx4 v{10+i}, s[12:15], s28 offen offset:{1024*i} lds")
            A(f"s_add_u32 m0, s29, {(URG if reg else UB) + 1024*n*q}"); A("s_nop 0")
            for i in range(n): dma(f"buffer_load_dwordx4 v{10+i}, s[16:19], s28 offen offset:{1024*i} lds")
        def fl():
            A("s_mov_b32 m0, s31"); A("s_sub_u32 s31, s31, 4")
            dma("buffer_load_dword v14, s[8:11], 0 offen lds")
        A.label(l1)
        if reg:
            wq(0)
            for q in range(6): xq(q)
            fl(); wq(1); fl()
        else:
            wq(0); wq(1); xq(0); xq(1); xq(2); xq(3); fl(); wq(2); wq(3); fl()
        assert cnt[0] == 42
        A("s_cmp_lt_u32 s30, 10"); A(f"s_cbranch_scc1 {l1}")
    A("s_mov_b32 s36, 0x3fc")
    A("s_cmp_ge_u32 s2, 240"); A("s_cbranch_scc1 k_ls")
    A("v_lshrrev_b32 v9, 3, v0"); A("v_mul_u32_u24 v9, 3072, v9")
    if OPT["m16"]:
        A("v_bfe_u32 v22, v0, 4, 1"); A("v_and_b32 v10, 7, v0"); A("v_xor_b32 v22, v22, v10"); A("v_lshl_add_u32 v10, v22, 4, v9")
        A("v_xor_b32 v11, 64, v10"); A(f"v_add_u32 v11, {24576-1024}, v11")
        A(f"v_add_u32 v12, {2*(24576-1024)}, v10"); A(f"v_add_u32 v13, {2*(24576-1024)}, v11")
    else:
        for i in range(1, 4): A(f"v_add_u32 v{10+i}, {(24576-1024)*i}, v10")
    A("s_mul_i32 s26, s4, 245760"); A("s_lshl_b32 s27, s5, 7")
    gloop(True)
    A.label("k_lj")
    def special():
        A.label("k_ls")
        for i in range(3):
            A(f"v_add_u32 v9, {64*i}, v0"); A("v_mul_u32_u24 v22, 5462, v9"); A("v_lshrrev_b32 v22, 16, v22")
            A("v_mul_u32_u24 v22, 2880, v22"); A(f"v_lshl_add_u32 v{10+i}, v0, 4, v22")
        A("s_mul_i32 s26, s4, 163840"); A("s_mul_i32 s27, s5, 192")
        gloop(False)
        A("s_branch k_lj")
    A.later.append(special)
    stamp(A, 2)
    if OPT["split"]:
        tag_get(A, 2)
        A("v_and_b32 v17, 15, v0"); A("v_lshrrev_b32 v18, 4, v0"); A(f"s_mov_b32 s{REG}, {HB}"); A("v_mov_b32 v170, 0")
        caddr(A)
        A(f"s_lshr_b32 s10, s{RR}, 1"); A("s_lshl_b32 s10, s10, 3"); A(f"s_add_u32 s10, s10, s{XCD}"); A("s_mul_i32 s10, s10, 5")
        A(f"s_and_b32 s8, s{RR}, 1"); A("s_cselect_b32 s9, 1, 3"); A("s_mul_i32 s8, s8, 3"); A("s_add_u32 s10, s10, s8"); A("s_mov_b32 s8, 0")
        convl(A)
        return
    A("s_barrier")
    if not OPT["mw"]:
        if OPT["wgo"]:
            A("v_and_b32 v2, 3, v0"); A("v_lshlrev_b32 v2, 2, v2"); A(f"v_add_u32 v2, {FLG+4}, v2")
            lds_wait(A, 2, 3, "v_cmp_ne_u32 vcc, 0", sleep=1)
        A("s_mul_i32 s26, s7, 245760"); A(f"s_add_u32 s26, s26, {WDF_OFF + 30720}")
        l2 = A.newlabel("ld"); l4 = A.newlabel("ld")
        A.label(l2)
        for w in range(4):
            for (o, n) in ((0, 4), (4096, 4), (8192, 2)):
                A(f"s_add_u32 m0, s29, {10240*w + o}"); A(f"s_add_u32 s28, s26, {61440*w + o}")
                if OPT["thr2"]: A(f"s_waitcnt vmcnt({OPT['thr2']})")
                for i in range(n): A(f"buffer_load_dwordx4 v1, s[20:23], s28 offen offset:{1024*i} sc1 lds")
        tail()
        A("s_add_u32 s26, s26, 10240")
        A("s_cmp_lt_u32 s30, 13"); A(f"s_cbranch_scc1 {l2}")
    stamp(A, 3)

ACC1 = 64
def msetup(A):
    A("s_lshr_b32 s8, s3, 1"); A("s_and_b32 s9, s3, 1")
    A(f"v_mov_b32 v7, {FT - 64}")
    A("s_mov_b32 s54, 0x%x" % NLOG2E); A("s_mov_b32 s55, 0x%x" % NLOG2E)
    A("s_lshl_b32 s52, s6, 2"); A("s_add_u32 s52, s52, s3"); A("s_lshl_b32 s52, s52, 8"); A(f"s_add_u32 s52, s52, {HF_OFF}")
    A("s_mul_i32 s53, s6, 196608"); A("s_mul_i32 s10, s3, 49152"); A("s_add_u32 s53, s53, s10")
    A("s_mul_i32 s10, s3, 10240"); A("v_add_u32 v11, s10, v1")
    A("s_cmp_ge_u32 s2, 240"); A("s_cbranch_scc1 k_ss")
    if True:
        A("v_bfe_u32 v12, v0, 1, 3"); A("v_xor_b32 v12, v12, v18"); A("v_lshlrev_b32 v2, 7, v17"); A("v_lshl_add_u32 v2, v12, 4, v2")
        A("s_mul_i32 s10, s8, 0x3000"); A("v_add_u32 v2, s10, v2"); A("v_xor_b32 v3, 64, v2")
        A("v_bfe_u32 v12, v0, 2, 2"); A("v_lshl_add_u32 v12, v18, 3, v12"); A("v_lshlrev_b32 v6, 7, v12")
        A("v_bfe_u32 v12, v0, 4, 1"); A("v_xor_b32 v12, s9, v12"); A("v_lshl_add_u32 v6, v12, 6, v6")
        A("v_bfe_u32 v12, v0, 1, 1"); A("v_lshl_add_u32 v6, v12, 5, v6")
        A("v_bfe_u32 v12, v0, 3, 1"); A("v_lshl_add_u32 v6, v12, 4, v6")
        A("v_and_b32 v12, 1, v0"); A("v_lshl_add_u32 v6, v12, 3, v6"); A(f"v_add_u32 v6, {GR}, v6")
        A("v_xor_b32 v8, 16, v6"); A("v_mov_b32 v10, v1"); A("v_add_u32 v9, 1024, v1")
    A("s_lshl_b32 s11, s4, 1"); A("s_add_u32 s11, s11, s8"); A("s_mul_i32 s11, s11, 3")
    A("s_lshl_b32 s12, s5, 1"); A("s_add_u32 s12, s12, s9"); A("s_lshl_b32 s12, s12, 12")
    for a in range(3):
        A(f"s_add_u32 s13, s11, {a}"); A("s_lshr_b32 s10, s13, 1"); A("s_mul_i32 s10, s10, 196608")
        A("s_and_b32 s13, s13, 1"); A("s_lshl_b32 s13, s13, 11"); A("s_add_u32 s10, s10, s13"); A(f"s_add_u32 s{48+a}, s10, s12")
    A("s_mul_i32 s51, s4, 12"); A(f"s_add_u32 s51, s51, s{CG}"); A("s_lshl_b32 s51, s51, 8")
    A(f"s_lshl_b32 s10, s{R5}, 1"); A("s_add_u32 s10, s10, s9"); A("s_lshl_b32 s10, s10, 3")
    A("s_add_u32 s51, s51, s10"); A(f"s_add_u32 s51, s51, {HF_OFF}")
    A("s_lshl_b32 s46, s8, 11"); A("s_lshl_b32 s47, s8, 2"); A("s_add_u32 s47, s47, 0x400")
    def special():
        A.label("k_ss")
        A("v_and_b32 v8, 31, v0"); A("v_lshrrev_b32 v9, 5, v0")
        A("v_bfe_u32 v10, v0, 1, 3"); A("v_xor_b32 v10, v10, v9")
        A("s_lshl_b32 s10, s8, 13")
        A("v_lshlrev_b32 v14, 7, v8"); A("v_add_u32 v14, s10, v14")
        for ks in range(4):
            A(f"v_xor_b32 v12, {2*ks}, v10"); A(f"v_lshl_add_u32 v{2+ks}, v12, 4, v14")
        A("v_and_b32 v10, 15, v0"); A("v_lshlrev_b32 v10, 4, v10"); A("v_lshl_add_u32 v10, v9, 8, v10")
        A("v_bfe_u32 v13, v0, 4, 1"); A("v_lshl_add_u32 v10, v13, 10, v10")
        A("v_bfe_u32 v12, v0, 2, 2"); A("v_lshl_add_u32 v12, v9, 3, v12"); A("v_and_b32 v14, 3, v0"); A("v_lshlrev_b32 v14, 3, v14")
        A("v_mul_u32_u24 v6, 192, v12"); A("v_add_u32 v6, v6, v14")
        A(f"v_mul_u32_u24 v13, {UB-GB}, v13"); A("s_mul_i32 s10, s9, 96"); A(f"s_add_u32 s10, s10, {GB}"); A("v_add3_u32 v6, v6, v13, s10")
        A("v_add_u32 v9, 2048, v10")
        A("s_add_u32 s18, s8, 30")
        A("s_mul_i32 s11, s18, 196608"); A("s_mul_i32 s12, s5, 6"); A("s_mul_i32 s13, s9, 3"); A("s_add_u32 s12, s12, s13")
        for nt in range(3):
            A(f"s_add_u32 s13, s12, {nt}")
            A("s_lshr_b32 s10, s13, 1"); A("s_lshl_b32 s10, s10, 12")
            A("s_and_b32 s13, s13, 1"); A("s_lshl_b32 s13, s13, 9"); A("s_add_u32 s10, s10, s13")
            A(f"s_add_u32 s{48+nt}, s10, s11")
        A("s_lshl_b32 s51, s18, 2"); A("s_lshr_b32 s10, s5, 2"); A("s_add_u32 s51, s51, s10"); A("s_lshl_b32 s51, s51, 8")
        A("s_and_b32 s10, s5, 3"); A("s_lshl_b32 s10, s10, 1"); A("s_add_u32 s10, s10, s9"); A("s_mul_i32 s10, s10, 12")
        A("s_add_u32 s51, s51, s10"); A(f"s_add_u32 s51, s51, {HF_OFF}"); A("s_mov_b32 s46, 0"); A("s_mov_b32 s47, 8")
        A("s_branch k_nosetup")
    A.later.append(special)

def kgive(A):
    A("v_add_u32 v15, s19, v1")
    A("s_nop 4")
    for i in range(3): A(f"ds_write_b128 v15, v[{20+4*i}:{23+4*i}] offset:{1024*i}")

def mtasks(A):
    dn = A.newlabel("mt"); wd = A.newlabel("mt"); ur = A.newlabel("mt")
    A("s_sub_u32 s24, s3, 1"); A("s_cmp_ge_u32 s24, 3"); A(f"s_cbranch_scc1 {dn}")
    A("v_lshrrev_b32 v40, 3, v0"); A("v_and_b32 v41, 7, v0"); A(f"v_mov_b32 v42, {FT}")
    lds_wait(A, 42, 43, "v_cmp_ne_u32 vcc, 0", sleep=1)
    A("s_cmp_eq_u32 s3, 2"); A(f"s_cbranch_scc1 {wd}")
    A("s_mov_b32 s24, s2"); A(f"s_mov_b32 s25, {TB2}")
    A("s_cmp_eq_u32 s3, 1"); A(f"s_cbranch_scc1 {ur}")
    A("v_lshlrev_b32 v42, 4, v41"); A(f"v_add_u32 v42, {GXO}, v42"); A("v_mul_u32_u24 v43, 1280, v40"); A("v_add_u32 v43, v43, v42")
    for i in range(10):
        A(f"ds_read_b128 v[{160+4*i}:{163+4*i}], v43 offset:{128*i}")
        A(f"ds_read_b128 v[{200+4*i}:{203+4*i}], v42 offset:{GWO - GXO + 128*i}")
    A("v_mov_b32 v44, 0"); A("v_mov_b32 v45, 0"); A("v_lshlrev_b32 v46, 2, v0"); A(f"v_add_u32 v46, {GL}, v46")
    A("s_waitcnt lgkmcnt(0)")
    for k in range(40): A(f"v_dot2c_f32_bf16 v{44 + k % 2}, v{160+k}, v{200+k}")
    xtask(A, 24, 25)
    A(f"s_mov_b32 s25, {TB2 + 16384}"); A("s_cmp_ge_u32 s24, 320")
    A("v_add_f32 v44, v44, v45")
    A("ds_write_b32 v46, v44")
    A(f"s_cbranch_scc1 {dn}")
    A.label(ur)
    A("s_cmp_ge_u32 s2, 240"); A(f"s_cbranch_scc1 {dn}")
    A("v_xor_b32 v42, v40, v41"); A("v_lshlrev_b32 v42, 4, v42"); A("v_lshl_add_u32 v42, v41, 10, v42"); A("v_add_u32 v42, s25, v42")
    for e in range(8): A(f"ds_read_b128 v[{160+4*e}:{163+4*e}], v42 offset:{128*e}")
    A("v_lshlrev_b32 v43, 15, v40"); A("v_lshlrev_b32 v41, 4, v41"); A("v_sub_u32 v43, v43, v41"); A("v_add_u32 v43, 4080, v43")
    A("s_mov_b32 s28, 0x05040100"); A("s_mov_b32 s29, 0x07060302")
    A("s_lshr_b32 s25, s24, 5"); A("s_and_b32 s24, s24, 31")
    A("s_lshl_b32 s25, s25, 18"); A("s_lshl_b32 s24, s24, 7"); A("s_sub_u32 s25, s25, s24"); A(f"s_add_u32 s25, s25, {UR_OFF}")
    A("s_waitcnt lgkmcnt(0)")
    for i in range(8):
        o = 192 + 4*i
        for p in range(4):
            lo = 160 + 4*(7-2*p) + i//2; hi = 160 + 4*(6-2*p) + i//2
            A(f"v_perm_b32 v{o+p}, v{hi}, v{lo}, s{28 + (i&1)}")
        A(f"buffer_store_dwordx4 v[{o}:{o+3}], v43, s[20:23], s25 offen sc1")
        A("s_add_u32 s25, s25, 4096")
    A(f"s_branch {dn}")
    A.label(wd)
    A("s_cmp_ge_u32 s2, 240"); A(f"s_cbranch_scc1 {dn}")
    A("v_lshrrev_b32 v42, 5, v0"); A("v_lshlrev_b32 v42, 11, v42"); A("v_bfe_u32 v43, v0, 2, 3"); A("v_lshl_add_u32 v42, v43, 7, v42")
    A("v_and_b32 v43, 3, v0"); A("v_lshl_add_u32 v42, v43, 3, v42"); A(f"v_add_u32 v42, {TB2 + 8192}, v42")
    for dtl in range(4):
        for sg in range(2):
            o = 160 + 4*(2*dtl+sg)
            A(f"ds_read_b64_tr_b16 v[{o}:{o+1}], v42 offset:{4096*sg + 32*dtl}")
            A(f"ds_read_b64_tr_b16 v[{o+2}:{o+3}], v42 offset:{4096*sg + 32*dtl + 1024}")
    A("s_mul_i32 s25, s2, 2731"); A("s_lshr_b32 s25, s25, 16"); A("s_mul_i32 s24, s25, 24"); A("s_sub_u32 s24, s2, s24")
    A("s_mul_i32 s24, s24, 10"); A("s_lshl_b32 s25, s25, 2")
    for dtl in range(4):
        A(f"s_add_u32 s26, s25, {dtl}")
        A("s_mul_i32 s27, s26, 52429"); A("s_lshr_b32 s27, s27, 18"); A("s_mul_i32 s27, s27, 235"); A("s_add_u32 s26, s26, s27")
        A("s_add_u32 s26, s26, s24"); A("s_lshl_b32 s26, s26, 10"); A(f"s_add_u32 s26, s26, {WDF_OFF}"); A("s_add_u32 s27, s26, 5120")
        A(f"s_waitcnt lgkmcnt({12 - 4*dtl})")
        o = 160 + 8*dtl
        A(f"buffer_store_dwordx4 v[{o}:{o+3}], v1, s[20:23], s26 offen sc1")
        A(f"buffer_store_dwordx4 v[{o+4}:{o+7}], v1, s[20:23], s27 offen sc1")
    A.label(dn)

def mwave(A):
    mtasks(A)
    A("s_mov_b32 s16, 0x%x" % ((-2*STG) & 0xffffffff)); A(f"s_mov_b32 s17, {STG}")
    A("s_mov_b32 s11, 0"); A("s_mov_b32 s12, 0")
    A("s_mul_i32 s14, s7, 245760"); A("s_mul_i32 s15, s3, 61440"); A("s_add_u32 s14, s14, s15"); A(f"s_add_u32 s14, s14, {WDF_OFF}")
    if OPT["krot"]:
        if OPT["krot"] == 1: A("s_and_b32 s18, s6, 1")
        else: A("s_xor_b32 s18, s6, s7"); A("s_and_b32 s18, s18, 1")
        A("s_mul_i32 s15, s18, 30720"); A("s_add_u32 s14, s14, s15")
        A("s_mul_i32 s15, s18, 24576"); A("s_add_u32 s53, s53, s15")
        A("s_mul_i32 s15, s18, 49152"); A("s_sub_u32 s15, 4096, s15")
        A("s_mul_i32 s18, s18, 61440"); A("s_sub_u32 s18, 2048, s18")
    else:
        A("s_movk_i32 s15, 0x1000"); A("s_movk_i32 s18, 0x800")
    A("s_cmp_ge_u32 s2, 240")
    A("s_waitcnt lgkmcnt(0)")
    stamp(A, 12)
    A("s_cbranch_scc1 k_ms")
    F = [16, 36]
    AF = [160+4*i for i in range(24)] + [56, 60, 64, 68, 72, 76]
    def aload(n):
        r = [f"buffer_load_dwordx4 v[{AF[n]}:{AF[n]+3}], v1, s[20:23], s14 offen offset:{1024*(n % 4)} sc1"]
        if n % 4 == 3: r.append("s_add_u32 s14, s14, 4096")
        return r
    slows = []; na = [0]; NE = 22 if OPT["m16"] else 26
    def emit(items, q):
        for i in items:
            tags = i[2] if i[0] == "m" else [i[1]] if i[0] == "w" else []
            if tags:
                pos = max(len(q["ops"]) - 1 - q["ops"][::-1].index(t) for t in tags)
                if pos >= q["done"]:
                    n = min(14, len(q["ops"]) - 1 - pos)
                    q["done"] = len(q["ops"]) - n
                    A(f"s_waitcnt lgkmcnt({n})")
            if i[0] == "r": q["ops"].append(i[2])
            if i[0] != "w": A(i[1])
    def chk(rg, off):
        sl = A.newlabel("g1s"); bk = A.newlabel("g1b"); slows.append((sl, bk, rg, off))
        return [("x", f"v_cmp_ne_u32 vcc, 0, v{rg}"), ("x", f"s_cbranch_vccnz {sl}"), ("x", f"{bk}:")]
    def gemm16():
        na[0] = 0
        XS = [48, 52, 56, 60, 248, 252]; BG = OPT["bg"]
        def xr(n): return ("r", f"ds_read_b128 v[{XS[n % 6]}:{XS[n % 6]+3}], v{2 + (n // 6) % 2} offset:{2048*(n % 6)}", ("x", n))
        def wr(st, i):
            f, h = i // 2, i % 2; o = 16 + 16*(st % 2) + 4*f + 2*h
            return ("r", f"ds_read_b64_tr_b16 v[{o}:{o+1}], v{8 if f & 1 else 6} offset:{(URG-GR)*(f >> 1) + 4096*(st % 2) + 512*h}", ("w", st, i))
        def stage(s0, mode, zero=False, half=None):
            last = mode == 2; ca = mode in (3, 1); cb = mode in (1, 2); it = []
            dl = {0: "s13", 3: "s17", 1: "s16", 2: ""}[mode]
            slot = {}
            def put(g, m, x): slot.setdefault((g, m), []).append(x if isinstance(x, tuple) else ("x", x))
            n0 = 12*s0; st0 = 2*s0
            for i in range(8): put(1 + i // 3, i % 3, wr(st0 + 1, i))
            for g in range(6): put(g, 3, xr(n0 + g + 6))
            if cb:
                put(0, 0, ("r", "ds_read_b32 v12, v7", "flagB")); slot[(1, 0)] = [("w", "flagB")] + chk(12, 0) + slot[(1, 0)]
            if not last:
                if mode == 0:
                    put(BG, 0, ("w", ("x", n0 + 11))); put(BG, 0, "s_barrier"); put(BG - 1, 1, "s_waitcnt vmcnt(0)")
                else:
                    put(BG - 2, 2, ("r", "ds_read_b32 v13, v7 offset:4", "flag")); put(BG, 0, ("w", "flag"))
                    for x in chk(13, 4): put(BG, 0, x)
                seq = [wr(st0 + 2, 0), wr(st0 + 2, 1), xr(n0 + 12)] + [wr(st0 + 2, i) for i in range(2, 8)] + [xr(n0 + 12 + g) for g in range(1, BG - 6)]
                pos = [(g, m) for g in range(BG, 12) for m in range(3)]
                for x, p in zip(seq, pos): put(p[0], p[1], x)
                for g in range(max(BG, 7), 12): put(g, 3, xr(n0 + g + 6))
                if mode == 0:
                    put(0, 0, "s_add_u32 s12, s12, 1"); put(0, 1, "s_cmp_eq_u32 s12, 3"); put(0, 2, "s_cselect_b32 s13, s16, s17"); put(3, 2, "s_cselect_b32 s12, 0, s12")
                    put(5, 0, "s_add_u32 s11, s11, 1"); put(11, 2, "s_cmp_lt_u32 s11, 7")
                else: put(3, 2, "v_subrev_u32 v7, 8, v7")
                put(4, 0, f"v_add_u32 v2, {dl}, v2"); put(4, 1, f"v_add_u32 v6, {dl}, v6"); put(4, 2, f"v_add_u32 v8, {dl}, v8"); put(6, 0, f"v_add_u32 v3, {dl}, v3")
            else: put(8, 0, f"s_setprio {OPT['mprio']}")
            for g in range(12):
                if half is not None and g // 6 != half: continue
                n = n0 + g; st = st0 + g // 6; a = g % 6
                for m in range(4):
                    c = ACC1 + 16*(3*(a & 1) + a // 2) + 4*m; w = 16 + 16*(st % 2) + 4*m
                    need = ([("x", n)] if m == 0 else []) + ([("w", st, 7)] if a == 0 and m == 0 else [])
                    it.append(("m", f"v_mfma_f32_16x16x32_bf16 v[{c}:{c+3}], v[{w}:{w+3}], v[{XS[a]}:{XS[a]+3}], " + ("0" if zero else f"v[{c}:{c+3}]"), need))
                    it += slot.get((g, m), [])
                    if mode in (1, 2) and 24*(mode-1) + 2*g >= OPT["ald"][0] and na[0] < NE and (m == 1 or (m == 2 and g % 3 == 1)):
                        it += [("x", e) for e in aload(na[0])]; na[0] += 1
            return it
        A("s_barrier")
        stamp(A, 2)
        q = dict(ops=[], done=0); lp = A.newlabel("g1"); st1 = A.newlabel("g1e")
        tail = [i for i in stage(-1, 0) if i[0] == "r" and (i[2][1] >= 0)]
        emit(tail, q)
        q0 = copy.deepcopy(q)
        emit(stage(0, 0, zero=True, half=0), q0)
        A(f"s_branch {st1}")
        A.label(lp)
        emit(stage(0, 0, half=0), q)
        A.label(st1)
        emit(stage(0, 0, half=1), q)
        A(f"s_cbranch_scc1 {lp}")
        q["done"] = 0
        for k, mode in enumerate((3, 1, 2)): emit(stage(k + 1, mode), q)
        while na[0] < NE:
            for x in aload(na[0]): A(x)
            na[0] += 1
        return na[0]
    def gemm1(reg):
        na[0] = 0
        def reads(ks, f):
            b = F[f]
            if reg:
                w = lambda o, v: [f"ds_read_b64_tr_b16 v[{o}:{o+1}], v{v} offset:{2048*ks}", f"ds_read_b64_tr_b16 v[{o+2}:{o+3}], v{v} offset:{2048*ks + 512}"]
                return w(b, 6) + [f"ds_read_b128 v[{b+8+4*a}:{b+11+4*a}], v{2+ks} offset:{4096*a}" for a in range(3)] + w(b+4, 8)
            r = [f"ds_read_b128 v[{b}:{b+3}], v{2+ks}"]
            for nt in range(3):
                o = b + 8 + 4*nt
                r.append(f"ds_read_b64_tr_b16 v[{o}:{o+1}], v6 offset:{3072*ks + 32*nt}")
                r.append(f"ds_read_b64_tr_b16 v[{o+2}:{o+3}], v6 offset:{3072*ks + 32*nt + 768}")
            return r + [f"ds_read_b128 v[{b+4}:{b+7}], v{2+ks} offset:4096"]
        def mfmas(f):
            b = F[f]; r = []
            for p in range(2):
                for j in range(3):
                    c = ACC1 + 16*(3*p+j); pr = f"v[{b+4*p}:{b+4*p+3}]"; tr = f"v[{b+8+4*j}:{b+11+4*j}]"
                    r.append(f"v_mfma_f32_32x32x16_bf16 v[{c}:{c+15}], {pr if reg else tr}, {tr if reg else pr}, v[{c}:{c+15}]")
            return r
        if reg:
            PL = {0: [(1, 5)], 1: [(1, 6)], 2: [(2, 0)], 3: [(2, 1), (2, 2)], 4: [(2, 3)], 5: [(2, 4)]}
            need = {0: (0, 1, 2), 1: (3,), 2: (4,), 3: (5, 6), 4: (), 5: ()}; NR = 7; gB = 2; slots = (0, 1, 4, 5)
        else:
            PL = {0: [(1, 5), (1, 6)], 1: [(1, 7)], 2: [(2, 0)], 3: [(2, 1)], 4: [(2, 2), (2, 3)], 5: [(2, 4)]}
            need = {0: (0, 1, 2), 1: (3, 4), 2: (5, 6), 3: (7,), 4: (), 5: ()}; NR = 8; gB = 3; slots = (1, 2, 3, 5)
        def step_items(k, mode):
            last = mode == 2
            ks = k % 4; it = []; ms = mfmas(k % 2)
            ca = mode in (3, 1); cb = mode in (1, 2)
            held = []
            for g in range(6):
                it.append(("m", ms[g], [(k, r) for r in need[g]]))
                if ks == 2 and g == 2 and ca: it += [("w", "flag")] + chk(13, 4)
                if ks == 0 and g == gB and cb: it += [("w", "flagB")] + chk(12, 0)
                if mode == 0 and ks == 2 and g == OPT["nfg"]: it += [("w", (k+1, NR-1)), ("x", "s_barrier")]
                if last and ks == 2 and g == 5: it += [("x", f"s_setprio {OPT['mprio']}")]
                for (so, ri) in PL[g]:
                    if last and ks + so > 3: continue
                    held.append(("r", reads((k+so) % 4, (k+so) % 2)[ri], (k+so, ri)))
                if not (mode == 0 and ks == 2 and 2 <= g < OPT["nfg"]):
                    it += held; held = []
                ex = []
                dl = {0: "s13", 3: "s17", 1: "s16", 2: ""}[mode]
                if mode == 0:
                    if ks == 0 and g == 1: ex = ["s_add_u32 s12, s12, 1", "s_cmp_eq_u32 s12, 3"]
                    if ks == 0 and g == 2: ex = ["s_cselect_b32 s13, s16, s17", "s_cselect_b32 s12, 0, s12"]
                    if ks == 1 and g == 2: ex = ["s_add_u32 s11, s11, 1"]
                    if ks == 2 and g == 2: ex = ["s_waitcnt vmcnt(0)"]
                    if ks == 3 and g == 2: ex = ["s_cmp_lt_u32 s11, 7"]
                if not last:
                    if ks == 1 and g == 1: ex = [f"v_add_u32 v2, {dl}, v2"]
                    if ks == 0 and g == 5: ex = [f"v_add_u32 v3, {dl}, v3"] + ([] if mode == 0 else ["v_subrev_u32 v7, 8, v7"])
                    if ks == 1 and g == 5: ex = [f"v_add_u32 v4, {dl}, v4"]
                    if ks == 3 and g == 1: ex = [f"v_add_u32 v5, {dl}, v5"]
                    if ks == 2 and g == 1: ex = [f"v_add_u32 v6, {dl}, v6"]
                    if ks == 2 and g == 5 and reg: ex = [f"v_add_u32 v8, {dl}, v8"]
                if mode in (1, 2):
                    pos = 24*(mode-1) + 6*ks - OPT["ald"][0]
                    if pos >= 0 and g in slots and na[0] < NE: ex = ex + aload(na[0]); na[0] += 1
                for e in ex: it.append(("x", e))
                if ks == 1 and g == OPT["fpos"][0] and ca: it.append(("r", "ds_read_b32 v13, v7 offset:4", "flag"))
                if ks == 0 and g == OPT["fpos"][1] and cb: it.append(("r", "ds_read_b32 v12, v7", "flagB"))
            return it
        A("s_barrier")
        stamp(A, 2)
        q = dict(ops=[], done=0); lp = A.newlabel("g1"); st1 = A.newlabel("g1e")
        emit([("r", reads(0, 0)[r], (0, r)) for r in range(NR)] + [("r", reads(1, 1)[ri], (1, ri)) for g in range(6) for (so, ri) in PL[g] if so == 2], q)
        q0 = copy.deepcopy(q)
        emit([(i[0], re.sub(r"v\[\d+:\d+\]$", "0", i[1]), i[2]) if i[0] == "m" else i for i in step_items(0, 0)], q0)
        A(f"s_branch {st1}")
        A.label(lp)
        for k in range(4):
            if k == 1: A.label(st1)
            emit(step_items(k, 0), q)
        A(f"s_cbranch_scc1 {lp}")
        q["done"] = 0; k0 = 4
        for mode in (3, 1, 2):
            for k in range(k0, k0 + 4): emit(step_items(k, mode), q)
            k0 += 4
        while OPT['m16'] and na[0] < NE:
            for x in aload(na[0]): A(x)
            na[0] += 1
        return na[0]
    n_reg = gemm16() if OPT['m16'] else gemm1(True)
    A.label("k_mj")
    def special():
        A.label("k_ms")
        assert gemm1(False) == n_reg
        A("s_branch k_mj")
    A.later.append(special)
    stamp(A, 3)
    A(f"s_load_dword s{TAG}, s[{DBG}:{DBG+1}], 0")
    A(f"v_mov_b32 v7, {FT-92}"); A("v_mov_b32 v5, v11"); A(f"v_add_u32 v6, {2*STG}, v11"); A("s_nop 6")
    def areads(step):
        slot = (10 + step // 2) % 3; r = []
        for dt in range(5):
            o = AF[5*(step % 6) + dt]
            off = (STG if slot == 1 else 0) + 5120*(step % 2) + 1024*dt
            r.append(f"ds_read_b128 v[{o}:{o+3}], v{6 if slot == 2 else 5} offset:{off}")
        return r
    E = 16
    for a in range(2):
        for nt in range(3):
            g = ACC1 + 16*(3*a+nt); u = g + 8
            o = 32 + 4*((3*a+nt) % 4)
            ti = 3*a+nt
            lim = (26 if ti == 0 else 30) if not OPT['alate'] else OPT['alate']
            cnt = -(-(30 - na[0]) // max(1, OPT["ald"][1] - ti))
            ins = []
            while cnt > 0 and na[0] < lim:
                ins.append(aload(na[0])); na[0] += 1; cnt -= 1
            mark = len(A.lines)
            if 3*a+nt < OPT['epk']:
                for i in range(4): A(f"v_pk_mul_f32 {P2(E+2*i)}, {P2(g+2*i)}, s[54:55]")
                for i in range(8): A(f"v_exp_f32 v{E+i}, v{E+i}")
                for i in range(4): A(f"v_pk_add_f32 {P2(E+2*i)}, {P2(E+2*i)}, 1.0 op_sel_hi:[1,0]")
                for i in range(8): A(f"v_rcp_f32 v{E+i}, v{E+i}")
                for i in range(4): A(f"v_pk_mul_f32 {P2(g+2*i)}, {P2(g+2*i)}, {P2(u+2*i)}")
                for i in range(4): A(f"v_pk_mul_f32 {P2(g+2*i)}, {P2(g+2*i)}, {P2(E+2*i)}")
            else:
                for i in range(8): A(f"v_mul_f32 v{E+i}, s54, v{g+i}")
                for i in range(8): A(f"v_exp_f32 v{E+i}, v{E+i}")
                for i in range(8): A(f"v_add_f32 v{E+i}, 1.0, v{E+i}")
                for i in range(8): A(f"v_rcp_f32 v{E+i}, v{E+i}")
                for i in range(8): A(f"v_mul_f32 v{g+i}, v{g+i}, v{u+i}")
                for i in range(8): A(f"v_mul_f32 v{g+i}, v{g+i}, v{E+i}")
            if ins:
                body = A.lines[mark:]; del A.lines[mark:]
                step = max(1, len(body) // len(ins))
                for n, l in enumerate(body):
                    if n % step == 0 and ins:
                        for x in ins.pop(0): A(x)
                    A.lines.append(l)
                assert not ins
            for i in range(4): A(f"v_cvt_pk_bf16_f32 v{o+i}, v{g+2*i}, v{g+2*i+1}")
            A(f"buffer_store_dwordx4 v[{o}:{o+3}], v{9 if a else 10}, s[20:23], s{48+nt} offen sc1")
            if 3*a+nt == OPT["epk"] - 1: A("s_barrier")
    if OPT["mprio"]: A("s_setprio 0")
    stamp(A, 4)
    if OPT["wgo"] == 1 and not OPT["mw"]:
        A("s_lshl_b32 s10, s3, 2"); A(f"s_add_u32 s10, s10, {FLG+4}"); A("v_mov_b32 v12, s10"); A("v_mov_b32 v13, 0"); A("ds_write_b32 v12, v13")
    tag_get(A, 14, issued=True)
    A(f"v_mov_b32 v14, s{TAG}"); A("v_lshl_add_u32 v15, v0, 2, s46"); A("v_writelane_b32 v15, s47, 2")
    A("s_mov_b64 exec, 7"); A("s_waitcnt vmcnt(0)")
    A("buffer_store_dword v14, v15, s[20:23], s51 offen sc1"); A("s_mov_b64 exec, -1")
    if OPT["wgo"] == 2:
        A("s_lshl_b32 s10, s3, 2"); A(f"s_add_u32 s10, s10, {FLG+4}"); A("v_mov_b32 v12, s10"); A("v_mov_b32 v13, 0"); A("ds_write_b32 v12, v13")
    while na[0] < 30:
        for x in aload(na[0]): A(x)
        na[0] += 1
    stamp(A, 5)
    if OPT["mw"]:
        A("s_mul_i32 s10, s3, 10240"); A("s_add_u32 s14, s14, s18")
        for jj in range(3):
            for (o, n) in ((0, 4), (4096, 4), (8192, 2)):
                A(f"s_add_u32 m0, s10, {((1 + jj) % 3)*STG + o}"); A(f"s_add_u32 s11, s14, {10240*jj + o}")
                for i in range(n):
                    A(f"buffer_load_dwordx4 v1, s[20:23], s11 offen offset:{1024*i} sc1 lds")
                    if 10*jj + o//1024 + i + 1 == OPT["ppos"]: spoll_issue(A, "s52")
    A("v_and_b32 v4, 15, v0"); A("v_lshrrev_b32 v3, 4, v0")
    A(f"v_mul_u32_u24 v2, {PB}, v4"); A("v_lshl_add_u32 v2, v3, 3, v2")
    A("s_mul_i32 s10, s3, 10240"); A("v_add_u32 v2, s10, v2")
    spoll(A, "s52", OPT["psleep"], issued=bool(OPT["ppos"]))
    stamp(A, 7)
    ACC = 80; HR = 8
    def hload(k, i):
        b = HR + 16*(k % 3)
        r = [f"buffer_load_dwordx4 v[{b+4*i}:{b+4*i+3}], v1, s[20:23], s53 offen offset:{1024*i} sc1"]
        if i == 3: r.append("s_add_u32 s53, s53, " + ("s15" if k == 5 else "4096"))
        return r
    for k in range(3):
        for i in range(4):
            for x in hload(k, i): A(x)
    pq = []
    for mt in range(4):
        for dt in range(5):
            c = ACC + 4*(4*dt+mt); o = 8 + 2*((5*mt+dt) % 16)
            pq += [f"v_cvt_pk_bf16_f32 v{o}, v{c}, v{c+1}", f"v_cvt_pk_bf16_f32 v{o+1}, v{c+2}, v{c+3}"]
            if 5*mt+dt >= 1: pq.append(pw)
            pw = f"ds_write_b64 v2, v[{o}:{o+1}] offset:{(mt >> 1)*STG + 16*(mt & 1)*PB + 32*dt}"
    pq.append(pw)
    for k in range(12):
        b = HR + 16*(k % 3); j = k + 2
        ar = areads(j) if 6 <= j < 12 else []
        wchk = bool(ar) and j % 2 == 0 and not OPT['mw']
        for mt in range(4):
            out = 11 if k + 3 < 12 else 4*(12-k) - mt - 1
            w = f"s_waitcnt vmcnt({out})"
            if mt == 0: w += " lgkmcnt(0)" if k in (0, 11) else " lgkmcnt(5)" if k >= 6 else ""
            A(w)
            if mt == 0 and k in (0, 6): stamp(A, 8 + k//6)
            for dt in range(5):
                c = ACC + 4*(4*dt+mt); af = AF[5*(k % 6) + dt]
                src = "0" if k == 0 else f"v[{c}:{c+3}]"
                A(f"v_mfma_f32_16x16x32_bf16 v[{c}:{c+3}], v[{af}:{af+3}], v[{b+4*mt}:{b+4*mt+3}], {src}")
                if wchk and mt == 0 and dt == 0: A(f"ds_read_b32 v3, v7 offset:{4*(5-j//2)}")
                if wchk and mt == 1 and dt == 3:
                    sl = A.newlabel("g2s"); bk = A.newlabel("g2b"); slows.append((sl, bk, 3, 4*(5-j//2)))
                    A("s_waitcnt lgkmcnt(0)"); A("v_cmp_ne_u32 vcc, 0, v3"); A(f"s_cbranch_vccnz {sl}"); A.label(bk)
                if ar and mt == 2: A(ar[dt])
                if OPT["pil"] and k == 11 and 5*mt + dt >= 7:
                    for _ in range(2): A(pq.pop(0))
            if k + 3 < 12 and OPT["g2x"] != 1:
                for x in hload(k+3, mt): A(x)
    A.tail_code = slows
    stamp(A, 10)
    A("s_nop 1" if not OPT["pil"] else "s_nop 3")
    for x in pq: A(x)

def post(A):
    A(f"s_mov_b32 s16, s{OUT}"); A(f"s_mov_b32 s17, s{OUT+1}")
    A("s_mov_b32 s18, 2621440"); A("s_mov_b32 s19, 0x20000")
    A("s_mul_i32 s24, s6, 81920"); A("s_mul_i32 s25, s7, 160"); A("s_add_u32 s24, s24, s25")
    A("s_lshl_b32 s27, s3, 6")
    def addr(b):
        A(f"v_add_u32 v{b}, s27, v0")
        A(f"v_mul_u32_u24 v{b+1}, 6554, v{b}"); A(f"v_lshrrev_b32 v{b+1}, 16, v{b+1}")
        A(f"v_mul_u32_u24 v{b+2}, 10, v{b+1}"); A(f"v_sub_u32 v{b+2}, v{b}, v{b+2}")
        A(f"v_mul_u32_u24 v{b+3}, 1280, v{b+1}"); A(f"v_lshl_add_u32 v{b+3}, v{b+2}, 4, v{b+3}")
        A(f"v_mul_u32_u24 v{b+4}, {PB}, v{b+1}"); A(f"v_lshl_add_u32 v{b+4}, v{b+2}, 4, v{b+4}")
        A(f"v_lshrrev_b32 v{b+5}, 5, v{b+1}"); A(f"v_mul_u32_u24 v{b+5}, {STG - 32*PB}, v{b+5}"); A(f"v_add_u32 v{b+4}, v{b+4}, v{b+5}")
        A(f"v_mul_u32_u24 v{b+5}, 86, v{b+2}"); A(f"v_lshrrev_b32 v{b+5}, 8, v{b+5}")
        A(f"v_mul_u32_u24 v{b+6}, {HS+48}, v{b+2}"); A(f"v_mul_u32_u24 v{b+5}, {3*(HS+48) - A2S}, v{b+5}")
        A(f"v_sub_u32 v{b+6}, v{b+6}, v{b+5}"); A(f"v_lshl_add_u32 v{b+6}, v{b+1}, 4, v{b+6}"); A(f"v_add_u32 v{b+6}, {HB + A2O}, v{b+6}")
        A(f"v_lshlrev_b32 v{b+7}, 4, v{b+1}"); A(f"v_add_u32 v{b+7}, {HB + OMG}, v{b+7}")
    def rds(b, d):
        A(f"ds_read_b128 v[{d+20}:{d+23}], v{b+7}")
        for w in range(4): A(f"ds_read_b128 v[{d+4*w}:{d+4*w+3}], v{b+4} offset:{w*10240}")
        A(f"ds_read_b128 v[{d+16}:{d+19}], v{b+6}")
    def calc(b, d, t, rest):
        for w in range(5):
            A(f"s_waitcnt lgkmcnt({rest + 4 - w})")
            c = d + 20 + (2 if w == 4 else 0)
            for k in range(4):
                A(f"v_dot2c_f32_bf16 v{t+2*k}, v{d+4*w+k}, v{c}"); A(f"v_dot2c_f32_bf16 v{t+2*k+1}, v{d+4*w+k}, v{c+1}")
        A("s_nop 0")
        for k in range(4): A(f"v_cvt_pk_bf16_f32 v{d+k}, v{t+2*k}, v{t+2*k+1}")
        A(f"buffer_store_dwordx4 v[{d}:{d+3}], v{b+3}, s[16:19], s24 offen")
    addr(40)
    for i in range(4): A(f"v_pk_mov_b32 {P2(160+2*i)}, 0, 0")
    one = A.newlabel("po"); dn = A.newlabel("po"); o2 = A.newlabel("po")
    A("s_and_b32 s28, s3, 6"); A("s_cmp_lg_u32 s28, 4"); A(f"s_cbranch_scc1 {one}")
    A("s_add_u32 s27, s27, 256"); A("s_setprio 3")
    addr(48)
    for i in range(4): A(f"v_pk_mov_b32 {P2(168+2*i)}, 0, 0")
    A.label(one)
    A("s_waitcnt lgkmcnt(0)")
    A("s_barrier")
    stamp(A, 11)
    A("s_cmp_lg_u32 s28, 4"); A(f"s_cbranch_scc1 {o2}")
    rds(48, 232)
    A.label(o2)
    rds(40, 208)
    calc(40, 208, 160, 0)
    A("s_cmp_lg_u32 s28, 4"); A(f"s_cbranch_scc1 {dn}")
    calc(48, 232, 168, 0)
    A.label(dn)

def pcmul(A, d, s, m):
    A(f"v_pk_mul_f32 {P2(d)}, {P2(s)}, {P2(m)} op_sel:[0,0] op_sel_hi:[1,0]")
    A(f"v_pk_fma_f32 {P2(d)}, {P2(s)}, {P2(m)}, {P2(d)} op_sel:[1,1,0] op_sel_hi:[0,1,1] neg_lo:[0,1,0]")

def kpass(A):
    RAW = 246; FA = 16; ACC = 20
    A(f"s_mul_i32 s28, s{CH}, 384"); A("s_lshl_b32 s29, s17, 7"); A("s_add_u32 s28, s28, s29")
    A("v_lshl_add_u32 v1, v0, 1, s28")
    A(f"s_lshl_b32 s28, s{CH}, 1"); A("s_and_b32 s28, s28, -4")
    if OPT["hdiag"] == 4: _stamp0(A, 2)
    A("s_cmp_lt_u32 s14, 2")
    A("s_waitcnt lgkmcnt(0)")
    for a in range(4): A(f"global_load_ushort v{RAW+a}, v1, s[{LOGA+2*a}:{LOGA+2*a+1}]")
    A("s_cbranch_scc1 k_one")
    for a in range(4): A(f"global_load_ushort v{RAW+4+a}, v1, s[{LOGA+2*a}:{LOGA+2*a+1}] offset:128")
    A.label("k_one")
    A(f"s_load_dword s30, s[{LOGDT}:{LOGDT+1}], s28"); A(f"s_load_dword s31, s[{DSK}:{DSK+1}], s28")
    A("s_barrier")
    if OPT["lay"] == 3:
        A("s_branch k_k2"); A.label("k_l"); loader(A); A("s_branch k_post"); A.label("k_k2")
    nt0 = A.newlabel("mk")
    A("s_lshl_b32 s24, s2, 3"); A("s_add_u32 s24, s24, s3"); A("s_cmp_lg_u32 s24, 71"); A(f"s_cbranch_scc1 {nt0}")
    A(f"s_add_u32 s24, s20, {LAST_OFF}"); A("s_addc_u32 s25, s21, 0")
    A("s_load_dword s28, s[24:25], 0")
    A("v_mov_b32 v16, 0")
    A("s_waitcnt lgkmcnt(0)")
    A("s_add_u32 s28, s28, 1"); A("s_max_u32 s28, s28, 1")
    A("v_mov_b32 v17, s28")
    A("s_mov_b64 exec, 1")
    A(f"global_store_dword v16, v17, s[{DBG}:{DBG+1}] sc1")
    A("global_store_dword v16, v17, s[24:25] sc1")
    A("s_mov_b64 exec, -1")
    A.label(nt0)
    tiles(A)
    A("s_bfe_u32 s9, s10, 0x20002")
    A(f"s_mul_i32 s{REG}, s{LCH}, {HS}"); A(f"s_add_u32 s{REG}, s{REG}, {HB}")
    A(f"s_mul_i32 s19, s9, {SS}"); A(f"s_add_u32 s19, s19, s{REG}"); A("s_mov_b32 m0, s19")
    A("v_and_b32 v17, 15, v0"); A("v_lshrrev_b32 v18, 4, v0"); A("v_mov_b32 v10, 0"); A("v_mov_b32 v9, 0"); A("v_mov_b32 v7, 0"); A("v_mov_b32 v170, 0")
    A("s_mov_b32 s24, 0x%x" % LOG2E); A("s_mov_b32 s25, 0x%x" % LOG2E_LO); A("s_mov_b32 s26, 0x%x" % LN2)
    A("s_mov_b32 s27, 0x41000000"); A("s_mov_b32 s28, 0x43000000")
    A("v_add_u32 v37, 4, v17"); A(f"v_and_b32 v{FA}, 7, v37"); A(f"v_mul_u32_u24 v{FA}, 544, v{FA}"); A("v_and_b32 v37, 8, v37")
    A(f"v_lshl_add_u32 v{FA}, v37, 5, v{FA}"); A(f"v_lshl_add_u32 v{FA}, v18, 4, v{FA}"); A(f"v_add_u32 v{FA}, s19, v{FA}")
    rowo = lambda i: 544*((i+4) & 7) + 32*((i+4) & 8)
    for i in range(6): A(f"v_pk_mov_b32 {P2(ACC+2*i)}, 0, 0")
    DT, DT2, NDT, ONE = 32, 34, 33, 36
    A(f"v_mov_b32 v{ONE}, 0x3f80")
    A("v_lshlrev_b32 v1, 4, v0")
    A("s_cmp_ge_u32 s3, 4"); A("s_cbranch_scc1 k_nosetup")
    msetup(A)
    A.label("k_nosetup")
    if OPT["hdiag"] == 4: A("s_memtime s[70:71]")
    A("s_waitcnt lgkmcnt(0)")
    if OPT["hdiag"] == 4: _stamp0(A, 4)
    A(f"s_bitcmp1_b32 s{CH}, 0")
    A("s_cselect_b32 s29, 0, 16")
    A("s_lshl_b32 s30, s30, s29"); A("s_and_b32 s30, s30, 0xffff0000")
    A("s_lshl_b32 s31, s31, s29"); A("s_and_b32 s31, s31, 0xffff0000")
    A("s_cmp_eq_u32 s17, 0"); A("s_cselect_b32 s31, s31, 0")
    A("v_mov_b32 v37, s30")
    A(f"v_writelane_b32 v{ACC}, s31, 0")
    A("v_mul_f32 v38, s24, v37"); A("v_fma_f32 v39, v37, s24, -v38"); A("v_fmac_f32 v39, s25, v37")
    A("v_exp_f32 v38, v38"); A("v_mul_f32 v39, s26, v39"); A("v_fmac_f32 v38, v38, v39")
    A("v_cvt_pk_bf16_f32 v38, v38, v38")
    A(f"v_lshlrev_b32 v{DT}, 16, v38")
    A(f"v_add_f32 v{DT2}, v{DT}, v{DT}"); A(f"v_sub_f32 v{NDT}, 0, v{DT}")
    if OPT["hdiag"] == 4:
        _stamp0(A, 5)
        for n in (3, 2, 1): A(f"s_waitcnt vmcnt({n})"); _stamp0(A, 9 - n)
    A("s_waitcnt vmcnt(0)")
    stamp(A, 1)
    A.label("k_loop")
    A1 = 38; TH = 39
    Z, W, Y = 40, 42, 44
    P = 48; T = 240; QA, QB = 242, 244; PK = 64; B2 = 120
    QF, PF = 176, 192
    A(f"v_lshlrev_b32 v{T}, 16, v{RAW}"); A(f"v_mul_f32 v{T}, s24, v{T}")
    A(f"v_lshlrev_b32 v{TH}, 16, v{RAW+1}")
    A(f"v_exp_f32 v{T}, v{T}")
    A(f"v_lshlrev_b32 v{P}, 16, v{RAW+2}"); A(f"v_lshlrev_b32 v{P+1}, 16, v{RAW+3}")
    A(f"v_cvt_pk_bf16_f32 v{T}, v{T}, v{T}")
    A(f"v_mul_f32 v{TH}, v{TH}, v{DT}")
    A(f"v_lshlrev_b32 v{T}, 16, v{T}")
    A(f"v_mul_f32 v{TH}, 0.15915494, v{TH}")
    A(f"v_mul_f32 v{A1}, v{T}, v{NDT}")
    A(f"v_pk_mul_f32 {P2(P)}, {P2(P)}, {P2(DT2)} op_sel_hi:[1,0]")
    A(f"v_mul_f32 v{A1}, s24, v{A1}")
    A(f"v_pk_mov_b32 {P2(RAW)}, {P2(RAW+4)}, {P2(RAW+4)} op_sel:[0,1]"); A(f"v_pk_mov_b32 {P2(RAW+2)}, {P2(RAW+6)}, {P2(RAW+6)} op_sel:[0,1]")
    for (R, sc) in ((W, "s27"), (Z, None), (Y, "s28")):
        if sc:
            A(f"v_mul_f32 v{T}, {sc}, v{A1}"); A(f"v_mul_f32 v{T+1}, {sc}, v{TH}")
            A(f"v_exp_f32 v{T}, v{T}"); A(f"v_fract_f32 v{T+1}, v{T+1}")
        else:
            A(f"v_exp_f32 v{T}, v{A1}"); A(f"v_fract_f32 v{T+1}, v{TH}")
        A(f"v_cos_f32 v{R}, v{T+1}"); A(f"v_sin_f32 v{R+1}, v{T+1}")
        A("s_nop 0")
        A(f"v_pk_mul_f32 {P2(R)}, {P2(R)}, {P2(T)} op_sel_hi:[1,0]" + (" neg_hi:[1,0]" if R == W else ""))
    pkc = [0]; wph = [f"ds_write_addtid_b32 v{ONE} offset:{rowo(0)}"]
    def emit(row, r):
        k = PK + pkc[0]; pkc[0] += 1
        A(f"v_cvt_pk_bf16_f32 v{k}, v{r}, v{r+1}")
        wph.append(f"ds_write_addtid_b32 v{k} offset:{rowo(row)}")
    def rd(base):
        for t in range(4): wph.append(f"ds_read_b128 v[{base+4*t}:{base+4*t+3}], v{FA} offset:{64*t}")
    def mm(acc, base, n):
        A(f"s_waitcnt lgkmcnt({n})")
        for t in range(4):
            A(f"v_mfma_f32_16x16x32_bf16 v[{acc}:{acc+3}], v[{base+4*t}:{base+4*t+3}], v[{QF+4*t}:{QF+4*t+3}], v[{acc}:{acc+3}]")
    qs = W
    for j in range(2, 17):
        dst = QA if j % 2 == 0 else QB
        if j < 16: pcmul(A, dst, qs, W)
        emit(j-1, qs)
        b = j - 1
        if b <= 7: pcmul(A, P+2*b, P+2*b-2, Z)
        qs = dst
    rd(QF)
    loc = {}
    for b in range(0, 8, 2):
        emit(b, P+2*b); emit(b+1, P+2*b+2)
        pcmul(A, T, P+2*b+2, Y); pcmul(A, P+2*b+2, P+2*b, Y)
        emit(8+b+1, T); emit(8+b, P+2*b+2)
        loc[b] = P+2*b+2
    rd(PF)
    def step(b, row):
        s = loc[b]; d = P+2*b if s == P+2*b+2 else P+2*b+2
        pcmul(A, d, s, Y); loc[b] = d
        return (row, d)
    for a in range(2):
        es = [step(b, 4*a + b//2) for b in (0, 2, 4, 6)]
        for e in es: emit(*e)
    for a in range(4):
        es = [step(b, 8 + 2*a + b//4) for b in (0, 4)]
        for e in es: emit(*e)
    rd(PF+16)
    e = step(0, 0)
    for a in range(1, 10):
        n = step(0, a) if a < 9 else None
        emit(*e); e = n
    rd(PF+32)
    assert pkc[0] == 56
    A("s_cmp_lg_u32 s14, 2"); A("s_cbranch_scc1 k_v1")
    for i in range(28): A(f"v_pk_mov_b32 {P2(B2+2*i)}, {P2(PK+2*i)}, {P2(PK+2*i)} op_sel:[0,1]")
    A("s_mov_b32 s14, 3"); A("s_branch k_loop")
    A.label("k_v1")
    stamp(A, 6)
    stamp(A, 10)
    if OPT["defer"]:
        A("s_lshl_b32 s24, s17, 2"); A("s_add_u32 s24, s24, s14"); A("s_cmp_eq_u32 s24, 1"); A("s_cbranch_scc1 k_h")
    A.label("k_w")
    n0 = wph.index([x for x in wph if f"v[{PF+16}:" in x][0])
    for x in wph[:n0]: A(x)
    mm(ACC, PF, 14)
    for x in wph[n0:]: A(x)
    mm(ACC+4, PF+16, 13); mm(ACC+8, PF+32, 0)
    A("s_cmp_lg_u32 s14, 3"); A("s_cbranch_scc1 k_w1")
    for i in range(28): A(f"v_pk_mov_b32 {P2(PK+2*i)}, {P2(B2+2*i)}, {P2(B2+2*i)} op_sel:[0,1]")
    A("s_mov_b32 s14, 0"); A("s_branch k_h" if OPT["defer"] == 2 else "s_branch k_w")
    A.label("k_w1")
    if OPT["defer"]: A("s_cmp_eq_u32 s14, 4"); A("s_cbranch_scc1 k_hret")
    A("s_cmp_ge_u32 s3, 4"); A("s_cbranch_scc1 k_h")

def kaddr(A):
    sL = REG
    A(f"v_add_u32 v39, s{sL}, v1")
    EB = C0
    A("v_lshlrev_b32 v40, 4, v17"); A(f"v_add_u32 v40, s{sL}, v40")
    A("v_lshl_add_u32 v41, v18, 10, v40"); A(f"v_add_u32 v41, {EB + 2048 - 8}, v41")
    A("v_and_b32 v42, 1, v0"); A("v_lshlrev_b32 v42, 3, v42"); A("v_sub_u32 v42, v41, v42")
    A("v_lshl_add_u32 v43, v18, 9, v40"); A("v_lshl_add_u32 v44, v18, 8, v40")
    A("v_lshrrev_b32 v45, 1, v18"); A("v_lshl_add_u32 v45, v45, 8, v40")
    A("v_and_b32 v46, 1, v18"); A("v_lshl_add_u32 v45, v46, 3, v45")
    A("v_mov_b32 v34, 0"); A("v_mov_b32 v35, 0")
    A("v_and_b32 v46, 7, v0"); A("v_lshlrev_b32 v46, 2, v46"); A(f"v_add_u32 v46, s{sL}, v46")
    A("v_lshlrev_b32 v47, 3, v0"); A(f"v_add_u32 v47, s{sL}, v47")

KC = {xy: 56+n for n, xy in enumerate([(0,0),(0,1),(1,1),(2,2),(2,3),(3,3),(1,2)])}
def kexp0(A):
    K0, K1, K2 = 20, 24, 28
    for r in range(4):
        A(f"v_cvt_pk_bf16_f32 v{48+2*r}, v{K2+r}, v{K2+r}"); A(f"v_mov_b32 v{49+2*r}, v{48+2*r}")
    for (x, y), r in KC.items(): A(f"v_cvt_pk_bf16_f32 v{r}, v{K1+x}, v{K1+y}")
    A(f"v_cvt_pk_bf16_f32 v64, v{K0}, v{K0+1}"); A(f"v_cvt_pk_bf16_f32 v65, v{K0+2}, v{K0+3}")
def kexp1(A):
    EB = C0; c = KC
    for r in range(4): A(f"ds_write2_b64 v41, v[{48+2*r}:{49+2*r}], v[{48+2*r}:{49+2*r}] offset0:{32*r} offset1:{32*r+1}")
    for r in range(4): A(f"ds_write_b16 v42, v{48+2*r} offset:{256*r+16}")
    A("s_mov_b32 exec_lo, 0")
    o = (EB - 4) // 4
    A(f"ds_write2_b32 v43, v{c[0,0]}, v{c[0,0]} offset0:{o} offset1:{o+1}")
    A(f"ds_write2_b32 v43, v{c[0,1]}, v{c[1,1]} offset0:{o+2} offset1:{o+3}")
    A(f"ds_write2_b32 v43, v{c[2,2]}, v{c[2,2]} offset0:{o+64} offset1:{o+65}")
    A(f"ds_write2_b32 v43, v{c[2,3]}, v{c[3,3]} offset0:{o+66} offset1:{o+67}")
    A("s_mov_b32 exec_lo, -1"); A("s_mov_b32 exec_hi, 0")
    o = EB + 512
    A(f"ds_write_b16 v44, v{c[0,0]} offset:{o-2}")
    A(f"ds_write2_b32 v44, v{c[0,0]}, v{c[1,2]} offset0:{o//4} offset1:{o//4+1}")
    A(f"ds_write_b32 v44, v{c[2,2]} offset:{o+8}")
    A(f"ds_write_b16 v44, v{c[3,3]} offset:{o+12}")
    A("s_mov_b64 exec, -1")
    A(f"ds_write_b64 v45, v[64:65] offset:{EB}")
    A(f"ds_write_b32 v46, v34 offset:{C0-32}"); A(f"ds_write_b32 v46, v34 offset:{C1-32}")
    A(f"ds_write_b64 v47, v[34:35] offset:{CU+4096}")
    for i in range(4):
        A(f"ds_read_b128 v[{80+8*i}:{83+8*i}], v39 offset:{EB+1024*i}")
        A(f"ds_read_b32 v{72+i}, v39 offset:{EB+1024*i-4}")
def kexp2(A):
    A("s_waitcnt lgkmcnt(0)")
    for i in range(4):
        b = 80+8*i
        A(f"v_alignbit_b32 v{b+4}, v{b}, v{72+i}, 16")
        for k in range(1, 4): A(f"v_alignbit_b32 v{b+4+k}, v{b+k}, v{b+k-1}, 16")
        A(f"ds_write_b128 v39, v[{b+4}:{b+7}] offset:{C1+1024*i}")

def caddr(A):
    sL = REG
    A("v_lshlrev_b32 v2, 4, v18"); A("v_lshlrev_b32 v6, 5, v17"); A("v_sub_u32 v2, v2, v6")
    A(f"v_add_u32 v2, {CU + 4064 - 3584}, v2"); A(f"v_add_u32 v2, s{sL}, v2")
    A("v_sub_u32 v6, 15, v17"); A("v_and_b32 v7, 1, v6"); A("v_sub_u32 v6, v6, v7")
    A(f"v_mul_u32_u24 v3, {C1-C0}, v7"); A("v_lshl_add_u32 v3, v18, 4, v3")
    A("v_lshlrev_b32 v6, 1, v6"); A("v_sub_u32 v3, v3, v6")
    A(f"v_add_u32 v3, {C0}, v3"); A(f"v_add_u32 v3, s{sL}, v3")
    for i in range(1, 4): A(f"v_add_u32 v{3+i}, {1024*i}, v3")
    A("v_lshlrev_b32 v7, 5, v17"); A("v_lshrrev_b32 v8, 1, v18"); A("v_lshl_add_u32 v7, v8, 4, v7")
    A("v_and_b32 v8, 1, v18"); A("v_lshl_add_u32 v7, v8, 9, v7")

def emit_items(A, items, q):
    for i in items:
        tags = i[2] if i[0] == "m" else []
        if tags:
            pos = max(len(q["ops"]) - 1 - q["ops"][::-1].index(t) for t in tags)
            if pos >= q["done"]:
                n = min(14, len(q["ops"]) - 1 - pos)
                q["done"] = len(q["ops"]) - n
                A(f"s_waitcnt lgkmcnt({n})")
        if i[0] == "r": q["ops"].append(i[2])
        A(i[1])

CY = 172; CTB = [40, 104]
def c_reads(key, f, extra, order):
    b = CTB[f]; r = []
    for kind, q in order:
        if kind == "G": r.append(("r", f"ds_read_b128 v[{b+32+4*q}:{b+35+4*q}], v2 offset:{512*(7-q) + extra}", (key, "G", q)))
        else:
            o = (512*(q & 1) + extra) // 4
            r.append(("r", f"ds_read2_b32 v[{b+4*q}:{b+4*q+1}], v{3+q//2} offset0:{o} offset1:{o+1}", None))
            r.append(("r", f"ds_read2_b32 v[{b+4*q+2}:{b+4*q+3}], v{3+q//2} offset0:{o+2} offset1:{o+3}", (key, "T", q)))
    return r
def c_round(key, f, pairs, fill, zero=False):
    b = CTB[f]; it = []; n = len(pairs); k = 0
    for i, (q, tau) in enumerate(pairs):
        t = CY + 4*(q + tau)
        first = i == 0 or pairs[i-1][0] != q
        need = [(key, "T", q)] + [(key, "G", x) for (p, x) in pairs if p == q] if first else []
        it.append(("m", f"v_mfma_f32_16x16x32_bf16 v[{t}:{t+3}], v[{b+4*q}:{b+4*q+3}], v[{b+32+4*tau}:{b+35+4*tau}], " + ("0" if zero and q == 0 else f"v[{t}:{t+3}]"), need))
        upto = -(-len(fill)*(i+1) // n)
        it += fill[k:upto]; k = upto
    return it
def c_store(A, tiles, O):
    for j, t in enumerate(tiles):
        A(f"v_cvt_pk_bf16_f32 v{O+2*j}, v{CY+4*t}, v{CY+4*t+1}"); A(f"v_cvt_pk_bf16_f32 v{O+2*j+1}, v{CY+4*t+2}, v{CY+4*t+3}")
    A("s_nop 1")
    for p in range(2):
        A(f"v_permlane16_swap_b32 v{O+4*p}, v{O+4*p+2}"); A(f"v_permlane16_swap_b32 v{O+4*p+1}, v{O+4*p+3}")
    A("s_nop 1")
    for p in range(2): A(f"buffer_store_dwordx4 v[{O+4*p}:{O+4*p+3}], v7, s[20:23], s30 offen offset:{512*tiles[2*p]} sc1")

def convh(A):
    order = [("T", 0), ("G", 7), ("G", 6), ("G", 5), ("G", 4), ("T", 1), ("G", 3), ("T", 2), ("G", 2), ("T", 3), ("G", 1), ("T", 4), ("G", 0), ("T", 5), ("T", 6), ("T", 7)]
    pairs = [(q, tau) for q in range(8) for tau in range(7 - q, max(-1, 3 - q), -1)]
    X = lambda l: [("x", e) for e in l]
    q = dict(ops=[], done=0)
    A("s_waitcnt vmcnt(0)")
    emit_items(A, c_reads(0, 0, 0, order), q)
    A("s_waitcnt lgkmcnt(14)")
    stamp(A, 9)
    A("s_barrier")
    stamp(A, 4)
    A(f"s_setprio {OPT['cprio']}"); A("s_mov_b32 s28, 0")
    lp = A.newlabel("cv")
    A.label(lp)
    emit_items(A, c_round(0, 0, pairs, c_reads(1, 1, 64, order) + X(["s_add_u32 s28, s28, 1"])), q)
    r2 = c_reads(2, 0, 128, order)
    r2 = r2[:9] + X(["v_add_u32 v3, 128, v3"]) + r2[9:15] + X(["v_add_u32 v4, 128, v4"]) + r2[15:18] + X(["v_add_u32 v2, 128, v2"]) + r2[18:20] + X(["v_add_u32 v5, 128, v5", "s_cmp_lt_u32 s28, 4"]) + r2[20:] + X(["v_add_u32 v6, 128, v6"])
    emit_items(A, c_round(1, 1, pairs, r2), q)
    A(f"s_cbranch_scc1 {lp}")
    stamp(A, 5)
    A(f"s_add_u32 s30, s31, {YT_OFF}")
    A(f"s_lshl_b32 s28, s{LCH}, 2"); A(f"s_add_u32 s28, s28, {FLG+4}"); A("v_mov_b32 v4, s28"); A("v_mov_b32 v5, 0"); A("s_nop 2")
    c_store(A, [4, 5, 6, 7], 104)
    A("s_setprio 0")
    A("s_waitcnt vmcnt(0)")
    A("ds_write_b32 v4, v5")
    stamp(A, 6)
    lds_wait(A, 4, 5, "v_cmp_ne_u32 vcc, 0", off=12, sleep=2)

def convl(A):
    order = [("T", 0), ("G", 3), ("G", 2), ("G", 1), ("G", 0), ("T", 1), ("T", 2), ("T", 3)]
    pairs = [(q, tau) for q in range(4) for tau in range(3 - q, -1, -1)]
    A.label("k_cl")
    A("s_lshl_b32 s30, s10, 12"); A(f"s_add_u32 s30, s30, {YT_OFF}"); A("s_mov_b32 s11, s9")
    A("s_barrier")
    A(f"s_setprio {OPT['cprio']}")
    q = dict(ops=[], done=0)
    emit_items(A, c_reads(0, 0, 0, order), q)
    lp = A.newlabel("cl")
    A.label(lp)
    for r in range(8):
        fill = c_reads(r+1, (r+1) % 2, 64*(r+1), order) if r < 7 else [("x", f"v_add_u32 v{v}, {HS}, v{v}") for v in (3, 2, 4)] + c_reads(8, 0, 0, order)
        emit_items(A, c_round(r, r % 2, pairs, fill, zero=(r == 0)), q)
    A("s_sub_u32 s11, s11, 1"); A("s_nop 6")
    c_store(A, [0, 1, 2, 3], 8)
    A("s_add_u32 s30, s30, 4096")
    A("s_cmp_lg_u32 s11, 0"); A(f"s_cbranch_scc1 {lp}")
    A("s_setprio 0")
    A("v_lshrrev_b32 v20, 3, v0"); A("s_sub_u32 s11, s9, 1"); A("v_min_u32 v20, s11, v20")
    A("v_add_u32 v21, s8, v20"); A("v_lshlrev_b32 v21, 2, v21"); A(f"v_add_u32 v21, {FLG+4}, v21"); A("v_mov_b32 v22, 0")
    A("ds_write_b32 v21, v22 offset:12")
    A("v_add_u32 v20, s10, v20"); A("v_lshrrev_b32 v23, 3, v20"); A("v_lshlrev_b32 v23, 8, v23"); A("v_and_b32 v20, 7, v20"); A("v_lshl_add_u32 v23, v20, 2, v23")
    A("v_and_b32 v20, 7, v0"); A(f"v_mul_u32_u24 v20, {80*256}, v20"); A("v_add_u32 v23, v23, v20"); A(f"v_mov_b32 v20, s{TAG}")
    A(f"s_mov_b32 s28, {YF_OFF}"); A("s_lshl_b32 s11, s9, 3")
    lds_wait(A, 21, 22, "v_cmp_ne_u32 vcc, 0", sleep=1)
    A("s_bfm_b64 exec, s11, 0"); A("s_waitcnt vmcnt(0)")
    A("buffer_store_dword v20, v23, s[20:23], s28 offen sc1"); A("s_mov_b64 exec, -1")
    stamp(A, 6)
    A("s_cmp_eq_u32 s3, 4"); A("s_cbranch_scc1 k_post"); A("s_branch k_fin")

def conv(A):
    Y = 172
    TB = [40, 104]
    def reads(f, extra):
        b = TB[f]; r = []
        for q in range(8):
            r.append(f"ds_read_b128 v[{b+32+4*q}:{b+35+4*q}], v2 offset:{512*(7-q) + extra}")
            o = (512*(q & 1) + extra) // 4
            r.append(f"ds_read2_b32 v[{b+4*q}:{b+4*q+1}], v{3+q//2} offset0:{o} offset1:{o+1}")
            r.append(f"ds_read2_b32 v[{b+4*q+2}:{b+4*q+3}], v{3+q//2} offset0:{o+2} offset1:{o+3}")
        return r
    def mfmas(f):
        b = TB[f]; r = []
        for q in range(8):
            for tau in range(8-q):
                t = q + tau
                r.append(f"v_mfma_f32_16x16x32_bf16 v[{Y+4*t}:{Y+4*t+3}], v[{b+4*q}:{b+4*q+3}], v[{b+32+4*tau}:{b+35+4*tau}], v[{Y+4*t}:{Y+4*t+3}]")
        return r
    def inter(ms, rs):
        for i, m in enumerate(ms):
            A(m)
            if i < len(rs): A(rs[i])
    A("s_waitcnt vmcnt(0)")
    for x in reads(0, 0): A(x)
    stamp(A, 9)
    A("s_barrier")
    stamp(A, 4)
    if OPT["cprio"]: A(f"s_setprio {OPT['cprio']}")
    A("s_mov_b32 s28, 0")
    lp = A.newlabel("cv")
    A.label(lp)
    A("s_waitcnt lgkmcnt(0)")
    inter(mfmas(0), reads(1, 64) + ["s_add_u32 s28, s28, 1"])
    A("s_waitcnt lgkmcnt(0)")
    inter(mfmas(1), reads(0, 128) + [f"v_add_u32 v{r}, 128, v{r}" for r in range(2, 7)] + ["s_cmp_lt_u32 s28, 4"])
    A(f"s_cbranch_scc1 {lp}")
    stamp(A, 5)
    A(f"s_add_u32 s30, s31, {YT_OFF}")
    A(f"s_lshr_b32 s28, s{CH}, 3"); A("s_lshl_b32 s28, s28, 8"); A(f"s_and_b32 s29, s{CH}, 7"); A("s_lshl_b32 s29, s29, 2")
    A("s_add_u32 s28, s28, s29"); A(f"s_add_u32 s28, s28, {YF_OFF}")
    O = 104
    for t in range(8):
        A(f"v_cvt_pk_bf16_f32 v{O+2*t}, v{Y+4*t}, v{Y+4*t+1}"); A(f"v_cvt_pk_bf16_f32 v{O+2*t+1}, v{Y+4*t+2}, v{Y+4*t+3}")
    A("s_nop 1")
    for p in range(4):
        A(f"v_permlane16_swap_b32 v{O+4*p}, v{O+4*p+2}"); A(f"v_permlane16_swap_b32 v{O+4*p+1}, v{O+4*p+3}")
    A("s_nop 1")
    for p in range(4 - OPT["noy"]): A(f"buffer_store_dwordx4 v[{O+4*p}:{O+4*p+3}], v7, s[20:23], s30 offen offset:{1024*p} sc1")
    A("s_setprio 0")
    flag_store(A, "s28", 2, 8, 80*256)
    A(f"v_mov_b32 v4, {FLG}"); A("v_mov_b32 v5, 0"); A("ds_write_b32 v4, v5")
    stamp(A, 6)

def hbar(A, i):
    if OPT["hdiag"] == 2: _stamp0(A, i + 2)
    A("s_barrier")
    if OPT["hdiag"] == 1: _stamp0(A, i + 2)

def hwave(A):
    ACC = 20; sL = REG
    def when(cmp, neg=False):
        l = A.newlabel("if"); A(cmp); A(f"s_cbranch_scc{1 if neg else 0} {l}"); return l
    stamp(A, 2)
    xtask(A, 8, 9)
    A(f"s_cmp_eq_u32 s{LCH}, 0"); A("s_cselect_b32 s8, s2, s8"); A("s_cmp_ge_u32 s2, 240"); A("s_cselect_b32 s8, 999, s8")
    A(f"s_cmp_eq_u32 s{LCH}, 1"); A("s_cselect_b32 s8, 999, s8"); A("s_cselect_b32 s9, s2, 999")
    A(f"v_add_u32 v39, s{sL}, v1")
    A("s_mul_i32 s19, s18, 3072"); A(f"s_add_u32 s19, s19, {KP_OFF}")
    A("s_lshl_b32 s18, s18, 7"); A(f"s_add_u32 s18, s18, {KF_OFF}")
    l = when("s_cmp_eq_u32 s16, 0")
    for i in range(3): A(f"buffer_store_dwordx4 v[{ACC+4*i}:{ACC+4*i+3}], v1, s[20:23], s19 offen offset:{1024*i} sc1")
    A.label(l)
    A("s_barrier")
    A("v_lshlrev_b32 v33, 2, v0"); A(f"v_add_u32 v33, {GL}, v33"); A("ds_read_b32 v32, v33")
    for i in range(3): A(f"ds_read_b128 v[{120+4*i}:{123+4*i}], v39 offset:{SS + 1024*i}")
    for i in range(3): A(f"ds_read_b128 v[{132+4*i}:{135+4*i}], v39 offset:{2*SS + 1024*i}")
    A("s_waitcnt lgkmcnt(0)")
    l = when("s_cmp_ge_u32 s16, 1")
    for i in range(12): A(f"v_add_f32 v{ACC+i}, v{ACC+i}, v{120+i}")
    A.label(l)
    l = when("s_cmp_ge_u32 s16, 2")
    for i in range(12): A(f"v_add_f32 v{ACC+i}, v{ACC+i}, v{132+i}")
    A.label(l)
    hbar(A, 0)
    stamp(A, 12)
    def flags():
        l = when("s_cmp_lt_u32 s8, 320")
        A("s_lshr_b32 s26, s8, 5"); A("s_lshl_b32 s26, s26, 8"); A("s_and_b32 s27, s8, 31"); A("s_lshl_b32 s27, s27, 2")
        A("s_add_u32 s26, s26, s27"); A(f"s_add_u32 s26, s26, {UF_OFF}")
        flag_store(A, "s26", 146)
        A.label(l)
        l = when("s_cmp_eq_u32 s16, 0")
        flag_store(A, "s18", 146, wait=False)
        A.label(l)
        l = when("s_cmp_lt_u32 s9, 240")
        A("s_mul_i32 s26, s9, 2731"); A("s_lshr_b32 s26, s26, 16"); A("s_mul_i32 s26, s26, 160"); A("s_lshl_b32 s27, s9, 2")
        A("s_add_u32 s26, s26, s27"); A(f"s_add_u32 s26, s26, {WF_OFF}")
        flag_store(A, "s26", 146)
        A.label(l)
    tag_get(A, 40)
    A("s_waitcnt vmcnt(0)")
    flags()
    l = when(f"s_cmp_eq_u32 s{LCH}, 2")
    A("s_mov_b32 s13, 0x%x" % NLOG2E)
    for m in ("quad_perm:[1,0,3,2]", "quad_perm:[2,3,0,1]", "row_half_mirror"):
        A("s_nop 1"); A(f"v_add_f32_dpp v32, v32, v32 {m} row_mask:0xf bank_mask:0xf")
    A("v_mul_f32 v32, s13, v32"); A("v_exp_f32 v32, v32"); A(f"v_mov_b32 v33, s{TAG}")
    A("v_add_f32 v32, 1.0, v32"); A("v_rcp_f32 v32, v32")
    A("s_lshl_b32 s15, s2, 6"); A(f"s_add_u32 s15, s15, {GG_OFF}")
    A("s_mov_b32 exec_lo, 0x01010101"); A("s_mov_b32 exec_hi, 0x01010101")
    A("buffer_store_dwordx2 v[32:33], v0, s[20:23], s15 offen sc1")
    A("s_mov_b64 exec, -1")
    A.label(l)
    hbar(A, 1)
    caddr(A)
    A("v_and_b32 v144, 31, v0"); A("v_lshlrev_b32 v144, 2, v144")
    A(f"s_lshr_b32 s29, s{CH}, 6"); A("s_lshl_b32 s29, s29, 8"); A(f"s_add_u32 s29, s29, {UF_OFF}")
    A(f"s_lshl_b32 s31, s{CH}, 12"); A(f"s_add_u32 s30, s31, {UR_OFF}")
    A(f"s_add_u32 m0, s{sL}, {CU}")
    hbar(A, 2)
    kaddr(A)
    hbar(A, 3)
    if not OPT["defer"]:
        for i in range(32): A(f"v_mov_b32 v{172+i}, 0")
    hbar(A, 4)
    def check(va, so, vd):
        ok = A.newlabel("ok")
        A(f"v_cmp_ne_u32 vcc, s{TAG}, v{vd}"); A(f"s_cbranch_vccz {ok}")
        poll(A, va, so, vd)
        A.label(ok)
    A("v_mov_b32 v150, 0")
    hbar(A, 5)
    l = when(f"s_cmp_eq_u32 s{LCH}, 0")
    A("v_min_u32 v150, 47, v0"); A("v_cmp_lt_u32 vcc, 23, v150"); A("v_lshlrev_b32 v150, 2, v150"); A("v_add_u32 v151, 160, v150")
    A("v_cndmask_b32 v150, v150, v151, vcc")
    A("s_mul_i32 s26, s7, 5"); A("s_lshr_b32 s26, s26, 2"); A("s_lshl_b32 s26, s26, 8"); A(f"s_add_u32 s26, s26, {WF_OFF}")
    A("buffer_load_dword v151, v150, s[20:23], s26 offen sc1")
    A("s_waitcnt vmcnt(0)")
    check(150, "s26", 151)
    A.label(l)
    hbar(A, 6)
    A("buffer_load_dword v145, v144, s[20:23], s29 offen sc1")
    A("v_mov_b32 v146, 0")
    l = when(f"s_cmp_eq_u32 s{RMT}, 1")
    A("buffer_load_dword v147, v146, s[20:23], s18 offen sc1")
    A.label(l)
    A("s_waitcnt vmcnt(0)")
    l = when("s_cmp_eq_u32 s17, 0")
    check(144, "s29", 145)
    for i in range(4): A(f"buffer_load_dwordx4 v1, s[20:23], s30 offen offset:{1024*i} sc1 lds")
    A.label(l)
    l = when(f"s_cmp_eq_u32 s{RMT}, 1")
    check(146, "s18", 147)
    for i in range(3): A(f"buffer_load_dwordx4 v[{120+4*i}:{123+4*i}], v1, s[20:23], s19 offen offset:{1024*i} sc1")
    A.label(l)
    stamp(A, 3)
    A("v_lshlrev_b32 v170, 3, v0")
    A("s_lshl_b32 s24, s6, 9"); A(f"s_add_u32 s24, s24, {GG_OFF}")
    A("buffer_load_dwordx2 v[168:169], v170, s[20:23], s24 offen sc1")
    A(f"v_mov_b32 v8, {FLG}")
    l = when("s_cmp_eq_u32 s16, 0")
    if OPT["split"]:
        for v in (2, 3, 4): A(f"v_subrev_u32 v{v}, {HS}, v{v}")
        A("s_mov_b32 s8, 1"); A("s_mov_b32 s9, 1"); A(f"s_add_u32 s10, s{CH}, 2"); A("s_branch k_cl")
    else:
        A("s_barrier")
        lds_wait(A, 8, 9, "v_cmp_ne_u32 vcc, 0", sleep=4)
        A("s_branch k_fin")
    A.label(l)
    l = when(f"s_cmp_eq_u32 s{RMT}, 1")
    A("s_waitcnt vmcnt(1)")
    for i in range(12): A(f"v_add_f32 v{ACC+i}, v{ACC+i}, v{120+i}")
    A.label(l)
    if OPT["defer"]:
        A(f"s_mov_b32 m0, s{sL}"); A("s_mov_b32 s14, 4")
        lds_wait(A, 8, 9, "v_cmp_ne_u32 vcc, 0", off=40)
        A("s_setprio 3"); A("s_branch k_w")
        A.label("k_hret")
        A("s_setprio 0"); A("s_nop 3")
        kexp0(A); kexp1(A)
        for i in range(32): A(f"v_mov_b32 v{172+i}, 0")
    else:
        kexp0(A)
        lds_wait(A, 8, 9, "v_cmp_ne_u32 vcc, 0", off=40)
        kexp1(A)
    kexp2(A)
    (convh if OPT['split'] else conv)(A)

def finpre(A):
    sH = LCH; sL = REG
    A("s_mul_i32 s26, s7, 2560"); A("s_lshr_b32 s25, s6, 2"); A("s_mul_i32 s25, s25, 20480"); A("s_add_u32 s26, s26, s25"); A(f"s_add_u32 s26, s26, {YF_OFF}")
    A("v_and_b32 v3, 7, v0")
    A("v_lshrrev_b32 v8, 3, v0"); A("v_lshlrev_b32 v8, 12, v8"); A("v_lshl_add_u32 v8, v3, 4, v8")
    A("s_mul_i32 s27, s7, 327680"); A("s_lshl_b32 s28, s6, 7"); A("s_add_u32 s27, s27, s28"); A(f"s_add_u32 s27, s27, {YT_OFF}")
    A("v_bfe_u32 v2, v0, 2, 2"); A("v_lshlrev_b32 v2, 7, v2")
    A("v_lshrrev_b32 v3, 4, v0"); A("v_lshl_add_u32 v2, v3, 5, v2")
    A("v_and_b32 v3, 3, v0"); A("v_lshl_add_u32 v2, v3, 3, v2"); A(f"v_add_u32 v2, s{sL}, v2")
    A(f"s_mul_i32 s28, s{sH}, 48"); A(f"s_add_u32 s28, s28, s{sL}")
    A("v_lshlrev_b32 v3, 4, v0"); A("v_add_u32 v3, s28, v3")
    A("v_lshlrev_b32 v7, 4, v0"); A(f"v_add_u32 v7, s{sL}, v7")
    A("s_waitcnt vmcnt(0)")
    ok = A.newlabel("ok")
    A(f"v_cmp_ne_u32 vcc, s{TAG}, v169"); A(f"s_cbranch_vccz {ok}")
    poll(A, 170, "s24", 168, 2, tagreg=169)
    A.label(ok)
    A("v_cvt_pk_bf16_f32 v14, v168, 0"); A("v_lshlrev_b32 v15, 16, v14")
    A("v_sub_f32 v12, 1.0, v15"); A("v_cvt_pk_bf16_f32 v12, v12, 0"); A("v_lshlrev_b32 v13, 16, v12")
    A(f"ds_write_b128 v7, v[12:15] offset:{OMG}")
    A(f"s_lshl_b32 s29, s{sH}, 8"); A("s_add_u32 s12, s29, s26"); A("s_add_u32 s13, s12, 768"); A("s_add_u32 s14, s12, 1536")
    A(f"s_add_u32 s15, s26, {9*256}"); A(f"s_cmp_eq_u32 s{sH}, 0"); A("s_cselect_b32 s15, s15, s14")
    lp = A.newlabel("yl"); dn = A.newlabel("yl")
    A("s_mov_b32 s62, 0")
    A.label(lp)
    D = [32, 40, 48, 4]
    for i in range(3): A(f"s_load_dwordx8 s[{D[i]}:{D[i]+7}], s[20:21], s{12+i} glc")
    A("s_load_dwordx4 s[8:11], s[20:21], s15 glc"); A("s_load_dwordx4 s[16:19], s[20:21], s15 offset:16 glc")
    A("s_addk_i32 s62, 1")
    A("s_waitcnt lgkmcnt(0)")
    regs = list(range(32, 56)) + [8, 9, 10, 11, 16, 17, 18, 19]
    A("s_and_b64 s[28:29], s[32:33], s[34:35]"); A("s_or_b64 s[30:31], s[32:33], s[34:35]")
    for r in regs[4::2]:
        A(f"s_and_b64 s[28:29], s[28:29], s[{r}:{r+1}]"); A(f"s_or_b64 s[30:31], s[30:31], s[{r}:{r+1}]")
    A("s_and_b32 s28, s28, s29"); A("s_or_b32 s30, s30, s31")
    A(f"s_xor_b32 s28, s28, s{TAG}"); A(f"s_xor_b32 s30, s30, s{TAG}"); A("s_or_b32 s28, s28, s30")
    A(f"s_cbranch_scc0 {dn}")
    A(f"s_sleep {OPT['psleep']}")
    A(f"s_cmpk_lt_u32 s62, 0x{SPIN:x}"); A(f"s_cbranch_scc1 {lp}")
    A.label(dn)
    for i in range(4):
        A(f"s_add_u32 s28, s{sH}, {3*i}")
        if i == 3: A(f"s_cmp_lg_u32 s{sH}, 0"); A(f"s_cbranch_scc1 {dn}x")
        A("s_lshl_b32 s28, s28, 15"); A(f"s_add_u32 m0, s{sL}, {1024*i}"); A("s_add_u32 s28, s28, s27")
        A("buffer_load_dwordx4 v8, s[20:23], s28 offen sc1 lds")
    A.label(dn + "x")
    stamp(A, 7)
    A("s_waitcnt vmcnt(0)")
    for i in range(4):
        A(f"ds_read_b64_tr_b16 v[{8+4*i}:{9+4*i}], v2 offset:{1024*i}")
        A(f"ds_read_b64_tr_b16 v[{10+4*i}:{11+4*i}], v2 offset:{1024*i+512}")
    for i in range(4):
        A(f"s_waitcnt lgkmcnt({6-i})" if i < 3 else "s_waitcnt lgkmcnt(3)")
        A(f"ds_write_b128 v3, v[{8+4*i}:{11+4*i}] offset:{A2O + A2S*i}")
    stamp(A, 8)

def build():
    A = Asm(); A.later = []
    A.raw(f"; @launch grid=(256,1,1) block=(512,1,1) lds={LDS_BYTES}")
    A.raw('.amdgcn_target "amdgcn-amd-amdhsa--gfx950"')
    kernel_begin(A, NAME)
    A("s_cmp_ge_u32 s2, 256"); A("s_cbranch_scc1 k_end")
    if OPT["lite"]: A("s_memrealtime s[92:93]")
    else: stamp_begin(A)
    if OPT["rt"]: A("s_mov_b32 s64, s92")
    if OPT["probe"] >= 0:
        A("s_memrealtime s[64:65]"); A("s_waitcnt lgkmcnt(0)"); A("s_mov_b32 s66, s64")
    A("s_getpc_b64 s[24:25]")
    A.label("k_pc")
    A("s_load_dwordx16 s[32:47], s[0:1], 0")
    A(f"s_lshr_b32 s{RR}, s2, 3")
    A("v_lshrrev_b32 v1, 6, v0"); A(f"v_lshl_add_u32 v2, v1, 5, s{RR}"); A("v_lshlrev_b32 v2, 7, v2")
    A("v_min_u32 v2, k_last - k_pc, v2")
    A("v_mov_b32 v5, s25"); A("v_add_co_u32 v4, vcc, s24, v2"); A("v_addc_co_u32 v5, vcc, 0, v5, vcc")
    A("global_load_dword v15, v[4:5], off")
    A("v_readfirstlane_b32 s3, v1")
    A("s_load_dwordx8 s[48:55], s[0:1], 64")
    A("s_load_dwordx4 s[56:59], s[0:1], 96")
    A("s_load_dwordx2 s[20:21], s[0:1], 112")
    A("v_and_b32 v0, 63, v0"); A(f"s_and_b32 s{XCD}, s2, 7")
    A("s_cmp_lg_u32 s3, 4"); A("s_cbranch_scc1 k_k")
    A("v_lshlrev_b32 v8, 2, v0"); A(f"v_add_u32 v8, {FLG}, v8"); A("v_mov_b32 v9, 1")
    A("ds_write_b32 v8, v9")
    if OPT["lay"] in (1, 2):
        loader(A); A("s_branch k_post")
        if OPT["lay"] == 2: A.raw(".p2align 7")
    else: A("s_branch k_l")
    A.label("k_k")
    ev = [(0,1,1,2),(1,1,1,1),(1,2,2,1),(2,1,1,1),(0,0,0,0),(0,0,0,1),(1,0,0,2),(2,0,0,1)]
    if OPT["defer"] == 2: ev[0] = (0,1,2,1)
    od = [(0,1,1,1),(0,2,2,1),(1,1,1,1),(1,2,2,1),(0,0,0,0),(0,0,0,2),(1,0,0,2),(2,0,2,0)]
    enc = lambda t: sum((r | (sl << 2) | (p << 4) | (c << 6)) << (8*i) for i, (r, sl, p, c) in enumerate(t))
    A(f"s_mov_b32 s10, 0x{enc(ev) & 0xffffffff:x}"); A(f"s_mov_b32 s11, 0x{enc(ev) >> 32:x}")
    A(f"s_lshr_b32 s18, s{RR}, 1"); A("s_lshl_b32 s18, s18, 3"); A(f"s_add_u32 s18, s18, s{XCD}")
    A(f"s_and_b32 s8, s{RR}, 1")
    A(f"s_cselect_b32 s10, 0x{enc(od) & 0xffffffff:x}, s10"); A(f"s_cselect_b32 s11, 0x{enc(od) >> 32:x}, s11")
    A("s_lshl_b32 s9, s3, 3"); A("s_lshr_b64 s[10:11], s[10:11], s9")
    A(f"s_and_b32 s{LCH}, s10, 3"); A("s_bfe_u32 s17, s10, 0x20004"); A("s_bfe_u32 s16, s10, 0x20006")
    if OPT["defer"] == 2:
        A("s_lshl_b32 s9, s8, 3"); A("s_add_u32 s9, s9, s3"); A("s_cmp_eq_u32 s9, 5"); A("s_cselect_b32 s14, 2, 1")
    else:
        A("s_cmp_lt_u32 s3, 4"); A("s_cselect_b32 s14, s16, 1")
    A("s_mul_i32 s9, s8, 3"); A(f"s_add_u32 s9, s9, s{LCH}")
    A(f"s_cmp_eq_u32 s{LCH}, 2"); A("s_cselect_b32 s9, 2, s9"); A("s_cselect_b32 s13, s16, 0")
    A(f"s_mul_i32 s{CH}, s18, 5"); A(f"s_add_u32 s{CH}, s{CH}, s9")
    kpass(A)
    kgive(A)
    mwave(A)
    A.label("k_post")
    post(A)
    if OPT["lite"]:
        A("s_branch k_dg")
        def dg():
            A.label("k_dg")
            for i in range(13): A(f"s_mov_b32 s{64+2*i}, 0")
            stamp_end(A, 0); A("s_endpgm")
        A.later.append(dg)
    else: stamp_end(A, 0)
    if OPT["probe"] >= 0:
        A("s_waitcnt vmcnt(0)")
        stamp(A, 13)
        A("s_cmp_lg_u32 s3, 1"); A("s_cbranch_scc1 k_end")
        A(f"s_cmp_lg_u32 s2, {OPT['pwg']}"); A("s_cbranch_scc1 k_end")
        A("s_sub_u32 s70, s66, s64"); A(f"s_mul_i32 s70, s70, {OPT['pk']}"); A("s_min_u32 s70, s70, 20000")
        if OPT["xp"]:
            A("s_getreg_b32 s70, hwreg(HW_REG_XCC_ID)"); A("s_and_b32 s70, s70, 7"); A("s_add_u32 s70, s70, 1"); A("s_mul_i32 s70, s70, 1000")
        A("s_memrealtime s[68:69]"); A("s_waitcnt lgkmcnt(0)")
        A.label("k_pr")
        A("s_memrealtime s[72:73]"); A("s_waitcnt lgkmcnt(0)")
        A("s_sub_u32 s72, s72, s68"); A("s_cmp_lt_u32 s72, s70"); A("s_cbranch_scc1 k_pr")
    A.label("k_end")
    A("s_endpgm")
    A.label("k_h")
    A(f"s_mov_b32 s{RMT}, s13")
    hwave(A)
    A.label("k_fin")
    finpre(A)
    A("s_branch k_post")
    if not OPT["lay"]:
        A.label("k_l"); loader(A); A("s_branch k_post")
    for f in A.later: f()
    for sl, bk, reg, off in A.tail_code:
        A.label(sl); lds_wait(A, 7, reg, "v_cmp_ne_u32 vcc, 0", off=off); A(f"s_branch {bk}")
    A.label("k_last")
    A("s_endpgm")
    kernel_desc(A, NAME, 256, 102)
    A.lines = [l.replace("s_add_u32 s60, s60, s63", "s_add_u32 s60, s60, s3") for l in A.lines if "v_readfirstlane_b32 s63" not in l]
    return re.sub(r"^    (\w+:)$", r"\1", A.text(), flags=re.M)

if __name__ == "__main__":
    gen1.DIAG = "--diag" in sys.argv
    for a in sys.argv[2:]:
        if "=" in a:
            k, v = a.split("="); OPT[k] = eval(v)
    open(sys.argv[1], "w").write(build())
    if OPT["al"]:
        import align
        align.fix(sys.argv[1], OPT["al"])
```

```python
import sys, re, copy
from asmlib import *
import gen1
from gen1 import LOG2E, NLOG2E, LOG2E_LO, LN2, stamp, stamp_begin, stamp_end
NAME = "gated_mix__ssm_conv_s4d__swiglu_ffn__prompt_kernel"
OPT = dict(al=8, nfg=3, pk=4, pwg=77, probe=-1, xp=0, hdiag=0, mprio=2, epk=6, fpos=(3,0), thr2=0, cprio=1, psleep=1, lbar=42, ald=(12,3), wgo=1, m16=1, lay=0, ufirst=1, lite=0, g2x=0, krot=1, split=1, wup=30, ppos=22, mw=1, pil=1, arr2=0, noy=0, hloc=0, rt=0, bg=7,  defer=0, alate=0)
H_OFF = 0
UR_OFF = 6291456
YT_OFF = UR_OFF + 2621440
GG_OFF = YT_OFF + 2621440
HF_OFF = GG_OFF + 16384
UF_OFF = HF_OFF + 128*256
YF_OFF = UF_OFF + 16*256
WF_OFF = YF_OFF + 8*80*256
KF_OFF = WF_OFF + 16*256
KP_OFF = KF_OFF + 128*128
LAST_OFF = KP_OFF + 128*3072
WDF_OFF = 12 << 20
WS_BYTES = 1 << 25
GB = 16384; UB = GB + 12288 + 32; STG = 41024
HB = 3*STG; HS = 13184
FLG = HB + 3*HS
FT = FLG + 120
GL = FT + 256
LDS_BYTES = GL + 256
RS = 272; SS = 16*RS
C0 = 64; C1 = C0 + 4160; CU = 8448
A2O = 4096; A2S = 1072; OMG = 8704
GR = 24576; URG = GR + 8192 + 64
TB2 = 2*STG; GXO = TB2 + 24576; GWO = TB2 + 34816
PB = 176
PR = 336; PW = 64*PR
SPIN = 0x3000
U, LOGA, LOGDT, DSK, WG, WU, WD, GW, OUT, DBG = 32, 34, 42, 44, 48, 50, 52, 54, 56, 58
XCD, RR, R5, CG, LCH, REG = 96, 97, 98, 99, 100, 101
CH, TAG, RMT = 60, 61, 47
_stamp0 = stamp
def stamp(A, i, real=False):
    if OPT["lite"]: return
    if OPT["hdiag"] and i != 1: return
    _stamp0(A, i, real or bool(OPT['rt']))
    if OPT["probe"] == i:
        A("s_memrealtime s[66:67]"); A("s_waitcnt lgkmcnt(0)")
def P2(b): return f"v[{b}:{b+1}]"

def lds_wait(A, vaddr, vtmp, cond, off=0, sleep=0):
    l = A.newlabel("lw"); d = A.newlabel("lw")
    A("s_mov_b32 s62, 0")
    A.label(l)
    A(f"ds_read_b32 v{vtmp}, v{vaddr} offset:{off}")
    A("s_addk_i32 s62, 1")
    A("s_waitcnt lgkmcnt(0)")
    A(f"{cond}, v{vtmp}")
    A(f"s_cbranch_vccz {d}")
    if sleep: A(f"s_sleep {sleep}")
    A("s_cmpk_lt_u32 s62, 0x7000")
    A(f"s_cbranch_scc1 {l}")
    A.label(d)

def poll(A, vaddr, soff, vdst, n=1, tagreg=None):
    l = A.newlabel("pl"); d = A.newlabel("pl")
    tagreg = vdst if tagreg is None else tagreg
    A("s_mov_b32 s62, 0")
    A.label(l)
    A(f"buffer_load_dword{'x2' if n == 2 else ''} {vr(vdst, n)}, v{vaddr}, s[20:23], {soff} offen sc1")
    A("s_addk_i32 s62, 1")
    A("s_waitcnt vmcnt(0)")
    A(f"v_cmp_ne_u32 vcc, s{TAG}, v{tagreg}")
    A(f"s_cbranch_vccz {d}")
    A(f"s_sleep {OPT['psleep']}")
    A(f"s_cmpk_lt_u32 s62, 0x{SPIN:x}")
    A(f"s_cbranch_scc1 {l}")
    A.label(d)

def flag_store(A, soff, vt, rep=1, stride=0, wait=True):
    A(f"v_mov_b32 v{vt}, s{TAG}")
    A(f"v_mul_u32_u24 v{vt+1}, {stride}, v0")
    A(f"s_mov_b64 exec, {(1 << rep) - 1}")
    if wait: A("s_waitcnt vmcnt(0)")
    A(f"buffer_store_dword v{vt}, v{vt+1}, s[20:23], {soff} offen sc1")
    A("s_mov_b64 exec, -1")

def tag_get(A, vt, issued=False):
    l = A.newlabel("tg"); d = A.newlabel("tg")
    if not issued: A(f"s_load_dword s{TAG}, s[{DBG}:{DBG+1}], 0")
    A("s_mov_b32 s62, 0")
    A("s_waitcnt lgkmcnt(0)")
    A.label(l)
    A(f"s_cmp_lg_u32 s{TAG}, 0"); A(f"s_cbranch_scc1 {d}")
    A(f"v_mov_b32 v{vt}, 0")
    A(f"global_load_dword v{vt}, v{vt}, s[{DBG}:{DBG+1}] sc1")
    A("s_addk_i32 s62, 1")
    A("s_waitcnt vmcnt(0)")
    A(f"v_readfirstlane_b32 s{TAG}, v{vt}")
    A(f"s_sleep {OPT['psleep']}")
    A(f"s_cmpk_lt_u32 s62, 0x{SPIN:x}"); A(f"s_cbranch_scc1 {l}")
    A.label(d)

def spoll_issue(A, soff):
    A(f"s_load_dwordx16 s[32:47], s[20:21], {soff} glc"); A(f"s_load_dwordx8 s[24:31], s[20:21], {soff} offset:64 glc")
def spoll(A, soff, sleep, issued=False):
    l = A.newlabel("sp"); d = A.newlabel("sp"); c = A.newlabel("sp")
    A("s_mov_b32 s62, 0")
    if issued: A(f"s_branch {c}")
    A.label(l)
    spoll_issue(A, soff)
    A.label(c)
    A("s_addk_i32 s62, 1")
    A("s_waitcnt lgkmcnt(0)")
    A("s_and_b64 s[10:11], s[24:25], s[26:27]"); A("s_or_b64 s[12:13], s[24:25], s[26:27]")
    for r in range(28, 48, 2):
        A(f"s_and_b64 s[10:11], s[10:11], s[{r}:{r+1}]"); A(f"s_or_b64 s[12:13], s[12:13], s[{r}:{r+1}]")
    A("s_and_b32 s10, s10, s11"); A("s_or_b32 s12, s12, s13")
    A(f"s_xor_b32 s10, s10, s{TAG}"); A(f"s_xor_b32 s12, s12, s{TAG}"); A("s_or_b32 s10, s10, s12")
    A(f"s_cbranch_scc0 {d}")
    A(f"s_sleep {sleep}")
    A(f"s_cmpk_lt_u32 s62, 0x{SPIN:x}"); A(f"s_cbranch_scc1 {l}")
    A.label(d)

def xtask(A, d, t):
    A(f"s_lshr_b32 s{d}, s{RR}, 1"); A(f"s_lshl_b32 s{d}, s{d}, 3"); A(f"s_add_u32 s{d}, s{d}, s{XCD}"); A(f"s_add_u32 s{d}, s{d}, 240")
    A(f"s_and_b32 s{t}, s{RR}, 1"); A(f"s_cselect_b32 s{d}, s{d}, 999")

def tiles(A):
    A(f"s_mul_i32 s{R5}, s{RR}, 52"); A(f"s_lshr_b32 s{R5}, s{R5}, 8"); A(f"s_and_b32 s{CG}, s{XCD}, 3"); A(f"s_lshr_b32 s6, s{XCD}, 2")
    A(f"s_sub_u32 s4, s6, s{R5}"); A("s_mul_i32 s4, s4, 5"); A(f"s_add_u32 s4, s4, s{RR}")
    A(f"s_mul_i32 s5, s{CG}, 6"); A(f"s_add_u32 s5, s5, s{R5}")
    A(f"s_lshl_b32 s7, s{CG}, 1"); A("s_add_u32 s7, s7, s6"); A("s_lshl_b32 s7, s7, 1"); A(f"s_add_u32 s7, s7, s{RR}"); A("s_sub_u32 s7, s7, 30")
    A("s_cmp_ge_u32 s2, 240"); A("s_cselect_b32 s4, 15, s4"); A("s_cselect_b32 s5, s7, s5")
    if OPT["arr2"]:
        A(f"s_lshl_b32 s6, s{XCD}, 2"); A(f"s_and_b32 s7, s{RR}, 3"); A("s_add_u32 s6, s6, s7"); A(f"s_lshr_b32 s7, s{RR}, 2")
    else:
        A(f"s_lshr_b32 s6, s{XCD}, 1"); A("s_lshl_b32 s6, s6, 3"); A(f"s_and_b32 s7, s{RR}, 7"); A("s_add_u32 s6, s6, s7")
        A(f"s_and_b32 s7, s{XCD}, 1"); A("s_lshl_b32 s7, s7, 2"); A(f"s_lshr_b32 s22, s{RR}, 3"); A("s_add_u32 s7, s7, s22")
    A("s_mov_b32 s22, 0x%x" % WS_BYTES); A("s_mov_b32 s23, 0x20000")

def loader(A):
    def taddr():
        A(f"s_and_b32 s24, s{RR}, 15"); A("s_mul_i32 s24, s24, 12288");
        A(f"s_and_b32 s25, s{XCD}, 3"); A("s_lshl_b32 s25, s25, 1"); A(f"s_lshr_b32 s26, s{XCD}, 2"); A("s_add_u32 s25, s25, s26"); A("s_mul_i32 s25, s25, 384")
        A("s_add_u32 s24, s24, s25")
        A("v_min_u32 v18, 59, v0"); A("v_mul_u32_u24 v19, 43, v18"); A("v_lshrrev_b32 v19, 9, v19")
        A("v_mul_u32_u24 v9, 171, v18"); A("v_lshrrev_b32 v9, 9, v9")
        A("v_mul_u32_u24 v19, %d, v19" % (196608 - 4*3072)); A("v_mul_u32_u24 v9, %d, v9" % (3072 - 384))
        A("v_lshl_add_u32 v18, v18, 7, v19"); A("v_add3_u32 v18, v18, v9, s24")
        A(f"s_cmp_ge_u32 s{RR}, 16")
    if not OPT["ufirst"]: taddr()
    A("v_lshrrev_b32 v8, 3, v0"); A("v_mul_u32_u24 v8, 1280, v8"); A("v_and_b32 v10, 7, v0"); A("v_lshl_add_u32 v16, v10, 4, v8")
    A("s_and_b32 s26, s2, 31"); A("s_lshr_b32 s27, s2, 5")
    A("s_mul_i32 s28, s26, 81920"); A("s_lshl_b32 s27, s27, 7"); A("s_add_u32 s28, s28, s27")
    A("s_mov_b32 s10, 2621440"); A("s_mov_b32 s11, 0x20000")
    def touch1():
        A(f"s_cmp_ge_u32 s{RR}, 16"); A(f"s_cselect_b32 s24, s{WU}, s{WG}"); A(f"s_cselect_b32 s25, s{WU+1}, s{WG+1}")
        A("global_load_dword v20, v18, s[24:25]")
    A("s_waitcnt lgkmcnt(0)")
    A(f"s_mov_b32 s8, s{U}"); A(f"s_mov_b32 s9, s{U+1}")
    A("s_barrier")
    stamp(A, 1)
    if not OPT["ufirst"]: touch1()
    def utile(h):
        for i in range(8):
            A(f"s_mov_b32 m0, {TB2 + 8192*h + 1024*i}"); A(f"v_xor_b32 v17, {16*i}, v16")
            A("buffer_load_dwordx4 v17, s[8:11], s28 offen lds"); A("s_add_u32 s28, s28, 10240")
    n1 = A.newlabel("n1"); n2 = A.newlabel("n2")
    if OPT["ufirst"]:
        A("s_cmp_ge_u32 s2, 240"); A(f"s_cbranch_scc1 {n1}")
        utile(0)
        A.label(n1)
        taddr(); touch1()
        A("s_cmp_ge_u32 s2, 240"); A(f"s_cbranch_scc1 {n2}")
    else:
        A("s_cmp_ge_u32 s2, 240"); A(f"s_cbranch_scc1 {n2}")
        utile(0)
    A(f"s_mov_b32 s12, s{WD}"); A(f"s_mov_b32 s13, s{WD+1}"); A("s_mov_b32 s14, 1966080"); A("s_mov_b32 s15, 0x20000")
    A("s_mul_i32 s27, s2, 2731"); A("s_lshr_b32 s27, s27, 16"); A("s_mul_i32 s26, s27, 24"); A("s_sub_u32 s26, s2, s26")
    A("s_mul_i32 s45, s26, 81920"); A("s_lshl_b32 s27, s27, 7"); A("s_add_u32 s45, s45, s27"); A("s_sub_u32 s45, s45, 10240")
    for i in range(8):
        A(f"s_mov_b32 m0, {TB2 + 8192 + 1024*i}"); A("s_add_u32 s45, s45, 10240")
        A("buffer_load_dwordx4 v16, s[12:15], s45 offen lds")
    xtask(A, 27, 26)
    A("s_cmp_ge_u32 s27, 320"); A(f"s_cbranch_scc1 {n2}")
    A("s_and_b32 s26, s27, 31"); A("s_lshr_b32 s27, s27, 5")
    A("s_mul_i32 s28, s26, 81920"); A("s_lshl_b32 s27, s27, 7"); A("s_add_u32 s28, s28, s27")
    utile(2)
    A.label(n2)
    A("v_lshlrev_b32 v1, 4, v0"); A("v_mov_b32 v14, 0x7ffffff0")
    A(f"s_mov_b32 s16, s{GW}"); A(f"s_mov_b32 s17, s{GW+1}"); A("s_mov_b32 s18, 1280"); A("s_mov_b32 s19, 0x20000")
    A("s_mul_i32 s46, s2, 10240")
    for (o, n) in ((0, 4), (4096, 4), (8192, 2)):
        A(f"s_mov_b32 m0, {GXO + o}"); A(f"s_add_u32 s28, s46, {o}")
        for i in range(n): A(f"buffer_load_dwordx4 v1, s[8:11], s28 offen offset:{1024*i} lds")
    A(f"s_mov_b32 m0, {GWO}"); A("v_add_u32 v19, %d, v18" % (5*196608))
    for i in range(2): A(f"buffer_load_dwordx4 v1, s[16:19], 0 offen offset:{1024*i} lds")
    A(f"s_mov_b32 m0, {FT}"); A("s_nop 0")
    A("buffer_load_dword v14, s[8:11], 0 offen lds")
    A("global_load_dword v21, v19, s[24:25]")
    tiles(A)
    A("v_lshrrev_b32 v9, 4, v0"); A("v_xor_b32 v9, v9, v10"); A("v_lshl_add_u32 v2, v9, 4, v8")
    A("v_xor_b32 v9, 4, v9"); A("v_lshl_add_u32 v3, v9, 4, v8")
    A(f"v_add_u32 v3, {10240-1024}, v3"); A(f"v_add_u32 v4, {20480-2048}, v2"); A(f"v_add_u32 v5, {20480-2048}, v3")
    A("v_mov_b32 v51, 0")
    A("s_mov_b32 s29, 0"); A("s_mov_b32 s30, 0"); A(f"s_mov_b32 s31, {FT-4}")
    A(f"s_mov_b32 s12, s{WG}"); A(f"s_mov_b32 s13, s{WG+1}"); A("s_mov_b32 s14, 1966080"); A("s_mov_b32 s15, 0x20000")
    A(f"s_mov_b32 s16, s{WU}"); A(f"s_mov_b32 s17, s{WU+1}"); A("s_mov_b32 s18, 1966080"); A("s_mov_b32 s19, 0x20000")
    def flag(fill):
        A("s_mov_b32 m0, s31"); A(fill)
        A("buffer_load_dword v14, s[8:11], 0 offen lds")
    def tail():
        flag("s_sub_u32 s31, s31, 4")
        A(f"s_add_u32 s29, s29, {STG}"); A(f"s_cmp_eq_u32 s29, {3*STG}"); A("s_cselect_b32 s29, 0, s29")
        A("s_add_u32 s30, s30, 1")
    def gloop(reg):
        l1 = A.newlabel("ld"); cnt = [0]
        extra = {1: [f"s_add_u32 s33, s29, {STG}"], 2: [f"s_cmp_eq_u32 s33, {3*STG}", "s_cselect_b32 s33, 0, s33"], 5: ["s_add_u32 s30, s30, 1"],
                 (30 if reg else 26): ["s_add_u32 s26, s26, 128"], (35 if reg else 37): ["s_add_u32 s27, s27, 196608"], 40: ["s_mov_b32 s29, s33"]}
        def dma(x):
            A(x); cnt[0] += 1
            for e in extra.get(cnt[0], []): A(e)
            if cnt[0] == OPT["lbar"]:
                sk = A.newlabel("sk")
                A("s_bitcmp0_b32 s36, s30"); A(f"s_cbranch_scc1 {sk}")
                A(f"s_waitcnt vmcnt({cnt[0]})")
                A("s_barrier")
                A.label(sk)
        def xq(q):
            A(f"s_add_u32 m0, s29, {4096*q}"); A(f"s_add_u32 s28, s26, {40960*q}")
            for i in range(4): dma(f"buffer_load_dwordx4 v{2+i}, s[8:11], s28 offen offset:{1024*i} lds")
        def wq(q):
            n = 4 if reg else 3
            A(f"s_add_u32 m0, s29, {(GR if reg else GB) + 1024*n*q}"); A(f"s_add_u32 s28, s27, {(98304 if reg else 49152)*q}")
            for i in range(n): dma(f"buffer_load_dwordx4 v{10+i}, s[12:15], s28 offen offset:{1024*i} lds")
            A(f"s_add_u32 m0, s29, {(URG if reg else UB) + 1024*n*q}"); A("s_nop 0")
            for i in range(n): dma(f"buffer_load_dwordx4 v{10+i}, s[16:19], s28 offen offset:{1024*i} lds")
        def fl():
            A("s_mov_b32 m0, s31"); A("s_sub_u32 s31, s31, 4")
            dma("buffer_load_dword v14, s[8:11], 0 offen lds")
        A.label(l1)
        if reg:
            wq(0)
            for q in range(6): xq(q)
            fl(); wq(1); fl()
        else:
            wq(0); wq(1); xq(0); xq(1); xq(2); xq(3); fl(); wq(2); wq(3); fl()
        assert cnt[0] == 42
        A("s_cmp_lt_u32 s30, 10"); A(f"s_cbranch_scc1 {l1}")
    A("s_mov_b32 s36, 0x3fc")
    A("s_cmp_ge_u32 s2, 240"); A("s_cbranch_scc1 k_ls")
    A("v_lshrrev_b32 v9, 3, v0"); A("v_mul_u32_u24 v9, 3072, v9")
    if OPT["m16"]:
        A("v_bfe_u32 v22, v0, 4, 1"); A("v_and_b32 v10, 7, v0"); A("v_xor_b32 v22, v22, v10"); A("v_lshl_add_u32 v10, v22, 4, v9")
        A("v_xor_b32 v11, 64, v10"); A(f"v_add_u32 v11, {24576-1024}, v11")
        A(f"v_add_u32 v12, {2*(24576-1024)}, v10"); A(f"v_add_u32 v13, {2*(24576-1024)}, v11")
    else:
        for i in range(1, 4): A(f"v_add_u32 v{10+i}, {(24576-1024)*i}, v10")
    A("s_mul_i32 s26, s4, 245760"); A("s_lshl_b32 s27, s5, 7")
    gloop(True)
    A.label("k_lj")
    def special():
        A.label("k_ls")
        for i in range(3):
            A(f"v_add_u32 v9, {64*i}, v0"); A("v_mul_u32_u24 v22, 5462, v9"); A("v_lshrrev_b32 v22, 16, v22")
            A("v_mul_u32_u24 v22, 2880, v22"); A(f"v_lshl_add_u32 v{10+i}, v0, 4, v22")
        A("s_mul_i32 s26, s4, 163840"); A("s_mul_i32 s27, s5, 192")
        gloop(False)
        A("s_branch k_lj")
    A.later.append(special)
    stamp(A, 2)
    if OPT["split"]:
        tag_get(A, 2)
        A("v_and_b32 v17, 15, v0"); A("v_lshrrev_b32 v18, 4, v0"); A(f"s_mov_b32 s{REG}, {HB}"); A("v_mov_b32 v170, 0")
        caddr(A)
        A(f"s_lshr_b32 s10, s{RR}, 1"); A("s_lshl_b32 s10, s10, 3"); A(f"s_add_u32 s10, s10, s{XCD}"); A("s_mul_i32 s10, s10, 5")
        A(f"s_and_b32 s8, s{RR}, 1"); A("s_cselect_b32 s9, 1, 3"); A("s_mul_i32 s8, s8, 3"); A("s_add_u32 s10, s10, s8"); A("s_mov_b32 s8, 0")
        convl(A)
        return
    A("s_barrier")
    if not OPT["mw"]:
        if OPT["wgo"]:
            A("v_and_b32 v2, 3, v0"); A("v_lshlrev_b32 v2, 2, v2"); A(f"v_add_u32 v2, {FLG+4}, v2")
            lds_wait(A, 2, 3, "v_cmp_ne_u32 vcc, 0", sleep=1)
        A("s_mul_i32 s26, s7, 245760"); A(f"s_add_u32 s26, s26, {WDF_OFF + 30720}")
        l2 = A.newlabel("ld"); l4 = A.newlabel("ld")
        A.label(l2)
        for w in range(4):
            for (o, n) in ((0, 4), (4096, 4), (8192, 2)):
                A(f"s_add_u32 m0, s29, {10240*w + o}"); A(f"s_add_u32 s28, s26, {61440*w + o}")
                if OPT["thr2"]: A(f"s_waitcnt vmcnt({OPT['thr2']})")
                for i in range(n): A(f"buffer_load_dwordx4 v1, s[20:23], s28 offen offset:{1024*i} sc1 lds")
        tail()
        A("s_add_u32 s26, s26, 10240")
        A("s_cmp_lt_u32 s30, 13"); A(f"s_cbranch_scc1 {l2}")
    stamp(A, 3)

ACC1 = 64
def msetup(A):
    A("s_lshr_b32 s8, s3, 1"); A("s_and_b32 s9, s3, 1")
    A(f"v_mov_b32 v7, {FT - 64}")
    A("s_mov_b32 s54, 0x%x" % NLOG2E); A("s_mov_b32 s55, 0x%x" % NLOG2E)
    A("s_lshl_b32 s52, s6, 2"); A("s_add_u32 s52, s52, s3"); A("s_lshl_b32 s52, s52, 8"); A(f"s_add_u32 s52, s52, {HF_OFF}")
    A("s_mul_i32 s53, s6, 196608"); A("s_mul_i32 s10, s3, 49152"); A("s_add_u32 s53, s53, s10")
    A("s_mul_i32 s10, s3, 10240"); A("v_add_u32 v11, s10, v1")
    A("s_cmp_ge_u32 s2, 240"); A("s_cbranch_scc1 k_ss")
    if True:
        A("v_bfe_u32 v12, v0, 1, 3"); A("v_xor_b32 v12, v12, v18"); A("v_lshlrev_b32 v2, 7, v17"); A("v_lshl_add_u32 v2, v12, 4, v2")
        A("s_mul_i32 s10, s8, 0x3000"); A("v_add_u32 v2, s10, v2"); A("v_xor_b32 v3, 64, v2")
        A("v_bfe_u32 v12, v0, 2, 2"); A("v_lshl_add_u32 v12, v18, 3, v12"); A("v_lshlrev_b32 v6, 7, v12")
        A("v_bfe_u32 v12, v0, 4, 1"); A("v_xor_b32 v12, s9, v12"); A("v_lshl_add_u32 v6, v12, 6, v6")
        A("v_bfe_u32 v12, v0, 1, 1"); A("v_lshl_add_u32 v6, v12, 5, v6")
        A("v_bfe_u32 v12, v0, 3, 1"); A("v_lshl_add_u32 v6, v12, 4, v6")
        A("v_and_b32 v12, 1, v0"); A("v_lshl_add_u32 v6, v12, 3, v6"); A(f"v_add_u32 v6, {GR}, v6")
        A("v_xor_b32 v8, 16, v6"); A("v_mov_b32 v10, v1"); A("v_add_u32 v9, 1024, v1")
    A("s_lshl_b32 s11, s4, 1"); A("s_add_u32 s11, s11, s8"); A("s_mul_i32 s11, s11, 3")
    A("s_lshl_b32 s12, s5, 1"); A("s_add_u32 s12, s12, s9"); A("s_lshl_b32 s12, s12, 12")
    for a in range(3):
        A(f"s_add_u32 s13, s11, {a}"); A("s_lshr_b32 s10, s13, 1"); A("s_mul_i32 s10, s10, 196608")
        A("s_and_b32 s13, s13, 1"); A("s_lshl_b32 s13, s13, 11"); A("s_add_u32 s10, s10, s13"); A(f"s_add_u32 s{48+a}, s10, s12")
    A("s_mul_i32 s51, s4, 12"); A(f"s_add_u32 s51, s51, s{CG}"); A("s_lshl_b32 s51, s51, 8")
    A(f"s_lshl_b32 s10, s{R5}, 1"); A("s_add_u32 s10, s10, s9"); A("s_lshl_b32 s10, s10, 3")
    A("s_add_u32 s51, s51, s10"); A(f"s_add_u32 s51, s51, {HF_OFF}")
    A("s_lshl_b32 s46, s8, 11"); A("s_lshl_b32 s47, s8, 2"); A("s_add_u32 s47, s47, 0x400")
    def special():
        A.label("k_ss")
        A("v_and_b32 v8, 31, v0"); A("v_lshrrev_b32 v9, 5, v0")
        A("v_bfe_u32 v10, v0, 1, 3"); A("v_xor_b32 v10, v10, v9")
        A("s_lshl_b32 s10, s8, 13")
        A("v_lshlrev_b32 v14, 7, v8"); A("v_add_u32 v14, s10, v14")
        for ks in range(4):
            A(f"v_xor_b32 v12, {2*ks}, v10"); A(f"v_lshl_add_u32 v{2+ks}, v12, 4, v14")
        A("v_and_b32 v10, 15, v0"); A("v_lshlrev_b32 v10, 4, v10"); A("v_lshl_add_u32 v10, v9, 8, v10")
        A("v_bfe_u32 v13, v0, 4, 1"); A("v_lshl_add_u32 v10, v13, 10, v10")
        A("v_bfe_u32 v12, v0, 2, 2"); A("v_lshl_add_u32 v12, v9, 3, v12"); A("v_and_b32 v14, 3, v0"); A("v_lshlrev_b32 v14, 3, v14")
        A("v_mul_u32_u24 v6, 192, v12"); A("v_add_u32 v6, v6, v14")
        A(f"v_mul_u32_u24 v13, {UB-GB}, v13"); A("s_mul_i32 s10, s9, 96"); A(f"s_add_u32 s10, s10, {GB}"); A("v_add3_u32 v6, v6, v13, s10")
        A("v_add_u32 v9, 2048, v10")
        A("s_add_u32 s18, s8, 30")
        A("s_mul_i32 s11, s18, 196608"); A("s_mul_i32 s12, s5, 6"); A("s_mul_i32 s13, s9, 3"); A("s_add_u32 s12, s12, s13")
        for nt in range(3):
            A(f"s_add_u32 s13, s12, {nt}")
            A("s_lshr_b32 s10, s13, 1"); A("s_lshl_b32 s10, s10, 12")
            A("s_and_b32 s13, s13, 1"); A("s_lshl_b32 s13, s13, 9"); A("s_add_u32 s10, s10, s13")
            A(f"s_add_u32 s{48+nt}, s10, s11")
        A("s_lshl_b32 s51, s18, 2"); A("s_lshr_b32 s10, s5, 2"); A("s_add_u32 s51, s51, s10"); A("s_lshl_b32 s51, s51, 8")
        A("s_and_b32 s10, s5, 3"); A("s_lshl_b32 s10, s10, 1"); A("s_add_u32 s10, s10, s9"); A("s_mul_i32 s10, s10, 12")
        A("s_add_u32 s51, s51, s10"); A(f"s_add_u32 s51, s51, {HF_OFF}"); A("s_mov_b32 s46, 0"); A("s_mov_b32 s47, 8")
        A("s_branch k_nosetup")
    A.later.append(special)

def kgive(A):
    A("v_add_u32 v15, s19, v1")
    A("s_nop 4")
    for i in range(3): A(f"ds_write_b128 v15, v[{20+4*i}:{23+4*i}] offset:{1024*i}")

def mtasks(A):
    dn = A.newlabel("mt"); wd = A.newlabel("mt"); ur = A.newlabel("mt")
    A("s_sub_u32 s24, s3, 1"); A("s_cmp_ge_u32 s24, 3"); A(f"s_cbranch_scc1 {dn}")
    A("v_lshrrev_b32 v40, 3, v0"); A("v_and_b32 v41, 7, v0"); A(f"v_mov_b32 v42, {FT}")
    lds_wait(A, 42, 43, "v_cmp_ne_u32 vcc, 0", sleep=1)
    A("s_cmp_eq_u32 s3, 2"); A(f"s_cbranch_scc1 {wd}")
    A("s_mov_b32 s24, s2"); A(f"s_mov_b32 s25, {TB2}")
    A("s_cmp_eq_u32 s3, 1"); A(f"s_cbranch_scc1 {ur}")
    A("v_lshlrev_b32 v42, 4, v41"); A(f"v_add_u32 v42, {GXO}, v42"); A("v_mul_u32_u24 v43, 1280, v40"); A("v_add_u32 v43, v43, v42")
    for i in range(10):
        A(f"ds_read_b128 v[{160+4*i}:{163+4*i}], v43 offset:{128*i}")
        A(f"ds_read_b128 v[{200+4*i}:{203+4*i}], v42 offset:{GWO - GXO + 128*i}")
    A("v_mov_b32 v44, 0"); A("v_mov_b32 v45, 0"); A("v_lshlrev_b32 v46, 2, v0"); A(f"v_add_u32 v46, {GL}, v46")
    A("s_waitcnt lgkmcnt(0)")
    for k in range(40): A(f"v_dot2c_f32_bf16 v{44 + k % 2}, v{160+k}, v{200+k}")
    xtask(A, 24, 25)
    A(f"s_mov_b32 s25, {TB2 + 16384}"); A("s_cmp_ge_u32 s24, 320")
    A("v_add_f32 v44, v44, v45")
    A("ds_write_b32 v46, v44")
    A(f"s_cbranch_scc1 {dn}")
    A.label(ur)
    A("s_cmp_ge_u32 s2, 240"); A(f"s_cbranch_scc1 {dn}")
    A("v_xor_b32 v42, v40, v41"); A("v_lshlrev_b32 v42, 4, v42"); A("v_lshl_add_u32 v42, v41, 10, v42"); A("v_add_u32 v42, s25, v42")
    for e in range(8): A(f"ds_read_b128 v[{160+4*e}:{163+4*e}], v42 offset:{128*e}")
    A("v_lshlrev_b32 v43, 15, v40"); A("v_lshlrev_b32 v41, 4, v41"); A("v_sub_u32 v43, v43, v41"); A("v_add_u32 v43, 4080, v43")
    A("s_mov_b32 s28, 0x05040100"); A("s_mov_b32 s29, 0x07060302")
    A("s_lshr_b32 s25, s24, 5"); A("s_and_b32 s24, s24, 31")
    A("s_lshl_b32 s25, s25, 18"); A("s_lshl_b32 s24, s24, 7"); A("s_sub_u32 s25, s25, s24"); A(f"s_add_u32 s25, s25, {UR_OFF}")
    A("s_waitcnt lgkmcnt(0)")
    for i in range(8):
        o = 192 + 4*i
        for p in range(4):
            lo = 160 + 4*(7-2*p) + i//2; hi = 160 + 4*(6-2*p) + i//2
            A(f"v_perm_b32 v{o+p}, v{hi}, v{lo}, s{28 + (i&1)}")
        A(f"buffer_store_dwordx4 v[{o}:{o+3}], v43, s[20:23], s25 offen sc1")
        A("s_add_u32 s25, s25, 4096")
    A(f"s_branch {dn}")
    A.label(wd)
    A("s_cmp_ge_u32 s2, 240"); A(f"s_cbranch_scc1 {dn}")
    A("v_lshrrev_b32 v42, 5, v0"); A("v_lshlrev_b32 v42, 11, v42"); A("v_bfe_u32 v43, v0, 2, 3"); A("v_lshl_add_u32 v42, v43, 7, v42")
    A("v_and_b32 v43, 3, v0"); A("v_lshl_add_u32 v42, v43, 3, v42"); A(f"v_add_u32 v42, {TB2 + 8192}, v42")
    for dtl in range(4):
        for sg in range(2):
            o = 160 + 4*(2*dtl+sg)
            A(f"ds_read_b64_tr_b16 v[{o}:{o+1}], v42 offset:{4096*sg + 32*dtl}")
            A(f"ds_read_b64_tr_b16 v[{o+2}:{o+3}], v42 offset:{4096*sg + 32*dtl + 1024}")
    A("s_mul_i32 s25, s2, 2731"); A("s_lshr_b32 s25, s25, 16"); A("s_mul_i32 s24, s25, 24"); A("s_sub_u32 s24, s2, s24")
    A("s_mul_i32 s24, s24, 10"); A("s_lshl_b32 s25, s25, 2")
    for dtl in range(4):
        A(f"s_add_u32 s26, s25, {dtl}")
        A("s_mul_i32 s27, s26, 52429"); A("s_lshr_b32 s27, s27, 18"); A("s_mul_i32 s27, s27, 235"); A("s_add_u32 s26, s26, s27")
        A("s_add_u32 s26, s26, s24"); A("s_lshl_b32 s26, s26, 10"); A(f"s_add_u32 s26, s26, {WDF_OFF}"); A("s_add_u32 s27, s26, 5120")
        A(f"s_waitcnt lgkmcnt({12 - 4*dtl})")
        o = 160 + 8*dtl
        A(f"buffer_store_dwordx4 v[{o}:{o+3}], v1, s[20:23], s26 offen sc1")
        A(f"buffer_store_dwordx4 v[{o+4}:{o+7}], v1, s[20:23], s27 offen sc1")
    A.label(dn)

def mwave(A):
    mtasks(A)
    A("s_mov_b32 s16, 0x%x" % ((-2*STG) & 0xffffffff)); A(f"s_mov_b32 s17, {STG}")
    A("s_mov_b32 s11, 0"); A("s_mov_b32 s12, 0")
    A("s_mul_i32 s14, s7, 245760"); A("s_mul_i32 s15, s3, 61440"); A("s_add_u32 s14, s14, s15"); A(f"s_add_u32 s14, s14, {WDF_OFF}")
    if OPT["krot"]:
        if OPT["krot"] == 1: A("s_and_b32 s18, s6, 1")
        else: A("s_xor_b32 s18, s6, s7"); A("s_and_b32 s18, s18, 1")
        A("s_mul_i32 s15, s18, 30720"); A("s_add_u32 s14, s14, s15")
        A("s_mul_i32 s15, s18, 24576"); A("s_add_u32 s53, s53, s15")
        A("s_mul_i32 s15, s18, 49152"); A("s_sub_u32 s15, 4096, s15")
        A("s_mul_i32 s18, s18, 61440"); A("s_sub_u32 s18, 2048, s18")
    else:
        A("s_movk_i32 s15, 0x1000"); A("s_movk_i32 s18, 0x800")
    A("s_cmp_ge_u32 s2, 240")
    A("s_waitcnt lgkmcnt(0)")
    stamp(A, 12)
    A("s_cbranch_scc1 k_ms")
    F = [16, 36]
    AF = [160+4*i for i in range(24)] + [56, 60, 64, 68, 72, 76]
    def aload(n):
        r = [f"buffer_load_dwordx4 v[{AF[n]}:{AF[n]+3}], v1, s[20:23], s14 offen offset:{1024*(n % 4)} sc1"]
        if n % 4 == 3: r.append("s_add_u32 s14, s14, 4096")
        return r
    slows = []; na = [0]; NE = 22 if OPT["m16"] else 26
    def emit(items, q):
        for i in items:
            tags = i[2] if i[0] == "m" else [i[1]] if i[0] == "w" else []
            if tags:
                pos = max(len(q["ops"]) - 1 - q["ops"][::-1].index(t) for t in tags)
                if pos >= q["done"]:
                    n = min(14, len(q["ops"]) - 1 - pos)
                    q["done"] = len(q["ops"]) - n
                    A(f"s_waitcnt lgkmcnt({n})")
            if i[0] == "r": q["ops"].append(i[2])
            if i[0] != "w": A(i[1])
    def chk(rg, off):
        sl = A.newlabel("g1s"); bk = A.newlabel("g1b"); slows.append((sl, bk, rg, off))
        return [("x", f"v_cmp_ne_u32 vcc, 0, v{rg}"), ("x", f"s_cbranch_vccnz {sl}"), ("x", f"{bk}:")]
    def gemm16():
        na[0] = 0
        XS = [48, 52, 56, 60, 248, 252]; BG = OPT["bg"]
        def xr(n): return ("r", f"ds_read_b128 v[{XS[n % 6]}:{XS[n % 6]+3}], v{2 + (n // 6) % 2} offset:{2048*(n % 6)}", ("x", n))
        def wr(st, i):
            f, h = i // 2, i % 2; o = 16 + 16*(st % 2) + 4*f + 2*h
            return ("r", f"ds_read_b64_tr_b16 v[{o}:{o+1}], v{8 if f & 1 else 6} offset:{(URG-GR)*(f >> 1) + 4096*(st % 2) + 512*h}", ("w", st, i))
        def stage(s0, mode, zero=False, half=None):
            last = mode == 2; ca = mode in (3, 1); cb = mode in (1, 2); it = []
            dl = {0: "s13", 3: "s17", 1: "s16", 2: ""}[mode]
            slot = {}
            def put(g, m, x): slot.setdefault((g, m), []).append(x if isinstance(x, tuple) else ("x", x))
            n0 = 12*s0; st0 = 2*s0
            for i in range(8): put(1 + i // 3, i % 3, wr(st0 + 1, i))
            for g in range(6): put(g, 3, xr(n0 + g + 6))
            if cb:
                put(0, 0, ("r", "ds_read_b32 v12, v7", "flagB")); slot[(1, 0)] = [("w", "flagB")] + chk(12, 0) + slot[(1, 0)]
            if not last:
                if mode == 0:
                    put(BG, 0, ("w", ("x", n0 + 11))); put(BG, 0, "s_barrier"); put(BG - 1, 1, "s_waitcnt vmcnt(0)")
                else:
                    put(BG - 2, 2, ("r", "ds_read_b32 v13, v7 offset:4", "flag")); put(BG, 0, ("w", "flag"))
                    for x in chk(13, 4): put(BG, 0, x)
                seq = [wr(st0 + 2, 0), wr(st0 + 2, 1), xr(n0 + 12)] + [wr(st0 + 2, i) for i in range(2, 8)] + [xr(n0 + 12 + g) for g in range(1, BG - 6)]
                pos = [(g, m) for g in range(BG, 12) for m in range(3)]
                for x, p in zip(seq, pos): put(p[0], p[1], x)
                for g in range(max(BG, 7), 12): put(g, 3, xr(n0 + g + 6))
                if mode == 0:
                    put(0, 0, "s_add_u32 s12, s12, 1"); put(0, 1, "s_cmp_eq_u32 s12, 3"); put(0, 2, "s_cselect_b32 s13, s16, s17"); put(3, 2, "s_cselect_b32 s12, 0, s12")
                    put(5, 0, "s_add_u32 s11, s11, 1"); put(11, 2, "s_cmp_lt_u32 s11, 7")
                else: put(3, 2, "v_subrev_u32 v7, 8, v7")
                put(4, 0, f"v_add_u32 v2, {dl}, v2"); put(4, 1, f"v_add_u32 v6, {dl}, v6"); put(4, 2, f"v_add_u32 v8, {dl}, v8"); put(6, 0, f"v_add_u32 v3, {dl}, v3")
            else: put(8, 0, f"s_setprio {OPT['mprio']}")
            for g in range(12):
                if half is not None and g // 6 != half: continue
                n = n0 + g; st = st0 + g // 6; a = g % 6
                for m in range(4):
                    c = ACC1 + 16*(3*(a & 1) + a // 2) + 4*m; w = 16 + 16*(st % 2) + 4*m
                    need = ([("x", n)] if m == 0 else []) + ([("w", st, 7)] if a == 0 and m == 0 else [])
                    it.append(("m", f"v_mfma_f32_16x16x32_bf16 v[{c}:{c+3}], v[{w}:{w+3}], v[{XS[a]}:{XS[a]+3}], " + ("0" if zero else f"v[{c}:{c+3}]"), need))
                    it += slot.get((g, m), [])
                    if mode in (1, 2) and 24*(mode-1) + 2*g >= OPT["ald"][0] and na[0] < NE and (m == 1 or (m == 2 and g % 3 == 1)):
                        it += [("x", e) for e in aload(na[0])]; na[0] += 1
            return it
        A("s_barrier")
        stamp(A, 2)
        q = dict(ops=[], done=0); lp = A.newlabel("g1"); st1 = A.newlabel("g1e")
        tail = [i for i in stage(-1, 0) if i[0] == "r" and (i[2][1] >= 0)]
        emit(tail, q)
        q0 = copy.deepcopy(q)
        emit(stage(0, 0, zero=True, half=0), q0)
        A(f"s_branch {st1}")
        A.label(lp)
        emit(stage(0, 0, half=0), q)
        A.label(st1)
        emit(stage(0, 0, half=1), q)
        A(f"s_cbranch_scc1 {lp}")
        q["done"] = 0
        for k, mode in enumerate((3, 1, 2)): emit(stage(k + 1, mode), q)
        while na[0] < NE:
            for x in aload(na[0]): A(x)
            na[0] += 1
        return na[0]
    def gemm1(reg):
        na[0] = 0
        def reads(ks, f):
            b = F[f]
            if reg:
                w = lambda o, v: [f"ds_read_b64_tr_b16 v[{o}:{o+1}], v{v} offset:{2048*ks}", f"ds_read_b64_tr_b16 v[{o+2}:{o+3}], v{v} offset:{2048*ks + 512}"]
                return w(b, 6) + [f"ds_read_b128 v[{b+8+4*a}:{b+11+4*a}], v{2+ks} offset:{4096*a}" for a in range(3)] + w(b+4, 8)
            r = [f"ds_read_b128 v[{b}:{b+3}], v{2+ks}"]
            for nt in range(3):
                o = b + 8 + 4*nt
                r.append(f"ds_read_b64_tr_b16 v[{o}:{o+1}], v6 offset:{3072*ks + 32*nt}")
                r.append(f"ds_read_b64_tr_b16 v[{o+2}:{o+3}], v6 offset:{3072*ks + 32*nt + 768}")
            return r + [f"ds_read_b128 v[{b+4}:{b+7}], v{2+ks} offset:4096"]
        def mfmas(f):
            b = F[f]; r = []
            for p in range(2):
                for j in range(3):
                    c = ACC1 + 16*(3*p+j); pr = f"v[{b+4*p}:{b+4*p+3}]"; tr = f"v[{b+8+4*j}:{b+11+4*j}]"
                    r.append(f"v_mfma_f32_32x32x16_bf16 v[{c}:{c+15}], {pr if reg else tr}, {tr if reg else pr}, v[{c}:{c+15}]")
            return r
        if reg:
            PL = {0: [(1, 5)], 1: [(1, 6)], 2: [(2, 0)], 3: [(2, 1), (2, 2)], 4: [(2, 3)], 5: [(2, 4)]}
            need = {0: (0, 1, 2), 1: (3,), 2: (4,), 3: (5, 6), 4: (), 5: ()}; NR = 7; gB = 2; slots = (0, 1, 4, 5)
        else:
            PL = {0: [(1, 5), (1, 6)], 1: [(1, 7)], 2: [(2, 0)], 3: [(2, 1)], 4: [(2, 2), (2, 3)], 5: [(2, 4)]}
            need = {0: (0, 1, 2), 1: (3, 4), 2: (5, 6), 3: (7,), 4: (), 5: ()}; NR = 8; gB = 3; slots = (1, 2, 3, 5)
        def step_items(k, mode):
            last = mode == 2
            ks = k % 4; it = []; ms = mfmas(k % 2)
            ca = mode in (3, 1); cb = mode in (1, 2)
            held = []
            for g in range(6):
                it.append(("m", ms[g], [(k, r) for r in need[g]]))
                if ks == 2 and g == 2 and ca: it += [("w", "flag")] + chk(13, 4)
                if ks == 0 and g == gB and cb: it += [("w", "flagB")] + chk(12, 0)
                if mode == 0 and ks == 2 and g == OPT["nfg"]: it += [("w", (k+1, NR-1)), ("x", "s_barrier")]
                if last and ks == 2 and g == 5: it += [("x", f"s_setprio {OPT['mprio']}")]
                for (so, ri) in PL[g]:
                    if last and ks + so > 3: continue
                    held.append(("r", reads((k+so) % 4, (k+so) % 2)[ri], (k+so, ri)))
                if not (mode == 0 and ks == 2 and 2 <= g < OPT["nfg"]):
                    it += held; held = []
                ex = []
                dl = {0: "s13", 3: "s17", 1: "s16", 2: ""}[mode]
                if mode == 0:
                    if ks == 0 and g == 1: ex = ["s_add_u32 s12, s12, 1", "s_cmp_eq_u32 s12, 3"]
                    if ks == 0 and g == 2: ex = ["s_cselect_b32 s13, s16, s17", "s_cselect_b32 s12, 0, s12"]
                    if ks == 1 and g == 2: ex = ["s_add_u32 s11, s11, 1"]
                    if ks == 2 and g == 2: ex = ["s_waitcnt vmcnt(0)"]
                    if ks == 3 and g == 2: ex = ["s_cmp_lt_u32 s11, 7"]
                if not last:
                    if ks == 1 and g == 1: ex = [f"v_add_u32 v2, {dl}, v2"]
                    if ks == 0 and g == 5: ex = [f"v_add_u32 v3, {dl}, v3"] + ([] if mode == 0 else ["v_subrev_u32 v7, 8, v7"])
                    if ks == 1 and g == 5: ex = [f"v_add_u32 v4, {dl}, v4"]
                    if ks == 3 and g == 1: ex = [f"v_add_u32 v5, {dl}, v5"]
                    if ks == 2 and g == 1: ex = [f"v_add_u32 v6, {dl}, v6"]
                    if ks == 2 and g == 5 and reg: ex = [f"v_add_u32 v8, {dl}, v8"]
                if mode in (1, 2):
                    pos = 24*(mode-1) + 6*ks - OPT["ald"][0]
                    if pos >= 0 and g in slots and na[0] < NE: ex = ex + aload(na[0]); na[0] += 1
                for e in ex: it.append(("x", e))
                if ks == 1 and g == OPT["fpos"][0] and ca: it.append(("r", "ds_read_b32 v13, v7 offset:4", "flag"))
                if ks == 0 and g == OPT["fpos"][1] and cb: it.append(("r", "ds_read_b32 v12, v7", "flagB"))
            return it
        A("s_barrier")
        stamp(A, 2)
        q = dict(ops=[], done=0); lp = A.newlabel("g1"); st1 = A.newlabel("g1e")
        emit([("r", reads(0, 0)[r], (0, r)) for r in range(NR)] + [("r", reads(1, 1)[ri], (1, ri)) for g in range(6) for (so, ri) in PL[g] if so == 2], q)
        q0 = copy.deepcopy(q)
        emit([(i[0], re.sub(r"v\[\d+:\d+\]$", "0", i[1]), i[2]) if i[0] == "m" else i for i in step_items(0, 0)], q0)
        A(f"s_branch {st1}")
        A.label(lp)
        for k in range(4):
            if k == 1: A.label(st1)
            emit(step_items(k, 0), q)
        A(f"s_cbranch_scc1 {lp}")
        q["done"] = 0; k0 = 4
        for mode in (3, 1, 2):
            for k in range(k0, k0 + 4): emit(step_items(k, mode), q)
            k0 += 4
        while OPT['m16'] and na[0] < NE:
            for x in aload(na[0]): A(x)
            na[0] += 1
        return na[0]
    n_reg = gemm16() if OPT['m16'] else gemm1(True)
    A.label("k_mj")
    def special():
        A.label("k_ms")
        assert gemm1(False) == n_reg
        A("s_branch k_mj")
    A.later.append(special)
    stamp(A, 3)
    A(f"s_load_dword s{TAG}, s[{DBG}:{DBG+1}], 0")
    A(f"v_mov_b32 v7, {FT-92}"); A("v_mov_b32 v5, v11"); A(f"v_add_u32 v6, {2*STG}, v11"); A("s_nop 6")
    def areads(step):
        slot = (10 + step // 2) % 3; r = []
        for dt in range(5):
            o = AF[5*(step % 6) + dt]
            off = (STG if slot == 1 else 0) + 5120*(step % 2) + 1024*dt
            r.append(f"ds_read_b128 v[{o}:{o+3}], v{6 if slot == 2 else 5} offset:{off}")
        return r
    E = 16
    for a in range(2):
        for nt in range(3):
            g = ACC1 + 16*(3*a+nt); u = g + 8
            o = 32 + 4*((3*a+nt) % 4)
            ti = 3*a+nt
            lim = (26 if ti == 0 else 30) if not OPT['alate'] else OPT['alate']
            cnt = -(-(30 - na[0]) // max(1, OPT["ald"][1] - ti))
            ins = []
            while cnt > 0 and na[0] < lim:
                ins.append(aload(na[0])); na[0] += 1; cnt -= 1
            mark = len(A.lines)
            if 3*a+nt < OPT['epk']:
                for i in range(4): A(f"v_pk_mul_f32 {P2(E+2*i)}, {P2(g+2*i)}, s[54:55]")
                for i in range(8): A(f"v_exp_f32 v{E+i}, v{E+i}")
                for i in range(4): A(f"v_pk_add_f32 {P2(E+2*i)}, {P2(E+2*i)}, 1.0 op_sel_hi:[1,0]")
                for i in range(8): A(f"v_rcp_f32 v{E+i}, v{E+i}")
                for i in range(4): A(f"v_pk_mul_f32 {P2(g+2*i)}, {P2(g+2*i)}, {P2(u+2*i)}")
                for i in range(4): A(f"v_pk_mul_f32 {P2(g+2*i)}, {P2(g+2*i)}, {P2(E+2*i)}")
            else:
                for i in range(8): A(f"v_mul_f32 v{E+i}, s54, v{g+i}")
                for i in range(8): A(f"v_exp_f32 v{E+i}, v{E+i}")
                for i in range(8): A(f"v_add_f32 v{E+i}, 1.0, v{E+i}")
                for i in range(8): A(f"v_rcp_f32 v{E+i}, v{E+i}")
                for i in range(8): A(f"v_mul_f32 v{g+i}, v{g+i}, v{u+i}")
                for i in range(8): A(f"v_mul_f32 v{g+i}, v{g+i}, v{E+i}")
            if ins:
                body = A.lines[mark:]; del A.lines[mark:]
                step = max(1, len(body) // len(ins))
                for n, l in enumerate(body):
                    if n % step == 0 and ins:
                        for x in ins.pop(0): A(x)
                    A.lines.append(l)
                assert not ins
            for i in range(4): A(f"v_cvt_pk_bf16_f32 v{o+i}, v{g+2*i}, v{g+2*i+1}")
            A(f"buffer_store_dwordx4 v[{o}:{o+3}], v{9 if a else 10}, s[20:23], s{48+nt} offen sc1")
            if 3*a+nt == OPT["epk"] - 1: A("s_barrier")
    if OPT["mprio"]: A("s_setprio 0")
    stamp(A, 4)
    if OPT["wgo"] == 1 and not OPT["mw"]:
        A("s_lshl_b32 s10, s3, 2"); A(f"s_add_u32 s10, s10, {FLG+4}"); A("v_mov_b32 v12, s10"); A("v_mov_b32 v13, 0"); A("ds_write_b32 v12, v13")
    tag_get(A, 14, issued=True)
    A(f"v_mov_b32 v14, s{TAG}"); A("v_lshl_add_u32 v15, v0, 2, s46"); A("v_writelane_b32 v15, s47, 2")
    A("s_mov_b64 exec, 7"); A("s_waitcnt vmcnt(0)")
    A("buffer_store_dword v14, v15, s[20:23], s51 offen sc1"); A("s_mov_b64 exec, -1")
    if OPT["wgo"] == 2:
        A("s_lshl_b32 s10, s3, 2"); A(f"s_add_u32 s10, s10, {FLG+4}"); A("v_mov_b32 v12, s10"); A("v_mov_b32 v13, 0"); A("ds_write_b32 v12, v13")
    while na[0] < 30:
        for x in aload(na[0]): A(x)
        na[0] += 1
    stamp(A, 5)
    if OPT["mw"]:
        A("s_mul_i32 s10, s3, 10240"); A("s_add_u32 s14, s14, s18")
        wl = []
        for jj in range(3):
            for o in range(0, 10240, 2048):
                wl.append([f"s_add_u32 m0, s19, {((1 + jj) % 3)*STG + o}", f"s_add_u32 s18, s14, {10240*jj + o}",
                           "buffer_load_dwordx4 v1, s[20:23], s18 offen sc1 lds", "buffer_load_dwordx4 v1, s[20:23], s18 offen offset:1024 sc1 lds"])
        A("s_mov_b32 s19, s10")
        for n in range(OPT["wup"] // 2):
            for x in wl.pop(0): A(x)
            if 2*n + 2 == OPT["ppos"]: spoll_issue(A, "s52")
    A("v_and_b32 v4, 15, v0"); A("v_lshrrev_b32 v3, 4, v0")
    A(f"v_mul_u32_u24 v2, {PB}, v4"); A("v_lshl_add_u32 v2, v3, 3, v2")
    A("s_mul_i32 s10, s3, 10240"); A("v_add_u32 v2, s10, v2")
    spoll(A, "s52", OPT["psleep"], issued=bool(OPT["ppos"]))
    stamp(A, 7)
    ACC = 80; HR = 8
    def hload(k, i):
        b = HR + 16*(k % 3)
        r = [f"buffer_load_dwordx4 v[{b+4*i}:{b+4*i+3}], v1, s[20:23], s53 offen offset:{1024*i} sc1"]
        if i == 3: r.append("s_add_u32 s53, s53, " + ("s15" if k == 5 else "4096"))
        return r
    vq = []; cur = None
    for k in range(3):
        for i in range(4):
            for x in hload(k, i): A(x)
            vq.append((k, i))
    pq = []
    for mt in range(4):
        for dt in range(5):
            c = ACC + 4*(4*dt+mt); o = 8 + 2*((5*mt+dt) % 16)
            pq += [f"v_cvt_pk_bf16_f32 v{o}, v{c}, v{c+1}", f"v_cvt_pk_bf16_f32 v{o+1}, v{c+2}, v{c+3}"]
            if 5*mt+dt >= 1: pq.append(pw)
            pw = f"ds_write_b64 v2, v[{o}:{o+1}] offset:{(mt >> 1)*STG + 16*(mt & 1)*PB + 32*dt}"
    pq.append(pw)
    for k in range(12):
        b = HR + 16*(k % 3); j = k + 2
        ar = areads(j) if 6 <= j < 12 else []
        wchk = bool(ar) and j % 2 == 0 and not OPT['mw']
        for mt in range(4):
            out = len(vq) - 1 - vq.index((k, mt))
            w = f"s_waitcnt vmcnt({out})"
            if mt == 0: w += " lgkmcnt(0)" if k in (0, 11) else " lgkmcnt(5)" if k >= 6 else ""
            A(w)
            if mt == 0 and k in (0, 6): stamp(A, 8 + k//6)
            for dt in range(5):
                c = ACC + 4*(4*dt+mt); af = AF[5*(k % 6) + dt]
                src = "0" if k == 0 else f"v[{c}:{c+3}]"
                A(f"v_mfma_f32_16x16x32_bf16 v[{c}:{c+3}], v[{af}:{af+3}], v[{b+4*mt}:{b+4*mt+3}], {src}")
                if wchk and mt == 0 and dt == 0: A(f"ds_read_b32 v3, v7 offset:{4*(5-j//2)}")
                if wchk and mt == 1 and dt == 3:
                    sl = A.newlabel("g2s"); bk = A.newlabel("g2b"); slows.append((sl, bk, 3, 4*(5-j//2)))
                    A("s_waitcnt lgkmcnt(0)"); A("v_cmp_ne_u32 vcc, 0, v3"); A(f"s_cbranch_vccnz {sl}"); A.label(bk)
                if ar and mt == 2: A(ar[dt])
                if wl and (mt % 2 == 0 if OPT["wup"] < 20 else mt == 1) and dt == 0: cur = wl.pop(0); A(cur[0]); A(cur[1])
                elif cur and dt in (1, 2):
                    A(cur[1 + dt]); vq.append(None)
                    if dt == 2: cur = None
                if OPT["pil"] and k == 11 and 5*mt + dt >= 7:
                    for _ in range(2): A(pq.pop(0))
            if k + 3 < 12 and OPT["g2x"] != 1:
                for x in hload(k+3, mt): A(x)
                vq.append((k+3, mt))
        assert not (wl and k >= 4)
    A.tail_code = slows
    stamp(A, 10)
    A("s_nop 1" if not OPT["pil"] else "s_nop 3")
    for x in pq: A(x)

def post(A):
    A(f"s_mov_b32 s16, s{OUT}"); A(f"s_mov_b32 s17, s{OUT+1}")
    A("s_mov_b32 s18, 2621440"); A("s_mov_b32 s19, 0x20000")
    A("s_mul_i32 s24, s6, 81920"); A("s_mul_i32 s25, s7, 160"); A("s_add_u32 s24, s24, s25")
    A("s_lshl_b32 s27, s3, 6")
    def addr(b):
        A(f"v_add_u32 v{b}, s27, v0")
        A(f"v_mul_u32_u24 v{b+1}, 6554, v{b}"); A(f"v_lshrrev_b32 v{b+1}, 16, v{b+1}")
        A(f"v_mul_u32_u24 v{b+2}, 10, v{b+1}"); A(f"v_sub_u32 v{b+2}, v{b}, v{b+2}")
        A(f"v_mul_u32_u24 v{b+3}, 1280, v{b+1}"); A(f"v_lshl_add_u32 v{b+3}, v{b+2}, 4, v{b+3}")
        A(f"v_mul_u32_u24 v{b+4}, {PB}, v{b+1}"); A(f"v_lshl_add_u32 v{b+4}, v{b+2}, 4, v{b+4}")
        A(f"v_lshrrev_b32 v{b+5}, 5, v{b+1}"); A(f"v_mul_u32_u24 v{b+5}, {STG - 32*PB}, v{b+5}"); A(f"v_add_u32 v{b+4}, v{b+4}, v{b+5}")
        A(f"v_mul_u32_u24 v{b+5}, 86, v{b+2}"); A(f"v_lshrrev_b32 v{b+5}, 8, v{b+5}")
        A(f"v_mul_u32_u24 v{b+6}, {HS+48}, v{b+2}"); A(f"v_mul_u32_u24 v{b+5}, {3*(HS+48) - A2S}, v{b+5}")
        A(f"v_sub_u32 v{b+6}, v{b+6}, v{b+5}"); A(f"v_lshl_add_u32 v{b+6}, v{b+1}, 4, v{b+6}"); A(f"v_add_u32 v{b+6}, {HB + A2O}, v{b+6}")
        A(f"v_lshlrev_b32 v{b+7}, 4, v{b+1}"); A(f"v_add_u32 v{b+7}, {HB + OMG}, v{b+7}")
    def rds(b, d):
        A(f"ds_read_b128 v[{d+20}:{d+23}], v{b+7}")
        for w in range(4): A(f"ds_read_b128 v[{d+4*w}:{d+4*w+3}], v{b+4} offset:{w*10240}")
        A(f"ds_read_b128 v[{d+16}:{d+19}], v{b+6}")
    def calc(b, d, t, rest):
        for w in range(5):
            A(f"s_waitcnt lgkmcnt({rest + 4 - w})")
            c = d + 20 + (2 if w == 4 else 0)
            for k in range(4):
                A(f"v_dot2c_f32_bf16 v{t+2*k}, v{d+4*w+k}, v{c}"); A(f"v_dot2c_f32_bf16 v{t+2*k+1}, v{d+4*w+k}, v{c+1}")
        A("s_nop 0")
        for k in range(4): A(f"v_cvt_pk_bf16_f32 v{d+k}, v{t+2*k}, v{t+2*k+1}")
        A(f"buffer_store_dwordx4 v[{d}:{d+3}], v{b+3}, s[16:19], s24 offen")
    addr(40)
    for i in range(4): A(f"v_pk_mov_b32 {P2(160+2*i)}, 0, 0")
    one = A.newlabel("po"); dn = A.newlabel("po"); o2 = A.newlabel("po")
    A("s_and_b32 s28, s3, 6"); A("s_cmp_lg_u32 s28, 4"); A(f"s_cbranch_scc1 {one}")
    A("s_add_u32 s27, s27, 256"); A("s_setprio 3")
    addr(48)
    for i in range(4): A(f"v_pk_mov_b32 {P2(168+2*i)}, 0, 0")
    A.label(one)
    A("s_waitcnt lgkmcnt(0)")
    A("s_barrier")
    stamp(A, 11)
    A("s_cmp_lg_u32 s28, 4"); A(f"s_cbranch_scc1 {o2}")
    rds(48, 232)
    A.label(o2)
    rds(40, 208)
    calc(40, 208, 160, 0)
    A("s_cmp_lg_u32 s28, 4"); A(f"s_cbranch_scc1 {dn}")
    calc(48, 232, 168, 0)
    A.label(dn)

def pcmul(A, d, s, m):
    A(f"v_pk_mul_f32 {P2(d)}, {P2(s)}, {P2(m)} op_sel:[0,0] op_sel_hi:[1,0]")
    A(f"v_pk_fma_f32 {P2(d)}, {P2(s)}, {P2(m)}, {P2(d)} op_sel:[1,1,0] op_sel_hi:[0,1,1] neg_lo:[0,1,0]")

def kpass(A):
    RAW = 246; FA = 16; ACC = 20
    A(f"s_mul_i32 s28, s{CH}, 384"); A("s_lshl_b32 s29, s17, 7"); A("s_add_u32 s28, s28, s29")
    A("v_lshl_add_u32 v1, v0, 1, s28")
    A(f"s_lshl_b32 s28, s{CH}, 1"); A("s_and_b32 s28, s28, -4")
    if OPT["hdiag"] == 4: _stamp0(A, 2)
    A("s_cmp_lt_u32 s14, 2")
    A("s_waitcnt lgkmcnt(0)")
    for a in range(4): A(f"global_load_ushort v{RAW+a}, v1, s[{LOGA+2*a}:{LOGA+2*a+1}]")
    A("s_cbranch_scc1 k_one")
    for a in range(4): A(f"global_load_ushort v{RAW+4+a}, v1, s[{LOGA+2*a}:{LOGA+2*a+1}] offset:128")
    A.label("k_one")
    A(f"s_load_dword s30, s[{LOGDT}:{LOGDT+1}], s28"); A(f"s_load_dword s31, s[{DSK}:{DSK+1}], s28")
    A("s_barrier")
    if OPT["lay"] == 3:
        A("s_branch k_k2"); A.label("k_l"); loader(A); A("s_branch k_post"); A.label("k_k2")
    nt0 = A.newlabel("mk")
    A("s_lshl_b32 s24, s2, 3"); A("s_add_u32 s24, s24, s3"); A("s_cmp_lg_u32 s24, 71"); A(f"s_cbranch_scc1 {nt0}")
    A(f"s_add_u32 s24, s20, {LAST_OFF}"); A("s_addc_u32 s25, s21, 0")
    A("s_load_dword s28, s[24:25], 0")
    A("v_mov_b32 v16, 0")
    A("s_waitcnt lgkmcnt(0)")
    A("s_add_u32 s28, s28, 1"); A("s_max_u32 s28, s28, 1")
    A("v_mov_b32 v17, s28")
    A("s_mov_b64 exec, 1")
    A(f"global_store_dword v16, v17, s[{DBG}:{DBG+1}] sc1")
    A("global_store_dword v16, v17, s[24:25] sc1")
    A("s_mov_b64 exec, -1")
    A.label(nt0)
    tiles(A)
    A("s_bfe_u32 s9, s10, 0x20002")
    A(f"s_mul_i32 s{REG}, s{LCH}, {HS}"); A(f"s_add_u32 s{REG}, s{REG}, {HB}")
    A(f"s_mul_i32 s19, s9, {SS}"); A(f"s_add_u32 s19, s19, s{REG}"); A("s_mov_b32 m0, s19")
    A("v_and_b32 v17, 15, v0"); A("v_lshrrev_b32 v18, 4, v0"); A("v_mov_b32 v10, 0"); A("v_mov_b32 v9, 0"); A("v_mov_b32 v7, 0"); A("v_mov_b32 v170, 0")
    A("s_mov_b32 s24, 0x%x" % LOG2E); A("s_mov_b32 s25, 0x%x" % LOG2E_LO); A("s_mov_b32 s26, 0x%x" % LN2)
    A("s_mov_b32 s27, 0x41000000"); A("s_mov_b32 s28, 0x43000000")
    A("v_add_u32 v37, 4, v17"); A(f"v_and_b32 v{FA}, 7, v37"); A(f"v_mul_u32_u24 v{FA}, 544, v{FA}"); A("v_and_b32 v37, 8, v37")
    A(f"v_lshl_add_u32 v{FA}, v37, 5, v{FA}"); A(f"v_lshl_add_u32 v{FA}, v18, 4, v{FA}"); A(f"v_add_u32 v{FA}, s19, v{FA}")
    rowo = lambda i: 544*((i+4) & 7) + 32*((i+4) & 8)
    for i in range(6): A(f"v_pk_mov_b32 {P2(ACC+2*i)}, 0, 0")
    DT, DT2, NDT, ONE = 32, 34, 33, 36
    A(f"v_mov_b32 v{ONE}, 0x3f80")
    A("v_lshlrev_b32 v1, 4, v0")
    A("s_cmp_ge_u32 s3, 4"); A("s_cbranch_scc1 k_nosetup")
    msetup(A)
    A.label("k_nosetup")
    if OPT["hdiag"] == 4: A("s_memtime s[70:71]")
    A("s_waitcnt lgkmcnt(0)")
    if OPT["hdiag"] == 4: _stamp0(A, 4)
    A(f"s_bitcmp1_b32 s{CH}, 0")
    A("s_cselect_b32 s29, 0, 16")
    A("s_lshl_b32 s30, s30, s29"); A("s_and_b32 s30, s30, 0xffff0000")
    A("s_lshl_b32 s31, s31, s29"); A("s_and_b32 s31, s31, 0xffff0000")
    A("s_cmp_eq_u32 s17, 0"); A("s_cselect_b32 s31, s31, 0")
    A("v_mov_b32 v37, s30")
    A(f"v_writelane_b32 v{ACC}, s31, 0")
    A("v_mul_f32 v38, s24, v37"); A("v_fma_f32 v39, v37, s24, -v38"); A("v_fmac_f32 v39, s25, v37")
    A("v_exp_f32 v38, v38"); A("v_mul_f32 v39, s26, v39"); A("v_fmac_f32 v38, v38, v39")
    A("v_cvt_pk_bf16_f32 v38, v38, v38")
    A(f"v_lshlrev_b32 v{DT}, 16, v38")
    A(f"v_add_f32 v{DT2}, v{DT}, v{DT}"); A(f"v_sub_f32 v{NDT}, 0, v{DT}")
    if OPT["hdiag"] == 4:
        _stamp0(A, 5)
        for n in (3, 2, 1): A(f"s_waitcnt vmcnt({n})"); _stamp0(A, 9 - n)
    A("s_waitcnt vmcnt(0)")
    stamp(A, 1)
    A.label("k_loop")
    A1 = 38; TH = 39
    Z, W, Y = 40, 42, 44
    P = 48; T = 240; QA, QB = 242, 244; PK = 64; B2 = 120
    QF, PF = 176, 192
    A(f"v_lshlrev_b32 v{T}, 16, v{RAW}"); A(f"v_mul_f32 v{T}, s24, v{T}")
    A(f"v_lshlrev_b32 v{TH}, 16, v{RAW+1}")
    A(f"v_exp_f32 v{T}, v{T}")
    A(f"v_lshlrev_b32 v{P}, 16, v{RAW+2}"); A(f"v_lshlrev_b32 v{P+1}, 16, v{RAW+3}")
    A(f"v_cvt_pk_bf16_f32 v{T}, v{T}, v{T}")
    A(f"v_mul_f32 v{TH}, v{TH}, v{DT}")
    A(f"v_lshlrev_b32 v{T}, 16, v{T}")
    A(f"v_mul_f32 v{TH}, 0.15915494, v{TH}")
    A(f"v_mul_f32 v{A1}, v{T}, v{NDT}")
    A(f"v_pk_mul_f32 {P2(P)}, {P2(P)}, {P2(DT2)} op_sel_hi:[1,0]")
    A(f"v_mul_f32 v{A1}, s24, v{A1}")
    A(f"v_pk_mov_b32 {P2(RAW)}, {P2(RAW+4)}, {P2(RAW+4)} op_sel:[0,1]"); A(f"v_pk_mov_b32 {P2(RAW+2)}, {P2(RAW+6)}, {P2(RAW+6)} op_sel:[0,1]")
    for (R, sc) in ((W, "s27"), (Z, None), (Y, "s28")):
        if sc:
            A(f"v_mul_f32 v{T}, {sc}, v{A1}"); A(f"v_mul_f32 v{T+1}, {sc}, v{TH}")
            A(f"v_exp_f32 v{T}, v{T}"); A(f"v_fract_f32 v{T+1}, v{T+1}")
        else:
            A(f"v_exp_f32 v{T}, v{A1}"); A(f"v_fract_f32 v{T+1}, v{TH}")
        A(f"v_cos_f32 v{R}, v{T+1}"); A(f"v_sin_f32 v{R+1}, v{T+1}")
        A("s_nop 0")
        A(f"v_pk_mul_f32 {P2(R)}, {P2(R)}, {P2(T)} op_sel_hi:[1,0]" + (" neg_hi:[1,0]" if R == W else ""))
    pkc = [0]; wph = [f"ds_write_addtid_b32 v{ONE} offset:{rowo(0)}"]
    def emit(row, r):
        k = PK + pkc[0]; pkc[0] += 1
        A(f"v_cvt_pk_bf16_f32 v{k}, v{r}, v{r+1}")
        wph.append(f"ds_write_addtid_b32 v{k} offset:{rowo(row)}")
    def rd(base):
        for t in range(4): wph.append(f"ds_read_b128 v[{base+4*t}:{base+4*t+3}], v{FA} offset:{64*t}")
    def mm(acc, base, n):
        A(f"s_waitcnt lgkmcnt({n})")
        for t in range(4):
            A(f"v_mfma_f32_16x16x32_bf16 v[{acc}:{acc+3}], v[{base+4*t}:{base+4*t+3}], v[{QF+4*t}:{QF+4*t+3}], v[{acc}:{acc+3}]")
    qs = W
    for j in range(2, 17):
        dst = QA if j % 2 == 0 else QB
        if j < 16: pcmul(A, dst, qs, W)
        emit(j-1, qs)
        b = j - 1
        if b <= 7: pcmul(A, P+2*b, P+2*b-2, Z)
        qs = dst
    rd(QF)
    loc = {}
    for b in range(0, 8, 2):
        emit(b, P+2*b); emit(b+1, P+2*b+2)
        pcmul(A, T, P+2*b+2, Y); pcmul(A, P+2*b+2, P+2*b, Y)
        emit(8+b+1, T); emit(8+b, P+2*b+2)
        loc[b] = P+2*b+2
    rd(PF)
    def step(b, row):
        s = loc[b]; d = P+2*b if s == P+2*b+2 else P+2*b+2
        pcmul(A, d, s, Y); loc[b] = d
        return (row, d)
    for a in range(2):
        es = [step(b, 4*a + b//2) for b in (0, 2, 4, 6)]
        for e in es: emit(*e)
    for a in range(4):
        es = [step(b, 8 + 2*a + b//4) for b in (0, 4)]
        for e in es: emit(*e)
    rd(PF+16)
    e = step(0, 0)
    for a in range(1, 10):
        n = step(0, a) if a < 9 else None
        emit(*e); e = n
    rd(PF+32)
    assert pkc[0] == 56
    A("s_cmp_lg_u32 s14, 2"); A("s_cbranch_scc1 k_v1")
    for i in range(28): A(f"v_pk_mov_b32 {P2(B2+2*i)}, {P2(PK+2*i)}, {P2(PK+2*i)} op_sel:[0,1]")
    A("s_mov_b32 s14, 3"); A("s_branch k_loop")
    A.label("k_v1")
    stamp(A, 6)
    stamp(A, 10)
    if OPT["defer"]:
        A("s_lshl_b32 s24, s17, 2"); A("s_add_u32 s24, s24, s14"); A("s_cmp_eq_u32 s24, 1"); A("s_cbranch_scc1 k_h")
    A.label("k_w")
    n0 = wph.index([x for x in wph if f"v[{PF+16}:" in x][0])
    for x in wph[:n0]: A(x)
    mm(ACC, PF, 14)
    for x in wph[n0:]: A(x)
    mm(ACC+4, PF+16, 13); mm(ACC+8, PF+32, 0)
    A("s_cmp_lg_u32 s14, 3"); A("s_cbranch_scc1 k_w1")
    for i in range(28): A(f"v_pk_mov_b32 {P2(PK+2*i)}, {P2(B2+2*i)}, {P2(B2+2*i)} op_sel:[0,1]")
    A("s_mov_b32 s14, 0"); A("s_branch k_h" if OPT["defer"] == 2 else "s_branch k_w")
    A.label("k_w1")
    if OPT["defer"]: A("s_cmp_eq_u32 s14, 4"); A("s_cbranch_scc1 k_hret")
    A("s_cmp_ge_u32 s3, 4"); A("s_cbranch_scc1 k_h")

def kaddr(A):
    sL = REG
    A(f"v_add_u32 v39, s{sL}, v1")
    EB = C0
    A("v_lshlrev_b32 v40, 4, v17"); A(f"v_add_u32 v40, s{sL}, v40")
    A("v_lshl_add_u32 v41, v18, 10, v40"); A(f"v_add_u32 v41, {EB + 2048 - 8}, v41")
    A("v_and_b32 v42, 1, v0"); A("v_lshlrev_b32 v42, 3, v42"); A("v_sub_u32 v42, v41, v42")
    A("v_lshl_add_u32 v43, v18, 9, v40"); A("v_lshl_add_u32 v44, v18, 8, v40")
    A("v_lshrrev_b32 v45, 1, v18"); A("v_lshl_add_u32 v45, v45, 8, v40")
    A("v_and_b32 v46, 1, v18"); A("v_lshl_add_u32 v45, v46, 3, v45")
    A("v_mov_b32 v34, 0"); A("v_mov_b32 v35, 0")
    A("v_and_b32 v46, 7, v0"); A("v_lshlrev_b32 v46, 2, v46"); A(f"v_add_u32 v46, s{sL}, v46")
    A("v_lshlrev_b32 v47, 3, v0"); A(f"v_add_u32 v47, s{sL}, v47")

KC = {xy: 56+n for n, xy in enumerate([(0,0),(0,1),(1,1),(2,2),(2,3),(3,3),(1,2)])}
def kexp0(A):
    K0, K1, K2 = 20, 24, 28
    for r in range(4):
        A(f"v_cvt_pk_bf16_f32 v{48+2*r}, v{K2+r}, v{K2+r}"); A(f"v_mov_b32 v{49+2*r}, v{48+2*r}")
    for (x, y), r in KC.items(): A(f"v_cvt_pk_bf16_f32 v{r}, v{K1+x}, v{K1+y}")
    A(f"v_cvt_pk_bf16_f32 v64, v{K0}, v{K0+1}"); A(f"v_cvt_pk_bf16_f32 v65, v{K0+2}, v{K0+3}")
def kexp1(A):
    EB = C0; c = KC
    for r in range(4): A(f"ds_write2_b64 v41, v[{48+2*r}:{49+2*r}], v[{48+2*r}:{49+2*r}] offset0:{32*r} offset1:{32*r+1}")
    for r in range(4): A(f"ds_write_b16 v42, v{48+2*r} offset:{256*r+16}")
    A("s_mov_b32 exec_lo, 0")
    o = (EB - 4) // 4
    A(f"ds_write2_b32 v43, v{c[0,0]}, v{c[0,0]} offset0:{o} offset1:{o+1}")
    A(f"ds_write2_b32 v43, v{c[0,1]}, v{c[1,1]} offset0:{o+2} offset1:{o+3}")
    A(f"ds_write2_b32 v43, v{c[2,2]}, v{c[2,2]} offset0:{o+64} offset1:{o+65}")
    A(f"ds_write2_b32 v43, v{c[2,3]}, v{c[3,3]} offset0:{o+66} offset1:{o+67}")
    A("s_mov_b32 exec_lo, -1"); A("s_mov_b32 exec_hi, 0")
    o = EB + 512
    A(f"ds_write_b16 v44, v{c[0,0]} offset:{o-2}")
    A(f"ds_write2_b32 v44, v{c[0,0]}, v{c[1,2]} offset0:{o//4} offset1:{o//4+1}")
    A(f"ds_write_b32 v44, v{c[2,2]} offset:{o+8}")
    A(f"ds_write_b16 v44, v{c[3,3]} offset:{o+12}")
    A("s_mov_b64 exec, -1")
    A(f"ds_write_b64 v45, v[64:65] offset:{EB}")
    A(f"ds_write_b32 v46, v34 offset:{C0-32}"); A(f"ds_write_b32 v46, v34 offset:{C1-32}")
    A(f"ds_write_b64 v47, v[34:35] offset:{CU+4096}")
    for i in range(4):
        A(f"ds_read_b128 v[{80+8*i}:{83+8*i}], v39 offset:{EB+1024*i}")
        A(f"ds_read_b32 v{72+i}, v39 offset:{EB+1024*i-4}")
def kexp2(A):
    A("s_waitcnt lgkmcnt(0)")
    for i in range(4):
        b = 80+8*i
        A(f"v_alignbit_b32 v{b+4}, v{b}, v{72+i}, 16")
        for k in range(1, 4): A(f"v_alignbit_b32 v{b+4+k}, v{b+k}, v{b+k-1}, 16")
        A(f"ds_write_b128 v39, v[{b+4}:{b+7}] offset:{C1+1024*i}")

def caddr(A):
    sL = REG
    A("v_lshlrev_b32 v2, 4, v18"); A("v_lshlrev_b32 v6, 5, v17"); A("v_sub_u32 v2, v2, v6")
    A(f"v_add_u32 v2, {CU + 4064 - 3584}, v2"); A(f"v_add_u32 v2, s{sL}, v2")
    A("v_sub_u32 v6, 15, v17"); A("v_and_b32 v7, 1, v6"); A("v_sub_u32 v6, v6, v7")
    A(f"v_mul_u32_u24 v3, {C1-C0}, v7"); A("v_lshl_add_u32 v3, v18, 4, v3")
    A("v_lshlrev_b32 v6, 1, v6"); A("v_sub_u32 v3, v3, v6")
    A(f"v_add_u32 v3, {C0}, v3"); A(f"v_add_u32 v3, s{sL}, v3")
    for i in range(1, 4): A(f"v_add_u32 v{3+i}, {1024*i}, v3")
    A("v_lshlrev_b32 v7, 5, v17"); A("v_lshrrev_b32 v8, 1, v18"); A("v_lshl_add_u32 v7, v8, 4, v7")
    A("v_and_b32 v8, 1, v18"); A("v_lshl_add_u32 v7, v8, 9, v7")

def emit_items(A, items, q):
    for i in items:
        tags = i[2] if i[0] == "m" else []
        if tags:
            pos = max(len(q["ops"]) - 1 - q["ops"][::-1].index(t) for t in tags)
            if pos >= q["done"]:
                n = min(14, len(q["ops"]) - 1 - pos)
                q["done"] = len(q["ops"]) - n
                A(f"s_waitcnt lgkmcnt({n})")
        if i[0] == "r": q["ops"].append(i[2])
        A(i[1])

CY = 172; CTB = [40, 104]
def c_reads(key, f, extra, order):
    b = CTB[f]; r = []
    for kind, q in order:
        if kind == "G": r.append(("r", f"ds_read_b128 v[{b+32+4*q}:{b+35+4*q}], v2 offset:{512*(7-q) + extra}", (key, "G", q)))
        else:
            o = (512*(q & 1) + extra) // 4
            r.append(("r", f"ds_read2_b32 v[{b+4*q}:{b+4*q+1}], v{3+q//2} offset0:{o} offset1:{o+1}", None))
            r.append(("r", f"ds_read2_b32 v[{b+4*q+2}:{b+4*q+3}], v{3+q//2} offset0:{o+2} offset1:{o+3}", (key, "T", q)))
    return r
def c_round(key, f, pairs, fill, zero=False):
    b = CTB[f]; it = []; n = len(pairs); k = 0
    for i, (q, tau) in enumerate(pairs):
        t = CY + 4*(q + tau)
        first = i == 0 or pairs[i-1][0] != q
        need = [(key, "T", q)] + [(key, "G", x) for (p, x) in pairs if p == q] if first else []
        it.append(("m", f"v_mfma_f32_16x16x32_bf16 v[{t}:{t+3}], v[{b+4*q}:{b+4*q+3}], v[{b+32+4*tau}:{b+35+4*tau}], " + ("0" if zero and q == 0 else f"v[{t}:{t+3}]"), need))
        upto = -(-len(fill)*(i+1) // n)
        it += fill[k:upto]; k = upto
    return it
def c_store(A, tiles, O):
    for j, t in enumerate(tiles):
        A(f"v_cvt_pk_bf16_f32 v{O+2*j}, v{CY+4*t}, v{CY+4*t+1}"); A(f"v_cvt_pk_bf16_f32 v{O+2*j+1}, v{CY+4*t+2}, v{CY+4*t+3}")
    A("s_nop 1")
    for p in range(2):
        A(f"v_permlane16_swap_b32 v{O+4*p}, v{O+4*p+2}"); A(f"v_permlane16_swap_b32 v{O+4*p+1}, v{O+4*p+3}")
    A("s_nop 1")
    for p in range(2): A(f"buffer_store_dwordx4 v[{O+4*p}:{O+4*p+3}], v7, s[20:23], s30 offen offset:{512*tiles[2*p]} sc1")

def convh(A):
    order = [("T", 0), ("G", 7), ("G", 6), ("G", 5), ("G", 4), ("T", 1), ("G", 3), ("T", 2), ("G", 2), ("T", 3), ("G", 1), ("T", 4), ("G", 0), ("T", 5), ("T", 6), ("T", 7)]
    pairs = [(q, tau) for q in range(8) for tau in range(7 - q, max(-1, 3 - q), -1)]
    X = lambda l: [("x", e) for e in l]
    q = dict(ops=[], done=0)
    A("s_waitcnt vmcnt(0)")
    emit_items(A, c_reads(0, 0, 0, order), q)
    A("s_waitcnt lgkmcnt(14)")
    stamp(A, 9)
    A("s_barrier")
    stamp(A, 4)
    A(f"s_setprio {OPT['cprio']}"); A("s_mov_b32 s28, 0")
    lp = A.newlabel("cv")
    A.label(lp)
    emit_items(A, c_round(0, 0, pairs, c_reads(1, 1, 64, order) + X(["s_add_u32 s28, s28, 1"])), q)
    r2 = c_reads(2, 0, 128, order)
    r2 = r2[:9] + X(["v_add_u32 v3, 128, v3"]) + r2[9:15] + X(["v_add_u32 v4, 128, v4"]) + r2[15:18] + X(["v_add_u32 v2, 128, v2"]) + r2[18:20] + X(["v_add_u32 v5, 128, v5", "s_cmp_lt_u32 s28, 4"]) + r2[20:] + X(["v_add_u32 v6, 128, v6"])
    emit_items(A, c_round(1, 1, pairs, r2), q)
    A(f"s_cbranch_scc1 {lp}")
    stamp(A, 5)
    A(f"s_add_u32 s30, s31, {YT_OFF}")
    A(f"s_lshl_b32 s28, s{LCH}, 2"); A(f"s_add_u32 s28, s28, {FLG+4}"); A("v_mov_b32 v4, s28"); A("v_mov_b32 v5, 0"); A("s_nop 2")
    c_store(A, [4, 5, 6, 7], 104)
    A("s_setprio 0")
    A("s_waitcnt vmcnt(0)")
    A("ds_write_b32 v4, v5")
    stamp(A, 6)
    lds_wait(A, 4, 5, "v_cmp_ne_u32 vcc, 0", off=12, sleep=2)

def convl(A):
    order = [("T", 0), ("G", 3), ("G", 2), ("G", 1), ("G", 0), ("T", 1), ("T", 2), ("T", 3)]
    pairs = [(q, tau) for q in range(4) for tau in range(3 - q, -1, -1)]
    A.label("k_cl")
    A("s_lshl_b32 s30, s10, 12"); A(f"s_add_u32 s30, s30, {YT_OFF}"); A("s_mov_b32 s11, s9")
    A("s_barrier")
    A(f"s_setprio {OPT['cprio']}")
    q = dict(ops=[], done=0)
    emit_items(A, c_reads(0, 0, 0, order), q)
    lp = A.newlabel("cl")
    A.label(lp)
    for r in range(8):
        fill = c_reads(r+1, (r+1) % 2, 64*(r+1), order) if r < 7 else [("x", f"v_add_u32 v{v}, {HS}, v{v}") for v in (3, 2, 4)] + c_reads(8, 0, 0, order)
        emit_items(A, c_round(r, r % 2, pairs, fill, zero=(r == 0)), q)
    A("s_sub_u32 s11, s11, 1"); A("s_nop 6")
    c_store(A, [0, 1, 2, 3], 8)
    A("s_add_u32 s30, s30, 4096")
    A("s_cmp_lg_u32 s11, 0"); A(f"s_cbranch_scc1 {lp}")
    A("s_setprio 0")
    A("v_lshrrev_b32 v20, 3, v0"); A("s_sub_u32 s11, s9, 1"); A("v_min_u32 v20, s11, v20")
    A("v_add_u32 v21, s8, v20"); A("v_lshlrev_b32 v21, 2, v21"); A(f"v_add_u32 v21, {FLG+4}, v21"); A("v_mov_b32 v22, 0")
    A("ds_write_b32 v21, v22 offset:12")
    A("v_add_u32 v20, s10, v20"); A("v_lshrrev_b32 v23, 3, v20"); A("v_lshlrev_b32 v23, 8, v23"); A("v_and_b32 v20, 7, v20"); A("v_lshl_add_u32 v23, v20, 2, v23")
    A("v_and_b32 v20, 7, v0"); A(f"v_mul_u32_u24 v20, {80*256}, v20"); A("v_add_u32 v23, v23, v20"); A(f"v_mov_b32 v20, s{TAG}")
    A(f"s_mov_b32 s28, {YF_OFF}"); A("s_lshl_b32 s11, s9, 3")
    lds_wait(A, 21, 22, "v_cmp_ne_u32 vcc, 0", sleep=1)
    A("s_bfm_b64 exec, s11, 0"); A("s_waitcnt vmcnt(0)")
    A("buffer_store_dword v20, v23, s[20:23], s28 offen sc1"); A("s_mov_b64 exec, -1")
    stamp(A, 6)
    A("s_cmp_eq_u32 s3, 4"); A("s_cbranch_scc1 k_post"); A("s_branch k_fin")

def conv(A):
    Y = 172
    TB = [40, 104]
    def reads(f, extra):
        b = TB[f]; r = []
        for q in range(8):
            r.append(f"ds_read_b128 v[{b+32+4*q}:{b+35+4*q}], v2 offset:{512*(7-q) + extra}")
            o = (512*(q & 1) + extra) // 4
            r.append(f"ds_read2_b32 v[{b+4*q}:{b+4*q+1}], v{3+q//2} offset0:{o} offset1:{o+1}")
            r.append(f"ds_read2_b32 v[{b+4*q+2}:{b+4*q+3}], v{3+q//2} offset0:{o+2} offset1:{o+3}")
        return r
    def mfmas(f):
        b = TB[f]; r = []
        for q in range(8):
            for tau in range(8-q):
                t = q + tau
                r.append(f"v_mfma_f32_16x16x32_bf16 v[{Y+4*t}:{Y+4*t+3}], v[{b+4*q}:{b+4*q+3}], v[{b+32+4*tau}:{b+35+4*tau}], v[{Y+4*t}:{Y+4*t+3}]")
        return r
    def inter(ms, rs):
        for i, m in enumerate(ms):
            A(m)
            if i < len(rs): A(rs[i])
    A("s_waitcnt vmcnt(0)")
    for x in reads(0, 0): A(x)
    stamp(A, 9)
    A("s_barrier")
    stamp(A, 4)
    if OPT["cprio"]: A(f"s_setprio {OPT['cprio']}")
    A("s_mov_b32 s28, 0")
    lp = A.newlabel("cv")
    A.label(lp)
    A("s_waitcnt lgkmcnt(0)")
    inter(mfmas(0), reads(1, 64) + ["s_add_u32 s28, s28, 1"])
    A("s_waitcnt lgkmcnt(0)")
    inter(mfmas(1), reads(0, 128) + [f"v_add_u32 v{r}, 128, v{r}" for r in range(2, 7)] + ["s_cmp_lt_u32 s28, 4"])
    A(f"s_cbranch_scc1 {lp}")
    stamp(A, 5)
    A(f"s_add_u32 s30, s31, {YT_OFF}")
    A(f"s_lshr_b32 s28, s{CH}, 3"); A("s_lshl_b32 s28, s28, 8"); A(f"s_and_b32 s29, s{CH}, 7"); A("s_lshl_b32 s29, s29, 2")
    A("s_add_u32 s28, s28, s29"); A(f"s_add_u32 s28, s28, {YF_OFF}")
    O = 104
    for t in range(8):
        A(f"v_cvt_pk_bf16_f32 v{O+2*t}, v{Y+4*t}, v{Y+4*t+1}"); A(f"v_cvt_pk_bf16_f32 v{O+2*t+1}, v{Y+4*t+2}, v{Y+4*t+3}")
    A("s_nop 1")
    for p in range(4):
        A(f"v_permlane16_swap_b32 v{O+4*p}, v{O+4*p+2}"); A(f"v_permlane16_swap_b32 v{O+4*p+1}, v{O+4*p+3}")
    A("s_nop 1")
    for p in range(4 - OPT["noy"]): A(f"buffer_store_dwordx4 v[{O+4*p}:{O+4*p+3}], v7, s[20:23], s30 offen offset:{1024*p} sc1")
    A("s_setprio 0")
    flag_store(A, "s28", 2, 8, 80*256)
    A(f"v_mov_b32 v4, {FLG}"); A("v_mov_b32 v5, 0"); A("ds_write_b32 v4, v5")
    stamp(A, 6)

def hbar(A, i):
    if OPT["hdiag"] == 2: _stamp0(A, i + 2)
    A("s_barrier")
    if OPT["hdiag"] == 1: _stamp0(A, i + 2)

def hwave(A):
    ACC = 20; sL = REG
    def when(cmp, neg=False):
        l = A.newlabel("if"); A(cmp); A(f"s_cbranch_scc{1 if neg else 0} {l}"); return l
    stamp(A, 2)
    xtask(A, 8, 9)
    A(f"s_cmp_eq_u32 s{LCH}, 0"); A("s_cselect_b32 s8, s2, s8"); A("s_cmp_ge_u32 s2, 240"); A("s_cselect_b32 s8, 999, s8")
    A(f"s_cmp_eq_u32 s{LCH}, 1"); A("s_cselect_b32 s8, 999, s8"); A("s_cselect_b32 s9, s2, 999")
    A(f"v_add_u32 v39, s{sL}, v1")
    A("s_mul_i32 s19, s18, 3072"); A(f"s_add_u32 s19, s19, {KP_OFF}")
    A("s_lshl_b32 s18, s18, 7"); A(f"s_add_u32 s18, s18, {KF_OFF}")
    l = when("s_cmp_eq_u32 s16, 0")
    for i in range(3): A(f"buffer_store_dwordx4 v[{ACC+4*i}:{ACC+4*i+3}], v1, s[20:23], s19 offen offset:{1024*i} sc1")
    A.label(l)
    A("s_barrier")
    A("v_lshlrev_b32 v33, 2, v0"); A(f"v_add_u32 v33, {GL}, v33"); A("ds_read_b32 v32, v33")
    for i in range(3): A(f"ds_read_b128 v[{120+4*i}:{123+4*i}], v39 offset:{SS + 1024*i}")
    for i in range(3): A(f"ds_read_b128 v[{132+4*i}:{135+4*i}], v39 offset:{2*SS + 1024*i}")
    A("s_waitcnt lgkmcnt(0)")
    l = when("s_cmp_ge_u32 s16, 1")
    for i in range(12): A(f"v_add_f32 v{ACC+i}, v{ACC+i}, v{120+i}")
    A.label(l)
    l = when("s_cmp_ge_u32 s16, 2")
    for i in range(12): A(f"v_add_f32 v{ACC+i}, v{ACC+i}, v{132+i}")
    A.label(l)
    hbar(A, 0)
    stamp(A, 12)
    def flags():
        l = when("s_cmp_lt_u32 s8, 320")
        A("s_lshr_b32 s26, s8, 5"); A("s_lshl_b32 s26, s26, 8"); A("s_and_b32 s27, s8, 31"); A("s_lshl_b32 s27, s27, 2")
        A("s_add_u32 s26, s26, s27"); A(f"s_add_u32 s26, s26, {UF_OFF}")
        flag_store(A, "s26", 146)
        A.label(l)
        l = when("s_cmp_eq_u32 s16, 0")
        flag_store(A, "s18", 146, wait=False)
        A.label(l)
        l = when("s_cmp_lt_u32 s9, 240")
        A("s_mul_i32 s26, s9, 2731"); A("s_lshr_b32 s26, s26, 16"); A("s_mul_i32 s26, s26, 160"); A("s_lshl_b32 s27, s9, 2")
        A("s_add_u32 s26, s26, s27"); A(f"s_add_u32 s26, s26, {WF_OFF}")
        flag_store(A, "s26", 146)
        A.label(l)
    tag_get(A, 40)
    A("s_waitcnt vmcnt(0)")
    flags()
    l = when(f"s_cmp_eq_u32 s{LCH}, 2")
    A("s_mov_b32 s13, 0x%x" % NLOG2E)
    for m in ("quad_perm:[1,0,3,2]", "quad_perm:[2,3,0,1]", "row_half_mirror"):
        A("s_nop 1"); A(f"v_add_f32_dpp v32, v32, v32 {m} row_mask:0xf bank_mask:0xf")
    A("v_mul_f32 v32, s13, v32"); A("v_exp_f32 v32, v32"); A(f"v_mov_b32 v33, s{TAG}")
    A("v_add_f32 v32, 1.0, v32"); A("v_rcp_f32 v32, v32")
    A("s_lshl_b32 s15, s2, 6"); A(f"s_add_u32 s15, s15, {GG_OFF}")
    A("s_mov_b32 exec_lo, 0x01010101"); A("s_mov_b32 exec_hi, 0x01010101")
    A("buffer_store_dwordx2 v[32:33], v0, s[20:23], s15 offen sc1")
    A("s_mov_b64 exec, -1")
    A.label(l)
    hbar(A, 1)
    caddr(A)
    A("v_and_b32 v144, 31, v0"); A("v_lshlrev_b32 v144, 2, v144")
    A(f"s_lshr_b32 s29, s{CH}, 6"); A("s_lshl_b32 s29, s29, 8"); A(f"s_add_u32 s29, s29, {UF_OFF}")
    A(f"s_lshl_b32 s31, s{CH}, 12"); A(f"s_add_u32 s30, s31, {UR_OFF}")
    A(f"s_add_u32 m0, s{sL}, {CU}")
    hbar(A, 2)
    kaddr(A)
    hbar(A, 3)
    if not OPT["defer"]:
        for i in range(32): A(f"v_mov_b32 v{172+i}, 0")
    hbar(A, 4)
    def check(va, so, vd):
        ok = A.newlabel("ok")
        A(f"v_cmp_ne_u32 vcc, s{TAG}, v{vd}"); A(f"s_cbranch_vccz {ok}")
        poll(A, va, so, vd)
        A.label(ok)
    A("v_mov_b32 v150, 0")
    hbar(A, 5)
    l = when(f"s_cmp_eq_u32 s{LCH}, 0")
    A("v_min_u32 v150, 47, v0"); A("v_cmp_lt_u32 vcc, 23, v150"); A("v_lshlrev_b32 v150, 2, v150"); A("v_add_u32 v151, 160, v150")
    A("v_cndmask_b32 v150, v150, v151, vcc")
    A("s_mul_i32 s26, s7, 5"); A("s_lshr_b32 s26, s26, 2"); A("s_lshl_b32 s26, s26, 8"); A(f"s_add_u32 s26, s26, {WF_OFF}")
    A("buffer_load_dword v151, v150, s[20:23], s26 offen sc1")
    A("s_waitcnt vmcnt(0)")
    check(150, "s26", 151)
    A.label(l)
    hbar(A, 6)
    A("buffer_load_dword v145, v144, s[20:23], s29 offen sc1")
    A("v_mov_b32 v146, 0")
    l = when(f"s_cmp_eq_u32 s{RMT}, 1")
    A("buffer_load_dword v147, v146, s[20:23], s18 offen sc1")
    A.label(l)
    A("s_waitcnt vmcnt(0)")
    l = when("s_cmp_eq_u32 s17, 0")
    check(144, "s29", 145)
    for i in range(4): A(f"buffer_load_dwordx4 v1, s[20:23], s30 offen offset:{1024*i} sc1 lds")
    A.label(l)
    l = when(f"s_cmp_eq_u32 s{RMT}, 1")
    check(146, "s18", 147)
    for i in range(3): A(f"buffer_load_dwordx4 v[{120+4*i}:{123+4*i}], v1, s[20:23], s19 offen offset:{1024*i} sc1")
    A.label(l)
    stamp(A, 3)
    A("v_lshlrev_b32 v170, 3, v0")
    A("s_lshl_b32 s24, s6, 9"); A(f"s_add_u32 s24, s24, {GG_OFF}")
    A("buffer_load_dwordx2 v[168:169], v170, s[20:23], s24 offen sc1")
    A(f"v_mov_b32 v8, {FLG}")
    l = when("s_cmp_eq_u32 s16, 0")
    if OPT["split"]:
        for v in (2, 3, 4): A(f"v_subrev_u32 v{v}, {HS}, v{v}")
        A("s_mov_b32 s8, 1"); A("s_mov_b32 s9, 1"); A(f"s_add_u32 s10, s{CH}, 2"); A("s_branch k_cl")
    else:
        A("s_barrier")
        lds_wait(A, 8, 9, "v_cmp_ne_u32 vcc, 0", sleep=4)
        A("s_branch k_fin")
    A.label(l)
    l = when(f"s_cmp_eq_u32 s{RMT}, 1")
    A("s_waitcnt vmcnt(1)")
    for i in range(12): A(f"v_add_f32 v{ACC+i}, v{ACC+i}, v{120+i}")
    A.label(l)
    if OPT["defer"]:
        A(f"s_mov_b32 m0, s{sL}"); A("s_mov_b32 s14, 4")
        lds_wait(A, 8, 9, "v_cmp_ne_u32 vcc, 0", off=40)
        A("s_setprio 3"); A("s_branch k_w")
        A.label("k_hret")
        A("s_setprio 0"); A("s_nop 3")
        kexp0(A); kexp1(A)
        for i in range(32): A(f"v_mov_b32 v{172+i}, 0")
    else:
        kexp0(A)
        lds_wait(A, 8, 9, "v_cmp_ne_u32 vcc, 0", off=40)
        kexp1(A)
    kexp2(A)
    (convh if OPT['split'] else conv)(A)

def finpre(A):
    sH = LCH; sL = REG
    A("s_mul_i32 s26, s7, 2560"); A("s_lshr_b32 s25, s6, 2"); A("s_mul_i32 s25, s25, 20480"); A("s_add_u32 s26, s26, s25"); A(f"s_add_u32 s26, s26, {YF_OFF}")
    A("v_and_b32 v3, 7, v0")
    A("v_lshrrev_b32 v8, 3, v0"); A("v_lshlrev_b32 v8, 12, v8"); A("v_lshl_add_u32 v8, v3, 4, v8")
    A("s_mul_i32 s27, s7, 327680"); A("s_lshl_b32 s28, s6, 7"); A("s_add_u32 s27, s27, s28"); A(f"s_add_u32 s27, s27, {YT_OFF}")
    A("v_bfe_u32 v2, v0, 2, 2"); A("v_lshlrev_b32 v2, 7, v2")
    A("v_lshrrev_b32 v3, 4, v0"); A("v_lshl_add_u32 v2, v3, 5, v2")
    A("v_and_b32 v3, 3, v0"); A("v_lshl_add_u32 v2, v3, 3, v2"); A(f"v_add_u32 v2, s{sL}, v2")
    A(f"s_mul_i32 s28, s{sH}, 48"); A(f"s_add_u32 s28, s28, s{sL}")
    A("v_lshlrev_b32 v3, 4, v0"); A("v_add_u32 v3, s28, v3")
    A("v_lshlrev_b32 v7, 4, v0"); A(f"v_add_u32 v7, s{sL}, v7")
    A("s_waitcnt vmcnt(0)")
    ok = A.newlabel("ok")
    A(f"v_cmp_ne_u32 vcc, s{TAG}, v169"); A(f"s_cbranch_vccz {ok}")
    poll(A, 170, "s24", 168, 2, tagreg=169)
    A.label(ok)
    A("v_cvt_pk_bf16_f32 v14, v168, 0"); A("v_lshlrev_b32 v15, 16, v14")
    A("v_sub_f32 v12, 1.0, v15"); A("v_cvt_pk_bf16_f32 v12, v12, 0"); A("v_lshlrev_b32 v13, 16, v12")
    A(f"ds_write_b128 v7, v[12:15] offset:{OMG}")
    A(f"s_lshl_b32 s29, s{sH}, 8"); A("s_add_u32 s12, s29, s26"); A("s_add_u32 s13, s12, 768"); A("s_add_u32 s14, s12, 1536")
    A(f"s_add_u32 s15, s26, {9*256}"); A(f"s_cmp_eq_u32 s{sH}, 0"); A("s_cselect_b32 s15, s15, s14")
    lp = A.newlabel("yl"); dn = A.newlabel("yl")
    A("s_mov_b32 s62, 0")
    A.label(lp)
    D = [32, 40, 48, 4]
    for i in range(3): A(f"s_load_dwordx8 s[{D[i]}:{D[i]+7}], s[20:21], s{12+i} glc")
    A("s_load_dwordx4 s[8:11], s[20:21], s15 glc"); A("s_load_dwordx4 s[16:19], s[20:21], s15 offset:16 glc")
    A("s_addk_i32 s62, 1")
    A("s_waitcnt lgkmcnt(0)")
    regs = list(range(32, 56)) + [8, 9, 10, 11, 16, 17, 18, 19]
    A("s_and_b64 s[28:29], s[32:33], s[34:35]"); A("s_or_b64 s[30:31], s[32:33], s[34:35]")
    for r in regs[4::2]:
        A(f"s_and_b64 s[28:29], s[28:29], s[{r}:{r+1}]"); A(f"s_or_b64 s[30:31], s[30:31], s[{r}:{r+1}]")
    A("s_and_b32 s28, s28, s29"); A("s_or_b32 s30, s30, s31")
    A(f"s_xor_b32 s28, s28, s{TAG}"); A(f"s_xor_b32 s30, s30, s{TAG}"); A("s_or_b32 s28, s28, s30")
    A(f"s_cbranch_scc0 {dn}")
    A(f"s_sleep {OPT['psleep']}")
    A(f"s_cmpk_lt_u32 s62, 0x{SPIN:x}"); A(f"s_cbranch_scc1 {lp}")
    A.label(dn)
    for i in range(4):
        A(f"s_add_u32 s28, s{sH}, {3*i}")
        if i == 3: A(f"s_cmp_lg_u32 s{sH}, 0"); A(f"s_cbranch_scc1 {dn}x")
        A("s_lshl_b32 s28, s28, 15"); A(f"s_add_u32 m0, s{sL}, {1024*i}"); A("s_add_u32 s28, s28, s27")
        A("buffer_load_dwordx4 v8, s[20:23], s28 offen sc1 lds")
    A.label(dn + "x")
    stamp(A, 7)
    A("s_waitcnt vmcnt(0)")
    for i in range(4):
        A(f"ds_read_b64_tr_b16 v[{8+4*i}:{9+4*i}], v2 offset:{1024*i}")
        A(f"ds_read_b64_tr_b16 v[{10+4*i}:{11+4*i}], v2 offset:{1024*i+512}")
    for i in range(4):
        A(f"s_waitcnt lgkmcnt({6-i})" if i < 3 else "s_waitcnt lgkmcnt(3)")
        A(f"ds_write_b128 v3, v[{8+4*i}:{11+4*i}] offset:{A2O + A2S*i}")
    stamp(A, 8)

def build():
    A = Asm(); A.later = []
    A.raw(f"; @launch grid=(256,1,1) block=(512,1,1) lds={LDS_BYTES}")
    A.raw('.amdgcn_target "amdgcn-amd-amdhsa--gfx950"')
    kernel_begin(A, NAME)
    A("s_cmp_ge_u32 s2, 256"); A("s_cbranch_scc1 k_end")
    if OPT["lite"]: A("s_memrealtime s[92:93]")
    else: stamp_begin(A)
    if OPT["rt"]: A("s_mov_b32 s64, s92")
    if OPT["probe"] >= 0:
        A("s_memrealtime s[64:65]"); A("s_waitcnt lgkmcnt(0)"); A("s_mov_b32 s66, s64")
    A("s_getpc_b64 s[24:25]")
    A.label("k_pc")
    A("s_load_dwordx16 s[32:47], s[0:1], 0")
    A(f"s_lshr_b32 s{RR}, s2, 3")
    A("v_lshrrev_b32 v1, 6, v0"); A(f"v_lshl_add_u32 v2, v1, 5, s{RR}"); A("v_lshlrev_b32 v2, 7, v2")
    A("v_min_u32 v2, k_last - k_pc, v2")
    A("v_mov_b32 v5, s25"); A("v_add_co_u32 v4, vcc, s24, v2"); A("v_addc_co_u32 v5, vcc, 0, v5, vcc")
    A("global_load_dword v15, v[4:5], off")
    A("v_readfirstlane_b32 s3, v1")
    A("s_load_dwordx8 s[48:55], s[0:1], 64")
    A("s_load_dwordx4 s[56:59], s[0:1], 96")
    A("s_load_dwordx2 s[20:21], s[0:1], 112")
    A("v_and_b32 v0, 63, v0"); A(f"s_and_b32 s{XCD}, s2, 7")
    A("s_cmp_lg_u32 s3, 4"); A("s_cbranch_scc1 k_k")
    A("v_lshlrev_b32 v8, 2, v0"); A(f"v_add_u32 v8, {FLG}, v8"); A("v_mov_b32 v9, 1")
    A("ds_write_b32 v8, v9")
    if OPT["lay"] in (1, 2):
        loader(A); A("s_branch k_post")
        if OPT["lay"] == 2: A.raw(".p2align 7")
    else: A("s_branch k_l")
    A.label("k_k")
    ev = [(0,1,1,2),(1,1,1,1),(1,2,2,1),(2,1,1,1),(0,0,0,0),(0,0,0,1),(1,0,0,2),(2,0,0,1)]
    if OPT["defer"] == 2: ev[0] = (0,1,2,1)
    od = [(0,1,1,1),(0,2,2,1),(1,1,1,1),(1,2,2,1),(0,0,0,0),(0,0,0,2),(1,0,0,2),(2,0,2,0)]
    enc = lambda t: sum((r | (sl << 2) | (p << 4) | (c << 6)) << (8*i) for i, (r, sl, p, c) in enumerate(t))
    A(f"s_mov_b32 s10, 0x{enc(ev) & 0xffffffff:x}"); A(f"s_mov_b32 s11, 0x{enc(ev) >> 32:x}")
    A(f"s_lshr_b32 s18, s{RR}, 1"); A("s_lshl_b32 s18, s18, 3"); A(f"s_add_u32 s18, s18, s{XCD}")
    A(f"s_and_b32 s8, s{RR}, 1")
    A(f"s_cselect_b32 s10, 0x{enc(od) & 0xffffffff:x}, s10"); A(f"s_cselect_b32 s11, 0x{enc(od) >> 32:x}, s11")
    A("s_lshl_b32 s9, s3, 3"); A("s_lshr_b64 s[10:11], s[10:11], s9")
    A(f"s_and_b32 s{LCH}, s10, 3"); A("s_bfe_u32 s17, s10, 0x20004"); A("s_bfe_u32 s16, s10, 0x20006")
    if OPT["defer"] == 2:
        A("s_lshl_b32 s9, s8, 3"); A("s_add_u32 s9, s9, s3"); A("s_cmp_eq_u32 s9, 5"); A("s_cselect_b32 s14, 2, 1")
    else:
        A("s_cmp_lt_u32 s3, 4"); A("s_cselect_b32 s14, s16, 1")
    A("s_mul_i32 s9, s8, 3"); A(f"s_add_u32 s9, s9, s{LCH}")
    A(f"s_cmp_eq_u32 s{LCH}, 2"); A("s_cselect_b32 s9, 2, s9"); A("s_cselect_b32 s13, s16, 0")
    A(f"s_mul_i32 s{CH}, s18, 5"); A(f"s_add_u32 s{CH}, s{CH}, s9")
    kpass(A)
    kgive(A)
    mwave(A)
    A.label("k_post")
    post(A)
    if OPT["lite"]:
        A("s_branch k_dg")
        def dg():
            A.label("k_dg")
            for i in range(13): A(f"s_mov_b32 s{64+2*i}, 0")
            stamp_end(A, 0); A("s_endpgm")
        A.later.append(dg)
    else: stamp_end(A, 0)
    if OPT["probe"] >= 0:
        A("s_waitcnt vmcnt(0)")
        stamp(A, 13)
        A("s_cmp_lg_u32 s3, 1"); A("s_cbranch_scc1 k_end")
        A(f"s_cmp_lg_u32 s2, {OPT['pwg']}"); A("s_cbranch_scc1 k_end")
        A("s_sub_u32 s70, s66, s64"); A(f"s_mul_i32 s70, s70, {OPT['pk']}"); A("s_min_u32 s70, s70, 20000")
        if OPT["xp"]:
            A("s_getreg_b32 s70, hwreg(HW_REG_XCC_ID)"); A("s_and_b32 s70, s70, 7"); A("s_add_u32 s70, s70, 1"); A("s_mul_i32 s70, s70, 1000")
        A("s_memrealtime s[68:69]"); A("s_waitcnt lgkmcnt(0)")
        A.label("k_pr")
        A("s_memrealtime s[72:73]"); A("s_waitcnt lgkmcnt(0)")
        A("s_sub_u32 s72, s72, s68"); A("s_cmp_lt_u32 s72, s70"); A("s_cbranch_scc1 k_pr")
    A.label("k_end")
    A("s_endpgm")
    A.label("k_h")
    A(f"s_mov_b32 s{RMT}, s13")
    hwave(A)
    A.label("k_fin")
    finpre(A)
    A("s_branch k_post")
    if not OPT["lay"]:
        A.label("k_l"); loader(A); A("s_branch k_post")
    for f in A.later: f()
    for sl, bk, reg, off in A.tail_code:
        A.label(sl); lds_wait(A, 7, reg, "v_cmp_ne_u32 vcc, 0", off=off); A(f"s_branch {bk}")
    A.label("k_last")
    A("s_endpgm")
    kernel_desc(A, NAME, 256, 102)
    A.lines = [l.replace("s_add_u32 s60, s60, s63", "s_add_u32 s60, s60, s3") for l in A.lines if "v_readfirstlane_b32 s63" not in l]
    return re.sub(r"^    (\w+:)$", r"\1", A.text(), flags=re.M)

if __name__ == "__main__":
    gen1.DIAG = "--diag" in sys.argv
    for a in sys.argv[2:]:
        if "=" in a:
            k, v = a.split("="); OPT[k] = eval(v)
    open(sys.argv[1], "w").write(build())
    if OPT["al"]:
        import align
        align.fix(sys.argv[1], OPT["al"])
```
